```python
import torch

def _softmax(x, axis=-1):
    return torch.softmax(x, dim=axis)
def _gelu(x):
    return torch.nn.functional.gelu(x, approximate="tanh")
def _silu(x):
    return torch.nn.functional.silu(x)
def _sigmoid(x):
    return torch.sigmoid(x)
def _layernorm(x, axis=-1, eps=1e-5):
    m = x.mean(dim=axis, keepdim=True)
    v = x.var(dim=axis, keepdim=True, unbiased=False)
    return (x - m) / torch.sqrt(v + eps)
def _scatter_add(tgt, idx, src, axis=0):
    return tgt.clone().index_add_(axis, idx, src)
def _segment_sum(src, seg, n):
    out = torch.zeros((n,) + src.shape[1:], dtype=src.dtype)
    return out.index_add_(0, seg, src)
def _pad(x, pw):
    flat = tuple(v for pair in reversed(pw) for v in pair)
    return torch.nn.functional.pad(x, flat)

kernel_name = 'recurrent_scan__compressed_kv_cla__moe_arch_mod__prompt'

def setup_inputs():

    _w = (lambda a: (lambda t: t.to(torch.bfloat16) if t.is_floating_point() else t)(torch.as_tensor(a)))
    def _A_setup():
        B, H, Sq, Sk, D, M = 1, 32, 2048, 2048, 128, 1024
        Dc = 4 * D
        return {
            "x": _w((lambda *s: torch.randn(*s, dtype=torch.bfloat16) * 0.05)(B, Sq, M)),
            "c_kv": _w((lambda *s: torch.randn(*s, dtype=torch.bfloat16) * 0.2)(B, Sk, Dc)),
            "w_q": _w((lambda *s: torch.randn(*s, dtype=torch.bfloat16) * 3.2)(M, H, D) * (M ** -0.5)),
            "w_uk": _w((lambda *s: torch.randn(*s, dtype=torch.bfloat16) * 3.2)(Dc, H, D) * (Dc ** -0.5)),
            "w_uv": _w((lambda *s: torch.randn(*s, dtype=torch.bfloat16) * 0.2)(Dc, H, D) * (Dc ** -0.5)),
            "w_o": _w((lambda *s: torch.randn(*s, dtype=torch.bfloat16) * 0.2)(H, D, M) * ((H * D) ** -0.5)),
        }
    _A_in = _A_setup()

    def _B_setup():
        B, S, D, F, C = 1, 2048, 1024, 3584, 2
        return {
            "x": _w((lambda *s: torch.randn(*s, dtype=torch.bfloat16) * 0.05)(B, S, D)),
            "w_r": _w((lambda *s: torch.randn(*s, dtype=torch.bfloat16) * 0.2)(D)),
            "w_gate": _w((lambda *s: torch.randn(*s, dtype=torch.bfloat16) * 0.1)(D, F)),
            "w_up": _w((lambda *s: torch.randn(*s, dtype=torch.bfloat16) * 0.1)(D, F)),
            "w_down": _w((lambda *s: torch.randn(*s, dtype=torch.bfloat16) * 0.1)(F, D)),
        }
    _B_in = _B_setup()

    return {
        "A_x": _A_in["x"],
        "A_c_kv": _A_in["c_kv"],
        "A_w_q": _A_in["w_q"],
        "A_w_uk": _A_in["w_uk"],
        "A_w_uv": _A_in["w_uv"],
        "A_w_o": _A_in["w_o"],
        "B_x": _B_in["x"],
        "B_w_r": _B_in["w_r"],
        "B_w_gate": _B_in["w_gate"],
        "B_w_up": _B_in["w_up"],
        "B_w_down": _B_in["w_down"],
    }

def reference(A_x, A_c_kv, A_w_q, A_w_uk, A_w_uv, A_w_o, B_x, B_w_r, B_w_gate, B_w_up, B_w_down):
    def _A_ref(x, c_kv, w_q, w_uk, w_uv, w_o):
        B, Sq, M = x.shape[0], x.shape[1], x.shape[2]
        Sk = c_kv.shape[1]
        H, D = w_q.shape[1], w_q.shape[2]
        q = torch.einsum("bqm,mhd->bhqd", x, w_q)
        k = torch.einsum("bkc,chd->bhkd", c_kv, w_uk)
        v = torch.einsum("bkc,chd->bhkd", c_kv, w_uv)
        scores = torch.einsum("bhqd,bhkd->bhqk", q, k) * (D ** -0.5)
        off = Sk - Sq
        qi = torch.arange(Sq)[:, None]
        kj = torch.arange(Sk)[None, :]
        cmask = kj <= (qi + off)
        scores = torch.where(cmask[None, None], scores, -1e9)
        p = _softmax(scores, axis=-1)
        ctx = torch.einsum("bhqk,bhkd->bhqd", p, v)
        return torch.einsum("bhqd,hdm->bqm", ctx, w_o)

    def _B_ref(x, w_r, w_gate, w_up, w_down):
        B, S, D = x.shape
        C = 2
        r = x @ w_r
        idx = torch.argsort(-r, axis=-1)[:, :C]
        idx_e = (lambda x, n, axis: torch.repeat_interleave(x, n, dim=axis))(idx.reshape(B, C, 1), D, axis=2)
        x_sel = (lambda x, i, axis: torch.take_along_dim(x, i, dim=axis))(x, idx_e, axis=1)
        g = _silu(x_sel @ w_gate)
        u = x_sel @ w_up
        y = (g * u) @ w_down
        r_sel = _sigmoid((lambda x, i, axis: torch.take_along_dim(x, i, dim=axis))(r, idx, axis=1))
        y = y * r_sel.reshape(B, C, 1)
        b_off = (torch.arange(B) * S).reshape(B, 1)
        flat_idx = (idx + b_off).reshape(B * C)
        zero = (x * 0.0).reshape(B * S, D)
        upd = _scatter_add(zero, flat_idx, y.reshape(B * C, D), axis=0)
        return x + upd.reshape(B, S, D)

    x = A_x
    xn = _layernorm(x, axis=-1)
    s = _A_ref(xn, A_c_kv, A_w_q, A_w_uk, A_w_uv, A_w_o)
    g = _silu(_B_ref(xn, B_w_r, B_w_gate, B_w_up, B_w_down))
    return x + s * g
```

```python
from common import *

O_  = 192
Q_  = 128
QS_ = 160
S_  = 96
RG_ = 64
P_  = 48
NM_ = 40
L_  = 38
vKr, vVr, vD, vNx, vMk, vD2, vL16 = "v2", "v3", "v4", "v5", "v18", "v6", "v7"
LS_ = 8
T_  = 20
LDS_W = 98304
LDS_X = 131072
CSCALE = 0x3e0293ee
NEGBIG = 0xf149f2ca

def Oreg(qb, db): return O_ + (qb*8+db)*4
def Sreg(buf, qb, kb): return S_ + buf*16 + (qb*2+kb)*4
def Preg(buf, qb): return P_ + buf*8 + qb*4

def p2_setup(k):
    k.e("s_and_b32 s36, s28, 3")
    k.e("s_sub_u32 s37, 15, s30")
    k.e("s_cmp_lt_u32 s28, 4")
    k.e("s_cselect_b32 s37, s37, s30")
    k.e("s_lshl_b32 s37, s37, 2")
    k.e("s_add_u32 s37, s37, s36")
    k.e("s_lshl_b32 s37, s37, 16")
    k.e("v_lshl_add_u32 v2, v1, 4, s37")
    k.e("v_add_u32 v3, 32768, v2")
    k.e("v_lshrrev_b32 v18, 4, v1")
    k.e("s_lshl_b32 s37, s28, 4")
    k.e("v_add_u32 v19, s37, v18")
    k.e("v_lshlrev_b32 v19, 13, v19")
    k.e("s_lshl_b32 s37, s29, 8")
    k.e("v_add_u32 v19, s37, v19")
    k.e("v_and_b32 v20, 15, v1")
    k.e("v_lshlrev_b32 v21, 1, v18")
    k.e("v_xor_b32 v21, v20, v21")
    k.e("v_lshl_add_u32 v6, v21, 4, v19")
    k.e(f"v_add_u32 v7, {32768-1024}, v6")
    k.e("v_xor_b32 v21, 8, v21")
    k.e("v_lshl_add_u32 v8, v21, 4, v19")
    k.e(f"v_add_u32 v8, {2*(32768-1024)}, v8")
    k.e(f"v_add_u32 v9, {32768-1024}, v8")
    k.e("s_lshl_b32 s33, s28, 12")
    k.e(f"s_add_u32 s33, s33, {LDS_W}")
    k.e("s_mov_b32 s31, 0")
    k.e("s_mov_b32 s32, 0")

def p2_setup2(k):
    k.e("v_lshrrev_b32 v20, 2, v20")
    k.e("v_lshl_add_u32 v19, v18, 3, v20")
    k.e("v_lshlrev_b32 v19, 8, v19")
    k.e(f"v_add_u32 v19, {LDS_W}, v19")
    k.e("v_and_b32 v21, 3, v1")
    k.e("v_lshl_add_u32 v19, v21, 3, v19")
    k.e("v_and_b32 v21, 1, v18")
    k.e("v_lshl_add_u32 v20, v21, 2, v20")
    for db in range(8):
        k.e(f"v_xor_b32 v21, {db}, v20")
        k.e(f"v_lshl_add_u32 v{10+db}, v21, 5, v19")
    k.e("s_lshl_b32 s43, s28, 12")
    k.e("v_lshl_add_u32 v4, v1, 4, s43")
    k.e("s_add_u32 s44, s43, 65536")
    k.e("s_lshl_b32 s45, s29, 20")
    for r in range(64):
        k.e(f"v_mov_b32 v{O_+r}, 0")

def p2_pieces(cfg):
    WF = [64, 96]; XF = [128, 160]
    def wdma(stage):
        return [f"s_add_u32 m0, s34, {stage*32768}"] , [VM(f"buffer_load_dwordx4 v{6+j}, s[8:11], s32 offen offset:{j*1024} lds", ("W", stage)) for j in range(4)]
    def xld(xs, s_):
        return [VM(f"buffer_load_dwordx4 {v(XF[xs]+(s_*2+rb)*4,4)}, v{2+rb}, s[4:7], s31 offen offset:{s_*1024}", ("x", xs, s_)) for rb in range(2)]
    def wrd(stage, s_, fs):
        return [DS(f"ds_read_b64_tr_b16 {v(WF[fs]+4*db+2*t,2)}, v{10+db} offset:{stage*32768+(32*s_+4*t)*256}", ("w", fs)) for db in range(8) for t in range(2)]
    def mf(fs, xs, s_):
        return [f"{MF} {v(Oreg(rb,db),4)}, {v(WF[fs]+4*db,4)}, {v(XF[xs]+(s_*2+rb)*4,4)}, {v(Oreg(rb,db),4)}" for db in range(8) for rb in range(2)]
    pro = ["s_mov_b32 s34, s33"]
    for t in range(2):
        m, d = wdma(t)
        pro += m + ["s_nop 0"] + d + [f"s_add_u32 s32, s32, {128*8192}"]
        for s_ in range(4 if t == 0 else 3): pro += xld(t, s_)
        if t == 0: pro += ["s_add_u32 s31, s31, 4096"]
    pro2 = [Need("vm", [("W", 0)]), "s_barrier"] + wrd(0, 0, 0) + ["s_mov_b32 s35, 0"]
    kvpre = ["s_mov_b32 m0, s43", "s_add_u32 s46, s45, 65536"]
    kvpre += [VM(f"buffer_load_dwordx4 {vD}, s[12:15], s45 offen offset:{j*1024} lds", "kv") for j in range(4)]
    kvpre += ["s_add_u32 m0, s43, 32768", "s_add_u32 s47, s45, 32768"]
    kvpre += [VM(f"buffer_load_dwordx4 {vD}, s[12:15], s46 offen offset:{j*1024} lds", "kv") for j in range(4)]
    kvpre += ["s_mov_b32 m0, s44", "s_nop 0"]
    kvpre += [VM(f"buffer_load_dwordx4 {vD}, s[12:15], s47 offen offset:{j*1024} lds", "kv") for j in range(4)]
    body = []
    for stage in range(2):
        for s_ in range(4):
            fills = [[] for _ in range(16)]
            if s_ < 3:
                body += [Need("ds", [("w", s_ & 1)])]
                rd = wrd(stage, s_+1, (s_+1) & 1)
            else:
                body += [Need("ds", [("w", 1)]), Need("vm", [("W", stage ^ 1)]), "s_barrier"]
                rd = wrd(stage ^ 1, 0, 0)
            body += [Need("vm", [("x", stage, s_)])]
            for g in range(8): fills[g] += rd[2*g:2*g+2]
            if s_ == 0:
                xl = xld(stage ^ 1, 3)
                fills[8] += [xl[0]]; fills[9] += [xl[1], "s_add_u32 s31, s31, 4096"]
                if stage == 0:
                    fills[10] += ["s_cmp_lt_u32 s35, 3", "s_cselect_b32 s6, 4194304, 0", "s_cselect_b32 s10, 8388608, 0", "s_cselect_b32 s34, s33, 0x30000"]
            else:
                xl = xld(stage, s_-1)
                fills[8] += [xl[0]]; fills[9] += [xl[1]]
            if s_ == 3:
                m, d = wdma(stage)
                fills[9] += m
                for j in range(4): fills[10+j] += [d[j]]
                fills[14] += [f"s_add_u32 s32, s32, {128*8192}"]
            body += weave(mf(s_ & 1, stage, s_), fills)
    return pro, pro2, kvpre, body

def q_pack(k, grp):
    k.e(f"s_mov_b32 s36, {CSCALE}")
    k.e("s_and_b32 s37, s28, 3")
    k.e("s_lshl_b32 s37, s37, 13")
    k.e(f"v_lshlrev_b32 {vL16}, 4, v1")
    k.e(f"v_add_u32 {vD}, s37, {vL16}")
    k.e(f"v_add_u32 {vD2}, 4096, {vD}")
    k.e(f"v_add_u32 v19, {LDS_X}, {vD}")
    k.e("s_mov_b32 s43, s37")
    k.e("s_add_u32 s44, s37, 98304")
    k.e("s_waitcnt vmcnt(0) lgkmcnt(0)")
    for f in range(8):
        a = O_ + 8*f
        for e in range(8): k.e(f"v_mul_f32 v{a+e}, s36, v{a+e}")
        for q in range(4): k.e(f"v_cvt_pk_bf16_f32 v{Q_+4*f+q}, v{a+2*q}, v{a+2*q+1}")
        if grp == 0: k.e(f"ds_write_b128 v19, {v(Q_+4*f,4)} offset:{f*1024}")
    k.e(f"v_mov_b32 {vKr}, {vL16}")
    k.e("v_and_b32 v21, 15, v1")
    k.e("v_lshrrev_b32 v22, 4, v1")
    k.e("v_lshlrev_b32 v22, 2, v22")
    k.e(f"v_sub_u32 {vMk}, v21, v22")
    k.e("s_mov_b32 s40, 0")
    k.e("s_mov_b32 s41, 0")
    k.e("s_lshl_b32 s51, s30, 1")
    k.e("s_add_u32 s51, s51, 1")
    k.e("s_and_b32 s36, s28, 3")
    k.e("s_lshl_b32 s36, s36, 5")
    if grp == 0:
        k.e("s_sub_u32 s37, 15, s30")
        k.e("s_lshl_b32 s37, s37, 7")
    else:
        k.e("s_lshl_b32 s37, s30, 7")
    k.e("s_add_u32 s36, s36, s37")
    k.e("s_sub_u32 s50, 0, s36")
    if grp == 1:
        k.e("s_lshl_b32 s42, s30, 8")
        k.e(f"s_sub_u32 s42, s42, {14*128}")
    else:
        k.e("s_add_u32 s36, s51, 1")
        k.e("s_lshl_b32 s36, -1, s36")
        k.e("s_or_b32 s48, s36, 0xaaaaaaaa")
        k.e("s_and_b32 s48, s48, 0x7ffe")
        k.e("s_or_b32 s39, s36, 0x55555555")
        k.e("s_and_b32 s39, s39, 0xffff")
        k.e(f"s_add_u32 s46, s45, {2*65536}")
        k.e(f"s_add_u32 s47, s45, {65536+32768}")
    k.e("s_mov_b64 s[52:53], 0")
    k.e("s_waitcnt lgkmcnt(0)")
    k.e("s_barrier")
    if grp == 1:
        for f in range(8):
            k.e(f"ds_read_b128 {v(QS_+4*f,4)}, v19 offset:{f*1024}")

OOL = []
def ool(k, cond, br, block):
    lr, lb = k.newlabel("rare"), k.newlabel("back")
    OOL.append([lr + ":"] + block + [f"s_branch {lb}"])
    return cond + [f"{br} {lr}", lb + ":"]
def flush_ool(k):
    while OOL: emit(k, OOL.pop(0))

def maskblk(k, buf, sU):
    L = [f"v_mov_b32 v{T_}, {NEGBIG}", f"v_subrev_u32 v{T_+1}, {sU}, {vMk}"]
    for qb in range(2):
        for kb in range(2):
            for e in range(4):
                L.append(f"v_cmp_gt_i32 s[{20+2*e}:{21+2*e}], {16*(kb-qb) + e}, v{T_+1}")
            for e in range(4):
                r = Sreg(buf, qb, kb) + e
                L.append(f"v_cndmask_b32 v{r}, v{r}, v{T_}, s[{20+2*e}:{21+2*e}]")
    return ool(k, [f"s_cmp_lt_i32 {sU}, 0"], "s_cbranch_scc0", L)

def qk(buf, fr0, czero):
    L = []
    for kb in range(2):
        for sg in range(4):
            f = RG_ + 4*((fr0 + kb*4 + sg) % 8)
            for qb in range(2):
                d = Sreg(buf, qb, kb)
                c = v(d, 4) if sg else ("0" if czero else v(NM_+4*qb, 4))
                L.append(f"{MF} {v(d,4)}, {v(f,4)}, {v(Q_+(qb*4+sg)*4,4)}, {c}")
    return L

def pv(buf, fr0):
    L = []
    for db in range(8):
        f = RG_ + 4*((fr0 + db) % 8)
        for qb in range(2):
            L.append(f"{MF} {v(Oreg(qb,db),4)}, {v(f,4)}, {v(Preg(buf,qb),4)}, {v(Oreg(qb,db),4)}")
    return L

def sm_elems(buf):
    out = []
    for kb in range(2):
        for qb in range(2):
            for e in range(4):
                r = Sreg(buf, qb, kb) + e
                post = [f"v_add_f32 v{L_+qb}, v{L_+qb}, v{r}"]
                if e & 1:
                    post.append(f"v_cvt_pk_bf16_f32 v{Preg(buf,qb)+2*kb+e//2}, v{r-1}, v{r}")
                out.append((f"v_exp_f32 v{r}, v{r}", post))
    return out

def rd(frag, base, off):
    s_ = frag % 8
    return DS(f"ds_read_b128 {v(RG_+4*s_,4)}, {base} offset:{off}", ("r", s_))

def rowred(op, x, t):
    return [f"v_mov_b32 {t}, {x}", "s_nop 1", f"v_permlane16_swap_b32 {x}, {t}", "s_nop 1", f"{op} {x}, {x}, {t}",
            f"v_mov_b32 {t}, {x}", "s_nop 1", f"v_permlane32_swap_b32 {x}, {t}", "s_nop 1", f"{op} {x}, {x}, {t}"]


def advance(grp):
    G = [["s_add_u32 s49, s50, 32", f"v_add_u32 v{T_+4}, 65536, {vKr}"]]
    if grp == 0:
        G += [["s_cmp_le_u32 s40, s51", "s_cselect_b32 s36, 64, 128"], ["s_add_u32 s41, s41, s36", "s_add_u32 s50, s50, s36"]]
    else:
        G += [["s_cmp_lt_u32 s40, s51", "s_cselect_b32 s36, 64, 128"], ["s_add_u32 s41, s41, s36"],
              ["s_cmp_eq_u32 s40, s51", "s_cselect_b32 s36, s42, s36"], ["s_add_u32 s50, s50, s36"]]
    G += [["s_and_b32 s36, s41, 0xff", f"v_lshl_add_u32 {vKr}, s36, 8, {vL16}"],
          ["s_cmp_eq_u32 s40, 16", "s_cselect_b64 s[20:21], -1, 0"], [f"v_cndmask_b32 {vNx}, {vKr}, v{T_+4}, s[20:21]"]]
    return G, [f"v_mov_b32 {vVr}, v{T_+4}"]

def dma_clumps(k, cs):
    out = []
    for which in range(2):
        msk, base, soff = ("s48", "s43", "s46") if which == 0 else ("s39", "s44", "s47")
        for c in range(8 // cs):
            lskip = k.newlabel("nodma")
            j0 = c * cs
            L = [f"s_bitcmp1_b32 {msk}, s40", f"s_cbranch_scc0 {lskip}", f"s_add_u32 m0, {base}, {(j0 // 4)*4096}", "s_nop 0"]
            for j in range(j0, j0 + cs):
                L.append(f"buffer_load_dwordx4 {vD if j < 4 else vD2}, s[12:15], {soff} offen offset:{(j%4)*1024} lds")
            if c == 8 // cs - 1:
                L += [f"s_add_u32 {soff}, {soff}, 65536", f"s_xor_b32 {base}, {base}, 32768"]
            out.append(L + [lskip + ":"])
    return out

def p3_pieces(k, cfg, grp):
    pro = [rd(f, vKr, f*1024) for f in range(8)]
    m0 = qk(0, 0, True); m1 = qk(1, 8, True)
    zero = [f"v_mov_b32 v{O_+r}, 0" for r in range(64)] + [f"v_mov_b32 v{L_}, 0", f"v_mov_b32 v{L_+1}, 0"]
    fills = [[] for _ in range(32)]; pre = {}
    for p in range(16):
        pre[2*p] = [Need("ds", [("r", p % 8)])]
        if p < 8: fills[2*p+1].append(rd(p+8, vKr, (p+8)*1024))
    for i, z in enumerate(zero): fills[min(i // 2, 31)].append(z)
    pro += weave(m0 + m1, fills, pre)
    pro += maskblk(k, 0, "s50")
    G, late = advance(grp)
    pro += flat(G) + late + ["s_barrier"] + [rd(f, vNx, f*1024) for f in range(7)]
    for qb in range(2):
        a = Sreg(0, qb, 0); t = f"v{T_+1+qb}"
        pro += [f"v_max3_f32 {t}, v{a}, v{a+1}, v{a+2}", f"v_max3_f32 {t}, {t}, v{a+3}, v{a+4}",
                f"v_max3_f32 {t}, {t}, v{a+5}, v{a+6}", f"v_max_f32 {t}, {t}, v{a+7}"]
    for qb in range(2):
        pro += rowred("v_max_f32", f"v{T_+1+qb}", f"v{T_+3}")
    for qb in range(2):
        pro += [f"v_sub_f32 v{NM_+4*qb+e}, 0, v{T_+1+qb}" for e in range(4)]
    if grp == 0:
        pro += [DS(f"ds_write_b128 v19, {v(NM_,4)}"), DS(f"ds_write_b128 v19, {v(NM_+4,4)} offset:1024")]
    for buf in range(2):
        for qb in range(2):
            a = Sreg(buf, qb, 0)
            pro += [f"v_sub_f32 v{a+e}, v{a+e}, v{T_+1+qb}" for e in range(8)]
    el = sm_elems(0)
    pro += [el[0][0]]
    for e in range(16):
        if e + 1 < 16: pro += [el[e+1][0]]
        else: pro += ["s_nop 0"]
        pro += el[e][1]
    M = qk(0, 0, False) + pv(0, 8) + qk(1, 16, False) + pv(1, 24)
    fills = [[] for _ in range(64)]; pre = {}
    def src(f):
        return (vKr, (f % 8)*1024 + (f // 16)*8192) if (f // 8) % 2 == 0 else (vVr, (f % 8)*1024 + (f // 16)*8192)
    wstep = int(cfg.get("wstep", 2))
    for p in range(32):
        if p % wstep == 0:
            pre[2*p] = [Need("ds", [("r", (p+i) % 8) for i in range(wstep)])]
    lag = int(cfg.get("lag", 0))
    for rnd in range(2):
        el = sm_elems(1 - rnd)
        for e in range(16):
            p = rnd*16 + e
            fills[2*p].append(el[e][0])
            if lag == 0: fills[2*p+1] += el[e][1]
            elif lag == 1:
                fills[2*min(p+1, rnd*16+15)+1] += el[e][1]
            elif lag == 2:
                fills[2*min(p+1, rnd*16+15)+1] += el[e][1][:1]
                fills[2*min(p+2, rnd*16+15)+(1 if p+2 > rnd*16+15 else 0)] += el[e][1][1:]
    for p in range(25):
        b, o = src(p + 7)
        fills[2*p+1].insert(0, rd(p+7, b, o))
    pre[0] = maskblk(k, 1, "s49") + pre[0]
    midc = []
    if grp == 1:
        midc = ool(k, ["s_cmp_eq_u32 s40, s51"], "s_cbranch_scc1", [f"v_mov_b32 v{LS_}, v{L_}", f"v_mov_b32 v{LS_+1}, v{L_+1}",
                f"v_mov_b32 v{L_}, 0", f"v_mov_b32 v{L_+1}, 0"])
    pre[32] = midc + maskblk(k, 0, "s50") + pre[32]
    G, late = advance(grp)
    fills[2*17] += ["s_add_u32 s40, s40, 1"]
    for i, g in enumerate(G): fills[2*(17+i)+1] += g
    fills[2*25+1] += late
    bp = int(cfg.get("bp", 26))
    if cfg.get("bwait"):
        fills[2*bp+1] += ["s_waitcnt lgkmcnt(0)", "s_memtime s[56:57]", "s_waitcnt vmcnt(0) lgkmcnt(0)", "s_barrier", "s_memtime s[58:59]", "s_waitcnt lgkmcnt(0)",
                          "s_sub_u32 s58, s58, s56", "s_add_u32 s98, s98, s58"]
    else:
        fills[2*bp+1] += ["s_waitcnt vmcnt(0) lgkmcnt(0)" if grp == 0 else "s_waitcnt lgkmcnt(0)", "s_barrier"]
    nx = {27: [0, 1], 28: [2, 3], 29: [4], 30: [5], 31: [6]}
    for p, fl in nx.items():
        for f in fl: fills[2*p+1].insert(0, rd(f, vNx, f*1024))
    if grp == 0 and not cfg.get("nodma"):
        cs = int(cfg.get("cs", 4)); d0 = int(cfg.get("d0", 0)); dsp = int(cfg.get("dsp", 4))
        for c, cl in enumerate(dma_clumps(k, cs)):
            fills[2*(d0 + c*dsp)+1] += cl
    body = weave(M, fills, pre)
    M = pv(0, 0) + pv(1, 8)
    fills = [[] for _ in range(32)]; pre = {}
    for p in range(16):
        pre[2*p] = [Need("ds", [("r", p % 8)])]
        if p + 7 < 16: fills[2*p+1].insert(0, rd(p+7, vVr, (p+7)*1024))
    el = sm_elems(1)
    for e in range(16):
        fills[e].append(el[e][0])
        fills[e+1 if e < 15 else 15] += (["s_nop 0"] if e == 15 else []) + el[e][1]
    pre[16] = ["s_nop 1"] + pre[16]
    tail = maskblk(k, 1, "s49") + weave(M, fills, pre)
    return pro, body, tail

def lcheck(k, l):
    k.e(f"v_cmp_nge_f32 vcc, s36, {l}")
    k.e("s_nop 0")
    k.e("s_or_b64 s[52:53], s[52:53], vcc")

def ctx_base(k, sblk, add):
    k.e(f"s_lshl_b32 s38, {sblk}, 3")
    k.e("s_and_b32 s37, s28, 3")
    k.e("s_lshl_b32 s37, s37, 1")
    k.e("s_add_u32 s38, s38, s37")
    if add: k.e(f"s_add_u32 s38, s38, {add}")
    k.e("s_lshl_b32 s38, s38, 17")
    k.e("s_lshl_b32 s37, s29, 12")
    k.e("s_add_u32 s38, s38, s37")

def epi_own(k, cfg, lreg, sblk, zero):
    t = [f"v{T_+i}" for i in range(18)]
    for qb in range(2):
        k.e(rowred("v_add_f32", f"v{lreg+qb}", t[0]))
    k.e("s_mov_b32 s36, 0x5d800000")
    for qb in range(2): lcheck(k, f"v{lreg+qb}")
    for qb in range(2): k.e(f"v_rcp_f32 v{lreg+qb}, v{lreg+qb}")
    ctx_base(k, sblk, 0)
    for qb in range(2):
        for sg in range(4):
            a = Oreg(qb, 2*sg); d = T_ + 2 + 4*(sg & 3)
            for e in range(8): k.e(f"v_mul_f32 v{a+e}, v{lreg+qb}, v{a+e}")
            for q in range(4): k.e(f"v_cvt_pk_bf16_f32 v{d+q}, v{a+2*q}, v{a+2*q+1}")
            k.e(f"buffer_store_dwordx4 {v(d,4)}, {vL16}, s[16:19], s38 offen offset:{sg*1024}{cfg.get('stflag','')}")
            if zero:
                for e in range(8): k.e(f"v_mov_b32 v{a+e}, 0")
        if qb == 0: k.e(f"s_add_u32 s38, s38, {1<<17}")

def merge(k, cfg, kh):
    t = [f"v{T_+i}" for i in range(18)]
    o = 1 - kh
    k.e("s_lshl_b32 s37, s28, 13")
    k.e(f"v_add_u32 {t[1]}, s37, {vL16}")
    k.e(f"v_xor_b32 {t[2]}, 32768, {t[1]}")
    k.e("s_lshl_b32 s37, s28, 8")
    k.e(f"s_add_u32 s37, s37, {LDS_X}")
    k.e(f"v_lshl_add_u32 {t[3]}, v1, 2, s37")
    k.e(f"v_xor_b32 {t[4]}, 1024, {t[3]}")
    k.e(f"ds_write_b32 {t[3]}, v{L_+o}")
    k.e("s_mov_b32 s36, 0x5d800000")
    for qb in range(2): lcheck(k, f"v{L_+qb}")
    k.e("s_or_b32 s36, s52, s53")
    k.e(f"v_mov_b32 {t[6]}, s36")
    k.e("s_lshl_b32 s37, s28, 2")
    k.e(f"s_add_u32 s37, s37, {LDS_X+4096}")
    k.e(f"v_mov_b32 {t[7]}, s37")
    k.e(f"ds_write_b32 {t[7]}, {t[6]}")
    for db in range(8):
        k.e(f"ds_write_b128 {t[1]}, {v(Oreg(o,db),4)} offset:{db*1024}")
    k.e(f"v_and_b32 {t[7]}, 7, v1")
    k.e(f"v_lshlrev_b32 {t[7]}, 2, {t[7]}")
    k.e(f"v_add_u32 {t[7]}, {LDS_X+4096}, {t[7]}")
    k.e("s_sub_u32 s36, 15, s30")
    ctx_base(k, "s36", kh)
    k.e("s_waitcnt lgkmcnt(0)")
    k.e("s_barrier")
    k.e(f"ds_read_b32 {t[6]}, {t[7]}")
    k.e(f"ds_read_b32 {t[5]}, {t[4]}")
    for db in range(8):
        k.e(f"ds_read_b128 {v(RG_+4*db,4)}, {t[2]} offset:{db*1024}")
    k.e("s_waitcnt lgkmcnt(8)")
    k.e(f"v_add_f32 {t[5]}, {t[5]}, v{L_+kh}")
    k.e(rowred("v_add_f32", t[5], t[0]))
    k.e(f"v_cmp_ne_u32 s[52:53], 0, {t[6]}")
    k.e(f"v_rcp_f32 {t[5]}, {t[5]}")
    for sg in range(4):
        k.e(f"s_waitcnt lgkmcnt({6-2*sg})")
        a = Oreg(kh, 2*sg)
        for e in range(8): k.e(f"v_add_f32 v{a+e}, v{a+e}, v{RG_+8*sg+e}")
        for e in range(8): k.e(f"v_mul_f32 v{a+e}, {t[5]}, v{a+e}")
        for q in range(4): k.e(f"v_cvt_pk_bf16_f32 v{P_+4*sg+q}, v{a+2*q}, v{a+2*q+1}")
        k.e(f"buffer_store_dwordx4 {v(P_+4*sg,4)}, {vL16}, s[16:19], s38 offen offset:{sg*1024}{cfg.get('stflag','')}")

def safe_path(k, cfg, grp):
    M_ = NM_
    t = [f"v{T_+i}" for i in range(18)]
    if grp == 1:
        for r in range(32): k.e(f"v_swap_b32 v{Q_+r}, v{QS_+r}")
    for r in range(64): k.e(f"v_mov_b32 v{O_+r}, 0")
    for qb in range(2):
        k.e(f"v_mov_b32 v{L_+qb}, 0")
        k.e(f"v_mov_b32 v{M_+qb}, {NEGBIG}")
    k.e("s_lshl_b32 s43, s28, 12")
    k.e(f"v_add_u32 {vD}, s43, {vL16}")
    k.e("s_mov_b32 s46, s45")
    k.e("s_sub_u32 s40, 16, s30")
    k.e("s_sub_u32 s39, 15, s30" if grp == 0 else "s_mov_b32 s39, s30")
    k.e("s_lshl_b32 s37, s39, 7")
    k.e("s_and_b32 s36, s28, 3")
    k.e("s_lshl_b32 s36, s36, 5")
    k.e("s_add_u32 s36, s36, s37")
    k.e("s_sub_u32 s50, 0, s36")
    lt, lu, ln_ = k.newlabel("stile"), k.newlabel("sunit"), k.newlabel("snext")
    k.label(lt)
    k.e("s_waitcnt vmcnt(0) lgkmcnt(0)")
    k.e("s_barrier")
    k.e("s_mov_b32 m0, s43")
    k.e("s_add_u32 s47, s46, 32768")
    for j in range(4): k.e(f"buffer_load_dwordx4 {vD}, s[12:15], s46 offen offset:{j*1024} lds")
    k.e("s_add_u32 m0, s43, 32768")
    k.e("s_add_u32 s46, s46, 65536")
    for j in range(4): k.e(f"buffer_load_dwordx4 {vD}, s[12:15], s47 offen offset:{j*1024} lds")
    k.e(f"v_mov_b32 {vKr}, {vL16}")
    k.e("s_mov_b32 s41, 4")
    k.e("s_waitcnt vmcnt(0)")
    k.e("s_barrier")
    k.label(lu)
    k.e("s_cmp_gt_i32 s50, 0")
    k.e(f"s_cbranch_scc1 {ln_}")
    for f in range(8): k.e(f"ds_read_b128 {v(RG_+4*f,4)}, {vKr} offset:{f*1024}")
    k.e("s_waitcnt lgkmcnt(0)")
    k.e(qk(0, 0, True))
    for f in range(8): k.e(f"ds_read_b128 {v(RG_+4*f,4)}, {vKr} offset:{32768+f*1024}")
    k.e("s_nop 1")
    emit(k, maskblk(k, 0, "s50"))
    for qb in range(2):
        a = Sreg(0, qb, 0); x = t[2+qb]
        k.e([f"v_max3_f32 {x}, v{a}, v{a+1}, v{a+2}", f"v_max3_f32 {x}, {x}, v{a+3}, v{a+4}",
             f"v_max3_f32 {x}, {x}, v{a+5}, v{a+6}", f"v_max3_f32 {x}, {x}, v{a+7}, v{M_+qb}"])
        k.e(rowred("v_max_f32", x, t[4]))
        k.e(f"v_sub_f32 {t[5]}, v{M_+qb}, {x}")
        k.e(f"v_exp_f32 {t[5]}, {t[5]}")
        k.e(f"v_mov_b32 v{M_+qb}, {x}")
        k.e(f"v_mul_f32 v{L_+qb}, v{L_+qb}, {t[5]}")
        for r in range(32): k.e(f"v_mul_f32 v{Oreg(qb,0)+r}, v{Oreg(qb,0)+r}, {t[5]}")
        for e in range(8): k.e(f"v_sub_f32 v{a+e}, v{a+e}, {x}")
    el = sm_elems(0)
    for e in range(16): k.e(el[e][0])
    for e in range(16): k.e(el[e][1])
    k.e("s_waitcnt lgkmcnt(0)")
    k.e("s_nop 0")
    k.e(pv(0, 0))
    k.label(ln_)
    k.e(f"v_add_u32 {vKr}, 8192, {vKr}")
    k.e("s_add_u32 s50, s50, 32")
    k.e("s_sub_u32 s41, s41, 1")
    k.e("s_cmp_lg_u32 s41, 0")
    k.e(f"s_cbranch_scc1 {lu}")
    k.e("s_sub_u32 s40, s40, 1")
    k.e("s_cmp_lg_u32 s40, 0")
    k.e(f"s_cbranch_scc1 {lt}")
    epi_own(k, cfg, L_, "s39", False)

def gen_p3(k, cfg, grp, st):
    n0 = st.n
    q_pack(k, grp)
    st.mark()
    pro, body, tail = p3_pieces(k, cfg, grp)
    sw = []
    if grp == 1:
        sw = [f"v_swap_b32 v{Q_+r}, v{QS_+r}" for r in range(32)]
        sw = [f"ds_read_b128 {v(NM_,4)}, v19", f"ds_read_b128 {v(NM_+4,4)}, v19 offset:1024"] + sw + ["s_waitcnt lgkmcnt(0)"]
    resolve([[pro, body, body, body, tail], [pro, body, sw, body, body, tail]])
    if cfg.get("prio") and grp == int(cfg["prio"]) - 1: k.e("s_setprio 1")
    emit(k, pro)
    st.mark()
    if cfg.get("bwait"): k.e("s_mov_b32 s98, 0")
    lb = f"L_body{grp}"
    k.align(6)
    k.label(lb)
    emit(k, body)
    if grp == 1:
        ke = K(k.name + "_epi")
        epi_own(ke, cfg, LS_, "s30", True)
        lrare, lback, l2 = k.newlabel("rare"), k.newlabel("back"), k.newlabel("epi")
        OOL.append([lrare + ":", "s_cmp_lg_u32 s40, s51", f"s_cbranch_scc1 {l2}"] + sw + [f"s_branch {lback}", l2 + ":"]
                   + [x.strip() for x in ke.lines] + [f"s_branch {lback}"])
        k.e("s_sub_u32 s36, s40, s51")
        k.e("s_cmp_lt_u32 s36, 2")
        k.e(f"s_cbranch_scc1 {lrare}")
        k.label(lback)
    k.e("s_cmp_lg_u32 s40, 16")
    k.e(f"s_cbranch_scc1 {lb}")
    st.mark()
    if cfg.get("bwait"):
        st.mark()
        k.e(f"s_add_u32 s{st.base+2*st.n-2}, s{st.base+2*st.n-4}, s98")
    emit(k, tail)
    st.mark()
    merge(k, cfg, grp)
    st.mark()
    k.e("s_cmp_eq_u64 s[52:53], 0")
    k.e("s_cbranch_scc1 L_p3_done")
    if cfg.get("dbgsafe"):
        k.e("s_load_dwordx2 s[20:21], s[0:1], 96")
        k.e("s_waitcnt lgkmcnt(0)")
        k.e("v_mov_b32 v20, 0"); k.e("v_mov_b32 v21, 1")
        k.e("s_mov_b64 exec, 1")
        k.e("global_atomic_add v20, v21, s[20:21]")
        k.e("s_mov_b64 exec, -1")
    safe_path(k, cfg, grp)
    if grp == 0: st.n = n0

def gen_attn(cfg=None):
    cfg = cfg or {}
    k = K("attn_kernel")
    k.e("s_cmp_ge_u32 s2, 256")
    k.e("s_cbranch_scc1 L_attn_end")
    st = Stamps(k, cfg.get("stamp"), kid=1)
    st.mark()
    k.e("s_load_dwordx2 s[50:51], s[0:1], 16")
    k.e("s_load_dwordx2 s[54:55], s[0:1], 104")
    k.e("v_and_b32 v1, 63, v0")
    k.e("v_lshrrev_b32 v16, 6, v0")
    k.e("s_and_b32 s29, s2, 7")
    k.e("v_readfirstlane_b32 s28, v16")
    k.e("s_lshl_b32 s29, s29, 2")
    k.e("s_bfe_u32 s36, s2, 0x20003")
    k.e("s_add_u32 s29, s29, s36")
    k.e("s_lshr_b32 s30, s2, 5")
    p2_setup(k)
    k.e("s_waitcnt lgkmcnt(0)")
    srd(k, 4, 54, 4194304)
    srd(k, 8, 50, 8388608)
    pro, pro2, kvpre, body = p2_pieces(cfg)
    resolve([[pro, pro2, body, body, body, kvpre, body]])
    emit(k, pro)
    srd(k, 12, 54, 33554432, WS_KV)
    srd(k, 16, 54, 16777216, WS_CTX)
    p2_setup2(k)
    st.mark()
    emit(k, pro2)
    st.mark()
    k.align(6)
    k.label("L_p2_loop")
    k.e("s_cmp_lg_u32 s35, 3")
    k.e("s_cbranch_scc1 L_p2_nokv")
    emit(k, kvpre)
    k.label("L_p2_nokv")
    emit(k, body)
    k.e("s_add_u32 s35, s35, 1")
    k.e("s_cmp_lt_u32 s35, 4")
    k.e("s_cbranch_scc1 L_p2_loop")
    st.mark()
    k.e("s_cmp_lt_u32 s28, 4")
    k.e("s_cbranch_scc0 L_grp1")
    gen_p3(k, cfg, 0, st)
    k.e("s_branch L_p3_done")
    flush_ool(k)
    k.label("L_grp1")
    gen_p3(k, cfg, 1, st)
    k.e("s_branch L_p3_done")
    flush_ool(k)
    k.label("L_p3_done")
    st.dump(54, "s28")
    k.label("L_attn_end")
    return wrap(k, 256)
```

```python
from lib import *

WS_XN  = 0
WS_ST  = 4 << 20
WS_R   = (4 << 20) + 65536
WS_KV  = 8 << 20
WS_CTX = 40 << 20
WS_PRE = 56 << 20
WS_YP  = 57 << 20
WS_IDX = 58 << 20

MF = "v_mfma_f32_16x16x32_bf16"

def wave_sum(k, x, t, sd):
    for m in ["quad_perm:[1,0,3,2]", "quad_perm:[2,3,0,1]", "row_half_mirror", "row_mirror"]:
        k.e("s_nop 1")
        k.e(f"v_add_f32_dpp {x}, {x}, {x} {m} row_mask:0xf bank_mask:0xf")
    k.e("s_nop 0")
    for q in range(4):
        k.e(f"v_readlane_b32 s{sd+q}, {x}, {16*q}")
    k.e(f"v_mov_b32 {t}, s{sd}")
    k.e(f"v_add_f32 {t}, s{sd+1}, {t}")
    k.e(f"v_add_f32 {t}, s{sd+2}, {t}")
    k.e(f"v_add_f32 {t}, s{sd+3}, {t}")

def rbf(k, x):
    k.e(f"v_cvt_pk_bf16_f32 {x}, {x}, {x}")
    k.e(f"v_lshlrev_b32 {x}, 16, {x}")

def interleave(k, mfmas, fills):
    for i, m in enumerate(mfmas):
        k.e(m)
        if i < len(fills):
            for f in fills[i]: k.e(f)
    for f in fills[len(mfmas):]:
        for x in f: k.e(x)

WS_STAMP = 60 << 20
class Stamps:
    def __init__(self, k, on, base=64, kid=0):
        self.k, self.on, self.base, self.n, self.kid = k, on, base, 0, kid
    def mark(self, real=False):
        if not self.on: return
        if real: return
        b = self.base + 2*self.n
        assert b + 1 < 100
        self.k.e(f"s_memtime s[{b}:{b+1}]")
        self.k.e(f"s_memrealtime s[100:101]")
        self.k.e("s_waitcnt lgkmcnt(0)")
        self.k.e(f"s_mov_b32 s{b+1}, s100")
        self.n += 1
    def dump(self, wsbase, swave):
        if not self.on: return
        k = self.k
        k.e("s_waitcnt vmcnt(0) lgkmcnt(0)")
        self.mark(); self.mark(real=True)
        k.e(f"s_add_u32 s60, s{wsbase}, {WS_STAMP + self.kid*(1<<20)}")
        k.e(f"s_addc_u32 s61, s{wsbase+1}, 0")
        k.e("s_and_b32 s61, s61, 0xffff")
        k.e("s_mov_b32 s62, 0x100000")
        k.e("s_mov_b32 s63, 0x20000")
        k.e("s_lshl_b32 s100, s2, 3")
        k.e(f"s_add_u32 s100, s100, {swave}")
        k.e("s_lshl_b32 s100, s100, 8")
        k.e("s_getreg_b32 s101, hwreg(HW_REG_XCC_ID)")
        k.e("v_mov_b32 v2, 0")
        k.e("s_mov_b64 exec, 1")
        for i in range(2*self.n):
            k.e(f"v_mov_b32 v3, s{self.base+i}")
            k.e(f"buffer_store_dword v3, v2, s[60:63], s100 offen offset:{4*i}")
        k.e("v_mov_b32 v3, s101")
        k.e(f"buffer_store_dword v3, v2, s[60:63], s100 offen offset:252")
        k.e(f"v_mov_b32 v3, {0x5a5a00 + self.n}")
        k.e(f"buffer_store_dword v3, v2, s[60:63], s100 offen offset:248")
        k.e("s_mov_b64 exec, -1")
```

```python
from common import *

WS_KEY = WS_R + 16384

def wave_max_u32(k, x, sd):
    for m in ["quad_perm:[1,0,3,2]", "quad_perm:[2,3,0,1]", "row_half_mirror", "row_mirror"]:
        k.e("s_nop 1")
        k.e(f"v_max_u32_dpp {x}, {x}, {x} {m} row_mask:0xf bank_mask:0xf")
    k.e("s_nop 0")
    for q in range(4): k.e(f"v_readlane_b32 s{sd+q}, {x}, {16*q}")
    k.e(f"s_max_u32 s{sd}, s{sd}, s{sd+1}")
    k.e(f"s_max_u32 s{sd+2}, s{sd+2}, s{sd+3}")
    k.e(f"s_max_u32 s{sd}, s{sd}, s{sd+2}")

def top2_loads(k, R, ld=""):
    k.e(f"v_lshlrev_b32 v{R+32}, 4, v1")
    k.e(f"s_mov_b32 s36, {WS_KEY}")
    k.e(f"s_mov_b32 s37, {WS_KEY+4096}")
    for i in range(8):
        k.e(f"buffer_load_dwordx4 {v(R+4*i,4)}, v{R+32}, s[24:27], s{36+i//4} offen offset:{(i%4)*1024}{ld}")

def top2(k, R):
    m1, m2, t = f"v{R+32}", f"v{R+33}", f"v{R+34}"
    k.e(f"v_max_u32 {m1}, v{R}, v{R+1}")
    k.e(f"v_min_u32 {m2}, v{R}, v{R+1}")
    for i in range(2, 32):
        k.e(f"v_med3_u32 {m2}, {m1}, {m2}, v{R+i}")
        k.e(f"v_max_u32 {m1}, {m1}, v{R+i}")
    k.e(f"v_mov_b32 {t}, {m1}")
    wave_max_u32(k, t, 36)
    k.e("s_mov_b32 s58, s36")
    k.e(f"v_cmp_eq_u32 vcc, s58, {m1}")
    k.e("s_nop 1")
    k.e(f"v_cndmask_b32 {t}, {m1}, {m2}, vcc")
    wave_max_u32(k, t, 36)
    k.e("s_mov_b32 s59, s36")
    for t_ in range(2):
        k.e(f"s_and_b32 s36, s{58+t_}, 0xffff")
        k.e(f"s_sub_u32 s{56+t_}, 0xffff, s36")

def prolog(k, name, n, w_off):
    k.e(f"s_cmp_ge_u32 s2, {n}")
    k.e(f"s_cbranch_scc1 L_{name}_end")
    k.e(f"s_load_dwordx4 s[44:47], s[0:1], {w_off}")
    k.e("s_load_dwordx2 s[54:55], s[0:1], 104")
    k.e("v_and_b32 v1, 63, v0")
    k.e("v_lshrrev_b32 v16, 6, v0")
    k.e("s_nop 0")
    k.e("v_readfirstlane_b32 s28, v16")
    k.e("s_waitcnt lgkmcnt(0)")
    srd(k, 24, 54, 64 << 20)

def wdma_addr(k, V, srow0, pitch, scol):
    k.e(f"v_lshrrev_b32 v{V+1}, 3, v1")
    k.e("s_lshl_b32 s36, s28, 5")
    k.e(f"s_add_u32 s36, s36, {srow0}")
    k.e(f"v_add_u32 v{V+1}, s36, v{V+1}")
    k.e(f"v_mul_u32_u24 v{V+1}, {pitch}, v{V+1}")
    k.e(f"v_add_u32 v{V+1}, {scol}, v{V+1}")
    k.e(f"v_bfe_u32 v{V+2}, v1, 4, 1")
    k.e(f"v_lshlrev_b32 v{V+2}, 1, v{V+2}")
    k.e(f"v_and_b32 v{V+3}, 7, v1")
    k.e(f"v_xor_b32 v{V+2}, v{V+2}, v{V+3}")
    k.e(f"v_lshl_add_u32 v{V}, v{V+2}, 4, v{V+1}")
    k.e(f"v_xor_b32 v{V+2}, 4, v{V+2}")
    k.e(f"v_lshl_add_u32 v{V+1}, v{V+2}, 4, v{V+1}")
    k.e(f"v_add_u32 v{V+1}, {8*pitch-1024}, v{V+1}")
    k.e(f"v_add_u32 v{V+2}, {2*(8*pitch-1024)}, v{V}")
    k.e(f"v_add_u32 v{V+3}, {2*(8*pitch-1024)}, v{V+1}")

def wrd_addr(k, d, fz, t1):
    k.e(f"v_lshrrev_b32 {t1}, 4, v1")
    k.e(f"v_bfe_u32 {d}, v1, 2, 2")
    k.e(f"v_lshl_add_u32 {d}, {t1}, 3, {d}")
    k.e(f"v_lshlrev_b32 {d}, 7, {d}")
    k.e(f"v_and_b32 {fz}, 3, v1")
    k.e(f"v_lshl_add_u32 {d}, {fz}, 3, {d}")
    k.e(f"v_bfe_u32 {fz}, v1, 3, 2")

def gen_ffn1(cfg):
    k = K("ffn1_kernel")
    prolog(k, "ffn1", 224, 64)
    srd(k, 4, 44, 7340032); srd(k, 8, 46, 7340032)
    top2_loads(k, 64)
    k.e("s_and_b32 s29, s2, 3")
    k.e("s_lshr_b32 s30, s2, 2")
    k.e("s_lshl_b32 s38, s29, 8")
    k.e("s_lshl_b32 s39, s30, 7")
    wdma_addr(k, 6, "s38", 7168, "s39")
    k.e("s_lshl_b32 s33, s28, 12")
    for m in range(2):
        k.e(f"s_add_u32 m0, s33, {m*32768}")
        k.e("s_nop 0")
        for j in range(4): k.e(f"buffer_load_dwordx4 v{6+j}, s[{4+4*m}:{7+4*m}], 0 offen offset:{j*1024} lds")
    k.e("s_waitcnt vmcnt(8)")
    top2(k, 64)
    k.e("v_and_b32 v10, 1, v1")
    k.e("v_mov_b32 v11, s56")
    k.e("v_mov_b32 v12, s57")
    k.e("v_cmp_eq_u32 vcc, 1, v10")
    k.e("s_nop 1")
    k.e("v_cndmask_b32 v11, v11, v12, vcc")
    k.e("v_lshrrev_b32 v12, 4, v11")
    k.e("v_lshlrev_b32 v12, 15, v12")
    k.e("v_and_b32 v11, 15, v11")
    k.e("v_lshl_add_u32 v12, v11, 4, v12")
    k.e("v_lshrrev_b32 v13, 4, v1")
    k.e("v_lshl_add_u32 v12, v13, 8, v12")
    k.e("s_lshl_b32 s36, s29, 13")
    k.e("s_add_u32 s37, s36, 4096")
    for s_ in range(8):
        k.e(f"buffer_load_dwordx4 {v(64+4*s_,4)}, v12, s[24:27], s{36+s_//4} offen offset:{(s_%4)*1024}")
    wrd_addr(k, "v14", "v15", "v16")
    k.e("s_and_b32 s36, s28, 3")
    k.e("v_xor_b32 v15, s36, v15")
    k.e("v_lshl_add_u32 v14, v15, 5, v14")
    k.e("s_lshr_b32 s36, s28, 2")
    k.e("s_lshl_b32 s36, s36, 15")
    k.e("v_add_u32 v14, s36, v14")
    k.e("s_waitcnt vmcnt(8)")
    k.e("s_barrier")
    for s_ in range(8):
        for t in range(2):
            k.e(f"ds_read_b64_tr_b16 {v(100+4*s_+2*t,2)}, v14 offset:{(32*s_+4*t)*128}")
    k.e("s_waitcnt vmcnt(0) lgkmcnt(0)")
    for s_ in range(8):
        k.e(f"{MF} v[20:23], {v(100+4*s_,4)}, {v(64+4*s_,4)}, {'v[20:23]' if s_ else '0'}")
    k.e("s_lshl_b32 s36, s29, 1")
    k.e("s_lshr_b32 s37, s28, 2")
    k.e("s_add_u32 s36, s36, s37")
    k.e(f"s_mul_i32 s36, s36, {2*14336}")
    k.e("s_lshl_b32 s37, s30, 8")
    k.e("s_add_u32 s36, s36, s37")
    k.e("s_and_b32 s37, s28, 3")
    k.e("s_lshl_b32 s37, s37, 6")
    k.e("s_add_u32 s36, s36, s37")
    k.e(f"s_add_u32 s36, s36, {WS_PRE}")
    k.e("v_mul_u32_u24 v10, 14336, v10")
    k.e("v_lshl_add_u32 v10, v13, 4, v10")
    k.e("s_mov_b32 exec_lo, 0x00030003")
    k.e("s_mov_b32 exec_hi, 0x00030003")
    k.e("buffer_store_dwordx4 v[20:23], v10, s[24:27], s36 offen")
    k.label("L_ffn1_end")
    return wrap(k, 136)

def gen_ffn2(cfg):
    k = K("ffn2_kernel")
    prolog(k, "ffn2", 256, 80)
    srd(k, 4, 44, 7340032)
    k.e("s_and_b32 s30, s2, 15")
    k.e("s_lshr_b32 s29, s2, 4")
    k.e("v_and_b32 v10, 1, v1")
    k.e("v_lshrrev_b32 v13, 4, v1")
    k.e("s_cmp_eq_u32 s28, 7")
    k.e("s_cbranch_scc1 L_ffn2_w7")
    k.e("s_mul_i32 s38, s29, 224")
    k.e("s_lshl_b32 s39, s30, 7")
    wdma_addr(k, 6, "s38", 2048, "s39")
    k.e("s_lshl_b32 s33, s28, 12")
    k.e("s_mov_b32 m0, s33")
    k.e("s_nop 0")
    for j in range(4): k.e(f"buffer_load_dwordx4 v{6+j}, s[4:7], 0 offen offset:{j*1024} lds")
    k.e("s_lshl_b32 s36, s28, 5")
    k.e("s_add_u32 s36, s36, s38")
    k.e("s_lshl_b32 s36, s36, 2")
    k.e(f"s_add_u32 s36, s36, {WS_PRE}")
    k.e("v_mul_u32_u24 v11, 14336, v10")
    k.e("v_lshl_add_u32 v11, v13, 5, v11")
    for q in range(8):
        for h in range(2):
            k.e(f"buffer_load_dwordx4 {v(64+8*q+4*h,4)}, v11, s[24:27], s36 offen offset:{16*h}")
        if q < 7: k.e(f"s_add_u32 s36, s36, {2*14336}")
    wrd_addr(k, "v14", "v15", "v16")
    k.e("v_add_u32 v14, s33, v14")
    k.e("s_waitcnt vmcnt(0)")
    for cb in range(4):
        k.e(f"v_xor_b32 v16, {cb}, v15")
        k.e("v_lshl_add_u32 v16, v16, 5, v14")
        for t in range(2):
            k.e(f"ds_read_b64_tr_b16 {v(40+4*cb+2*t,2)}, v16 offset:{4*t*128}")
    for e in range(16):
        for q in range(1, 4):
            k.e(f"v_add_f32 v{64+e}, v{64+e}, v{64+16*q+e}")
    for e in range(8):
        g, u = f"v{64+e}", f"v{72+e}"
        rbf(k, g); rbf(k, u)
        k.e(f"v_mul_f32 v17, 0xbfb8aa3b, {g}")
        k.e("v_exp_f32 v17, v17")
        k.e("s_nop 0")
        k.e("v_add_f32 v17, 1.0, v17")
        k.e("v_rcp_f32 v17, v17")
        k.e("s_nop 0")
        k.e(f"v_mul_f32 {g}, {g}, v17")
        rbf(k, g)
        k.e(f"v_mul_f32 {g}, {g}, {u}")
    for q in range(4): k.e(f"v_cvt_pk_bf16_f32 v{36+q}, v{64+2*q}, v{65+2*q}")
    k.e("s_waitcnt lgkmcnt(0)")
    k.e("s_nop 0")
    for cb in range(4):
        k.e(f"{MF} {v(20+4*cb,4)}, {v(40+4*cb,4)}, v[36:39], 0")
    k.e("s_add_u32 s36, s33, 32768")
    k.e("v_lshl_add_u32 v16, v1, 4, s36")
    k.e("s_nop 6")
    for cb in range(4):
        k.e(f"ds_write_b128 v16, {v(20+4*cb,4)} offset:{cb*1024}")
    k.e("s_waitcnt lgkmcnt(0)")
    k.e("s_branch L_ffn2_join")
    k.label("L_ffn2_w7")
    k.e("s_cmp_lg_u32 s2, 0")
    k.e("s_cbranch_scc1 L_ffn2_join")
    top2_loads(k, 64)
    k.e("s_waitcnt vmcnt(0)")
    top2(k, 64)
    k.e("v_mov_b32 v20, s56")
    k.e("v_mov_b32 v21, s57")
    for t in range(2):
        d = f"v{22+t}"
        k.e(f"s_and_b32 s36, s{58+t}, 0xffff0000")
        k.e("s_cmp_lt_i32 s36, 0")
        k.e("s_cselect_b32 s37, 0x80000000, -1")
        k.e("s_xor_b32 s36, s36, s37")
        k.e("s_and_b32 s36, s36, 0xffff0000")
        k.e(f"v_mov_b32 {d}, s36")
        k.e(f"v_mul_f32 {d}, 0xbfb8aa3b, {d}")
        k.e(f"v_exp_f32 {d}, {d}")
        k.e("s_nop 0")
        k.e(f"v_add_f32 {d}, 1.0, {d}")
        k.e(f"v_rcp_f32 {d}, {d}")
        k.e("s_nop 0")
        rbf(k, d)
    k.e("v_mov_b32 v16, 0")
    k.e(f"s_mov_b32 s36, {WS_IDX}")
    k.e("s_mov_b64 exec, 1")
    k.e("buffer_store_dwordx4 v[20:23], v16, s[24:27], s36 offen")
    k.e("s_mov_b64 exec, -1")
    k.label("L_ffn2_join")
    k.e("s_barrier")
    k.e("s_cmp_ge_u32 s28, 4")
    k.e("s_cbranch_scc1 L_ffn2_end")
    k.e("s_lshl_b32 s36, s28, 10")
    k.e("s_add_u32 s36, s36, 32768")
    k.e("v_lshl_add_u32 v16, v1, 4, s36")
    for w in range(7):
        k.e(f"ds_read_b128 {v(64+4*w,4)}, v16 offset:{w*4096}")
    k.e("s_waitcnt lgkmcnt(0)")
    for w in range(1, 7):
        for e in range(4): k.e(f"v_add_f32 v{64+e}, v{64+e}, v{64+4*w+e}")
    k.e("s_lshl_b32 s36, s29, 13")
    k.e("s_lshl_b32 s37, s30, 8")
    k.e("s_add_u32 s36, s36, s37")
    k.e("s_lshl_b32 s37, s28, 6")
    k.e("s_add_u32 s36, s36, s37")
    k.e(f"s_add_u32 s36, s36, {WS_YP}")
    k.e("v_lshlrev_b32 v10, 12, v10")
    k.e("v_lshl_add_u32 v10, v13, 4, v10")
    k.e("s_mov_b32 exec_lo, 0x00030003")
    k.e("s_mov_b32 exec_hi, 0x00030003")
    k.e("buffer_store_dwordx4 v[64:67], v10, s[24:27], s36 offen")
    k.label("L_ffn2_end")
    return wrap(k, 136)
```

```python
from common import *

def ln_loads(k, X, WR, vrow, vlane16):
    k.e(f"buffer_load_dwordx4 {v(X,4)}, {vrow}, s[16:19], 0 offen")
    k.e(f"buffer_load_dwordx4 {v(X+4,4)}, {vrow}, s[16:19], 0 offen offset:1024")
    k.e(f"buffer_load_dwordx4 {v(WR,4)}, {vlane16}, s[20:23], 0 offen")
    k.e(f"buffer_load_dwordx4 {v(WR+4,4)}, {vlane16}, s[20:23], 0 offen offset:1024")

def ln_compute(k, X, WR, F, T, srow, vlane):
    t = [f"v{T+i}" for i in range(8)]
    for i in range(8):
        k.e(f"v_lshlrev_b32 v{F+2*i}, 16, v{X+i}")
        k.e(f"v_and_b32 v{F+2*i+1}, 0xffff0000, v{X+i}")
    k.e(f"v_add_f32 {t[0]}, v{F}, v{F+1}")
    for i in range(2, 16):
        k.e(f"v_add_f32 {t[0]}, {t[0]}, v{F+i}")
    wave_sum(k, t[0], t[1], 36)
    k.e(f"v_mul_f32 {t[1]}, 0x3a800000, {t[1]}")
    k.e(f"v_sub_f32 {t[2]}, v{F}, {t[1]}")
    k.e(f"v_mul_f32 {t[0]}, {t[2]}, {t[2]}")
    for i in range(1, 16):
        k.e(f"v_sub_f32 {t[2]}, v{F+i}, {t[1]}")
        k.e(f"v_fmac_f32 {t[0]}, {t[2]}, {t[2]}")
    wave_sum(k, t[0], t[2], 36)
    k.e(f"v_mul_f32 {t[2]}, 0x3a800000, {t[2]}")
    k.e(f"v_cvt_pk_bf16_f32 {t[3]}, {t[1]}, {t[2]}")
    k.e(f"v_lshlrev_b32 {t[6]}, 16, {t[3]}")
    k.e(f"v_and_b32 {t[2]}, 0xffff0000, {t[3]}")
    k.e(f"v_add_f32 {t[2]}, 0x3727c5ac, {t[2]}")
    rbf(k, t[2])
    k.e(f"v_sqrt_f32 {t[2]}, {t[2]}")
    k.e("s_nop 0")
    rbf(k, t[2])
    k.e(f"v_rcp_f32 {t[7]}, {t[2]}")
    k.e("s_nop 0")
    k.e(f"v_fma_f32 {t[4]}, -{t[2]}, {t[7]}, 1.0")
    k.e(f"v_fma_f32 {t[7]}, {t[4]}, {t[7]}, {t[7]}")
    for i in range(8):
        a, b = f"v{F+2*i}", f"v{F+2*i+1}"
        k.e(f"v_sub_f32 {a}, {a}, {t[6]}")
        k.e(f"v_sub_f32 {b}, {b}, {t[6]}")
        k.e(f"v_cvt_pk_bf16_f32 {t[4]}, {a}, {b}")
        k.e(f"v_lshlrev_b32 {a}, 16, {t[4]}")
        k.e(f"v_and_b32 {b}, 0xffff0000, {t[4]}")
        k.e(f"v_mul_f32 {a}, {a}, {t[7]}")
        k.e(f"v_mul_f32 {b}, {b}, {t[7]}")
        k.e(f"v_cvt_pk_bf16_f32 v{X+i}, {a}, {b}")
        k.e(f"v_lshlrev_b32 {a}, 16, v{X+i}")
        k.e(f"v_and_b32 {b}, 0xffff0000, v{X+i}")
    k.e(f"s_lshr_b32 s40, {srow}, 4")
    k.e(f"s_lshl_b32 s40, s40, 15")
    k.e(f"s_and_b32 s41, {srow}, 15")
    k.e(f"s_lshl_b32 s41, s41, 4")
    k.e(f"s_add_u32 s40, s40, s41")
    k.e(f"s_add_u32 s41, s40, 16384")
    k.e(f"v_lshlrev_b32 {t[3]}, 8, {vlane}")
    k.e(f"buffer_store_dwordx4 {v(X,4)}, {t[3]}, s[24:27], s40 offen")
    k.e(f"buffer_store_dwordx4 {v(X+4,4)}, {t[3]}, s[24:27], s41 offen")
    for i in range(8):
        k.e(f"v_lshlrev_b32 {t[4]}, 16, v{WR+i}")
        k.e(f"v_and_b32 {t[5]}, 0xffff0000, v{WR+i}")
        if i == 0: k.e(f"v_mul_f32 {t[0]}, v{F}, {t[4]}")
        else: k.e(f"v_fmac_f32 {t[0]}, v{F+2*i}, {t[4]}")
        k.e(f"v_fmac_f32 {t[0]}, v{F+2*i+1}, {t[5]}")
    wave_sum(k, t[0], t[1], 36)
    rbf(k, t[1])
    k.e(f"v_ashrrev_i32 {t[3]}, 31, {t[1]}")
    k.e(f"v_or_b32 {t[3]}, 0x80000000, {t[3]}")
    k.e(f"v_xor_b32 {t[3]}, {t[1]}, {t[3]}")
    k.e(f"v_and_b32 {t[3]}, 0xffff0000, {t[3]}")
    k.e(f"s_sub_u32 s40, 0xffff, {srow}")
    k.e(f"v_or_b32 {t[3]}, s40, {t[3]}")
    k.e(f"s_lshl_b32 s40, {srow}, 3")
    k.e(f"s_add_u32 s40, s40, {WS_ST}")
    k.e(f"s_lshl_b32 s41, {srow}, 2")
    k.e(f"s_add_u32 s41, s41, {WS_R + 16384}")
    k.e(f"v_mov_b32 {t[2]}, 0")
    k.e("s_mov_b64 exec, 1")
    k.e(f"buffer_store_dwordx2 {v(T+6,2)}, {t[2]}, s[24:27], s40 offen")
    k.e(f"buffer_store_dword {t[3]}, {t[2]}, s[24:27], s41 offen")
    k.e("s_mov_b64 exec, -1")
    return 4

def gen_kv(cfg=None):
    cfg = cfg or {}
    k = K("kv_kernel")
    ACC = 128
    FR = [20, 68]
    k.e("s_cmp_ge_u32 s2, 256")
    k.e("s_cbranch_scc1 L_kv_end")
    st = Stamps(k, cfg.get("stamp"), kid=0)
    st.mark()
    k.e("s_load_dwordx4 s[44:47], s[0:1], 0")
    k.e("s_load_dwordx4 s[48:51], s[0:1], 24")
    k.e("s_load_dwordx2 s[52:53], s[0:1], 56")
    k.e("s_load_dwordx2 s[54:55], s[0:1], 104")
    k.e("v_and_b32 v1, 63, v0")
    k.e("v_lshrrev_b32 v16, 6, v0")
    k.e("s_and_b32 s29, s2, 7")
    k.e("v_readfirstlane_b32 s28, v16")
    k.e("s_lshl_b32 s29, s29, 2")
    k.e("s_bfe_u32 s36, s2, 0x20003")
    k.e("s_add_u32 s29, s29, s36")
    k.e("s_lshr_b32 s30, s2, 5")
    k.e("s_lshl_b32 s42, s2, 3")
    k.e("s_add_u32 s42, s42, s28")
    k.e("v_lshrrev_b32 v16, 3, v1")
    k.e("s_lshl_b32 s36, s30, 8")
    k.e("s_lshl_b32 s37, s28, 5")
    k.e("s_add_u32 s36, s36, s37")
    k.e("v_add_u32 v16, s36, v16")
    k.e("v_lshlrev_b32 v16, 10, v16")
    k.e("v_lshrrev_b32 v18, 4, v1")
    k.e("v_and_b32 v19, 7, v1")
    k.e("v_xor_b32 v19, v19, v18")
    k.e("v_lshl_add_u32 v2, v19, 4, v16")
    k.e("v_xor_b32 v19, 4, v19")
    k.e("v_lshl_add_u32 v3, v19, 4, v16")
    k.e(f"v_add_u32 v3, {8192-1024}, v3")
    k.e(f"v_add_u32 v4, {2*(8192-1024)}, v2")
    k.e(f"v_add_u32 v5, {2*(8192-1024)}, v3")
    k.e("s_and_b32 s36, s28, 3")
    k.e("s_lshl_b32 s37, s36, 4")
    k.e("v_add_u32 v16, s37, v18")
    k.e("v_lshlrev_b32 v16, 13, v16")
    k.e("s_lshl_b32 s37, s29, 8")
    k.e("v_add_u32 v16, s37, v16")
    k.e("v_and_b32 v19, 15, v1")
    k.e("v_lshlrev_b32 v18, 1, v18")
    k.e("v_xor_b32 v19, v19, v18")
    k.e("v_lshl_add_u32 v6, v19, 4, v16")
    k.e(f"v_add_u32 v7, {32768-1024}, v6")
    k.e("v_xor_b32 v19, 8, v19")
    k.e("v_lshl_add_u32 v8, v19, 4, v16")
    k.e(f"v_add_u32 v8, {2*(32768-1024)}, v8")
    k.e(f"v_add_u32 v9, {32768-1024}, v8")
    k.e("s_lshl_b32 s33, s28, 12")
    k.e("s_add_u32 s34, s33, 65536")
    k.e("s_mov_b32 s31, 0")
    k.e("s_mov_b32 s32, 0")
    k.e("s_waitcnt lgkmcnt(0)")
    st.mark()
    srd(k, 4, 46, 2097152)
    k.e("s_cmp_lt_u32 s28, 4")
    k.e("s_cselect_b32 s8, s48, s50")
    k.e("s_cselect_b32 s9, s49, s51")
    k.e("s_and_b32 s9, s9, 0xffff")
    k.e("s_mov_b32 s10, 4194304")
    k.e("s_mov_b32 s11, 0x20000")
    def dma_list(stage):
        c = [f"buffer_load_dwordx4 v{2+j}, s[4:7], s31 offen offset:{j*1024} lds" for j in range(4)]
        w = [f"buffer_load_dwordx4 v{6+j}, s[8:11], s32 offen offset:{j*1024} lds" for j in range(4)]
        mc = f"s_add_u32 m0, s33, {stage*32768}"
        mw = f"s_add_u32 m0, s34, {stage*32768}"
        return mc, c, mw, w
    def dma_now(stage):
        mc, c, mw, w = dma_list(stage)
        k.e(mc); k.e("s_nop 0"); k.e(c); k.e(mw); k.e("s_nop 0"); k.e(w)
        k.e("s_add_u32 s31, s31, 128")
        k.e(f"s_add_u32 s32, s32, {64*8192}")
    dma_now(0)
    srd(k, 16, 44, 4194304)
    srd(k, 20, 52, 2048)
    srd(k, 12, 54, 33554432, WS_KV)
    srd(k, 24, 54, 8 << 20)
    k.e("v_and_b32 v16, 15, v1")
    k.e("v_lshrrev_b32 v17, 4, v1")
    k.e("s_bfe_u32 s36, s28, 0x10001")
    k.e("s_lshl_b32 s36, s36, 14")
    k.e("v_lshl_add_u32 v18, v16, 7, s36")
    k.e("v_lshrrev_b32 v19, 1, v16")
    k.e("v_xor_b32 v19, v19, v17")
    k.e("v_lshl_add_u32 v10, v19, 4, v18")
    k.e("v_xor_b32 v19, 4, v19")
    k.e("v_lshl_add_u32 v11, v19, 4, v18")
    k.e("v_lshrrev_b32 v16, 2, v16")
    k.e("v_lshl_add_u32 v18, v17, 3, v16")
    k.e("v_lshlrev_b32 v18, 8, v18")
    k.e("s_lshr_b32 s36, s28, 2")
    k.e("s_lshl_b32 s36, s36, 14")
    k.e("s_add_u32 s36, s36, 65536")
    k.e("v_add_u32 v18, s36, v18")
    k.e("v_and_b32 v19, 3, v1")
    k.e("v_lshl_add_u32 v18, v19, 3, v18")
    k.e("v_and_b32 v17, 1, v17")
    k.e("v_lshl_add_u32 v16, v17, 2, v16")
    k.e("s_and_b32 s36, s28, 1")
    k.e("s_lshl_b32 s36, s36, 2")
    for cb in range(4):
        k.e(f"s_add_u32 s37, s36, {cb}")
        k.e("v_xor_b32 v19, s37, v16")
        k.e(f"v_lshl_add_u32 v{12+cb}, v19, 5, v18")
    dma_now(1)
    st.mark()
    for r in range(128):
        k.e(f"v_mov_b32 v{ACC+r}, 0")
    def reads(s_, stage, fs):
        b = FR[fs]
        c = [f"ds_read_b128 {v(b+4*i,4)}, v{10+s_} offset:{stage*32768+i*2048}" for i in range(8)]
        w = [[f"ds_read_b64_tr_b16 {v(b+32+4*cb+2*t,2)}, v{12+cb} offset:{stage*32768+(32*s_+4*t)*256}" for t in range(2)] for cb in range(4)]
        return [c[0]] + w[0] + w[1] + w[2] + w[3] + c[1:]
    def accreg(i, cb, vtype):
        return ACC + ((cb*8+i) if vtype else (i*4+cb))*4
    def mfmas(fs, vtype):
        b = FR[fs]; L = []
        for i in range(8):
            for cb in range(4):
                a = accreg(i, cb, vtype)
                cf, wf = v(b+4*i, 4), v(b+32+4*cb, 4)
                A, B = (cf, wf) if vtype else (wf, cf)
                L.append(f"{MF} {v(a,4)}, {A}, {B}, {v(a,4)}")
        return L
    k.e(f"s_waitcnt vmcnt(8)")
    st.mark()
    k.e("s_barrier")
    st.mark()
    k.e(reads(0, 0, 0))
    k.e("s_mov_b32 s35, 0")
    k.e("s_cmp_lt_u32 s28, 4")
    k.e("s_cbranch_scc0 L_kv_vloop")
    X, WR, F, T = 20, 28, 36, 52
    for vtype in range(2):
        lp = "L_kv_vloop" if vtype else "L_kv_kloop"
        k.align(6)
        k.label(lp)
        k.e("s_cmp_lt_u32 s35, 3")
        k.e("s_cselect_b32 s6, 2097152, 0")
        k.e("s_cselect_b32 s10, 4194304, 0")
        for stage in range(2):
            for s_ in range(2):
                fills = [[] for _ in range(32)]
                pre = []
                if s_ == 0:
                    k.e("s_waitcnt lgkmcnt(0)")
                    rd = reads(1, stage, 1)
                else:
                    k.e("s_waitcnt vmcnt(0) lgkmcnt(0)")
                    k.e("s_barrier")
                    rd = reads(0, stage ^ 1, 0)
                for g in range(16):
                    fills[g].append(rd[g])
                if s_ == 1:
                    mc, c, mw, w = dma_list(stage)
                    tail = ["s_add_u32 s31, s31, 128", f"s_add_u32 s32, s32, {64*8192}"]
                    if vtype == 1 and cfg.get("early", "1") == "1":
                        pre = [mc, "s_nop 0"] + c + [mw, "s_nop 0"] + w + tail
                    else:
                        d0 = int(cfg.get("d0", 1)); ds = int(cfg.get("ds", 3))
                        fills[d0-1].append(mc)
                        for j in range(4): fills[d0+ds*j].append(c[j])
                        fills[d0+ds*4-1].append(mw)
                        for j in range(4): fills[d0+ds*(4+j)].append(w[j])
                        fills[31] += tail
                k.e(pre)
                interleave(k, mfmas(s_, vtype), fills)
        k.e("s_add_u32 s35, s35, 1")
        k.e("s_cmp_lt_u32 s35, 4")
        k.e(f"s_cbranch_scc1 {lp}")
        if vtype == 0: st.mark()
        elif st.on:
            st.n -= 1; st.mark()
        k.e("s_waitcnt lgkmcnt(0)")
        k.e("v_lshlrev_b32 v17, 4, v1")
        k.e("s_lshl_b32 s36, s42, 11")
        k.e("v_add_u32 v18, s36, v17")
        ln_loads(k, X, WR, "v18", "v17")
        k.e("s_lshl_b32 s36, s29, 20")
        k.e("s_lshl_b32 s37, s30, 17")
        k.e("s_add_u32 s36, s36, s37")
        k.e("s_bfe_u32 s37, s28, 0x10001")
        k.e("s_lshl_b32 s37, s37, 16")
        k.e("s_add_u32 s36, s36, s37")
        k.e("s_and_b32 s37, s28, 1")
        if vtype == 0:
            k.e("s_lshl_b32 s37, s37, 11")
            k.e("s_add_u32 s36, s36, s37")
            for i in range(8):
                for p in range(2):
                    a = accreg(i, 2*p, 0)
                    for q in range(4):
                        k.e(f"v_cvt_pk_bf16_f32 v{a+q}, v{a+2*q}, v{a+2*q+1}")
                    k.e(f"buffer_store_dwordx4 {v(a,4)}, v17, s[12:15], s36 offen offset:{p*1024}{cfg.get('stflag','')}")
                if i < 7: k.e("s_add_u32 s36, s36, 4096")
            k.e("s_branch L_kv_ln")
        else:
            k.e("s_lshl_b32 s37, s37, 12")
            k.e("s_add_u32 s36, s36, s37")
            k.e("s_add_u32 s36, s36, 32768")
            for u in range(4):
                for cb in range(4):
                    a = accreg(2*u, cb, 1)
                    for q in range(4):
                        k.e(f"v_cvt_pk_bf16_f32 v{a+q}, v{a+2*q}, v{a+2*q+1}")
                    k.e(f"buffer_store_dwordx4 {v(a,4)}, v17, s[12:15], s36 offen offset:{cb*1024}{cfg.get('stflag','')}")
                if u < 3: k.e("s_add_u32 s36, s36, 8192")
    k.label("L_kv_ln")
    st.mark()
    k.e("s_waitcnt vmcnt(16)")
    ln_compute(k, X, WR, F, T, "s42", "v1")
    st.mark()
    st.dump(54, "s28")
    k.label("L_kv_end")
    return wrap(k, 256)
```

```python
import re, sys

class K:
    def __init__(self, name):
        self.name = name
        self.lines = []
        self.nl = 0
    def e(self, s):
        if isinstance(s, (list, tuple)):
            for x in s: self.e(x)
            return
        self.lines.append("    " + s)
    def c(self, s):
        self.lines.append("    ; " + s)
    def label(self, l):
        self.lines.append(l + ":")
    def newlabel(self, base):
        self.nl += 1
        return f"L_{self.name}_{base}_{self.nl}"
    def align(self, p):
        self.lines.append(f"    .p2align {p}")
    def text(self):
        return "\n".join(self.lines)

def v(a, n=1):
    return f"v[{a}:{a+n-1}]" if n > 1 else f"v{a}"
def s(a, n=1):
    return f"s[{a}:{a+n-1}]" if n > 1 else f"s{a}"
def a_(a, n=1):
    return f"a[{a}:{a+n-1}]" if n > 1 else f"a{a}"

def wrap(k, vgprs, agprs=0, sgprs=102):
    name = k.name
    acc = (vgprs + 3) // 4 * 4
    nfv = acc + agprs if agprs else vgprs
    out = [f".globl {name}", ".p2align 8", f".type {name},@function", f"{name}:", k.text(), "    s_endpgm"]
    kd = [".p2align 6", f".amdhsa_kernel {name}",
          f"  .amdhsa_next_free_vgpr {nfv}", f"  .amdhsa_next_free_sgpr {sgprs}",
          f"  .amdhsa_accum_offset {acc}", "  .amdhsa_group_segment_fixed_size 0",
          "  .amdhsa_kernarg_size 112", "  .amdhsa_user_sgpr_count 2",
          "  .amdhsa_user_sgpr_kernarg_segment_ptr 1", "  .amdhsa_system_sgpr_workgroup_id_x 1",
          ".end_amdhsa_kernel"]
    check(k)
    return "\n".join(out), "\n".join(kd)

def srd(k, d, base, nbytes, add=0):
    if add:
        k.e(f"s_add_u32 s{d}, s{base}, {add}")
        k.e(f"s_addc_u32 s{d+1}, s{base+1}, 0")
        k.e(f"s_and_b32 s{d+1}, s{d+1}, 0xffff")
    else:
        k.e(f"s_mov_b32 s{d}, s{base}")
        k.e(f"s_and_b32 s{d+1}, s{base+1}, 0xffff")
    k.e(f"s_mov_b32 s{d+2}, {nbytes}")
    k.e(f"s_mov_b32 s{d+3}, 0x20000")

def build(parts, launches, path):
    out = ["; generated by gen2/gen.py -- do not edit by hand"] + launches
    out += ['.amdgcn_target "amdgcn-amd-amdhsa--gfx950"', ".text"]
    out += [c for c, _ in parts]
    out.append('.section .rodata,"a"')
    out += [kd for _, kd in parts]
    open(path, "w").write("\n".join(out) + "\n")

REG = re.compile(r"^(-|abs\()?([vsa])(\d+|\[(\d+):(\d+)\])\)?$")
def regs(op):
    op = op.strip()
    if op in ("vcc",): return {("s", 106), ("s", 107)}
    if op == "vcc_lo": return {("s", 106)}
    if op == "vcc_hi": return {("s", 107)}
    if op == "exec": return {("s", 126), ("s", 127)}
    if op == "exec_lo": return {("s", 126)}
    if op == "exec_hi": return {("s", 127)}
    if op == "m0": return {("s", 124)}
    m = REG.match(op)
    if not m: return set()
    t = m.group(2)
    if m.group(4) is not None:
        return {(t, i) for i in range(int(m.group(4)), int(m.group(5)) + 1)}
    return {(t, int(m.group(3)))}

TRANS = ("v_exp_f32", "v_log_f32", "v_rcp_f32", "v_rsq_f32", "v_sqrt_f32", "v_sin_f32", "v_cos_f32")
class I:
    pass

def parse(line):
    t = line.split(";")[0].strip()
    i = I(); i.text = t
    if not t or t.startswith("."):
        return None
    if t.endswith(":"):
        i.kind = "label"; i.name = t[:-1]; return i
    sp = t.split(None, 1)
    mn = sp[0]; rest = sp[1] if len(sp) > 1 else ""
    ops = [o.strip() for o in rest.split(",")] if rest else []
    mods = []
    if ops:
        last = ops[-1].split()
        if last:
            ops[-1] = last[0]; mods = last[1:]
    i.mn = mn; i.ops = ops; i.mods = mods
    i.w = set(); i.r = set(); i.ws = 1; i.kind = "other"; i.target = None
    i.A = i.B = i.C = set()
    R = lambda lst: set().union(*[regs(o) for o in lst]) if lst else set()
    if mn.startswith("v_mfma"):
        i.kind = "mfma"; i.w = regs(ops[0]); i.A = regs(ops[1]); i.B = regs(ops[2]); i.C = regs(ops[3])
        i.r = i.A | i.B | i.C
        i.passes = 8 if "32x32x16" in mn else 4
    elif mn.startswith("v_"):
        i.kind = "valu"
        if (mn.startswith("v_permlane") and "swap" in mn) or mn.startswith("v_swap"):
            i.w = R(ops[:2]); i.r = R(ops[:2])
        elif mn.startswith("v_cmp"):
            i.w = regs(ops[0]); i.r = R(ops[1:])
            if mn.startswith("v_cmpx"): i.w |= regs("exec")
        elif "_co_" in mn:
            i.w = R(ops[:2]); i.r = R(ops[2:])
        elif mn == "v_nop":
            pass
        else:
            i.w = regs(ops[0]); i.r = R(ops[1:])
            if mn.startswith(("v_fmac", "v_mac", "v_dot2c", "v_writelane")) or "dpp" in mn or any(m.startswith(("quad_perm", "row_")) for m in mods):
                i.r |= i.w
        i.trans = mn.startswith(TRANS)
        i.dpp = "dpp" in mn or any(m.startswith(("quad_perm", "row_", "wave_")) for m in mods)
    elif mn.startswith("ds_"):
        i.kind = "ds"
        if mn.startswith(("ds_read", "ds_bpermute", "ds_permute", "ds_swizzle")):
            i.w = regs(ops[0]); i.r = R(ops[1:])
        else:
            i.r = R(ops)
    elif mn.startswith(("buffer_", "global_")):
        i.kind = "vmem"
        i.lds = "lds" in mods
        if mn in ("buffer_wbl2", "buffer_inv"):
            pass
        elif i.lds:
            i.r = R(ops) | regs("m0")
        elif "load" in mn:
            i.w = regs(ops[0]); i.r = R(ops[1:])
        elif "atomic" in mn:
            i.r = R(ops)
            if "sc0" in mods: i.w = regs(ops[0])
        else:
            i.r = R(ops)
            i.data = regs(ops[0]) if mn.startswith("buffer_") else regs(ops[1])
            i.wide = mn.endswith(("x3", "x4"))
    elif mn.startswith("s_"):
        i.kind = "salu"
        if mn == "s_nop":
            i.ws = int(ops[0], 0) + 1
        elif mn == "s_waitcnt":
            i.kind = "wait"
            i.vm = i.lgkm = None
            for m in re.finditer(r"(vmcnt|lgkmcnt)\((\d+)\)", rest):
                if m.group(1) == "vmcnt": i.vm = int(m.group(2))
                else: i.lgkm = int(m.group(2))
        elif mn.startswith(("s_cbranch", "s_branch")):
            i.kind = "branch"; i.target = ops[0]
            if "vcc" in mn: i.r = regs("vcc")
        elif mn.startswith(("s_load", "s_memtime", "s_memrealtime", "s_buffer_load", "s_atomic")):
            i.kind = "smem"; i.w = regs(ops[0]); i.r = R(ops[1:])
        elif mn.startswith(("s_cmp", "s_barrier", "s_setprio", "s_endpgm", "s_sleep", "s_bitcmp")):
            i.r = R(ops)
        else:
            i.w = regs(ops[0]); i.r = R(ops[1:])
            if "saveexec" in mn: i.w |= regs("exec")
    return i

def need(p, c):
    n = 0
    vw = {r for r in p.w if r[0] in "va"}
    sw = {r for r in p.w if r[0] == "s"}
    if p.kind == "valu":
        if c.kind == "mfma" and vw & c.r: n = max(n, 2)
        if c.kind == "valu":
            if p.trans and not c.trans and vw & c.r: n = max(n, 1)
            if sw & c.r: n = max(n, 4 if c.mn.startswith(("v_readlane", "v_writelane")) else 2)
            if c.mn.startswith(("v_readlane", "v_readfirstlane")) and vw & c.r: n = max(n, 1)
            if c.mn.startswith("v_permlane") and vw & c.r: n = max(n, 2)
            if c.dpp and vw & c.r: n = max(n, 2)
            if regs("exec") & p.w and c.dpp: n = max(n, 5)
        if c.kind == "vmem" and sw & c.r: n = max(n, 5)
        if c.kind == "mfma" and regs("exec") & p.w: n = max(n, 4)
        if c.kind in ("salu", "smem") and sw & c.r: n = max(n, 1)
    if p.kind == "mfma":
        big = 12 if p.passes == 8 else 8
        if c.kind == "mfma":
            if p.w & (c.A | c.B): n = max(n, big)
            if p.w & c.C and not (p.w == c.C and p.passes == c.passes): n = max(n, big - 2)
            if p.w & c.w and not (p.w == c.w): n = max(n, big - 2)
        elif c.kind in ("valu", "ds", "vmem"):
            if p.w & (c.r | c.w): n = max(n, big)
            if c.kind == "valu" and p.C & c.w: n = max(n, 7 if p.passes == 8 else 3)
    if p.kind == "salu" and regs("m0") & p.w and c.kind == "vmem" and c.lds: n = max(n, 1)
    if p.kind == "vmem" and getattr(p, "wide", False):
        if p.data & c.w: n = max(n, 2 if c.kind == "valu" else 1)
    return n

def check(k, verbose=True):
    ins = [x for x in (parse(l) for l in k.lines) if x is not None]
    lab = {x.name: n for n, x in enumerate(ins) if x.kind == "label"}
    N = len(ins)
    def succ(n):
        x = ins[n]
        if x.kind == "branch":
            t = [lab[x.target]]
            if x.mn != "s_branch": t.append(n + 1)
            return [q for q in t if q < N]
        if x.kind != "label" and x.mn == "s_endpgm": return []
        return [n + 1] if n + 1 < N else []
    errs = []
    for n, p in enumerate(ins):
        if p.kind in ("label", "wait", "branch", "other"): continue
        if not (p.w or p.kind in ("mfma", "vmem")): continue
        stack = [(q, 0) for q in succ(n)]
        seen = {}
        while stack:
            q, d = stack.pop()
            if d >= 13 or seen.get(q, 99) <= d: continue
            seen[q] = d
            c = ins[q]
            if c.kind == "label":
                stack += [(z, d) for z in succ(q)]; continue
            nd = need(p, c)
            if nd > d:
                errs.append(f"HAZARD need {nd} have {d}: [{p.text}] -> [{c.text}]")
            stack += [(z, d + c.ws) for z in succ(q)]
    start = (0, (), ())
    seen = set(); stack = [start]
    while stack:
        st = stack.pop()
        if st in seen: continue
        seen.add(st)
        if len(seen) > 400000:
            errs.append("waitcnt analysis overflow"); break
        n, lq, vq = st
        x = ins[n]
        if x.kind not in ("label",):
            if x.kind == "wait":
                if x.lgkm is not None:
                    if any(e[0] == "smem" for e in lq):
                        if x.lgkm == 0: lq = ()
                    else:
                        lq = lq[len(lq) - x.lgkm:] if x.lgkm < len(lq) and x.lgkm > 0 else (() if x.lgkm == 0 else lq)
                if x.vm is not None:
                    vq = vq[len(vq) - x.vm:] if 0 < x.vm < len(vq) else (() if x.vm == 0 else vq)
            else:
                touch = x.r | x.w
                for e in lq + vq:
                    if e[1] & touch:
                        errs.append(f"WAITCNT: [{x.text}] touches pending {sorted(e[1] & touch)[:4]}")
                if x.kind == "ds": lq = lq + (("ds", frozenset(x.w)),)
                if x.kind == "smem": lq = lq + (("smem", frozenset(x.w)),)
                if x.kind == "vmem": vq = vq + (("vm", frozenset(x.w)),)
                if len(lq) > 16: lq = lq[-40:]
                if len(vq) > 70: vq = vq[-70:]
        for q in succ(n): stack.append((q, lq, vq))
    errs = list(dict.fromkeys(errs))
    if errs:
        print(f"== {k.name}: {len(errs)} problems", file=sys.stderr)
        for e in errs[:40]: print("  " + e, file=sys.stderr)
        raise SystemExit(1)
    mx = {"v": -1, "s": -1, "a": -1}
    for x in ins:
        if x.kind == "label": continue
        for t, i in (x.r | x.w):
            if not (t == "s" and i >= 102): mx[t] = max(mx[t], i)
    if verbose:
        print(f"{k.name}: {N} lines, max v{mx['v']} s{mx['s']} a{mx['a']}", file=sys.stderr)

class Op:
    def __init__(self, kind, text, tag=None):
        self.kind, self.text, self.tag = kind, text, tag
class Need:
    def __init__(self, kind, tags):
        self.kind, self.tags, self.n = kind, set(tags), None
def DS(text, tag=None): return Op("ds", text, tag)
def VM(text, tag=None): return Op("vm", text, tag)

def flat(items):
    out = []
    for x in items:
        if isinstance(x, (list, tuple)): out += flat(x)
        else: out.append(x)
    return out

def simulate(seq, final=False):
    q = {"vm": [], "ds": []}
    for x in seq:
        if isinstance(x, Op):
            q[x.kind].append(x.tag)
        elif isinstance(x, Need):
            Q = q[x.kind]
            pos = [i for i, t in enumerate(Q) if t in x.tags]
            if pos:
                n = len(Q) - 1 - max(pos)
                n = min(n, 63 if x.kind == "vm" else 15)
                if final: assert x.n is not None and x.n <= n
                x.n = n if x.n is None else min(x.n, n)
            if x.n is not None:
                del Q[:max(0, len(Q) - x.n)]
        elif isinstance(x, str):
            t = x.strip()
            if t.startswith("s_waitcnt"):
                for m in re.finditer(r"(vmcnt|lgkmcnt)\((\d+)\)", t):
                    Q = q["vm" if m.group(1) == "vmcnt" else "ds"]
                    del Q[:max(0, len(Q) - int(m.group(2)))]
            elif t.startswith(("ds_",)): q["ds"].append(None)
            elif t.startswith(("buffer_", "global_")): q["vm"].append(None)

def resolve(scenarios):
    for _ in range(3):
        for sc in scenarios: simulate(flat(sc))
    for sc in scenarios: simulate(flat(sc), final=True)

def emit(k, piece):
    for x in flat(piece):
        if isinstance(x, Op): k.e(x.text)
        elif isinstance(x, Need):
            if x.n is not None:
                k.e(f"s_waitcnt {'vmcnt' if x.kind == 'vm' else 'lgkmcnt'}({x.n})")
        elif x.endswith(":"): k.label(x[:-1])
        else: k.e(x)

def weave(mfmas, fills, pre=None):
    out = []
    for i, m in enumerate(mfmas):
        if pre and pre.get(i): out += pre[i]
        out.append(m)
        if i < len(fills): out += fills[i]
    return out
```

```python
from common import *

ACC = 224
WFR = [64, 80]
XFR = [128, 160]
XI  = 40
YA  = 100
def Areg(rb, cb): return ACC + (rb*4+cb)*4

def p4_setup(k):
    k.e("s_and_b32 s36, s2, 3")
    k.e("s_lshl_b32 s36, s36, 2")
    k.e("s_bfe_u32 s37, s2, 0x20003")
    k.e("s_add_u32 s29, s36, s37")
    k.e("s_bfe_u32 s36, s2, 0x10002")
    k.e("s_lshl_b32 s36, s36, 3")
    k.e("s_lshr_b32 s37, s2, 5")
    k.e("s_add_u32 s30, s36, s37")
    k.e("s_and_b32 s36, s28, 3")
    k.e("s_lshl_b32 s37, s29, 2")
    k.e("s_add_u32 s36, s36, s37")
    k.e("s_lshl_b32 s36, s36, 18")
    k.e("s_lshr_b32 s37, s28, 2")
    k.e("s_lshl_b32 s37, s37, 12")
    k.e("s_add_u32 s36, s36, s37")
    k.e("v_lshl_add_u32 v2, v1, 4, s36")
    k.e(f"v_add_u32 v3, {1<<17}, v2")
    k.e("v_lshrrev_b32 v18, 3, v1")
    k.e("s_lshl_b32 s36, s28, 5")
    k.e("v_add_u32 v18, s36, v18")
    k.e("v_lshlrev_b32 v18, 11, v18")
    k.e("s_lshl_b32 s36, s30, 7")
    k.e("v_add_u32 v18, s36, v18")
    k.e("v_lshrrev_b32 v19, 4, v1")
    k.e("v_lshlrev_b32 v20, 1, v19")
    k.e("v_and_b32 v21, 7, v1")
    k.e("v_xor_b32 v20, v20, v21")
    k.e("v_lshl_add_u32 v6, v20, 4, v18")
    for j in range(1, 4): k.e(f"v_add_u32 v{6+j}, {j*(16384-1024)}, v6")
    k.e("s_lshl_b32 s33, s28, 12")
    k.e("s_mov_b32 s31, 0")
    k.e("s_mov_b32 s32, 0")

def p4_setup2(k):
    k.e("v_bfe_u32 v20, v1, 2, 2")
    k.e("v_lshl_add_u32 v18, v19, 2, v20")
    k.e("v_bfe_u32 v20, v18, 1, 2")
    k.e("v_lshlrev_b32 v18, 7, v18")
    k.e("s_lshr_b32 s36, s28, 2")
    k.e("s_lshl_b32 s36, s36, 14")
    k.e("v_add_u32 v18, s36, v18")
    k.e("v_and_b32 v21, 3, v1")
    k.e("v_lshl_add_u32 v18, v21, 3, v18")
    for cb in range(4):
        k.e(f"v_xor_b32 v21, {cb}, v20")
        k.e(f"v_lshl_add_u32 v{10+cb}, v21, 5, v18")
    for r in range(32): k.e(f"v_mov_b32 v{ACC+r}, 0")

def p4_xloads(k):
    k.e("s_lshl_b32 s36, s29, 7")
    k.e("s_and_b32 s37, s28, 3")
    k.e("s_lshl_b32 s37, s37, 5")
    k.e("s_add_u32 s36, s36, s37")
    k.e("s_lshr_b32 s37, s28, 2")
    k.e("s_lshl_b32 s37, s37, 4")
    k.e("s_add_u32 s38, s36, s37")
    k.e("v_and_b32 v14, 15, v1")
    k.e("v_add_u32 v14, s38, v14")
    k.e("v_lshlrev_b32 v15, 11, v14")
    k.e("v_lshl_add_u32 v15, v19, 3, v15")
    k.e("s_lshl_b32 s36, s30, 7")
    k.e("v_add_u32 v15, s36, v15")
    k.e("v_lshlrev_b32 v16, 3, v14")
    L = [VM(f"buffer_load_dwordx2 {v(XI+2*cb,2)}, v15, s[16:19], 0 offen offset:{cb*32}", "xi") for cb in range(4)]
    L += [f"s_mov_b32 s36, {WS_ST}", VM(f"buffer_load_dwordx2 {v(XI+8,2)}, v16, s[24:27], s36 offen", "xi")]
    return L

def p4_pieces(cfg):
    def wdma(stage):
        return [f"s_add_u32 m0, s34, {stage*32768}"], [VM(f"buffer_load_dwordx4 v{6+j}, s[8:11], s32 offen offset:{j*1024} lds", ("W", stage)) for j in range(4)]
    def xld(xs, s_):
        return [VM(f"buffer_load_dwordx4 {v(XFR[xs]+(s_*2+rb)*4,4)}, v{2+rb}, s[4:7], s31 offen offset:{s_*1024}", ("x", xs, s_)) for rb in range(2)]
    def wrd(stage, s_, fs):
        return [DS(f"ds_read_b64_tr_b16 {v(WFR[fs]+4*cb+2*t,2)}, v{10+cb} offset:{stage*32768+(32*s_+16*t)*128}", ("w", fs)) for cb in range(4) for t in range(2)]
    def mf(fs, xs, s_):
        return [f"{MF} {v(Areg(rb,cb),4)}, {v(WFR[fs]+4*cb,4)}, {v(XFR[xs]+(s_*2+rb)*4,4)}, {v(Areg(rb,cb),4)}" for cb in range(4) for rb in range(2)]
    pro = ["s_mov_b32 s34, s33"]
    for t in range(2):
        m, d = wdma(t)
        pro += m + ["s_nop 0"] + d + [f"s_add_u32 s32, s32, {256*2048}"]
        for s_ in range(4 if t == 0 else 3): pro += xld(t, s_)
        if t == 0: pro += ["s_add_u32 s31, s31, 8192"]
    pro2 = [Need("vm", [("W", 0)]), "s_barrier"] + wrd(0, 0, 0) + ["s_mov_b32 s35, 0"]
    body = []
    for stage in range(2):
        for s_ in range(4):
            fills = [[] for _ in range(8)]
            if s_ < 3:
                body += [Need("ds", [("w", s_ & 1)])]
                rd = wrd(stage, s_+1, (s_+1) & 1)
            else:
                body += [Need("ds", [("w", 1)]), Need("vm", [("W", stage ^ 1)]), "s_barrier"]
                rd = wrd(stage ^ 1, 0, 0)
            body += [Need("vm", [("x", stage, s_)])]
            for g in range(4): fills[g] += rd[2*g:2*g+2]
            if s_ == 0:
                xl = xld(stage ^ 1, 3)
                fills[4] += [xl[0]]; fills[5] += [xl[1], "s_add_u32 s31, s31, 8192"]
                if stage == 0:
                    fills[6] += ["s_cmp_lt_u32 s35, 7", "s_cselect_b32 s6, 16777216, 0", "s_cselect_b32 s10, 8388608, 0", "s_cselect_b32 s34, s33, 0x30000"]
            else:
                xl = xld(stage, s_-1)
                fills[4] += [xl[0]]; fills[5] += [xl[1]]
            if s_ == 3:
                m, d = wdma(stage)
                fills[3] += m
                fills[4] = d[:2] + fills[4]; fills[5] = d[2:] + fills[5]
                fills[7] += [f"s_add_u32 s32, s32, {256*2048}"]
            body += weave(mf(s_ & 1, stage, s_), fills)
    return pro, pro2, body

def p4_epilogue(k, cfg, kh):
    o = 1 - kh
    k.e("s_lshl_b32 s36, s28, 12")
    k.e("s_add_u32 s36, s36, 65536")
    k.e("v_lshl_add_u32 v20, v1, 4, s36")
    k.e("v_xor_b32 v21, 16384, v20")
    for r in range(16): k.e(f"v_mov_b32 v{YA+r}, 0")
    for cb in range(4):
        k.e(f"ds_write_b128 v20, {v(Areg(o,cb),4)} offset:{cb*1024}")
    for t in range(2):
        lsk, lp = k.newlabel("noy"), k.newlabel("ysum")
        k.e(f"s_sub_u32 s36, s{56+t}, s38")
        k.e("s_cmp_lt_u32 s36, 16")
        k.e(f"s_cbranch_scc0 {lsk}")
        k.e("s_lshl_b32 s37, s30, 8")
        k.e(f"s_add_u32 s37, s37, {WS_YP + t*4096}")
        k.e("v_lshlrev_b32 v22, 4, v19")
        for r in range(16): k.e(f"v_mov_b32 v{64+r}, 0")
        k.e("s_mov_b32 s39, 0")
        k.label(lp)
        for cb in range(4):
            k.e(f"buffer_load_dwordx4 {v(80+4*cb,4)}, v22, s[24:27], s37 offen offset:{cb*64}{cfg.get('ldflag','')}")
        k.e("s_add_u32 s37, s37, 8192")
        k.e("s_add_u32 s39, s39, 1")
        k.e("s_waitcnt vmcnt(0)")
        for r in range(16): k.e(f"v_add_f32 v{64+r}, v{64+r}, v{80+r}")
        k.e("s_cmp_lt_u32 s39, 16")
        k.e(f"s_cbranch_scc1 {lp}")
        k.e(f"v_cmp_eq_u32 vcc, s{56+t}, v14")
        for r in range(16):
            rbf(k, f"v{64+r}")
            k.e(f"v_mul_f32 v{64+r}, s{58+t}, v{64+r}")
            rbf(k, f"v{64+r}")
            k.e(f"v_cndmask_b32 v{YA+r}, v{YA+r}, v{64+r}, vcc")
        k.label(lsk)
    k.e("s_waitcnt vmcnt(0)")
    X32, G = 128, 144
    for cb in range(4):
        for h in range(2):
            a, b = X32+4*cb+2*h, X32+4*cb+2*h+1
            ga, gb = G+4*cb+2*h, G+4*cb+2*h+1
            k.e(f"v_lshlrev_b32 v{a}, 16, v{XI+2*cb+h}")
            k.e(f"v_and_b32 v{b}, 0xffff0000, v{XI+2*cb+h}")
            k.e(f"v_sub_f32 v{ga}, v{a}, v{XI+8}")
            k.e(f"v_sub_f32 v{gb}, v{b}, v{XI+8}")
            def rnd2():
                k.e(f"v_cvt_pk_bf16_f32 v23, v{ga}, v{gb}")
                k.e(f"v_lshlrev_b32 v{ga}, 16, v23")
                k.e(f"v_and_b32 v{gb}, 0xffff0000, v23")
            rnd2()
            k.e(f"v_mul_f32 v{ga}, v{ga}, v{XI+9}")
            k.e(f"v_mul_f32 v{gb}, v{gb}, v{XI+9}")
            rnd2()
            k.e(f"v_add_f32 v{ga}, v{ga}, v{YA+4*cb+2*h}")
            k.e(f"v_add_f32 v{gb}, v{gb}, v{YA+4*cb+2*h+1}")
            rnd2()
            k.e(f"v_mul_f32 v24, 0xbfb8aa3b, v{ga}")
            k.e(f"v_mul_f32 v25, 0xbfb8aa3b, v{gb}")
            k.e("v_exp_f32 v24, v24")
            k.e("v_exp_f32 v25, v25")
            k.e("s_nop 0")
            k.e("v_add_f32 v24, 1.0, v24")
            k.e("v_add_f32 v25, 1.0, v25")
            k.e("v_rcp_f32 v24, v24")
            k.e("v_rcp_f32 v25, v25")
            k.e("s_nop 0")
            k.e(f"v_mul_f32 v{ga}, v{ga}, v24")
            k.e(f"v_mul_f32 v{gb}, v{gb}, v25")
            rnd2()
    k.e("s_waitcnt lgkmcnt(0)")
    k.e("s_barrier")
    for cb in range(4):
        k.e(f"ds_read_b128 {v(64+4*cb,4)}, v21 offset:{cb*1024}")
    for cb in range(4):
        k.e(f"s_waitcnt lgkmcnt({3-cb})")
        for h in range(2):
            a, b = Areg(kh, cb)+2*h, Areg(kh, cb)+2*h+1
            k.e(f"v_add_f32 v{a}, v{a}, v{64+4*cb+2*h}")
            k.e(f"v_add_f32 v{b}, v{b}, v{64+4*cb+2*h+1}")
            def rnd2():
                k.e(f"v_cvt_pk_bf16_f32 v23, v{a}, v{b}")
                k.e(f"v_lshlrev_b32 v{a}, 16, v23")
                k.e(f"v_and_b32 v{b}, 0xffff0000, v23")
            rnd2()
            k.e(f"v_mul_f32 v{a}, v{a}, v{G+4*cb+2*h}")
            k.e(f"v_mul_f32 v{b}, v{b}, v{G+4*cb+2*h+1}")
            rnd2()
            k.e(f"v_add_f32 v{a}, v{a}, v{X32+4*cb+2*h}")
            k.e(f"v_add_f32 v{b}, v{b}, v{X32+4*cb+2*h+1}")
            k.e(f"v_cvt_pk_bf16_f32 v{80+2*cb+h}, v{a}, v{b}")
        k.e(f"buffer_store_dwordx2 {v(80+2*cb,2)}, v15, s[20:23], 0 offen offset:{cb*32}")

def gen_oproj(cfg=None):
    cfg = cfg or {}
    k = K("oproj_kernel")
    k.e("s_cmp_ge_u32 s2, 256")
    k.e("s_cbranch_scc1 L_op_end")
    st = Stamps(k, cfg.get("stamp"), kid=2)
    st.mark()
    k.e("s_load_dwordx2 s[46:47], s[0:1], 0")
    k.e("s_load_dwordx2 s[48:49], s[0:1], 40")
    k.e("s_load_dwordx2 s[50:51], s[0:1], 88")
    k.e("s_load_dwordx2 s[54:55], s[0:1], 104")
    k.e("v_and_b32 v1, 63, v0")
    k.e("v_lshrrev_b32 v16, 6, v0")
    k.e("s_nop 0")
    k.e("v_readfirstlane_b32 s28, v16")
    k.e("s_nop 0")
    p4_setup(k)
    k.e("s_waitcnt lgkmcnt(0)")
    srd(k, 4, 54, 16777216, WS_CTX)
    srd(k, 8, 48, 8388608)
    pro, pro2, body = p4_pieces(cfg)
    kx = K("tmp"); xl = p4_xloads(kx)
    resolve([[pro, xl, pro2, body, body, body]])
    emit(k, pro)
    srd(k, 16, 46, 4194304)
    srd(k, 20, 50, 4194304)
    srd(k, 24, 54, 64 << 20)
    k.e(f"s_add_u32 s52, s54, {WS_IDX}")
    k.e("s_addc_u32 s53, s55, 0")
    k.e("s_load_dwordx4 s[56:59], s[52:53], 0")
    k.lines += kx.lines
    emit(k, xl)
    p4_setup2(k)
    k.e("s_waitcnt lgkmcnt(0)")
    st.mark()
    emit(k, pro2)
    st.mark()
    k.align(6)
    k.label("L_p4_loop")
    emit(k, body)
    k.e("s_add_u32 s35, s35, 1")
    k.e("s_cmp_lt_u32 s35, 8")
    k.e("s_cbranch_scc1 L_p4_loop")
    st.mark()
    k.e("s_waitcnt vmcnt(0) lgkmcnt(0)")
    k.e("s_cmp_lt_u32 s28, 4")
    k.e("s_cbranch_scc0 L_p4_e1")
    p4_epilogue(k, cfg, 0)
    k.e("s_branch L_p4_done")
    k.label("L_p4_e1")
    p4_epilogue(k, cfg, 1)
    k.label("L_p4_done")
    st.mark()
    st.dump(54, "s28")
    k.label("L_op_end")
    return wrap(k, 256)
```

```python
import sys
from common import *
from kv import gen_kv
from attn import gen_attn
from oproj import gen_oproj
from ffn import gen_ffn1, gen_ffn2

if __name__ == "__main__":
    out = sys.argv[1]
    cfg = dict(cs="2", dsp="2", wstep="4", lag="1")
    cfg.update(dict(a.split("=") for a in sys.argv[2:]))
    parts = [gen_kv(cfg), gen_ffn1(cfg), gen_ffn2(cfg), gen_attn(cfg), gen_oproj(cfg)]
    launches = ["; @launch kernel=kv_kernel grid=(256,1,1) block=(512,1,1) lds=131072",
        "; @launch kernel=ffn1_kernel grid=(224,1,1) block=(512,1,1) lds=65536",
        "; @launch kernel=ffn2_kernel grid=(256,1,1) block=(512,1,1) lds=65536",
        "; @launch kernel=attn_kernel grid=(256,1,1) block=(512,1,1) lds=163840",
        "; @launch kernel=oproj_kernel grid=(256,1,1) block=(512,1,1) lds=131072"]
    build(parts, launches, out)
```

```python
from common import *

O_  = 192
Q_  = 128
QS_ = 160
S_  = 96
RG_ = 64
P_  = 48
NM_ = 40
L_  = 38
vKr, vVr, vD, vNx, vMk, vD2, vL16 = "v2", "v3", "v4", "v5", "v18", "v6", "v7"
LS_ = 8
T_  = 20
LDS_W = 98304
LDS_X = 131072
CSCALE = 0x3e0293ee
NEGBIG = 0xf149f2ca

def Oreg(qb, db): return O_ + (qb*8+db)*4
def Sreg(buf, qb, kb): return S_ + buf*16 + (qb*2+kb)*4
def Preg(buf, qb): return P_ + buf*8 + qb*4

def p2_setup(k):
    k.e("s_and_b32 s36, s28, 3")
    k.e("s_sub_u32 s37, 15, s30")
    k.e("s_cmp_lt_u32 s28, 4")
    k.e("s_cselect_b32 s37, s37, s30")
    k.e("s_lshl_b32 s37, s37, 2")
    k.e("s_add_u32 s37, s37, s36")
    k.e("s_lshl_b32 s37, s37, 16")
    k.e("v_lshl_add_u32 v2, v1, 4, s37")
    k.e("v_add_u32 v3, 32768, v2")
    k.e("v_lshrrev_b32 v18, 4, v1")
    k.e("s_lshl_b32 s37, s28, 4")
    k.e("v_add_u32 v19, s37, v18")
    k.e("v_lshlrev_b32 v19, 13, v19")
    k.e("s_lshl_b32 s37, s29, 8")
    k.e("v_add_u32 v19, s37, v19")
    k.e("v_and_b32 v20, 15, v1")
    k.e("v_lshlrev_b32 v21, 1, v18")
    k.e("v_xor_b32 v21, v20, v21")
    k.e("v_lshl_add_u32 v6, v21, 4, v19")
    k.e(f"v_add_u32 v7, {32768-1024}, v6")
    k.e("v_xor_b32 v21, 8, v21")
    k.e("v_lshl_add_u32 v8, v21, 4, v19")
    k.e(f"v_add_u32 v8, {2*(32768-1024)}, v8")
    k.e(f"v_add_u32 v9, {32768-1024}, v8")
    k.e("s_lshl_b32 s33, s28, 12")
    k.e(f"s_add_u32 s33, s33, {LDS_W}")
    k.e("s_mov_b32 s31, 0")
    k.e("s_mov_b32 s32, 0")

def p2_setup2(k):
    k.e("v_lshrrev_b32 v20, 2, v20")
    k.e("v_lshl_add_u32 v19, v18, 3, v20")
    k.e("v_lshlrev_b32 v19, 8, v19")
    k.e(f"v_add_u32 v19, {LDS_W}, v19")
    k.e("v_and_b32 v21, 3, v1")
    k.e("v_lshl_add_u32 v19, v21, 3, v19")
    k.e("v_and_b32 v21, 1, v18")
    k.e("v_lshl_add_u32 v20, v21, 2, v20")
    for db in range(8):
        k.e(f"v_xor_b32 v21, {db}, v20")
        k.e(f"v_lshl_add_u32 v{10+db}, v21, 5, v19")
    k.e("s_lshl_b32 s43, s28, 12")
    k.e("v_lshl_add_u32 v4, v1, 4, s43")
    k.e("s_add_u32 s44, s43, 65536")
    k.e("s_lshl_b32 s45, s29, 20")
    for r in range(64):
        k.e(f"v_mov_b32 v{O_+r}, 0")

def p2_pieces(cfg):
    WF = [64, 96]; XF = [128, 160]
    def wdma(stage):
        return [f"s_add_u32 m0, s34, {stage*32768}"] , [VM(f"buffer_load_dwordx4 v{6+j}, s[8:11], s32 offen offset:{j*1024} lds", ("W", stage)) for j in range(4)]
    def xld(xs, s_):
        return [VM(f"buffer_load_dwordx4 {v(XF[xs]+(s_*2+rb)*4,4)}, v{2+rb}, s[4:7], s31 offen offset:{s_*1024}", ("x", xs, s_)) for rb in range(2)]
    def wrd(stage, s_, fs):
        return [DS(f"ds_read_b64_tr_b16 {v(WF[fs]+4*db+2*t,2)}, v{10+db} offset:{stage*32768+(32*s_+4*t)*256}", ("w", fs)) for db in range(8) for t in range(2)]
    def mf(fs, xs, s_):
        return [f"{MF} {v(Oreg(rb,db),4)}, {v(WF[fs]+4*db,4)}, {v(XF[xs]+(s_*2+rb)*4,4)}, {v(Oreg(rb,db),4)}" for db in range(8) for rb in range(2)]
    pro = ["s_mov_b32 s34, s33"]
    for t in range(2):
        m, d = wdma(t)
        pro += m + ["s_nop 0"] + d + [f"s_add_u32 s32, s32, {128*8192}"]
        for s_ in range(4 if t == 0 else 3): pro += xld(t, s_)
        if t == 0: pro += ["s_add_u32 s31, s31, 4096"]
    pro2 = [Need("vm", [("W", 0)]), "s_barrier"] + wrd(0, 0, 0) + ["s_mov_b32 s35, 0"]
    kvpre = ["s_mov_b32 m0, s43", "s_add_u32 s46, s45, 65536"]
    kvpre += [VM(f"buffer_load_dwordx4 {vD}, s[12:15], s45 offen offset:{j*1024} lds", "kv") for j in range(4)]
    kvpre += ["s_add_u32 m0, s43, 32768", "s_add_u32 s47, s45, 32768"]
    kvpre += [VM(f"buffer_load_dwordx4 {vD}, s[12:15], s46 offen offset:{j*1024} lds", "kv") for j in range(4)]
    kvpre += ["s_mov_b32 m0, s44", "s_nop 0"]
    kvpre += [VM(f"buffer_load_dwordx4 {vD}, s[12:15], s47 offen offset:{j*1024} lds", "kv") for j in range(4)]
    body = []
    for stage in range(2):
        for s_ in range(4):
            fills = [[] for _ in range(16)]
            if s_ < 3:
                body += [Need("ds", [("w", s_ & 1)])]
                rd = wrd(stage, s_+1, (s_+1) & 1)
            else:
                body += [Need("ds", [("w", 1)]), Need("vm", [("W", stage ^ 1)]), "s_barrier"]
                rd = wrd(stage ^ 1, 0, 0)
            body += [Need("vm", [("x", stage, s_)])]
            for g in range(8): fills[g] += rd[2*g:2*g+2]
            if s_ == 0:
                xl = xld(stage ^ 1, 3)
                fills[8] += [xl[0]]; fills[9] += [xl[1], "s_add_u32 s31, s31, 4096"]
                if stage == 0:
                    fills[10] += ["s_cmp_lt_u32 s35, 3", "s_cselect_b32 s6, 4194304, 0", "s_cselect_b32 s10, 8388608, 0", "s_cselect_b32 s34, s33, 0x30000"]
            else:
                xl = xld(stage, s_-1)
                fills[8] += [xl[0]]; fills[9] += [xl[1]]
            if s_ == 3:
                m, d = wdma(stage)
                fills[9] += m
                for j in range(4): fills[10+j] += [d[j]]
                fills[14] += [f"s_add_u32 s32, s32, {128*8192}"]
            body += weave(mf(s_ & 1, stage, s_), fills)
    return pro, pro2, kvpre, body

def q_pack(k, grp, qwait=0):
    k.e(f"s_mov_b32 s36, {CSCALE}")
    k.e("s_and_b32 s37, s28, 3")
    k.e("s_lshl_b32 s37, s37, 13")
    k.e(f"v_lshlrev_b32 {vL16}, 4, v1")
    k.e(f"v_add_u32 {vD}, s37, {vL16}")
    k.e(f"v_add_u32 {vD2}, 4096, {vD}")
    k.e(f"v_add_u32 v19, {LDS_X}, {vD}")
    k.e("s_mov_b32 s43, s37")
    k.e("s_add_u32 s44, s37, 98304")
    k.e(f"s_waitcnt vmcnt({qwait}) lgkmcnt(0)")
    for f in range(8):
        a = O_ + 8*f
        for e in range(8): k.e(f"v_mul_f32 v{a+e}, s36, v{a+e}")
        for q in range(4): k.e(f"v_cvt_pk_bf16_f32 v{Q_+4*f+q}, v{a+2*q}, v{a+2*q+1}")
        if grp == 0: k.e(f"ds_write_b128 v19, {v(Q_+4*f,4)} offset:{f*1024}")
    k.e(f"v_mov_b32 {vKr}, {vL16}")
    k.e("v_and_b32 v21, 15, v1")
    k.e("v_lshrrev_b32 v22, 4, v1")
    k.e("v_lshlrev_b32 v22, 2, v22")
    k.e(f"v_sub_u32 {vMk}, v21, v22")
    k.e("s_mov_b32 s40, 0")
    k.e("s_mov_b32 s41, 0")
    k.e("s_lshl_b32 s51, s30, 1")
    k.e("s_add_u32 s51, s51, 1")
    k.e("s_and_b32 s36, s28, 3")
    k.e("s_lshl_b32 s36, s36, 5")
    if grp == 0:
        k.e("s_sub_u32 s37, 15, s30")
        k.e("s_lshl_b32 s37, s37, 7")
    else:
        k.e("s_lshl_b32 s37, s30, 7")
    k.e("s_add_u32 s36, s36, s37")
    k.e("s_sub_u32 s50, 0, s36")
    if grp == 1:
        k.e("s_lshl_b32 s42, s30, 8")
        k.e(f"s_sub_u32 s42, s42, {14*128}")
    else:
        k.e("s_add_u32 s36, s51, 1")
        k.e("s_lshl_b32 s36, -1, s36")
        k.e("s_or_b32 s48, s36, 0xaaaaaaaa")
        k.e("s_and_b32 s48, s48, 0x7ffe")
        k.e("s_or_b32 s39, s36, 0x55555555")
        k.e("s_and_b32 s39, s39, 0xffff")
        k.e(f"s_add_u32 s46, s45, {2*65536}")
        k.e(f"s_add_u32 s47, s45, {65536+32768}")
    k.e("s_mov_b64 s[52:53], 0")
    k.e("s_waitcnt lgkmcnt(0)")
    k.e("s_barrier")
    if grp == 1:
        for f in range(8):
            k.e(f"ds_read_b128 {v(QS_+4*f,4)}, v19 offset:{f*1024}")

OOL = []
MSK = ["s[20:21]", "s[22:23]", "s[62:63]", "vcc"]
LDS_MSG = LDS_X + 28672
def ool(k, cond, br, block):
    lr, lb = k.newlabel("rare"), k.newlabel("back")
    OOL.append([lr + ":"] + block + [f"s_branch {lb}"])
    return cond + [f"{br} {lr}", lb + ":"]
def flush_ool(k):
    while OOL: emit(k, OOL.pop(0))

def maskblk(k, buf, sU):
    L = [f"v_mov_b32 v{T_}, {NEGBIG}", f"v_subrev_u32 v{T_+1}, {sU}, {vMk}"]
    for qb in range(2):
        for kb in range(2):
            for e in range(4):
                L.append(f"v_cmp_gt_i32 {MSK[e]}, {16*(kb-qb) + e}, v{T_+1}")
            for e in range(4):
                r = Sreg(buf, qb, kb) + e
                L.append(f"v_cndmask_b32 v{r}, v{r}, v{T_}, {MSK[e]}")
    return ool(k, [f"s_cmp_lt_i32 {sU}, 0"], "s_cbranch_scc0", L)

def qk(buf, fr0, czero):
    L = []
    for kb in range(2):
        for sg in range(4):
            f = RG_ + 4*((fr0 + kb*4 + sg) % 8)
            for qb in range(2):
                d = Sreg(buf, qb, kb)
                c = v(d, 4) if sg else ("0" if czero else v(NM_+4*qb, 4))
                L.append(f"{MF} {v(d,4)}, {v(f,4)}, {v(Q_+(qb*4+sg)*4,4)}, {c}")
    return L

def pv(buf, fr0):
    L = []
    for db in range(8):
        f = RG_ + 4*((fr0 + db) % 8)
        for qb in range(2):
            L.append(f"{MF} {v(Oreg(qb,db),4)}, {v(f,4)}, {v(Preg(buf,qb),4)}, {v(Oreg(qb,db),4)}")
    return L

def sm_elems(buf):
    out = []
    for kb in range(2):
        for qb in range(2):
            for e in range(4):
                r = Sreg(buf, qb, kb) + e
                post = [f"v_add_f32 v{L_+qb}, v{L_+qb}, v{r}"]
                if e & 1:
                    post.append(f"v_cvt_pk_bf16_f32 v{Preg(buf,qb)+2*kb+e//2}, v{r-1}, v{r}")
                out.append((f"v_exp_f32 v{r}, v{r}", post))
    return out

def rd(frag, base, off):
    s_ = frag % 8
    return DS(f"ds_read_b128 {v(RG_+4*s_,4)}, {base} offset:{off}", ("r", s_))

def rowred(op, x, t):
    return [f"v_mov_b32 {t}, {x}", "s_nop 1", f"v_permlane16_swap_b32 {x}, {t}", "s_nop 1", f"{op} {x}, {x}, {t}",
            f"v_mov_b32 {t}, {x}", "s_nop 1", f"v_permlane32_swap_b32 {x}, {t}", "s_nop 1", f"{op} {x}, {x}, {t}"]


def advance(grp):
    G = [["s_add_u32 s49, s50, 32", f"v_add_u32 v{T_+4}, 65536, {vKr}"]]
    if grp == 0:
        G += [["s_cmp_le_u32 s40, s51", "s_cselect_b32 s36, 64, 128"], ["s_add_u32 s41, s41, s36", "s_add_u32 s50, s50, s36"]]
    else:
        G += [["s_cmp_lt_u32 s40, s51", "s_cselect_b32 s36, 64, 128"], ["s_add_u32 s41, s41, s36"],
              ["s_cmp_eq_u32 s40, s51", "s_cselect_b32 s36, s42, s36"], ["s_add_u32 s50, s50, s36"]]
    G += [["s_and_b32 s36, s41, 0xff", f"v_lshl_add_u32 {vKr}, s36, 8, {vL16}"],
          ["s_cmp_eq_u32 s40, 16", "s_cselect_b64 s[20:21], -1, 0"], [f"v_cndmask_b32 {vNx}, {vKr}, v{T_+4}, s[20:21]"]]
    return G, [f"v_mov_b32 {vVr}, v{T_+4}"]

def dma_clumps(k, cs):
    out = []
    for which in range(2):
        msk, base, soff = ("s48", "s43", "s46") if which == 0 else ("s39", "s44", "s47")
        for c in range(8 // cs):
            lskip = k.newlabel("nodma")
            j0 = c * cs
            L = [f"s_bitcmp1_b32 {msk}, s40", f"s_cbranch_scc0 {lskip}", f"s_add_u32 m0, {base}, {(j0 // 4)*4096}", "s_nop 0"]
            for j in range(j0, j0 + cs):
                L.append(f"buffer_load_dwordx4 {vD if j < 4 else vD2}, s[12:15], {soff} offen offset:{(j%4)*1024} sc1 lds")
            if c == 8 // cs - 1:
                L += [f"s_add_u32 {soff}, {soff}, 65536", f"s_xor_b32 {base}, {base}, 32768"]
            out.append(L + [lskip + ":"])
    return out

def p3_pieces(k, cfg, grp):
    pro = [rd(f, vKr, f*1024) for f in range(8)]
    m0 = qk(0, 0, True); m1 = qk(1, 8, True)
    zero = [f"v_mov_b32 v{O_+r}, 0" for r in range(64)] + [f"v_mov_b32 v{L_}, 0", f"v_mov_b32 v{L_+1}, 0"]
    fills = [[] for _ in range(32)]; pre = {}
    for p in range(16):
        pre[2*p] = [Need("ds", [("r", p % 8)])]
        if p < 8: fills[2*p+1].append(rd(p+8, vKr, (p+8)*1024))
    for i, z in enumerate(zero): fills[min(i // 2, 31)].append(z)
    pro += weave(m0 + m1, fills, pre)
    pro += maskblk(k, 0, "s50")
    G, late = advance(grp)
    pro += flat(G) + late + cfg.get("pro_wait", lambda k, g: [])(k, grp) + ["s_barrier"] + cfg.get("pro_hook", lambda k, g: [])(k, grp) + [rd(f, vNx, f*1024) for f in range(7)]
    for qb in range(2):
        a = Sreg(0, qb, 0); t = f"v{T_+1+qb}"
        pro += [f"v_max3_f32 {t}, v{a}, v{a+1}, v{a+2}", f"v_max3_f32 {t}, {t}, v{a+3}, v{a+4}",
                f"v_max3_f32 {t}, {t}, v{a+5}, v{a+6}", f"v_max_f32 {t}, {t}, v{a+7}"]
    for qb in range(2):
        pro += rowred("v_max_f32", f"v{T_+1+qb}", f"v{T_+3}")
    for qb in range(2):
        pro += [f"v_sub_f32 v{NM_+4*qb+e}, 0, v{T_+1+qb}" for e in range(4)]
    if grp == 0:
        pro += [DS(f"ds_write_b128 v19, {v(NM_,4)}"), DS(f"ds_write_b128 v19, {v(NM_+4,4)} offset:1024")]
    for buf in range(2):
        for qb in range(2):
            a = Sreg(buf, qb, 0)
            pro += [f"v_sub_f32 v{a+e}, v{a+e}, v{T_+1+qb}" for e in range(8)]
    el = sm_elems(0)
    pro += [el[0][0]]
    for e in range(16):
        if e + 1 < 16: pro += [el[e+1][0]]
        else: pro += ["s_nop 0"]
        pro += el[e][1]
    M = qk(0, 0, False) + pv(0, 8) + qk(1, 16, False) + pv(1, 24)
    fills = [[] for _ in range(64)]; pre = {}
    def src(f):
        return (vKr, (f % 8)*1024 + (f // 16)*8192) if (f // 8) % 2 == 0 else (vVr, (f % 8)*1024 + (f // 16)*8192)
    wstep = int(cfg.get("wstep", 2))
    for p in range(32):
        if p % wstep == 0:
            pre[2*p] = [Need("ds", [("r", (p+i) % 8) for i in range(wstep)])]
    lag = int(cfg.get("lag", 0))
    for rnd in range(2):
        el = sm_elems(1 - rnd)
        for e in range(16):
            p = rnd*16 + e
            fills[2*p].append(el[e][0])
            if lag == 0: fills[2*p+1] += el[e][1]
            elif lag == 1:
                fills[2*min(p+1, rnd*16+15)+1] += el[e][1]
            elif lag == 2:
                fills[2*min(p+1, rnd*16+15)+1] += el[e][1][:1]
                fills[2*min(p+2, rnd*16+15)+(1 if p+2 > rnd*16+15 else 0)] += el[e][1][1:]
    for p in range(25):
        b, o = src(p + 7)
        fills[2*p+1].insert(0, rd(p+7, b, o))
    pre[0] = maskblk(k, 1, "s49") + pre[0]
    midc = []
    if grp == 1:
        midc = ool(k, ["s_cmp_eq_u32 s40, s51"], "s_cbranch_scc1", [f"v_mov_b32 v{LS_}, v{L_}", f"v_mov_b32 v{LS_+1}, v{L_+1}",
                f"v_mov_b32 v{L_}, 0", f"v_mov_b32 v{L_+1}, 0"])
    pre[32] = midc + maskblk(k, 0, "s50") + pre[32]
    G, late = advance(grp)
    fills[2*17] += ["s_add_u32 s40, s40, 1"]
    for i, g in enumerate(G): fills[2*(17+i)+1] += g
    fills[2*25+1] += late
    bp = int(cfg.get("bp", 26))
    if cfg.get("bwait"):
        fills[2*bp+1] += ["s_waitcnt lgkmcnt(0)", "s_memtime s[56:57]", "s_waitcnt vmcnt(0) lgkmcnt(0)", "s_barrier", "s_memtime s[58:59]", "s_waitcnt lgkmcnt(0)",
                          "s_sub_u32 s58, s58, s56", "s_add_u32 s98, s98, s58"]
    else:
        fills[2*bp+1] += ["s_waitcnt vmcnt(0) lgkmcnt(0)" if grp == 0 else "s_waitcnt lgkmcnt(0)"] + cfg.get("bar_hook", lambda k, g: [])(k, grp) + ["s_barrier"]
    nx = {27: [0, 1], 28: [2, 3], 29: [4], 30: [5], 31: [6]}
    for p, fl in nx.items():
        for f in fl: fills[2*p+1].insert(0, rd(f, vNx, f*1024))
    if grp == 0 and not cfg.get("nodma"):
        cs = int(cfg.get("cs", 4)); d0 = int(cfg.get("d0", 0)); dsp = int(cfg.get("dsp", 4))
        for c, cl in enumerate(dma_clumps(k, cs)):
            fills[2*(d0 + c*dsp)+1] += cl
    body = weave(M, fills, pre)
    M = pv(0, 0) + pv(1, 8)
    fills = [[] for _ in range(32)]; pre = {}
    for p in range(16):
        pre[2*p] = [Need("ds", [("r", p % 8)])]
        if p + 7 < 16: fills[2*p+1].insert(0, rd(p+7, vVr, (p+7)*1024))
    el = sm_elems(1)
    for e in range(16):
        fills[e].append(el[e][0])
        fills[e+1 if e < 15 else 15] += (["s_nop 0"] if e == 15 else []) + el[e][1]
    pre[16] = ["s_nop 1"] + pre[16]
    tail = maskblk(k, 1, "s49") + weave(M, fills, pre)
    return pro, body, tail

def lcheck(k, l):
    k.e(f"v_cmp_nge_f32 vcc, s36, {l}")
    k.e("s_nop 0")
    k.e("s_or_b64 s[52:53], s[52:53], vcc")

def ctx_base(k, sblk, add):
    k.e(f"s_lshl_b32 s38, {sblk}, 3")
    k.e("s_and_b32 s37, s28, 3")
    k.e("s_lshl_b32 s37, s37, 1")
    k.e("s_add_u32 s38, s38, s37")
    if add: k.e(f"s_add_u32 s38, s38, {add}")
    k.e("s_lshl_b32 s38, s38, 17")
    k.e("s_lshl_b32 s37, s29, 12")
    k.e("s_add_u32 s38, s38, s37")

def epi_own(k, cfg, lreg, sblk, zero):
    t = [f"v{T_+i}" for i in range(18)]
    for qb in range(2):
        k.e(rowred("v_add_f32", f"v{lreg+qb}", t[0]))
    k.e("s_mov_b32 s36, 0x5d800000")
    for qb in range(2): lcheck(k, f"v{lreg+qb}")
    for qb in range(2): k.e(f"v_rcp_f32 v{lreg+qb}, v{lreg+qb}")
    ctx_base(k, sblk, 0)
    for qb in range(2):
        for sg in range(4):
            a = Oreg(qb, 2*sg); d = T_ + 2 + 4*(sg & 3)
            for e in range(8): k.e(f"v_mul_f32 v{a+e}, v{lreg+qb}, v{a+e}")
            for q in range(4): k.e(f"v_cvt_pk_bf16_f32 v{d+q}, v{a+2*q}, v{a+2*q+1}")
            k.e(f"buffer_store_dwordx4 {v(d,4)}, {vL16}, s[16:19], s38 offen offset:{sg*1024}{cfg.get('stflag','')}")
            if zero:
                for e in range(8): k.e(f"v_mov_b32 v{a+e}, 0")
        if qb == 0: k.e(f"s_add_u32 s38, s38, {1<<17}")

def merge(k, cfg, kh):
    t = [f"v{T_+i}" for i in range(18)]
    o = 1 - kh
    k.e("s_lshl_b32 s37, s28, 13")
    k.e(f"v_add_u32 {t[1]}, s37, {vL16}")
    k.e(f"v_xor_b32 {t[2]}, 32768, {t[1]}")
    k.e("s_lshl_b32 s37, s28, 8")
    k.e(f"s_add_u32 s37, s37, {LDS_MSG}")
    k.e(f"v_lshl_add_u32 {t[3]}, v1, 2, s37")
    k.e(f"v_xor_b32 {t[4]}, 1024, {t[3]}")
    k.e(f"ds_write_b32 {t[3]}, v{L_+o}")
    k.e("s_mov_b32 s36, 0x5d800000")
    for qb in range(2): lcheck(k, f"v{L_+qb}")
    k.e("s_or_b32 s36, s52, s53")
    k.e(f"v_mov_b32 {t[6]}, s36")
    k.e("s_lshl_b32 s37, s28, 2")
    k.e(f"s_add_u32 s37, s37, {LDS_MSG+2048}")
    k.e(f"v_mov_b32 {t[7]}, s37")
    k.e(f"ds_write_b32 {t[7]}, {t[6]}")
    for db in range(8):
        k.e(f"ds_write_b128 {t[1]}, {v(Oreg(o,db),4)} offset:{db*1024}")
    k.e(f"v_and_b32 {t[7]}, 7, v1")
    k.e(f"v_lshlrev_b32 {t[7]}, 2, {t[7]}")
    k.e(f"v_add_u32 {t[7]}, {LDS_MSG+2048}, {t[7]}")
    k.e("s_sub_u32 s36, 15, s30")
    ctx_base(k, "s36", kh)
    k.e("s_waitcnt lgkmcnt(0)")
    k.e("s_barrier")
    k.e(f"ds_read_b32 {t[6]}, {t[7]}")
    k.e(f"ds_read_b32 {t[5]}, {t[4]}")
    for db in range(8):
        k.e(f"ds_read_b128 {v(RG_+4*db,4)}, {t[2]} offset:{db*1024}")
    k.e("s_waitcnt lgkmcnt(8)")
    k.e(f"v_add_f32 {t[5]}, {t[5]}, v{L_+kh}")
    k.e(rowred("v_add_f32", t[5], t[0]))
    k.e(f"v_cmp_ne_u32 s[52:53], 0, {t[6]}")
    k.e(f"v_rcp_f32 {t[5]}, {t[5]}")
    for sg in range(4):
        k.e(f"s_waitcnt lgkmcnt({6-2*sg})")
        a = Oreg(kh, 2*sg)
        for e in range(8): k.e(f"v_add_f32 v{a+e}, v{a+e}, v{RG_+8*sg+e}")
        for e in range(8): k.e(f"v_mul_f32 v{a+e}, {t[5]}, v{a+e}")
        for q in range(4): k.e(f"v_cvt_pk_bf16_f32 v{P_+4*sg+q}, v{a+2*q}, v{a+2*q+1}")
        k.e(f"buffer_store_dwordx4 {v(P_+4*sg,4)}, {vL16}, s[16:19], s38 offen offset:{sg*1024}{cfg.get('stflag','')}")

def safe_path(k, cfg, grp):
    M_ = NM_
    t = [f"v{T_+i}" for i in range(18)]
    if grp == 1:
        for r in range(32): k.e(f"v_swap_b32 v{Q_+r}, v{QS_+r}")
    for r in range(64): k.e(f"v_mov_b32 v{O_+r}, 0")
    for qb in range(2):
        k.e(f"v_mov_b32 v{L_+qb}, 0")
        k.e(f"v_mov_b32 v{M_+qb}, {NEGBIG}")
    k.e("s_lshl_b32 s43, s28, 12")
    k.e(f"v_add_u32 {vD}, s43, {vL16}")
    k.e("s_mov_b32 s46, s45")
    k.e("s_sub_u32 s40, 16, s30")
    k.e("s_sub_u32 s39, 15, s30" if grp == 0 else "s_mov_b32 s39, s30")
    k.e("s_lshl_b32 s37, s39, 7")
    k.e("s_and_b32 s36, s28, 3")
    k.e("s_lshl_b32 s36, s36, 5")
    k.e("s_add_u32 s36, s36, s37")
    k.e("s_sub_u32 s50, 0, s36")
    lt, lu, ln_ = k.newlabel("stile"), k.newlabel("sunit"), k.newlabel("snext")
    k.label(lt)
    k.e("s_waitcnt vmcnt(0) lgkmcnt(0)")
    k.e("s_barrier")
    k.e("s_mov_b32 m0, s43")
    k.e("s_add_u32 s47, s46, 32768")
    for j in range(4): k.e(f"buffer_load_dwordx4 {vD}, s[12:15], s46 offen offset:{j*1024} sc1 lds")
    k.e("s_add_u32 m0, s43, 32768")
    k.e("s_add_u32 s46, s46, 65536")
    for j in range(4): k.e(f"buffer_load_dwordx4 {vD}, s[12:15], s47 offen offset:{j*1024} sc1 lds")
    k.e(f"v_mov_b32 {vKr}, {vL16}")
    k.e("s_mov_b32 s41, 4")
    k.e("s_waitcnt vmcnt(0)")
    k.e("s_barrier")
    k.label(lu)
    k.e("s_cmp_gt_i32 s50, 0")
    k.e(f"s_cbranch_scc1 {ln_}")
    for f in range(8): k.e(f"ds_read_b128 {v(RG_+4*f,4)}, {vKr} offset:{f*1024}")
    k.e("s_waitcnt lgkmcnt(0)")
    k.e(qk(0, 0, True))
    for f in range(8): k.e(f"ds_read_b128 {v(RG_+4*f,4)}, {vKr} offset:{32768+f*1024}")
    k.e("s_nop 1")
    emit(k, maskblk(k, 0, "s50"))
    for qb in range(2):
        a = Sreg(0, qb, 0); x = t[2+qb]
        k.e([f"v_max3_f32 {x}, v{a}, v{a+1}, v{a+2}", f"v_max3_f32 {x}, {x}, v{a+3}, v{a+4}",
             f"v_max3_f32 {x}, {x}, v{a+5}, v{a+6}", f"v_max3_f32 {x}, {x}, v{a+7}, v{M_+qb}"])
        k.e(rowred("v_max_f32", x, t[4]))
        k.e(f"v_sub_f32 {t[5]}, v{M_+qb}, {x}")
        k.e(f"v_exp_f32 {t[5]}, {t[5]}")
        k.e(f"v_mov_b32 v{M_+qb}, {x}")
        k.e(f"v_mul_f32 v{L_+qb}, v{L_+qb}, {t[5]}")
        for r in range(32): k.e(f"v_mul_f32 v{Oreg(qb,0)+r}, v{Oreg(qb,0)+r}, {t[5]}")
        for e in range(8): k.e(f"v_sub_f32 v{a+e}, v{a+e}, {x}")
    el = sm_elems(0)
    for e in range(16): k.e(el[e][0])
    for e in range(16): k.e(el[e][1])
    k.e("s_waitcnt lgkmcnt(0)")
    k.e("s_nop 0")
    k.e(pv(0, 0))
    k.label(ln_)
    k.e(f"v_add_u32 {vKr}, 8192, {vKr}")
    k.e("s_add_u32 s50, s50, 32")
    k.e("s_sub_u32 s41, s41, 1")
    k.e("s_cmp_lg_u32 s41, 0")
    k.e(f"s_cbranch_scc1 {lu}")
    k.e("s_sub_u32 s40, s40, 1")
    k.e("s_cmp_lg_u32 s40, 0")
    k.e(f"s_cbranch_scc1 {lt}")
    epi_own(k, cfg, L_, "s39", False)

def gen_p3(k, cfg, grp, st, after_q=None, before_tail=None):
    n0 = st.n
    q_pack(k, grp, cfg.get('qwait', 0))
    if after_q: after_q(k, grp)
    st.mark()
    pro, body, tail = p3_pieces(k, cfg, grp)
    sw = []
    if grp == 1:
        sw = [f"v_swap_b32 v{Q_+r}, v{QS_+r}" for r in range(32)]
        sw = [f"ds_read_b128 {v(NM_,4)}, v19", f"ds_read_b128 {v(NM_+4,4)}, v19 offset:1024"] + sw + ["s_waitcnt lgkmcnt(0)"]
    resolve([[pro, body, body, body, tail], [pro, body, sw, body, body, tail]])
    if cfg.get("prio") and grp == int(cfg["prio"]) - 1: k.e("s_setprio 1")
    emit(k, pro)
    st.mark()
    if cfg.get("bwait"): k.e("s_mov_b32 s98, 0")
    lb = f"L_body{grp}"
    k.align(6)
    k.label(lb)
    emit(k, body)
    if grp == 1:
        ke = K(k.name + "_epi")
        epi_own(ke, cfg, LS_, "s30", True)
        lrare, lback, l2 = k.newlabel("rare"), k.newlabel("back"), k.newlabel("epi")
        OOL.append([lrare + ":", "s_cmp_lg_u32 s40, s51", f"s_cbranch_scc1 {l2}"] + sw + [f"s_branch {lback}", l2 + ":"]
                   + [x.strip() for x in ke.lines] + [f"s_branch {lback}"])
        k.e("s_sub_u32 s36, s40, s51")
        k.e("s_cmp_lt_u32 s36, 2")
        k.e(f"s_cbranch_scc1 {lrare}")
        k.label(lback)
    k.e("s_cmp_lg_u32 s40, 16")
    k.e(f"s_cbranch_scc1 {lb}")
    st.mark()
    if cfg.get("bwait"):
        st.mark()
        k.e(f"s_add_u32 s{st.base+2*st.n-2}, s{st.base+2*st.n-4}, s98")
    if before_tail: before_tail(k, grp)
    emit(k, tail)
    st.mark()
    merge(k, cfg, grp)
    st.mark()
    k.e("s_cmp_eq_u64 s[52:53], 0")
    k.e("s_cbranch_scc1 L_p3_done")
    if cfg.get("dbgsafe"):
        k.e("s_load_dwordx2 s[20:21], s[0:1], 96")
        k.e("s_waitcnt lgkmcnt(0)")
        k.e("v_mov_b32 v20, 0"); k.e("v_mov_b32 v21, 1")
        k.e("s_mov_b64 exec, 1")
        k.e("global_atomic_add v20, v21, s[20:21]")
        k.e("s_mov_b64 exec, -1")
    safe_path(k, cfg, grp)
    if grp == 0: st.n = n0

def gen_attn(cfg=None):
    cfg = cfg or {}
    k = K("attn_kernel")
    k.e("s_cmp_ge_u32 s2, 256")
    k.e("s_cbranch_scc1 L_attn_end")
    st = Stamps(k, cfg.get("stamp"), kid=1)
    st.mark()
    k.e("s_load_dwordx2 s[50:51], s[0:1], 16")
    k.e("s_load_dwordx2 s[54:55], s[0:1], 104")
    k.e("v_and_b32 v1, 63, v0")
    k.e("v_lshrrev_b32 v16, 6, v0")
    k.e("s_and_b32 s29, s2, 7")
    k.e("v_readfirstlane_b32 s28, v16")
    k.e("s_lshl_b32 s29, s29, 2")
    k.e("s_bfe_u32 s36, s2, 0x20003")
    k.e("s_add_u32 s29, s29, s36")
    k.e("s_lshr_b32 s30, s2, 5")
    p2_setup(k)
    k.e("s_waitcnt lgkmcnt(0)")
    srd(k, 4, 54, 4194304)
    srd(k, 8, 50, 8388608)
    pro, pro2, kvpre, body = p2_pieces(cfg)
    resolve([[pro, pro2, body, body, body, kvpre, body]])
    emit(k, pro)
    srd(k, 12, 54, 33554432, WS_KV)
    srd(k, 16, 54, 16777216, WS_CTX)
    p2_setup2(k)
    st.mark()
    emit(k, pro2)
    st.mark()
    k.align(6)
    k.label("L_p2_loop")
    k.e("s_cmp_lg_u32 s35, 3")
    k.e("s_cbranch_scc1 L_p2_nokv")
    emit(k, kvpre)
    k.label("L_p2_nokv")
    emit(k, body)
    k.e("s_add_u32 s35, s35, 1")
    k.e("s_cmp_lt_u32 s35, 4")
    k.e("s_cbranch_scc1 L_p2_loop")
    st.mark()
    k.e("s_cmp_lt_u32 s28, 4")
    k.e("s_cbranch_scc0 L_grp1")
    gen_p3(k, cfg, 0, st)
    k.e("s_branch L_p3_done")
    flush_ool(k)
    k.label("L_grp1")
    gen_p3(k, cfg, 1, st)
    k.e("s_branch L_p3_done")
    flush_ool(k)
    k.label("L_p3_done")
    st.dump(54, "s28")
    k.label("L_attn_end")
    return wrap(k, 256)
```

```python
from lib import *

WS_XN  = 0
WS_ST  = 4 << 20
WS_R   = (4 << 20) + 65536
WS_KV  = 8 << 20
WS_CTX = 40 << 20
WS_PRE = 56 << 20
WS_YP  = 57 << 20
WS_IDX = 58 << 20

MF = "v_mfma_f32_16x16x32_bf16"

def wave_sum(k, x, t, sd):
    for m in ["quad_perm:[1,0,3,2]", "quad_perm:[2,3,0,1]", "row_half_mirror", "row_mirror"]:
        k.e("s_nop 1")
        k.e(f"v_add_f32_dpp {x}, {x}, {x} {m} row_mask:0xf bank_mask:0xf")
    k.e("s_nop 0")
    for q in range(4):
        k.e(f"v_readlane_b32 s{sd+q}, {x}, {16*q}")
    k.e(f"v_mov_b32 {t}, s{sd}")
    k.e(f"v_add_f32 {t}, s{sd+1}, {t}")
    k.e(f"v_add_f32 {t}, s{sd+2}, {t}")
    k.e(f"v_add_f32 {t}, s{sd+3}, {t}")

def rbf(k, x):
    k.e(f"v_cvt_pk_bf16_f32 {x}, {x}, {x}")
    k.e(f"v_lshlrev_b32 {x}, 16, {x}")

def interleave(k, mfmas, fills):
    for i, m in enumerate(mfmas):
        k.e(m)
        if i < len(fills):
            for f in fills[i]: k.e(f)
    for f in fills[len(mfmas):]:
        for x in f: k.e(x)

WS_STAMP = 60 << 20
class Stamps:
    def __init__(self, k, on, base=64, kid=0):
        self.k, self.on, self.base, self.n, self.kid = k, on, base, 0, kid
    def mark(self, real=False):
        if not self.on: return
        if real: return
        b = self.base + 2*self.n
        assert b + 1 < 88
        self.k.e(f"s_memtime s[{b}:{b+1}]")
        self.k.e(f"s_memrealtime s[100:101]")
        self.k.e("s_waitcnt lgkmcnt(0)")
        self.k.e(f"s_mov_b32 s{b+1}, s100")
        self.n += 1
    def hist(self, n, first=True):
        if not self.on: return []
        if first: self.h0 = self.n; self.n += n
        b = self.base + 2*self.h0
        assert b + 2*n < 88
        L = [f"s_mov_b64 s[{b+2*i}:{b+2*i+1}], s[{b+2*i+2}:{b+2*i+3}]" for i in range(n-1)]
        e = b + 2*(n-1)
        return L + [f"s_memtime s[{e}:{e+1}]", "s_memrealtime s[100:101]", "s_waitcnt lgkmcnt(0)", f"s_mov_b32 s{e+1}, s100"]
    def dump(self, wsbase, swave):
        if not self.on: return
        k = self.k
        k.e("s_waitcnt vmcnt(0) lgkmcnt(0)")
        self.mark(); self.mark(real=True)
        k.e(f"s_add_u32 s60, s{wsbase}, {WS_STAMP + self.kid*(1<<20)}")
        k.e(f"s_addc_u32 s61, s{wsbase+1}, 0")
        k.e("s_and_b32 s61, s61, 0xffff")
        k.e("s_mov_b32 s62, 0x100000")
        k.e("s_mov_b32 s63, 0x20000")
        k.e("s_lshl_b32 s100, s2, 3")
        k.e(f"s_add_u32 s100, s100, {swave}")
        k.e("s_lshl_b32 s100, s100, 8")
        k.e("s_getreg_b32 s101, hwreg(HW_REG_XCC_ID)")
        k.e("v_mov_b32 v2, 0")
        k.e("s_mov_b64 exec, 1")
        for i in range(2*self.n):
            k.e(f"v_mov_b32 v3, s{self.base+i}")
            k.e(f"buffer_store_dword v3, v2, s[60:63], s100 offen offset:{4*i}")
        k.e("v_mov_b32 v3, s101")
        k.e(f"buffer_store_dword v3, v2, s[60:63], s100 offen offset:252")
        k.e(f"v_mov_b32 v3, {0x5a5a00 + self.n}")
        k.e(f"buffer_store_dword v3, v2, s[60:63], s100 offen offset:248")
        k.e("s_mov_b64 exec, -1")
```

```python
from common import *

WS_KEY = WS_R + 16384

def wave_max_u32(k, x, sd):
    for m in ["quad_perm:[1,0,3,2]", "quad_perm:[2,3,0,1]", "row_half_mirror", "row_mirror"]:
        k.e("s_nop 1")
        k.e(f"v_max_u32_dpp {x}, {x}, {x} {m} row_mask:0xf bank_mask:0xf")
    k.e("s_nop 0")
    for q in range(4): k.e(f"v_readlane_b32 s{sd+q}, {x}, {16*q}")
    k.e(f"s_max_u32 s{sd}, s{sd}, s{sd+1}")
    k.e(f"s_max_u32 s{sd+2}, s{sd+2}, s{sd+3}")
    k.e(f"s_max_u32 s{sd}, s{sd}, s{sd+2}")

def top2_loads(k, R, ld=""):
    k.e(f"v_lshlrev_b32 v{R+32}, 4, v1")
    k.e(f"s_mov_b32 s36, {WS_KEY}")
    k.e(f"s_mov_b32 s37, {WS_KEY+4096}")
    for i in range(8):
        k.e(f"buffer_load_dwordx4 {v(R+4*i,4)}, v{R+32}, s[24:27], s{36+i//4} offen offset:{(i%4)*1024}{ld}")

def top2(k, R, T=None, n=32):
    T = R + 32 if T is None else T
    m1, m2, t = f"v{T}", f"v{T+1}", f"v{T+2}"
    k.e(f"v_max_u32 {m1}, v{R}, v{R+1}")
    k.e(f"v_min_u32 {m2}, v{R}, v{R+1}")
    for i in range(2, n):
        k.e(f"v_med3_u32 {m2}, {m1}, {m2}, v{R+i}")
        k.e(f"v_max_u32 {m1}, {m1}, v{R+i}")
    k.e(f"v_mov_b32 {t}, {m1}")
    wave_max_u32(k, t, 36)
    k.e("s_mov_b32 s58, s36")
    k.e(f"v_cmp_eq_u32 vcc, s58, {m1}")
    k.e("s_nop 1")
    k.e(f"v_cndmask_b32 {t}, {m1}, {m2}, vcc")
    wave_max_u32(k, t, 36)
    k.e("s_mov_b32 s59, s36")
    for t_ in range(2):
        k.e(f"s_and_b32 s36, s{58+t_}, 0xffff")
        k.e(f"s_sub_u32 s{56+t_}, 0xffff, s36")

def prolog(k, name, n, w_off):
    k.e(f"s_cmp_ge_u32 s2, {n}")
    k.e(f"s_cbranch_scc1 L_{name}_end")
    k.e(f"s_load_dwordx4 s[44:47], s[0:1], {w_off}")
    k.e("s_load_dwordx2 s[54:55], s[0:1], 104")
    k.e("v_and_b32 v1, 63, v0")
    k.e("v_lshrrev_b32 v16, 6, v0")
    k.e("s_nop 0")
    k.e("v_readfirstlane_b32 s28, v16")
    k.e("s_waitcnt lgkmcnt(0)")
    srd(k, 24, 54, 64 << 20)

def wdma_addr(k, V, srow0, pitch, scol):
    k.e(f"v_lshrrev_b32 v{V+1}, 3, v1")
    k.e("s_lshl_b32 s36, s28, 5")
    k.e(f"s_add_u32 s36, s36, {srow0}")
    k.e(f"v_add_u32 v{V+1}, s36, v{V+1}")
    k.e(f"v_mul_u32_u24 v{V+1}, {pitch}, v{V+1}")
    k.e(f"v_add_u32 v{V+1}, {scol}, v{V+1}")
    k.e(f"v_bfe_u32 v{V+2}, v1, 4, 1")
    k.e(f"v_lshlrev_b32 v{V+2}, 1, v{V+2}")
    k.e(f"v_and_b32 v{V+3}, 7, v1")
    k.e(f"v_xor_b32 v{V+2}, v{V+2}, v{V+3}")
    k.e(f"v_lshl_add_u32 v{V}, v{V+2}, 4, v{V+1}")
    k.e(f"v_xor_b32 v{V+2}, 4, v{V+2}")
    k.e(f"v_lshl_add_u32 v{V+1}, v{V+2}, 4, v{V+1}")
    k.e(f"v_add_u32 v{V+1}, {8*pitch-1024}, v{V+1}")
    k.e(f"v_add_u32 v{V+2}, {2*(8*pitch-1024)}, v{V}")
    k.e(f"v_add_u32 v{V+3}, {2*(8*pitch-1024)}, v{V+1}")

def wrd_addr(k, d, fz, t1):
    k.e(f"v_lshrrev_b32 {t1}, 4, v1")
    k.e(f"v_bfe_u32 {d}, v1, 2, 2")
    k.e(f"v_lshl_add_u32 {d}, {t1}, 3, {d}")
    k.e(f"v_lshlrev_b32 {d}, 7, {d}")
    k.e(f"v_and_b32 {fz}, 3, v1")
    k.e(f"v_lshl_add_u32 {d}, {fz}, 3, {d}")
    k.e(f"v_bfe_u32 {fz}, v1, 3, 2")

def gen_ffn1(cfg):
    k = K("ffn1_kernel")
    prolog(k, "ffn1", 224, 64)
    srd(k, 4, 44, 7340032); srd(k, 8, 46, 7340032)
    top2_loads(k, 64)
    k.e("s_and_b32 s29, s2, 3")
    k.e("s_lshr_b32 s30, s2, 2")
    k.e("s_lshl_b32 s38, s29, 8")
    k.e("s_lshl_b32 s39, s30, 7")
    wdma_addr(k, 6, "s38", 7168, "s39")
    k.e("s_lshl_b32 s33, s28, 12")
    for m in range(2):
        k.e(f"s_add_u32 m0, s33, {m*32768}")
        k.e("s_nop 0")
        for j in range(4): k.e(f"buffer_load_dwordx4 v{6+j}, s[{4+4*m}:{7+4*m}], 0 offen offset:{j*1024} lds")
    k.e("s_waitcnt vmcnt(8)")
    top2(k, 64)
    k.e("v_and_b32 v10, 1, v1")
    k.e("v_mov_b32 v11, s56")
    k.e("v_mov_b32 v12, s57")
    k.e("v_cmp_eq_u32 vcc, 1, v10")
    k.e("s_nop 1")
    k.e("v_cndmask_b32 v11, v11, v12, vcc")
    k.e("v_lshrrev_b32 v12, 4, v11")
    k.e("v_lshlrev_b32 v12, 15, v12")
    k.e("v_and_b32 v11, 15, v11")
    k.e("v_lshl_add_u32 v12, v11, 4, v12")
    k.e("v_lshrrev_b32 v13, 4, v1")
    k.e("v_lshl_add_u32 v12, v13, 8, v12")
    k.e("s_lshl_b32 s36, s29, 13")
    k.e("s_add_u32 s37, s36, 4096")
    for s_ in range(8):
        k.e(f"buffer_load_dwordx4 {v(64+4*s_,4)}, v12, s[24:27], s{36+s_//4} offen offset:{(s_%4)*1024}")
    wrd_addr(k, "v14", "v15", "v16")
    k.e("s_and_b32 s36, s28, 3")
    k.e("v_xor_b32 v15, s36, v15")
    k.e("v_lshl_add_u32 v14, v15, 5, v14")
    k.e("s_lshr_b32 s36, s28, 2")
    k.e("s_lshl_b32 s36, s36, 15")
    k.e("v_add_u32 v14, s36, v14")
    k.e("s_waitcnt vmcnt(8)")
    k.e("s_barrier")
    for s_ in range(8):
        for t in range(2):
            k.e(f"ds_read_b64_tr_b16 {v(100+4*s_+2*t,2)}, v14 offset:{(32*s_+4*t)*128}")
    k.e("s_waitcnt vmcnt(0) lgkmcnt(0)")
    for s_ in range(8):
        k.e(f"{MF} v[20:23], {v(100+4*s_,4)}, {v(64+4*s_,4)}, {'v[20:23]' if s_ else '0'}")
    k.e("s_lshl_b32 s36, s29, 1")
    k.e("s_lshr_b32 s37, s28, 2")
    k.e("s_add_u32 s36, s36, s37")
    k.e(f"s_mul_i32 s36, s36, {2*14336}")
    k.e("s_lshl_b32 s37, s30, 8")
    k.e("s_add_u32 s36, s36, s37")
    k.e("s_and_b32 s37, s28, 3")
    k.e("s_lshl_b32 s37, s37, 6")
    k.e("s_add_u32 s36, s36, s37")
    k.e(f"s_add_u32 s36, s36, {WS_PRE}")
    k.e("v_mul_u32_u24 v10, 14336, v10")
    k.e("v_lshl_add_u32 v10, v13, 4, v10")
    k.e("s_mov_b32 exec_lo, 0x00030003")
    k.e("s_mov_b32 exec_hi, 0x00030003")
    k.e("buffer_store_dwordx4 v[20:23], v10, s[24:27], s36 offen")
    k.label("L_ffn1_end")
    return wrap(k, 136)

def gen_ffn2(cfg):
    k = K("ffn2_kernel")
    prolog(k, "ffn2", 256, 80)
    srd(k, 4, 44, 7340032)
    k.e("s_and_b32 s30, s2, 15")
    k.e("s_lshr_b32 s29, s2, 4")
    k.e("v_and_b32 v10, 1, v1")
    k.e("v_lshrrev_b32 v13, 4, v1")
    k.e("s_cmp_eq_u32 s28, 7")
    k.e("s_cbranch_scc1 L_ffn2_w7")
    k.e("s_mul_i32 s38, s29, 224")
    k.e("s_lshl_b32 s39, s30, 7")
    wdma_addr(k, 6, "s38", 2048, "s39")
    k.e("s_lshl_b32 s33, s28, 12")
    k.e("s_mov_b32 m0, s33")
    k.e("s_nop 0")
    for j in range(4): k.e(f"buffer_load_dwordx4 v{6+j}, s[4:7], 0 offen offset:{j*1024} lds")
    k.e("s_lshl_b32 s36, s28, 5")
    k.e("s_add_u32 s36, s36, s38")
    k.e("s_lshl_b32 s36, s36, 2")
    k.e(f"s_add_u32 s36, s36, {WS_PRE}")
    k.e("v_mul_u32_u24 v11, 14336, v10")
    k.e("v_lshl_add_u32 v11, v13, 5, v11")
    for q in range(8):
        for h in range(2):
            k.e(f"buffer_load_dwordx4 {v(64+8*q+4*h,4)}, v11, s[24:27], s36 offen offset:{16*h}")
        if q < 7: k.e(f"s_add_u32 s36, s36, {2*14336}")
    wrd_addr(k, "v14", "v15", "v16")
    k.e("v_add_u32 v14, s33, v14")
    k.e("s_waitcnt vmcnt(0)")
    for cb in range(4):
        k.e(f"v_xor_b32 v16, {cb}, v15")
        k.e("v_lshl_add_u32 v16, v16, 5, v14")
        for t in range(2):
            k.e(f"ds_read_b64_tr_b16 {v(40+4*cb+2*t,2)}, v16 offset:{4*t*128}")
    for e in range(16):
        for q in range(1, 4):
            k.e(f"v_add_f32 v{64+e}, v{64+e}, v{64+16*q+e}")
    for e in range(8):
        g, u = f"v{64+e}", f"v{72+e}"
        rbf(k, g); rbf(k, u)
        k.e(f"v_mul_f32 v17, 0xbfb8aa3b, {g}")
        k.e("v_exp_f32 v17, v17")
        k.e("s_nop 0")
        k.e("v_add_f32 v17, 1.0, v17")
        k.e("v_rcp_f32 v17, v17")
        k.e("s_nop 0")
        k.e(f"v_mul_f32 {g}, {g}, v17")
        rbf(k, g)
        k.e(f"v_mul_f32 {g}, {g}, {u}")
    for q in range(4): k.e(f"v_cvt_pk_bf16_f32 v{36+q}, v{64+2*q}, v{65+2*q}")
    k.e("s_waitcnt lgkmcnt(0)")
    k.e("s_nop 0")
    for cb in range(4):
        k.e(f"{MF} {v(20+4*cb,4)}, {v(40+4*cb,4)}, v[36:39], 0")
    k.e("s_add_u32 s36, s33, 32768")
    k.e("v_lshl_add_u32 v16, v1, 4, s36")
    k.e("s_nop 6")
    for cb in range(4):
        k.e(f"ds_write_b128 v16, {v(20+4*cb,4)} offset:{cb*1024}")
    k.e("s_waitcnt lgkmcnt(0)")
    k.e("s_branch L_ffn2_join")
    k.label("L_ffn2_w7")
    k.e("s_cmp_lg_u32 s2, 0")
    k.e("s_cbranch_scc1 L_ffn2_join")
    top2_loads(k, 64)
    k.e("s_waitcnt vmcnt(0)")
    top2(k, 64)
    k.e("v_mov_b32 v20, s56")
    k.e("v_mov_b32 v21, s57")
    for t in range(2):
        d = f"v{22+t}"
        k.e(f"s_and_b32 s36, s{58+t}, 0xffff0000")
        k.e("s_cmp_lt_i32 s36, 0")
        k.e("s_cselect_b32 s37, 0x80000000, -1")
        k.e("s_xor_b32 s36, s36, s37")
        k.e("s_and_b32 s36, s36, 0xffff0000")
        k.e(f"v_mov_b32 {d}, s36")
        k.e(f"v_mul_f32 {d}, 0xbfb8aa3b, {d}")
        k.e(f"v_exp_f32 {d}, {d}")
        k.e("s_nop 0")
        k.e(f"v_add_f32 {d}, 1.0, {d}")
        k.e(f"v_rcp_f32 {d}, {d}")
        k.e("s_nop 0")
        rbf(k, d)
    k.e("v_mov_b32 v16, 0")
    k.e(f"s_mov_b32 s36, {WS_IDX}")
    k.e("s_mov_b64 exec, 1")
    k.e("buffer_store_dwordx4 v[20:23], v16, s[24:27], s36 offen")
    k.e("s_mov_b64 exec, -1")
    k.label("L_ffn2_join")
    k.e("s_barrier")
    k.e("s_cmp_ge_u32 s28, 4")
    k.e("s_cbranch_scc1 L_ffn2_end")
    k.e("s_lshl_b32 s36, s28, 10")
    k.e("s_add_u32 s36, s36, 32768")
    k.e("v_lshl_add_u32 v16, v1, 4, s36")
    for w in range(7):
        k.e(f"ds_read_b128 {v(64+4*w,4)}, v16 offset:{w*4096}")
    k.e("s_waitcnt lgkmcnt(0)")
    for w in range(1, 7):
        for e in range(4): k.e(f"v_add_f32 v{64+e}, v{64+e}, v{64+4*w+e}")
    k.e("s_lshl_b32 s36, s29, 13")
    k.e("s_lshl_b32 s37, s30, 8")
    k.e("s_add_u32 s36, s36, s37")
    k.e("s_lshl_b32 s37, s28, 6")
    k.e("s_add_u32 s36, s36, s37")
    k.e(f"s_add_u32 s36, s36, {WS_YP}")
    k.e("v_lshlrev_b32 v10, 12, v10")
    k.e("v_lshl_add_u32 v10, v13, 4, v10")
    k.e("s_mov_b32 exec_lo, 0x00030003")
    k.e("s_mov_b32 exec_hi, 0x00030003")
    k.e("buffer_store_dwordx4 v[64:67], v10, s[24:27], s36 offen")
    k.label("L_ffn2_end")
    return wrap(k, 136)
```

```python
from common import *
import attn as A
import ffn as F

WS_CNT = 59 << 20
CNT_KV, CNT_CTX, CNT_F1, CNT_F2, CNT_KV0 = 0, 32, 48, 96, 64
SC = " sc1"
LDS_X = 131072

def lines(fn, *a, **kw):
    t = K("tmp"); fn(t, *a, **kw); return [x.strip() for x in t.lines]

def signal(saddr_pair, off, t0, t1):
    return [f"v_mov_b32 {t0}, {off}", f"v_mov_b32 {t1}, 1", "s_mov_b64 exec, 1",
            f"global_atomic_add {t0}, {t1}, {saddr_pair}", "s_mov_b64 exec, -1", "s_nop 3"]

def switch(k, sreg, cases):
    L = []
    lend = k.newlabel("swend")
    for i, (val, items) in enumerate(cases):
        if i + 1 < len(cases):
            ln = k.newlabel("swn")
            L += [f"s_cmp_eq_u32 {sreg}, {val}", f"s_cbranch_scc0 {ln}"] + items + [f"s_branch {lend}", ln + ":"]
        else:
            L += items
    return L + [lend + ":"]

def guard(k, cond, br, items, key):
    l = k.newlabel("g")
    return Alt(cond + [f"{br} {l}"] + items + [l + ":"], lambda c: items if c[key] else [])

def spin(k, saddr, voff, vtmp, target, slp=8):
    l, le = k.newlabel("spin"), k.newlabel("spinx")
    return ["s_mov_b32 s61, 0x40000", l + ":", "s_sub_u32 s61, s61, 1", f"s_cbranch_scc1 {le}", f"s_sleep {slp}",
            f"global_load_dword {vtmp}, {voff}, {saddr} sc1", "s_waitcnt vmcnt(0)",
            f"v_readfirstlane_b32 s36, {vtmp}", "s_nop 0", f"s_cmp_lt_u32 s36, {target}", f"s_cbranch_scc1 {l}", le + ":"]

def check(k, saddr, voff, vtmp, target):
    return A.ool(k, [f"v_readfirstlane_b32 s36, {vtmp}", "s_nop 0", f"s_cmp_lt_u32 s36, {target}"], "s_cbranch_scc1",
                 spin(k, saddr, voff, vtmp, target))

def ln_part1(k, X, WR, Fr, T, srow):
    t = [f"v{T+i}" for i in range(8)]
    for i in range(8):
        k.e(f"v_lshlrev_b32 v{Fr+2*i}, 16, v{X+i}")
        k.e(f"v_and_b32 v{Fr+2*i+1}, 0xffff0000, v{X+i}")
    k.e(f"v_add_f32 {t[0]}, v{Fr}, v{Fr+1}")
    for i in range(2, 16): k.e(f"v_add_f32 {t[0]}, {t[0]}, v{Fr+i}")
    wave_sum(k, t[0], t[1], 36)
    k.e(f"v_mul_f32 {t[1]}, 0x3a800000, {t[1]}")
    k.e(f"v_sub_f32 {t[2]}, v{Fr}, {t[1]}")
    k.e(f"v_mul_f32 {t[0]}, {t[2]}, {t[2]}")
    for i in range(1, 16):
        k.e(f"v_sub_f32 {t[2]}, v{Fr+i}, {t[1]}")
        k.e(f"v_fmac_f32 {t[0]}, {t[2]}, {t[2]}")
    wave_sum(k, t[0], t[2], 36)
    k.e(f"v_mul_f32 {t[2]}, 0x3a800000, {t[2]}")
    k.e(f"v_cvt_pk_bf16_f32 {t[3]}, {t[1]}, {t[2]}")
    k.e(f"v_lshlrev_b32 {t[6]}, 16, {t[3]}")
    k.e(f"v_and_b32 {t[2]}, 0xffff0000, {t[3]}")
    k.e(f"v_add_f32 {t[2]}, 0x3727c5ac, {t[2]}")
    rbf(k, t[2])
    k.e(f"v_sqrt_f32 {t[2]}, {t[2]}")
    k.e("s_nop 0")
    rbf(k, t[2])
    k.e(f"v_rcp_f32 {t[7]}, {t[2]}")
    k.e("s_nop 0")
    k.e(f"v_fma_f32 {t[4]}, -{t[2]}, {t[7]}, 1.0")
    k.e(f"v_fma_f32 {t[7]}, {t[4]}, {t[7]}, {t[7]}")
    for i in range(8):
        a, b = f"v{Fr+2*i}", f"v{Fr+2*i+1}"
        k.e(f"v_sub_f32 {a}, {a}, {t[6]}")
        k.e(f"v_sub_f32 {b}, {b}, {t[6]}")
        k.e(f"v_cvt_pk_bf16_f32 {t[4]}, {a}, {b}")
        k.e(f"v_lshlrev_b32 {a}, 16, {t[4]}")
        k.e(f"v_and_b32 {b}, 0xffff0000, {t[4]}")
        k.e(f"v_mul_f32 {a}, {a}, {t[7]}")
        k.e(f"v_mul_f32 {b}, {b}, {t[7]}")
        k.e(f"v_cvt_pk_bf16_f32 v{X+i}, {a}, {b}")
        k.e(f"v_lshlrev_b32 {a}, 16, v{X+i}")
        k.e(f"v_and_b32 {b}, 0xffff0000, v{X+i}")
    k.e("s_mul_i32 s36, s28, 2064")
    k.e(f"s_add_u32 s36, s36, {LDS_X}")
    k.e(f"v_lshl_add_u32 {t[3]}, v1, 4, s36")
    k.e(f"ds_write_b128 {t[3]}, {v(X,4)}")
    k.e(f"ds_write_b128 {t[3]}, {v(X+4,4)} offset:1024")
    for i in range(8):
        k.e(f"v_lshlrev_b32 {t[4]}, 16, v{WR+i}")
        k.e(f"v_and_b32 {t[5]}, 0xffff0000, v{WR+i}")
        if i == 0: k.e(f"v_mul_f32 {t[0]}, v{Fr}, {t[4]}")
        else: k.e(f"v_fmac_f32 {t[0]}, v{Fr+2*i}, {t[4]}")
        k.e(f"v_fmac_f32 {t[0]}, v{Fr+2*i+1}, {t[5]}")
    wave_sum(k, t[0], t[1], 36)
    rbf(k, t[1])
    k.e(f"v_ashrrev_i32 {t[3]}, 31, {t[1]}")
    k.e(f"v_or_b32 {t[3]}, 0x80000000, {t[3]}")
    k.e(f"v_xor_b32 {t[3]}, {t[1]}, {t[3]}")
    k.e(f"v_and_b32 {t[3]}, 0xffff0000, {t[3]}")
    k.e(f"s_sub_u32 s36, 0xffff, {srow}")
    k.e(f"v_or_b32 {t[3]}, s36, {t[3]}")
    k.e("s_lshl_b32 s36, s28, 3")
    k.e(f"s_add_u32 s36, s36, {LDS_X + 16640}")
    k.e(f"v_mov_b32 {t[2]}, s36")
    k.e(f"ds_write_b64 {t[2]}, {v(T+6,2)}")
    k.e(f"ds_write_b32 {t[2]}, {t[3]} offset:64")

def ln_part3(T):
    t = [f"v{T+i}" for i in range(8)]
    L = [f"v_and_b32 {t[0]}, 7, v1", f"v_lshlrev_b32 {t[0]}, 3, {t[0]}", f"v_add_u32 {t[1]}, {LDS_X + 16640}, {t[0]}",
         f"ds_read_b64 {v(T+2,2)}, {t[1]}", f"ds_read_b32 {t[4]}, {t[1]} offset:64",
         "s_lshl_b32 s36, s2, 6", f"s_add_u32 s36, s36, {WS_ST}", "s_lshl_b32 s37, s2, 3", f"s_add_u32 s37, s37, {F.WS_KEY}",
         "s_waitcnt lgkmcnt(0)", f"v_mov_b32 {t[6]}, {t[4]}"]
    red = lambda x: flat([["s_nop 1", f"v_max_u32_dpp {x}, {x}, {x} {m} row_mask:0xf bank_mask:0xf"]
                          for m in ("quad_perm:[1,0,3,2]", "quad_perm:[2,3,0,1]", "row_half_mirror")])
    L += red(t[6]) + [f"v_cmp_eq_u32 vcc, {t[6]}, {t[4]}", "s_nop 1", f"v_cndmask_b32 {t[7]}, {t[4]}, v118, vcc"] + red(t[7])
    L += ["s_mov_b64 exec, 0xff", f"buffer_store_dwordx2 {v(T+2,2)}, {t[0]}, s[24:27], s36 offen{SC}",
          "s_mov_b64 exec, 1", f"buffer_store_dwordx2 {v(T+6,2)}, {t[0]}, s[24:27], s37 offen{SC}", "s_mov_b64 exec, -1", "s_nop 3"]
    return L

def ln_part2(k, X, T):
    t = [f"v{T+i}" for i in range(8)]
    k.e(f"v_and_b32 {t[0]}, 7, v1")
    k.e(f"v_lshrrev_b32 {t[1]}, 3, v1")
    k.e(f"v_mul_u32_u24 {t[2]}, 2064, {t[0]}")
    k.e(f"v_lshl_add_u32 {t[2]}, {t[1]}, 4, {t[2]}")
    k.e("s_lshl_b32 s36, s28, 8")
    k.e(f"s_add_u32 s36, s36, {LDS_X}")
    k.e(f"v_add_u32 {t[2]}, s36, {t[2]}")
    k.e(f"ds_read_b128 {v(X,4)}, {t[2]}")
    k.e(f"ds_read_b128 {v(X+4,4)}, {t[2]} offset:128")
    k.e(f"v_lshlrev_b32 {t[0]}, 4, {t[0]}")
    k.e(f"v_lshl_add_u32 {t[0]}, {t[1]}, 8, {t[0]}")
    k.e("s_lshr_b32 s36, s2, 1")
    k.e("s_lshl_b32 s36, s36, 15")
    k.e("s_and_b32 s37, s2, 1")
    k.e("s_lshl_b32 s37, s37, 7")
    k.e("s_add_u32 s36, s36, s37")
    k.e("s_lshl_b32 s37, s28, 12")
    k.e("s_add_u32 s36, s36, s37")
    k.e("s_waitcnt lgkmcnt(0)")
    k.e(f"buffer_store_dwordx4 {v(X,4)}, {t[0]}, s[24:27], s36 offen{SC}")
    k.e(f"buffer_store_dwordx4 {v(X+4,4)}, {t[0]}, s[24:27], s36 offen offset:2048{SC}")

KP = 128
WF = 24
XF = [64, 96]
vPOLL = "v56"
vZ = "v57"

def touch2(pa, pb, offa, offb, dst="v116"):
    return ["v_and_b32 v19, 31, v1"] + offa + offb + [
        "v_cmp_lt_u32 vcc, 31, v1", f"v_mov_b32 v18, s{pa}", f"v_mov_b32 v19, s{pb}", "v_cndmask_b32 v16, v16, v17, vcc",
        "v_cndmask_b32 v18, v18, v19, vcc", f"v_mov_b32 v17, s{pa+1}", f"v_mov_b32 v19, s{pb+1}", "v_cndmask_b32 v17, v17, v19, vcc",
        "v_add_co_u32 v16, vcc, v18, v16", "s_nop 1", "v_addc_co_u32 v17, vcc, 0, v17, vcc",
        f"global_load_dword {dst}, v[16:17], off"]

def touches(k, late=False):
    wq = ["s_lshl_b32 s36, s30, 7", "s_lshl_b32 s37, s28, 4", "s_add_u32 s36, s36, s37", "v_lshrrev_b32 v16, 1, v19",
          "v_add_u32 v16, s36, v16", "v_lshlrev_b32 v16, 13, v16", "v_and_b32 v17, 1, v1", "v_lshl_add_u32 v16, v17, 7, v16",
          "s_lshl_b32 s36, s29, 8", "v_add_u32 v16, s36, v16"]
    wo = ["s_lshl_b32 s36, s2, 15", "s_lshl_b32 s37, s28, 12", "s_add_u32 s36, s36, s37", "v_lshl_add_u32 v17, v19, 7, s36"]
    gu = ["s_min_u32 s37, s2, 223", "s_and_b32 s36, s37, 3", "s_lshl_b32 s36, s36, 8", "s_lshr_b32 s37, s37, 2", "s_lshl_b32 s37, s37, 7",
          "s_lshl_b32 s38, s28, 5", "s_add_u32 s36, s36, s38", "v_add_u32 v16, s36, v19", "v_mul_u32_u24 v16, 7168, v16", "v_add_u32 v16, s37, v16"]
    dn = ["s_lshr_b32 s36, s2, 4", "s_mul_i32 s36, s36, 224", "s_min_u32 s37, s28, 6", "s_lshl_b32 s37, s37, 5", "s_add_u32 s36, s36, s37",
          "v_add_u32 v16, s36, v19", "v_lshlrev_b32 v16, 11, v16", "s_and_b32 s37, s2, 15", "s_lshl_b32 s37, s37, 7", "v_add_u32 v16, s37, v16"]
    cp = ["v_mov_b32 v17, v16"]
    if late: return touch2(94, 92, dn, wo, "v10")
    return switch(k, "s35", [(0, touch2(96, 96, wq, cp)), (1, touch2(92, 94, gu, cp)),
                             (3, ["global_load_dword v116, v118, s[96:97]"])])

def touch_p1():
    w = ["s_lshl_b32 s36, s30, 6", "s_lshl_b32 s37, s28, 3", "s_add_u32 s36, s36, s37", "v_bfe_u32 v16, v1, 1, 3",
         "v_add_u32 v16, s36, v16", "v_lshlrev_b32 v16, 13, v16", "v_and_b32 v17, 1, v1", "v_lshl_add_u32 v16, v17, 7, v16",
         "s_lshl_b32 s36, s29, 8", "v_add_u32 v16, s36, v16"]
    c = ["s_lshl_b32 s36, s30, 8", "s_lshl_b32 s37, s28, 5", "s_add_u32 s36, s36, s37", "v_lshrrev_b32 v16, 1, v1",
         "v_add_u32 v16, s36, v16", "v_lshlrev_b32 v16, 10, v16", "v_and_b32 v17, 1, v1", "v_lshl_add_u32 v16, v17, 7, v16",
         "s_and_b32 s36, s29, 3", "s_lshl_b32 s36, s36, 8", "v_add_u32 v16, s36, v16", "global_load_dword v117, v16, s[46:47]"]
    return c + touch2(48, 50, w, ["v_mov_b32 v17, v16"], "v119")

def p1_retarget(cfg):
    L = ["v_lshrrev_b32 v18, 4, v1", "s_lshl_b32 s37, s28, 4", "v_add_u32 v19, s37, v18", "v_lshlrev_b32 v19, 13, v19",
         "s_lshl_b32 s37, s29, 8", "v_add_u32 v19, s37, v19", "v_and_b32 v16, 15, v1", "v_lshlrev_b32 v17, 1, v18",
         "v_xor_b32 v17, v16, v17", "v_lshl_add_u32 v2, v17, 4, v19", f"v_add_u32 v3, {32768-1024}, v2",
         "v_xor_b32 v17, 8, v17", "v_lshl_add_u32 v4, v17, 4, v19", f"v_add_u32 v4, {2*(32768-1024)}, v4",
         f"v_add_u32 v5, {32768-1024}, v4"]
    L += lines(srd, 4, 96, 8388608)
    L += ["s_mov_b32 s31, 0", f"s_mov_b32 s40, {128*8192}", "s_mov_b32 s32, 0", "s_mov_b32 s41, 0",
          "s_and_b32 s38, s2, 3", "s_lshl_b32 s38, s38, 8", "s_lshr_b32 s39, s2, 2", "s_lshl_b32 s39, s39, 7"]
    L += lines(F.wdma_addr, 6, "s38", 7168, "s39")
    L += lines(srd, 8, 92, 7340032)
    L += [f"s_cmp_lt_u32 s2, {0 if cfg.get('noffn') else 224}", "s_cselect_b32 s10, s10, 0"]
    return L

def p1(k, cfg, st):
    ACC = 128
    FR = [20, 68]
    X, WR, Fr, T = 68, 76, 84, 100
    k.e("s_load_dwordx4 s[44:47], s[0:1], 0")
    k.e("s_load_dwordx4 s[48:51], s[0:1], 24")
    k.e("s_load_dwordx2 s[52:53], s[0:1], 56")
    k.e("s_load_dwordx4 s[88:91], s[0:1], 96")
    k.e("s_load_dwordx4 s[92:95], s[0:1], 64")
    k.e("s_load_dwordx2 s[96:97], s[0:1], 16")
    k.e("v_and_b32 v1, 63, v0")
    k.e("v_lshrrev_b32 v16, 6, v0")
    k.e("s_and_b32 s29, s2, 7")
    k.e("v_readfirstlane_b32 s28, v16")
    k.e("s_lshl_b32 s29, s29, 2")
    k.e("s_bfe_u32 s36, s2, 0x20003")
    k.e("s_add_u32 s29, s29, s36")
    k.e("s_lshr_b32 s30, s2, 5")
    k.e("s_lshl_b32 s42, s2, 3")
    k.e("s_add_u32 s42, s42, s28")
    k.e("v_lshlrev_b32 v116, 4, v1")
    k.e("s_lshl_b32 s36, s42, 11")
    k.e("v_add_u32 v117, s36, v116")
    k.e("v_lshrrev_b32 v16, 3, v1")
    k.e("s_lshl_b32 s36, s30, 8")
    k.e("s_lshl_b32 s37, s28, 5")
    k.e("s_add_u32 s36, s36, s37")
    k.e("v_add_u32 v16, s36, v16")
    k.e("v_lshlrev_b32 v16, 10, v16")
    k.e("v_lshrrev_b32 v18, 4, v1")
    k.e("v_and_b32 v19, 7, v1")
    k.e("v_xor_b32 v19, v19, v18")
    k.e("v_lshl_add_u32 v2, v19, 4, v16")
    k.e("v_xor_b32 v19, 4, v19")
    k.e("v_lshl_add_u32 v3, v19, 4, v16")
    k.e(f"v_add_u32 v3, {8192-1024}, v3")
    k.e(f"v_add_u32 v4, {2*(8192-1024)}, v2")
    k.e(f"v_add_u32 v5, {2*(8192-1024)}, v3")
    k.e("s_and_b32 s36, s28, 3")
    k.e("s_lshl_b32 s37, s36, 4")
    k.e("v_add_u32 v16, s37, v18")
    k.e("v_lshlrev_b32 v16, 13, v16")
    k.e("s_lshl_b32 s37, s29, 8")
    k.e("v_add_u32 v16, s37, v16")
    k.e("v_and_b32 v19, 15, v1")
    k.e("v_lshlrev_b32 v18, 1, v18")
    k.e("v_xor_b32 v19, v19, v18")
    k.e("v_lshl_add_u32 v6, v19, 4, v16")
    k.e(f"v_add_u32 v7, {32768-1024}, v6")
    k.e("v_xor_b32 v19, 8, v19")
    k.e("v_lshl_add_u32 v8, v19, 4, v16")
    k.e(f"v_add_u32 v8, {2*(32768-1024)}, v8")
    k.e(f"v_add_u32 v9, {32768-1024}, v8")
    k.e("s_lshl_b32 s33, s28, 12")
    k.e("s_add_u32 s34, s33, 65536")
    k.e("s_mov_b32 s31, 0")
    k.e("s_mov_b32 s32, 0")
    k.e("s_waitcnt lgkmcnt(0)")
    k.e(f"s_add_u32 s54, s90, {int(cfg.get('wsoff', 0)) << 20}")
    k.e("s_addc_u32 s55, s91, 0")
    srd(k, 16, 44, 4194304)
    srd(k, 20, 52, 2048)
    k.e(f"buffer_load_dwordx4 {v(X,4)}, v117, s[16:19], 0 offen")
    k.e(f"buffer_load_dwordx4 {v(X+4,4)}, v117, s[16:19], 0 offen offset:1024")
    k.e(f"buffer_load_dwordx4 {v(WR,4)}, v116, s[20:23], 0 offen")
    k.e(f"buffer_load_dwordx4 {v(WR+4,4)}, v116, s[20:23], 0 offen offset:1024")
    srd(k, 4, 46, 2097152)
    k.e("s_cmp_lt_u32 s28, 4")
    k.e("s_cselect_b32 s8, s48, s50")
    k.e("s_cselect_b32 s9, s49, s51")
    k.e("s_and_b32 s9, s9, 0xffff")
    k.e("s_mov_b32 s10, 4194304")
    k.e("s_mov_b32 s11, 0x20000")
    k.e("s_barrier")
    def dma_list(stage):
        c = [f"buffer_load_dwordx4 v{2+j}, s[4:7], s31 offen offset:{j*1024} lds" for j in range(4)]
        w = [f"buffer_load_dwordx4 v{6+j}, s[8:11], s32 offen offset:{j*1024} lds" for j in range(4)]
        return f"s_add_u32 m0, s33, {stage*32768}", c, f"s_add_u32 m0, s34, {stage*32768}", w
    def dma_now(stage):
        mc, c, mw, w = dma_list(stage)
        k.e(mc); k.e("s_nop 0"); k.e(c); k.e(mw); k.e("s_nop 0"); k.e(w)
        k.e("s_add_u32 s31, s31, s40")
        k.e("s_add_u32 s32, s32, s41")
    k.e("s_mov_b32 s40, 128")
    k.e(f"s_mov_b32 s41, {64*8192}")
    k.e("s_and_b32 s95, s95, 0xffff")
    dma_now(0)
    early1 = cfg.get("early1", "1") == "1"
    if early1: dma_now(1)
    st.mark()
    srd(k, 12, 54, 33554432, WS_KV)
    srd(k, 24, 54, 64 << 20)
    k.e(f"s_add_u32 s90, s54, {WS_CNT}")
    k.e("s_addc_u32 s91, s55, 0")
    k.e("v_and_b32 v16, 15, v1")
    k.e("v_lshrrev_b32 v17, 4, v1")
    k.e("s_bfe_u32 s36, s28, 0x10001")
    k.e("s_lshl_b32 s36, s36, 14")
    k.e("v_lshl_add_u32 v18, v16, 7, s36")
    k.e("v_lshrrev_b32 v19, 1, v16")
    k.e("v_xor_b32 v19, v19, v17")
    k.e("v_lshl_add_u32 v10, v19, 4, v18")
    k.e("v_xor_b32 v19, 4, v19")
    k.e("v_lshl_add_u32 v11, v19, 4, v18")
    k.e("v_lshrrev_b32 v16, 2, v16")
    k.e("v_lshl_add_u32 v18, v17, 3, v16")
    k.e("v_lshlrev_b32 v18, 8, v18")
    k.e("s_lshr_b32 s36, s28, 2")
    k.e("s_lshl_b32 s36, s36, 14")
    k.e("s_add_u32 s36, s36, 65536")
    k.e("v_add_u32 v18, s36, v18")
    k.e("v_and_b32 v19, 3, v1")
    k.e("v_lshl_add_u32 v18, v19, 3, v18")
    k.e("v_and_b32 v17, 1, v17")
    k.e("v_lshl_add_u32 v16, v17, 2, v16")
    k.e("s_and_b32 s36, s28, 1")
    k.e("s_lshl_b32 s36, s36, 2")
    for cb in range(4):
        k.e(f"s_add_u32 s37, s36, {cb}")
        k.e("v_xor_b32 v19, s37, v16")
        k.e(f"v_lshl_add_u32 v{12+cb}, v19, 5, v18")
    for r in range(128): k.e(f"v_mov_b32 v{ACC+r}, 0")
    k.e("v_mov_b32 v118, 0")
    k.e(f"s_waitcnt vmcnt({16 if early1 else 8})")
    st.mark()
    if not early1: dma_now(1)
    np1 = 0 if cfg.get("nop1t") else 2
    if np1: k.e(touch_p1())
    emit(k, A.ool(k, ["s_add_u32 s36, s2, s28", "s_cmp_eq_u32 s36, 0"], "s_cbranch_scc1",
                  ["v_lshlrev_b32 v16, 7, v1", f"global_store_dword v16, v118, s[90:91]{SC}", "v_add_u32 v16, 8192, v16",
                   f"global_store_dword v16, v118, s[90:91]{SC}", "s_waitcnt vmcnt(0)"]))
    ln_part1(k, X, WR, Fr, T, "s42")
    def reads(s_, stage, fs):
        b = FR[fs]
        c = [f"ds_read_b128 {v(b+4*i,4)}, v{10+s_} offset:{stage*32768+i*2048}" for i in range(8)]
        w = [[f"ds_read_b64_tr_b16 {v(b+32+4*cb+2*t,2)}, v{12+cb} offset:{stage*32768+(32*s_+4*t)*256}" for t in range(2)] for cb in range(4)]
        return [c[0]] + w[0] + w[1] + w[2] + w[3] + c[1:]
    def accreg(i, cb, vtype):
        return ACC + ((cb*8+i) if vtype else (i*4+cb))*4
    def mfmas(fs, vtype):
        b = FR[fs]; L = []
        for i in range(8):
            for cb in range(4):
                a = accreg(i, cb, vtype)
                cf, wf = v(b+4*i, 4), v(b+32+4*cb, 4)
                Aop, Bop = (cf, wf) if vtype else (wf, cf)
                L.append(f"{MF} {v(a,4)}, {Aop}, {Bop}, {v(a,4)}")
        return L
    k.e(f"s_waitcnt vmcnt({8+np1}) lgkmcnt(0)")
    st.mark()
    k.e("s_barrier")
    k.e(reads(0, 0, 0))
    ln_part2(k, 120, T)
    emit(k, A.ool(k, ["s_cmp_eq_u32 s28, 7"], "s_cbranch_scc1", ln_part3(108)))
    st.mark()
    k.e("s_mov_b32 s35, 0")
    k.e("s_cmp_eq_u32 s28, 0")
    k.e("s_cselect_b32 s43, 3, 63")
    k.e("s_cselect_b32 s44, 2, 1")
    k.e("s_cmp_lt_u32 s28, 4")
    k.e("s_cbranch_scc0 L_kv_vloop")
    for vtype in range(2):
        lp = "L_kv_vloop" if vtype else "L_kv_kloop"
        k.align(6)
        k.label(lp)
        emit(k, A.ool(k, ["s_cmp_eq_u32 s35, 3"], "s_cbranch_scc1", p1_retarget(cfg)))
        for stage in range(2):
            for s_ in range(2):
                fills = [[] for _ in range(32)]
                pre = []
                if s_ == 0:
                    k.e("s_waitcnt lgkmcnt(0)")
                    rd = reads(1, stage, 1)
                    if stage == 1 and vtype == 0:
                        fills[20] += A.ool(k, ["s_cmp_eq_u32 s35, s43"], "s_cbranch_scc1",
                                          ["global_load_dword v119, v118, s[88:89] sc1"])
                else:
                    nt = 0 if cfg.get("notouch") else 1
                    la, lb = k.newlabel("w0"), k.newlabel("w0b")
                    if stage == 1 and vtype == 0:
                        A.OOL.append([la + ":", "s_waitcnt vmcnt(0)"] + check(k, "s[88:89]", "v118", "v119", 256) + [f"s_branch {lb}"])
                        emit(k, ["s_cmp_eq_u32 s35, s43", f"s_cbranch_scc1 {la}", f"s_waitcnt vmcnt({nt})", lb + ":", "s_waitcnt lgkmcnt(0)"])
                    elif stage == 1:
                        k.e(f"s_waitcnt vmcnt({nt}) lgkmcnt(0)")
                    else:
                        A.OOL.append([la + ":"] + switch(k, "s35", [(0, [f"s_waitcnt vmcnt({2+np1})"]), (1, ["s_waitcnt vmcnt(1)"])]) + [f"s_branch {lb}"])
                        emit(k, ["s_cmp_lt_u32 s35, s44", f"s_cbranch_scc1 {la}", "s_waitcnt vmcnt(0)", lb + ":", "s_waitcnt lgkmcnt(0)"])
                    if stage == 0 and nt:
                        lt, lb = k.newlabel("tch"), k.newlabel("tchb")
                        A.OOL.append([lt + ":"] + touches(k) + [f"s_branch {lb}"])
                        fills[26] += [f"s_branch {lt}", lb + ":"]
                    k.e("s_barrier")
                    rd = reads(0, stage ^ 1, 0)
                    if stage == 1 and vtype == 0:
                        fills[30] += A.ool(k, ["s_add_u32 s36, s35, s28", "s_cmp_eq_u32 s36, 0"], "s_cbranch_scc1",
                                          signal("s[88:89]", 0, "v16", "v17"))
                for g in range(16): fills[g].append(rd[g])
                if s_ == 1:
                    mc, c, mw, w = dma_list(stage)
                    tail = ["s_add_u32 s31, s31, s40", "s_add_u32 s32, s32, s41"]
                    if stage == 0: tail += ["s_cmp_eq_u32 s35, 3", "s_cselect_b32 s8, s94, s8", "s_cselect_b32 s9, s95, s9"]
                    if vtype == 1:
                        pre = [mc, "s_nop 0"] + c + [mw, "s_nop 0"] + w + tail
                    else:
                        fills[0].append(mc)
                        for j in range(4): fills[1+3*j].append(c[j])
                        fills[12].append(mw)
                        for j in range(4): fills[13+3*j].append(w[j])
                        fills[31] += tail
                k.e(pre)
                emit(k, weave(mfmas(s_, vtype), fills))
                if s_ == 1: k.e(cfg["sth1"].hist(8, first=(vtype == 0 and stage == 0)))
        k.e("s_add_u32 s35, s35, 1")
        k.e("s_cmp_lt_u32 s35, 4")
        k.e(f"s_cbranch_scc1 {lp}")
        if vtype == 0: k.e("s_branch L_p1_done")
    k.label("L_p1_done")

def kv_pack(k):
    for q in range(16):
        a = 128 + 8*q
        for e in range(4):
            k.e(f"v_cvt_pk_bf16_f32 v{KP+4*q+e}, v{a+2*e}, v{a+2*e+1}")
    k.e("s_mov_b32 s51, 0x55555555")
    k.e("s_lshl_b32 s38, s29, 20")
    k.e("s_lshl_b32 s37, s30, 17")
    k.e("s_add_u32 s38, s38, s37")
    k.e("s_bfe_u32 s37, s28, 0x10001")
    k.e("s_lshl_b32 s37, s37, 16")
    k.e("s_add_u32 s38, s38, s37")
    k.e("s_lshr_b32 s36, s28, 2")
    k.e("s_lshl_b32 s37, s36, 15")
    k.e("s_add_u32 s38, s38, s37")
    k.e("s_and_b32 s37, s28, 1")
    k.e("s_add_u32 s36, s36, 11")
    k.e("s_lshl_b32 s37, s37, s36")
    k.e("s_add_u32 s38, s38, s37")
    k.e("s_cmp_lt_u32 s28, 4")
    k.e("s_cselect_b32 s36, 4, 32")
    k.e("s_cselect_b32 s37, 16, 64")
    k.e("s_cselect_b32 s39, 32, 4")
    k.e("s_lshl_b32 s36, s36, 8")
    k.e("s_lshl_b32 s37, s37, 8")
    k.e("s_lshl_b32 s39, s39, 8")
    k.e("s_mov_b32 s46, s38")
    for g in range(1, 4): k.e(f"s_add_u32 s{46+g}, s{45+g}, s39")
    k.e("s_cmp_eq_u32 s30, 0")
    k.e("s_cselect_b32 s50, 0xffff, s51")
    k.e("s_cselect_b32 s52, 4, 0")
    k.e("v_lshlrev_b32 v58, 4, v1")
    k.e("v_add_u32 v59, s36, v58")
    k.e("v_add_u32 v60, s37, v58")
    k.e("v_add_u32 v61, s36, v60")

def p2_setup(k):
    k.e("s_and_b32 s36, s28, 3")
    k.e("s_sub_u32 s37, 15, s30")
    k.e("s_cmp_lt_u32 s28, 4")
    k.e("s_cselect_b32 s37, s37, s30")
    k.e("s_lshl_b32 s37, s37, 2")
    k.e("s_add_u32 s37, s37, s36")
    k.e("s_lshl_b32 s37, s37, 16")
    k.e("v_lshl_add_u32 v6, v1, 4, s37")
    k.e("v_add_u32 v7, 32768, v6")
    k.e("s_mov_b32 s32, 0")

def p2_setup2(k):
    k.e("v_lshrrev_b32 v18, 4, v1")
    k.e("v_bfe_u32 v20, v1, 2, 2")
    k.e("v_lshl_add_u32 v19, v18, 3, v20")
    k.e("v_lshlrev_b32 v19, 8, v19")
    k.e("v_and_b32 v21, 3, v1")
    k.e("v_lshl_add_u32 v19, v21, 3, v19")
    k.e("v_and_b32 v21, 1, v18")
    k.e("v_lshl_add_u32 v20, v21, 2, v20")
    for db in range(8):
        k.e(f"v_xor_b32 v21, {db}, v20")
        k.e(f"v_lshl_add_u32 v{10+db}, v21, 5, v19")
    k.e("s_lshl_b32 s45, s29, 20")

def p2_pieces(k, cfg, evA, evB):
    def wdma(stage):
        return [f"s_add_u32 m0, s33, {stage*32768}"], [VM(f"buffer_load_dwordx4 v{2+j}, s[4:7], s31 offen offset:{j*1024}{SC} lds", ("W", stage)) for j in range(4)]
    def xld(xs, s_):
        return [VM(f"buffer_load_dwordx4 {v(XF[xs]+(s_*2+rb)*4,4)}, v{6+rb}, s[8:11], s32 offen offset:{s_*1024}{SC}", ("x", xs, s_)) for rb in range(2)]
    def wrd(stage, s_, db):
        return [DS(f"ds_read_b64_tr_b16 {v(WF+4*db+2*t,2)}, v{10+db} offset:{stage*32768+(32*s_+4*t)*256}", ("w", db)) for t in range(2)]
    def store(q):
        fl = SC if cfg.get("kvfl") is None else " " + cfg["kvfl"].replace("_", " ")
        return [VM(f"buffer_store_dwordx4 {v(KP+4*q,4)}, v{58+(q&3)}, s[12:15], s{46+(q>>2)} offen{fl}", "kvst")]
    prox = []
    for t in range(2):
        for s_ in range(4 if t == 0 else 3): prox += xld(t, s_)
        if t == 0: prox += ["s_add_u32 s32, s32, 4096"]
    D = 6
    pro2 = [wrd(0, 0, db) for db in range(D)]
    halves = []
    for stage in range(2):
        M, fills, pre = [], [[] for _ in range(64)], {}
        for s_ in range(4):
            for db in range(8):
                for rb in range(2):
                    o = A.Oreg(rb, db)
                    M.append(f"{MF} {v(o,4)}, {v(WF+4*db,4)}, {v(XF[stage]+(s_*2+rb)*4,4)}, {v(o,4)}")
        for p in range(32):
            if p % 2 == 0: pre[2*p] = [Need("ds", [("w", p % 8), ("w", (p+1) % 8)])]
            if p % 8 == 0: pre[2*p] += [Need("vm", [("x", stage, p // 8)])]
            f = p + D
            if f < 32:
                r = wrd(stage, f // 8, f % 8)
                fills[2*p] += [r[0]]; fills[2*p+1] += [r[1]]
        pre[0] = [evB[stage]] + pre[0]
        fills[2*27+1] += [evA[stage], "s_waitcnt lgkmcnt(0)", Need("vm", [("W", stage ^ 1)]), "s_barrier"]
        nx = {28: [0, 1], 29: [2, 3], 30: [4], 31: [5]}
        for p, fl in nx.items():
            for i, f in enumerate(fl):
                fills[2*p+i] += wrd(stage ^ 1, 0, f)
        for s_ in range(4):
            xl = xld(stage ^ 1, 3) if s_ == 0 else xld(stage, s_-1)
            fills[16*s_+2] += [xl[0]]; fills[16*s_+6] += [xl[1]]
            if s_ == 0:
                fills[7] += ["s_add_u32 s32, s32, 4096"]
                if stage == 0:
                    fills[8] += ["s_cmp_lt_u32 s35, 3", "s_cselect_b32 s10, 4194304, 0"]
            cases = {4+i: store(8*i + 4*stage + s_) for i in range(2)}
            if s_ % 2 == 0: cases.update({i: store(4*i + 2*stage + s_//2) for i in range(4)})
            order = sorted(cases)
            if not cfg.get("nokvst"):
                spos = [int(x) for x in cfg.get("spos", "9,27,13,31").split(",")]
                fills[spos[s_]] += [Alt(A.ool(k, [f"s_bitcmp1_b32 s50, {4*stage+s_}"], "s_cbranch_scc1",
                                        ["s_add_u32 s36, s35, s52"] + switch(k, "s36", [(c, cases[c]) for c in order])),
                                    lambda c, cases=cases: cases.get(c["it"] + 4*c["fast"]))]
        m, d = wdma(stage)
        fills[2*29+1] += m
        fills[60] += [d[0]]; fills[61] += [d[1]]; fills[62] += [d[2]]; fills[63] += [d[3], "s_add_u32 s31, s31, s40"]
        halves.append(weave(M, fills, pre))
    return prox, pro2, halves

def p2_events(k, cfg):
    FF = ([f"s_cmp_lt_u32 s2, {0 if cfg.get('noffn') else 224}"], "s_cbranch_scc0")
    W0 = (["s_cmp_eq_u32 s28, 0"], "s_cbranch_scc0")
    def E1():
        return [f"s_mov_b32 s36, {F.WS_KEY}"] + [VM(f"buffer_load_dwordx4 {v(128+4*i,4)}, v58, s[24:27], s36 offen offset:{i*1024}{SC}", "keys") for i in range(2)]
    def E2():
        L = [Need("vm", ["keys"])] + lines(F.top2, 128, 18, 8)
        L += ["v_and_b32 v18, 1, v1", "v_mov_b32 v19, s56", "v_mov_b32 v20, s57", "v_cmp_eq_u32 vcc, 1, v18", "s_nop 1",
              "v_cndmask_b32 v19, v19, v20, vcc", "v_lshrrev_b32 v20, 4, v19", "v_lshlrev_b32 v20, 15, v20", "v_and_b32 v19, 15, v19",
              "v_lshl_add_u32 v20, v19, 4, v20", "v_lshrrev_b32 v21, 4, v1", "v_lshl_add_u32 v20, v21, 8, v20",
              "s_and_b32 s36, s2, 3", "s_lshl_b32 s36, s36, 13", "s_add_u32 s37, s36, 4096",
              "s_mov_b32 exec_lo, 0x00030003", "s_mov_b32 exec_hi, 0x00030003"]
        L += [VM(f"buffer_load_dwordx4 {v(128+4*s_,4)}, v20, s[24:27], s{36+s_//4} offen offset:{(s_%4)*1024}{SC}", "xsel") for s_ in range(8)]
        return L + ["s_mov_b64 exec, -1", "s_nop 3"]
    def E3():
        e3 = lines(F.wrd_addr, "v22", "v23", "v62")
        e3 += ["s_and_b32 s36, s28, 3", "v_xor_b32 v23, s36, v23", "v_lshl_add_u32 v63, v23, 5, v22",
               "s_lshr_b32 s36, s28, 2", "s_lshl_b32 s36, s36, 15", "s_add_u32 s36, s36, 65536", "v_add_u32 v63, s36, v63"]
        rdw = lambda h: [f"ds_read_b64_tr_b16 {v(160+4*s_+2*t,2)}, v63 offset:{(32*(4*h+s_)+4*t)*128}" for s_ in range(4) for t in range(2)]
        e3 += rdw(0)
        e3 += ["s_and_b32 s36, s2, 3", "s_lshl_b32 s36, s36, 1", "s_lshr_b32 s37, s28, 2", "s_add_u32 s36, s36, s37",
               f"s_mul_i32 s36, s36, {2*14336}", "s_lshr_b32 s37, s2, 2", "s_lshl_b32 s37, s37, 8", "s_add_u32 s36, s36, s37",
               "s_and_b32 s37, s28, 3", "s_lshl_b32 s37, s37, 6", "s_add_u32 s36, s36, s37", f"s_add_u32 s36, s36, {WS_PRE}",
               "v_mul_u32_u24 v62, 14336, v18", "v_lshl_add_u32 v62, v21, 4, v62",
               "s_waitcnt lgkmcnt(0)", Need("vm", ["xsel"])]
        e3 += [f"{MF} v[20:23], {v(160+4*s_,4)}, {v(128+4*s_,4)}, {'v[20:23]' if s_ else '0'}" for s_ in range(4)]
        e3 += rdw(1) + ["s_waitcnt lgkmcnt(0)"]
        e3 += [f"{MF} v[20:23], {v(160+4*s_,4)}, {v(144+4*s_,4)}, v[20:23]" for s_ in range(4)]
        e3 += ["s_nop 5", "s_mov_b32 exec_lo, 0x00030003", "s_mov_b32 exec_hi, 0x00030003",
               VM(f"buffer_store_dwordx4 v[20:23], v62, s[24:27], s36 offen{SC}"), "s_mov_b64 exec, -1", "s_nop 3"]
        rt = ["s_mov_b64 s[4:5], s[12:13]", "s_mov_b32 s6, s14", "s_mov_b32 s31, s45", "s_mov_b32 s40, 65536",
              "v_add_u32 v2, s33, v58", "v_mov_b32 v3, v2", "v_mov_b32 v4, v2", "v_mov_b32 v5, v2"]
        return [guard(k, *FF, e3, "ffn")] + rt
    def V0():
        return ["s_add_u32 m0, s33, 65536", "s_add_u32 s36, s45, 32768"] + \
               [VM(f"buffer_load_dwordx4 v2, s[12:15], s36 offen offset:{j*1024}{SC} lds", "v0") for j in range(4)]
    off0 = [f"s_add_u32 s36, s29, {CNT_KV0}", "s_lshl_b32 s36, s36, 7"]
    sig0 = guard(k, ["s_add_u32 s36, s28, s30", "s_cmp_eq_u32 s36, 4"], "s_cbranch_scc0", off0 + signal("s[90:91]", "s36", "v62", "v63"), "fast")
    pol0 = guard(k, *W0, off0 + [f"v_mov_b32 {vZ}, s36", VM(f"global_load_dword {vPOLL}, {vZ}, s[90:91] sc1", "poll")], "w0")
    chk0 = guard(k, *W0, [Need("vm", ["poll"])] + check(k, "s[90:91]", vZ, vPOLL, 1), "w0")
    evs = {"A": {(2, 0): E1(), (2, 1): E2() + [pol0], (3, 0): E3() + [chk0]},
           "B": {(2, 0): E1(), (2, 1): [sig0] + E2(), (3, 0): E3()}}
    v0 = V0()
    out = {}
    for g, cmp_ in (("A", "s_cmp_lt_u32 s28, 4"), ("B", "s_cmp_ge_u32 s28, 4")):
        out[g] = []
        for stage in range(2):
            cs = [(it, evs[g][(it, st_)]) for (it, st_) in sorted(evs[g]) if st_ == stage]
            inner = []
            if g == "B" and stage == 1:
                l = k.newlabel("nv0")
                inner += ["s_cmp_eq_u32 s35, 3", f"s_cbranch_scc0 {l}"] + v0 + [l + ":"]
                cs = cs + [(3, [])]
            elif stage == 1: cs = cs + [(3, [])]
            l = k.newlabel("ng")
            inner += [cmp_, f"s_cbranch_scc0 {l}"] + switch(k, "s35", cs) + [l + ":"]
            def pick(c, g=g, stage=stage):
                r = []
                if g == "B" and stage == 1 and c["it"] == 3: r += v0
                if c["grp"] == g: r += evs[g].get((c["it"], stage), [])
                return r
            out[g].append(Alt(A.ool(k, ["s_cmp_ge_u32 s35, 2"], "s_cbranch_scc1", inner), pick))
    return out["A"], out["B"]

def p2(k, cfg, st):
    evA, evB = p2_events(k, cfg)
    prox, pro2, halves = p2_pieces(k, cfg, evA, evB)
    body = [halves[0], cfg["sth2"].hist(8), halves[1], cfg["sth2"].hist(8, first=False)]
    nq = Need("vm", [("W", 0), "v0", "kvst", "xsel"] + [("x", a, b) for a in range(2) for b in range(4)])
    n0 = Need("vm", [("x", 0, 3)])
    scen = []
    for grp, w0 in (("A", 0), ("A", 1), ("B", 0)):
        for ffn in (0, 1):
            for fast in (0, 1):
                sq = [VM("", ("W", 1))]*4 + [VM("", None)]*4 + flat([prox, pro2, n0])
                for it in range(4): sq += flat(body, dict(it=it, w0=w0, ffn=ffn, fast=fast, grp=grp))
                scen.append(sq + [nq])
    resolve(scen)
    cfg["qwait"] = nq.n
    st.mark()
    k.e("s_waitcnt vmcnt(8) lgkmcnt(0)")
    p2_setup(k)
    srd(k, 8, 54, 4194304)
    emit(k, prox)
    p2_setup2(k)
    emit(k, pro2)
    kv_pack(k)
    for r in range(64): k.e(f"v_mov_b32 v{A.O_+r}, 0")
    k.e("s_mov_b32 s35, 0")
    emit(k, [n0])
    st.mark()
    k.align(6)
    k.label("L_p2_loop")
    emit(k, body)
    k.e("s_lshr_b32 s50, s50, 8")
    k.e("s_add_u32 s35, s35, 1")
    k.e("s_cmp_lt_u32 s35, 4")
    k.e("s_cbranch_scc1 L_p2_loop")
    st.mark()
```

```python
from common import *
import attn as A
import ffn as F
import oproj as O
from fused_a import *

X32, G = 192, 208
PRE, FW, HH, DD = 96, 64, 124, 80
LDS_P4 = 65536

def after_q(k, grp):
    srd(k, 16, 54, 16777216, WS_CTX)
    srd(k, 4, 94, 7340032)
    srd(k, 8, 92, 8388608)
    if grp == 0:
        k.e("s_cmp_eq_u32 s28, 0")
        k.e("s_cselect_b32 s42, 1, 63")
    else:
        sig = ["s_lshl_b32 s36, s29, 7", "v_mov_b32 v20, s36", "s_mul_i32 s36, s2, 2341", "s_lshr_b32 s36, s36, 16",
               f"s_add_u32 s36, s36, {CNT_F1}", "s_lshl_b32 s36, s36, 7", "v_mov_b32 v21, s36",
               "v_cmp_eq_u32 vcc, 1, v1", "v_mov_b32 v22, 1", "s_nop 0",
               "v_cndmask_b32 v20, v20, v21, vcc", "s_mov_b64 exec, 3", "global_atomic_add v20, v22, s[90:91]", "s_mov_b64 exec, -1"]
        emit(k, A.ool(k, ["s_cmp_eq_u32 s28, 4"], "s_cbranch_scc1", sig))

def pro_wait(k, grp):
    if grp == 0: return ["s_waitcnt vmcnt(0)"]
    l = k.newlabel("pw")
    return ["s_waitcnt vmcnt(1)", "s_cmp_eq_u32 s28, 4", f"s_cbranch_scc1 {l}", "s_waitcnt vmcnt(0)", l + ":"]

def pro_hook(k, grp):
    t = [x.replace("v16", "v26").replace("v17", "v27").replace("v18", "v28").replace("v19", "v29").replace("v[16:17]", "v[26:27]") for x in touches(k, True)]
    if grp == 0:
        return t + A.ool(k, ["s_cmp_eq_u32 s28, 0"], "s_cbranch_scc1",
                     ["s_lshl_b32 s36, s29, 7", "v_mov_b32 v13, s36", "global_load_dword v14, v13, s[90:91] sc1"])
    return t

def bar_hook(k, grp):
    if grp == 1: return []
    return A.ool(k, ["s_cmp_eq_u32 s40, s42"], "s_cbranch_scc1", check(k, "s[90:91]", "v13", "v14", 8))

def before_tail(k, grp):
    k.e("s_lshr_b32 s38, s2, 4")
    k.e("s_mul_i32 s38, s38, 224")
    k.e("s_and_b32 s39, s2, 15")
    k.e("s_lshl_b32 s39, s39, 7")
    F.wdma_addr(k, 26, "s38", 2048, "s39")
    k.e("s_lshl_b32 s36, s28, 12")
    k.e(f"s_add_u32 s36, s36, {LDS_X}")
    k.e("s_cmp_lt_u32 s28, 7")
    k.e("s_cselect_b32 m0, s36, 0x30000")
    k.e("s_cselect_b32 s6, 7340032, 0")
    for j in range(4): k.e(f"buffer_load_dwordx4 v{26+j}, s[4:7], 0 offen offset:{j*1024} lds")
    k.e("s_lshr_b32 s36, s2, 5")
    k.e(f"s_add_u32 s36, s36, {CNT_F1}")
    k.e("s_lshl_b32 s36, s36, 7")
    k.e("v_mov_b32 v12, s36")
    k.e("global_load_dword v11, v12, s[90:91] sc1")

def gcalc(k, withy):
    XI, YA = O.XI, O.YA
    for cb in range(4):
        for h in range(2):
            a, b = X32+4*cb+2*h, X32+4*cb+2*h+1
            ga, gb = G+4*cb+2*h, G+4*cb+2*h+1
            k.e(f"v_lshlrev_b32 v{a}, 16, v{XI+2*cb+h}")
            k.e(f"v_and_b32 v{b}, 0xffff0000, v{XI+2*cb+h}")
            k.e(f"v_sub_f32 v{ga}, v{a}, v{XI+8}")
            k.e(f"v_sub_f32 v{gb}, v{b}, v{XI+8}")
            def rnd2():
                k.e(f"v_cvt_pk_bf16_f32 v23, v{ga}, v{gb}")
                k.e(f"v_lshlrev_b32 v{ga}, 16, v23")
                k.e(f"v_and_b32 v{gb}, 0xffff0000, v23")
            rnd2()
            k.e(f"v_mul_f32 v{ga}, v{ga}, v{XI+9}")
            k.e(f"v_mul_f32 v{gb}, v{gb}, v{XI+9}")
            rnd2()
            if withy:
                k.e(f"v_add_f32 v{ga}, v{ga}, v{YA+4*cb+2*h}")
                k.e(f"v_add_f32 v{gb}, v{gb}, v{YA+4*cb+2*h+1}")
                rnd2()
            k.e(f"v_mul_f32 v24, 0xbfb8aa3b, v{ga}")
            k.e(f"v_mul_f32 v25, 0xbfb8aa3b, v{gb}")
            k.e("v_exp_f32 v24, v24")
            k.e("v_exp_f32 v25, v25")
            k.e("s_nop 0")
            k.e("v_add_f32 v24, 1.0, v24")
            k.e("v_add_f32 v25, 1.0, v25")
            k.e("v_rcp_f32 v24, v24")
            k.e("v_rcp_f32 v25, v25")
            k.e("s_nop 0")
            k.e(f"v_mul_f32 v{ga}, v{ga}, v24")
            k.e(f"v_mul_f32 v{gb}, v{gb}, v25")
            rnd2()

def ffn2_math(k):
    F.wrd_addr(k, "v26", "v27", "v28")
    k.e("s_lshl_b32 s36, s28, 12")
    k.e(f"s_add_u32 s36, s36, {LDS_X}")
    k.e("v_add_u32 v26, s36, v26")
    for cb in range(4):
        k.e(f"v_xor_b32 v28, {cb}, v27")
        k.e("v_lshl_add_u32 v28, v28, 5, v26")
        for t in range(2):
            k.e(f"ds_read_b64_tr_b16 {v(FW+4*cb+2*t,2)}, v28 offset:{4*t*128}")
    for m in ("row_ror:4", "row_ror:8"):
        for e in range(8): k.e(f"v_add_f32_dpp v{PRE+e}, v{PRE+e}, v{PRE+e} {m} row_mask:0xf bank_mask:0xf")
    for e in range(0, 8, 2):
        k.e(f"v_cvt_pk_bf16_f32 v29, v{PRE+e}, v{PRE+e+1}")
        k.e(f"v_lshlrev_b32 v{PRE+e}, 16, v29")
        k.e(f"v_and_b32 v{PRE+e+1}, 0xffff0000, v29")
    for e in range(8): k.e(f"v_mul_f32 v{PRE+8+e}, 0xbfb8aa3b, v{PRE+e}")
    for e in range(8): k.e(f"v_exp_f32 v{PRE+8+e}, v{PRE+8+e}")
    for e in range(8): k.e(f"v_add_f32 v{PRE+8+e}, 1.0, v{PRE+8+e}")
    for e in range(8): k.e(f"v_rcp_f32 v{PRE+8+e}, v{PRE+8+e}")
    for e in range(8): k.e(f"v_mul_f32 v{PRE+8+e}, v{PRE+e}, v{PRE+8+e}")
    for e in range(0, 8, 2):
        k.e(f"v_cvt_pk_bf16_f32 v29, v{PRE+8+e}, v{PRE+8+e+1}")
        k.e(f"v_lshlrev_b32 v{PRE+8+e}, 16, v29")
        k.e(f"v_and_b32 v{PRE+8+e+1}, 0xffff0000, v29")
    for e in range(8): k.e(f"v_mul_f32_dpp v{PRE+e}, v{PRE+e}, v{PRE+8+e} quad_perm:[2,3,0,1] row_mask:0xf bank_mask:0xf")
    for q in range(4): k.e(f"v_cvt_pk_bf16_f32 v{HH+q}, v{PRE+2*q}, v{PRE+2*q+1}")
    k.e("s_waitcnt lgkmcnt(0)")
    k.e("v_lshl_add_u32 v28, v1, 4, s36")
    for cb in range(4): k.e(f"{MF} {v(DD+4*cb,4)}, {v(FW+4*cb,4)}, {v(HH,4)}, 0")
    k.e("s_nop 7")
    for cb in range(4): k.e(f"ds_write_b128 v28, {v(DD+4*cb,4)} offset:{cb*1024}")

def ffn2_reduce():
    L = ["s_lshl_b32 s36, s28, 10", f"s_add_u32 s36, s36, {LDS_X}", "v_lshl_add_u32 v28, v1, 4, s36"]
    L += [f"ds_read_b128 {v(PRE+4*w,4)}, v28 offset:{w*4096}" for w in range(7)]
    L += ["s_lshr_b32 s36, s2, 4", "s_lshl_b32 s36, s36, 13", "s_and_b32 s37, s2, 15", "s_lshl_b32 s37, s37, 8", "s_add_u32 s36, s36, s37",
          "s_lshl_b32 s37, s28, 6", "s_add_u32 s36, s36, s37", f"s_add_u32 s36, s36, {WS_YP}",
          "v_and_b32 v28, 1, v1", "v_lshlrev_b32 v28, 12, v28", "v_lshl_add_u32 v28, v19, 4, v28", "s_waitcnt lgkmcnt(0)"]
    for w in range(1, 7):
        L += [f"v_add_f32 v{DD+e if w == 6 else PRE+e}, v{PRE+e}, v{PRE+4*w+e}" for e in range(4)]
    L += ["s_mov_b32 exec_lo, 0x00030003", "s_mov_b32 exec_hi, 0x00030003",
          VM(f"buffer_store_dwordx4 {v(DD,4)}, v28, s[24:27], s36 offen{SC}", "yp"), "s_mov_b64 exec, -1"]
    return L

def p4_pieces(k, cfg):
    WFR, XFR, Areg = O.WFR, O.XFR, O.Areg
    def wdma(stage):
        return [f"s_add_u32 m0, s34, {stage*32768}"], [VM(f"buffer_load_dwordx4 v{6+j}, s[8:11], s32 offen offset:{j*1024} lds", ("W", stage)) for j in range(4)]
    def xld(xs, s_):
        return [VM(f"buffer_load_dwordx4 {v(XFR[xs]+(s_*2+rb)*4,4)}, v{2+rb}, s[4:7], s31 offen offset:{s_*1024}{SC}", ("x", xs, s_)) for rb in range(2)]
    def wrd(stage, s_, fs):
        return [DS(f"ds_read_b64_tr_b16 {v(WFR[fs]+4*cb+2*t,2)}, v{10+cb} offset:{stage*32768+(32*s_+16*t)*128}", ("w", fs)) for cb in range(4) for t in range(2)]
    def mf(fs, xs, s_):
        return [f"{MF} {v(Areg(rb,cb),4)}, {v(WFR[fs]+4*cb,4)}, {v(XFR[xs]+(s_*2+rb)*4,4)}, {v(Areg(rb,cb),4)}" for cb in range(4) for rb in range(2)]
    prow = [f"s_add_u32 s33, s33, {LDS_P4}", "s_mov_b32 s34, s33"]
    for t in range(2):
        m, d = wdma(t)
        prow += m + ["s_nop 0"] + d + [f"s_add_u32 s32, s32, {256*2048}"]
    prox = []
    for t in range(2):
        for s_ in range(4 if t == 0 else 3): prox += xld(t, s_)
        if t == 0: prox += ["s_add_u32 s31, s31, 8192"]
    pro2 = wrd(0, 0, 0) + ["s_mov_b32 s35, 0"]
    body = []
    for stage in range(2):
        for s_ in range(4):
            fills = [[] for _ in range(8)]
            if s_ < 3:
                body += [Need("ds", [("w", s_ & 1)])]
                rd = wrd(stage, s_+1, (s_+1) & 1)
            else:
                body += [Need("ds", [("w", 1)]), Need("vm", [("W", stage ^ 1)]), "s_barrier"]
                rd = wrd(stage ^ 1, 0, 0)
            body += [Need("vm", [("x", stage, s_)])]
            for g in range(4): fills[g] += rd[2*g:2*g+2]
            if s_ == 0:
                xl = xld(stage ^ 1, 3)
                fills[4] += [xl[0]]; fills[5] += [xl[1], "s_add_u32 s31, s31, 8192"]
                if stage == 0:
                    fills[6] += ["s_cmp_lt_u32 s35, 7", "s_cselect_b32 s6, 16777216, 0", "s_cselect_b32 s10, 8388608, 0", "s_cselect_b32 s34, s33, 0x30000"]
            else:
                xl = xld(stage, s_-1)
                fills[4] += [xl[0]]; fills[5] += [xl[1]]
            if s_ == 3:
                m, d = wdma(stage)
                fills[3] += m
                fills[4] = d[:2] + fills[4]; fills[5] = d[2:] + fills[5]
                fills[7] += [f"s_add_u32 s32, s32, {256*2048}"]
            body += weave(mf(s_ & 1, stage, s_), fills)
    return prow, prox, pro2, body

def routed(k):
    YA = O.YA
    for r in range(16): k.e(f"v_mov_b32 v{YA+r}, 0")
    k.e(f"s_add_u32 s36, s30, {CNT_F2}")
    k.e("s_lshl_b32 s36, s36, 7")
    k.e("v_mov_b32 v22, s36")
    emit(k, spin(k, "s[90:91]", "v22", "v23", 16, 1))
    for t in range(2):
        lsk = k.newlabel("noy")
        k.e(f"s_sub_u32 s36, s{56+t}, s38")
        k.e("s_cmp_lt_u32 s36, 16")
        k.e(f"s_cbranch_scc0 {lsk}")
        k.e("s_lshl_b32 s37, s30, 8")
        k.e(f"s_add_u32 s37, s37, {WS_YP + t*4096}")
        k.e("v_and_b32 v22, 15, v1")
        k.e("v_lshlrev_b32 v22, 13, v22")
        k.e("v_lshl_add_u32 v22, v19, 4, v22")
        for cb in range(4):
            k.e(f"buffer_load_dwordx4 {v(64+4*cb,4)}, v22, s[24:27], s37 offen offset:{cb*64}{SC}")
        k.e(f"s_and_b32 s36, s{58+t}, 0xffff0000")
        k.e("s_cmp_lt_i32 s36, 0")
        k.e("s_cselect_b32 s37, 0x80000000, -1")
        k.e("s_xor_b32 s36, s36, s37")
        k.e("s_and_b32 s36, s36, 0xffff0000")
        k.e("v_mov_b32 v24, s36")
        k.e("v_mul_f32 v24, 0xbfb8aa3b, v24")
        k.e("v_exp_f32 v24, v24")
        k.e("s_nop 0")
        k.e("v_add_f32 v24, 1.0, v24")
        k.e("v_rcp_f32 v24, v24")
        k.e("s_nop 0")
        rbf(k, "v24")
        k.e("s_waitcnt vmcnt(0)")
        for m in ["quad_perm:[1,0,3,2]", "quad_perm:[2,3,0,1]", "row_half_mirror", "row_mirror"]:
            for r in range(16):
                k.e(f"v_add_f32_dpp v{64+r}, v{64+r}, v{64+r} {m} row_mask:0xf bank_mask:0xf")
        k.e(f"v_cmp_eq_u32 vcc, s{56+t}, v14")
        for r in range(16):
            rbf(k, f"v{64+r}")
            k.e(f"v_mul_f32 v{64+r}, v24, v{64+r}")
            rbf(k, f"v{64+r}")
            k.e(f"v_cndmask_b32 v{YA+r}, v{YA+r}, v{64+r}, vcc")
        k.label(lsk)
    gcalc(k, True)

def p4_epilogue(k, cfg, kh):
    Areg = O.Areg
    o = 1 - kh
    for cb in range(4): k.e(f"ds_write_b128 v20, {v(Areg(o,cb),4)} offset:{cb*1024}")
    k.e("s_waitcnt lgkmcnt(0)")
    k.e("s_barrier")
    for cb in range(4): k.e(f"ds_read_b128 {v(64+4*cb,4)}, v21 offset:{cb*1024}")
    for cb in range(4):
        k.e(f"s_waitcnt lgkmcnt({3-cb})")
        for h in range(2):
            a, b = Areg(kh, cb)+2*h, Areg(kh, cb)+2*h+1
            k.e(f"v_add_f32 v{a}, v{a}, v{64+4*cb+2*h}")
            k.e(f"v_add_f32 v{b}, v{b}, v{64+4*cb+2*h+1}")
            def rnd2():
                k.e(f"v_cvt_pk_bf16_f32 v23, v{a}, v{b}")
                k.e(f"v_lshlrev_b32 v{a}, 16, v23")
                k.e(f"v_and_b32 v{b}, 0xffff0000, v23")
            rnd2()
            k.e(f"v_mul_f32 v{a}, v{a}, v{G+4*cb+2*h}")
            k.e(f"v_mul_f32 v{b}, v{b}, v{G+4*cb+2*h+1}")
            rnd2()
            k.e(f"v_add_f32 v{a}, v{a}, v{X32+4*cb+2*h}")
            k.e(f"v_add_f32 v{b}, v{b}, v{X32+4*cb+2*h+1}")
            k.e(f"v_cvt_pk_bf16_f32 v{80+2*cb+h}, v{a}, v{b}")
        k.e(f"buffer_store_dwordx2 {v(80+2*cb,2)}, v15, s[20:23], 0 offen offset:{cb*32}")

def p4(k, cfg, st):
    prow, prox, pro2, body = p4_pieces(k, cfg)
    kx = K("tmp"); xl = O.p4_xloads(kx)
    xl[-1].text += SC
    prel = ["s_lshr_b32 s36, s2, 4", "s_mul_i32 s36, s36, 224", "s_min_u32 s37, s28, 6", "s_lshl_b32 s37, s37, 5", "s_add_u32 s36, s36, s37",
            "s_lshl_b32 s36, s36, 2", f"s_add_u32 s36, s36, {WS_PRE}", "v_and_b32 v26, 15, v1", "v_mul_u32_u24 v26, 14336, v26",
            "v_lshl_add_u32 v26, v19, 5, v26"]
    prel += [VM(f"buffer_load_dwordx4 {v(PRE+4*h,4)}, v26, s[24:27], s36 offen offset:{16*h}{SC}", "pre") for h in range(2)]
    n_ctx = Need("vm", ["ctxst"]); n_pre = Need("vm", ["pre"]); n_xi = Need("vm", ["xi"])
    sig = ["v_mov_b32 v26, s40", "v_mov_b32 v27, s41", "v_cmp_eq_u32 vcc, 1, v1", "v_mov_b32 v28, 1", "s_nop 0",
           "v_cndmask_b32 v26, v26, v27, vcc", "s_mov_b64 exec, 3", "global_atomic_add v26, v28, s[90:91]", "s_mov_b64 exec, -1"]
    sigA = Alt(A.ool(k, ["s_cmp_eq_u32 s28, 0"], "s_cbranch_scc1", sig), lambda c: sig if c["w0"] else [])
    red = ffn2_reduce()
    redA = guard(k, ["s_cmp_lt_u32 s28, 4"], "s_cbranch_scc0", red, "lo")
    f2 = ["s_and_b32 s36, s2, 15", f"s_add_u32 s36, s36, {CNT_F2}", "s_lshl_b32 s36, s36, 7"] + signal("s[90:91]", "s36", "v26", "v27")
    f2A = Alt(A.ool(k, ["s_lshl_b32 s36, s28, 3", "s_add_u32 s36, s36, s35", "s_cmp_eq_u32 s36, 1"], "s_cbranch_scc1", f2),
              lambda c: f2 if c["w0"] and c["it"] == 1 else [])
    n_w0 = Need("vm", [("W", 0)])
    scen = []
    for w0, lo in ((1, 1), (0, 1), (0, 0)):
        c = dict(w0=w0, lo=lo, it=0)
        sq = flat([VM("", "ctxst"), prel, n_ctx, sigA, prow, xl, n_pre, n_w0, prox, redA, n_xi, pro2], c)
        for it in range(3): sq += flat([f2A, body], dict(c, it=it))
        scen.append(sq)
    resolve(scen)
    k.e(f"s_sub_u32 s40, {15+CNT_CTX}, s30")
    k.e("s_lshl_b32 s40, s40, 7")
    k.e(f"s_add_u32 s41, s30, {CNT_CTX}")
    k.e("s_lshl_b32 s41, s41, 7")
    k.e("v_mov_b32 v30, v11")
    k.e("v_mov_b32 v31, v12")
    O.p4_setup(k)
    emit(k, check(k, "s[90:91]", "v31", "v30", 28))
    emit(k, prel)
    srd(k, 4, 54, 16777216, WS_CTX)
    srd(k, 16, 96, 4194304)
    srd(k, 20, 98, 4194304)
    k.lines += kx.lines
    O.p4_setup2(k)
    for cb in range(4): k.e(f"v_add_u32 v{10+cb}, {LDS_P4}, v{10+cb}")
    emit(k, [n_ctx, "s_barrier", sigA])
    st.mark()
    emit(k, prow)
    emit(k, xl)
    l7, lj = k.newlabel("w7"), k.newlabel("w7j")
    k.e("s_cmp_eq_u32 s28, 7")
    k.e(f"s_cbranch_scc1 {l7}")
    emit(k, [n_pre])
    ffn2_math(k)
    k.e(f"s_branch {lj}")
    k.label(l7)
    k.e(f"s_add_u32 s36, s29, {CNT_CTX}")
    k.e("s_lshl_b32 s36, s36, 7")
    k.e("v_mov_b32 v30, s36")
    emit(k, spin(k, "s[90:91]", "v30", "v31", 32, int(cfg.get("slp", 8))))
    k.label(lj)
    emit(k, [n_w0])
    k.e("s_waitcnt lgkmcnt(0)")
    st.mark()
    k.e("s_barrier")
    st.mark()
    emit(k, prox)
    emit(k, [redA, n_xi])
    gcalc(k, False)
    k.e("s_lshl_b32 s36, s28, 12")
    k.e("v_lshl_add_u32 v20, v1, 4, s36")
    k.e("v_xor_b32 v21, 16384, v20")
    emit(k, pro2)
    st.mark()
    k.align(6)
    k.label("L_p4_loop")
    emit(k, [f2A, body])
    k.e("s_add_u32 s35, s35, 1")
    k.e("s_cmp_lt_u32 s35, 8")
    k.e("s_cbranch_scc1 L_p4_loop")
    st.mark()
    k.e("s_waitcnt vmcnt(0) lgkmcnt(0)")
    kr = K(k.name + "_rt"); routed(kr)
    emit(k, A.ool(k, ["s_sub_u32 s36, s56, s38", "s_sub_u32 s37, s57, s38", "s_min_u32 s36, s36, s37", "s_cmp_lt_u32 s36, 16"],
                  "s_cbranch_scc1", [x.strip() for x in kr.lines]))
    k.e("s_cmp_lt_u32 s28, 4")
    k.e("s_cbranch_scc0 L_p4_e1")
    p4_epilogue(k, cfg, 0)
    k.e("s_branch L_p4_done")
    k.label("L_p4_e1")
    p4_epilogue(k, cfg, 1)
    k.label("L_p4_done")

def gen_fused(cfg, name):
    cfg = dict(cfg, stflag=SC, pro_hook=pro_hook, pro_wait=pro_wait, bar_hook=bar_hook)
    k = K(name)
    k.e("s_cmp_ge_u32 s2, 256")
    k.e("s_cbranch_scc1 L_end")
    stq = cfg.get("stamp", "")
    st = Stamps(k, bool(stq), kid=0)
    off = Stamps(k, False)
    st.mark()
    cfg["sth1"] = st if "a" in stq else off
    cfg["sth2"] = st if "b" in stq else off
    p1(k, cfg, st if "1" in stq else off)
    if "b" in stq: st.mark()
    p2(k, cfg, st if "2" in stq else off)
    k.e("s_load_dwordx2 s[92:93], s[0:1], 40")
    k.e("s_load_dwordx2 s[94:95], s[0:1], 80")
    k.e("s_load_dwordx2 s[96:97], s[0:1], 0")
    k.e("s_load_dwordx2 s[98:99], s[0:1], 88")
    s3 = st if "3" in stq else off
    k.e("s_cmp_lt_u32 s28, 4")
    k.e("s_cbranch_scc0 L_grp1")
    A.gen_p3(k, cfg, 0, s3, after_q, before_tail)
    k.e("s_branch L_p3_done")
    A.flush_ool(k)
    k.label("L_grp1")
    A.gen_p3(k, cfg, 1, s3, after_q, before_tail)
    k.e("s_branch L_p3_done")
    A.flush_ool(k)
    k.label("L_p3_done")
    st.mark()
    k.e("s_waitcnt vmcnt(4)")
    p4(k, cfg, st if "4" in stq else off)
    st.dump(54, "s28")
    k.e("s_endpgm")
    A.flush_ool(k)
    k.label("L_end")
    return wrap(k, 256)
```

```python
import re, sys

class K:
    def __init__(self, name):
        self.name = name
        self.lines = []
        self.nl = 0
    def e(self, s):
        if isinstance(s, (list, tuple)):
            for x in s: self.e(x)
            return
        self.lines.append("    " + s)
    def c(self, s):
        self.lines.append("    ; " + s)
    def label(self, l):
        self.lines.append(l + ":")
    def newlabel(self, base):
        self.nl += 1
        return f"L_{self.name}_{base}_{self.nl}"
    def align(self, p):
        self.lines.append(f"    .p2align {p}")
    def text(self):
        return "\n".join(self.lines)

def v(a, n=1):
    return f"v[{a}:{a+n-1}]" if n > 1 else f"v{a}"
def s(a, n=1):
    return f"s[{a}:{a+n-1}]" if n > 1 else f"s{a}"
def a_(a, n=1):
    return f"a[{a}:{a+n-1}]" if n > 1 else f"a{a}"

def wrap(k, vgprs, agprs=0, sgprs=102):
    name = k.name
    acc = (vgprs + 3) // 4 * 4
    nfv = acc + agprs if agprs else vgprs
    out = [f".globl {name}", ".p2align 8", f".type {name},@function", f"{name}:", k.text(), "    s_endpgm"]
    kd = [".p2align 6", f".amdhsa_kernel {name}",
          f"  .amdhsa_next_free_vgpr {nfv}", f"  .amdhsa_next_free_sgpr {sgprs}",
          f"  .amdhsa_accum_offset {acc}", "  .amdhsa_group_segment_fixed_size 0",
          "  .amdhsa_kernarg_size 112", "  .amdhsa_user_sgpr_count 2",
          "  .amdhsa_user_sgpr_kernarg_segment_ptr 1", "  .amdhsa_system_sgpr_workgroup_id_x 1",
          ".end_amdhsa_kernel"]
    check(k)
    return "\n".join(out), "\n".join(kd)

def srd(k, d, base, nbytes, add=0):
    if add:
        k.e(f"s_add_u32 s{d}, s{base}, {add}")
        k.e(f"s_addc_u32 s{d+1}, s{base+1}, 0")
        k.e(f"s_and_b32 s{d+1}, s{d+1}, 0xffff")
    else:
        k.e(f"s_mov_b32 s{d}, s{base}")
        k.e(f"s_and_b32 s{d+1}, s{base+1}, 0xffff")
    k.e(f"s_mov_b32 s{d+2}, {nbytes}")
    k.e(f"s_mov_b32 s{d+3}, 0x20000")

def build(parts, launches, path):
    out = ["; generated by gen2/gen.py -- do not edit by hand"] + launches
    out += ['.amdgcn_target "amdgcn-amd-amdhsa--gfx950"', ".text"]
    out += [c for c, _ in parts]
    out.append('.section .rodata,"a"')
    out += [kd for _, kd in parts]
    open(path, "w").write("\n".join(out) + "\n")

REG = re.compile(r"^(-|abs\()?([vsa])(\d+|\[(\d+):(\d+)\])\)?$")
def regs(op):
    op = op.strip()
    if op in ("vcc",): return {("s", 106), ("s", 107)}
    if op == "vcc_lo": return {("s", 106)}
    if op == "vcc_hi": return {("s", 107)}
    if op == "exec": return {("s", 126), ("s", 127)}
    if op == "exec_lo": return {("s", 126)}
    if op == "exec_hi": return {("s", 127)}
    if op == "m0": return {("s", 124)}
    m = REG.match(op)
    if not m: return set()
    t = m.group(2)
    if m.group(4) is not None:
        return {(t, i) for i in range(int(m.group(4)), int(m.group(5)) + 1)}
    return {(t, int(m.group(3)))}

TRANS = ("v_exp_f32", "v_log_f32", "v_rcp_f32", "v_rsq_f32", "v_sqrt_f32", "v_sin_f32", "v_cos_f32")
class I:
    pass

def parse(line):
    t = line.split(";")[0].strip()
    i = I(); i.text = t
    if not t or t.startswith("."):
        return None
    if t.endswith(":"):
        i.kind = "label"; i.name = t[:-1]; return i
    sp = t.split(None, 1)
    mn = sp[0]; rest = sp[1] if len(sp) > 1 else ""
    ops = [o.strip() for o in rest.split(",")] if rest else []
    mods = []
    if ops:
        last = ops[-1].split()
        if last:
            ops[-1] = last[0]; mods = last[1:]
    i.mn = mn; i.ops = ops; i.mods = mods
    i.w = set(); i.r = set(); i.ws = 1; i.kind = "other"; i.target = None
    i.A = i.B = i.C = set()
    R = lambda lst: set().union(*[regs(o) for o in lst]) if lst else set()
    if mn.startswith("v_mfma"):
        i.kind = "mfma"; i.w = regs(ops[0]); i.A = regs(ops[1]); i.B = regs(ops[2]); i.C = regs(ops[3])
        i.r = i.A | i.B | i.C
        i.passes = 8 if "32x32x16" in mn else 4
    elif mn.startswith("v_"):
        i.kind = "valu"
        if (mn.startswith("v_permlane") and "swap" in mn) or mn.startswith("v_swap"):
            i.w = R(ops[:2]); i.r = R(ops[:2])
        elif mn.startswith("v_cmp"):
            i.w = regs(ops[0]); i.r = R(ops[1:])
            if mn.startswith("v_cmpx"): i.w |= regs("exec")
        elif "_co_" in mn:
            i.w = R(ops[:2]); i.r = R(ops[2:])
        elif mn == "v_nop":
            pass
        else:
            i.w = regs(ops[0]); i.r = R(ops[1:])
            if mn.startswith(("v_fmac", "v_mac", "v_dot2c", "v_writelane")) or "dpp" in mn or any(m.startswith(("quad_perm", "row_")) for m in mods):
                i.r |= i.w
        i.trans = mn.startswith(TRANS)
        i.dpp = "dpp" in mn or any(m.startswith(("quad_perm", "row_", "wave_")) for m in mods)
    elif mn.startswith("ds_"):
        i.kind = "ds"
        if mn.startswith(("ds_read", "ds_bpermute", "ds_permute", "ds_swizzle")):
            i.w = regs(ops[0]); i.r = R(ops[1:])
        else:
            i.r = R(ops)
    elif mn.startswith(("buffer_", "global_")):
        i.kind = "vmem"
        i.lds = "lds" in mods
        if mn in ("buffer_wbl2", "buffer_inv"):
            pass
        elif i.lds:
            i.r = R(ops) | regs("m0")
        elif "load" in mn:
            i.w = regs(ops[0]); i.r = R(ops[1:])
        elif "atomic" in mn:
            i.r = R(ops)
            if "sc0" in mods: i.w = regs(ops[0])
        else:
            i.r = R(ops)
            i.data = regs(ops[0]) if mn.startswith("buffer_") else regs(ops[1])
            i.wide = mn.endswith(("x3", "x4"))
    elif mn.startswith("s_"):
        i.kind = "salu"
        if mn == "s_nop":
            i.ws = int(ops[0], 0) + 1
        elif mn == "s_waitcnt":
            i.kind = "wait"
            i.vm = i.lgkm = None
            for m in re.finditer(r"(vmcnt|lgkmcnt)\((\d+)\)", rest):
                if m.group(1) == "vmcnt": i.vm = int(m.group(2))
                else: i.lgkm = int(m.group(2))
        elif mn.startswith(("s_cbranch", "s_branch")):
            i.kind = "branch"; i.target = ops[0]
            if "vcc" in mn: i.r = regs("vcc")
        elif mn.startswith(("s_load", "s_memtime", "s_memrealtime", "s_buffer_load", "s_atomic")):
            i.kind = "smem"; i.w = regs(ops[0]); i.r = R(ops[1:])
        elif mn.startswith(("s_cmp", "s_barrier", "s_setprio", "s_endpgm", "s_sleep", "s_bitcmp")):
            i.r = R(ops)
        else:
            i.w = regs(ops[0]); i.r = R(ops[1:])
            if "saveexec" in mn: i.w |= regs("exec")
    return i

def need(p, c):
    n = 0
    vw = {r for r in p.w if r[0] in "va"}
    sw = {r for r in p.w if r[0] == "s"}
    if p.kind == "valu":
        if c.kind == "mfma" and vw & c.r: n = max(n, 2)
        if c.kind == "valu":
            if p.trans and not c.trans and vw & c.r: n = max(n, 1)
            if sw & c.r: n = max(n, 4 if c.mn.startswith(("v_readlane", "v_writelane")) else 2)
            if c.mn.startswith(("v_readlane", "v_readfirstlane")) and vw & c.r: n = max(n, 1)
            if c.mn.startswith("v_permlane") and vw & c.r: n = max(n, 2)
            if c.dpp and vw & c.r: n = max(n, 2)
            if regs("exec") & p.w and c.dpp: n = max(n, 5)
        if c.kind == "vmem" and sw & c.r: n = max(n, 5)
        if c.kind == "mfma" and regs("exec") & p.w: n = max(n, 4)
        if c.kind in ("salu", "smem") and sw & c.r: n = max(n, 1)
    if p.kind == "mfma":
        big = 12 if p.passes == 8 else 8
        if c.kind == "mfma":
            if p.w & (c.A | c.B): n = max(n, big)
            if p.w & c.C and not (p.w == c.C and p.passes == c.passes): n = max(n, big - 2)
            if p.w & c.w and not (p.w == c.w): n = max(n, big - 2)
        elif c.kind in ("valu", "ds", "vmem"):
            if p.w & (c.r | c.w): n = max(n, big)
            if c.kind == "valu" and p.C & c.w: n = max(n, 7 if p.passes == 8 else 3)
    if p.kind == "salu" and regs("m0") & p.w and c.kind == "vmem" and c.lds: n = max(n, 1)
    if p.kind == "vmem" and getattr(p, "wide", False):
        if p.data & c.w: n = max(n, 2 if c.kind == "valu" else 1)
    return n

WGS = [0, 77, 230, 255]
WAVES = [0, 1, 4, 7]
M32 = 0xffffffff
def sx(x): return x - (1 << 32) if x >> 31 else x
def walk(ins, lab, wg, wave, errs):
    import operator
    CMP = {"eq": operator.eq, "lg": operator.ne, "lt": operator.lt, "le": operator.le, "gt": operator.gt, "ge": operator.ge}
    N = len(ins)
    def val(S, op):
        if op[0] == "s" and op[1:].isdigit(): return S.get(int(op[1:]))
        if op in ("m0", "vcc", "exec", "vcc_lo", "vcc_hi", "exec_lo", "exec_hi") or op[0] in "sv": return None
        try: return int(op, 0) & M32
        except ValueError: return None
    ends = set(); seen = set()
    stack = [(0, (), (), {2: wg}, None, 0)]
    while stack:
        n, lq, vq, S, scc, nb = stack.pop()
        while n < N:
            x = ins[n]
            if x.kind == "label":
                n += 1; continue
            if x.kind == "wait":
                if x.lgkm is not None:
                    if any(e[0] == "smem" for e in lq):
                        if x.lgkm == 0: lq = ()
                    elif x.lgkm < len(lq): lq = lq[len(lq) - x.lgkm:] if x.lgkm else ()
                if x.vm is not None and x.vm < len(vq): vq = vq[len(vq) - x.vm:] if x.vm else ()
                n += 1; continue
            touch = x.r | x.w
            if touch:
                for e in lq + vq:
                    if e[1] & touch:
                        errs.append(f"WAITCNT: [{x.text}] touches pending {sorted(e[1] & touch)[:4]}")
            if x.kind == "ds": lq = lq + (("ds", x.fw),)
            elif x.kind == "smem": lq = lq + (("smem", x.fw),)
            elif x.kind == "vmem":
                vq = vq + (("vm", x.fw),)
                if len(vq) > 63: errs.append(f"VMCNT overflow at [{x.text}]")
            mn = x.mn
            if x.kind == "salu":
                o = x.ops
                if mn == "s_endpgm": break
                if mn == "s_barrier": nb += 1
                elif mn.startswith("s_cmp_"):
                    p = mn.split("_")
                    a, b = val(S, o[0]), val(S, o[1])
                    if a is None or b is None or p[3] == "u64": scc = None
                    else: scc = CMP[p[2]](sx(a), sx(b)) if p[3] == "i32" else CMP[p[2]](a, b)
                elif mn.startswith("s_bitcmp"):
                    a, b = val(S, o[0]), val(S, o[1])
                    scc = None if a is None or b is None else ((a >> (b & 31)) & 1) == int(mn[8])
                elif x.w:
                    r = None; keep = False
                    a = val(S, o[1]) if len(o) > 1 else None
                    b = val(S, o[2]) if len(o) > 2 else None
                    ok = a is not None and b is not None
                    if mn == "s_mov_b32": r = a; keep = True
                    elif mn == "s_cselect_b32": r = None if scc is None else (a if scc else b); keep = True
                    elif mn in ("s_mov_b64", "s_cselect_b64", "s_getreg_b32"): keep = True
                    elif mn == "s_mul_i32": r = (a * b) & M32 if ok else None; keep = True
                    elif mn in ("s_add_u32", "s_add_i32"): r = (a + b) & M32 if ok else None; scc = (a + b) > M32 if ok else None; keep = True
                    elif mn in ("s_sub_u32", "s_sub_i32"): r = (a - b) & M32 if ok else None; scc = a < b if ok else None; keep = True
                    elif mn == "s_lshl_b32": r = (a << (b & 31)) & M32 if ok else None
                    elif mn == "s_lshr_b32": r = a >> (b & 31) if ok else None
                    elif mn == "s_and_b32": r = a & b if ok else None
                    elif mn == "s_or_b32": r = a | b if ok else None
                    elif mn == "s_xor_b32": r = a ^ b if ok else None
                    elif mn == "s_min_u32": r = min(a, b) if ok else None
                    elif mn == "s_max_u32": r = max(a, b) if ok else None
                    elif mn == "s_bfe_u32": r = (a >> (b & 31)) & ((1 << ((b >> 16) & 0x7f)) - 1) if ok else None
                    if not keep: scc = None
                    S = dict(S)
                    for t, i in x.w: S.pop(i, None)
                    if r is not None and len(x.w) == 1:
                        i = next(iter(x.w))[1]
                        if i != 61: S[i] = r
                    if ("s", 61) in x.w: scc = None
            elif x.kind in ("valu", "smem"):
                sw = [i for t, i in x.w if t == "s"]
                if sw:
                    S = dict(S)
                    for i in sw: S.pop(i, None)
                    if mn == "v_readfirstlane_b32" and sw == [28]: S[28] = wave
            elif x.kind == "branch":
                if mn == "s_branch": n = lab[x.target]; continue
                if mn in ("s_cbranch_scc0", "s_cbranch_scc1") and scc is not None:
                    if scc == (mn == "s_cbranch_scc1"): n = lab[x.target]; continue
                else:
                    key = (n, lq, vq, tuple(sorted(S.items())), nb)
                    if key in seen: nb = None; break
                    seen.add(key)
                    stack.append((lab[x.target], lq, vq, S, scc, nb))
            n += 1
        if nb is not None: ends.add(nb)
    return frozenset(ends)

def check(k, verbose=True):
    ins = [x for x in (parse(l) for l in k.lines) if x is not None]
    lab = {x.name: n for n, x in enumerate(ins) if x.kind == "label"}
    for x in ins:
        if x.kind != "label": x.fw = frozenset(x.w)
    N = len(ins)
    def succ(n):
        x = ins[n]
        if x.kind == "branch":
            t = [lab[x.target]]
            if x.mn != "s_branch": t.append(n + 1)
            return [q for q in t if q < N]
        if x.kind != "label" and x.mn == "s_endpgm": return []
        return [n + 1] if n + 1 < N else []
    errs = []
    for n, p in enumerate(ins):
        if p.kind in ("label", "wait", "branch", "other"): continue
        if not (p.w or p.kind in ("mfma", "vmem")): continue
        stack = [(q, 0) for q in succ(n)]
        seen = {}
        while stack:
            q, d = stack.pop()
            if d >= 13 or seen.get(q, 99) <= d: continue
            seen[q] = d
            c = ins[q]
            if c.kind == "label":
                stack += [(z, d) for z in succ(q)]; continue
            nd = need(p, c)
            if nd > d:
                errs.append(f"HAZARD need {nd} have {d}: [{p.text}] -> [{c.text}]")
            stack += [(z, d + c.ws) for z in succ(q)]
    bars = {}
    for wg in WGS:
        for wave in WAVES:
            nb = walk(ins, lab, wg, wave, errs)
            bars.setdefault(wg, set()).add(nb)
    for wg, st_ in bars.items():
        if len(st_) != 1: errs.append(f"BARRIER count mismatch in wg {wg}: {st_}")
    errs = list(dict.fromkeys(errs))
    if errs:
        print(f"== {k.name}: {len(errs)} problems", file=sys.stderr)
        for e in errs[:40]: print("  " + e, file=sys.stderr)
        raise SystemExit(1)
    mx = {"v": -1, "s": -1, "a": -1}
    for x in ins:
        if x.kind == "label": continue
        for t, i in (x.r | x.w):
            if not (t == "s" and i >= 102): mx[t] = max(mx[t], i)
    if verbose:
        print(f"{k.name}: {N} lines, max v{mx['v']} s{mx['s']} a{mx['a']}", file=sys.stderr)

class Op:
    def __init__(self, kind, text, tag=None):
        self.kind, self.text, self.tag = kind, text, tag
class Need:
    def __init__(self, kind, tags):
        self.kind, self.tags, self.n = kind, set(tags), None
def DS(text, tag=None): return Op("ds", text, tag)
def VM(text, tag=None): return Op("vm", text, tag)

class Alt:
    def __init__(self, inline, pick):
        self.inline, self.pick = inline, pick

def flat(items, ctx=None):
    out = []
    for x in items:
        if isinstance(x, (list, tuple)): out += flat(x, ctx)
        elif isinstance(x, Alt):
            out += flat(x.inline) if ctx is None else flat(x.pick(ctx) or [], ctx)
        else: out.append(x)
    return out

def simulate(seq, final=False):
    q = {"vm": [], "ds": []}
    for x in seq:
        if isinstance(x, Op):
            q[x.kind].append(x.tag)
        elif isinstance(x, Need):
            Q = q[x.kind]
            pos = [i for i, t in enumerate(Q) if t in x.tags]
            if pos:
                n = len(Q) - 1 - max(pos)
                n = min(n, 63 if x.kind == "vm" else 15)
                if final: assert x.n is not None and x.n <= n
                x.n = n if x.n is None else min(x.n, n)
            if x.n is not None:
                del Q[:max(0, len(Q) - x.n)]
        elif isinstance(x, str):
            t = x.strip()
            if t.startswith("s_waitcnt"):
                for m in re.finditer(r"(vmcnt|lgkmcnt)\((\d+)\)", t):
                    Q = q["vm" if m.group(1) == "vmcnt" else "ds"]
                    del Q[:max(0, len(Q) - int(m.group(2)))]
            elif t.startswith(("ds_",)): q["ds"].append(None)
            elif t.startswith(("buffer_", "global_")): q["vm"].append(None)

def resolve(scenarios):
    for _ in range(3):
        for sc in scenarios: simulate(flat(sc))
    for sc in scenarios: simulate(flat(sc), final=True)

def emit(k, piece):
    for x in flat(piece):
        if isinstance(x, Op): k.e(x.text)
        elif isinstance(x, Need):
            if x.n is not None:
                k.e(f"s_waitcnt {'vmcnt' if x.kind == 'vm' else 'lgkmcnt'}({x.n})")
        elif x.endswith(":"): k.label(x[:-1])
        else: k.e(x)

def weave(mfmas, fills, pre=None):
    out = []
    for i, m in enumerate(mfmas):
        if pre and pre.get(i): out += pre[i]
        out.append(m)
        if i < len(fills): out += fills[i]
    return out
```

```python
import sys
from common import *
from fused_b import gen_fused
NAME = "recurrent_scan__compressed_kv_cla__moe_arch_mod__prompt_kernel"
if __name__ == "__main__":
    out = sys.argv[1]
    cfg = dict(cs="2", dsp="2.5", wstep="2", lag="1", nt="wf", nodry="1", ofl="sc1", cpf="34", btl="32", xa="2", pb="s", evn="0x75643120", btj="5", uni="3", u2="1", g1="124", tq="1", t0="1", cp="3", gin="0", xpre="0", cst="2.6", fs="3", nf="2", lx="30", lw="28", xw="0", pro2="1", eil="1", mp="20")
    cfg.update(dict(a.split("=") for a in sys.argv[2:]))
    build([gen_fused(cfg, NAME)], [f"; @launch kernel={NAME} grid=(256,1,1) block=(512,1,1) lds=163840"], out)
```

```python
from common import *
import attn as A
import ffn as F
import oproj as O
from fused_a import *

X32, G = 192, 208
PRE, FW, HH, DD = 96, 64, 124, 80
LDS_P4 = 65536

def after_q(k, grp):
    srd(k, 16, 54, 16777216, WS_CTX)
    srd(k, 4, 94, 7340032)
    srd(k, 8, 92, 8388608)
    if grp == 0:
        k.e("s_cmp_eq_u32 s28, 0")
        k.e("s_cselect_b32 s42, 1, 63")
    else:
        sig = ["s_lshl_b32 s36, s29, 7", "v_mov_b32 v20, s36", "s_mul_i32 s36, s2, 2341", "s_lshr_b32 s36, s36, 16",
               f"s_add_u32 s36, s36, {CNT_F1}", "s_lshl_b32 s36, s36, 7", "v_mov_b32 v21, s36",
               "v_cmp_eq_u32 vcc, 1, v1", "v_mov_b32 v22, 1", "s_nop 0",
               "v_cndmask_b32 v20, v20, v21, vcc", "s_mov_b64 exec, 3", "global_atomic_add v20, v22, s[90:91]", "s_mov_b64 exec, -1"]
        emit(k, A.ool(k, ["s_cmp_eq_u32 s28, 4"], "s_cbranch_scc1", sig))

def pro_wait(k, grp):
    if grp == 0: return ["s_waitcnt vmcnt(0)"]
    l = k.newlabel("pw")
    return ["s_waitcnt vmcnt(1)", "s_cmp_eq_u32 s28, 4", f"s_cbranch_scc1 {l}", "s_waitcnt vmcnt(0)", l + ":"]

def pro_hook(k, grp):
    t = [x.replace("v16", "v26").replace("v17", "v27").replace("v18", "v28").replace("v19", "v29").replace("v[16:17]", "v[26:27]") for x in touches(k, True)]
    if grp == 0:
        return t + A.ool(k, ["s_cmp_eq_u32 s28, 0"], "s_cbranch_scc1",
                     ["s_lshl_b32 s36, s29, 7", "v_mov_b32 v13, s36", "global_load_dword v14, v13, s[90:91] sc1"])
    return t

def bar_hook(k, grp):
    if grp == 1: return []
    return A.ool(k, ["s_cmp_eq_u32 s40, s42"], "s_cbranch_scc1", check(k, "s[90:91]", "v13", "v14", 8))

def before_tail(k, grp):
    k.e("s_lshr_b32 s38, s2, 4")
    k.e("s_mul_i32 s38, s38, 224")
    k.e("s_and_b32 s39, s2, 15")
    k.e("s_lshl_b32 s39, s39, 7")
    F.wdma_addr(k, 26, "s38", 2048, "s39")
    k.e("s_lshl_b32 s36, s28, 12")
    k.e(f"s_add_u32 s36, s36, {LDS_X}")
    k.e("s_cmp_lt_u32 s28, 7")
    k.e("s_cselect_b32 m0, s36, 0x30000")
    k.e("s_cselect_b32 s6, 7340032, 0")
    for j in range(4): k.e(f"buffer_load_dwordx4 v{26+j}, s[4:7], 0 offen offset:{j*1024} lds")
    k.e("s_lshr_b32 s36, s2, 5")
    k.e(f"s_add_u32 s36, s36, {CNT_F1}")
    k.e("s_lshl_b32 s36, s36, 7")
    k.e("v_mov_b32 v12, s36")
    k.e("global_load_dword v11, v12, s[90:91] sc1")

def gcalc(k, withy):
    XI, YA = O.XI, O.YA
    for cb in range(4):
        for h in range(2):
            a, b = X32+4*cb+2*h, X32+4*cb+2*h+1
            ga, gb = G+4*cb+2*h, G+4*cb+2*h+1
            k.e(f"v_lshlrev_b32 v{a}, 16, v{XI+2*cb+h}")
            k.e(f"v_and_b32 v{b}, 0xffff0000, v{XI+2*cb+h}")
            k.e(f"v_sub_f32 v{ga}, v{a}, v{XI+8}")
            k.e(f"v_sub_f32 v{gb}, v{b}, v{XI+8}")
            def rnd2():
                k.e(f"v_cvt_pk_bf16_f32 v23, v{ga}, v{gb}")
                k.e(f"v_lshlrev_b32 v{ga}, 16, v23")
                k.e(f"v_and_b32 v{gb}, 0xffff0000, v23")
            rnd2()
            k.e(f"v_mul_f32 v{ga}, v{ga}, v{XI+9}")
            k.e(f"v_mul_f32 v{gb}, v{gb}, v{XI+9}")
            rnd2()
            if withy:
                k.e(f"v_add_f32 v{ga}, v{ga}, v{YA+4*cb+2*h}")
                k.e(f"v_add_f32 v{gb}, v{gb}, v{YA+4*cb+2*h+1}")
                rnd2()
            k.e(f"v_mul_f32 v24, 0xbfb8aa3b, v{ga}")
            k.e(f"v_mul_f32 v25, 0xbfb8aa3b, v{gb}")
            k.e("v_exp_f32 v24, v24")
            k.e("v_exp_f32 v25, v25")
            k.e("s_nop 0")
            k.e("v_add_f32 v24, 1.0, v24")
            k.e("v_add_f32 v25, 1.0, v25")
            k.e("v_rcp_f32 v24, v24")
            k.e("v_rcp_f32 v25, v25")
            k.e("s_nop 0")
            k.e(f"v_mul_f32 v{ga}, v{ga}, v24")
            k.e(f"v_mul_f32 v{gb}, v{gb}, v25")
            rnd2()

def ffn2_math(k):
    F.wrd_addr(k, "v26", "v27", "v28")
    k.e("s_lshl_b32 s36, s28, 12")
    k.e(f"s_add_u32 s36, s36, {LDS_X}")
    k.e("v_add_u32 v26, s36, v26")
    for cb in range(4):
        k.e(f"v_xor_b32 v28, {cb}, v27")
        k.e("v_lshl_add_u32 v28, v28, 5, v26")
        for t in range(2):
            k.e(f"ds_read_b64_tr_b16 {v(FW+4*cb+2*t,2)}, v28 offset:{4*t*128}")
    for m in ("row_ror:4", "row_ror:8"):
        for e in range(8): k.e(f"v_add_f32_dpp v{PRE+e}, v{PRE+e}, v{PRE+e} {m} row_mask:0xf bank_mask:0xf")
    for e in range(0, 8, 2):
        k.e(f"v_cvt_pk_bf16_f32 v29, v{PRE+e}, v{PRE+e+1}")
        k.e(f"v_lshlrev_b32 v{PRE+e}, 16, v29")
        k.e(f"v_and_b32 v{PRE+e+1}, 0xffff0000, v29")
    for e in range(8): k.e(f"v_mul_f32 v{PRE+8+e}, 0xbfb8aa3b, v{PRE+e}")
    for e in range(8): k.e(f"v_exp_f32 v{PRE+8+e}, v{PRE+8+e}")
    for e in range(8): k.e(f"v_add_f32 v{PRE+8+e}, 1.0, v{PRE+8+e}")
    for e in range(8): k.e(f"v_rcp_f32 v{PRE+8+e}, v{PRE+8+e}")
    for e in range(8): k.e(f"v_mul_f32 v{PRE+8+e}, v{PRE+e}, v{PRE+8+e}")
    for e in range(0, 8, 2):
        k.e(f"v_cvt_pk_bf16_f32 v29, v{PRE+8+e}, v{PRE+8+e+1}")
        k.e(f"v_lshlrev_b32 v{PRE+8+e}, 16, v29")
        k.e(f"v_and_b32 v{PRE+8+e+1}, 0xffff0000, v29")
    for e in range(8): k.e(f"v_mul_f32_dpp v{PRE+e}, v{PRE+e}, v{PRE+8+e} quad_perm:[2,3,0,1] row_mask:0xf bank_mask:0xf")
    for q in range(4): k.e(f"v_cvt_pk_bf16_f32 v{HH+q}, v{PRE+2*q}, v{PRE+2*q+1}")
    k.e("s_waitcnt lgkmcnt(0)")
    k.e("v_lshl_add_u32 v28, v1, 4, s36")
    for cb in range(4): k.e(f"{MF} {v(DD+4*cb,4)}, {v(FW+4*cb,4)}, {v(HH,4)}, 0")
    k.e("s_nop 7")
    for cb in range(4): k.e(f"ds_write_b128 v28, {v(DD+4*cb,4)} offset:{cb*1024}")

def ffn2_reduce():
    L = ["s_lshl_b32 s36, s28, 10", f"s_add_u32 s36, s36, {LDS_X}", "v_lshl_add_u32 v28, v1, 4, s36"]
    L += [f"ds_read_b128 {v(PRE+4*w,4)}, v28 offset:{w*4096}" for w in range(7)]
    L += ["s_lshr_b32 s36, s2, 4", "s_lshl_b32 s36, s36, 13", "s_and_b32 s37, s2, 15", "s_lshl_b32 s37, s37, 8", "s_add_u32 s36, s36, s37",
          "s_lshl_b32 s37, s28, 6", "s_add_u32 s36, s36, s37", f"s_add_u32 s36, s36, {WS_YP}",
          "v_and_b32 v28, 1, v1", "v_lshlrev_b32 v28, 12, v28", "v_lshl_add_u32 v28, v19, 4, v28", "s_waitcnt lgkmcnt(0)"]
    for w in range(1, 7):
        L += [f"v_add_f32 v{DD+e if w == 6 else PRE+e}, v{PRE+e}, v{PRE+4*w+e}" for e in range(4)]
    L += ["s_mov_b32 exec_lo, 0x00030003", "s_mov_b32 exec_hi, 0x00030003",
          VM(f"buffer_store_dwordx4 {v(DD,4)}, v28, s[24:27], s36 offen{SC}", "yp"), "s_mov_b64 exec, -1"]
    return L

def p4_pieces(k, cfg):
    WFR, XFR, Areg = O.WFR, O.XFR, O.Areg
    def wdma(stage):
        return [f"s_add_u32 m0, s34, {stage*32768}"], [VM(f"buffer_load_dwordx4 v{6+j}, s[8:11], s32 offen offset:{j*1024} lds", ("W", stage)) for j in range(4)]
    def xld(xs, s_):
        return [VM(f"buffer_load_dwordx4 {v(XFR[xs]+(s_*2+rb)*4,4)}, v{2+rb}, s[4:7], s31 offen offset:{s_*1024}{SC}", ("x", xs, s_)) for rb in range(2)]
    def wrd(stage, s_, fs):
        return [DS(f"ds_read_b64_tr_b16 {v(WFR[fs]+4*cb+2*t,2)}, v{10+cb} offset:{stage*32768+(32*s_+16*t)*128}", ("w", fs)) for cb in range(4) for t in range(2)]
    def mf(fs, xs, s_):
        return [f"{MF} {v(Areg(rb,cb),4)}, {v(WFR[fs]+4*cb,4)}, {v(XFR[xs]+(s_*2+rb)*4,4)}, {v(Areg(rb,cb),4)}" for cb in range(4) for rb in range(2)]
    prow = [f"s_add_u32 s33, s33, {LDS_P4}", "s_mov_b32 s34, s33"]
    for t in range(2):
        m, d = wdma(t)
        prow += m + ["s_nop 0"] + d + [f"s_add_u32 s32, s32, {256*2048}"]
    prox = []
    for t in range(2):
        for s_ in range(4 if t == 0 else 3): prox += xld(t, s_)
        if t == 0: prox += ["s_add_u32 s31, s31, 8192"]
    pro2 = wrd(0, 0, 0) + ["s_mov_b32 s35, 0"]
    body = []
    for stage in range(2):
        for s_ in range(4):
            fills = [[] for _ in range(8)]
            if s_ < 3:
                body += [Need("ds", [("w", s_ & 1)])]
                rd = wrd(stage, s_+1, (s_+1) & 1)
            else:
                body += [Need("ds", [("w", 1)]), Need("vm", [("W", stage ^ 1)]), "s_barrier"]
                rd = wrd(stage ^ 1, 0, 0)
            body += [Need("vm", [("x", stage, s_)])]
            for g in range(4): fills[g] += rd[2*g:2*g+2]
            if s_ == 0:
                xl = xld(stage ^ 1, 3)
                fills[4] += [xl[0]]; fills[5] += [xl[1], "s_add_u32 s31, s31, 8192"]
                if stage == 0:
                    fills[6] += ["s_cmp_lt_u32 s35, 7", "s_cselect_b32 s6, 16777216, 0", "s_cselect_b32 s10, 8388608, 0", "s_cselect_b32 s34, s33, 0x30000"]
            else:
                xl = xld(stage, s_-1)
                fills[4] += [xl[0]]; fills[5] += [xl[1]]
            if s_ == 3:
                m, d = wdma(stage)
                fills[3] += m
                fills[4] = d[:2] + fills[4]; fills[5] = d[2:] + fills[5]
                fills[7] += [f"s_add_u32 s32, s32, {256*2048}"]
            body += weave(mf(s_ & 1, stage, s_), fills)
    return prow, prox, pro2, body

def routed(k):
    YA = O.YA
    for r in range(16): k.e(f"v_mov_b32 v{YA+r}, 0")
    k.e(f"s_add_u32 s36, s30, {CNT_F2}")
    k.e("s_lshl_b32 s36, s36, 7")
    k.e("v_mov_b32 v22, s36")
    emit(k, spin(k, "s[90:91]", "v22", "v23", 16, 1))
    for t in range(2):
        lsk = k.newlabel("noy")
        k.e(f"s_sub_u32 s36, s{56+t}, s38")
        k.e("s_cmp_lt_u32 s36, 16")
        k.e(f"s_cbranch_scc0 {lsk}")
        k.e("s_lshl_b32 s37, s30, 8")
        k.e(f"s_add_u32 s37, s37, {WS_YP + t*4096}")
        k.e("v_and_b32 v22, 15, v1")
        k.e("v_lshlrev_b32 v22, 13, v22")
        k.e("v_lshl_add_u32 v22, v19, 4, v22")
        for cb in range(4):
            k.e(f"buffer_load_dwordx4 {v(64+4*cb,4)}, v22, s[24:27], s37 offen offset:{cb*64}{SC}")
        k.e(f"s_and_b32 s36, s{58+t}, 0xffff0000")
        k.e("s_cmp_lt_i32 s36, 0")
        k.e("s_cselect_b32 s37, 0x80000000, -1")
        k.e("s_xor_b32 s36, s36, s37")
        k.e("s_and_b32 s36, s36, 0xffff0000")
        k.e("v_mov_b32 v24, s36")
        k.e("v_mul_f32 v24, 0xbfb8aa3b, v24")
        k.e("v_exp_f32 v24, v24")
        k.e("s_nop 0")
        k.e("v_add_f32 v24, 1.0, v24")
        k.e("v_rcp_f32 v24, v24")
        k.e("s_nop 0")
        rbf(k, "v24")
        k.e("s_waitcnt vmcnt(0)")
        for m in ["quad_perm:[1,0,3,2]", "quad_perm:[2,3,0,1]", "row_half_mirror", "row_mirror"]:
            for r in range(16):
                k.e(f"v_add_f32_dpp v{64+r}, v{64+r}, v{64+r} {m} row_mask:0xf bank_mask:0xf")
        k.e(f"v_cmp_eq_u32 vcc, s{56+t}, v14")
        for r in range(16):
            rbf(k, f"v{64+r}")
            k.e(f"v_mul_f32 v{64+r}, v24, v{64+r}")
            rbf(k, f"v{64+r}")
            k.e(f"v_cndmask_b32 v{YA+r}, v{YA+r}, v{64+r}, vcc")
        k.label(lsk)
    gcalc(k, True)

def p4_epilogue(k, cfg, kh):
    Areg = O.Areg
    o = 1 - kh
    for cb in range(4): k.e(f"ds_write_b128 v20, {v(Areg(o,cb),4)} offset:{cb*1024}")
    k.e("s_waitcnt lgkmcnt(0)")
    k.e("s_barrier")
    for cb in range(4): k.e(f"ds_read_b128 {v(64+4*cb,4)}, v21 offset:{cb*1024}")
    for cb in range(4):
        k.e(f"s_waitcnt lgkmcnt({3-cb})")
        for h in range(2):
            a, b = Areg(kh, cb)+2*h, Areg(kh, cb)+2*h+1
            k.e(f"v_add_f32 v{a}, v{a}, v{64+4*cb+2*h}")
            k.e(f"v_add_f32 v{b}, v{b}, v{64+4*cb+2*h+1}")
            def rnd2():
                k.e(f"v_cvt_pk_bf16_f32 v23, v{a}, v{b}")
                k.e(f"v_lshlrev_b32 v{a}, 16, v23")
                k.e(f"v_and_b32 v{b}, 0xffff0000, v23")
            rnd2()
            k.e(f"v_mul_f32 v{a}, v{a}, v{G+4*cb+2*h}")
            k.e(f"v_mul_f32 v{b}, v{b}, v{G+4*cb+2*h+1}")
            rnd2()
            k.e(f"v_add_f32 v{a}, v{a}, v{X32+4*cb+2*h}")
            k.e(f"v_add_f32 v{b}, v{b}, v{X32+4*cb+2*h+1}")
            k.e(f"v_cvt_pk_bf16_f32 v{80+2*cb+h}, v{a}, v{b}")
        k.e(f"buffer_store_dwordx2 {v(80+2*cb,2)}, v15, s[20:23], 0 offen offset:{cb*32}")

def p4(k, cfg, st):
    prow, prox, pro2, body = p4_pieces(k, cfg)
    kx = K("tmp"); xl = O.p4_xloads(kx)
    xl[-1].text += SC
    prel = ["s_lshr_b32 s36, s2, 4", "s_mul_i32 s36, s36, 224", "s_min_u32 s37, s28, 6", "s_lshl_b32 s37, s37, 5", "s_add_u32 s36, s36, s37",
            "s_lshl_b32 s36, s36, 2", f"s_add_u32 s36, s36, {WS_PRE}", "v_and_b32 v26, 15, v1", "v_mul_u32_u24 v26, 14336, v26",
            "v_lshl_add_u32 v26, v19, 5, v26"]
    prel += [VM(f"buffer_load_dwordx4 {v(PRE+4*h,4)}, v26, s[24:27], s36 offen offset:{16*h}{SC}", "pre") for h in range(2)]
    n_ctx = Need("vm", ["ctxst"]); n_pre = Need("vm", ["pre"]); n_xi = Need("vm", ["xi"])
    sig = ["v_mov_b32 v26, s40", "v_mov_b32 v27, s41", "v_cmp_eq_u32 vcc, 1, v1", "v_mov_b32 v28, 1", "s_nop 0",
           "v_cndmask_b32 v26, v26, v27, vcc", "s_mov_b64 exec, 3", "global_atomic_add v26, v28, s[90:91]", "s_mov_b64 exec, -1"]
    sigA = Alt(A.ool(k, ["s_cmp_eq_u32 s28, 0"], "s_cbranch_scc1", sig), lambda c: sig if c["w0"] else [])
    red = ffn2_reduce()
    redA = guard(k, ["s_cmp_lt_u32 s28, 4"], "s_cbranch_scc0", red, "lo")
    f2 = ["s_and_b32 s36, s2, 15", f"s_add_u32 s36, s36, {CNT_F2}", "s_lshl_b32 s36, s36, 7"] + signal("s[90:91]", "s36", "v26", "v27")
    f2A = Alt(A.ool(k, ["s_lshl_b32 s36, s28, 3", "s_add_u32 s36, s36, s35", "s_cmp_eq_u32 s36, 1"], "s_cbranch_scc1", f2),
              lambda c: f2 if c["w0"] and c["it"] == 1 else [])
    n_w0 = Need("vm", [("W", 0)])
    scen = []
    for w0, lo in ((1, 1), (0, 1), (0, 0)):
        c = dict(w0=w0, lo=lo, it=0)
        sq = flat([VM("", "ctxst"), prel, n_ctx, sigA, prow, xl, n_pre, n_w0, prox, redA, n_xi, pro2], c)
        for it in range(3): sq += flat([f2A, body], dict(c, it=it))
        scen.append(sq)
    resolve(scen)
    k.e(f"s_sub_u32 s40, {15+CNT_CTX}, s30")
    k.e("s_lshl_b32 s40, s40, 7")
    k.e(f"s_add_u32 s41, s30, {CNT_CTX}")
    k.e("s_lshl_b32 s41, s41, 7")
    k.e("v_mov_b32 v30, v11")
    k.e("v_mov_b32 v31, v12")
    O.p4_setup(k)
    emit(k, check(k, "s[90:91]", "v31", "v30", 28))
    emit(k, prel)
    srd(k, 4, 54, 16777216, WS_CTX)
    srd(k, 16, 96, 4194304)
    srd(k, 20, 98, 4194304)
    k.lines += kx.lines
    O.p4_setup2(k)
    for cb in range(4): k.e(f"v_add_u32 v{10+cb}, {LDS_P4}, v{10+cb}")
    emit(k, [n_ctx, "s_barrier", sigA])
    st.mark()
    emit(k, prow)
    emit(k, xl)
    l7, lj = k.newlabel("w7"), k.newlabel("w7j")
    k.e("s_cmp_eq_u32 s28, 7")
    k.e(f"s_cbranch_scc1 {l7}")
    emit(k, [n_pre])
    ffn2_math(k)
    k.e(f"s_branch {lj}")
    k.label(l7)
    k.e(f"s_add_u32 s36, s29, {CNT_CTX}")
    k.e("s_lshl_b32 s36, s36, 7")
    k.e("v_mov_b32 v30, s36")
    emit(k, spin(k, "s[90:91]", "v30", "v31", 32, int(cfg.get("slp", 8))))
    k.label(lj)
    emit(k, [n_w0])
    k.e("s_waitcnt lgkmcnt(0)")
    st.mark()
    k.e("s_barrier")
    st.mark()
    emit(k, prox)
    emit(k, [redA, n_xi])
    gcalc(k, False)
    k.e("s_lshl_b32 s36, s28, 12")
    k.e("v_lshl_add_u32 v20, v1, 4, s36")
    k.e("v_xor_b32 v21, 16384, v20")
    emit(k, pro2)
    st.mark()
    k.align(6)
    k.label("L_p4_loop")
    emit(k, [f2A, body])
    k.e("s_add_u32 s35, s35, 1")
    k.e("s_cmp_lt_u32 s35, 8")
    k.e("s_cbranch_scc1 L_p4_loop")
    st.mark()
    k.e("s_waitcnt vmcnt(0) lgkmcnt(0)")
    kr = K(k.name + "_rt"); routed(kr)
    emit(k, A.ool(k, ["s_sub_u32 s36, s56, s38", "s_sub_u32 s37, s57, s38", "s_min_u32 s36, s36, s37", "s_cmp_lt_u32 s36, 16"],
                  "s_cbranch_scc1", [x.strip() for x in kr.lines]))
    k.e("s_cmp_lt_u32 s28, 4")
    k.e("s_cbranch_scc0 L_p4_e1")
    p4_epilogue(k, cfg, 0)
    k.e("s_branch L_p4_done")
    k.label("L_p4_e1")
    p4_epilogue(k, cfg, 1)
    k.label("L_p4_done")

def gen_fused(cfg, name):
    cfg = dict(cfg, stflag=SC, pro_hook=pro_hook, pro_wait=pro_wait, bar_hook=bar_hook)
    k = K(name)
    k.e("s_cmp_ge_u32 s2, 256")
    k.e("s_cbranch_scc1 L_end")
    stq = cfg.get("stamp", "")
    st = Stamps(k, bool(stq), kid=0)
    off = Stamps(k, False)
    st.mark()
    cfg["sth1"] = st if "a" in stq else off
    cfg["sth2"] = st if "b" in stq else off
    p1(k, cfg, st if "1" in stq else off)
    if "b" in stq: st.mark()
    p2(k, cfg, st if "2" in stq else off)
    k.e("s_load_dwordx2 s[92:93], s[0:1], 40")
    k.e("s_load_dwordx2 s[94:95], s[0:1], 80")
    k.e("s_load_dwordx2 s[96:97], s[0:1], 0")
    k.e("s_load_dwordx2 s[98:99], s[0:1], 88")
    s3 = st if "3" in stq else off
    k.e("s_cmp_lt_u32 s28, 4")
    k.e("s_cbranch_scc0 L_grp1")
    A.gen_p3(k, cfg, 0, s3, after_q, before_tail)
    k.e("s_branch L_p3_done")
    A.flush_ool(k)
    k.label("L_grp1")
    A.gen_p3(k, cfg, 1, s3, after_q, before_tail)
    k.e("s_branch L_p3_done")
    A.flush_ool(k)
    k.label("L_p3_done")
    st.mark()
    k.e("s_waitcnt vmcnt(4)")
    p4(k, cfg, st if "4" in stq else off)
    st.dump(54, "s28")
    if cfg.get("stdbg"):
        k.e("s_lshl_b32 s36, s28, 8"); k.e("s_add_u32 s36, s36, s2")
        k.e(f"s_cmp_eq_u32 s36, {cfg['stdbg']}"); k.e("s_cbranch_scc0 L_end")
        k.e("v_mov_b32 v2, 0"); k.e("s_mov_b64 exec, 1")
        for i in range(1, st.n):
            k.e(f"s_sub_u32 s36, s{st.base+2*i+1}, s{st.base+1}")
            k.e("v_mov_b32 v3, s36")
            k.e(f"global_store_dword v2, v3, s[88:89] offset:{4*i}")
    k.e("s_endpgm")
    A.flush_ool(k)
    k.label("L_end")
    return wrap(k, 256)
```

```python
from common import *
import attn as A
import ffn as F

WS_CNT = 59 << 20
CNT_KV, CNT_CTX, CNT_F1, CNT_F2, CNT_KV0, CNT_EX, CNT_LN = 0, 32, 48, 96, 64, 128, 112
WS_EX = 64 << 20
SC = " sc1"
LDS_X = 131072

def lines(fn, *a, **kw):
    t = K("tmp"); fn(t, *a, **kw); return [x.strip() for x in t.lines]

def signal(saddr_pair, off, t0, t1):
    return [f"v_mov_b32 {t0}, {off}", f"v_mov_b32 {t1}, 1", "s_mov_b64 exec, 1",
            f"global_atomic_add {t0}, {t1}, {saddr_pair}", "s_mov_b64 exec, -1", "s_nop 3"]

def switch(k, sreg, cases):
    L = []
    lend = k.newlabel("swend")
    for i, (val, items) in enumerate(cases):
        if i + 1 < len(cases):
            ln = k.newlabel("swn")
            L += [f"s_cmp_eq_u32 {sreg}, {val}", f"s_cbranch_scc0 {ln}"] + items + [f"s_branch {lend}", ln + ":"]
        else:
            L += items
    return L + [lend + ":"]

def guard(k, cond, br, items, key):
    l = k.newlabel("g")
    return Alt(cond + [f"{br} {l}"] + items + [l + ":"], lambda c: items if c[key] else [])

def spin(k, saddr, voff, vtmp, target, slp=8):
    l, le = k.newlabel("spin"), k.newlabel("spinx")
    return ["s_mov_b32 s61, 0x40000", l + ":", "s_sub_u32 s61, s61, 1", f"s_cbranch_scc1 {le}", f"s_sleep {slp}",
            f"global_load_dword {vtmp}, {voff}, {saddr} sc1", "s_waitcnt vmcnt(0)",
            f"v_readfirstlane_b32 s36, {vtmp}", "s_nop 0", f"s_cmp_lt_u32 s36, {target}", f"s_cbranch_scc1 {l}", le + ":"]

def check(k, saddr, voff, vtmp, target):
    return A.ool(k, [f"v_readfirstlane_b32 s36, {vtmp}", "s_nop 0", f"s_cmp_lt_u32 s36, {target}"], "s_cbranch_scc1",
                 spin(k, saddr, voff, vtmp, target))

def ln_check(k):
    l, le = k.newlabel("lspin"), k.newlabel("lspinx")
    return ["s_mov_b32 s61, 0x40000", l + ":", "v_cmp_gt_u32 vcc, 16, v116", "s_nop 0", "s_cmp_eq_u64 vcc, 0",
            f"s_cbranch_scc1 {le}", "s_sub_u32 s61, s61, 1", f"s_cbranch_scc1 {le}", "s_sleep 8",
            "global_load_dword v116, v117, s[90:91] sc1", "s_waitcnt vmcnt(0)", f"s_branch {l}", le + ":"]

def ln_row(X, WR, Fr, T, SB, srow, sslot):
    k = K("t")
    t = [f"v{T+i}" for i in range(8)]
    for i in range(8):
        k.e(f"v_lshlrev_b32 v{Fr+2*i}, 16, v{X+i}")
        k.e(f"v_and_b32 v{Fr+2*i+1}, 0xffff0000, v{X+i}")
    k.e(f"v_add_f32 {t[0]}, v{Fr}, v{Fr+1}")
    for i in range(2, 16): k.e(f"v_add_f32 {t[0]}, {t[0]}, v{Fr+i}")
    wave_sum(k, t[0], t[1], SB)
    k.e(f"v_mul_f32 {t[1]}, 0x3a800000, {t[1]}")
    k.e(f"v_sub_f32 {t[2]}, v{Fr}, {t[1]}")
    k.e(f"v_mul_f32 {t[0]}, {t[2]}, {t[2]}")
    for i in range(1, 16):
        k.e(f"v_sub_f32 {t[2]}, v{Fr+i}, {t[1]}")
        k.e(f"v_fmac_f32 {t[0]}, {t[2]}, {t[2]}")
    wave_sum(k, t[0], t[2], SB)
    k.e(f"v_mul_f32 {t[2]}, 0x3a800000, {t[2]}")
    k.e(f"v_cvt_pk_bf16_f32 {t[3]}, {t[1]}, {t[2]}")
    k.e(f"v_lshlrev_b32 {t[6]}, 16, {t[3]}")
    k.e(f"v_and_b32 {t[2]}, 0xffff0000, {t[3]}")
    k.e(f"v_add_f32 {t[2]}, 0x3727c5ac, {t[2]}")
    rbf(k, t[2])
    k.e(f"v_sqrt_f32 {t[2]}, {t[2]}")
    k.e("s_nop 0")
    rbf(k, t[2])
    k.e(f"v_rcp_f32 {t[7]}, {t[2]}")
    k.e("s_nop 0")
    k.e(f"v_fma_f32 {t[4]}, -{t[2]}, {t[7]}, 1.0")
    k.e(f"v_fma_f32 {t[7]}, {t[4]}, {t[7]}, {t[7]}")
    for i in range(8):
        a, b = f"v{Fr+2*i}", f"v{Fr+2*i+1}"
        k.e(f"v_sub_f32 {a}, {a}, {t[6]}")
        k.e(f"v_sub_f32 {b}, {b}, {t[6]}")
        k.e(f"v_cvt_pk_bf16_f32 {t[4]}, {a}, {b}")
        k.e(f"v_lshlrev_b32 {a}, 16, {t[4]}")
        k.e(f"v_and_b32 {b}, 0xffff0000, {t[4]}")
        k.e(f"v_mul_f32 {a}, {a}, {t[7]}")
        k.e(f"v_mul_f32 {b}, {b}, {t[7]}")
        k.e(f"v_cvt_pk_bf16_f32 v{X+i}, {a}, {b}")
        k.e(f"v_lshlrev_b32 {a}, 16, v{X+i}")
        k.e(f"v_and_b32 {b}, 0xffff0000, v{X+i}")
        if i == 0: k.e(f"v_mul_f32 {t[0]}, {a}, v{WR}")
        else: k.e(f"v_fmac_f32 {t[0]}, {a}, v{WR+2*i}")
        k.e(f"v_fmac_f32 {t[0]}, {b}, v{WR+2*i+1}")
    k.e(f"s_mul_i32 s{SB}, {sslot}, 2064")
    k.e(f"s_add_u32 s{SB}, s{SB}, {LDS_X}")
    k.e(f"v_lshl_add_u32 {t[3]}, v1, 4, s{SB}")
    k.e(f"ds_write_b128 {t[3]}, {v(X,4)}")
    k.e(f"ds_write_b128 {t[3]}, {v(X+4,4)} offset:1024")
    wave_sum(k, t[0], t[1], SB)
    rbf(k, t[1])
    k.e(f"v_ashrrev_i32 {t[3]}, 31, {t[1]}")
    k.e(f"v_or_b32 {t[3]}, 0x80000000, {t[3]}")
    k.e(f"v_xor_b32 {t[3]}, {t[1]}, {t[3]}")
    k.e(f"v_and_b32 {t[3]}, 0xffff0000, {t[3]}")
    k.e(f"s_sub_u32 s{SB}, 0xffff, {srow}")
    k.e(f"v_or_b32 {t[3]}, s{SB}, {t[3]}")
    k.e(f"s_lshl_b32 s{SB+1}, {sslot}, 3")
    k.e(f"s_add_u32 s{SB+1}, s{SB+1}, {LDS_X + 16640}")
    k.e(f"v_mov_b32 {t[2]}, s{SB+1}")
    k.e(f"ds_write_b64 {t[2]}, {v(T+6,2)}")
    k.e(f"ds_write_b32 {t[2]}, {t[3]} offset:64")
    return [x.strip() for x in k.lines]

def zip2(a, b):
    out = []
    for x, y in zip(a, b):
        if x == "s_nop 0": continue
        if x == "s_nop 1": out.append("s_nop 0"); continue
        out += [x, y]
    return out

def ln_part3(T):
    t = [f"v{T+i}" for i in range(8)]
    L = [f"v_and_b32 {t[0]}, 7, v1", f"v_lshlrev_b32 {t[0]}, 3, {t[0]}", f"v_add_u32 {t[1]}, {LDS_X + 16640}, {t[0]}",
         f"ds_read_b64 {v(T+2,2)}, {t[1]}", f"ds_read_b32 {t[4]}, {t[1]} offset:64",
         "s_lshl_b32 s36, s2, 6", f"s_add_u32 s36, s36, {WS_ST}", "s_lshl_b32 s37, s2, 3", f"s_add_u32 s37, s37, {F.WS_KEY}",
         "s_waitcnt lgkmcnt(0)", f"v_mov_b32 {t[6]}, {t[4]}"]
    red = lambda x: flat([["s_nop 1", f"v_max_u32_dpp {x}, {x}, {x} {m} row_mask:0xf bank_mask:0xf"]
                          for m in ("quad_perm:[1,0,3,2]", "quad_perm:[2,3,0,1]", "row_half_mirror")])
    L += red(t[6]) + [f"v_cmp_eq_u32 vcc, {t[6]}, {t[4]}", "s_nop 1", f"v_cndmask_b32 {t[7]}, {t[4]}, v118, vcc"] + red(t[7])
    L += ["s_mov_b64 exec, 0xff", f"buffer_store_dwordx2 {v(T+2,2)}, {t[0]}, s[24:27], s36 offen{SC}",
          "s_mov_b64 exec, 1", f"buffer_store_dwordx2 {v(T+6,2)}, {t[0]}, s[24:27], s37 offen{SC}", "s_mov_b64 exec, -1", "s_nop 3"]
    return L

def ln_part2(k, X, T):
    t = [f"v{T+i}" for i in range(8)]
    k.e(f"v_and_b32 {t[0]}, 7, v1")
    k.e(f"v_lshrrev_b32 {t[1]}, 3, v1")
    k.e(f"v_mul_u32_u24 {t[2]}, 2064, {t[0]}")
    k.e(f"v_lshl_add_u32 {t[2]}, {t[1]}, 4, {t[2]}")
    k.e("s_lshl_b32 s36, s28, 8")
    k.e(f"s_add_u32 s36, s36, {LDS_X}")
    k.e(f"v_add_u32 {t[2]}, s36, {t[2]}")
    k.e(f"ds_read_b128 {v(X,4)}, {t[2]}")
    k.e(f"ds_read_b128 {v(X+4,4)}, {t[2]} offset:128")
    k.e(f"v_lshlrev_b32 {t[0]}, 4, {t[0]}")
    k.e(f"v_lshl_add_u32 {t[0]}, {t[1]}, 8, {t[0]}")
    k.e("s_lshr_b32 s36, s2, 1")
    k.e("s_lshl_b32 s36, s36, 15")
    k.e("s_and_b32 s37, s2, 1")
    k.e("s_lshl_b32 s37, s37, 7")
    k.e("s_add_u32 s36, s36, s37")
    k.e("s_lshl_b32 s37, s28, 12")
    k.e("s_add_u32 s36, s36, s37")
    k.e("s_waitcnt lgkmcnt(0)")
    k.e(f"buffer_store_dwordx4 {v(X,4)}, {t[0]}, s[24:27], s36 offen{SC}")
    k.e(f"buffer_store_dwordx4 {v(X+4,4)}, {t[0]}, s[24:27], s36 offen offset:2048{SC}")

KP = 128
WF = 24
XF = [64, 96]
vPOLL = "v56"
vZ = "v57"

def touch2(pa, pb, offa, offb, dst="v116"):
    return ["v_and_b32 v19, 31, v1"] + offa + offb + [
        "v_cmp_lt_u32 vcc, 31, v1", f"v_mov_b32 v18, s{pa}", f"v_mov_b32 v19, s{pb}", "v_cndmask_b32 v16, v16, v17, vcc",
        "v_cndmask_b32 v18, v18, v19, vcc", f"v_mov_b32 v17, s{pa+1}", f"v_mov_b32 v19, s{pb+1}", "v_cndmask_b32 v17, v17, v19, vcc",
        "v_add_co_u32 v16, vcc, v18, v16", "s_nop 1", "v_addc_co_u32 v17, vcc, 0, v17, vcc",
        f"global_load_dword {dst}, v[16:17], off"]

def touches(k, late=False):
    wq = ["s_lshl_b32 s36, s30, 7", "s_lshl_b32 s37, s28, 4", "s_add_u32 s36, s36, s37", "v_lshrrev_b32 v16, 1, v19",
          "v_add_u32 v16, s36, v16", "v_lshlrev_b32 v16, 13, v16", "v_and_b32 v17, 1, v1", "v_lshl_add_u32 v16, v17, 7, v16",
          "s_lshl_b32 s36, s29, 8", "v_add_u32 v16, s36, v16"]
    wo = ["s_lshl_b32 s36, s2, 15", "s_lshl_b32 s37, s28, 12", "s_add_u32 s36, s36, s37", "v_lshl_add_u32 v17, v19, 7, s36"]
    gu = ["s_min_u32 s37, s2, 223", "s_and_b32 s36, s37, 3", "s_lshl_b32 s36, s36, 8", "s_lshr_b32 s37, s37, 2", "s_lshl_b32 s37, s37, 7",
          "s_lshl_b32 s38, s28, 5", "s_add_u32 s36, s36, s38", "v_add_u32 v16, s36, v19", "v_mul_u32_u24 v16, 7168, v16", "v_add_u32 v16, s37, v16"]
    dn = ["s_lshr_b32 s36, s2, 4", "s_mul_i32 s36, s36, 224", "s_min_u32 s37, s28, 6", "s_lshl_b32 s37, s37, 5", "s_add_u32 s36, s36, s37",
          "v_add_u32 v16, s36, v19", "v_lshlrev_b32 v16, 11, v16", "s_and_b32 s37, s2, 15", "s_lshl_b32 s37, s37, 7", "v_add_u32 v16, s37, v16"]
    cp = ["v_mov_b32 v17, v16"]
    if late: return touch2(94, 92, dn, wo, "v10")
    return switch(k, "s35", [(0, touch2(96, 96, wq, cp)), (1, touch2(92, 94, gu, cp)),
                             (3, ["global_load_dword v116, v118, s[96:97]"])])

def touch_p1():
    w = ["s_lshl_b32 s36, s30, 6", "s_lshl_b32 s37, s28, 3", "s_add_u32 s36, s36, s37", "v_bfe_u32 v16, v1, 1, 3",
         "v_add_u32 v16, s36, v16", "v_lshlrev_b32 v16, 13, v16", "v_and_b32 v17, 1, v1", "v_lshl_add_u32 v16, v17, 7, v16",
         "s_lshl_b32 s36, s29, 8", "v_add_u32 v16, s36, v16"]
    c = ["s_lshl_b32 s36, s30, 8", "s_lshl_b32 s37, s28, 5", "s_add_u32 s36, s36, s37", "v_lshrrev_b32 v16, 1, v1",
         "v_add_u32 v16, s36, v16", "v_lshlrev_b32 v16, 10, v16", "v_and_b32 v17, 1, v1", "v_lshl_add_u32 v16, v17, 7, v16",
         "s_and_b32 s36, s29, 3", "s_lshl_b32 s36, s36, 8", "v_add_u32 v16, s36, v16", "global_load_dword v117, v16, s[46:47]"]
    return c + touch2(48, 50, w, ["v_mov_b32 v17, v16"], "v119")

def tlb_warm(k, cfg):
    sh = int(cfg.get("pgsh", 21))
    def one(p, size, d, idx):
        return [f"s_lshl_b32 s36, {idx}, {sh}", f"s_min_u32 s36, s36, {size-4}", f"s_add_u32 s38, s{p}, s36", f"s_addc_u32 s39, s{p+1}, 0",
                f"s_load_dword s{d}, s[38:39], 0"]
    L = ["s_lshr_b32 s58, s2, 3", "s_and_b32 s59, s58, 7", "s_add_u32 s57, s58, 32"]
    wsz = (72 + int(cfg.get("wsoff", 0))) << 20
    c4 = one(90, wsz, 98, "s58") + one(90, wsz, 99, "s57")
    c5 = one(48, 4 << 20, 98, "s59") + one(50, 4 << 20, 99, "s59") + one(96, 8 << 20, 3, "s59") + one(46, 2 << 20, 35, "s59")
    c6 = one(92, 7340032, 98, "s59") + one(94, 7340032, 99, "s59") + one(44, 4 << 20, 3, "s59")
    c7 = one(24, 8 << 20, 98, "s59") + one(4, 7340032, 99, "s59") + one(6, 4 << 20, 3, "s59")
    return L + switch(k, "s28", [(4, c4), (5, c5), (6, c6), (7, c7)])

def p1_retarget(cfg):
    L = ["v_lshrrev_b32 v3, 4, v1", "s_lshl_b32 s37, s28, 4", "v_add_u32 v19, s37, v3", "v_lshlrev_b32 v19, 13, v19",
         "s_lshl_b32 s37, s29, 8", "v_add_u32 v19, s37, v19", "v_and_b32 v16, 15, v1", "v_lshlrev_b32 v3, 1, v3",
         "v_xor_b32 v16, v16, v3", "v_lshl_add_u32 v2, v16, 4, v19", f"v_add_u32 v3, {32768-1024}, v2",
         "v_xor_b32 v16, 8, v16", "v_lshl_add_u32 v4, v16, 4, v19", f"v_add_u32 v4, {2*(32768-1024)}, v4",
         f"v_add_u32 v5, {32768-1024}, v4"]
    L += lines(srd, 4, 96, 8388608)
    L += ["s_mov_b32 s31, 0", f"s_mov_b32 s40, {128*8192}", "s_mov_b32 s32, 0", "s_mov_b32 s41, 0",
          "s_and_b32 s38, s2, 3", "s_lshl_b32 s38, s38, 8", "s_lshr_b32 s39, s2, 2", "s_lshl_b32 s39, s39, 7"]
    L += lines(F.wdma_addr, 6, "s38", 7168, "s39")
    L += lines(srd, 8, 92, 7340032)
    L += [f"s_cmp_lt_u32 s2, {0 if cfg.get('noffn') else 224}", "s_cselect_b32 s10, s10, 0"]
    return L

def p1(k, cfg, st):
    ACC = 128
    FR = [20, 68]
    k.e("s_load_dwordx4 s[44:47], s[0:1], 0")
    k.e("s_load_dwordx4 s[48:51], s[0:1], 24")
    k.e("s_load_dwordx2 s[52:53], s[0:1], 56")
    k.e("s_load_dwordx4 s[88:91], s[0:1], 96")
    k.e("s_load_dwordx4 s[92:95], s[0:1], 64")
    k.e("s_load_dwordx2 s[96:97], s[0:1], 16")
    k.e("s_load_dwordx2 s[24:25], s[0:1], 40")
    k.e("s_load_dwordx4 s[4:7], s[0:1], 80")
    k.e("v_and_b32 v1, 63, v0")
    k.e("v_lshrrev_b32 v16, 6, v0")
    k.e("s_and_b32 s29, s2, 7")
    k.e("v_readfirstlane_b32 s28, v16")
    k.e("s_lshl_b32 s29, s29, 2")
    k.e("s_bfe_u32 s36, s2, 0x20003")
    k.e("s_add_u32 s29, s29, s36")
    k.e("s_lshr_b32 s30, s2, 5")
    k.e("v_lshrrev_b32 v16, 3, v1")
    k.e("s_lshl_b32 s36, s30, 8")
    k.e("s_lshl_b32 s37, s28, 5")
    k.e("s_add_u32 s36, s36, s37")
    k.e("v_add_u32 v16, s36, v16")
    k.e("v_lshlrev_b32 v16, 10, v16")
    k.e("v_lshrrev_b32 v18, 4, v1")
    k.e("v_and_b32 v19, 7, v1")
    k.e("v_xor_b32 v19, v19, v18")
    k.e("v_lshl_add_u32 v2, v19, 4, v16")
    k.e("v_xor_b32 v19, 4, v19")
    k.e("v_lshl_add_u32 v3, v19, 4, v16")
    k.e(f"v_add_u32 v3, {8192-1024}, v3")
    k.e(f"v_add_u32 v4, {2*(8192-1024)}, v2")
    k.e(f"v_add_u32 v5, {2*(8192-1024)}, v3")
    k.e("s_and_b32 s36, s28, 3")
    k.e("s_lshl_b32 s37, s36, 4")
    k.e("v_add_u32 v16, s37, v18")
    k.e("v_lshlrev_b32 v16, 13, v16")
    k.e("s_lshl_b32 s37, s29, 8")
    k.e("v_add_u32 v16, s37, v16")
    k.e("v_and_b32 v19, 15, v1")
    k.e("v_lshlrev_b32 v18, 1, v18")
    k.e("v_xor_b32 v19, v19, v18")
    k.e("v_lshl_add_u32 v6, v19, 4, v16")
    k.e(f"v_add_u32 v7, {32768-1024}, v6")
    k.e("v_xor_b32 v19, 8, v19")
    k.e("v_lshl_add_u32 v8, v19, 4, v16")
    k.e(f"v_add_u32 v8, {2*(32768-1024)}, v8")
    k.e(f"v_add_u32 v9, {32768-1024}, v8")
    k.e("s_lshl_b32 s33, s28, 12")
    k.e("s_add_u32 s34, s33, 65536")
    k.e("s_mov_b32 s31, 0")
    k.e("s_mov_b32 s32, 0")
    k.e("s_mov_b32 s40, 128")
    k.e(f"s_mov_b32 s41, {64*8192}")
    def dma_list(stage):
        c = [f"buffer_load_dwordx4 v{2+j}, s[4:7], s31 offen offset:{j*1024} lds" for j in range(4)]
        w = [f"buffer_load_dwordx4 v{6+j}, s[8:11], s32 offen offset:{j*1024} lds" for j in range(4)]
        return f"s_add_u32 m0, s33, {stage*32768}", c, f"s_add_u32 m0, s34, {stage*32768}", w
    def dma_both(stage):
        mc, c, mw, w = dma_list(stage)
        k.e(mc); k.e(f"s_add_u32 s36, s31, {128*1024}"); k.e(c)
        k.e(mw); k.e("s_nop 0"); k.e(w)
        k.e(f"s_add_u32 m0, s33, {stage*32768+16384}"); k.e("s_nop 0"); k.e([x.replace("s31", "s36") for x in c])
        k.e(f"s_add_u32 m0, s34, {stage*32768+16384}"); k.e("s_nop 0"); k.e([x.replace("s[8:11]", "s[20:23]") for x in w])
        k.e("s_add_u32 s31, s31, s40")
        k.e("s_add_u32 s32, s32, s41")
    def setup_rest():
        k.e(f"s_add_u32 s54, s90, {int(cfg.get('wsoff', 0)) << 20}")
        k.e("s_addc_u32 s55, s91, 0")
        k.e("s_and_b32 s95, s95, 0xffff")
        srd(k, 12, 54, 33554432, WS_KV)
        srd(k, 24, 54, 80 << 20)
        k.e(f"s_add_u32 s90, s54, {WS_CNT}")
        k.e("s_addc_u32 s91, s55, 0")
        k.e("v_and_b32 v16, 15, v1")
        k.e("v_lshrrev_b32 v17, 4, v1")
        k.e("s_bfe_u32 s36, s28, 0x10001")
        k.e("s_lshl_b32 s36, s36, 14")
        k.e("v_lshl_add_u32 v18, v16, 7, s36")
        k.e("v_lshrrev_b32 v19, 1, v16")
        k.e("v_xor_b32 v19, v19, v17")
        k.e("v_lshl_add_u32 v10, v19, 4, v18")
        k.e("v_xor_b32 v19, 4, v19")
        k.e("v_lshl_add_u32 v11, v19, 4, v18")
        k.e("v_lshrrev_b32 v16, 2, v16")
        k.e("v_lshl_add_u32 v18, v17, 3, v16")
        k.e("v_lshlrev_b32 v18, 8, v18")
        k.e("s_lshr_b32 s36, s28, 2")
        k.e("s_lshl_b32 s36, s36, 14")
        k.e("s_add_u32 s36, s36, 65536")
        k.e("v_add_u32 v18, s36, v18")
        k.e("v_and_b32 v19, 3, v1")
        k.e("v_lshl_add_u32 v18, v19, 3, v18")
        k.e("v_and_b32 v17, 1, v17")
        k.e("v_lshl_add_u32 v16, v17, 2, v16")
        k.e("s_and_b32 s36, s28, 1")
        k.e("s_lshl_b32 s36, s36, 2")
        for cb in range(4):
            k.e(f"s_add_u32 s37, s36, {cb}")
            k.e("v_xor_b32 v19, s37, v16")
            k.e(f"v_lshl_add_u32 v{12+cb}, v19, 5, v18")
        for r in range(128): k.e(f"v_mov_b32 v{ACC+r}, 0")
        k.e("v_mov_b32 v118, 0")
        k.e(["s_lshl_b32 s36, s30, 7", "s_lshl_b32 s37, s28, 4", "s_add_u32 s36, s36, s37", "v_bfe_u32 v17, v1, 1, 3",
             "v_add_u32 v17, s36, v17", "v_lshlrev_b32 v17, 13, v17", "v_and_b32 v19, 1, v1", "v_lshl_add_u32 v17, v19, 7, v17",
             "s_lshl_b32 s36, s29, 8", "v_add_u32 v17, s36, v17",
             "s_min_u32 s37, s2, 223", "s_and_b32 s36, s37, 3", "s_lshl_b32 s36, s36, 8", "s_lshr_b32 s37, s37, 2", "s_lshl_b32 s37, s37, 7",
             "s_lshl_b32 s38, s28, 5", "s_add_u32 s36, s36, s38", "v_and_b32 v19, 15, v1", "v_add_u32 v18, s36, v19",
             "v_mul_u32_u24 v18, 7168, v18", "v_add_u32 v18, s37, v18",
             "s_mov_b64 s[62:63], s[96:97]", f"s_mov_b32 s45, {8*8192}"])
    np1 = 0
    n0 = st.n
    k.e("s_cmp_lt_u32 s28, 4")
    k.e("s_cbranch_scc0 L_pro_b")
    k.e("s_waitcnt lgkmcnt(0)")
    srd(k, 4, 46, 2097152)
    srd(k, 8, 48, 4194304)
    srd(k, 20, 50, 4194304)
    k.e("s_barrier")
    emit(k, A.ool(k, ["s_cmp_eq_u32 s2, 0"], "s_cbranch_scc1",
                  ["s_mul_i32 s36, s28, 12288", f"s_add_u32 s36, s36, {WS_CNT + (int(cfg.get('wsoff', 0)) << 20)}", "v_lshl_add_u32 v16, v1, 4, s36",
                   "v_mov_b32 v108, 0", "v_mov_b32 v109, 0", "v_mov_b32 v110, 0", "v_mov_b32 v111, 0"] +
                  flat([[f"global_store_dwordx4 v16, v[108:111], s[90:91]{SC}", "v_add_u32 v16, 1024, v16"] for _ in range(12)])))
    dma_both(0)
    st.mark()
    setup_rest()
    st.mark()
    dma_both(1)
    k.e("s_waitcnt vmcnt(16)")
    st.mark()
    k.e("s_branch L_pro_j")
    k.label("L_pro_b")
    st.n = n0
    XA, XB, WP, WR = 20, 28, 36, 44
    k.e("s_and_b32 s60, s28, 3")
    k.e("s_add_u32 s61, s60, 4")
    k.e("s_lshl_b32 s42, s2, 3")
    k.e("s_add_u32 s42, s42, s60")
    k.e("s_add_u32 s43, s42, 4")
    k.e("v_lshlrev_b32 v116, 4, v1")
    k.e("s_lshl_b32 s36, s42, 11")
    k.e("s_add_u32 s37, s36, 8192")
    k.e("s_waitcnt lgkmcnt(0)")
    srd(k, 16, 44, 4194304)
    srd(k, 20, 52, 2048)
    for X_, so in ((XA, "s36"), (XB, "s37")):
        k.e(f"buffer_load_dwordx4 {v(X_,4)}, v116, s[16:19], {so} offen")
        k.e(f"buffer_load_dwordx4 {v(X_+4,4)}, v116, s[16:19], {so} offen offset:1024")
    k.e(f"buffer_load_dwordx4 {v(WP,4)}, v116, s[20:23], 0 offen")
    k.e(f"buffer_load_dwordx4 {v(WP+4,4)}, v116, s[20:23], 0 offen offset:1024")
    k.e("s_barrier")
    if not cfg.get("notlb"): emit(k, tlb_warm(k, cfg))
    srd(k, 4, 46, 2097152)
    srd(k, 8, 50, 4194304)
    k.e("s_mov_b32 s31, 256")
    k.e(f"s_mov_b32 s32, {2*64*8192}")
    setup_rest()
    st.mark()
    k.e("s_waitcnt vmcnt(0)")
    st.mark()
    for i in range(8):
        k.e(f"v_lshlrev_b32 v{WR+2*i}, 16, v{WP+i}")
        k.e(f"v_and_b32 v{WR+2*i+1}, 0xffff0000, v{WP+i}")
    k.e(zip2(ln_row(XA, WR, 60, 92, 36, "s42", "s60"), ln_row(XB, WR, 76, 100, 56, "s43", "s61")))
    k.e("s_waitcnt lgkmcnt(0)")
    st.mark()
    k.label("L_pro_j")
    def reads(s_, stage, fs):
        b = FR[fs]
        c = [f"ds_read_b128 {v(b+4*i,4)}, v{10+s_} offset:{stage*32768+i*2048}" for i in range(8)]
        w = [[f"ds_read_b64_tr_b16 {v(b+32+4*cb+2*t,2)}, v{12+cb} offset:{stage*32768+(32*s_+4*t)*256}" for t in range(2)] for cb in range(4)]
        return [c[0]] + w[0] + w[1] + w[2] + w[3] + c[1:]
    def accreg(i, cb, vtype):
        return ACC + ((cb*8+i) if vtype else (i*4+cb))*4
    def mfmas(fs, vtype):
        b = FR[fs]; L = []
        for i in range(8):
            for cb in range(4):
                a = accreg(i, cb, vtype)
                cf, wf = v(b+4*i, 4), v(b+32+4*cb, 4)
                Aop, Bop = (cf, wf) if vtype else (wf, cf)
                L.append(f"{MF} {v(a,4)}, {Aop}, {Bop}, {v(a,4)}")
        return L
    k.e("s_barrier")
    k.e(reads(0, 0, 0))
    emit(k, A.ool(k, ["s_add_u32 s36, s2, s28", "s_cmp_eq_u32 s36, 0"], "s_cbranch_scc1",
                  ["v_mov_b32 v19, 1", "s_mov_b64 exec, 1", "global_store_dword v118, v19, s[88:89] sc1", "s_mov_b64 exec, -1"]))
    ln_part2(k, 120, 100)
    emit(k, A.ool(k, ["s_cmp_eq_u32 s28, 7"], "s_cbranch_scc1", ln_part3(108)))
    st.mark()
    k.e("s_mov_b32 s35, 0")
    k.e("s_cmp_eq_u32 s28, 0")
    k.e("s_cselect_b32 s43, 9, 0")
    k.e("s_cselect_b32 s44, 2, 1")
    k.e("s_cmp_lt_u32 s28, 4")
    k.e("s_cbranch_scc0 L_kv_vloop")
    for vtype in range(2):
        lp = "L_kv_vloop" if vtype else "L_kv_kloop"
        k.align(6)
        k.label(lp)
        for stage in range(2):
            for s_ in range(2):
                fills = [[] for _ in range(32)]
                pre = []
                if s_ == 0:
                    k.e("s_waitcnt lgkmcnt(0)")
                    rd = reads(1, stage, 1)
                    if stage == 1 and vtype == 0:
                        fills[20] += A.ool(k, ["s_bitcmp1_b32 s43, s35"], "s_cbranch_scc1", switch(k, "s35", [
                            (0, ["global_load_dword v116, v118, s[88:89] sc1"]),
                            (3, ["v_and_b32 v117, 15, v1", f"v_add_u32 v117, {CNT_LN}, v117", "v_lshlrev_b32 v117, 7, v117",
                                 "global_load_dword v116, v117, s[90:91] sc1"])]))
                else:
                    nt = 0 if cfg.get("notouch") else 1
                    if vtype == 0 and stage == 0:
                        emit(k, A.ool(k, ["s_cmp_eq_u32 s35, 3"], "s_cbranch_scc1", p1_retarget(cfg)))
                    la, lb = k.newlabel("w0"), k.newlabel("w0b")
                    if stage == 1 and vtype == 0:
                        A.OOL.append([la + ":", "s_waitcnt vmcnt(0)"] + switch(k, "s35", [(0, check(k, "s[88:89]", "v118", "v116", 1)), (3, ln_check(k))]) + [f"s_branch {lb}"])
                        emit(k, ["s_bitcmp1_b32 s43, s35", f"s_cbranch_scc1 {la}", f"s_waitcnt vmcnt({nt})", lb + ":", "s_waitcnt lgkmcnt(0)"])
                    elif stage == 1:
                        k.e(f"s_waitcnt vmcnt({nt}) lgkmcnt(0)")
                    else:
                        A.OOL.append([la + ":"] + switch(k, "s35", [(0, ["s_waitcnt vmcnt(2)"]), (1, [f"s_waitcnt vmcnt({nt+1})"])]) + [f"s_branch {lb}"])
                        emit(k, ["s_cmp_lt_u32 s35, s44", f"s_cbranch_scc1 {la}", f"s_waitcnt vmcnt({nt})", lb + ":", "s_waitcnt lgkmcnt(0)"])
                    if nt:
                        tp = int(cfg.get("tpos", 31))
                        tl = ["s_mov_b64 exec, 0xffff", f"global_load_dword v{[119, 0][stage]}, v17, s[62:63]", "s_mov_b64 exec, -1", "v_add_u32 v17, s45, v17"]
                        if stage == 1:
                            tl += ["v_mov_b32 v17, v18", f"s_mov_b32 s45, {16*7168}", "s_cmp_eq_u32 s35, 0", "s_cselect_b64 s[62:63], s[92:93], s[94:95]"]
                        fills[tp] += tl + ["s_nop 1"]
                    k.e("s_barrier")
                    rd = reads(0, stage ^ 1, 0)
                    if stage == 1 and vtype == 0:
                        fills[30] += A.ool(k, ["s_add_u32 s36, s35, s28", "s_cmp_eq_u32 s36, 0"], "s_cbranch_scc1",
                                          ["s_lshr_b32 s36, s2, 4", f"s_add_u32 s36, s36, {CNT_LN}", "s_lshl_b32 s36, s36, 7"] + signal("s[90:91]", "s36", "v16", "v19"))
                for g in range(16): fills[g].append(rd[g])
                if s_ == 1:
                    mc, c, mw, w = dma_list(stage)
                    tail = ["s_add_u32 s31, s31, s40", "s_add_u32 s32, s32, s41"]
                    if stage == 0: tail += ["s_cmp_eq_u32 s35, 3", "s_cselect_b32 s8, s94, s8", "s_cselect_b32 s9, s95, s9"]
                    if vtype == 1:
                        pre = [mc, "s_nop 0"] + c + [mw, "s_nop 0"] + w + tail
                        if stage == 1:
                            pre += A.ool(k, ["s_cmp_eq_u32 s35, 2"], "s_cbranch_scc1", p1_retarget(cfg))
                    else:
                        fills[0].append(mc)
                        for j in range(4): fills[1+3*j].append(c[j])
                        fills[12].append(mw)
                        for j in range(4): fills[13+3*j].append(w[j])
                        fills[31] += tail
                emit(k, pre)
                emit(k, weave(mfmas(s_, vtype), fills))
                if s_ == 1: k.e(cfg["sth1"].hist(8, first=(vtype == 0 and stage == 0)))
        k.e("s_add_u32 s35, s35, 1")
        k.e("s_cmp_lt_u32 s35, 4")
        k.e(f"s_cbranch_scc1 {lp}")
        if vtype == 0: k.e("s_branch L_p1_done")
    k.label("L_p1_done")

def kv_pack(k):
    for q in range(16):
        a = 128 + 8*q
        for e in range(4):
            k.e(f"v_cvt_pk_bf16_f32 v{KP+4*q+e}, v{a+2*e}, v{a+2*e+1}")
    k.e("s_mov_b32 s51, 0x55555555")
    k.e("s_lshl_b32 s38, s29, 20")
    k.e("s_lshl_b32 s37, s30, 17")
    k.e("s_add_u32 s38, s38, s37")
    k.e("s_bfe_u32 s37, s28, 0x10001")
    k.e("s_lshl_b32 s37, s37, 16")
    k.e("s_add_u32 s38, s38, s37")
    k.e("s_lshr_b32 s36, s28, 2")
    k.e("s_lshl_b32 s37, s36, 15")
    k.e("s_add_u32 s38, s38, s37")
    k.e("s_and_b32 s37, s28, 1")
    k.e("s_add_u32 s36, s36, 11")
    k.e("s_lshl_b32 s37, s37, s36")
    k.e("s_add_u32 s38, s38, s37")
    k.e("s_cmp_lt_u32 s28, 4")
    k.e("s_cselect_b32 s36, 4, 32")
    k.e("s_cselect_b32 s37, 16, 64")
    k.e("s_cselect_b32 s39, 32, 4")
    k.e("s_lshl_b32 s36, s36, 8")
    k.e("s_lshl_b32 s37, s37, 8")
    k.e("s_lshl_b32 s39, s39, 8")
    k.e("s_mov_b32 s46, s38")
    for g in range(1, 4): k.e(f"s_add_u32 s{46+g}, s{45+g}, s39")
    k.e("s_cmp_eq_u32 s30, 0")
    k.e("s_cselect_b32 s50, 0xffff, s51")
    k.e("s_cselect_b32 s52, 4, 0")
    k.e("v_lshlrev_b32 v58, 4, v1")
    k.e("v_add_u32 v59, s36, v58")
    k.e("v_add_u32 v60, s37, v58")
    k.e("v_add_u32 v61, s36, v60")

def p2_setup(k):
    k.e("s_and_b32 s36, s28, 3")
    k.e("s_sub_u32 s37, 15, s30")
    k.e("s_cmp_lt_u32 s28, 4")
    k.e("s_cselect_b32 s37, s37, s30")
    k.e("s_lshl_b32 s37, s37, 2")
    k.e("s_add_u32 s37, s37, s36")
    k.e("s_lshl_b32 s37, s37, 16")
    k.e("v_lshl_add_u32 v6, v1, 4, s37")
    k.e("v_add_u32 v7, 32768, v6")
    k.e("s_mov_b32 s32, 0")

def p2_setup2(k):
    k.e("v_lshrrev_b32 v18, 4, v1")
    k.e("v_bfe_u32 v20, v1, 2, 2")
    k.e("v_lshl_add_u32 v19, v18, 3, v20")
    k.e("v_lshlrev_b32 v19, 8, v19")
    k.e("v_and_b32 v21, 3, v1")
    k.e("v_lshl_add_u32 v19, v21, 3, v19")
    k.e("v_and_b32 v21, 1, v18")
    k.e("v_lshl_add_u32 v20, v21, 2, v20")
    for db in range(8):
        k.e(f"v_xor_b32 v21, {db}, v20")
        k.e(f"v_lshl_add_u32 v{10+db}, v21, 5, v19")
    k.e("s_lshl_b32 s45, s29, 20")

def p2_pieces(k, cfg, evA, evB):
    def wdma(stage):
        return [f"s_add_u32 m0, s33, {stage*32768}"], [VM(f"buffer_load_dwordx4 v{2+j}, s[4:7], s31 offen offset:{j*1024}{SC} lds", ("W", stage)) for j in range(4)]
    def xld(xs, s_):
        return [VM(f"buffer_load_dwordx4 {v(XF[xs]+(s_*2+rb)*4,4)}, v{6+rb}, s[8:11], s32 offen offset:{s_*1024}{SC}", ("x", xs, s_)) for rb in range(2)]
    def wrd(stage, s_, db):
        return [DS(f"ds_read_b64_tr_b16 {v(WF+4*db+2*t,2)}, v{10+db} offset:{stage*32768+(32*s_+4*t)*256}", ("w", db)) for t in range(2)]
    def store(q):
        fl = SC if cfg.get("kvfl") is None else " " + cfg["kvfl"].replace("_", " ")
        return [VM(f"buffer_store_dwordx4 {v(KP+4*q,4)}, v{58+(q&3)}, s[12:15], s{46+(q>>2)} offen{fl}", "kvst")]
    prox = []
    for t in range(2):
        for s_ in range(4 if t == 0 else 3): prox += xld(t, s_)
        if t == 0: prox += ["s_add_u32 s32, s32, 4096"]
    D = 6
    pro2 = [wrd(0, 0, db) for db in range(D)]
    halves = []
    for stage in range(2):
        M, fills, pre = [], [[] for _ in range(64)], {}
        for s_ in range(4):
            for db in range(8):
                for rb in range(2):
                    o = A.Oreg(rb, db)
                    M.append(f"{MF} {v(o,4)}, {v(WF+4*db,4)}, {v(XF[stage]+(s_*2+rb)*4,4)}, {v(o,4)}")
        for p in range(32):
            if p % 2 == 0: pre[2*p] = [Need("ds", [("w", p % 8), ("w", (p+1) % 8)])]
            if p % 8 == 0: pre[2*p] += [Need("vm", [("x", stage, p // 8)])]
            f = p + D
            if f < 32:
                r = wrd(stage, f // 8, f % 8)
                fills[2*p] += [r[0]]; fills[2*p+1] += [r[1]]
        pre[0] = [evB[stage]] + pre[0]
        fills[2*27+1] += [evA[stage], "s_waitcnt lgkmcnt(0)", Need("vm", [("W", stage ^ 1)]), "s_barrier"]
        nx = {28: [0, 1], 29: [2, 3], 30: [4], 31: [5]}
        for p, fl in nx.items():
            for i, f in enumerate(fl):
                fills[2*p+i] += wrd(stage ^ 1, 0, f)
        for s_ in range(4):
            xl = xld(stage ^ 1, 3) if s_ == 0 else xld(stage, s_-1)
            fills[16*s_+2] += [xl[0]]; fills[16*s_+6] += [xl[1]]
            if s_ == 0:
                fills[7] += ["s_add_u32 s32, s32, 4096"]
                if stage == 0:
                    fills[8] += ["s_cmp_lt_u32 s35, 3", "s_cselect_b32 s10, 4194304, 0"]
            cases = {4+i: store(8*i + 4*stage + s_) for i in range(2)}
            if s_ % 2 == 0: cases.update({i: store(4*i + 2*stage + s_//2) for i in range(4)})
            order = sorted(cases)
            if not cfg.get("nokvst"):
                spos = [int(x) for x in cfg.get("spos", "9,27,13,31").split(",")]
                fills[spos[s_]] += [Alt(A.ool(k, [f"s_bitcmp1_b32 s50, {4*stage+s_}"], "s_cbranch_scc1",
                                        ["s_add_u32 s36, s35, s52"] + switch(k, "s36", [(c, cases[c]) for c in order])),
                                    lambda c, cases=cases: cases.get(c["it"] + 4*c["fast"]))]
        m, d = wdma(stage)
        fills[2*29+1] += m
        fills[60] += [d[0]]; fills[61] += [d[1]]; fills[62] += [d[2]]; fills[63] += [d[3], "s_add_u32 s31, s31, s40"]
        halves.append(weave(M, fills, pre))
    return prox, pro2, halves

def p2_events(k, cfg):
    FF = ([f"s_cmp_lt_u32 s2, {0 if cfg.get('noffn') else 224}"], "s_cbranch_scc0")
    W0 = (["s_cmp_eq_u32 s28, 0"], "s_cbranch_scc0")
    def E1():
        return [f"s_mov_b32 s36, {F.WS_KEY}"] + [VM(f"buffer_load_dwordx4 {v(128+4*i,4)}, v58, s[24:27], s36 offen offset:{i*1024}{SC}", "keys") for i in range(2)]
    def E2():
        L = [Need("vm", ["keys"])] + lines(F.top2, 128, 18, 8)
        L += ["v_and_b32 v18, 1, v1", "v_mov_b32 v19, s56", "v_mov_b32 v20, s57", "v_cmp_eq_u32 vcc, 1, v18", "s_nop 1",
              "v_cndmask_b32 v19, v19, v20, vcc", "v_lshrrev_b32 v20, 4, v19", "v_lshlrev_b32 v20, 15, v20", "v_and_b32 v19, 15, v19",
              "v_lshl_add_u32 v20, v19, 4, v20", "v_lshrrev_b32 v21, 4, v1", "v_lshl_add_u32 v20, v21, 8, v20",
              "s_and_b32 s36, s2, 3", "s_lshl_b32 s36, s36, 13", "s_add_u32 s37, s36, 4096",
              "s_mov_b32 exec_lo, 0x00030003", "s_mov_b32 exec_hi, 0x00030003"]
        L += [VM(f"buffer_load_dwordx4 {v(128+4*s_,4)}, v20, s[24:27], s{36+s_//4} offen offset:{(s_%4)*1024}{SC}", "xsel") for s_ in range(8)]
        return L + ["s_mov_b64 exec, -1", "s_nop 3"]
    def E3():
        e3 = lines(F.wrd_addr, "v22", "v23", "v62")
        e3 += ["s_and_b32 s36, s28, 3", "v_xor_b32 v23, s36, v23", "v_lshl_add_u32 v63, v23, 5, v22",
               "s_lshr_b32 s36, s28, 2", "s_lshl_b32 s36, s36, 15", "s_add_u32 s36, s36, 65536", "v_add_u32 v63, s36, v63"]
        rdw = lambda h: [f"ds_read_b64_tr_b16 {v(160+4*s_+2*t,2)}, v63 offset:{(32*(4*h+s_)+4*t)*128}" for s_ in range(4) for t in range(2)]
        e3 += rdw(0)
        e3 += ["s_and_b32 s36, s2, 3", "s_lshl_b32 s36, s36, 1", "s_lshr_b32 s37, s28, 2", "s_add_u32 s36, s36, s37",
               f"s_mul_i32 s36, s36, {2*14336}", "s_lshr_b32 s37, s2, 2", "s_lshl_b32 s37, s37, 8", "s_add_u32 s36, s36, s37",
               "s_and_b32 s37, s28, 3", "s_lshl_b32 s37, s37, 6", "s_add_u32 s36, s36, s37", f"s_add_u32 s36, s36, {WS_PRE}",
               "v_mul_u32_u24 v62, 14336, v18", "v_lshl_add_u32 v62, v21, 4, v62",
               "s_waitcnt lgkmcnt(0)", Need("vm", ["xsel"])]
        e3 += [f"{MF} v[20:23], {v(160+4*s_,4)}, {v(128+4*s_,4)}, {'v[20:23]' if s_ else '0'}" for s_ in range(4)]
        e3 += rdw(1) + ["s_waitcnt lgkmcnt(0)"]
        e3 += [f"{MF} v[20:23], {v(160+4*s_,4)}, {v(144+4*s_,4)}, v[20:23]" for s_ in range(4)]
        e3 += ["s_nop 5", "s_mov_b32 exec_lo, 0x00030003", "s_mov_b32 exec_hi, 0x00030003",
               VM(f"buffer_store_dwordx4 v[20:23], v62, s[24:27], s36 offen{SC}"), "s_mov_b64 exec, -1", "s_nop 3"]
        rt = ["s_mov_b64 s[4:5], s[12:13]", "s_mov_b32 s6, s14", "s_mov_b32 s31, s45", "s_mov_b32 s40, 65536",
              "v_add_u32 v2, s33, v58", "v_mov_b32 v3, v2", "v_mov_b32 v4, v2", "v_mov_b32 v5, v2"]
        return [guard(k, *FF, e3, "ffn")] + rt
    def V0():
        return ["s_add_u32 m0, s33, 65536", "s_add_u32 s36, s45, 32768"] + \
               [VM(f"buffer_load_dwordx4 v2, s[12:15], s36 offen offset:{j*1024}{SC} lds", "v0") for j in range(4)]
    off0 = [f"s_add_u32 s36, s29, {CNT_KV0}", "s_lshl_b32 s36, s36, 7"]
    sig0 = guard(k, ["s_add_u32 s36, s28, s30", "s_cmp_eq_u32 s36, 4"], "s_cbranch_scc0", off0 + signal("s[90:91]", "s36", "v62", "v63"), "fast")
    pol0 = guard(k, *W0, off0 + [f"v_mov_b32 {vZ}, s36", VM(f"global_load_dword {vPOLL}, {vZ}, s[90:91] sc1", "poll")], "w0")
    chk0 = guard(k, *W0, [Need("vm", ["poll"])] + check(k, "s[90:91]", vZ, vPOLL, 1), "w0")
    evs = {"A": {(2, 0): E1(), (2, 1): E2() + [pol0], (3, 0): E3() + [chk0]},
           "B": {(2, 0): E1(), (2, 1): [sig0] + E2(), (3, 0): E3()}}
    v0 = V0()
    out = {}
    for g, cmp_ in (("A", "s_cmp_lt_u32 s28, 4"), ("B", "s_cmp_ge_u32 s28, 4")):
        out[g] = []
        for stage in range(2):
            cs = [(it, evs[g][(it, st_)]) for (it, st_) in sorted(evs[g]) if st_ == stage]
            inner = []
            if g == "B" and stage == 1:
                l = k.newlabel("nv0")
                inner += ["s_cmp_eq_u32 s35, 3", f"s_cbranch_scc0 {l}"] + v0 + [l + ":"]
                cs = cs + [(3, [])]
            elif stage == 1: cs = cs + [(3, [])]
            l = k.newlabel("ng")
            inner += [cmp_, f"s_cbranch_scc0 {l}"] + switch(k, "s35", cs) + [l + ":"]
            def pick(c, g=g, stage=stage):
                r = []
                if g == "B" and stage == 1 and c["it"] == 3: r += v0
                if c["grp"] == g: r += evs[g].get((c["it"], stage), [])
                return r
            out[g].append(Alt(A.ool(k, ["s_cmp_ge_u32 s35, 2"], "s_cbranch_scc1", inner), pick))
    return out["A"], out["B"]

def p2(k, cfg, st):
    evA, evB = p2_events(k, cfg)
    prox, pro2, halves = p2_pieces(k, cfg, evA, evB)
    body = [halves[0], cfg["sth2"].hist(8), halves[1], cfg["sth2"].hist(8, first=False)]
    nq = Need("vm", [("W", 0), "v0", "kvst", "xsel"] + [("x", a, b) for a in range(2) for b in range(4)])
    n0 = Need("vm", [("x", 0, 3)])
    scen = []
    for grp, w0 in (("A", 0), ("A", 1), ("B", 0)):
        for ffn in (0, 1):
            for fast in (0, 1):
                sq = [VM("", ("W", 1))]*4 + [VM("", None)]*(4 if cfg.get("notouch") else 5) + flat([prox, pro2, n0])
                for it in range(4): sq += flat(body, dict(it=it, w0=w0, ffn=ffn, fast=fast, grp=grp))
                scen.append(sq + [nq])
    resolve(scen)
    cfg["qwait"] = nq.n
    st.mark()
    k.e("s_waitcnt vmcnt(9) lgkmcnt(0)")
    p2_setup(k)
    srd(k, 8, 54, 4194304)
    emit(k, prox)
    p2_setup2(k)
    emit(k, pro2)
    kv_pack(k)
    for r in range(64): k.e(f"v_mov_b32 v{A.O_+r}, 0")
    k.e("s_mov_b32 s35, 0")
    emit(k, [n0])
    st.mark()
    k.align(6)
    k.label("L_p2_loop")
    emit(k, body)
    k.e("s_lshr_b32 s50, s50, 8")
    k.e("s_add_u32 s35, s35, 1")
    k.e("s_cmp_lt_u32 s35, 4")
    k.e("s_cbranch_scc1 L_p2_loop")
    st.mark()
```

```python
from common import *
import attn as A
import ffn as F
import oproj as O
from fused_a import *

X32, G = 96, 112
XI, YA = 40, 160
WR4, XF4 = 64, [128, 160]
PRE, FW, HH, DD = 96, 64, 124, 80
LDS_P4 = 65536

def after_q(k, grp):
    srd(k, 16, 54, 16777216, WS_CTX)
    srd(k, 4, 94, 7340032)
    srd(k, 8, 92, 8388608)
    if grp == 0:
        k.e("s_cmp_eq_u32 s28, 0")
        k.e("s_cselect_b32 s42, 1, 63")
    else:
        sig = ["s_lshl_b32 s36, s29, 7", "v_mov_b32 v20, s36", "s_mul_i32 s36, s2, 2341", "s_lshr_b32 s36, s36, 16",
               f"s_add_u32 s36, s36, {CNT_F1}", "s_lshl_b32 s36, s36, 7", "v_mov_b32 v21, s36",
               "v_cmp_eq_u32 vcc, 1, v1", "v_mov_b32 v22, 1", "s_nop 0",
               "v_cndmask_b32 v20, v20, v21, vcc", "s_mov_b64 exec, 3", "global_atomic_add v20, v22, s[90:91]", "s_mov_b64 exec, -1"]
        emit(k, A.ool(k, ["s_cmp_eq_u32 s28, 4"], "s_cbranch_scc1", sig))

def pro_wait(k, grp):
    if grp == 0: return ["s_waitcnt vmcnt(0)"]
    l = k.newlabel("pw")
    return ["s_waitcnt vmcnt(1)", "s_cmp_eq_u32 s28, 4", f"s_cbranch_scc1 {l}", "s_waitcnt vmcnt(0)", l + ":"]

def pro_hook(k, grp):
    t = [x.replace("v16", "v26").replace("v17", "v27").replace("v18", "v28").replace("v19", "v29").replace("v[16:17]", "v[26:27]") for x in touches(k, True)]
    if grp == 0:
        return t + A.ool(k, ["s_cmp_eq_u32 s28, 0"], "s_cbranch_scc1",
                     ["s_lshl_b32 s36, s29, 7", "v_mov_b32 v13, s36", "global_load_dword v14, v13, s[90:91] sc1"])
    return t

def bar_hook(k, grp):
    if grp == 1: return []
    return A.ool(k, ["s_cmp_eq_u32 s40, s42"], "s_cbranch_scc1", check(k, "s[90:91]", "v13", "v14", 8))

def before_tail(k, grp):
    k.e("s_lshr_b32 s38, s2, 4")
    k.e("s_mul_i32 s38, s38, 224")
    k.e("s_and_b32 s39, s2, 15")
    k.e("s_lshl_b32 s39, s39, 7")
    F.wdma_addr(k, 26, "s38", 2048, "s39")
    k.e("s_lshl_b32 s36, s28, 12")
    k.e(f"s_add_u32 s36, s36, {LDS_X}")
    k.e("s_cmp_lt_u32 s28, 7")
    k.e("s_cselect_b32 m0, s36, 0x30000")
    k.e("s_cselect_b32 s6, 7340032, 0")
    for j in range(4): k.e(f"buffer_load_dwordx4 v{26+j}, s[4:7], 0 offen offset:{j*1024} lds")
    k.e("s_lshr_b32 s36, s2, 5")
    k.e(f"s_add_u32 s36, s36, {CNT_F1}")
    k.e("s_lshl_b32 s36, s36, 7")
    k.e("v_mov_b32 v12, s36")
    k.e("global_load_dword v11, v12, s[90:91] sc1")

def gcalc(k, withy, cbs=range(4)):
    for cb in cbs:
        for h in range(2):
            a, b = X32+4*cb+2*h, X32+4*cb+2*h+1
            ga, gb = G+4*cb+2*h, G+4*cb+2*h+1
            k.e(f"v_lshlrev_b32 v{a}, 16, v{XI+2*cb+h}")
            k.e(f"v_and_b32 v{b}, 0xffff0000, v{XI+2*cb+h}")
            k.e(f"v_sub_f32 v{ga}, v{a}, v{XI+8}")
            k.e(f"v_sub_f32 v{gb}, v{b}, v{XI+8}")
            def rnd2():
                k.e(f"v_cvt_pk_bf16_f32 v23, v{ga}, v{gb}")
                k.e(f"v_lshlrev_b32 v{ga}, 16, v23")
                k.e(f"v_and_b32 v{gb}, 0xffff0000, v23")
            rnd2()
            k.e(f"v_mul_f32 v{ga}, v{ga}, v{XI+9}")
            k.e(f"v_mul_f32 v{gb}, v{gb}, v{XI+9}")
            rnd2()
            if withy:
                k.e(f"v_add_f32 v{ga}, v{ga}, v{YA+4*cb+2*h}")
                k.e(f"v_add_f32 v{gb}, v{gb}, v{YA+4*cb+2*h+1}")
                rnd2()
            k.e(f"v_mul_f32 v24, 0xbfb8aa3b, v{ga}")
            k.e(f"v_mul_f32 v25, 0xbfb8aa3b, v{gb}")
            k.e("v_exp_f32 v24, v24")
            k.e("v_exp_f32 v25, v25")
            k.e("s_nop 0")
            k.e("v_add_f32 v24, 1.0, v24")
            k.e("v_add_f32 v25, 1.0, v25")
            k.e("v_rcp_f32 v24, v24")
            k.e("v_rcp_f32 v25, v25")
            k.e("s_nop 0")
            k.e(f"v_mul_f32 v{ga}, v{ga}, v24")
            k.e(f"v_mul_f32 v{gb}, v{gb}, v25")
            rnd2()

def ffn2_math(k):
    F.wrd_addr(k, "v26", "v27", "v28")
    k.e("s_lshl_b32 s36, s28, 12")
    k.e(f"s_add_u32 s36, s36, {LDS_X}")
    k.e("v_add_u32 v26, s36, v26")
    for cb in range(4):
        k.e(f"v_xor_b32 v28, {cb}, v27")
        k.e("v_lshl_add_u32 v28, v28, 5, v26")
        for t in range(2):
            k.e(f"ds_read_b64_tr_b16 {v(FW+4*cb+2*t,2)}, v28 offset:{4*t*128}")
    for m in ("row_ror:4", "row_ror:8"):
        for e in range(8): k.e(f"v_add_f32_dpp v{PRE+e}, v{PRE+e}, v{PRE+e} {m} row_mask:0xf bank_mask:0xf")
    for e in range(0, 8, 2):
        k.e(f"v_cvt_pk_bf16_f32 v29, v{PRE+e}, v{PRE+e+1}")
        k.e(f"v_lshlrev_b32 v{PRE+e}, 16, v29")
        k.e(f"v_and_b32 v{PRE+e+1}, 0xffff0000, v29")
    for e in range(8): k.e(f"v_mul_f32 v{PRE+8+e}, 0xbfb8aa3b, v{PRE+e}")
    for e in range(8): k.e(f"v_exp_f32 v{PRE+8+e}, v{PRE+8+e}")
    for e in range(8): k.e(f"v_add_f32 v{PRE+8+e}, 1.0, v{PRE+8+e}")
    for e in range(8): k.e(f"v_rcp_f32 v{PRE+8+e}, v{PRE+8+e}")
    for e in range(8): k.e(f"v_mul_f32 v{PRE+8+e}, v{PRE+e}, v{PRE+8+e}")
    for e in range(0, 8, 2):
        k.e(f"v_cvt_pk_bf16_f32 v29, v{PRE+8+e}, v{PRE+8+e+1}")
        k.e(f"v_lshlrev_b32 v{PRE+8+e}, 16, v29")
        k.e(f"v_and_b32 v{PRE+8+e+1}, 0xffff0000, v29")
    for e in range(8): k.e(f"v_mul_f32_dpp v{PRE+e}, v{PRE+e}, v{PRE+8+e} quad_perm:[2,3,0,1] row_mask:0xf bank_mask:0xf")
    for q in range(4): k.e(f"v_cvt_pk_bf16_f32 v{HH+q}, v{PRE+2*q}, v{PRE+2*q+1}")
    k.e("s_waitcnt lgkmcnt(0)")
    k.e("v_lshl_add_u32 v28, v1, 4, s36")
    for cb in range(4): k.e(f"{MF} {v(DD+4*cb,4)}, {v(FW+4*cb,4)}, {v(HH,4)}, 0")
    k.e("s_nop 7")
    for cb in range(4): k.e(f"ds_write_b128 v28, {v(DD+4*cb,4)} offset:{cb*1024}")

def ffn2_reduce():
    L = ["s_lshl_b32 s36, s28, 10", f"s_add_u32 s36, s36, {LDS_X}", "v_lshl_add_u32 v28, v1, 4, s36"]
    L += [f"ds_read_b128 {v(PRE+4*w,4)}, v28 offset:{w*4096}" for w in range(7)]
    L += ["s_lshr_b32 s36, s2, 4", "s_lshl_b32 s36, s36, 13", "s_and_b32 s37, s2, 15", "s_lshl_b32 s37, s37, 8", "s_add_u32 s36, s36, s37",
          "s_lshl_b32 s37, s28, 6", "s_add_u32 s36, s36, s37", f"s_add_u32 s36, s36, {WS_YP}",
          "v_and_b32 v28, 1, v1", "v_lshlrev_b32 v28, 12, v28", "v_lshl_add_u32 v28, v19, 4, v28", "s_waitcnt lgkmcnt(0)"]
    for w in range(1, 7):
        L += [f"v_add_f32 v{DD+e if w == 6 else PRE+e}, v{PRE+e}, v{PRE+4*w+e}" for e in range(4)]
    L += ["s_mov_b32 exec_lo, 0x00030003", "s_mov_b32 exec_hi, 0x00030003",
          VM(f"buffer_store_dwordx4 {v(DD,4)}, v28, s[24:27], s36 offen{SC}", "yp"), "s_mov_b64 exec, -1"]
    return L

def p4_setup(k):
    k.e("s_and_b32 s63, s30, 1")
    k.e("s_bfe_u32 s36, s2, 0x10002")
    k.e("s_lshl_b32 s36, s36, 3")
    k.e("s_add_u32 s30, s30, s36")
    k.e("s_and_b32 s29, s29, 15")
    k.e("s_and_b32 s36, s28, 3")
    k.e("s_lshl_b32 s37, s29, 2")
    k.e("s_add_u32 s36, s36, s37")
    k.e("s_lshl_b32 s36, s36, 18")
    k.e("s_lshr_b32 s37, s28, 2")
    k.e("s_lshl_b32 s37, s37, 12")
    k.e("s_add_u32 s36, s36, s37")
    k.e("s_lshl_b32 s37, s63, 16")
    k.e("s_add_u32 s36, s36, s37")
    k.e("v_lshl_add_u32 v2, v1, 4, s36")
    k.e(f"v_add_u32 v3, {1<<17}, v2")
    k.e("v_lshrrev_b32 v19, 4, v1")
    k.e("s_lshl_b32 s36, s28, 5")
    k.e("s_lshl_b32 s37, s63, 11")
    k.e("s_add_u32 s36, s36, s37")
    k.e("v_add_u32 v18, s36, v19")
    k.e("v_lshlrev_b32 v18, 11, v18")
    k.e("s_lshr_b32 s36, s30, 1")
    k.e("s_lshl_b32 s36, s36, 8")
    k.e("v_add_u32 v18, s36, v18")
    k.e("v_lshlrev_b32 v20, 1, v19")
    k.e("v_and_b32 v21, 15, v1")
    k.e("v_xor_b32 v20, v20, v21")
    k.e("v_lshl_add_u32 v6, v20, 4, v18")
    k.e("v_xor_b32 v20, 8, v20")
    k.e("v_lshl_add_u32 v7, v20, 4, v18")
    k.e(f"v_add_u32 v7, {8192-1024}, v7")
    k.e(f"v_add_u32 v8, {2*(8192-1024)}, v6")
    k.e(f"v_add_u32 v9, {2*(8192-1024)}, v7")
    k.e("s_lshl_b32 s33, s28, 13")
    k.e("s_add_u32 s36, s2, 1")
    k.e("s_and_b32 s62, s36, 3")
    k.e("s_lshl_b32 s31, s62, 14")
    k.e("s_lshl_b32 s32, s62, 20")

def p4_setup2(k):
    k.e("v_bfe_u32 v20, v1, 2, 2")
    k.e("v_lshl_add_u32 v18, v19, 2, v20")
    k.e("v_and_b32 v20, 7, v18")
    k.e("v_lshlrev_b32 v18, 8, v18")
    k.e("s_lshr_b32 s36, s28, 2")
    k.e("s_lshl_b32 s36, s36, 15")
    k.e("s_add_u32 s36, s36, 65536")
    k.e("v_add_u32 v18, s36, v18")
    k.e("v_and_b32 v21, 3, v1")
    k.e("v_lshl_add_u32 v18, v21, 3, v18")
    for cb in range(8):
        k.e(f"v_xor_b32 v21, {cb}, v20")
        k.e(f"v_lshl_add_u32 v{50+cb}, v21, 5, v18")
    for r in range(64): k.e(f"v_mov_b32 v{A.O_+r}, 0")

def ctx_ready(k, n):
    l, le = k.newlabel("cspin"), k.newlabel("cspinx")
    return ["s_mov_b32 s61, 0x40000", l + ":", "s_sub_u32 s61, s61, 1", f"s_cbranch_scc1 {le}",
            "global_load_dword v31, v30, s[90:91] sc1", "s_waitcnt vmcnt(0)", "v_cmp_le_u32 vcc, 4, v31", "s_nop 0",
            "s_and_b32 s60, vcc_lo, 15", f"s_and_b32 s36, s60, {(1<<n)-1}", f"s_cmp_eq_u32 s36, {(1<<n)-1}", f"s_cbranch_scc1 {le}",
            "s_sleep 6", f"s_branch {l}", le + ":"]

def p4_pieces(k, cfg):
    def wdma(stage):
        L = []
        for h in range(2):
            so = "s32" if h == 0 else "s37"
            L.append([f"s_add_u32 m0, s34, {(stage^1)*65536 + h*4096}"] + ([] if h == 0 else ["s_add_u32 s37, s32, 32768"]))
            L += [[VM(f"buffer_load_dwordx4 v{6+j}, s[8:11], {so} offen offset:{j*1024} lds", ("W", stage))] for j in range(4)]
        L.append([f"s_add_u32 s32, s32, {256*2048}", "s_and_b32 s32, s32, 0x3fffff"])
        return L
    def xld(xs, s_):
        return [VM(f"buffer_load_dwordx4 {v(XF4[xs]+(s_*2+rb)*4,4)}, v{2+rb}, s[4:7], s31 offen offset:{s_*1024}{SC}", ("x", xs, s_)) for rb in range(2)]
    def wrd(s_, cb):
        return [DS(f"ds_read_b64_tr_b16 {v(WR4+4*cb+2*t,2)}, v{50+cb} offset:{(32*s_+16*t)*256}", ("w", cb)) for t in range(2)]
    xadv = ["s_add_u32 s31, s31, 8192", "s_and_b32 s31, s31, 0xffff"]
    nopw = lambda L: [g + (["s_nop 0"] if i == 0 else []) for i, g in enumerate(L)]
    prow0 = ["s_mov_b32 s34, s33"] + nopw(wdma(0)) + nopw(wdma(1))[:-1] + ["s_mov_b32 s10, 0", "s_mov_b32 s34, 0x30000"]
    prox = [xld(0, s_) for s_ in range(4)] + xadv
    D = 6
    pro2 = [wrd(0, cb) for cb in range(D)] + ["s_mov_b32 s35, 0", Need("vm", [("x", 0, int(cfg.get("xw", 1)))])] + [xld(1, s_) for s_ in range(3)]
    body = []
    for stage in range(2):
        M, fills, pre = [], [[] for _ in range(64)], {}
        for s_ in range(4):
            for cb in range(8):
                for rb in range(2):
                    o = A.Oreg(rb, cb)
                    M.append(f"{MF} {v(o,4)}, {v(WR4+4*cb,4)}, {v(XF4[stage]+(s_*2+rb)*4,4)}, {v(o,4)}")
        for p in range(32):
            if p % 2 == 0: pre[2*p] = [Need("ds", [("w", p % 8), ("w", (p+1) % 8)])]
            if p % 8 == 0: pre[2*p] += [Need("vm", [("x", stage, p // 8)])]
            f = p + D
            if f < 32:
                r = wrd(f // 8, f % 8)
                fills[2*p] += [r[0]]; fills[2*p+1] += [r[1]]
                if f >= 24: fills[2*p+1] += [f"v_xor_b32 v{50+f%8}, 65536, v{50+f%8}"]
        ev = []
        if stage == 1:
            chk = switch(k, "s35", [(0, ctx_ready(k, 3)), (1, ctx_ready(k, 4))])
            ev = [Alt(A.ool(k, ["s_cmp_lt_u32 s60, 15"], "s_cbranch_scc1", chk), lambda c: [])]
        fills[2*27+1] += ev + ["s_waitcnt lgkmcnt(0)", Need("vm", [("W", stage ^ 1)]), "s_barrier"]
        nx = {28: [0, 1], 29: [2, 3], 30: [4], 31: [5]}
        for p, fl in nx.items():
            for i, f in enumerate(fl): fills[2*p+i] += wrd(0, f)
        wd = wdma(stage ^ 1)
        wpos = [0, 1, 4, 7, 10, 12, 13, 16, 19, 22, 23]
        for i, g in enumerate(wd): fills[wpos[i]] += g
        for s_ in range(4):
            xl = xld(stage ^ 1, 3) if s_ == 0 else xld(stage, s_-1)
            base = [2, 25, 34, 50][s_]
            fills[base] += [xl[0]]; fills[base+4 if s_ else 5] += [xl[1]]
            if s_ == 0:
                fills[6] += xadv
                if stage == 0: fills[8] += ["s_cmp_lt_u32 s35, 3", "s_cselect_b32 s6, 16777216, 0"]
        if stage == 0:
            fills[62] += ["s_cmp_lt_u32 s35, 3", "s_cselect_b32 s10, 8388608, 0", "s_cselect_b32 s34, s33, 0x20000"]
        body += weave(M, fills, pre)
    return prow0, prox, pro2, body

def routed(k):
    for r in range(16): k.e(f"v_mov_b32 v{YA+r}, 0")
    k.e(f"s_add_u32 s36, s30, {CNT_F2}")
    k.e("s_lshl_b32 s36, s36, 7")
    k.e("v_mov_b32 v22, s36")
    emit(k, spin(k, "s[90:91]", "v22", "v23", 16, 1))
    for t in range(2):
        lsk = k.newlabel("noy")
        k.e(f"s_sub_u32 s36, s{56+t}, s38")
        k.e("s_cmp_lt_u32 s36, 16")
        k.e(f"s_cbranch_scc0 {lsk}")
        k.e("s_lshl_b32 s37, s30, 8")
        k.e(f"s_add_u32 s37, s37, {WS_YP + t*4096}")
        k.e("v_and_b32 v22, 15, v1")
        k.e("v_lshlrev_b32 v22, 13, v22")
        k.e("v_lshl_add_u32 v22, v19, 4, v22")
        for cb in range(4):
            k.e(f"buffer_load_dwordx4 {v(64+4*cb,4)}, v22, s[24:27], s37 offen offset:{cb*64}{SC}")
        k.e(f"s_and_b32 s36, s{58+t}, 0xffff0000")
        k.e("s_cmp_lt_i32 s36, 0")
        k.e("s_cselect_b32 s37, 0x80000000, -1")
        k.e("s_xor_b32 s36, s36, s37")
        k.e("s_and_b32 s36, s36, 0xffff0000")
        k.e("v_mov_b32 v24, s36")
        k.e("v_mul_f32 v24, 0xbfb8aa3b, v24")
        k.e("v_exp_f32 v24, v24")
        k.e("s_nop 0")
        k.e("v_add_f32 v24, 1.0, v24")
        k.e("v_rcp_f32 v24, v24")
        k.e("s_nop 0")
        rbf(k, "v24")
        k.e("s_waitcnt vmcnt(0)")
        for m in ["quad_perm:[1,0,3,2]", "quad_perm:[2,3,0,1]", "row_half_mirror", "row_mirror"]:
            for r in range(16):
                k.e(f"v_add_f32_dpp v{64+r}, v{64+r}, v{64+r} {m} row_mask:0xf bank_mask:0xf")
        k.e(f"v_cmp_eq_u32 vcc, s{56+t}, v14")
        for r in range(16):
            rbf(k, f"v{64+r}")
            k.e(f"v_mul_f32 v{64+r}, v24, v{64+r}")
            rbf(k, f"v{64+r}")
            k.e(f"v_cndmask_b32 v{YA+r}, v{YA+r}, v{64+r}, vcc")
        k.label(lsk)
    gcalc(k, True)

def p4_epilogue(k, cfg, kh):
    o = 1 - kh
    for cb in range(8): k.e(f"ds_write_b128 v20, {v(A.Oreg(o,cb),4)} offset:{cb*1024}")
    k.e("s_waitcnt lgkmcnt(0)")
    k.e("s_barrier")
    for cb in range(8): k.e(f"ds_read_b128 {v(128+4*cb,4)}, v21 offset:{cb*1024}")
    for cb in range(8):
        k.e(f"s_waitcnt lgkmcnt({7-cb})")
        for e in range(4): k.e(f"v_add_f32 v{128+4*cb+e}, v{128+4*cb+e}, v{A.Oreg(kh,cb)+e}")

def p4_final(k, cfg):
    l1 = k.newlabel("p1")
    k.e("s_cmp_eq_u32 s63, 0")
    k.e(f"s_cbranch_scc1 {l1}")
    for r in range(16): k.e(f"v_swap_b32 v{128+r}, v{144+r}")
    k.label(l1)
    k.e("s_lshl_b32 s36, s2, 15")
    k.e("s_lshl_b32 s37, s28, 12")
    k.e("s_add_u32 s36, s36, s37")
    k.e(f"s_add_u32 s36, s36, {WS_EX}")
    k.e(f"s_xor_b32 s39, s36, {32 << 15}")
    k.e("v_lshlrev_b32 v22, 4, v1")
    for cb in range(4): k.e(f"buffer_store_dwordx4 {v(144+4*cb,4)}, v22, s[24:27], s36 offen offset:{cb*1024}{SC}")
    k.e(f"s_add_u32 s36, s2, {CNT_EX}")
    k.e("s_lshl_b32 s36, s36, 7")
    k.e(f"s_xor_b32 s37, s36, {32 << 7}")
    k.e("v_mov_b32 v30, s37")
    k.e("s_mov_b32 s40, s36")
    gcalc(k, False, range(2))
    k.e("s_waitcnt vmcnt(0)")
    k.e(signal("s[90:91]", "s40", "v26", "v27"))
    gcalc(k, False, range(2, 4))
    kr = K(k.name + "_rt"); routed(kr)
    emit(k, A.ool(k, ["s_sub_u32 s36, s56, s38", "s_sub_u32 s37, s57, s38", "s_min_u32 s36, s36, s37", "s_cmp_lt_u32 s36, 16"],
                  "s_cbranch_scc1", [x.strip() for x in kr.lines]))
    emit(k, A.ool(k, ["s_cmp_eq_u32 s28, 7"], "s_cbranch_scc1", spin(k, "s[90:91]", "v30", "v31", 8, 1)))
    k.e("s_barrier")
    k.e("v_lshlrev_b32 v22, 4, v1")
    for cb in range(4): k.e(f"buffer_load_dwordx4 {v(64+4*cb,4)}, v22, s[24:27], s39 offen offset:{cb*1024}{SC}")
    for cb in range(4):
        k.e(f"s_waitcnt vmcnt(3)")
        for h in range(2):
            a, b = 128+4*cb+2*h, 128+4*cb+2*h+1
            k.e(f"v_add_f32 v{a}, v{a}, v{64+4*cb+2*h}")
            k.e(f"v_add_f32 v{b}, v{b}, v{64+4*cb+2*h+1}")
            def rnd2():
                k.e(f"v_cvt_pk_bf16_f32 v23, v{a}, v{b}")
                k.e(f"v_lshlrev_b32 v{a}, 16, v23")
                k.e(f"v_and_b32 v{b}, 0xffff0000, v23")
            rnd2()
            k.e(f"v_mul_f32 v{a}, v{a}, v{G+4*cb+2*h}")
            k.e(f"v_mul_f32 v{b}, v{b}, v{G+4*cb+2*h+1}")
            rnd2()
            k.e(f"v_add_f32 v{a}, v{a}, v{X32+4*cb+2*h}")
            k.e(f"v_add_f32 v{b}, v{b}, v{X32+4*cb+2*h+1}")
            k.e(f"v_cvt_pk_bf16_f32 v{80+2*cb+h}, v{a}, v{b}")
        k.e(f"buffer_store_dwordx2 {v(80+2*cb,2)}, v15, s[20:23], 0 offen offset:{cb*32}")

def p4(k, cfg, st):
    prow0, prox, pro2, body = p4_pieces(k, cfg)
    kx = K("tmp"); xl = O.p4_xloads(kx)
    xl[-1].text += SC
    prel = ["s_lshr_b32 s36, s2, 4", "s_mul_i32 s36, s36, 224", "s_min_u32 s37, s28, 6", "s_lshl_b32 s37, s37, 5", "s_add_u32 s36, s36, s37",
            "s_lshl_b32 s36, s36, 2", f"s_add_u32 s36, s36, {WS_PRE}", "v_and_b32 v26, 15, v1", "v_mul_u32_u24 v26, 14336, v26",
            "v_lshl_add_u32 v26, v19, 5, v26"]
    prel += [VM(f"buffer_load_dwordx4 {v(PRE+4*h,4)}, v26, s[24:27], s36 offen offset:{16*h}{SC}", "pre") for h in range(2)]
    n_ctx = Need("vm", ["ctxst"]); n_pre = Need("vm", ["pre"]); n_xi = Need("vm", ["xi"])
    sig = ["v_mov_b32 v26, s40", "v_mov_b32 v27, s41", "v_cmp_eq_u32 vcc, 1, v1", "v_mov_b32 v28, 1", "s_nop 0",
           "v_cndmask_b32 v26, v26, v27, vcc", "s_mov_b64 exec, 3", "global_atomic_add v26, v28, s[90:91]", "s_mov_b64 exec, -1"]
    sigA = Alt(A.ool(k, ["s_cmp_eq_u32 s28, 0"], "s_cbranch_scc1", sig), lambda c: sig if c["w0"] else [])
    red = ffn2_reduce()
    redA = guard(k, ["s_cmp_lt_u32 s28, 4"], "s_cbranch_scc0", red, "lo")
    f2 = ["s_and_b32 s36, s2, 15", f"s_add_u32 s36, s36, {CNT_F2}", "s_lshl_b32 s36, s36, 7"] + signal("s[90:91]", "s36", "v26", "v27")
    f2A = Alt(A.ool(k, ["s_lshl_b32 s36, s28, 3", "s_add_u32 s36, s36, s35", "s_cmp_eq_u32 s36, 1"], "s_cbranch_scc1", f2),
              lambda c: f2 if c["w0"] and c["it"] == 1 else [])
    n_w0 = Need("vm", [("W", 0)])
    scen = []
    for w0, lo in ((1, 1), (0, 1), (0, 0)):
        c = dict(w0=w0, lo=lo, it=0)
        sq = flat([VM("", "ctxst"), prel, n_ctx, sigA, prow0, xl, n_pre, n_w0, prox, redA, pro2], c)
        for it in range(3): sq += flat([f2A, body], dict(c, it=it))
        scen.append(sq)
    resolve(scen)
    k.e("s_and_b32 s36, s2, 7")
    k.e("s_lshl_b32 s36, s36, 2")
    k.e(f"s_sub_u32 s40, {15+CNT_CTX}, s30")
    k.e("s_lshl_b32 s40, s40, 7")
    k.e("s_add_u32 s40, s40, s36")
    k.e(f"s_add_u32 s41, s30, {CNT_CTX}")
    k.e("s_lshl_b32 s41, s41, 7")
    k.e("s_add_u32 s41, s41, s36")
    k.e("v_mov_b32 v30, v11")
    k.e("v_mov_b32 v31, v12")
    p4_setup(k)
    emit(k, check(k, "s[90:91]", "v31", "v30", 28))
    emit(k, prel)
    srd(k, 4, 54, 16777216, WS_CTX)
    srd(k, 16, 96, 4194304)
    srd(k, 20, 98, 4194304)
    k.lines += kx.lines
    emit(k, [n_ctx, "s_barrier", sigA])
    st.mark()
    emit(k, prow0)
    emit(k, xl)
    p4_setup2(k)
    k.e("s_mov_b32 s60, 15")
    l7, lj = k.newlabel("w7"), k.newlabel("w7j")
    k.e("s_cmp_eq_u32 s28, 7")
    k.e(f"s_cbranch_scc1 {l7}")
    emit(k, [n_pre])
    ffn2_math(k)
    k.e(f"s_branch {lj}")
    k.label(l7)
    k.e("v_add_u32 v30, s62, v1")
    k.e("v_and_b32 v30, 3, v30")
    k.e(f"s_add_u32 s36, s29, {CNT_CTX}")
    k.e("s_lshl_b32 s36, s36, 7")
    k.e("s_lshl_b32 s37, s63, 4")
    k.e("s_add_u32 s36, s36, s37")
    k.e("v_lshl_add_u32 v30, v30, 2, s36")
    emit(k, ctx_ready(k, int(cfg.get("rdy0", 2))))
    k.label(lj)
    emit(k, [n_w0])
    k.e("s_waitcnt lgkmcnt(0)")
    st.mark()
    k.e("s_barrier")
    st.mark()
    emit(k, prox)
    emit(k, [redA])
    k.e("s_lshl_b32 s36, s28, 13")
    k.e("s_add_u32 s36, s36, 65536")
    k.e("v_lshl_add_u32 v20, v1, 4, s36")
    k.e("v_xor_b32 v21, 32768, v20")
    emit(k, pro2)
    st.mark()
    k.align(6)
    k.label("L_p4_loop")
    emit(k, [f2A, body])
    k.e("s_add_u32 s35, s35, 1")
    k.e("s_cmp_lt_u32 s35, 4")
    k.e("s_cbranch_scc1 L_p4_loop")
    st.mark()
    k.e("s_waitcnt vmcnt(0) lgkmcnt(0)")
    k.e("s_nop 3")
    k.e("s_cmp_lt_u32 s28, 4")
    k.e("s_cbranch_scc0 L_p4_e1")
    p4_epilogue(k, cfg, 0)
    k.e("s_branch L_p4_done")
    k.label("L_p4_e1")
    p4_epilogue(k, cfg, 1)
    k.label("L_p4_done")
    st.mark()
    p4_final(k, cfg)

def gen_fused(cfg, name):
    cfg = dict(cfg, stflag=SC, pro_hook=pro_hook, pro_wait=pro_wait, bar_hook=bar_hook)
    k = K(name)
    k.e("s_cmp_ge_u32 s2, 256")
    k.e("s_cbranch_scc1 L_end")
    stq = cfg.get("stamp", "")
    st = Stamps(k, bool(stq), kid=0)
    off = Stamps(k, False)
    st.mark()
    cfg["sth1"] = st if "a" in stq else off
    cfg["sth2"] = st if "b" in stq else off
    p1(k, cfg, st if "1" in stq else off)
    if "b" in stq: st.mark()
    p2(k, cfg, st if "2" in stq else off)
    k.e("s_load_dwordx2 s[92:93], s[0:1], 40")
    k.e("s_load_dwordx2 s[94:95], s[0:1], 80")
    k.e("s_load_dwordx2 s[96:97], s[0:1], 0")
    k.e("s_load_dwordx2 s[98:99], s[0:1], 88")
    s3 = st if "3" in stq else off
    k.e("s_cmp_lt_u32 s28, 4")
    k.e("s_cbranch_scc0 L_grp1")
    A.gen_p3(k, cfg, 0, s3, after_q, before_tail)
    k.e("s_branch L_p3_done")
    A.flush_ool(k)
    k.label("L_grp1")
    A.gen_p3(k, cfg, 1, s3, after_q, before_tail)
    k.e("s_branch L_p3_done")
    A.flush_ool(k)
    k.label("L_p3_done")
    st.mark()
    k.e("s_waitcnt vmcnt(4)")
    p4(k, cfg, st if "4" in stq else off)
    st.dump(54, "s28")
    if cfg.get("stdbg"):
        k.e("s_lshl_b32 s36, s28, 8"); k.e("s_add_u32 s36, s36, s2")
        k.e(f"s_cmp_eq_u32 s36, {cfg['stdbg']}"); k.e("s_cbranch_scc0 L_end")
        k.e("v_mov_b32 v2, 0"); k.e("s_mov_b64 exec, 1")
        for i in range(1, st.n):
            k.e(f"s_sub_u32 s36, s{st.base+2*i+1}, s{st.base+1}")
            k.e("v_mov_b32 v3, s36")
            k.e(f"global_store_dword v2, v3, s[88:89] offset:{4*i}")
    k.e("s_endpgm")
    A.flush_ool(k)
    k.label("L_end")
    return wrap(k, 256)
```

```python
from common import *

O_  = 192
Q_  = 128
QS_ = 160
S_  = 96
RG_ = 64
P_  = 48
NM_ = 40
L_  = 38
vKr, vVr, vD, vNx, vMk, vD2, vL16 = "v2", "v3", "v4", "v5", "v18", "v6", "v7"
LS_ = 8
T_  = 20
LDS_W = 98304
LDS_X = 131072
CSCALE = 0x3e0293ee
NEGBIG = 0xf149f2ca

def Oreg(qb, db): return O_ + (qb*8+db)*4
def Sreg(buf, qb, kb): return S_ + buf*16 + (qb*2+kb)*4
def Preg(buf, qb): return P_ + buf*8 + qb*4

def p2_setup(k):
    k.e("s_and_b32 s36, s28, 3")
    k.e("s_sub_u32 s37, 15, s30")
    k.e("s_cmp_lt_u32 s28, 4")
    k.e("s_cselect_b32 s37, s37, s30")
    k.e("s_lshl_b32 s37, s37, 2")
    k.e("s_add_u32 s37, s37, s36")
    k.e("s_lshl_b32 s37, s37, 16")
    k.e("v_lshl_add_u32 v2, v1, 4, s37")
    k.e("v_add_u32 v3, 32768, v2")
    k.e("v_lshrrev_b32 v18, 4, v1")
    k.e("s_lshl_b32 s37, s28, 4")
    k.e("v_add_u32 v19, s37, v18")
    k.e("v_lshlrev_b32 v19, 13, v19")
    k.e("s_lshl_b32 s37, s29, 8")
    k.e("v_add_u32 v19, s37, v19")
    k.e("v_and_b32 v20, 15, v1")
    k.e("v_lshlrev_b32 v21, 1, v18")
    k.e("v_xor_b32 v21, v20, v21")
    k.e("v_lshl_add_u32 v6, v21, 4, v19")
    k.e(f"v_add_u32 v7, {32768-1024}, v6")
    k.e("v_xor_b32 v21, 8, v21")
    k.e("v_lshl_add_u32 v8, v21, 4, v19")
    k.e(f"v_add_u32 v8, {2*(32768-1024)}, v8")
    k.e(f"v_add_u32 v9, {32768-1024}, v8")
    k.e("s_lshl_b32 s33, s28, 12")
    k.e(f"s_add_u32 s33, s33, {LDS_W}")
    k.e("s_mov_b32 s31, 0")
    k.e("s_mov_b32 s32, 0")

def p2_setup2(k):
    k.e("v_lshrrev_b32 v20, 2, v20")
    k.e("v_lshl_add_u32 v19, v18, 3, v20")
    k.e("v_lshlrev_b32 v19, 8, v19")
    k.e(f"v_add_u32 v19, {LDS_W}, v19")
    k.e("v_and_b32 v21, 3, v1")
    k.e("v_lshl_add_u32 v19, v21, 3, v19")
    k.e("v_and_b32 v21, 1, v18")
    k.e("v_lshl_add_u32 v20, v21, 2, v20")
    for db in range(8):
        k.e(f"v_xor_b32 v21, {db}, v20")
        k.e(f"v_lshl_add_u32 v{10+db}, v21, 5, v19")
    k.e("s_lshl_b32 s43, s28, 12")
    k.e("v_lshl_add_u32 v4, v1, 4, s43")
    k.e("s_add_u32 s44, s43, 65536")
    k.e("s_lshl_b32 s45, s29, 20")
    for r in range(64):
        k.e(f"v_mov_b32 v{O_+r}, 0")

def p2_pieces(cfg):
    WF = [64, 96]; XF = [128, 160]
    def wdma(stage):
        return [f"s_add_u32 m0, s34, {stage*32768}"] , [VM(f"buffer_load_dwordx4 v{6+j}, s[8:11], s32 offen offset:{j*1024} lds", ("W", stage)) for j in range(4)]
    def xld(xs, s_):
        return [VM(f"buffer_load_dwordx4 {v(XF[xs]+(s_*2+rb)*4,4)}, v{2+rb}, s[4:7], s31 offen offset:{s_*1024}", ("x", xs, s_)) for rb in range(2)]
    def wrd(stage, s_, fs):
        return [DS(f"ds_read_b64_tr_b16 {v(WF[fs]+4*db+2*t,2)}, v{10+db} offset:{stage*32768+(32*s_+4*t)*256}", ("w", fs)) for db in range(8) for t in range(2)]
    def mf(fs, xs, s_):
        return [f"{MF} {v(Oreg(rb,db),4)}, {v(WF[fs]+4*db,4)}, {v(XF[xs]+(s_*2+rb)*4,4)}, {v(Oreg(rb,db),4)}" for db in range(8) for rb in range(2)]
    pro = ["s_mov_b32 s34, s33"]
    for t in range(2):
        m, d = wdma(t)
        pro += m + ["s_nop 0"] + d + [f"s_add_u32 s32, s32, {128*8192}"]
        for s_ in range(4 if t == 0 else 3): pro += xld(t, s_)
        if t == 0: pro += ["s_add_u32 s31, s31, 4096"]
    pro2 = [Need("vm", [("W", 0)]), "s_barrier"] + wrd(0, 0, 0) + ["s_mov_b32 s35, 0"]
    kvpre = ["s_mov_b32 m0, s43", "s_add_u32 s46, s45, 65536"]
    kvpre += [VM(f"buffer_load_dwordx4 {vD}, s[12:15], s45 offen offset:{j*1024} lds", "kv") for j in range(4)]
    kvpre += ["s_add_u32 m0, s43, 32768", "s_add_u32 s47, s45, 32768"]
    kvpre += [VM(f"buffer_load_dwordx4 {vD}, s[12:15], s46 offen offset:{j*1024} lds", "kv") for j in range(4)]
    kvpre += ["s_mov_b32 m0, s44", "s_nop 0"]
    kvpre += [VM(f"buffer_load_dwordx4 {vD}, s[12:15], s47 offen offset:{j*1024} lds", "kv") for j in range(4)]
    body = []
    for stage in range(2):
        for s_ in range(4):
            fills = [[] for _ in range(16)]
            if s_ < 3:
                body += [Need("ds", [("w", s_ & 1)])]
                rd = wrd(stage, s_+1, (s_+1) & 1)
            else:
                body += [Need("ds", [("w", 1)]), Need("vm", [("W", stage ^ 1)]), "s_barrier"]
                rd = wrd(stage ^ 1, 0, 0)
            body += [Need("vm", [("x", stage, s_)])]
            for g in range(8): fills[g] += rd[2*g:2*g+2]
            if s_ == 0:
                xl = xld(stage ^ 1, 3)
                fills[8] += [xl[0]]; fills[9] += [xl[1], "s_add_u32 s31, s31, 4096"]
                if stage == 0:
                    fills[10] += ["s_cmp_lt_u32 s35, 3", "s_cselect_b32 s6, 4194304, 0", "s_cselect_b32 s10, 8388608, 0", "s_cselect_b32 s34, s33, 0x30000"]
            else:
                xl = xld(stage, s_-1)
                fills[8] += [xl[0]]; fills[9] += [xl[1]]
            if s_ == 3:
                m, d = wdma(stage)
                fills[9] += m
                for j in range(4): fills[10+j] += [d[j]]
                fills[14] += [f"s_add_u32 s32, s32, {128*8192}"]
            body += weave(mf(s_ & 1, stage, s_), fills)
    return pro, pro2, kvpre, body

def q_pack(k, grp, qwait=0):
    k.e(f"s_mov_b32 s36, {CSCALE}")
    k.e("s_and_b32 s37, s28, 3")
    k.e("s_lshl_b32 s37, s37, 13")
    k.e(f"v_lshlrev_b32 {vL16}, 4, v1")
    k.e(f"v_add_u32 {vD}, s37, {vL16}")
    k.e(f"v_add_u32 {vD2}, 4096, {vD}")
    k.e(f"v_add_u32 v19, {LDS_X}, {vD}")
    k.e("s_mov_b32 s43, s37")
    k.e("s_add_u32 s44, s37, 98304")
    k.e(f"s_waitcnt vmcnt({qwait}) lgkmcnt(0)")
    for f in range(8):
        a = O_ + 8*f
        for e in range(8): k.e(f"v_mul_f32 v{a+e}, s36, v{a+e}")
        for q in range(4): k.e(f"v_cvt_pk_bf16_f32 v{Q_+4*f+q}, v{a+2*q}, v{a+2*q+1}")
        if grp == 0: k.e(f"ds_write_b128 v19, {v(Q_+4*f,4)} offset:{f*1024}")
    k.e(f"v_mov_b32 {vKr}, {vL16}")
    k.e("v_and_b32 v21, 15, v1")
    k.e("v_lshrrev_b32 v22, 4, v1")
    k.e("v_lshlrev_b32 v22, 2, v22")
    k.e(f"v_sub_u32 {vMk}, v21, v22")
    k.e("s_mov_b32 s40, 0")
    k.e("s_mov_b32 s41, 0")
    k.e("s_lshl_b32 s51, s30, 1")
    k.e("s_add_u32 s51, s51, 1")
    k.e("s_and_b32 s36, s28, 3")
    k.e("s_lshl_b32 s36, s36, 5")
    if grp == 0:
        k.e("s_sub_u32 s37, 15, s30")
        k.e("s_lshl_b32 s37, s37, 7")
    else:
        k.e("s_lshl_b32 s37, s30, 7")
    k.e("s_add_u32 s36, s36, s37")
    k.e("s_sub_u32 s50, 0, s36")
    if grp == 1:
        k.e("s_lshl_b32 s42, s30, 8")
        k.e(f"s_sub_u32 s42, s42, {14*128}")
    else:
        k.e("s_add_u32 s36, s51, 1")
        k.e("s_lshl_b32 s36, -1, s36")
        k.e("s_or_b32 s48, s36, 0xaaaaaaaa")
        k.e("s_and_b32 s48, s48, 0x7ffe")
        k.e("s_or_b32 s39, s36, 0x55555555")
        k.e("s_and_b32 s39, s39, 0xffff")
        k.e(f"s_add_u32 s46, s45, {2*65536}")
        k.e(f"s_add_u32 s47, s45, {65536+32768}")
    k.e("s_mov_b64 s[52:53], 0")
    k.e("s_waitcnt lgkmcnt(0)")
    k.e("s_barrier")
    if grp == 1:
        for f in range(8):
            k.e(f"ds_read_b128 {v(QS_+4*f,4)}, v19 offset:{f*1024}")

OOL = []
MSK = ["s[20:21]", "s[22:23]", "s[62:63]", "vcc"]
LDS_MSG = LDS_X + 28672
def ool(k, cond, br, block):
    lr, lb = k.newlabel("rare"), k.newlabel("back")
    OOL.append([lr + ":"] + block + [f"s_branch {lb}"])
    return cond + [f"{br} {lr}", lb + ":"]
def flush_ool(k):
    while OOL: emit(k, OOL.pop(0))

def maskblk(k, buf, sU):
    L = [f"v_mov_b32 v{T_}, {NEGBIG}", f"v_subrev_u32 v{T_+1}, {sU}, {vMk}"]
    for qb in range(2):
        for kb in range(2):
            for e in range(4):
                L.append(f"v_cmp_gt_i32 {MSK[e]}, {16*(kb-qb) + e}, v{T_+1}")
            for e in range(4):
                r = Sreg(buf, qb, kb) + e
                L.append(f"v_cndmask_b32 v{r}, v{r}, v{T_}, {MSK[e]}")
    return ool(k, [f"s_cmp_lt_i32 {sU}, 0"], "s_cbranch_scc0", L)

def qk(buf, fr0, czero):
    L = []
    for kb in range(2):
        for sg in range(4):
            f = RG_ + 4*((fr0 + kb*4 + sg) % 8)
            for qb in range(2):
                d = Sreg(buf, qb, kb)
                c = v(d, 4) if sg else ("0" if czero else v(NM_+4*qb, 4))
                L.append(f"{MF} {v(d,4)}, {v(f,4)}, {v(Q_+(qb*4+sg)*4,4)}, {c}")
    return L

def pv(buf, fr0):
    L = []
    for db in range(8):
        f = RG_ + 4*((fr0 + db) % 8)
        for qb in range(2):
            L.append(f"{MF} {v(Oreg(qb,db),4)}, {v(f,4)}, {v(Preg(buf,qb),4)}, {v(Oreg(qb,db),4)}")
    return L

def sm_elems(buf):
    out = []
    for kb in range(2):
        for qb in range(2):
            for e in range(4):
                r = Sreg(buf, qb, kb) + e
                post = [f"v_add_f32 v{L_+qb}, v{L_+qb}, v{r}"]
                if e & 1:
                    post.append(f"v_cvt_pk_bf16_f32 v{Preg(buf,qb)+2*kb+e//2}, v{r-1}, v{r}")
                out.append((f"v_exp_f32 v{r}, v{r}", post))
    return out

def rd(frag, base, off):
    s_ = frag % 8
    return DS(f"ds_read_b128 {v(RG_+4*s_,4)}, {base} offset:{off}", ("r", s_))

def rowred(op, x, t):
    return [f"v_mov_b32 {t}, {x}", "s_nop 1", f"v_permlane16_swap_b32 {x}, {t}", "s_nop 1", f"{op} {x}, {x}, {t}",
            f"v_mov_b32 {t}, {x}", "s_nop 1", f"v_permlane32_swap_b32 {x}, {t}", "s_nop 1", f"{op} {x}, {x}, {t}"]


def advance(grp):
    G = [["s_add_u32 s49, s50, 32", f"v_add_u32 v{T_+4}, 65536, {vKr}"]]
    if grp == 0:
        G += [["s_cmp_le_u32 s40, s51", "s_cselect_b32 s36, 64, 128"], ["s_add_u32 s41, s41, s36", "s_add_u32 s50, s50, s36"]]
    else:
        G += [["s_cmp_lt_u32 s40, s51", "s_cselect_b32 s36, 64, 128"], ["s_add_u32 s41, s41, s36"],
              ["s_cmp_eq_u32 s40, s51", "s_cselect_b32 s36, s42, s36"], ["s_add_u32 s50, s50, s36"]]
    G += [["s_and_b32 s36, s41, 0xff", f"v_lshl_add_u32 {vKr}, s36, 8, {vL16}"],
          ["s_cmp_eq_u32 s40, 16", "s_cselect_b64 s[20:21], -1, 0"], [f"v_cndmask_b32 {vNx}, {vKr}, v{T_+4}, s[20:21]"]]
    return G, [f"v_mov_b32 {vVr}, v{T_+4}"]

def dma_clumps(k, cs):
    out = []
    for which in range(2):
        msk, base, soff = ("s48", "s43", "s46") if which == 0 else ("s39", "s44", "s47")
        for c in range(8 // cs):
            lskip = k.newlabel("nodma")
            j0 = c * cs
            L = [f"s_bitcmp1_b32 {msk}, s40", f"s_cbranch_scc0 {lskip}", f"s_add_u32 m0, {base}, {(j0 // 4)*4096}", "s_nop 0"]
            for j in range(j0, j0 + cs):
                L.append(f"buffer_load_dwordx4 {vD if j < 4 else vD2}, s[12:15], {soff} offen offset:{(j%4)*1024} sc1 lds")
            if c == 8 // cs - 1:
                L += [f"s_add_u32 {soff}, {soff}, 65536", f"s_xor_b32 {base}, {base}, 32768"]
            out.append(L + [lskip + ":"])
    return out

def p3_pieces(k, cfg, grp):
    pro = [rd(f, vKr, f*1024) for f in range(8)]
    m0 = qk(0, 0, True); m1 = qk(1, 8, True)
    zero = [f"v_mov_b32 v{O_+r}, 0" for r in range(64)] + [f"v_mov_b32 v{L_}, 0", f"v_mov_b32 v{L_+1}, 0"]
    fills = [[] for _ in range(32)]; pre = {}
    for p in range(16):
        pre[2*p] = [Need("ds", [("r", p % 8)])]
        if p < 8: fills[2*p+1].append(rd(p+8, vKr, (p+8)*1024))
    for i, z in enumerate(zero): fills[min(i // 2, 31)].append(z)
    pro += weave(m0 + m1, fills, pre)
    pro += maskblk(k, 0, "s50")
    G, late = advance(grp)
    pro += flat(G) + late + cfg.get("pro_wait", lambda k, g: [])(k, grp) + ["s_barrier"] + cfg.get("pro_hook", lambda k, g: [])(k, grp) + [rd(f, vNx, f*1024) for f in range(7)]
    for qb in range(2):
        a = Sreg(0, qb, 0); t = f"v{T_+1+qb}"
        pro += [f"v_max3_f32 {t}, v{a}, v{a+1}, v{a+2}", f"v_max3_f32 {t}, {t}, v{a+3}, v{a+4}",
                f"v_max3_f32 {t}, {t}, v{a+5}, v{a+6}", f"v_max_f32 {t}, {t}, v{a+7}"]
    for qb in range(2):
        pro += rowred("v_max_f32", f"v{T_+1+qb}", f"v{T_+3}")
    for qb in range(2):
        pro += [f"v_sub_f32 v{NM_+4*qb+e}, 0, v{T_+1+qb}" for e in range(4)]
    if grp == 0:
        pro += [DS(f"ds_write_b32 v19, v{NM_}"), DS(f"ds_write_b32 v19, v{NM_+4} offset:4")]
    for buf in range(2):
        for qb in range(2):
            a = Sreg(buf, qb, 0)
            pro += [f"v_sub_f32 v{a+e}, v{a+e}, v{T_+1+qb}" for e in range(8)]
    el = sm_elems(0)
    pro += [el[0][0]]
    for e in range(16):
        if e + 1 < 16: pro += [el[e+1][0]]
        else: pro += ["s_nop 0"]
        pro += el[e][1]
    M = qk(0, 0, False) + pv(0, 8) + qk(1, 16, False) + pv(1, 24)
    fills = [[] for _ in range(64)]; pre = {}
    def src(f):
        return (vKr, (f % 8)*1024 + (f // 16)*8192) if (f // 8) % 2 == 0 else (vVr, (f % 8)*1024 + (f // 16)*8192)
    wstep = int(cfg.get("wstep", 2))
    for p in range(32):
        if p % wstep == 0:
            pre[2*p] = [Need("ds", [("r", (p+i) % 8) for i in range(wstep)])]
    lag = int(cfg.get("lag", 0))
    for rnd in range(2):
        el = sm_elems(1 - rnd)
        for e in range(16):
            p = rnd*16 + e
            fills[2*p].append(el[e][0])
            if lag == 0: fills[2*p+1] += el[e][1]
            elif lag == 1:
                fills[2*min(p+1, rnd*16+15)+1] += el[e][1]
            elif lag == 2:
                fills[2*min(p+1, rnd*16+15)+1] += el[e][1][:1]
                fills[2*min(p+2, rnd*16+15)+(1 if p+2 > rnd*16+15 else 0)] += el[e][1][1:]
    for p in range(25):
        b, o = src(p + 7)
        fills[2*p+1].insert(0, rd(p+7, b, o))
    pre[0] = maskblk(k, 1, "s49") + pre[0]
    midc = []
    if grp == 1:
        midc = ool(k, ["s_cmp_eq_u32 s40, s51"], "s_cbranch_scc1", [f"v_mov_b32 v{LS_}, v{L_}", f"v_mov_b32 v{LS_+1}, v{L_+1}",
                f"v_mov_b32 v{L_}, 0", f"v_mov_b32 v{L_+1}, 0"])
    pre[32] = midc + maskblk(k, 0, "s50") + pre[32]
    G, late = advance(grp)
    fills[2*17] += ["s_add_u32 s40, s40, 1"]
    for i, g in enumerate(G): fills[2*(17+i)+1] += g
    fills[2*25+1] += late
    bp = int(cfg.get("bp", 26))
    if cfg.get("bwait"):
        fills[2*bp+1] += ["s_waitcnt lgkmcnt(0)", "s_memtime s[56:57]", "s_waitcnt vmcnt(0) lgkmcnt(0)", "s_barrier", "s_memtime s[58:59]", "s_waitcnt lgkmcnt(0)",
                          "s_sub_u32 s58, s58, s56", "s_add_u32 s98, s98, s58"]
    else:
        lr = k.newlabel("rlx")
        wt = ["s_waitcnt vmcnt(8) lgkmcnt(0)", "s_cmp_le_u32 s40, s51", f"s_cbranch_scc1 {lr}", "s_waitcnt vmcnt(0)", lr + ":"]
        if cfg.get("norlx"): wt = ["s_waitcnt vmcnt(0) lgkmcnt(0)"]
        fills[2*bp+1] += (wt if grp == 0 else ["s_waitcnt lgkmcnt(0)"]) + cfg.get("bar_hook", lambda k, g: [])(k, grp) + ["s_barrier"]
    nx = {27: [0, 1], 28: [2, 3], 29: [4], 30: [5], 31: [6]}
    for p, fl in nx.items():
        for f in fl: fills[2*p+1].insert(0, rd(f, vNx, f*1024))
    if grp == 0 and not cfg.get("nodma"):
        cs = int(cfg.get("cs", 4)); d0 = int(cfg.get("d0", 0)); dsp = int(cfg.get("dsp", 4))
        for c, cl in enumerate(dma_clumps(k, cs)):
            fills[2*(d0 + c*dsp)+1] += cl
    body = weave(M, fills, pre)
    M = pv(0, 0) + pv(1, 8)
    fills = [[] for _ in range(32)]; pre = {}
    for p in range(16):
        pre[2*p] = [Need("ds", [("r", p % 8)])]
        if p + 7 < 16: fills[2*p+1].insert(0, rd(p+7, vVr, (p+7)*1024))
    el = sm_elems(1)
    for e in range(16):
        fills[e].append(el[e][0])
        fills[e+1 if e < 15 else 15] += (["s_nop 0"] if e == 15 else []) + el[e][1]
    pre[16] = ["s_nop 1"] + pre[16]
    tail = maskblk(k, 1, "s49") + weave(M, fills, pre)
    return pro, body, tail

def lcheck(k, l):
    k.e(f"v_cmp_nge_f32 vcc, s36, {l}")
    k.e("s_nop 0")
    k.e("s_or_b64 s[52:53], s[52:53], vcc")

def ctx_base(k, sblk, add):
    k.e(f"s_lshl_b32 s38, {sblk}, 3")
    k.e("s_and_b32 s37, s28, 3")
    k.e("s_lshl_b32 s37, s37, 1")
    k.e("s_add_u32 s38, s38, s37")
    if add: k.e(f"s_add_u32 s38, s38, {add}")
    k.e("s_lshl_b32 s38, s38, 17")
    k.e("s_lshl_b32 s37, s29, 12")
    k.e("s_add_u32 s38, s38, s37")

def epi_own(k, cfg, lreg, sblk, zero):
    t = [f"v{T_+i}" for i in range(18)]
    for qb in range(2):
        k.e(rowred("v_add_f32", f"v{lreg+qb}", t[0]))
    k.e("s_mov_b32 s36, 0x5d800000")
    for qb in range(2): lcheck(k, f"v{lreg+qb}")
    for qb in range(2): k.e(f"v_rcp_f32 v{lreg+qb}, v{lreg+qb}")
    ctx_base(k, sblk, 0)
    for qb in range(2):
        for sg in range(4):
            a = Oreg(qb, 2*sg); d = T_ + 2 + 4*(sg & 3)
            for e in range(8): k.e(f"v_mul_f32 v{a+e}, v{lreg+qb}, v{a+e}")
            for q in range(4): k.e(f"v_cvt_pk_bf16_f32 v{d+q}, v{a+2*q}, v{a+2*q+1}")
            k.e(f"buffer_store_dwordx4 {v(d,4)}, {vL16}, s[16:19], s38 offen offset:{sg*1024}{cfg.get('stflag','')}")
            if zero:
                for e in range(8): k.e(f"v_mov_b32 v{a+e}, 0")
        if qb == 0: k.e(f"s_add_u32 s38, s38, {1<<17}")

def merge(k, cfg, kh):
    t = [f"v{T_+i}" for i in range(18)]
    o = 1 - kh
    k.e("s_lshl_b32 s37, s28, 13")
    k.e(f"v_add_u32 {t[1]}, s37, {vL16}")
    k.e(f"v_xor_b32 {t[2]}, 32768, {t[1]}")
    k.e("s_lshl_b32 s37, s28, 8")
    k.e(f"s_add_u32 s37, s37, {LDS_MSG}")
    k.e(f"v_lshl_add_u32 {t[3]}, v1, 2, s37")
    k.e(f"v_xor_b32 {t[4]}, 1024, {t[3]}")
    k.e(f"ds_write_b32 {t[3]}, v{L_+o}")
    k.e("s_mov_b32 s36, 0x5d800000")
    for qb in range(2): lcheck(k, f"v{L_+qb}")
    k.e("s_or_b32 s36, s52, s53")
    k.e(f"v_mov_b32 {t[6]}, s36")
    k.e("s_lshl_b32 s37, s28, 2")
    k.e(f"s_add_u32 s37, s37, {LDS_MSG+2048}")
    k.e(f"v_mov_b32 {t[7]}, s37")
    k.e(f"ds_write_b32 {t[7]}, {t[6]}")
    for db in range(8):
        k.e(f"ds_write_b128 {t[1]}, {v(Oreg(o,db),4)} offset:{db*1024}")
    k.e(f"v_mov_b32 {t[8]}, {LDS_MSG+2112}")
    if kh == 0 and cfg.get("share"):
        for i in range(4): k.e(f"v_mov_b32 v{T_+10+i}, s{56+i}")
        k.e(f"ds_write_b128 {t[8]}, {v(T_+10,4)}")
    k.e(f"v_and_b32 {t[7]}, 7, v1")
    k.e(f"v_lshlrev_b32 {t[7]}, 2, {t[7]}")
    k.e(f"v_add_u32 {t[7]}, {LDS_MSG+2048}, {t[7]}")
    k.e("s_sub_u32 s36, 15, s30")
    ctx_base(k, "s36", kh)
    k.e("s_waitcnt lgkmcnt(0)")
    k.e("s_barrier")
    if kh == 1 and cfg.get("share"): k.e(f"ds_read_b128 {v(T_+10,4)}, {t[8]}")
    k.e(f"ds_read_b32 {t[6]}, {t[7]}")
    k.e(f"ds_read_b32 {t[5]}, {t[4]}")
    for db in range(8):
        k.e(f"ds_read_b128 {v(RG_+4*db,4)}, {t[2]} offset:{db*1024}")
    k.e("s_waitcnt lgkmcnt(8)")
    k.e(f"v_add_f32 {t[5]}, {t[5]}, v{L_+kh}")
    k.e(rowred("v_add_f32", t[5], t[0]))
    k.e(f"v_cmp_ne_u32 s[52:53], 0, {t[6]}")
    if kh == 1 and cfg.get("share"):
        for i in range(4): k.e(f"v_readfirstlane_b32 s{56+i}, v{T_+10+i}")
    k.e(f"v_rcp_f32 {t[5]}, {t[5]}")
    for sg in range(4):
        k.e(f"s_waitcnt lgkmcnt({6-2*sg})")
        a = Oreg(kh, 2*sg)
        for e in range(8): k.e(f"v_add_f32 v{a+e}, v{a+e}, v{RG_+8*sg+e}")
        for e in range(8): k.e(f"v_mul_f32 v{a+e}, {t[5]}, v{a+e}")
        for q in range(4): k.e(f"v_cvt_pk_bf16_f32 v{P_+4*sg+q}, v{a+2*q}, v{a+2*q+1}")
        k.e(f"buffer_store_dwordx4 {v(P_+4*sg,4)}, {vL16}, s[16:19], s38 offen offset:{sg*1024}{cfg.get('stflag','')}")

def safe_path(k, cfg, grp):
    M_ = NM_
    t = [f"v{T_+i}" for i in range(18)]
    if grp == 1:
        for r in range(32): k.e(f"v_swap_b32 v{Q_+r}, v{QS_+r}")
    for r in range(64): k.e(f"v_mov_b32 v{O_+r}, 0")
    for qb in range(2):
        k.e(f"v_mov_b32 v{L_+qb}, 0")
        k.e(f"v_mov_b32 v{M_+qb}, {NEGBIG}")
    k.e("s_lshl_b32 s43, s28, 12")
    k.e(f"v_add_u32 {vD}, s43, {vL16}")
    k.e("s_mov_b32 s46, s45")
    k.e("s_sub_u32 s40, 16, s30")
    k.e("s_sub_u32 s39, 15, s30" if grp == 0 else "s_mov_b32 s39, s30")
    k.e("s_lshl_b32 s37, s39, 7")
    k.e("s_and_b32 s36, s28, 3")
    k.e("s_lshl_b32 s36, s36, 5")
    k.e("s_add_u32 s36, s36, s37")
    k.e("s_sub_u32 s50, 0, s36")
    lt, lu, ln_ = k.newlabel("stile"), k.newlabel("sunit"), k.newlabel("snext")
    k.label(lt)
    k.e("s_waitcnt vmcnt(0) lgkmcnt(0)")
    k.e("s_barrier")
    k.e("s_mov_b32 m0, s43")
    k.e("s_add_u32 s47, s46, 32768")
    for j in range(4): k.e(f"buffer_load_dwordx4 {vD}, s[12:15], s46 offen offset:{j*1024} sc1 lds")
    k.e("s_add_u32 m0, s43, 32768")
    k.e("s_add_u32 s46, s46, 65536")
    for j in range(4): k.e(f"buffer_load_dwordx4 {vD}, s[12:15], s47 offen offset:{j*1024} sc1 lds")
    k.e(f"v_mov_b32 {vKr}, {vL16}")
    k.e("s_mov_b32 s41, 4")
    k.e("s_waitcnt vmcnt(0)")
    k.e("s_barrier")
    k.label(lu)
    k.e("s_cmp_gt_i32 s50, 0")
    k.e(f"s_cbranch_scc1 {ln_}")
    for f in range(8): k.e(f"ds_read_b128 {v(RG_+4*f,4)}, {vKr} offset:{f*1024}")
    k.e("s_waitcnt lgkmcnt(0)")
    k.e(qk(0, 0, True))
    for f in range(8): k.e(f"ds_read_b128 {v(RG_+4*f,4)}, {vKr} offset:{32768+f*1024}")
    k.e("s_nop 1")
    emit(k, maskblk(k, 0, "s50"))
    for qb in range(2):
        a = Sreg(0, qb, 0); x = t[2+qb]
        k.e([f"v_max3_f32 {x}, v{a}, v{a+1}, v{a+2}", f"v_max3_f32 {x}, {x}, v{a+3}, v{a+4}",
             f"v_max3_f32 {x}, {x}, v{a+5}, v{a+6}", f"v_max3_f32 {x}, {x}, v{a+7}, v{M_+qb}"])
        k.e(rowred("v_max_f32", x, t[4]))
        k.e(f"v_sub_f32 {t[5]}, v{M_+qb}, {x}")
        k.e(f"v_exp_f32 {t[5]}, {t[5]}")
        k.e(f"v_mov_b32 v{M_+qb}, {x}")
        k.e(f"v_mul_f32 v{L_+qb}, v{L_+qb}, {t[5]}")
        for r in range(32): k.e(f"v_mul_f32 v{Oreg(qb,0)+r}, v{Oreg(qb,0)+r}, {t[5]}")
        for e in range(8): k.e(f"v_sub_f32 v{a+e}, v{a+e}, {x}")
    el = sm_elems(0)
    for e in range(16): k.e(el[e][0])
    for e in range(16): k.e(el[e][1])
    k.e("s_waitcnt lgkmcnt(0)")
    k.e("s_nop 0")
    k.e(pv(0, 0))
    k.label(ln_)
    k.e(f"v_add_u32 {vKr}, 8192, {vKr}")
    k.e("s_add_u32 s50, s50, 32")
    k.e("s_sub_u32 s41, s41, 1")
    k.e("s_cmp_lg_u32 s41, 0")
    k.e(f"s_cbranch_scc1 {lu}")
    k.e("s_sub_u32 s40, s40, 1")
    k.e("s_cmp_lg_u32 s40, 0")
    k.e(f"s_cbranch_scc1 {lt}")
    epi_own(k, cfg, L_, "s39", False)

def gen_p3(k, cfg, grp, st, after_q=None, before_tail=None):
    n0 = st.n
    q_pack(k, grp, cfg.get('qwait', 0))
    if after_q: after_q(k, grp)
    st.mark()
    pro, body, tail = p3_pieces(k, cfg, grp)
    sw = []
    if grp == 1:
        sw = [f"v_swap_b32 v{Q_+r}, v{QS_+r}" for r in range(32)]
        sw += [f"v_mov_b32 v{NM_+r}, v{14+r//4}" for r in range(8)] + ["s_nop 1"]
    resolve([[pro, body, body, body, tail], [pro, body, sw, body, body, tail]])
    if cfg.get("prio") and grp == int(cfg["prio"]) - 1: k.e("s_setprio 1")
    emit(k, pro)
    st.mark()
    if cfg.get("bwait"): k.e("s_mov_b32 s98, 0")
    lb = f"L_body{grp}"
    k.align(6)
    k.label(lb)
    emit(k, body)
    if grp == 1:
        ke = K(k.name + "_epi")
        epi_own(ke, cfg, LS_, "s30", True)
        lrare, lback, l2 = k.newlabel("rare"), k.newlabel("back"), k.newlabel("epi")
        OOL.append([lrare + ":", "s_cmp_lg_u32 s40, s51", f"s_cbranch_scc1 {l2}"] + sw + [f"s_branch {lback}", l2 + ":"]
                   + [x.strip() for x in ke.lines] + [f"s_branch {lback}"])
        first = ["ds_read_b64 v[14:15], v19", "s_waitcnt lgkmcnt(0)"]
        l1 = k.newlabel("nm")
        emit(k, ool(k, ["s_cmp_lt_u32 s40, s39"], "s_cbranch_scc1",
                    ["s_cmp_eq_u32 s40, 1", f"s_cbranch_scc0 {l1}"] + first + [l1 + ":"] + cfg.get("b_hook", lambda k: [])(k)))
        k.e("s_sub_u32 s36, s40, s51")
        k.e("s_cmp_lt_u32 s36, 2")
        k.e(f"s_cbranch_scc1 {lrare}")
        k.label(lback)
    k.e("s_cmp_lg_u32 s40, 16")
    k.e(f"s_cbranch_scc1 {lb}")
    st.mark()
    if cfg.get("bwait"):
        st.mark()
        k.e(f"s_add_u32 s{st.base+2*st.n-2}, s{st.base+2*st.n-4}, s98")
    if before_tail: before_tail(k, grp)
    emit(k, tail)
    st.mark()
    merge(k, cfg, grp)
    st.mark()
    k.e("s_cmp_eq_u64 s[52:53], 0")
    k.e("s_cbranch_scc1 L_p3_done")
    if cfg.get("dbgsafe"):
        k.e("s_load_dwordx2 s[20:21], s[0:1], 96")
        k.e("s_waitcnt lgkmcnt(0)")
        k.e("v_mov_b32 v20, 0"); k.e("v_mov_b32 v21, 1")
        k.e("s_mov_b64 exec, 1")
        k.e("global_atomic_add v20, v21, s[20:21]")
        k.e("s_mov_b64 exec, -1")
    safe_path(k, cfg, grp)
    if grp == 0: st.n = n0

def gen_attn(cfg=None):
    cfg = cfg or {}
    k = K("attn_kernel")
    k.e("s_cmp_ge_u32 s2, 256")
    k.e("s_cbranch_scc1 L_attn_end")
    st = Stamps(k, cfg.get("stamp"), kid=1)
    st.mark()
    k.e("s_load_dwordx2 s[50:51], s[0:1], 16")
    k.e("s_load_dwordx2 s[54:55], s[0:1], 104")
    k.e("v_and_b32 v1, 63, v0")
    k.e("v_lshrrev_b32 v16, 6, v0")
    k.e("s_and_b32 s29, s2, 7")
    k.e("v_readfirstlane_b32 s28, v16")
    k.e("s_lshl_b32 s29, s29, 2")
    k.e("s_bfe_u32 s36, s2, 0x20003")
    k.e("s_add_u32 s29, s29, s36")
    k.e("s_lshr_b32 s30, s2, 5")
    p2_setup(k)
    k.e("s_waitcnt lgkmcnt(0)")
    srd(k, 4, 54, 4194304)
    srd(k, 8, 50, 8388608)
    pro, pro2, kvpre, body = p2_pieces(cfg)
    resolve([[pro, pro2, body, body, body, kvpre, body]])
    emit(k, pro)
    srd(k, 12, 54, 33554432, WS_KV)
    srd(k, 16, 54, 16777216, WS_CTX)
    p2_setup2(k)
    st.mark()
    emit(k, pro2)
    st.mark()
    k.align(6)
    k.label("L_p2_loop")
    k.e("s_cmp_lg_u32 s35, 3")
    k.e("s_cbranch_scc1 L_p2_nokv")
    emit(k, kvpre)
    k.label("L_p2_nokv")
    emit(k, body)
    k.e("s_add_u32 s35, s35, 1")
    k.e("s_cmp_lt_u32 s35, 4")
    k.e("s_cbranch_scc1 L_p2_loop")
    st.mark()
    k.e("s_cmp_lt_u32 s28, 4")
    k.e("s_cbranch_scc0 L_grp1")
    gen_p3(k, cfg, 0, st)
    k.e("s_branch L_p3_done")
    flush_ool(k)
    k.label("L_grp1")
    gen_p3(k, cfg, 1, st)
    k.e("s_branch L_p3_done")
    flush_ool(k)
    k.label("L_p3_done")
    st.dump(54, "s28")
    k.label("L_attn_end")
    return wrap(k, 256)
```

```python
from common import *

WS_KEY = WS_R + 16384

def wave_max_u32(k, x, sd):
    for m in ["quad_perm:[1,0,3,2]", "quad_perm:[2,3,0,1]", "row_half_mirror", "row_mirror"]:
        k.e("s_nop 1")
        k.e(f"v_max_u32_dpp {x}, {x}, {x} {m} row_mask:0xf bank_mask:0xf")
    k.e("s_nop 0")
    for q in range(4): k.e(f"v_readlane_b32 s{sd+q}, {x}, {16*q}")
    k.e(f"s_max_u32 s{sd}, s{sd}, s{sd+1}")
    k.e(f"s_max_u32 s{sd+2}, s{sd+2}, s{sd+3}")
    k.e(f"s_max_u32 s{sd}, s{sd}, s{sd+2}")

def top2_loads(k, R, ld=""):
    k.e(f"v_lshlrev_b32 v{R+32}, 4, v1")
    k.e(f"s_mov_b32 s36, {WS_KEY}")
    k.e(f"s_mov_b32 s37, {WS_KEY+4096}")
    for i in range(8):
        k.e(f"buffer_load_dwordx4 {v(R+4*i,4)}, v{R+32}, s[24:27], s{36+i//4} offen offset:{(i%4)*1024}{ld}")

def top2(k, R, T=None, n=32, sb=36):
    T = R + 32 if T is None else T
    m1, m2, t = f"v{T}", f"v{T+1}", f"v{T+2}"
    k.e(f"v_max_u32 {m1}, v{R}, v{R+1}")
    k.e(f"v_min_u32 {m2}, v{R}, v{R+1}")
    for i in range(2, n):
        k.e(f"v_med3_u32 {m2}, {m1}, {m2}, v{R+i}")
        k.e(f"v_max_u32 {m1}, {m1}, v{R+i}")
    k.e(f"v_mov_b32 {t}, {m1}")
    wave_max_u32(k, t, sb)
    k.e(f"s_mov_b32 s58, s{sb}")
    k.e(f"v_cmp_eq_u32 vcc, s58, {m1}")
    k.e("s_nop 1")
    k.e(f"v_cndmask_b32 {t}, {m1}, {m2}, vcc")
    wave_max_u32(k, t, sb)
    k.e(f"s_mov_b32 s59, s{sb}")
    for t_ in range(2):
        k.e(f"s_and_b32 s36, s{58+t_}, 0xffff")
        k.e(f"s_sub_u32 s{56+t_}, 0xffff, s36")

def prolog(k, name, n, w_off):
    k.e(f"s_cmp_ge_u32 s2, {n}")
    k.e(f"s_cbranch_scc1 L_{name}_end")
    k.e(f"s_load_dwordx4 s[44:47], s[0:1], {w_off}")
    k.e("s_load_dwordx2 s[54:55], s[0:1], 104")
    k.e("v_and_b32 v1, 63, v0")
    k.e("v_lshrrev_b32 v16, 6, v0")
    k.e("s_nop 0")
    k.e("v_readfirstlane_b32 s28, v16")
    k.e("s_waitcnt lgkmcnt(0)")
    srd(k, 24, 54, 64 << 20)

def wdma_addr(k, V, srow0, pitch, scol):
    k.e(f"v_lshrrev_b32 v{V+1}, 3, v1")
    k.e("s_lshl_b32 s36, s28, 5")
    k.e(f"s_add_u32 s36, s36, {srow0}")
    k.e(f"v_add_u32 v{V+1}, s36, v{V+1}")
    k.e(f"v_mul_u32_u24 v{V+1}, {pitch}, v{V+1}")
    k.e(f"v_add_u32 v{V+1}, {scol}, v{V+1}")
    k.e(f"v_bfe_u32 v{V+2}, v1, 4, 1")
    k.e(f"v_lshlrev_b32 v{V+2}, 1, v{V+2}")
    k.e(f"v_and_b32 v{V+3}, 7, v1")
    k.e(f"v_xor_b32 v{V+2}, v{V+2}, v{V+3}")
    k.e(f"v_lshl_add_u32 v{V}, v{V+2}, 4, v{V+1}")
    k.e(f"v_xor_b32 v{V+2}, 4, v{V+2}")
    k.e(f"v_lshl_add_u32 v{V+1}, v{V+2}, 4, v{V+1}")
    k.e(f"v_add_u32 v{V+1}, {8*pitch-1024}, v{V+1}")
    k.e(f"v_add_u32 v{V+2}, {2*(8*pitch-1024)}, v{V}")
    k.e(f"v_add_u32 v{V+3}, {2*(8*pitch-1024)}, v{V+1}")

def wrd_addr(k, d, fz, t1):
    k.e(f"v_lshrrev_b32 {t1}, 4, v1")
    k.e(f"v_bfe_u32 {d}, v1, 2, 2")
    k.e(f"v_lshl_add_u32 {d}, {t1}, 3, {d}")
    k.e(f"v_lshlrev_b32 {d}, 7, {d}")
    k.e(f"v_and_b32 {fz}, 3, v1")
    k.e(f"v_lshl_add_u32 {d}, {fz}, 3, {d}")
    k.e(f"v_bfe_u32 {fz}, v1, 3, 2")

def gen_ffn1(cfg):
    k = K("ffn1_kernel")
    prolog(k, "ffn1", 224, 64)
    srd(k, 4, 44, 7340032); srd(k, 8, 46, 7340032)
    top2_loads(k, 64)
    k.e("s_and_b32 s29, s2, 3")
    k.e("s_lshr_b32 s30, s2, 2")
    k.e("s_lshl_b32 s38, s29, 8")
    k.e("s_lshl_b32 s39, s30, 7")
    wdma_addr(k, 6, "s38", 7168, "s39")
    k.e("s_lshl_b32 s33, s28, 12")
    for m in range(2):
        k.e(f"s_add_u32 m0, s33, {m*32768}")
        k.e("s_nop 0")
        for j in range(4): k.e(f"buffer_load_dwordx4 v{6+j}, s[{4+4*m}:{7+4*m}], 0 offen offset:{j*1024} lds")
    k.e("s_waitcnt vmcnt(8)")
    top2(k, 64)
    k.e("v_and_b32 v10, 1, v1")
    k.e("v_mov_b32 v11, s56")
    k.e("v_mov_b32 v12, s57")
    k.e("v_cmp_eq_u32 vcc, 1, v10")
    k.e("s_nop 1")
    k.e("v_cndmask_b32 v11, v11, v12, vcc")
    k.e("v_lshrrev_b32 v12, 4, v11")
    k.e("v_lshlrev_b32 v12, 15, v12")
    k.e("v_and_b32 v11, 15, v11")
    k.e("v_lshl_add_u32 v12, v11, 4, v12")
    k.e("v_lshrrev_b32 v13, 4, v1")
    k.e("v_lshl_add_u32 v12, v13, 8, v12")
    k.e("s_lshl_b32 s36, s29, 13")
    k.e("s_add_u32 s37, s36, 4096")
    for s_ in range(8):
        k.e(f"buffer_load_dwordx4 {v(64+4*s_,4)}, v12, s[24:27], s{36+s_//4} offen offset:{(s_%4)*1024}")
    wrd_addr(k, "v14", "v15", "v16")
    k.e("s_and_b32 s36, s28, 3")
    k.e("v_xor_b32 v15, s36, v15")
    k.e("v_lshl_add_u32 v14, v15, 5, v14")
    k.e("s_lshr_b32 s36, s28, 2")
    k.e("s_lshl_b32 s36, s36, 15")
    k.e("v_add_u32 v14, s36, v14")
    k.e("s_waitcnt vmcnt(8)")
    k.e("s_barrier")
    for s_ in range(8):
        for t in range(2):
            k.e(f"ds_read_b64_tr_b16 {v(100+4*s_+2*t,2)}, v14 offset:{(32*s_+4*t)*128}")
    k.e("s_waitcnt vmcnt(0) lgkmcnt(0)")
    for s_ in range(8):
        k.e(f"{MF} v[20:23], {v(100+4*s_,4)}, {v(64+4*s_,4)}, {'v[20:23]' if s_ else '0'}")
    k.e("s_lshl_b32 s36, s29, 1")
    k.e("s_lshr_b32 s37, s28, 2")
    k.e("s_add_u32 s36, s36, s37")
    k.e(f"s_mul_i32 s36, s36, {2*14336}")
    k.e("s_lshl_b32 s37, s30, 8")
    k.e("s_add_u32 s36, s36, s37")
    k.e("s_and_b32 s37, s28, 3")
    k.e("s_lshl_b32 s37, s37, 6")
    k.e("s_add_u32 s36, s36, s37")
    k.e(f"s_add_u32 s36, s36, {WS_PRE}")
    k.e("v_mul_u32_u24 v10, 14336, v10")
    k.e("v_lshl_add_u32 v10, v13, 4, v10")
    k.e("s_mov_b32 exec_lo, 0x00030003")
    k.e("s_mov_b32 exec_hi, 0x00030003")
    k.e("buffer_store_dwordx4 v[20:23], v10, s[24:27], s36 offen")
    k.label("L_ffn1_end")
    return wrap(k, 136)

def gen_ffn2(cfg):
    k = K("ffn2_kernel")
    prolog(k, "ffn2", 256, 80)
    srd(k, 4, 44, 7340032)
    k.e("s_and_b32 s30, s2, 15")
    k.e("s_lshr_b32 s29, s2, 4")
    k.e("v_and_b32 v10, 1, v1")
    k.e("v_lshrrev_b32 v13, 4, v1")
    k.e("s_cmp_eq_u32 s28, 7")
    k.e("s_cbranch_scc1 L_ffn2_w7")
    k.e("s_mul_i32 s38, s29, 224")
    k.e("s_lshl_b32 s39, s30, 7")
    wdma_addr(k, 6, "s38", 2048, "s39")
    k.e("s_lshl_b32 s33, s28, 12")
    k.e("s_mov_b32 m0, s33")
    k.e("s_nop 0")
    for j in range(4): k.e(f"buffer_load_dwordx4 v{6+j}, s[4:7], 0 offen offset:{j*1024} lds")
    k.e("s_lshl_b32 s36, s28, 5")
    k.e("s_add_u32 s36, s36, s38")
    k.e("s_lshl_b32 s36, s36, 2")
    k.e(f"s_add_u32 s36, s36, {WS_PRE}")
    k.e("v_mul_u32_u24 v11, 14336, v10")
    k.e("v_lshl_add_u32 v11, v13, 5, v11")
    for q in range(8):
        for h in range(2):
            k.e(f"buffer_load_dwordx4 {v(64+8*q+4*h,4)}, v11, s[24:27], s36 offen offset:{16*h}")
        if q < 7: k.e(f"s_add_u32 s36, s36, {2*14336}")
    wrd_addr(k, "v14", "v15", "v16")
    k.e("v_add_u32 v14, s33, v14")
    k.e("s_waitcnt vmcnt(0)")
    for cb in range(4):
        k.e(f"v_xor_b32 v16, {cb}, v15")
        k.e("v_lshl_add_u32 v16, v16, 5, v14")
        for t in range(2):
            k.e(f"ds_read_b64_tr_b16 {v(40+4*cb+2*t,2)}, v16 offset:{4*t*128}")
    for e in range(16):
        for q in range(1, 4):
            k.e(f"v_add_f32 v{64+e}, v{64+e}, v{64+16*q+e}")
    for e in range(8):
        g, u = f"v{64+e}", f"v{72+e}"
        rbf(k, g); rbf(k, u)
        k.e(f"v_mul_f32 v17, 0xbfb8aa3b, {g}")
        k.e("v_exp_f32 v17, v17")
        k.e("s_nop 0")
        k.e("v_add_f32 v17, 1.0, v17")
        k.e("v_rcp_f32 v17, v17")
        k.e("s_nop 0")
        k.e(f"v_mul_f32 {g}, {g}, v17")
        rbf(k, g)
        k.e(f"v_mul_f32 {g}, {g}, {u}")
    for q in range(4): k.e(f"v_cvt_pk_bf16_f32 v{36+q}, v{64+2*q}, v{65+2*q}")
    k.e("s_waitcnt lgkmcnt(0)")
    k.e("s_nop 0")
    for cb in range(4):
        k.e(f"{MF} {v(20+4*cb,4)}, {v(40+4*cb,4)}, v[36:39], 0")
    k.e("s_add_u32 s36, s33, 32768")
    k.e("v_lshl_add_u32 v16, v1, 4, s36")
    k.e("s_nop 6")
    for cb in range(4):
        k.e(f"ds_write_b128 v16, {v(20+4*cb,4)} offset:{cb*1024}")
    k.e("s_waitcnt lgkmcnt(0)")
    k.e("s_branch L_ffn2_join")
    k.label("L_ffn2_w7")
    k.e("s_cmp_lg_u32 s2, 0")
    k.e("s_cbranch_scc1 L_ffn2_join")
    top2_loads(k, 64)
    k.e("s_waitcnt vmcnt(0)")
    top2(k, 64)
    k.e("v_mov_b32 v20, s56")
    k.e("v_mov_b32 v21, s57")
    for t in range(2):
        d = f"v{22+t}"
        k.e(f"s_and_b32 s36, s{58+t}, 0xffff0000")
        k.e("s_cmp_lt_i32 s36, 0")
        k.e("s_cselect_b32 s37, 0x80000000, -1")
        k.e("s_xor_b32 s36, s36, s37")
        k.e("s_and_b32 s36, s36, 0xffff0000")
        k.e(f"v_mov_b32 {d}, s36")
        k.e(f"v_mul_f32 {d}, 0xbfb8aa3b, {d}")
        k.e(f"v_exp_f32 {d}, {d}")
        k.e("s_nop 0")
        k.e(f"v_add_f32 {d}, 1.0, {d}")
        k.e(f"v_rcp_f32 {d}, {d}")
        k.e("s_nop 0")
        rbf(k, d)
    k.e("v_mov_b32 v16, 0")
    k.e(f"s_mov_b32 s36, {WS_IDX}")
    k.e("s_mov_b64 exec, 1")
    k.e("buffer_store_dwordx4 v[20:23], v16, s[24:27], s36 offen")
    k.e("s_mov_b64 exec, -1")
    k.label("L_ffn2_join")
    k.e("s_barrier")
    k.e("s_cmp_ge_u32 s28, 4")
    k.e("s_cbranch_scc1 L_ffn2_end")
    k.e("s_lshl_b32 s36, s28, 10")
    k.e("s_add_u32 s36, s36, 32768")
    k.e("v_lshl_add_u32 v16, v1, 4, s36")
    for w in range(7):
        k.e(f"ds_read_b128 {v(64+4*w,4)}, v16 offset:{w*4096}")
    k.e("s_waitcnt lgkmcnt(0)")
    for w in range(1, 7):
        for e in range(4): k.e(f"v_add_f32 v{64+e}, v{64+e}, v{64+4*w+e}")
    k.e("s_lshl_b32 s36, s29, 13")
    k.e("s_lshl_b32 s37, s30, 8")
    k.e("s_add_u32 s36, s36, s37")
    k.e("s_lshl_b32 s37, s28, 6")
    k.e("s_add_u32 s36, s36, s37")
    k.e(f"s_add_u32 s36, s36, {WS_YP}")
    k.e("v_lshlrev_b32 v10, 12, v10")
    k.e("v_lshl_add_u32 v10, v13, 4, v10")
    k.e("s_mov_b32 exec_lo, 0x00030003")
    k.e("s_mov_b32 exec_hi, 0x00030003")
    k.e("buffer_store_dwordx4 v[64:67], v10, s[24:27], s36 offen")
    k.label("L_ffn2_end")
    return wrap(k, 136)
```

```python
from common import *
import attn as A
import ffn as F

WS_CNT = 59 << 20
CNT_KV, CNT_CTX, CNT_F1, CNT_F2, CNT_KV0, CNT_EX, CNT_LN = 0, 32, 48, 96, 64, 128, 112
WS_EX = 64 << 20
SC = " sc1"
LDS_X = 131072

def NT(cfg, key):
    return " nt" if key in cfg.get("nt", "") else ""

def lines(fn, *a, **kw):
    t = K("tmp"); fn(t, *a, **kw); return [x.strip() for x in t.lines]

def signal(saddr_pair, off, t0, t1):
    return [f"v_mov_b32 {t0}, {off}", f"v_mov_b32 {t1}, 1", "s_mov_b64 exec, 1",
            f"global_atomic_add {t0}, {t1}, {saddr_pair}", "s_mov_b64 exec, -1", "s_nop 3"]

def switch(k, sreg, cases):
    L = []
    lend = k.newlabel("swend")
    for i, (val, items) in enumerate(cases):
        if i + 1 < len(cases):
            ln = k.newlabel("swn")
            L += [f"s_cmp_eq_u32 {sreg}, {val}", f"s_cbranch_scc0 {ln}"] + items + [f"s_branch {lend}", ln + ":"]
        else:
            L += items
    return L + [lend + ":"]

def guard(k, cond, br, items, key):
    l = k.newlabel("g")
    return Alt(cond + [f"{br} {l}"] + items + [l + ":"], lambda c: items if c[key] else [])

def spin(k, saddr, voff, vtmp, target, slp=8):
    l, le = k.newlabel("spin"), k.newlabel("spinx")
    return ["s_mov_b32 s61, 0x40000", l + ":", "s_sub_u32 s61, s61, 1", f"s_cbranch_scc1 {le}", f"s_sleep {slp}",
            f"global_load_dword {vtmp}, {voff}, {saddr} sc1", "s_waitcnt vmcnt(0)",
            f"v_readfirstlane_b32 s36, {vtmp}", "s_nop 0", f"s_cmp_lt_u32 s36, {target}", f"s_cbranch_scc1 {l}", le + ":"]

def check(k, saddr, voff, vtmp, target):
    return A.ool(k, [f"v_readfirstlane_b32 s36, {vtmp}", "s_nop 0", f"s_cmp_lt_u32 s36, {target}"], "s_cbranch_scc1",
                 spin(k, saddr, voff, vtmp, target))

def ln_check(k):
    l, le = k.newlabel("lspin"), k.newlabel("lspinx")
    return ["s_mov_b32 s61, 0x40000", l + ":", "v_cmp_gt_u32 vcc, 16, v116", "s_nop 0", "s_cmp_eq_u64 vcc, 0",
            f"s_cbranch_scc1 {le}", "s_sub_u32 s61, s61, 1", f"s_cbranch_scc1 {le}", "s_sleep 8",
            "global_load_dword v116, v117, s[90:91] sc1", "s_waitcnt vmcnt(0)", f"s_branch {l}", le + ":"]

def ln_row(X, WR, Fr, T, SB, srow, sslot):
    k = K("t")
    t = [f"v{T+i}" for i in range(8)]
    for i in range(8):
        k.e(f"v_lshlrev_b32 v{Fr+2*i}, 16, v{X+i}")
        k.e(f"v_and_b32 v{Fr+2*i+1}, 0xffff0000, v{X+i}")
    k.e(f"v_add_f32 {t[0]}, v{Fr}, v{Fr+1}")
    for i in range(2, 16): k.e(f"v_add_f32 {t[0]}, {t[0]}, v{Fr+i}")
    wave_sum(k, t[0], t[1], SB)
    k.e(f"v_mul_f32 {t[1]}, 0x3a800000, {t[1]}")
    k.e(f"v_sub_f32 {t[2]}, v{Fr}, {t[1]}")
    k.e(f"v_mul_f32 {t[0]}, {t[2]}, {t[2]}")
    for i in range(1, 16):
        k.e(f"v_sub_f32 {t[2]}, v{Fr+i}, {t[1]}")
        k.e(f"v_fmac_f32 {t[0]}, {t[2]}, {t[2]}")
    wave_sum(k, t[0], t[2], SB)
    k.e(f"v_mul_f32 {t[2]}, 0x3a800000, {t[2]}")
    k.e(f"v_cvt_pk_bf16_f32 {t[3]}, {t[1]}, {t[2]}")
    k.e(f"v_lshlrev_b32 {t[6]}, 16, {t[3]}")
    k.e(f"v_and_b32 {t[2]}, 0xffff0000, {t[3]}")
    k.e(f"v_add_f32 {t[2]}, 0x3727c5ac, {t[2]}")
    rbf(k, t[2])
    k.e(f"v_sqrt_f32 {t[2]}, {t[2]}")
    k.e("s_nop 0")
    rbf(k, t[2])
    k.e(f"v_rcp_f32 {t[7]}, {t[2]}")
    k.e("s_nop 0")
    k.e(f"v_fma_f32 {t[4]}, -{t[2]}, {t[7]}, 1.0")
    k.e(f"v_fma_f32 {t[7]}, {t[4]}, {t[7]}, {t[7]}")
    for i in range(8):
        a, b = f"v{Fr+2*i}", f"v{Fr+2*i+1}"
        k.e(f"v_sub_f32 {a}, {a}, {t[6]}")
        k.e(f"v_sub_f32 {b}, {b}, {t[6]}")
        k.e(f"v_cvt_pk_bf16_f32 {t[4]}, {a}, {b}")
        k.e(f"v_lshlrev_b32 {a}, 16, {t[4]}")
        k.e(f"v_and_b32 {b}, 0xffff0000, {t[4]}")
        k.e(f"v_mul_f32 {a}, {a}, {t[7]}")
        k.e(f"v_mul_f32 {b}, {b}, {t[7]}")
        k.e(f"v_cvt_pk_bf16_f32 v{X+i}, {a}, {b}")
        k.e(f"v_lshlrev_b32 {a}, 16, v{X+i}")
        k.e(f"v_and_b32 {b}, 0xffff0000, v{X+i}")
        if i == 0: k.e(f"v_mul_f32 {t[0]}, {a}, v{WR}")
        else: k.e(f"v_fmac_f32 {t[0]}, {a}, v{WR+2*i}")
        k.e(f"v_fmac_f32 {t[0]}, {b}, v{WR+2*i+1}")
    k.e(f"s_mul_i32 s{SB}, {sslot}, 2064")
    k.e(f"s_add_u32 s{SB}, s{SB}, {LDS_X}")
    k.e(f"v_lshl_add_u32 {t[3]}, v1, 4, s{SB}")
    k.e(f"ds_write_b128 {t[3]}, {v(X,4)}")
    k.e(f"ds_write_b128 {t[3]}, {v(X+4,4)} offset:1024")
    wave_sum(k, t[0], t[1], SB)
    rbf(k, t[1])
    k.e(f"v_ashrrev_i32 {t[3]}, 31, {t[1]}")
    k.e(f"v_or_b32 {t[3]}, 0x80000000, {t[3]}")
    k.e(f"v_xor_b32 {t[3]}, {t[1]}, {t[3]}")
    k.e(f"v_and_b32 {t[3]}, 0xffff0000, {t[3]}")
    k.e(f"s_sub_u32 s{SB}, 0xffff, {srow}")
    k.e(f"v_or_b32 {t[3]}, s{SB}, {t[3]}")
    k.e(f"s_lshl_b32 s{SB+1}, {sslot}, 3")
    k.e(f"s_add_u32 s{SB+1}, s{SB+1}, {LDS_X + 16640}")
    k.e(f"v_mov_b32 {t[2]}, s{SB+1}")
    k.e(f"ds_write_b64 {t[2]}, {v(T+6,2)}")
    k.e(f"ds_write_b32 {t[2]}, {t[3]} offset:64")
    return [x.strip() for x in k.lines]

def zip2(a, b):
    out = []
    for x, y in zip(a, b):
        if x == "s_nop 0": continue
        if x == "s_nop 1": out.append("s_nop 0"); continue
        out += [x, y]
    return out

def ln_part3(T):
    t = [f"v{T+i}" for i in range(8)]
    L = [f"v_and_b32 {t[0]}, 7, v1", f"v_lshlrev_b32 {t[0]}, 3, {t[0]}", f"v_add_u32 {t[1]}, {LDS_X + 16640}, {t[0]}",
         f"ds_read_b64 {v(T+2,2)}, {t[1]}", f"ds_read_b32 {t[4]}, {t[1]} offset:64",
         "s_lshl_b32 s36, s2, 6", f"s_add_u32 s36, s36, {WS_ST}", "s_lshl_b32 s37, s2, 3", f"s_add_u32 s37, s37, {F.WS_KEY}",
         "s_waitcnt lgkmcnt(0)", f"v_mov_b32 {t[6]}, {t[4]}"]
    red = lambda x: flat([["s_nop 1", f"v_max_u32_dpp {x}, {x}, {x} {m} row_mask:0xf bank_mask:0xf"]
                          for m in ("quad_perm:[1,0,3,2]", "quad_perm:[2,3,0,1]", "row_half_mirror")])
    L += red(t[6]) + [f"v_cmp_eq_u32 vcc, {t[6]}, {t[4]}", "s_nop 1", f"v_cndmask_b32 {t[7]}, {t[4]}, v118, vcc"] + red(t[7])
    L += ["s_mov_b64 exec, 0xff", f"buffer_store_dwordx2 {v(T+2,2)}, {t[0]}, s[24:27], s36 offen{SC}",
          "s_mov_b64 exec, 1", f"buffer_store_dwordx2 {v(T+6,2)}, {t[0]}, s[24:27], s37 offen{SC}", "s_mov_b64 exec, -1", "s_nop 3"]
    return L

def ln_part2(k, X, T):
    t = [f"v{T+i}" for i in range(8)]
    k.e(f"v_and_b32 {t[0]}, 7, v1")
    k.e(f"v_lshrrev_b32 {t[1]}, 3, v1")
    k.e(f"v_mul_u32_u24 {t[2]}, 2064, {t[0]}")
    k.e(f"v_lshl_add_u32 {t[2]}, {t[1]}, 4, {t[2]}")
    k.e("s_lshl_b32 s36, s28, 8")
    k.e(f"s_add_u32 s36, s36, {LDS_X}")
    k.e(f"v_add_u32 {t[2]}, s36, {t[2]}")
    k.e(f"ds_read_b128 {v(X,4)}, {t[2]}")
    k.e(f"ds_read_b128 {v(X+4,4)}, {t[2]} offset:128")
    k.e(f"v_lshlrev_b32 {t[0]}, 4, {t[0]}")
    k.e(f"v_lshl_add_u32 {t[0]}, {t[1]}, 8, {t[0]}")
    k.e("s_lshr_b32 s36, s2, 1")
    k.e("s_lshl_b32 s36, s36, 15")
    k.e("s_and_b32 s37, s2, 1")
    k.e("s_lshl_b32 s37, s37, 7")
    k.e("s_add_u32 s36, s36, s37")
    k.e("s_lshl_b32 s37, s28, 12")
    k.e("s_add_u32 s36, s36, s37")
    k.e("s_waitcnt lgkmcnt(0)")
    k.e(f"buffer_store_dwordx4 {v(X,4)}, {t[0]}, s[24:27], s36 offen{SC}")
    k.e(f"buffer_store_dwordx4 {v(X+4,4)}, {t[0]}, s[24:27], s36 offen offset:2048{SC}")

KP = 128
WF = 24
XF = [64, 96]
vPOLL = "v56"
vZ = "v57"

def tlb_warm(k, cfg):
    sh = int(cfg.get("pgsh", 21))
    def one(p, size, d, idx):
        return [f"s_lshl_b32 s36, {idx}, {sh}", f"s_min_u32 s36, s36, {size-4}", f"s_add_u32 s38, s{p}, s36", f"s_addc_u32 s39, s{p+1}, 0",
                f"s_load_dword s{d}, s[38:39], 0"]
    L = ["s_lshr_b32 s58, s2, 3", "s_and_b32 s59, s58, 7", "s_add_u32 s57, s58, 32"]
    wsz = (72 + int(cfg.get("wsoff", 0))) << 20
    c4 = one(90, wsz, 98, "s58") + one(90, wsz, 99, "s57")
    c5 = one(48, 4 << 20, 98, "s59") + one(50, 4 << 20, 99, "s59") + one(96, 8 << 20, 3, "s59") + one(46, 2 << 20, 35, "s59")
    c6 = one(92, 7340032, 98, "s59") + one(94, 7340032, 99, "s59") + one(44, 4 << 20, 3, "s59")
    c7 = one(24, 8 << 20, 98, "s59") + one(4, 7340032, 99, "s59") + one(6, 4 << 20, 3, "s59")
    return L + switch(k, "s28", [(4, c4), (5, c5), (6, c6), (7, c7)])

def p1_retarget(cfg):
    L = ["v_lshrrev_b32 v3, 4, v1", "s_lshl_b32 s37, s28, 4", "v_add_u32 v19, s37, v3", "v_lshlrev_b32 v19, 13, v19",
         "s_lshl_b32 s37, s29, 8", "v_add_u32 v19, s37, v19", "v_and_b32 v16, 15, v1", "v_lshlrev_b32 v3, 1, v3",
         "v_xor_b32 v16, v16, v3", "v_lshl_add_u32 v2, v16, 4, v19", f"v_add_u32 v3, {32768-1024}, v2",
         "v_xor_b32 v16, 8, v16", "v_lshl_add_u32 v4, v16, 4, v19", f"v_add_u32 v4, {2*(32768-1024)}, v4",
         f"v_add_u32 v5, {32768-1024}, v4"]
    L += lines(srd, 4, 96, 8388608)
    L += ["s_mov_b32 s31, 0", f"s_mov_b32 s40, {128*8192}", "s_mov_b32 s10, 0", "s_mov_b32 s34, 0x30000"]
    return L

def p1(k, cfg, st):
    ACC = 128
    FR = [20, 68]
    k.e("s_load_dwordx4 s[44:47], s[0:1], 0")
    k.e("s_load_dwordx4 s[48:51], s[0:1], 24")
    k.e("s_load_dwordx2 s[52:53], s[0:1], 56")
    k.e("s_load_dwordx4 s[88:91], s[0:1], 96")
    k.e("s_load_dwordx4 s[92:95], s[0:1], 64")
    k.e("s_load_dwordx2 s[96:97], s[0:1], 16")
    k.e("s_load_dwordx2 s[24:25], s[0:1], 40")
    k.e("s_load_dwordx4 s[4:7], s[0:1], 80")
    k.e("v_and_b32 v1, 63, v0")
    k.e("v_lshrrev_b32 v16, 6, v0")
    k.e("s_and_b32 s29, s2, 7")
    k.e("v_readfirstlane_b32 s28, v16")
    k.e("s_lshl_b32 s29, s29, 2")
    k.e("s_bfe_u32 s36, s2, 0x20003")
    k.e("s_add_u32 s29, s29, s36")
    k.e("s_lshr_b32 s30, s2, 5")
    k.e("v_lshrrev_b32 v16, 3, v1")
    k.e("s_lshl_b32 s36, s30, 8")
    k.e("s_lshl_b32 s37, s28, 5")
    k.e("s_add_u32 s36, s36, s37")
    k.e("v_add_u32 v16, s36, v16")
    k.e("v_lshlrev_b32 v16, 10, v16")
    k.e("v_lshrrev_b32 v18, 4, v1")
    k.e("v_and_b32 v19, 7, v1")
    k.e("v_xor_b32 v19, v19, v18")
    k.e("v_lshl_add_u32 v2, v19, 4, v16")
    k.e("v_xor_b32 v19, 4, v19")
    k.e("v_lshl_add_u32 v3, v19, 4, v16")
    k.e(f"v_add_u32 v3, {8192-1024}, v3")
    k.e(f"v_add_u32 v4, {2*(8192-1024)}, v2")
    k.e(f"v_add_u32 v5, {2*(8192-1024)}, v3")
    k.e("s_and_b32 s36, s28, 3")
    k.e("s_lshl_b32 s37, s36, 4")
    k.e("v_add_u32 v16, s37, v18")
    k.e("v_lshlrev_b32 v16, 13, v16")
    k.e("s_lshl_b32 s37, s29, 8")
    k.e("v_add_u32 v16, s37, v16")
    k.e("v_and_b32 v19, 15, v1")
    k.e("v_lshlrev_b32 v18, 1, v18")
    k.e("v_xor_b32 v19, v19, v18")
    k.e("v_lshl_add_u32 v6, v19, 4, v16")
    k.e(f"v_add_u32 v7, {32768-1024}, v6")
    k.e("v_xor_b32 v19, 8, v19")
    k.e("v_lshl_add_u32 v8, v19, 4, v16")
    k.e(f"v_add_u32 v8, {2*(32768-1024)}, v8")
    k.e(f"v_add_u32 v9, {32768-1024}, v8")
    k.e("s_lshl_b32 s33, s28, 12")
    k.e("s_add_u32 s34, s33, 65536")
    k.e("s_mov_b32 s31, 0")
    k.e("s_mov_b32 s32, 0")
    k.e("s_mov_b32 s40, 128")
    k.e(f"s_mov_b32 s41, {64*8192}")
    def dma_list(stage):
        c = [f"buffer_load_dwordx4 v{2+j}, s[4:7], s31 offen offset:{j*1024}{NT(cfg, 'c')} lds" for j in range(4)]
        w = [f"buffer_load_dwordx4 v{6+j}, s[8:11], s32 offen offset:{j*1024}{NT(cfg, 'w')} lds" for j in range(4)]
        return f"s_add_u32 m0, s33, {stage*32768}", c, f"s_add_u32 m0, s34, {stage*32768}", w
    def dma_both(stage):
        mc, c, mw, w = dma_list(stage)
        k.e(mc); k.e(f"s_add_u32 s36, s31, {128*1024}"); k.e(c)
        k.e(mw); k.e("s_nop 0"); k.e(w)
        k.e(f"s_add_u32 m0, s33, {stage*32768+16384}"); k.e("s_nop 0"); k.e([x.replace("s31", "s36") for x in c])
        k.e(f"s_add_u32 m0, s34, {stage*32768+16384}"); k.e("s_nop 0"); k.e([x.replace("s[8:11]", "s[20:23]") for x in w])
        k.e("s_add_u32 s31, s31, s40")
        k.e("s_add_u32 s32, s32, s41")
    def setup_rest():
        k.e(f"s_add_u32 s54, s90, {int(cfg.get('wsoff', 0)) << 20}")
        k.e("s_addc_u32 s55, s91, 0")
        srd(k, 12, 54, 33554432, WS_KV)
        srd(k, 24, 54, 80 << 20)
        k.e(f"s_add_u32 s90, s54, {WS_CNT}")
        k.e("s_addc_u32 s91, s55, 0")
        k.e("v_and_b32 v16, 15, v1")
        k.e("v_lshrrev_b32 v17, 4, v1")
        k.e("s_bfe_u32 s36, s28, 0x10001")
        k.e("s_lshl_b32 s36, s36, 14")
        k.e("v_lshl_add_u32 v18, v16, 7, s36")
        k.e("v_lshrrev_b32 v19, 1, v16")
        k.e("v_xor_b32 v19, v19, v17")
        k.e("v_lshl_add_u32 v10, v19, 4, v18")
        k.e("v_xor_b32 v19, 4, v19")
        k.e("v_lshl_add_u32 v11, v19, 4, v18")
        k.e("v_lshrrev_b32 v16, 2, v16")
        k.e("v_lshl_add_u32 v18, v17, 3, v16")
        k.e("v_lshlrev_b32 v18, 8, v18")
        k.e("s_lshr_b32 s36, s28, 2")
        k.e("s_lshl_b32 s36, s36, 14")
        k.e("s_add_u32 s36, s36, 65536")
        k.e("v_add_u32 v18, s36, v18")
        k.e("v_and_b32 v19, 3, v1")
        k.e("v_lshl_add_u32 v18, v19, 3, v18")
        k.e("v_and_b32 v17, 1, v17")
        k.e("v_lshl_add_u32 v16, v17, 2, v16")
        k.e("s_and_b32 s36, s28, 1")
        k.e("s_lshl_b32 s36, s36, 2")
        for cb in range(4):
            k.e(f"s_add_u32 s37, s36, {cb}")
            k.e("v_xor_b32 v19, s37, v16")
            k.e(f"v_lshl_add_u32 v{12+cb}, v19, 5, v18")
        for r in range(128): k.e(f"v_mov_b32 v{ACC+r}, 0")
        k.e("v_mov_b32 v118, 0")
        k.e("v_mov_b32 v117, 0")
        k.e(["s_lshl_b32 s36, s30, 7", "s_lshl_b32 s37, s28, 4", "s_add_u32 s36, s36, s37", "v_bfe_u32 v17, v1, 1, 2",
             "v_add_u32 v17, s36, v17", "v_lshlrev_b32 v17, 13, v17", "v_and_b32 v19, 1, v1", "v_lshl_add_u32 v17, v19, 7, v17",
             "s_lshl_b32 s36, s29, 8", "v_add_u32 v17, s36, v17", f"s_mov_b32 s45, {4*8192}"])
    np1 = 0
    n0 = st.n
    k.e("s_cmp_lt_u32 s28, 4")
    k.e("s_cbranch_scc0 L_pro_b")
    k.e("s_waitcnt lgkmcnt(0)")
    srd(k, 4, 46, 2097152)
    srd(k, 8, 48, 4194304)
    srd(k, 20, 50, 4194304)
    k.e("s_barrier")
    emit(k, A.ool(k, ["s_cmp_eq_u32 s2, 0"], "s_cbranch_scc1",
                  ["s_mul_i32 s36, s28, 12288", f"s_add_u32 s36, s36, {WS_CNT + (int(cfg.get('wsoff', 0)) << 20)}", "v_lshl_add_u32 v16, v1, 4, s36",
                   "v_mov_b32 v108, 0", "v_mov_b32 v109, 0", "v_mov_b32 v110, 0", "v_mov_b32 v111, 0"] +
                  flat([[f"global_store_dwordx4 v16, v[108:111], s[90:91]{SC}", "v_add_u32 v16, 1024, v16"] for _ in range(12)])))
    dma_both(0)
    st.mark()
    setup_rest()
    st.mark()
    dma_both(1)
    k.e("s_waitcnt vmcnt(16)")
    st.mark()
    k.e("s_branch L_pro_j")
    k.label("L_pro_b")
    st.n = n0
    XA, XB, WP, WR = 20, 28, 36, 44
    k.e("s_and_b32 s60, s28, 3")
    k.e("s_add_u32 s61, s60, 4")
    k.e("s_lshl_b32 s42, s2, 3")
    k.e("s_add_u32 s42, s42, s60")
    k.e("s_add_u32 s43, s42, 4")
    k.e("v_lshlrev_b32 v116, 4, v1")
    k.e("s_lshl_b32 s36, s42, 11")
    k.e("s_add_u32 s37, s36, 8192")
    k.e("s_waitcnt lgkmcnt(0)")
    srd(k, 16, 44, 4194304)
    srd(k, 20, 52, 2048)
    for X_, so in ((XA, "s36"), (XB, "s37")):
        k.e(f"buffer_load_dwordx4 {v(X_,4)}, v116, s[16:19], {so} offen{NT(cfg, 'x')}")
        k.e(f"buffer_load_dwordx4 {v(X_+4,4)}, v116, s[16:19], {so} offen offset:1024{NT(cfg, 'x')}")
    k.e(f"buffer_load_dwordx4 {v(WP,4)}, v116, s[20:23], 0 offen")
    k.e(f"buffer_load_dwordx4 {v(WP+4,4)}, v116, s[20:23], 0 offen offset:1024")
    k.e("s_barrier")
    if not cfg.get("notlb"): emit(k, tlb_warm(k, cfg))
    srd(k, 4, 46, 2097152)
    srd(k, 8, 50, 4194304)
    k.e("s_mov_b32 s31, 256")
    k.e(f"s_mov_b32 s32, {2*64*8192}")
    setup_rest()
    st.mark()
    k.e("s_waitcnt vmcnt(0)")
    st.mark()
    for i in range(8):
        k.e(f"v_lshlrev_b32 v{WR+2*i}, 16, v{WP+i}")
        k.e(f"v_and_b32 v{WR+2*i+1}, 0xffff0000, v{WP+i}")
    k.e(zip2(ln_row(XA, WR, 60, 92, 36, "s42", "s60"), ln_row(XB, WR, 76, 100, 56, "s43", "s61")))
    k.e("s_waitcnt lgkmcnt(0)")
    st.mark()
    k.label("L_pro_j")
    def reads(s_, stage, fs):
        b = FR[fs]
        c = [f"ds_read_b128 {v(b+4*i,4)}, v{10+s_} offset:{stage*32768+i*2048}" for i in range(8)]
        w = [[f"ds_read_b64_tr_b16 {v(b+32+4*cb+2*t,2)}, v{12+cb} offset:{stage*32768+(32*s_+4*t)*256}" for t in range(2)] for cb in range(4)]
        return [c[0]] + w[0] + w[1] + w[2] + w[3] + c[1:]
    def accreg(i, cb, vtype):
        return ACC + ((cb*8+i) if vtype else (i*4+cb))*4
    def mfmas(fs, vtype):
        b = FR[fs]; L = []
        for i in range(8):
            for cb in range(4):
                a = accreg(i, cb, vtype)
                cf, wf = v(b+4*i, 4), v(b+32+4*cb, 4)
                Aop, Bop = (cf, wf) if vtype else (wf, cf)
                L.append(f"{MF} {v(a,4)}, {Aop}, {Bop}, {v(a,4)}")
        return L
    k.e("s_barrier")
    k.e(reads(0, 0, 0))
    emit(k, A.ool(k, ["s_add_u32 s36, s2, s28", "s_cmp_eq_u32 s36, 0"], "s_cbranch_scc1",
                  ["v_mov_b32 v19, 1", "s_mov_b64 exec, 1", "global_store_dword v118, v19, s[88:89] sc1", "s_mov_b64 exec, -1"]))
    ln_part2(k, 120, 100)
    emit(k, A.ool(k, ["s_cmp_eq_u32 s28, 7"], "s_cbranch_scc1", ln_part3(108)))
    st.mark()
    k.e("s_mov_b32 s35, 0")
    k.e("s_cmp_eq_u32 s28, 0")
    k.e("s_cselect_b32 s43, 9, 0")
    k.e("s_cselect_b32 s44, 2, 1")
    k.e("s_cmp_lt_u32 s28, 4")
    k.e("s_cbranch_scc0 L_kv_vloop")
    for vtype in range(2):
        lp = "L_kv_vloop" if vtype else "L_kv_kloop"
        k.align(6)
        k.label(lp)
        for stage in range(2):
            for s_ in range(2):
                fills = [[] for _ in range(32)]
                pre = []
                if s_ == 0:
                    k.e("s_waitcnt lgkmcnt(0)")
                    rd = reads(1, stage, 1)
                    if stage == 1 and vtype == 0:
                        fills[20] += A.ool(k, ["s_bitcmp1_b32 s43, s35"], "s_cbranch_scc1", switch(k, "s35", [
                            (0, ["global_load_dword v116, v118, s[88:89] sc1"]),
                            (3, ["v_and_b32 v117, 15, v1", f"v_add_u32 v117, {CNT_LN}, v117", "v_lshlrev_b32 v117, 7, v117",
                                 "global_load_dword v116, v117, s[90:91] sc1"])]))
                else:
                    nt = 0 if cfg.get("notouch") else 1
                    if vtype == 0 and stage == 0:
                        emit(k, A.ool(k, ["s_cmp_eq_u32 s35, 3"], "s_cbranch_scc1", p1_retarget(cfg)))
                    la, lb = k.newlabel("w0"), k.newlabel("w0b")
                    if stage == 1 and vtype == 0:
                        A.OOL.append([la + ":", "s_waitcnt vmcnt(0)"] + switch(k, "s35", [(0, check(k, "s[88:89]", "v118", "v116", 1)), (3, ln_check(k))]) + [f"s_branch {lb}"])
                        emit(k, ["s_bitcmp1_b32 s43, s35", f"s_cbranch_scc1 {la}", f"s_waitcnt vmcnt({nt})", lb + ":", "s_waitcnt lgkmcnt(0)"])
                    elif stage == 1:
                        k.e(f"s_waitcnt vmcnt({nt}) lgkmcnt(0)")
                    else:
                        A.OOL.append([la + ":"] + switch(k, "s35", [(0, ["s_waitcnt vmcnt(2)"]), (1, [f"s_waitcnt vmcnt({nt+1})"])]) + [f"s_branch {lb}"])
                        emit(k, ["s_cmp_lt_u32 s35, s44", f"s_cbranch_scc1 {la}", f"s_waitcnt vmcnt({nt})", lb + ":", "s_waitcnt lgkmcnt(0)"])
                    if nt:
                        tp = int(cfg.get("tpos", 31))
                        tl = ["s_mov_b64 exec, 0xff", f"global_load_dword v{[119, 0][stage]}, v17, s[96:97]", "s_mov_b64 exec, -1"]
                        if stage == 1: tl += ["s_cmp_eq_u32 s35, 0", "s_cselect_b32 s45, s45, 0"]
                        tl += ["v_add_u32 v17, s45, v17"]
                        fills[tp] += tl + ["s_nop 1"]
                    k.e("s_barrier")
                    rd = reads(0, stage ^ 1, 0)
                    if stage == 1 and vtype == 0:
                        fills[30] += A.ool(k, ["s_add_u32 s36, s35, s28", "s_cmp_eq_u32 s36, 0"], "s_cbranch_scc1",
                                          ["s_lshr_b32 s36, s2, 4", f"s_add_u32 s36, s36, {CNT_LN}", "s_lshl_b32 s36, s36, 7"] + signal("s[90:91]", "s36", "v16", "v19"))
                for g in range(16): fills[g].append(rd[g])
                if s_ == 1:
                    mc, c, mw, w = dma_list(stage)
                    tail = ["s_add_u32 s31, s31, s40", "s_add_u32 s32, s32, s41"]
                    if vtype == 1:
                        pre = [mc, "s_nop 0"] + c + [mw, "s_nop 0"] + w + tail
                        if stage == 1:
                            pre += A.ool(k, ["s_cmp_eq_u32 s35, 2"], "s_cbranch_scc1", p1_retarget(cfg))
                    else:
                        fills[0].append(mc)
                        for j in range(4): fills[1+3*j].append(c[j])
                        fills[12].append(mw)
                        for j in range(4): fills[13+3*j].append(w[j])
                        fills[31] += tail
                emit(k, pre)
                emit(k, weave(mfmas(s_, vtype), fills))
                if s_ == 1: k.e(cfg["sth1"].hist(8, first=(vtype == 0 and stage == 0)))
        k.e("s_add_u32 s35, s35, 1")
        k.e("s_cmp_lt_u32 s35, 4")
        k.e(f"s_cbranch_scc1 {lp}")
        if vtype == 0: k.e("s_branch L_p1_done")
    k.label("L_p1_done")

def kv_pack(k):
    for q in range(16):
        a = 128 + 8*q
        for e in range(4):
            k.e(f"v_cvt_pk_bf16_f32 v{KP+4*q+e}, v{a+2*e}, v{a+2*e+1}")
    k.e("s_mov_b32 s51, 0x55555555")
    k.e("s_lshl_b32 s38, s29, 20")
    k.e("s_lshl_b32 s37, s30, 17")
    k.e("s_add_u32 s38, s38, s37")
    k.e("s_bfe_u32 s37, s28, 0x10001")
    k.e("s_lshl_b32 s37, s37, 16")
    k.e("s_add_u32 s38, s38, s37")
    k.e("s_lshr_b32 s36, s28, 2")
    k.e("s_lshl_b32 s37, s36, 15")
    k.e("s_add_u32 s38, s38, s37")
    k.e("s_and_b32 s37, s28, 1")
    k.e("s_add_u32 s36, s36, 11")
    k.e("s_lshl_b32 s37, s37, s36")
    k.e("s_add_u32 s38, s38, s37")
    k.e("s_cmp_lt_u32 s28, 4")
    k.e("s_cselect_b32 s36, 4, 32")
    k.e("s_cselect_b32 s37, 16, 64")
    k.e("s_cselect_b32 s39, 32, 4")
    k.e("s_lshl_b32 s36, s36, 8")
    k.e("s_lshl_b32 s37, s37, 8")
    k.e("s_lshl_b32 s39, s39, 8")
    k.e("s_mov_b32 s46, s38")
    for g in range(1, 4): k.e(f"s_add_u32 s{46+g}, s{45+g}, s39")
    k.e("s_cmp_eq_u32 s30, 0")
    k.e("s_cselect_b32 s50, 0xffff, s51")
    k.e("s_cselect_b32 s52, 4, 0")
    k.e("v_lshlrev_b32 v58, 4, v1")
    k.e("v_add_u32 v59, s36, v58")
    k.e("v_add_u32 v60, s37, v58")
    k.e("v_add_u32 v61, s36, v60")

def p2_setup(k):
    k.e("s_and_b32 s36, s28, 3")
    k.e("s_sub_u32 s37, 15, s30")
    k.e("s_cmp_lt_u32 s28, 4")
    k.e("s_cselect_b32 s37, s37, s30")
    k.e("s_lshl_b32 s37, s37, 2")
    k.e("s_add_u32 s37, s37, s36")
    k.e("s_lshl_b32 s37, s37, 16")
    k.e("v_lshl_add_u32 v6, v1, 4, s37")
    k.e("v_add_u32 v7, 32768, v6")
    k.e("s_mov_b32 s32, 0")

def p2_setup2(k):
    k.e("v_lshrrev_b32 v18, 4, v1")
    k.e("v_bfe_u32 v20, v1, 2, 2")
    k.e("v_lshl_add_u32 v19, v18, 3, v20")
    k.e("v_lshlrev_b32 v19, 8, v19")
    k.e("v_and_b32 v21, 3, v1")
    k.e("v_lshl_add_u32 v19, v21, 3, v19")
    k.e("v_and_b32 v21, 1, v18")
    k.e("v_lshl_add_u32 v20, v21, 2, v20")
    for db in range(8):
        k.e(f"v_xor_b32 v21, {db}, v20")
        k.e(f"v_lshl_add_u32 v{10+db}, v21, 5, v19")
    k.e("s_lshl_b32 s45, s29, 20")

def p2_pieces(k, cfg, evA, evB):
    def wdma(stage):
        return [f"s_add_u32 m0, s33, {stage*32768}"], [VM(f"buffer_load_dwordx4 v{2+j}, s[4:7], s31 offen offset:{j*1024}{SC}{NT(cfg, 'q')} lds", ("W", stage)) for j in range(4)]
    def xld(xs, s_):
        return [VM(f"buffer_load_dwordx4 {v(XF[xs]+(s_*2+rb)*4,4)}, v{6+rb}, s[8:11], s32 offen offset:{s_*1024}{SC}", ("x", xs, s_)) for rb in range(2)]
    def wrd(stage, s_, db):
        return [DS(f"ds_read_b64_tr_b16 {v(WF+4*db+2*t,2)}, v{10+db} offset:{stage*32768+(32*s_+4*t)*256}", ("w", db)) for t in range(2)]
    def store(q):
        fl = SC if cfg.get("kvfl") is None else " " + cfg["kvfl"].replace("_", " ")
        return [VM(f"buffer_store_dwordx4 {v(KP+4*q,4)}, v{58+(q&3)}, s[12:15], s{46+(q>>2)} offen{fl}", "kvst")]
    prox = []
    for t in range(2):
        for s_ in range(4 if t == 0 else 3): prox += xld(t, s_)
        if t == 0: prox += ["s_add_u32 s32, s32, 4096"]
    D = 6
    pro2 = [wrd(0, 0, db) for db in range(D)]
    halves = []
    for stage in range(2):
        M, fills, pre = [], [[] for _ in range(64)], {}
        for s_ in range(4):
            for db in range(8):
                for rb in range(2):
                    o = A.Oreg(rb, db)
                    M.append(f"{MF} {v(o,4)}, {v(WF+4*db,4)}, {v(XF[stage]+(s_*2+rb)*4,4)}, {v(o,4)}")
        for p in range(32):
            if p % 2 == 0: pre[2*p] = [Need("ds", [("w", p % 8), ("w", (p+1) % 8)])]
            if p % 8 == 0: pre[2*p] += [Need("vm", [("x", stage, p // 8)])]
            f = p + D
            if f < 32:
                r = wrd(stage, f // 8, f % 8)
                fills[2*p] += [r[0]]; fills[2*p+1] += [r[1]]
        pre[0] = [evB[stage]] + pre[0]
        fills[2*27+1] += [evA[stage], "s_waitcnt lgkmcnt(0)", Need("vm", [("W", stage ^ 1)]), "s_barrier"]
        nx = {28: [0, 1], 29: [2, 3], 30: [4], 31: [5]}
        for p, fl in nx.items():
            for i, f in enumerate(fl):
                fills[2*p+i] += wrd(stage ^ 1, 0, f)
        for s_ in range(4):
            xl = xld(stage ^ 1, 3) if s_ == 0 else xld(stage, s_-1)
            fills[16*s_+2] += [xl[0]]; fills[16*s_+6] += [xl[1]]
            if s_ == 0:
                fills[7] += ["s_add_u32 s32, s32, 4096"]
                if stage == 0:
                    fills[8] += ["s_cmp_lt_u32 s35, 3", "s_cselect_b32 s10, 4194304, 0"]
            cases = {4+i: store(8*i + 4*stage + s_) for i in range(2)}
            if s_ % 2 == 0: cases.update({i: store(4*i + 2*stage + s_//2) for i in range(4)})
            order = sorted(cases)
            if not cfg.get("nokvst"):
                spos = [int(x) for x in cfg.get("spos", "9,27,13,31").split(",")]
                fills[spos[s_]] += [Alt(A.ool(k, [f"s_bitcmp1_b32 s50, {4*stage+s_}"], "s_cbranch_scc1",
                                        ["s_add_u32 s36, s35, s52"] + switch(k, "s36", [(c, cases[c]) for c in order])),
                                    lambda c, cases=cases: cases.get(c["it"] + 4*c["fast"]))]
        m, d = wdma(stage)
        fills[2*29+1] += m
        fills[60] += [d[0]]; fills[61] += [d[1]]; fills[62] += [d[2]]; fills[63] += [d[3], "s_add_u32 s31, s31, s40"]
        halves.append(weave(M, fills, pre))
    return prox, pro2, halves

def p2_events(k, cfg):
    W0 = (["s_cmp_eq_u32 s28, 0"], "s_cbranch_scc0")
    def E3():
        return ["s_mov_b64 s[4:5], s[12:13]", "s_mov_b32 s6, s14", "s_mov_b32 s31, s45", "s_mov_b32 s40, 65536",
                "v_add_u32 v2, s33, v58", "v_mov_b32 v3, v2", "v_mov_b32 v4, v2", "v_mov_b32 v5, v2"]
    def V0():
        return ["s_add_u32 m0, s33, 65536", "s_add_u32 s36, s45, 32768"] + \
               [VM(f"buffer_load_dwordx4 v2, s[12:15], s36 offen offset:{j*1024}{SC} lds", "v0") for j in range(4)]
    off0 = [f"s_add_u32 s36, s29, {CNT_KV0}", "s_lshl_b32 s36, s36, 7"]
    sig0 = guard(k, ["s_add_u32 s36, s28, s30", "s_cmp_eq_u32 s36, 4"], "s_cbranch_scc0", off0 + signal("s[90:91]", "s36", "v62", "v63"), "sg")
    pol0 = guard(k, *W0, off0 + [f"v_mov_b32 {vZ}, s36", VM(f"global_load_dword {vPOLL}, {vZ}, s[90:91] sc1", "poll")], "w0")
    chk0 = guard(k, *W0, [Need("vm", ["poll"])] + check(k, "s[90:91]", vZ, vPOLL, 1), "w0")
    evs = {"A": {(2, 0): [], (2, 1): [pol0], (3, 0): E3() + [chk0]},
           "B": {(2, 0): [], (2, 1): [sig0], (3, 0): E3()}}
    v0 = V0()
    out = {}
    for g, cmp_ in (("A", "s_cmp_lt_u32 s28, 4"), ("B", "s_cmp_ge_u32 s28, 4")):
        out[g] = []
        for stage in range(2):
            cs = [(it, evs[g][(it, st_)]) for (it, st_) in sorted(evs[g]) if st_ == stage]
            inner = []
            if g == "B" and stage == 1:
                l = k.newlabel("nv0")
                inner += ["s_cmp_eq_u32 s35, 3", f"s_cbranch_scc0 {l}"] + v0 + [l + ":"]
                cs = cs + [(3, [])]
            elif stage == 1: cs = cs + [(3, [])]
            l = k.newlabel("ng")
            inner += [cmp_, f"s_cbranch_scc0 {l}"] + switch(k, "s35", cs) + [l + ":"]
            def pick(c, g=g, stage=stage):
                r = []
                if g == "B" and stage == 1 and c["it"] == 3: r += v0
                if c["grp"] == g: r += evs[g].get((c["it"], stage), [])
                return r
            out[g].append(Alt(A.ool(k, ["s_cmp_ge_u32 s35, 2"], "s_cbranch_scc1", inner), pick))
    return out["A"], out["B"]

def p2(k, cfg, st):
    evA, evB = p2_events(k, cfg)
    prox, pro2, halves = p2_pieces(k, cfg, evA, evB)
    body = [halves[0], cfg["sth2"].hist(8), halves[1], cfg["sth2"].hist(8, first=False)]
    nq = Need("vm", [("W", 0), "v0", "kvst", "xsel"] + [("x", a, b) for a in range(2) for b in range(4)])
    n0 = Need("vm", [("x", 0, 3)])
    scen = []
    for grp, w0 in (("A", 0), ("A", 1), ("B", 0), ("B", 1)):
        for ffn in (0,):
            for fast in (0, 1):
                sq = [VM("", ("W", 1))]*4 + [VM("", None)]*(4 if cfg.get("notouch") else 5) + flat([prox, pro2, n0])
                for it in range(4): sq += flat(body, dict(it=it, w0=w0, ffn=ffn, fast=fast, grp=grp, sg=fast and w0))
                scen.append(sq + [nq])
    resolve(scen)
    cfg["qwait"] = nq.n
    st.mark()
    k.e("s_waitcnt vmcnt(9) lgkmcnt(0)")
    p2_setup(k)
    srd(k, 8, 54, 4194304)
    emit(k, prox)
    p2_setup2(k)
    emit(k, pro2)
    kv_pack(k)
    for r in range(64): k.e(f"v_mov_b32 v{A.O_+r}, 0")
    k.e("s_mov_b32 s35, 0")
    emit(k, [n0])
    st.mark()
    k.align(6)
    k.label("L_p2_loop")
    emit(k, body)
    k.e("s_lshr_b32 s50, s50, 8")
    k.e("s_add_u32 s35, s35, 1")
    k.e("s_cmp_lt_u32 s35, 4")
    k.e("s_cbranch_scc1 L_p2_loop")
    st.mark()
```

```python
from common import *
import attn as A
import ffn as F
import oproj as O
from fused_a import *

X32, G = 96, 112
XI, YA = 40, 160
WR4, XF4 = 64, [128, 160]
PRE, FW, HH, DD = 96, 112, 36, 96
LDS_P4 = 65536

CFG = {}
def after_q(k, grp):
    srd(k, 16, 54, 16777216, WS_CTX)
    if grp == 0:
        srd(k, 4, 92, 7340032)
        srd(k, 8, 94, 7340032)
        k.e("s_and_b32 s60, s29, 3")
        k.e(f"s_add_u32 s60, s60, {CFG.get('e0', 4)}")
        k.e("s_sub_u32 s3, s2, 32")
        k.e("s_cmp_eq_u32 s28, 0")
        k.e("s_cselect_b32 s36, 0xad, 0x2d")
        k.e("s_cselect_b32 s42, 14, 12")
        k.e("s_cmp_lt_u32 s3, 224")
        k.e("s_cselect_b32 s36, s36, 0")
        k.e("s_lshl_b32 s36, s36, s60")
        k.e("s_or_b32 s42, s42, s36")
    else:
        emit(k, A.ool(k, ["s_cmp_eq_u32 s28, 4"], "s_cbranch_scc1", ["s_lshl_b32 s36, s29, 7"] + signal("s[90:91]", "s36", "v20", "v21")))
        k.e("s_sub_u32 s36, s2, 128")
        k.e("s_lshl_b32 s36, s36, 2")
        k.e("s_and_b32 s37, s28, 3")
        k.e("s_add_u32 s36, s36, s37")
        k.e("s_lshl_b32 s36, s36, 14")
        k.e("v_lshl_add_u32 v13, v1, 7, s36")
        k.e("s_cmp_ge_u32 s2, 128")
        k.e(f"s_cselect_b32 s39, {2 if CFG.get('nobt') else 9}, 2")

def pro_wait(k, grp):
    if grp == 0: return ["s_waitcnt vmcnt(0)"]
    l = k.newlabel("pw")
    return ["s_waitcnt vmcnt(1)", "s_cmp_eq_u32 s28, 4", f"s_cbranch_scc1 {l}", "s_waitcnt vmcnt(0)", l + ":"]

def pro_hook(k, grp):
    if grp == 0:
        return A.ool(k, ["s_cmp_eq_u32 s28, 0"], "s_cbranch_scc1",
                     ["s_lshl_b32 s36, s29, 7", "v_mov_b32 v13, s36", "global_load_dword v14, v13, s[90:91] sc1"])
    return []

def b_hook(k):
    l = k.newlabel("bt")
    mats = ((92, 7340032), (94, 7340032), (8, 7340032), (4, 8388608))
    if CFG.get("bt", "2") == "2": mats = mats[2:]
    n = 8 // len(mats)
    def t(p, size, h, i):
        L = [f"v_add_u32 v11, {16384//n*h}, v13", f"v_min_u32 v11, {size-128}, v11"]
        ld = f"global_load_dword v{[10, 12, 16, 17][i % 4]}, v11, s[{p}:{p+1}]"
        return L + ([ld] if n == 2 else ["s_mov_b32 exec_hi, 0", ld, "s_mov_b32 exec_hi, -1", "s_nop 1"])
    cases = [(1+n*i+h, t(p, sz, h, n*i+h)) for i, (p, sz) in enumerate(mats) for h in range(n)]
    return ["s_cmp_eq_u32 s39, 2", f"s_cbranch_scc1 {l}", "s_waitcnt vmcnt(3)"] + switch(k, "s40", cases) + [l + ":"]

def bar_hook(k, grp):
    if grp == 1: return []
    QS = A.QS_
    keys = [f"s_mov_b32 s36, {F.WS_KEY}"] + [f"buffer_load_dwordx4 {v(QS+4*i,4)}, {A.vL16}, s[24:27], s36 offen offset:{i*1024}{SC}" for i in range(2)]
    t2 = K("t"); F.top2(t2, QS, 26, 8, 20)
    top = [x.strip() for x in t2.lines]
    top += ["v_and_b32 v26, 1, v1", "v_mov_b32 v27, s56", "v_mov_b32 v28, s57", "v_cmp_eq_u32 vcc, 1, v26", "s_nop 1",
            "v_cndmask_b32 v27, v27, v28, vcc", "v_lshrrev_b32 v28, 4, v27", "v_lshlrev_b32 v28, 15, v28", "v_and_b32 v27, 15, v27",
            "v_lshl_add_u32 v28, v27, 4, v28", "v_lshrrev_b32 v29, 4, v1", "v_lshl_add_u32 v28, v29, 8, v28",
            "s_and_b32 s36, s3, 3", "s_lshl_b32 s36, s36, 13", "s_add_u32 s37, s36, 4096",
            "s_mov_b32 exec_lo, 0x00030003", "s_mov_b32 exec_hi, 0x00030003"]
    top += [f"buffer_load_dwordx4 {v(QS+4*i,4)}, v28, s[24:27], s{36+i//4} offen offset:{(i%4)*1024}{SC}" for i in range(8)]
    top += ["s_mov_b64 exec, -1"]
    def dma(m):
        L = ["s_and_b32 s20, s3, 3", "s_lshl_b32 s20, s20, 8", "s_lshl_b32 s21, s28, 5", "s_add_u32 s20, s20, s21",
             "s_lshr_b32 s21, s3, 2", "s_lshl_b32 s21, s21, 7"] + lines(F.wdma_addr, 26, "s20", 7168, "s21")
        L += ["s_lshl_b32 s36, s28, 13", f"s_add_u32 m0, s36, {LDS_X}", f"s_mov_b32 s37, {32*7168}"]
        L += [f"buffer_load_dwordx4 v{26+j}, s[{4+4*m}:{7+4*m}], 0 offen offset:{j*1024}{NT(CFG, 'f')} lds" for j in range(4)]
        L += [f"s_add_u32 m0, s36, {LDS_X+4096}", "s_nop 0"]
        L += [f"buffer_load_dwordx4 v{26+j}, s[{4+4*m}:{7+4*m}], s37 offen offset:{j*1024}{NT(CFG, 'f')} lds" for j in range(4)]
        return L
    def mm(m):
        L = lines(F.wrd_addr, "v20", "v21", "v8")
        L += ["v_xor_b32 v21, s28, v21", "v_lshl_add_u32 v20, v21, 5, v20", f"v_add_u32 v20, {LDS_X}, v20"]
        rd = lambda h: [f"ds_read_b64_tr_b16 {v(22+4*s_+2*t,2)}, v20 offset:{(32*(4*h+s_)+4*t)*128}" for s_ in range(4) for t in range(2)]
        L += rd(0)
        L += ["s_and_b32 s36, s3, 3", "s_lshl_b32 s36, s36, 1", f"s_add_u32 s36, s36, {m}",
              f"s_mul_i32 s36, s36, {2*14336}", "s_lshr_b32 s37, s3, 2", "s_lshl_b32 s37, s37, 8", "s_add_u32 s36, s36, s37",
              "s_lshl_b32 s37, s28, 6", "s_add_u32 s36, s36, s37",
              f"s_add_u32 s36, s36, {WS_PRE}", "v_and_b32 v9, 1, v1", "v_mul_u32_u24 v9, 14336, v9", "v_lshl_add_u32 v9, v8, 4, v9",
              "s_waitcnt lgkmcnt(0)"]
        L += [f"{MF} v[10:13], {v(22+4*s_,4)}, {v(QS+4*s_,4)}, {'v[10:13]' if s_ else '0'}" for s_ in range(4)]
        L += rd(1) + ["s_waitcnt lgkmcnt(0)"]
        L += [f"{MF} v[10:13], {v(22+4*s_,4)}, {v(QS+16+4*s_,4)}, v[10:13]" for s_ in range(4)]
        L += ["s_nop 5", "s_mov_b32 exec_lo, 0x00030003", "s_mov_b32 exec_hi, 0x00030003",
              f"buffer_store_dwordx4 v[10:13], v9, s[24:27], s36 offen{SC}", "s_mov_b64 exec, -1", "s_nop 1"]
        return L
    sig = ["s_mul_i32 s36, s3, 2341", "s_lshr_b32 s36, s36, 16", f"s_add_u32 s36, s36, {CNT_F1}", "s_lshl_b32 s36, s36, 7"] + signal("s[90:91]", "s36", "v20", "v21")
    ffn = ["s_sub_u32 s38, s40, s60"] + switch(k, "s38", [(0, dma(0)), (2, mm(0)), (3, dma(1)), (5, mm(1)), (7, sig)])
    return A.ool(k, ["s_bitcmp1_b32 s42, s40"], "s_cbranch_scc1",
                 switch(k, "s40", [(1, check(k, "s[90:91]", "v13", "v14", 8)), (2, keys), (3, top), (4, ffn)]))

def before_tail(k, grp):
    k.e("s_load_dwordx2 s[92:93], s[0:1], 40")
    k.e("s_load_dwordx2 s[94:95], s[0:1], 80")
    k.e("s_waitcnt vmcnt(0) lgkmcnt(0)")
    srd(k, 4, 94, 7340032)
    srd(k, 8, 92, 8388608)
    k.e("s_lshr_b32 s38, s2, 4")
    k.e("s_mul_i32 s38, s38, 224")
    k.e("s_and_b32 s39, s2, 15")
    k.e("s_lshl_b32 s39, s39, 7")
    F.wdma_addr(k, 26, "s38", 2048, "s39")
    k.e("s_lshl_b32 s36, s28, 12")
    k.e(f"s_add_u32 s36, s36, {LDS_X}")
    k.e("s_cmp_lt_u32 s28, 7")
    k.e("s_cselect_b32 m0, s36, 0x30000")
    k.e("s_cselect_b32 s6, 7340032, 0")
    for j in range(4): k.e(f"buffer_load_dwordx4 v{26+j}, s[4:7], 0 offen offset:{j*1024} lds")
    k.e("s_lshr_b32 s36, s2, 5")
    k.e(f"s_add_u32 s36, s36, {CNT_F1}")
    k.e("s_lshl_b32 s36, s36, 7")
    k.e("v_mov_b32 v12, s36")
    k.e("global_load_dword v11, v12, s[90:91] sc1")

def gcalc(k, withy, cbs=range(4)):
    for cb in cbs:
        for h in range(2):
            a, b = X32+4*cb+2*h, X32+4*cb+2*h+1
            ga, gb = G+4*cb+2*h, G+4*cb+2*h+1
            k.e(f"v_lshlrev_b32 v{a}, 16, v{XI+2*cb+h}")
            k.e(f"v_and_b32 v{b}, 0xffff0000, v{XI+2*cb+h}")
            k.e(f"v_sub_f32 v{ga}, v{a}, v{XI+8}")
            k.e(f"v_sub_f32 v{gb}, v{b}, v{XI+8}")
            def rnd2():
                k.e(f"v_cvt_pk_bf16_f32 v23, v{ga}, v{gb}")
                k.e(f"v_lshlrev_b32 v{ga}, 16, v23")
                k.e(f"v_and_b32 v{gb}, 0xffff0000, v23")
            rnd2()
            k.e(f"v_mul_f32 v{ga}, v{ga}, v{XI+9}")
            k.e(f"v_mul_f32 v{gb}, v{gb}, v{XI+9}")
            rnd2()
            if withy:
                k.e(f"v_add_f32 v{ga}, v{ga}, v{YA+4*cb+2*h}")
                k.e(f"v_add_f32 v{gb}, v{gb}, v{YA+4*cb+2*h+1}")
                rnd2()
            k.e(f"v_mul_f32 v24, 0xbfb8aa3b, v{ga}")
            k.e(f"v_mul_f32 v25, 0xbfb8aa3b, v{gb}")
            k.e("v_exp_f32 v24, v24")
            k.e("v_exp_f32 v25, v25")
            k.e("s_nop 0")
            k.e("v_add_f32 v24, 1.0, v24")
            k.e("v_add_f32 v25, 1.0, v25")
            k.e("v_rcp_f32 v24, v24")
            k.e("v_rcp_f32 v25, v25")
            k.e("s_nop 0")
            k.e(f"v_mul_f32 v{ga}, v{ga}, v24")
            k.e(f"v_mul_f32 v{gb}, v{gb}, v25")
            rnd2()

def ffn2_math(k):
    F.wrd_addr(k, "v26", "v27", "v28")
    k.e("s_lshl_b32 s36, s28, 12")
    k.e(f"s_add_u32 s36, s36, {LDS_X}")
    k.e("v_add_u32 v26, s36, v26")
    for cb in range(4):
        k.e(f"v_xor_b32 v28, {cb}, v27")
        k.e("v_lshl_add_u32 v28, v28, 5, v26")
        for t in range(2):
            k.e(f"ds_read_b64_tr_b16 {v(FW+4*cb+2*t,2)}, v28 offset:{4*t*128}")
    for m in ("row_ror:4", "row_ror:8"):
        for e in range(8): k.e(f"v_add_f32_dpp v{PRE+e}, v{PRE+e}, v{PRE+e} {m} row_mask:0xf bank_mask:0xf")
    for e in range(0, 8, 2):
        k.e(f"v_cvt_pk_bf16_f32 v29, v{PRE+e}, v{PRE+e+1}")
        k.e(f"v_lshlrev_b32 v{PRE+e}, 16, v29")
        k.e(f"v_and_b32 v{PRE+e+1}, 0xffff0000, v29")
    for e in range(8): k.e(f"v_mul_f32 v{PRE+8+e}, 0xbfb8aa3b, v{PRE+e}")
    for e in range(8): k.e(f"v_exp_f32 v{PRE+8+e}, v{PRE+8+e}")
    for e in range(8): k.e(f"v_add_f32 v{PRE+8+e}, 1.0, v{PRE+8+e}")
    for e in range(8): k.e(f"v_rcp_f32 v{PRE+8+e}, v{PRE+8+e}")
    for e in range(8): k.e(f"v_mul_f32 v{PRE+8+e}, v{PRE+e}, v{PRE+8+e}")
    for e in range(0, 8, 2):
        k.e(f"v_cvt_pk_bf16_f32 v29, v{PRE+8+e}, v{PRE+8+e+1}")
        k.e(f"v_lshlrev_b32 v{PRE+8+e}, 16, v29")
        k.e(f"v_and_b32 v{PRE+8+e+1}, 0xffff0000, v29")
    for e in range(8): k.e(f"v_mul_f32_dpp v{PRE+e}, v{PRE+e}, v{PRE+8+e} quad_perm:[2,3,0,1] row_mask:0xf bank_mask:0xf")
    for q in range(4): k.e(f"v_cvt_pk_bf16_f32 v{HH+q}, v{PRE+2*q}, v{PRE+2*q+1}")
    k.e("s_waitcnt lgkmcnt(0)")
    k.e("v_lshl_add_u32 v28, v1, 4, s36")
    for cb in range(4): k.e(f"{MF} {v(DD+4*cb,4)}, {v(FW+4*cb,4)}, {v(HH,4)}, 0")
    k.e("s_nop 7")
    for cb in range(4): k.e(f"ds_write_b128 v28, {v(DD+4*cb,4)} offset:{cb*1024}")

def ffn2_reduce():
    L = ["s_lshl_b32 s36, s28, 10", f"s_add_u32 s36, s36, {LDS_X}", "v_lshl_add_u32 v28, v1, 4, s36"]
    L += [f"ds_read_b128 {v(PRE+4*w,4)}, v28 offset:{w*4096}" for w in range(7)]
    L += ["s_lshr_b32 s36, s2, 4", "s_lshl_b32 s36, s36, 13", "s_and_b32 s37, s2, 15", "s_lshl_b32 s37, s37, 8", "s_add_u32 s36, s36, s37",
          "s_lshl_b32 s37, s28, 6", "s_add_u32 s36, s36, s37", f"s_add_u32 s36, s36, {WS_YP}",
          "v_and_b32 v28, 1, v1", "v_lshlrev_b32 v28, 12, v28", "v_lshl_add_u32 v28, v19, 4, v28", "s_waitcnt lgkmcnt(0)"]
    for w in range(1, 7):
        L += [f"v_add_f32 v{PRE+e}, v{PRE+e}, v{PRE+4*w+e}" for e in range(4)]
    L += ["s_mov_b32 exec_lo, 0x00030003", "s_mov_b32 exec_hi, 0x00030003",
          VM(f"buffer_store_dwordx4 {v(DD,4)}, v28, s[24:27], s36 offen{SC}", "yp"), "s_mov_b64 exec, -1", "s_nop 3"]
    return L

def p4_setup(k):
    k.e("s_and_b32 s63, s30, 1")
    k.e("s_bfe_u32 s36, s2, 0x10002")
    k.e("s_lshl_b32 s36, s36, 3")
    k.e("s_add_u32 s30, s30, s36")
    k.e("s_and_b32 s29, s29, 15")
    k.e("s_and_b32 s36, s28, 3")
    k.e("s_lshl_b32 s37, s29, 2")
    k.e("s_add_u32 s36, s36, s37")
    k.e("s_lshl_b32 s36, s36, 18")
    k.e("s_lshr_b32 s37, s28, 2")
    k.e("s_lshl_b32 s37, s37, 12")
    k.e("s_add_u32 s36, s36, s37")
    k.e("s_lshl_b32 s37, s63, 16")
    k.e("s_add_u32 s36, s36, s37")
    k.e("v_lshl_add_u32 v2, v1, 4, s36")
    k.e(f"v_add_u32 v3, {1<<17}, v2")
    k.e("v_lshrrev_b32 v19, 4, v1")
    k.e("s_lshl_b32 s36, s28, 5")
    k.e("s_lshl_b32 s37, s63, 11")
    k.e("s_add_u32 s36, s36, s37")
    k.e("v_add_u32 v18, s36, v19")
    k.e("v_lshlrev_b32 v18, 11, v18")
    k.e("s_lshr_b32 s36, s30, 1")
    k.e("s_lshl_b32 s36, s36, 8")
    k.e("v_add_u32 v18, s36, v18")
    k.e("v_lshlrev_b32 v20, 1, v19")
    k.e("v_and_b32 v21, 15, v1")
    k.e("v_xor_b32 v20, v20, v21")
    k.e("v_lshl_add_u32 v6, v20, 4, v18")
    k.e("v_xor_b32 v20, 8, v20")
    k.e("v_lshl_add_u32 v7, v20, 4, v18")
    k.e(f"v_add_u32 v7, {8192-1024}, v7")
    k.e(f"v_add_u32 v8, {2*(8192-1024)}, v6")
    k.e(f"v_add_u32 v9, {2*(8192-1024)}, v7")
    k.e("s_lshl_b32 s33, s28, 13")
    k.e("s_add_u32 s36, s2, 1")
    k.e("s_and_b32 s62, s36, 3")
    k.e("s_lshl_b32 s31, s62, 14")
    k.e("s_lshl_b32 s32, s62, 20")

def p4_setup2(k):
    k.e("v_bfe_u32 v20, v1, 2, 2")
    k.e("v_lshl_add_u32 v18, v19, 2, v20")
    k.e("v_and_b32 v20, 7, v18")
    k.e("v_lshlrev_b32 v18, 8, v18")
    k.e("s_lshr_b32 s36, s28, 2")
    k.e("s_lshl_b32 s36, s36, 15")
    k.e("s_add_u32 s36, s36, 65536")
    k.e("v_add_u32 v18, s36, v18")
    k.e("v_and_b32 v21, 3, v1")
    k.e("v_lshl_add_u32 v18, v21, 3, v18")
    for cb in range(8):
        k.e(f"v_xor_b32 v21, {cb}, v20")
        k.e(f"v_lshl_add_u32 v{50+cb}, v21, 5, v18")
    for r in range(64): k.e(f"v_mov_b32 v{A.O_+r}, 0")

def ctx_ready(k, n):
    l, le = k.newlabel("cspin"), k.newlabel("cspinx")
    return ["s_mov_b32 s61, 0x40000", l + ":", "s_sub_u32 s61, s61, 1", f"s_cbranch_scc1 {le}",
            "global_load_dword v31, v30, s[90:91] sc1", "s_waitcnt vmcnt(0)", "v_cmp_le_u32 vcc, 4, v31", "s_nop 0",
            "s_and_b32 s60, vcc_lo, 15", f"s_and_b32 s36, s60, {(1<<n)-1}", f"s_cmp_eq_u32 s36, {(1<<n)-1}", f"s_cbranch_scc1 {le}",
            "s_sleep 6", f"s_branch {l}", le + ":"]

def p4_pieces(k, cfg, tops):
    def wdma(stage):
        L = []
        for h in range(2):
            so = "s32" if h == 0 else "s37"
            L.append([f"s_add_u32 m0, s34, {(stage^1)*65536 + h*4096}"] + ([] if h == 0 else ["s_add_u32 s37, s32, 32768"]))
            L += [[VM(f"buffer_load_dwordx4 v{6+j}, s[8:11], {so} offen offset:{j*1024} lds", ("W", stage))] for j in range(4)]
        L.append([f"s_add_u32 s32, s32, {256*2048}", "s_and_b32 s32, s32, 0x3fffff"])
        return L
    def xld(xs, s_):
        return [VM(f"buffer_load_dwordx4 {v(XF4[xs]+(s_*2+rb)*4,4)}, v{2+rb}, s[4:7], s31 offen offset:{s_*1024}{SC}", ("x", xs, s_)) for rb in range(2)]
    def wrd(s_, cb):
        return [DS(f"ds_read_b64_tr_b16 {v(WR4+4*cb+2*t,2)}, v{50+cb} offset:{(32*s_+16*t)*256}", ("w", cb)) for t in range(2)]
    xadv = ["s_add_u32 s31, s31, 8192", "s_and_b32 s31, s31, 0xffff"]
    nopw = lambda L: [g + (["s_nop 0"] if i == 0 else []) for i, g in enumerate(L)]
    prow0 = ["s_mov_b32 s34, s33"] + nopw(wdma(0)) + nopw(wdma(1))[:-1] + ["s_mov_b32 s10, 0", "s_mov_b32 s34, 0x30000"]
    prox = [xld(0, s_) for s_ in range(4)] + xadv
    D = 6
    pro2 = [wrd(0, cb) for cb in range(D)] + ["s_mov_b32 s35, 0", Need("vm", [("x", 0, int(cfg.get("xw", 1)))])] + [xld(1, s_) for s_ in range(3)]
    body = []
    for stage in range(2):
        M, fills, pre = [], [[] for _ in range(64)], {}
        for s_ in range(4):
            for cb in range(8):
                for rb in range(2):
                    o = A.Oreg(rb, cb)
                    M.append(f"{MF} {v(o,4)}, {v(WR4+4*cb,4)}, {v(XF4[stage]+(s_*2+rb)*4,4)}, {v(o,4)}")
        for p in range(32):
            if p % 2 == 0: pre[2*p] = [Need("ds", [("w", p % 8), ("w", (p+1) % 8)])]
            if p % 8 == 0: pre[2*p] += [Need("vm", [("x", stage, p // 8)])]
            f = p + D
            if f < 32:
                r = wrd(f // 8, f % 8)
                fills[2*p] += [r[0]]; fills[2*p+1] += [r[1]]
                if f >= 24: fills[2*p+1] += [f"v_xor_b32 v{50+f%8}, 65536, v{50+f%8}"]
        pre[0] = [tops[stage]] + pre[0]
        ev = []
        if stage == 1:
            chk = switch(k, "s35", [(0, ctx_ready(k, 3)), (1, ctx_ready(k, 4))])
            ev = [Alt(A.ool(k, ["s_cmp_lt_u32 s60, 15"], "s_cbranch_scc1", chk), lambda c: [])]
        fills[2*27+1] += ev + ["s_waitcnt lgkmcnt(0)", Need("vm", [("W", stage ^ 1)]), "s_barrier"]
        nx = {28: [0, 1], 29: [2, 3], 30: [4], 31: [5]}
        for p, fl in nx.items():
            for i, f in enumerate(fl): fills[2*p+i] += wrd(0, f)
        wd = wdma(stage ^ 1)
        wpos = [0, 1, 4, 7, 10, 12, 13, 16, 19, 22, 23]
        for i, g in enumerate(wd): fills[wpos[i]] += g
        for s_ in range(4):
            xl = xld(stage ^ 1, 3) if s_ == 0 else xld(stage, s_-1)
            base = [2, 25, 34, 50][s_]
            fills[base] += [xl[0]]; fills[base+4 if s_ else 5] += [xl[1]]
            if s_ == 0:
                fills[6] += xadv
                if stage == 0: fills[8] += ["s_cmp_lt_u32 s35, 3", "s_cselect_b32 s6, 16777216, 0"]
        if stage == 0:
            fills[62] += ["s_cmp_lt_u32 s35, 3", "s_cselect_b32 s10, 8388608, 0", "s_cselect_b32 s34, s33, 0x20000"]
        body += weave(M, fills, pre)
    return prow0, prox, pro2, body

def routed(k):
    for r in range(16): k.e(f"v_mov_b32 v{YA+r}, 0")
    k.e(f"s_add_u32 s36, s30, {CNT_F2}")
    k.e("s_lshl_b32 s36, s36, 7")
    k.e("v_mov_b32 v22, s36")
    emit(k, spin(k, "s[90:91]", "v22", "v23", 16, 1))
    for t in range(2):
        lsk = k.newlabel("noy")
        k.e(f"s_sub_u32 s36, s{56+t}, s38")
        k.e("s_cmp_lt_u32 s36, 16")
        k.e(f"s_cbranch_scc0 {lsk}")
        k.e("s_lshl_b32 s37, s30, 8")
        k.e(f"s_add_u32 s37, s37, {WS_YP + t*4096}")
        k.e("v_and_b32 v22, 15, v1")
        k.e("v_lshlrev_b32 v22, 13, v22")
        k.e("v_lshl_add_u32 v22, v19, 4, v22")
        for cb in range(4):
            k.e(f"buffer_load_dwordx4 {v(64+4*cb,4)}, v22, s[24:27], s37 offen offset:{cb*64}{SC}")
        k.e(f"s_and_b32 s36, s{58+t}, 0xffff0000")
        k.e("s_cmp_lt_i32 s36, 0")
        k.e("s_cselect_b32 s37, 0x80000000, -1")
        k.e("s_xor_b32 s36, s36, s37")
        k.e("s_and_b32 s36, s36, 0xffff0000")
        k.e("v_mov_b32 v24, s36")
        k.e("v_mul_f32 v24, 0xbfb8aa3b, v24")
        k.e("v_exp_f32 v24, v24")
        k.e("s_nop 0")
        k.e("v_add_f32 v24, 1.0, v24")
        k.e("v_rcp_f32 v24, v24")
        k.e("s_nop 0")
        rbf(k, "v24")
        k.e("s_waitcnt vmcnt(0)")
        for m in ["quad_perm:[1,0,3,2]", "quad_perm:[2,3,0,1]", "row_half_mirror", "row_mirror"]:
            for r in range(16):
                k.e(f"v_add_f32_dpp v{64+r}, v{64+r}, v{64+r} {m} row_mask:0xf bank_mask:0xf")
        k.e(f"v_cmp_eq_u32 vcc, s{56+t}, v14")
        for r in range(16):
            rbf(k, f"v{64+r}")
            k.e(f"v_mul_f32 v{64+r}, v24, v{64+r}")
            rbf(k, f"v{64+r}")
            k.e(f"v_cndmask_b32 v{YA+r}, v{YA+r}, v{64+r}, vcc")
        k.label(lsk)
    gcalc(k, True)

def p4_epilogue(k, cfg, kh):
    o = 1 - kh
    for cb in range(8): k.e(f"ds_write_b128 v20, {v(A.Oreg(o,cb),4)} offset:{cb*1024}")
    k.e("s_waitcnt lgkmcnt(0)")
    k.e("s_barrier")
    for cb in range(8): k.e(f"ds_read_b128 {v(128+4*cb,4)}, v21 offset:{cb*1024}")
    for cb in range(8):
        k.e(f"s_waitcnt lgkmcnt({7-cb})")
        for e in range(4): k.e(f"v_add_f32 v{128+4*cb+e}, v{128+4*cb+e}, v{A.Oreg(kh,cb)+e}")

def p4_final(k, cfg):
    l1 = k.newlabel("p1")
    k.e("s_cmp_eq_u32 s63, 0")
    k.e(f"s_cbranch_scc1 {l1}")
    for r in range(16): k.e(f"v_swap_b32 v{128+r}, v{144+r}")
    k.label(l1)
    k.e("s_lshl_b32 s36, s2, 15")
    k.e("s_lshl_b32 s37, s28, 12")
    k.e("s_add_u32 s36, s36, s37")
    k.e(f"s_add_u32 s36, s36, {WS_EX}")
    k.e(f"s_xor_b32 s39, s36, {32 << 15}")
    k.e("v_lshlrev_b32 v22, 4, v1")
    for cb in range(4): k.e(f"buffer_store_dwordx4 {v(144+4*cb,4)}, v22, s[24:27], s36 offen offset:{cb*1024}{SC}")
    k.e(f"s_add_u32 s36, s2, {CNT_EX}")
    k.e("s_lshl_b32 s36, s36, 7")
    k.e(f"s_xor_b32 s37, s36, {32 << 7}")
    k.e("v_mov_b32 v30, s37")
    k.e("s_mov_b32 s40, s36")
    gcalc(k, False, range(2))
    k.e("s_waitcnt vmcnt(0)")
    k.e(signal("s[90:91]", "s40", "v26", "v27"))
    gcalc(k, False, range(2, 4))
    kr = K(k.name + "_rt"); routed(kr)
    emit(k, A.ool(k, ["s_sub_u32 s36, s56, s38", "s_sub_u32 s37, s57, s38", "s_min_u32 s36, s36, s37", "s_cmp_lt_u32 s36, 16"],
                  "s_cbranch_scc1", [x.strip() for x in kr.lines]))
    emit(k, A.ool(k, ["s_cmp_eq_u32 s28, 7"], "s_cbranch_scc1", spin(k, "s[90:91]", "v30", "v31", 8, 1)))
    k.e("s_barrier")
    k.e("v_lshlrev_b32 v22, 4, v1")
    for cb in range(4): k.e(f"buffer_load_dwordx4 {v(64+4*cb,4)}, v22, s[24:27], s39 offen offset:{cb*1024}{SC}")
    for cb in range(4):
        k.e(f"s_waitcnt vmcnt(3)")
        for h in range(2):
            a, b = 128+4*cb+2*h, 128+4*cb+2*h+1
            k.e(f"v_add_f32 v{a}, v{a}, v{64+4*cb+2*h}")
            k.e(f"v_add_f32 v{b}, v{b}, v{64+4*cb+2*h+1}")
            def rnd2():
                k.e(f"v_cvt_pk_bf16_f32 v23, v{a}, v{b}")
                k.e(f"v_lshlrev_b32 v{a}, 16, v23")
                k.e(f"v_and_b32 v{b}, 0xffff0000, v23")
            rnd2()
            k.e(f"v_mul_f32 v{a}, v{a}, v{G+4*cb+2*h}")
            k.e(f"v_mul_f32 v{b}, v{b}, v{G+4*cb+2*h+1}")
            rnd2()
            k.e(f"v_add_f32 v{a}, v{a}, v{X32+4*cb+2*h}")
            k.e(f"v_add_f32 v{b}, v{b}, v{X32+4*cb+2*h+1}")
            k.e(f"v_cvt_pk_bf16_f32 v{80+2*cb+h}, v{a}, v{b}")
        k.e(f"buffer_store_dwordx2 {v(80+2*cb,2)}, v15, s[20:23], 0 offen offset:{cb*32}")

def p4(k, cfg, st):
    kx = K("tmp"); xl = O.p4_xloads(kx)
    xl[-1].text += SC
    prel = ["s_lshr_b32 s36, s2, 4", "s_mul_i32 s36, s36, 224", "s_min_u32 s37, s28, 6", "s_lshl_b32 s37, s37, 5", "s_add_u32 s36, s36, s37",
            "s_lshl_b32 s36, s36, 2", f"s_add_u32 s36, s36, {WS_PRE}", "v_and_b32 v26, 15, v1", "v_mul_u32_u24 v26, 14336, v26",
            "v_lshl_add_u32 v26, v19, 5, v26"]
    prel += [VM(f"buffer_load_dwordx4 {v(PRE+4*h,4)}, v26, s[24:27], s36 offen offset:{16*h}{SC}", "pre") for h in range(2)]
    n_ctx = Need("vm", ["ctxst"])
    sig = ["v_mov_b32 v26, s40", "v_mov_b32 v27, s41", "v_cmp_eq_u32 vcc, 1, v1", "v_mov_b32 v28, 1", "s_nop 0",
           "v_cndmask_b32 v26, v26, v27, vcc", "s_mov_b64 exec, 3", "global_atomic_add v26, v28, s[90:91]", "s_mov_b64 exec, -1"]
    sigA = Alt(A.ool(k, ["s_cmp_eq_u32 s28, 0"], "s_cbranch_scc1", sig), lambda c: sig if c["w0"] else [])
    mathA = guard(k, ["s_cmp_lt_u32 s28, 7"], "s_cbranch_scc0", [Need("vm", ["pre"])] + lines(ffn2_math), "n7")
    redA = guard(k, ["s_cmp_lt_u32 s28, 4"], "s_cbranch_scc0", ffn2_reduce(), "lo")
    f2 = ["s_and_b32 s36, s2, 15", f"s_add_u32 s36, s36, {CNT_F2}", "s_lshl_b32 s36, s36, 7"] + signal("s[90:91]", "s36", "v26", "v27")
    f2A = guard(k, ["s_cmp_eq_u32 s28, 0"], "s_cbranch_scc0", f2, "w0")
    ev0 = {1: [redA]}
    ev1 = {0: [mathA], 1: [f2A], 3: xl}
    tops = [Alt(A.ool(k, ["s_cmp_eq_u32 s35, 1"], "s_cbranch_scc1", ev0[1]), lambda c: ev0.get(c["it"])),
            Alt(A.ool(k, ["s_cmp_lg_u32 s35, 2"], "s_cbranch_scc1", switch(k, "s35", sorted(ev1.items()))), lambda c: ev1.get(c["it"]))]
    prow0, prox, pro2, body = p4_pieces(k, cfg, tops)
    n_w0 = Need("vm", [("W", 0)])
    scen = []
    for w0, lo, n7 in ((1, 1, 1), (0, 1, 1), (0, 0, 1), (0, 0, 0)):
        c = dict(w0=w0, lo=lo, n7=n7, it=0)
        sq = flat([VM("", "ctxst"), n_ctx, sigA, prow0, prel, n_w0, prox, pro2], c)
        for it in range(4): sq += flat([body], dict(c, it=it))
        scen.append(sq)
    resolve(scen)
    k.e("s_and_b32 s36, s2, 7")
    k.e("s_lshl_b32 s36, s36, 2")
    k.e(f"s_sub_u32 s40, {15+CNT_CTX}, s30")
    k.e("s_lshl_b32 s40, s40, 7")
    k.e("s_add_u32 s40, s40, s36")
    k.e(f"s_add_u32 s41, s30, {CNT_CTX}")
    k.e("s_lshl_b32 s41, s41, 7")
    k.e("s_add_u32 s41, s41, s36")
    k.e("v_mov_b32 v30, v11")
    k.e("v_mov_b32 v31, v12")
    p4_setup(k)
    emit(k, [n_ctx, "s_barrier", sigA])
    st.mark()
    emit(k, prow0)
    srd(k, 4, 54, 16777216, WS_CTX)
    srd(k, 16, 96, 4194304)
    srd(k, 20, 98, 4194304)
    emit(k, check(k, "s[90:91]", "v31", "v30", 28))
    emit(k, prel)
    k.lines += kx.lines
    p4_setup2(k)
    k.e("s_mov_b32 s60, 15")
    lj = k.newlabel("w7j")
    k.e(f"s_cmp_eq_u32 s28, {cfg.get('pw', 3)}")
    k.e(f"s_cbranch_scc0 {lj}")
    k.e("v_add_u32 v30, s62, v1")
    k.e("v_and_b32 v30, 3, v30")
    k.e(f"s_add_u32 s36, s29, {CNT_CTX}")
    k.e("s_lshl_b32 s36, s36, 7")
    k.e("s_lshl_b32 s37, s63, 4")
    k.e("s_add_u32 s36, s36, s37")
    k.e("v_lshl_add_u32 v30, v30, 2, s36")
    emit(k, ctx_ready(k, int(cfg.get("rdy0", 2))))
    k.label(lj)
    emit(k, [n_w0])
    k.e("s_waitcnt lgkmcnt(0)")
    st.mark()
    k.e("s_barrier")
    st.mark()
    emit(k, prox)
    k.e("s_lshl_b32 s36, s28, 13")
    k.e("s_add_u32 s36, s36, 65536")
    k.e("v_lshl_add_u32 v20, v1, 4, s36")
    k.e("v_xor_b32 v21, 32768, v20")
    emit(k, pro2)
    st.mark()
    k.align(6)
    k.label("L_p4_loop")
    emit(k, body)
    k.e("s_add_u32 s35, s35, 1")
    k.e("s_cmp_lt_u32 s35, 4")
    k.e("s_cbranch_scc1 L_p4_loop")
    st.mark()
    k.e("s_waitcnt vmcnt(0) lgkmcnt(0)")
    k.e("s_nop 3")
    k.e("s_cmp_lt_u32 s28, 4")
    k.e("s_cbranch_scc0 L_p4_e1")
    p4_epilogue(k, cfg, 0)
    k.e("s_branch L_p4_done")
    k.label("L_p4_e1")
    p4_epilogue(k, cfg, 1)
    k.label("L_p4_done")
    st.mark()
    p4_final(k, cfg)

def gen_fused(cfg, name):
    cfg = dict(cfg, stflag=SC, pro_hook=pro_hook, pro_wait=pro_wait, bar_hook=bar_hook, b_hook=b_hook, share=1)
    CFG.update(cfg)
    k = K(name)
    k.e("s_cmp_ge_u32 s2, 256")
    k.e("s_cbranch_scc1 L_end")
    stq = cfg.get("stamp", "")
    st = Stamps(k, bool(stq), kid=0)
    off = Stamps(k, False)
    st.mark()
    cfg["sth1"] = st if "a" in stq else off
    cfg["sth2"] = st if "b" in stq else off
    p1(k, cfg, st if "1" in stq else off)
    if "b" in stq: st.mark()
    p2(k, cfg, st if "2" in stq else off)
    k.e("s_load_dwordx2 s[4:5], s[0:1], 40")
    k.e("s_load_dwordx2 s[8:9], s[0:1], 80")
    k.e("s_load_dwordx2 s[96:97], s[0:1], 0")
    k.e("s_load_dwordx2 s[98:99], s[0:1], 88")
    s3 = st if "3" in stq else off
    k.e("s_cmp_lt_u32 s28, 4")
    k.e("s_cbranch_scc0 L_grp1")
    A.gen_p3(k, cfg, 0, s3, after_q, before_tail)
    k.e("s_branch L_p3_done")
    A.flush_ool(k)
    k.label("L_grp1")
    A.gen_p3(k, cfg, 1, s3, after_q, before_tail)
    k.e("s_branch L_p3_done")
    A.flush_ool(k)
    k.label("L_p3_done")
    st.mark()
    k.e("s_waitcnt vmcnt(4)")
    p4(k, cfg, st if "4" in stq else off)
    st.dump(54, "s28")
    if cfg.get("stdbg"):
        k.e("s_lshl_b32 s36, s28, 8"); k.e("s_add_u32 s36, s36, s2")
        k.e(f"s_cmp_eq_u32 s36, {cfg['stdbg']}"); k.e("s_cbranch_scc0 L_end")
        k.e("v_mov_b32 v2, 0"); k.e("s_mov_b64 exec, 1")
        for i in range(1, st.n):
            k.e(f"s_sub_u32 s36, s{st.base+2*i+1}, s{st.base+1}")
            k.e("v_mov_b32 v3, s36")
            k.e(f"global_store_dword v2, v3, s[88:89] offset:{4*i}")
    k.e("s_endpgm")
    A.flush_ool(k)
    k.label("L_end")
    return wrap(k, 256)
```

```python
from common import *

O_  = 192
Q_  = 128
QS_ = 160
S_  = 96
RG_ = 64
P_  = 48
NM_ = 40
L_  = 38
vKr, vVr, vD, vNx, vMk, vD2, vL16 = "v2", "v3", "v4", "v5", "v18", "v6", "v7"
LS_ = 8
T_  = 20
LDS_W = 98304
LDS_X = 131072
CSCALE = 0x3e0293ee
NEGBIG = 0xf149f2ca

def Oreg(qb, db): return O_ + (qb*8+db)*4
def Sreg(buf, qb, kb): return S_ + buf*16 + (qb*2+kb)*4
def Preg(buf, qb): return P_ + buf*8 + qb*4

def p2_setup(k):
    k.e("s_and_b32 s36, s28, 3")
    k.e("s_sub_u32 s37, 15, s30")
    k.e("s_cmp_lt_u32 s28, 4")
    k.e("s_cselect_b32 s37, s37, s30")
    k.e("s_lshl_b32 s37, s37, 2")
    k.e("s_add_u32 s37, s37, s36")
    k.e("s_lshl_b32 s37, s37, 16")
    k.e("v_lshl_add_u32 v2, v1, 4, s37")
    k.e("v_add_u32 v3, 32768, v2")
    k.e("v_lshrrev_b32 v18, 4, v1")
    k.e("s_lshl_b32 s37, s28, 4")
    k.e("v_add_u32 v19, s37, v18")
    k.e("v_lshlrev_b32 v19, 13, v19")
    k.e("s_lshl_b32 s37, s29, 8")
    k.e("v_add_u32 v19, s37, v19")
    k.e("v_and_b32 v20, 15, v1")
    k.e("v_lshlrev_b32 v21, 1, v18")
    k.e("v_xor_b32 v21, v20, v21")
    k.e("v_lshl_add_u32 v6, v21, 4, v19")
    k.e(f"v_add_u32 v7, {32768-1024}, v6")
    k.e("v_xor_b32 v21, 8, v21")
    k.e("v_lshl_add_u32 v8, v21, 4, v19")
    k.e(f"v_add_u32 v8, {2*(32768-1024)}, v8")
    k.e(f"v_add_u32 v9, {32768-1024}, v8")
    k.e("s_lshl_b32 s33, s28, 12")
    k.e(f"s_add_u32 s33, s33, {LDS_W}")
    k.e("s_mov_b32 s31, 0")
    k.e("s_mov_b32 s32, 0")

def p2_setup2(k):
    k.e("v_lshrrev_b32 v20, 2, v20")
    k.e("v_lshl_add_u32 v19, v18, 3, v20")
    k.e("v_lshlrev_b32 v19, 8, v19")
    k.e(f"v_add_u32 v19, {LDS_W}, v19")
    k.e("v_and_b32 v21, 3, v1")
    k.e("v_lshl_add_u32 v19, v21, 3, v19")
    k.e("v_and_b32 v21, 1, v18")
    k.e("v_lshl_add_u32 v20, v21, 2, v20")
    for db in range(8):
        k.e(f"v_xor_b32 v21, {db}, v20")
        k.e(f"v_lshl_add_u32 v{10+db}, v21, 5, v19")
    k.e("s_lshl_b32 s43, s28, 12")
    k.e("v_lshl_add_u32 v4, v1, 4, s43")
    k.e("s_add_u32 s44, s43, 65536")
    k.e("s_lshl_b32 s45, s29, 20")
    for r in range(64):
        k.e(f"v_mov_b32 v{O_+r}, 0")

def p2_pieces(cfg):
    WF = [64, 96]; XF = [128, 160]
    def wdma(stage):
        return [f"s_add_u32 m0, s34, {stage*32768}"] , [VM(f"buffer_load_dwordx4 v{6+j}, s[8:11], s32 offen offset:{j*1024} lds", ("W", stage)) for j in range(4)]
    def xld(xs, s_):
        return [VM(f"buffer_load_dwordx4 {v(XF[xs]+(s_*2+rb)*4,4)}, v{2+rb}, s[4:7], s31 offen offset:{s_*1024}", ("x", xs, s_)) for rb in range(2)]
    def wrd(stage, s_, fs):
        return [DS(f"ds_read_b64_tr_b16 {v(WF[fs]+4*db+2*t,2)}, v{10+db} offset:{stage*32768+(32*s_+4*t)*256}", ("w", fs)) for db in range(8) for t in range(2)]
    def mf(fs, xs, s_):
        return [f"{MF} {v(Oreg(rb,db),4)}, {v(WF[fs]+4*db,4)}, {v(XF[xs]+(s_*2+rb)*4,4)}, {v(Oreg(rb,db),4)}" for db in range(8) for rb in range(2)]
    pro = ["s_mov_b32 s34, s33"]
    for t in range(2):
        m, d = wdma(t)
        pro += m + ["s_nop 0"] + d + [f"s_add_u32 s32, s32, {128*8192}"]
        for s_ in range(4 if t == 0 else 3): pro += xld(t, s_)
        if t == 0: pro += ["s_add_u32 s31, s31, 4096"]
    pro2 = [Need("vm", [("W", 0)]), "s_barrier"] + wrd(0, 0, 0) + ["s_mov_b32 s35, 0"]
    kvpre = ["s_mov_b32 m0, s43", "s_add_u32 s46, s45, 65536"]
    kvpre += [VM(f"buffer_load_dwordx4 {vD}, s[12:15], s45 offen offset:{j*1024} lds", "kv") for j in range(4)]
    kvpre += ["s_add_u32 m0, s43, 32768", "s_add_u32 s47, s45, 32768"]
    kvpre += [VM(f"buffer_load_dwordx4 {vD}, s[12:15], s46 offen offset:{j*1024} lds", "kv") for j in range(4)]
    kvpre += ["s_mov_b32 m0, s44", "s_nop 0"]
    kvpre += [VM(f"buffer_load_dwordx4 {vD}, s[12:15], s47 offen offset:{j*1024} lds", "kv") for j in range(4)]
    body = []
    for stage in range(2):
        for s_ in range(4):
            fills = [[] for _ in range(16)]
            if s_ < 3:
                body += [Need("ds", [("w", s_ & 1)])]
                rd = wrd(stage, s_+1, (s_+1) & 1)
            else:
                body += [Need("ds", [("w", 1)]), Need("vm", [("W", stage ^ 1)]), "s_barrier"]
                rd = wrd(stage ^ 1, 0, 0)
            body += [Need("vm", [("x", stage, s_)])]
            for g in range(8): fills[g] += rd[2*g:2*g+2]
            if s_ == 0:
                xl = xld(stage ^ 1, 3)
                fills[8] += [xl[0]]; fills[9] += [xl[1], "s_add_u32 s31, s31, 4096"]
                if stage == 0:
                    fills[10] += ["s_cmp_lt_u32 s35, 3", "s_cselect_b32 s6, 4194304, 0", "s_cselect_b32 s10, 8388608, 0", "s_cselect_b32 s34, s33, 0x30000"]
            else:
                xl = xld(stage, s_-1)
                fills[8] += [xl[0]]; fills[9] += [xl[1]]
            if s_ == 3:
                m, d = wdma(stage)
                fills[9] += m
                for j in range(4): fills[10+j] += [d[j]]
                fills[14] += [f"s_add_u32 s32, s32, {128*8192}"]
            body += weave(mf(s_ & 1, stage, s_), fills)
    return pro, pro2, kvpre, body

def q_pack(k, grp, qwait=0):
    k.e(f"v_mov_b32 v20, {CSCALE}")
    k.e("s_and_b32 s37, s28, 3")
    k.e("s_lshl_b32 s37, s37, 13")
    k.e(f"v_lshlrev_b32 {vL16}, 4, v1")
    k.e(f"v_add_u32 {vD}, s37, {vL16}")
    k.e(f"v_add_u32 {vD2}, 4096, {vD}")
    k.e(f"v_add_u32 v19, {LDS_X}, {vD}")
    k.e("s_mov_b32 s43, s37")
    k.e("s_add_u32 s44, s37, 98304")
    k.e(f"s_waitcnt vmcnt({qwait}) lgkmcnt(0)")
    for f in range(8):
        a = O_ + 8*f
        k.e(pkmul(a, 8, 20))
        for q in range(4): k.e(f"v_cvt_pk_bf16_f32 v{Q_+4*f+q}, v{a+2*q}, v{a+2*q+1}")
        if grp == 0: k.e(f"ds_write_b128 v19, {v(Q_+4*f,4)} offset:{f*1024}")
    k.e(f"v_mov_b32 {vKr}, {vL16}")
    k.e("v_and_b32 v21, 15, v1")
    k.e("v_lshrrev_b32 v22, 4, v1")
    k.e("v_lshlrev_b32 v22, 2, v22")
    k.e(f"v_sub_u32 {vMk}, v21, v22")
    k.e("s_mov_b32 s40, 0")
    k.e("s_mov_b32 s41, 0")
    k.e("s_lshl_b32 s51, s30, 1")
    k.e("s_add_u32 s51, s51, 1")
    k.e("s_and_b32 s36, s28, 3")
    k.e("s_lshl_b32 s36, s36, 5")
    if grp == 0:
        k.e("s_sub_u32 s37, 15, s30")
        k.e("s_lshl_b32 s37, s37, 7")
    else:
        k.e("s_lshl_b32 s37, s30, 7")
    k.e("s_add_u32 s36, s36, s37")
    k.e("s_sub_u32 s50, 0, s36")
    if grp == 1:
        k.e("s_lshl_b32 s42, s30, 8")
        k.e(f"s_sub_u32 s42, s42, {14*128}")
    else:
        k.e("s_add_u32 s36, s51, 1")
        k.e("s_lshl_b32 s36, -1, s36")
        k.e("s_or_b32 s48, s36, 0xaaaaaaaa")
        k.e("s_and_b32 s48, s48, 0x7ffe")
        k.e("s_or_b32 s39, s36, 0x55555555")
        k.e("s_and_b32 s39, s39, 0xffff")
        k.e(f"s_add_u32 s46, s45, {2*65536}")
        k.e(f"s_add_u32 s47, s45, {65536+32768}")
    k.e("s_mov_b64 s[52:53], 0")
    k.e("s_mov_b32 s31, 0x3f803f80")
    k.e("s_waitcnt lgkmcnt(0)")
    k.e("s_barrier")
    if grp == 1:
        for f in range(8):
            k.e(f"ds_read_b128 {v(QS_+4*f,4)}, v19 offset:{f*1024}")

OOL = []
MSK = ["s[20:21]", "s[22:23]", "s[62:63]", "vcc"]
LDS_MSG = LDS_X + 28672
def ool(k, cond, br, block):
    lr, lb = k.newlabel("rare"), k.newlabel("back")
    OOL.append([lr + ":"] + block + [f"s_branch {lb}"])
    return cond + [f"{br} {lr}", lb + ":"]
def flush_ool(k):
    while OOL: emit(k, OOL.pop(0))

def maskblk(k, buf, sU):
    L = [f"v_mov_b32 v{T_}, {NEGBIG}", f"v_subrev_u32 v{T_+1}, {sU}, {vMk}"]
    for qb in range(2):
        for kb in range(2):
            for e in range(4):
                L.append(f"v_cmp_gt_i32 {MSK[e]}, {16*(kb-qb) + e}, v{T_+1}")
            for e in range(4):
                r = Sreg(buf, qb, kb) + e
                L.append(f"v_cndmask_b32 v{r}, v{r}, v{T_}, {MSK[e]}")
    return ool(k, [f"s_cmp_lt_i32 {sU}, 0"], "s_cbranch_scc0", L)

def qk(buf, fr0, czero):
    L = []
    for kb in range(2):
        for sg in range(4):
            f = RG_ + 4*((fr0 + kb*4 + sg) % 8)
            for qb in range(2):
                d = Sreg(buf, qb, kb)
                c = v(d, 4) if sg else ("0" if czero else v(NM_+4*qb, 4))
                L.append(f"{MF} {v(d,4)}, {v(f,4)}, {v(Q_+(qb*4+sg)*4,4)}, {c}")
    return L

def pv(buf, fr0):
    L = []
    if SUM[0] == "mf": return pv_mf(buf, fr0)
    for db in range(8):
        f = RG_ + 4*((fr0 + db) % 8)
        for qb in range(2):
            L.append(f"{MF} {v(Oreg(qb,db),4)}, {v(f,4)}, {v(Preg(buf,qb),4)}, {v(Oreg(qb,db),4)}")
    return L

def pv_mf(buf, fr0):
    L = []
    for db in range(8):
        f = RG_ + 4*((fr0 + db) % 8)
        for qb in range(2):
            x = f"{MF} {v(Oreg(qb,db),4)}, {v(f,4)}, {v(Preg(buf,qb),4)}, {v(Oreg(qb,db),4)}"
            if db == 3 + 4*qb and qb == 1 or (db == 3 and qb == 1): x = [x, f"{MF} v[{28+db-3}:{31+db-3}], v[{NM_}:{NM_+3}], {v(Preg(buf,db//4),4)}, v[{28+db-3}:{31+db-3}]"]
            L.append(x)
    return L
SUM = ["add"]
def sm_elems(buf):
    out = []
    for kb in range(2):
        for qb in range(2):
            for e in range(4):
                r = Sreg(buf, qb, kb) + e
                pr = Preg(buf, qb) + 2*kb + e//2
                post = []
                if SUM[0] == "add": post.append(f"v_add_f32 v{L_+qb}, v{L_+qb}, v{r}")
                if e & 1:
                    post.append(f"v_cvt_pk_bf16_f32 v{pr}, v{r-1}, v{r}")
                    if SUM[0] == "pk": post.insert(0, f"v_pk_add_f32 v[{L_}:{L_+1}], v[{L_}:{L_+1}], v[{r-1}:{r}]")
                    if SUM[0] == "dot": post.append(f"v_dot2c_f32_bf16 v{L_+qb}, s31, v{pr}")
                    if SUM[0] == "dot3": post.append(f"v_dot2_f32_bf16 v{L_+qb}, v{pr}, s31, v{L_+qb}")
                out.append((f"v_exp_f32 v{r}, v{r}", post))
    return out

def rd(frag, base, off):
    s_ = frag % 8
    return DS(f"ds_read_b128 {v(RG_+4*s_,4)}, {base} offset:{off}", ("r", s_))

def rowred(op, x, t):
    return [f"v_mov_b32 {t}, {x}", "s_nop 1", f"v_permlane16_swap_b32 {x}, {t}", "s_nop 1", f"{op} {x}, {x}, {t}",
            f"v_mov_b32 {t}, {x}", "s_nop 1", f"v_permlane32_swap_b32 {x}, {t}", "s_nop 1", f"{op} {x}, {x}, {t}"]


def advance(grp):
    G = [["s_add_u32 s49, s50, 32", f"v_add_u32 v{T_+4}, 65536, {vKr}"]]
    if grp == 0:
        G += [["s_cmp_le_u32 s40, s51", "s_cselect_b32 s36, 64, 128"], ["s_add_u32 s41, s41, s36", "s_add_u32 s50, s50, s36"]]
    else:
        G += [["s_cmp_lt_u32 s40, s51", "s_cselect_b32 s36, 64, 128"], ["s_add_u32 s41, s41, s36"],
              ["s_cmp_eq_u32 s40, s51", "s_cselect_b32 s36, s42, s36"], ["s_add_u32 s50, s50, s36"]]
    G += [["s_and_b32 s36, s41, 0xff", f"v_lshl_add_u32 {vKr}, s36, 8, {vL16}"],
          ["s_cmp_eq_u32 s40, 16", "s_cselect_b64 s[20:21], -1, 0"], [f"v_cndmask_b32 {vNx}, {vKr}, v{T_+4}, s[20:21]"]]
    return G, [f"v_mov_b32 {vVr}, v{T_+4}"]

def dma_clumps(k, cs):
    out = []
    for which in range(2):
        msk, base, soff = ("s48", "s43", "s46") if which == 0 else ("s39", "s44", "s47")
        for c in range(8 // cs):
            lskip = k.newlabel("nodma")
            j0 = c * cs
            L = [f"s_bitcmp1_b32 {msk}, s40", f"s_cbranch_scc0 {lskip}", f"s_add_u32 m0, {base}, {(j0 // 4)*4096}", "s_nop 0"]
            for j in range(j0, j0 + cs):
                L.append(f"buffer_load_dwordx4 {vD if j < 4 else vD2}, s[12:15], {soff} offen offset:{(j%4)*1024} sc1 lds")
            if c == 8 // cs - 1:
                L += [f"s_add_u32 {soff}, {soff}, 65536", f"s_xor_b32 {base}, {base}, 32768"]
            out.append(L + [lskip + ":"])
    return out

def p3_pieces(k, cfg, grp):
    pro = [rd(f, vKr, f*1024) for f in range(8)]
    m0 = qk(0, 0, True); m1 = qk(1, 8, True)
    zl = zero(O_, 64) + zero(L_, 2)
    fills = [[] for _ in range(32)]; pre = {}
    for p in range(16):
        pre[2*p] = [Need("ds", [("r", p % 8)])]
        if p < 8: fills[2*p+1].append(rd(p+8, vKr, (p+8)*1024))
    for i, z in enumerate(zl): fills[min(i * 32 // len(zl), 31)].append(z)
    pro += weave(m0 + m1, fills, pre)
    pro += maskblk(k, 0, "s50")
    G, late = advance(grp)
    pro += flat(G) + late + cfg.get("pro_wait", lambda k, g: [])(k, grp) + ["s_barrier"] + cfg.get("pro_hook", lambda k, g: [])(k, grp) + [rd(f, vNx, f*1024) for f in range(7)]
    for qb in range(2):
        a = Sreg(0, qb, 0); t = f"v{T_+1+qb}"
        pro += [f"v_max3_f32 {t}, v{a}, v{a+1}, v{a+2}", f"v_max3_f32 {t}, {t}, v{a+3}, v{a+4}",
                f"v_max3_f32 {t}, {t}, v{a+5}, v{a+6}", f"v_max_f32 {t}, {t}, v{a+7}"]
    for qb in range(2):
        pro += rowred("v_max_f32", f"v{T_+1+qb}", f"v{T_+3}")
    for qb in range(2):
        pro += [f"v_sub_f32 v{NM_+4*qb+e}, 0, v{T_+1+qb}" for e in range(4)]
    if grp == 0:
        pro += [DS(f"ds_write_b32 v19, v{NM_}"), DS(f"ds_write_b32 v19, v{NM_+4} offset:4")]
    for buf in range(2):
        for qb in range(2):
            a = Sreg(buf, qb, 0)
            pro += [f"v_pk_add_f32 {v(a+e,2)}, {v(a+e,2)}, {v(NM_+4*qb,2)}" for e in range(0, 8, 2)]
    el = sm_elems(0)
    pro += [el[0][0]]
    for e in range(16):
        if e + 1 < 16: pro += [el[e+1][0]]
        else: pro += ["s_nop 0"]
        pro += el[e][1]
    M = qk(0, 0, False) + pv(0, 8) + qk(1, 16, False) + pv(1, 24)
    fills = [[] for _ in range(64)]; pre = {}
    def src(f):
        return (vKr, (f % 8)*1024 + (f // 16)*8192) if (f // 8) % 2 == 0 else (vVr, (f % 8)*1024 + (f // 16)*8192)
    wstep = int(cfg.get("wstep", 2))
    for p in range(32):
        if p % wstep == 0:
            pre[2*p] = [Need("ds", [("r", (p+i) % 8) for i in range(wstep)])]
    lag = int(cfg.get("lag", 0))
    for rnd in range(2):
        el = sm_elems(1 - rnd)
        for e in range(16):
            p = rnd*16 + e
            fills[2*p].append(el[e][0])
            if lag == 0: fills[2*p+1] += el[e][1]
            elif lag == 1:
                fills[2*min(p+1, rnd*16+15)+1] += el[e][1]
            elif lag == 3:
                fills[2*min(p+1, rnd*16+15)+1] += el[e][1][:1]
                fills[2*min(p+2, rnd*16+15)+1] += el[e][1][1:]
            elif lag == 2:
                fills[2*min(p+1, rnd*16+15)+1] += el[e][1][:1]
                fills[2*min(p+2, rnd*16+15)+(1 if p+2 > rnd*16+15 else 0)] += el[e][1][1:]
    for p in range(25):
        b, o = src(p + 7)
        fills[2*p+1].insert(0, rd(p+7, b, o))
    pre[0] = maskblk(k, 1, "s49") + pre[0]
    midc = []
    if grp == 1:
        midc = ool(k, ["s_cmp_eq_u32 s40, s51"], "s_cbranch_scc1", [f"v_mov_b32 v{LS_}, v{L_}", f"v_mov_b32 v{LS_+1}, v{L_+1}",
                f"v_mov_b32 v{L_}, 0", f"v_mov_b32 v{L_+1}, 0"])
    pre[32] = midc + maskblk(k, 0, "s50") + pre[32]
    G, late = advance(grp)
    fills[2*17] += ["s_add_u32 s40, s40, 1"]
    for i, g in enumerate(G): fills[2*(17+i)+1] += g
    fills[2*25+1] += late
    bp = int(cfg.get("bp", 26))
    if cfg.get("bwait"):
        fills[2*bp+1] += ["s_waitcnt lgkmcnt(0)", "s_memtime s[56:57]", "s_waitcnt vmcnt(0) lgkmcnt(0)", "s_barrier", "s_memtime s[58:59]", "s_waitcnt lgkmcnt(0)",
                          "s_sub_u32 s58, s58, s56", "s_add_u32 s98, s98, s58"]
    else:
        lr = k.newlabel("rlx")
        wt = ["s_waitcnt vmcnt(8) lgkmcnt(0)", "s_cmp_le_u32 s40, s51", f"s_cbranch_scc1 {lr}", "s_waitcnt vmcnt(0)", lr + ":"]
        if cfg.get("norlx"): wt = ["s_waitcnt vmcnt(0) lgkmcnt(0)"]
        fills[2*bp+1] += (wt if grp == 0 else ["s_waitcnt lgkmcnt(0)"]) + cfg.get("bar_hook", lambda k, g: [])(k, grp) + ["s_barrier"]
    nx = {27: [0, 1], 28: [2, 3], 29: [4], 30: [5], 31: [6]}
    for p, fl in nx.items():
        for f in fl: fills[2*p+1].insert(0, rd(f, vNx, f*1024))
    if grp == 0 and not cfg.get("nodma"):
        cs = int(cfg.get("cs", 4)); d0 = int(cfg.get("d0", 0)); dsp = int(cfg.get("dsp", 4))
        for c, cl in enumerate(dma_clumps(k, cs)):
            fills[2*(d0 + c*dsp)+1] += cl
    body = weave(M, fills, pre)
    M = pv(0, 0) + pv(1, 8)
    fills = [[] for _ in range(32)]; pre = {}
    for p in range(16):
        pre[2*p] = [Need("ds", [("r", p % 8)])]
        if p + 7 < 16: fills[2*p+1].insert(0, rd(p+7, vVr, (p+7)*1024))
    el = sm_elems(1)
    for e in range(16):
        fills[e].append(el[e][0])
        fills[e+1 if e < 15 else 15] += (["s_nop 0"] if e == 15 else []) + el[e][1]
    pre[16] = ["s_nop 1"] + pre[16]
    tail = maskblk(k, 1, "s49") + weave(M, fills, pre)
    return pro, body, tail

def lcheck(k, l):
    k.e(f"v_cmp_nge_f32 vcc, s36, {l}")
    k.e("s_nop 0")
    k.e("s_or_b64 s[52:53], s[52:53], vcc")

def ctx_base(k, sblk, add):
    k.e(f"s_lshl_b32 s38, {sblk}, 3")
    k.e("s_and_b32 s37, s28, 3")
    k.e("s_lshl_b32 s37, s37, 1")
    k.e("s_add_u32 s38, s38, s37")
    if add: k.e(f"s_add_u32 s38, s38, {add}")
    k.e("s_lshl_b32 s38, s38, 17")
    k.e("s_lshl_b32 s37, s29, 12")
    k.e("s_add_u32 s38, s38, s37")

def epi_own(k, cfg, lreg, sblk, zero_):
    t = [f"v{T_+i}" for i in range(18)]
    for qb in range(2):
        k.e(rowred("v_add_f32", f"v{lreg+qb}", t[0]))
    k.e("s_mov_b32 s36, 0x5d800000")
    for qb in range(2): lcheck(k, f"v{lreg+qb}")
    for qb in range(2): k.e(f"v_rcp_f32 v{lreg+qb}, v{lreg+qb}")
    ctx_base(k, sblk, 0)
    for qb in range(2):
        for sg in range(4):
            a = Oreg(qb, 2*sg); d = T_ + 2 + 4*(sg & 3)
            k.e(pkmul(a, 8, lreg+qb))
            for q in range(4): k.e(f"v_cvt_pk_bf16_f32 v{d+q}, v{a+2*q}, v{a+2*q+1}")
            k.e(f"buffer_store_dwordx4 {v(d,4)}, {vL16}, s[16:19], s38 offen offset:{sg*1024}{cfg.get('stflag','')}")
            if zero_: k.e(zero(a, 8))
        if qb == 0: k.e(f"s_add_u32 s38, s38, {1<<17}")

def merge(k, cfg, kh):
    t = [f"v{T_+i}" for i in range(18)]
    o = 1 - kh
    k.e("s_lshl_b32 s37, s28, 13")
    k.e(f"v_add_u32 {t[1]}, s37, {vL16}")
    k.e(f"v_xor_b32 {t[2]}, 32768, {t[1]}")
    k.e("s_lshl_b32 s37, s28, 8")
    k.e(f"s_add_u32 s37, s37, {LDS_MSG}")
    k.e(f"v_lshl_add_u32 {t[3]}, v1, 2, s37")
    k.e(f"v_xor_b32 {t[4]}, 1024, {t[3]}")
    k.e(f"ds_write_b32 {t[3]}, v{L_+o}")
    k.e("s_mov_b32 s36, 0x5d800000")
    for qb in range(2): lcheck(k, f"v{L_+qb}")
    k.e("s_or_b32 s36, s52, s53")
    k.e(f"v_mov_b32 {t[6]}, s36")
    k.e("s_lshl_b32 s37, s28, 2")
    k.e(f"s_add_u32 s37, s37, {LDS_MSG+2048}")
    k.e(f"v_mov_b32 {t[7]}, s37")
    k.e(f"ds_write_b32 {t[7]}, {t[6]}")
    for db in range(8):
        k.e(f"ds_write_b128 {t[1]}, {v(Oreg(o,db),4)} offset:{db*1024}")
    k.e(f"v_mov_b32 {t[8]}, {LDS_MSG+2112}")
    if kh == 0 and cfg.get("share"):
        for i in range(4): k.e(f"v_mov_b32 v{T_+10+i}, s{56+i}")
        k.e(f"ds_write_b128 {t[8]}, {v(T_+10,4)}")
    k.e(f"v_and_b32 {t[7]}, 7, v1")
    k.e(f"v_lshlrev_b32 {t[7]}, 2, {t[7]}")
    k.e(f"v_add_u32 {t[7]}, {LDS_MSG+2048}, {t[7]}")
    k.e("s_sub_u32 s36, 15, s30")
    ctx_base(k, "s36", kh)
    k.e("s_waitcnt lgkmcnt(0)")
    k.e("s_barrier")
    if kh == 1 and cfg.get("share"): k.e(f"ds_read_b128 {v(T_+10,4)}, {t[8]}")
    k.e(f"ds_read_b32 {t[6]}, {t[7]}")
    k.e(f"ds_read_b32 {t[5]}, {t[4]}")
    for db in range(8):
        k.e(f"ds_read_b128 {v(RG_+4*db,4)}, {t[2]} offset:{db*1024}")
    k.e("s_waitcnt lgkmcnt(8)")
    k.e(f"v_add_f32 {t[5]}, {t[5]}, v{L_+kh}")
    k.e(rowred("v_add_f32", t[5], t[0]))
    k.e(f"v_cmp_ne_u32 s[52:53], 0, {t[6]}")
    if kh == 1 and cfg.get("share"):
        for i in range(4): k.e(f"v_readfirstlane_b32 s{56+i}, v{T_+10+i}")
    k.e(f"v_rcp_f32 {t[5]}, {t[5]}")
    for sg in range(4):
        k.e(f"s_waitcnt lgkmcnt({6-2*sg})")
        a = Oreg(kh, 2*sg)
        for e in range(0, 8, 2): k.e(f"v_pk_add_f32 {v(a+e,2)}, {v(a+e,2)}, {v(RG_+8*sg+e,2)}")
        k.e(pkmul(a, 8, T_+5))
        for q in range(4): k.e(f"v_cvt_pk_bf16_f32 v{P_+4*sg+q}, v{a+2*q}, v{a+2*q+1}")
        k.e(f"buffer_store_dwordx4 {v(P_+4*sg,4)}, {vL16}, s[16:19], s38 offen offset:{sg*1024}{cfg.get('stflag','')}")

def safe_path(k, cfg, grp):
    M_ = NM_
    t = [f"v{T_+i}" for i in range(18)]
    if grp == 1:
        for r in range(32): k.e(f"v_swap_b32 v{Q_+r}, v{QS_+r}")
    for r in range(64): k.e(f"v_mov_b32 v{O_+r}, 0")
    for qb in range(2):
        k.e(f"v_mov_b32 v{L_+qb}, 0")
        k.e(f"v_mov_b32 v{M_+qb}, {NEGBIG}")
    k.e("s_lshl_b32 s43, s28, 12")
    k.e(f"v_add_u32 {vD}, s43, {vL16}")
    k.e("s_mov_b32 s46, s45")
    k.e("s_sub_u32 s40, 16, s30")
    k.e("s_sub_u32 s39, 15, s30" if grp == 0 else "s_mov_b32 s39, s30")
    k.e("s_lshl_b32 s37, s39, 7")
    k.e("s_and_b32 s36, s28, 3")
    k.e("s_lshl_b32 s36, s36, 5")
    k.e("s_add_u32 s36, s36, s37")
    k.e("s_sub_u32 s50, 0, s36")
    lt, lu, ln_ = k.newlabel("stile"), k.newlabel("sunit"), k.newlabel("snext")
    k.label(lt)
    k.e("s_waitcnt vmcnt(0) lgkmcnt(0)")
    k.e("s_barrier")
    k.e("s_mov_b32 m0, s43")
    k.e("s_add_u32 s47, s46, 32768")
    for j in range(4): k.e(f"buffer_load_dwordx4 {vD}, s[12:15], s46 offen offset:{j*1024} sc1 lds")
    k.e("s_add_u32 m0, s43, 32768")
    k.e("s_add_u32 s46, s46, 65536")
    for j in range(4): k.e(f"buffer_load_dwordx4 {vD}, s[12:15], s47 offen offset:{j*1024} sc1 lds")
    k.e(f"v_mov_b32 {vKr}, {vL16}")
    k.e("s_mov_b32 s41, 4")
    k.e("s_waitcnt vmcnt(0)")
    k.e("s_barrier")
    k.label(lu)
    k.e("s_cmp_gt_i32 s50, 0")
    k.e(f"s_cbranch_scc1 {ln_}")
    for f in range(8): k.e(f"ds_read_b128 {v(RG_+4*f,4)}, {vKr} offset:{f*1024}")
    k.e("s_waitcnt lgkmcnt(0)")
    k.e(qk(0, 0, True))
    for f in range(8): k.e(f"ds_read_b128 {v(RG_+4*f,4)}, {vKr} offset:{32768+f*1024}")
    k.e("s_nop 1")
    emit(k, maskblk(k, 0, "s50"))
    for qb in range(2):
        a = Sreg(0, qb, 0); x = t[2+qb]
        k.e([f"v_max3_f32 {x}, v{a}, v{a+1}, v{a+2}", f"v_max3_f32 {x}, {x}, v{a+3}, v{a+4}",
             f"v_max3_f32 {x}, {x}, v{a+5}, v{a+6}", f"v_max3_f32 {x}, {x}, v{a+7}, v{M_+qb}"])
        k.e(rowred("v_max_f32", x, t[4]))
        k.e(f"v_sub_f32 {t[5]}, v{M_+qb}, {x}")
        k.e(f"v_exp_f32 {t[5]}, {t[5]}")
        k.e(f"v_mov_b32 v{M_+qb}, {x}")
        k.e(f"v_mul_f32 v{L_+qb}, v{L_+qb}, {t[5]}")
        for r in range(32): k.e(f"v_mul_f32 v{Oreg(qb,0)+r}, v{Oreg(qb,0)+r}, {t[5]}")
        for e in range(8): k.e(f"v_sub_f32 v{a+e}, v{a+e}, {x}")
    el = sm_elems(0)
    for e in range(16): k.e(el[e][0])
    for e in range(16): k.e(el[e][1])
    k.e("s_waitcnt lgkmcnt(0)")
    k.e("s_nop 0")
    k.e(pv(0, 0))
    k.label(ln_)
    k.e(f"v_add_u32 {vKr}, 8192, {vKr}")
    k.e("s_add_u32 s50, s50, 32")
    k.e("s_sub_u32 s41, s41, 1")
    k.e("s_cmp_lg_u32 s41, 0")
    k.e(f"s_cbranch_scc1 {lu}")
    k.e("s_sub_u32 s40, s40, 1")
    k.e("s_cmp_lg_u32 s40, 0")
    k.e(f"s_cbranch_scc1 {lt}")
    epi_own(k, cfg, L_, "s39", False)

def gen_p3(k, cfg, grp, st, after_q=None, before_tail=None):
    n0 = st.n
    SUM[0] = cfg.get("sum", "add")
    q_pack(k, grp, cfg.get('qwait', 0))
    if after_q: after_q(k, grp)
    st.mark()
    pro, body, tail = p3_pieces(k, cfg, grp)
    sw = []
    if grp == 1:
        sw = [f"v_swap_b32 v{Q_+r}, v{QS_+r}" for r in range(32)]
        sw += [f"v_mov_b32 v{NM_+r}, v{14+r//4}" for r in range(8)] + ["s_nop 1"]
    resolve([[pro, body, body, body, tail], [pro, body, sw, body, body, tail]])
    if cfg.get("prio") and grp == int(cfg["prio"]) - 1: k.e("s_setprio 1")
    emit(k, pro)
    st.mark()
    if cfg.get("bwait"): k.e("s_mov_b32 s98, 0")
    lb = f"L_body{grp}"
    k.align(6)
    k.label(lb)
    emit(k, body)
    if grp == 1:
        ke = K(k.name + "_epi")
        epi_own(ke, cfg, LS_, "s30", True)
        lrare, lback, l2 = k.newlabel("rare"), k.newlabel("back"), k.newlabel("epi")
        OOL.append([lrare + ":", "s_cmp_lg_u32 s40, s51", f"s_cbranch_scc1 {l2}"] + sw + [f"s_branch {lback}", l2 + ":"]
                   + [x.strip() for x in ke.lines] + [f"s_branch {lback}"])
        first = ["ds_read_b64 v[14:15], v19", "s_waitcnt lgkmcnt(0)"]
        l1 = k.newlabel("nm")
        emit(k, ool(k, ["s_bitcmp1_b32 s39, s40"], "s_cbranch_scc1",
                    ["s_cmp_eq_u32 s40, 1", f"s_cbranch_scc0 {l1}"] + first + [l1 + ":"] + cfg.get("b_hook", lambda k: [])(k)))
        k.e("s_sub_u32 s36, s40, s51")
        k.e("s_cmp_lt_u32 s36, 2")
        k.e(f"s_cbranch_scc1 {lrare}")
        k.label(lback)
    k.e("s_cmp_lg_u32 s40, 16")
    k.e(f"s_cbranch_scc1 {lb}")
    st.mark()
    if cfg.get("bwait"):
        st.mark()
        k.e(f"s_add_u32 s{st.base+2*st.n-2}, s{st.base+2*st.n-4}, s98")
    if before_tail: before_tail(k, grp)
    emit(k, tail)
    st.mark()
    cfg.get("before_merge", lambda k: None)(k)
    merge(k, cfg, grp)
    st.mark()
    k.e("s_cmp_eq_u64 s[52:53], 0")
    k.e("s_cbranch_scc1 L_p3_done")
    if cfg.get("dbgsafe"):
        k.e("s_load_dwordx2 s[20:21], s[0:1], 96")
        k.e("s_waitcnt lgkmcnt(0)")
        k.e("v_mov_b32 v20, 0"); k.e("v_mov_b32 v21, 1")
        k.e("s_mov_b64 exec, 1")
        k.e("global_atomic_add v20, v21, s[20:21]")
        k.e("s_mov_b64 exec, -1")
    k.e("s_waitcnt vmcnt(0)")
    for r in range(8): k.e(f"v_mov_b32 v{S_+16+r}, v{S_+r}")
    safe_path(k, cfg, grp)
    for r in range(8): k.e(f"v_mov_b32 v{S_+r}, v{S_+16+r}")
    if grp == 0: st.n = n0

def gen_attn(cfg=None):
    cfg = cfg or {}
    k = K("attn_kernel")
    k.e("s_cmp_ge_u32 s2, 256")
    k.e("s_cbranch_scc1 L_attn_end")
    st = Stamps(k, cfg.get("stamp"), kid=1)
    st.mark()
    k.e("s_load_dwordx2 s[50:51], s[0:1], 16")
    k.e("s_load_dwordx2 s[54:55], s[0:1], 104")
    k.e("v_and_b32 v1, 63, v0")
    k.e("v_lshrrev_b32 v16, 6, v0")
    k.e("s_and_b32 s29, s2, 7")
    k.e("v_readfirstlane_b32 s28, v16")
    k.e("s_lshl_b32 s29, s29, 2")
    k.e("s_bfe_u32 s36, s2, 0x20003")
    k.e("s_add_u32 s29, s29, s36")
    k.e("s_lshr_b32 s30, s2, 5")
    p2_setup(k)
    k.e("s_waitcnt lgkmcnt(0)")
    srd(k, 4, 54, 4194304)
    srd(k, 8, 50, 8388608)
    pro, pro2, kvpre, body = p2_pieces(cfg)
    resolve([[pro, pro2, body, body, body, kvpre, body]])
    emit(k, pro)
    srd(k, 12, 54, 33554432, WS_KV)
    srd(k, 16, 54, 16777216, WS_CTX)
    p2_setup2(k)
    st.mark()
    emit(k, pro2)
    st.mark()
    k.align(6)
    k.label("L_p2_loop")
    k.e("s_cmp_lg_u32 s35, 3")
    k.e("s_cbranch_scc1 L_p2_nokv")
    emit(k, kvpre)
    k.label("L_p2_nokv")
    emit(k, body)
    k.e("s_add_u32 s35, s35, 1")
    k.e("s_cmp_lt_u32 s35, 4")
    k.e("s_cbranch_scc1 L_p2_loop")
    st.mark()
    k.e("s_cmp_lt_u32 s28, 4")
    k.e("s_cbranch_scc0 L_grp1")
    gen_p3(k, cfg, 0, st)
    k.e("s_branch L_p3_done")
    flush_ool(k)
    k.label("L_grp1")
    gen_p3(k, cfg, 1, st)
    k.e("s_branch L_p3_done")
    flush_ool(k)
    k.label("L_p3_done")
    st.dump(54, "s28")
    k.label("L_attn_end")
    return wrap(k, 256)
```

```python
from lib import *

WS_XN  = 0
WS_ST  = 4 << 20
WS_R   = (4 << 20) + 65536
WS_KV  = 8 << 20
WS_CTX = 40 << 20
WS_PRE = 56 << 20
WS_YP  = 57 << 20
WS_IDX = 58 << 20

MF = "v_mfma_f32_16x16x32_bf16"

def wave_sum(k, x, t, sd):
    for m in ["quad_perm:[1,0,3,2]", "quad_perm:[2,3,0,1]", "row_half_mirror", "row_mirror"]:
        k.e("s_nop 1")
        k.e(f"v_add_f32_dpp {x}, {x}, {x} {m} row_mask:0xf bank_mask:0xf")
    k.e("s_nop 0")
    for q in range(4):
        k.e(f"v_readlane_b32 s{sd+q}, {x}, {16*q}")
    k.e(f"v_mov_b32 {t}, s{sd}")
    k.e(f"v_add_f32 {t}, s{sd+1}, {t}")
    k.e(f"v_add_f32 {t}, s{sd+2}, {t}")
    k.e(f"v_add_f32 {t}, s{sd+3}, {t}")

def rbf(k, x):
    k.e(f"v_cvt_pk_bf16_f32 {x}, {x}, {x}")
    k.e(f"v_lshlrev_b32 {x}, 16, {x}")

def interleave(k, mfmas, fills):
    for i, m in enumerate(mfmas):
        k.e(m)
        if i < len(fills):
            for f in fills[i]: k.e(f)
    for f in fills[len(mfmas):]:
        for x in f: k.e(x)

WS_STAMP = 60 << 20
class Stamps:
    def __init__(self, k, on, base=64, kid=0):
        self.k, self.on, self.base, self.n, self.kid = k, on, base, 0, kid
    def mark(self, real=False):
        if not self.on: return
        if real: return
        b = self.base + 2*self.n
        assert b + 1 < 88
        self.k.e(f"s_memtime s[{b}:{b+1}]")
        self.k.e(f"s_memrealtime s[100:101]")
        self.k.e("s_waitcnt lgkmcnt(0)")
        self.k.e(f"s_mov_b32 s{b+1}, s100")
        self.n += 1
    def hist(self, n, first=True):
        if not self.on: return []
        if first: self.h0 = self.n; self.n += n
        b = self.base + 2*self.h0
        assert b + 2*n < 88
        L = [f"s_mov_b64 s[{b+2*i}:{b+2*i+1}], s[{b+2*i+2}:{b+2*i+3}]" for i in range(n-1)]
        e = b + 2*(n-1)
        return L + [f"s_memtime s[{e}:{e+1}]", "s_memrealtime s[100:101]", "s_waitcnt lgkmcnt(0)", f"s_mov_b32 s{e+1}, s100"]
    def dump(self, wsbase, swave):
        if not self.on: return
        k = self.k
        k.e("s_waitcnt vmcnt(0) lgkmcnt(0)")
        self.mark(); self.mark(real=True)
        k.e(f"s_add_u32 s60, s{wsbase}, {WS_STAMP + self.kid*(1<<20)}")
        k.e(f"s_addc_u32 s61, s{wsbase+1}, 0")
        k.e("s_and_b32 s61, s61, 0xffff")
        k.e("s_mov_b32 s62, 0x100000")
        k.e("s_mov_b32 s63, 0x20000")
        k.e("s_lshl_b32 s100, s2, 3")
        k.e(f"s_add_u32 s100, s100, {swave}")
        k.e("s_lshl_b32 s100, s100, 8")
        k.e("s_getreg_b32 s101, hwreg(HW_REG_XCC_ID)")
        k.e("v_mov_b32 v2, 0")
        k.e("s_mov_b64 exec, 1")
        for i in range(2*self.n):
            k.e(f"v_mov_b32 v3, s{self.base+i}")
            k.e(f"buffer_store_dword v3, v2, s[60:63], s100 offen offset:{4*i}")
        k.e("v_mov_b32 v3, s101")
        k.e(f"buffer_store_dword v3, v2, s[60:63], s100 offen offset:252")
        k.e(f"v_mov_b32 v3, {0x5a5a00 + self.n}")
        k.e(f"buffer_store_dword v3, v2, s[60:63], s100 offen offset:248")
        k.e("s_mov_b64 exec, -1")

Z64 = [True]
def zero(r0, n):
    if Z64[0]: return [f"v_mov_b64 v[{r}:{r+1}], 0" for r in range(r0, r0+n, 2)]
    return [f"v_mov_b32 v{r}, 0" for r in range(r0, r0+n)]

def pkmul(a, n, f):
    p, h = f & ~1, f & 1
    return [f"v_pk_mul_f32 v[{r}:{r+1}], v[{r}:{r+1}], v[{p}:{p+1}] op_sel:[0,{h}] op_sel_hi:[1,{h}]" for r in range(a, a+n, 2)]
```

```python
from common import *
import attn as A
import ffn as F

WS_CNT = 59 << 20
CNT_KV, CNT_CTX, CNT_F1, CNT_F2, CNT_KV0, CNT_EX, CNT_LN = 0, 32, 48, 96, 64, 128, 112
WS_EX = 64 << 20
SC = " sc1"
LDS_X = 131072

def NT(cfg, key):
    return " nt" if key in cfg.get("nt", "") else ""

def lines(fn, *a, **kw):
    t = K("tmp"); fn(t, *a, **kw); return [x.strip() for x in t.lines]

def signal(saddr_pair, off, t0, t1):
    return [f"v_mov_b32 {t0}, {off}", f"v_mov_b32 {t1}, 1", "s_mov_b64 exec, 1",
            f"global_atomic_add {t0}, {t1}, {saddr_pair}", "s_mov_b64 exec, -1", "s_nop 3"]

def switch(k, sreg, cases):
    L = []
    lend = k.newlabel("swend")
    for i, (val, items) in enumerate(cases):
        if i + 1 < len(cases):
            ln = k.newlabel("swn")
            L += [f"s_cmp_eq_u32 {sreg}, {val}", f"s_cbranch_scc0 {ln}"] + items + [f"s_branch {lend}", ln + ":"]
        else:
            L += items
    return L + [lend + ":"]

def guard(k, cond, br, items, key):
    l = k.newlabel("g")
    return Alt(cond + [f"{br} {l}"] + items + [l + ":"], lambda c: items if c[key] else [])

def spin(k, saddr, voff, vtmp, target, slp=8):
    l, le = k.newlabel("spin"), k.newlabel("spinx")
    return ["s_mov_b32 s61, 0x40000", l + ":", "s_sub_u32 s61, s61, 1", f"s_cbranch_scc1 {le}", f"s_sleep {slp}",
            f"global_load_dword {vtmp}, {voff}, {saddr} sc1", "s_waitcnt vmcnt(0)",
            f"v_readfirstlane_b32 s36, {vtmp}", "s_nop 0", f"s_cmp_lt_u32 s36, {target}", f"s_cbranch_scc1 {l}", le + ":"]

def check(k, saddr, voff, vtmp, target, slp=8):
    return A.ool(k, [f"v_readfirstlane_b32 s36, {vtmp}", "s_nop 0", f"s_cmp_lt_u32 s36, {target}"], "s_cbranch_scc1",
                 spin(k, saddr, voff, vtmp, target, slp))

def ln_check(k):
    l, le = k.newlabel("lspin"), k.newlabel("lspinx")
    return ["s_mov_b32 s61, 0x40000", l + ":", "v_cmp_gt_u32 vcc, 16, v116", "s_nop 0", "s_cmp_eq_u64 vcc, 0",
            f"s_cbranch_scc1 {le}", "s_sub_u32 s61, s61, 1", f"s_cbranch_scc1 {le}", "s_sleep 8",
            "global_load_dword v116, v117, s[90:91] sc1", "s_waitcnt vmcnt(0)", f"s_branch {l}", le + ":"]

def ln_row(X, XO, WR, Fr, T, SB, srow, sslot):
    k = K("t")
    t = [f"v{T+i}" for i in range(8)]
    for i in range(8):
        k.e(f"v_lshlrev_b32 v{Fr+2*i}, 16, v{X+i}")
        k.e(f"v_and_b32 v{Fr+2*i+1}, 0xffff0000, v{X+i}")
    k.e(f"v_add_f32 {t[0]}, v{Fr}, v{Fr+1}")
    for i in range(2, 16): k.e(f"v_add_f32 {t[0]}, {t[0]}, v{Fr+i}")
    wave_sum(k, t[0], t[1], SB)
    k.e(f"v_mul_f32 {t[1]}, 0x3a800000, {t[1]}")
    k.e(f"v_sub_f32 {t[2]}, v{Fr}, {t[1]}")
    k.e(f"v_mul_f32 {t[0]}, {t[2]}, {t[2]}")
    for i in range(1, 16):
        k.e(f"v_sub_f32 {t[2]}, v{Fr+i}, {t[1]}")
        k.e(f"v_fmac_f32 {t[0]}, {t[2]}, {t[2]}")
    wave_sum(k, t[0], t[2], SB)
    k.e(f"v_mul_f32 {t[2]}, 0x3a800000, {t[2]}")
    k.e(f"v_cvt_pk_bf16_f32 {t[3]}, {t[1]}, {t[2]}")
    k.e(f"v_lshlrev_b32 {t[6]}, 16, {t[3]}")
    k.e(f"v_and_b32 {t[2]}, 0xffff0000, {t[3]}")
    k.e(f"v_add_f32 {t[2]}, 0x3727c5ac, {t[2]}")
    rbf(k, t[2])
    k.e(f"v_sqrt_f32 {t[2]}, {t[2]}")
    k.e("s_nop 0")
    rbf(k, t[2])
    k.e(f"v_rcp_f32 {t[7]}, {t[2]}")
    k.e("s_nop 0")
    k.e(f"v_fma_f32 {t[4]}, -{t[2]}, {t[7]}, 1.0")
    k.e(f"v_fma_f32 {t[7]}, {t[4]}, {t[7]}, {t[7]}")
    for i in range(8):
        a, b = f"v{Fr+2*i}", f"v{Fr+2*i+1}"
        k.e(f"v_sub_f32 {a}, {a}, {t[6]}")
        k.e(f"v_sub_f32 {b}, {b}, {t[6]}")
        k.e(f"v_cvt_pk_bf16_f32 {t[4]}, {a}, {b}")
        k.e(f"v_lshlrev_b32 {a}, 16, {t[4]}")
        k.e(f"v_and_b32 {b}, 0xffff0000, {t[4]}")
        k.e(f"v_mul_f32 {a}, {a}, {t[7]}")
        k.e(f"v_mul_f32 {b}, {b}, {t[7]}")
        k.e(f"v_cvt_pk_bf16_f32 v{XO+i}, {a}, {b}")
        k.e(f"v_lshlrev_b32 {a}, 16, v{XO+i}")
        k.e(f"v_and_b32 {b}, 0xffff0000, v{XO+i}")
        if i == 0: k.e(f"v_mul_f32 {t[0]}, {a}, v{WR}")
        else: k.e(f"v_fmac_f32 {t[0]}, {a}, v{WR+2*i}")
        k.e(f"v_fmac_f32 {t[0]}, {b}, v{WR+2*i+1}")
    k.e(f"s_mul_i32 s{SB}, {sslot}, 2064")
    k.e(f"s_add_u32 s{SB}, s{SB}, {LDS_X}")
    k.e(f"v_lshl_add_u32 {t[3]}, v1, 4, s{SB}")
    k.e(f"ds_write_b128 {t[3]}, {v(XO,4)}")
    k.e(f"ds_write_b128 {t[3]}, {v(XO+4,4)} offset:1024")
    wave_sum(k, t[0], t[1], SB)
    rbf(k, t[1])
    k.e(f"v_ashrrev_i32 {t[3]}, 31, {t[1]}")
    k.e(f"v_or_b32 {t[3]}, 0x80000000, {t[3]}")
    k.e(f"v_xor_b32 {t[3]}, {t[1]}, {t[3]}")
    k.e(f"v_and_b32 {t[3]}, 0xffff0000, {t[3]}")
    k.e(f"s_sub_u32 s{SB}, 0xffff, {srow}")
    k.e(f"v_or_b32 {t[3]}, s{SB}, {t[3]}")
    k.e(f"s_lshl_b32 s{SB+1}, {sslot}, 3")
    k.e(f"s_add_u32 s{SB+1}, s{SB+1}, {LDS_X + 16640}")
    k.e(f"v_mov_b32 {t[2]}, s{SB+1}")
    k.e(f"ds_write_b64 {t[2]}, {v(T+6,2)}")
    k.e(f"ds_write_b32 {t[2]}, {t[3]} offset:64")
    return [x.strip() for x in k.lines]

def zip2(a, b):
    out = []
    for x, y in zip(a, b):
        if x == "s_nop 0": continue
        if x == "s_nop 1": out.append("s_nop 0"); continue
        out += [x, y]
    return out

def ln_part3(T):
    t = [f"v{T+i}" for i in range(8)]
    L = [f"v_and_b32 {t[0]}, 7, v1", f"v_lshlrev_b32 {t[0]}, 3, {t[0]}", f"v_add_u32 {t[1]}, {LDS_X + 16640}, {t[0]}",
         f"ds_read_b64 {v(T+2,2)}, {t[1]}", f"ds_read_b32 {t[4]}, {t[1]} offset:64",
         "s_lshl_b32 s36, s2, 6", f"s_add_u32 s36, s36, {WS_ST}", "s_lshl_b32 s37, s2, 3", f"s_add_u32 s37, s37, {F.WS_KEY}",
         "s_waitcnt lgkmcnt(0)", f"v_mov_b32 {t[6]}, {t[4]}"]
    red = lambda x: flat([["s_nop 1", f"v_max_u32_dpp {x}, {x}, {x} {m} row_mask:0xf bank_mask:0xf"]
                          for m in ("quad_perm:[1,0,3,2]", "quad_perm:[2,3,0,1]", "row_half_mirror")])
    L += red(t[6]) + [f"v_cmp_eq_u32 vcc, {t[6]}, {t[4]}", "s_nop 1", f"v_cndmask_b32 {t[7]}, {t[4]}, v118, vcc"] + red(t[7])
    L += ["s_mov_b64 exec, 0xff", f"buffer_store_dwordx2 {v(T+2,2)}, {t[0]}, s[24:27], s36 offen{SC}",
          "s_mov_b64 exec, 1", f"buffer_store_dwordx2 {v(T+6,2)}, {t[0]}, s[24:27], s37 offen{SC}", "s_mov_b64 exec, -1", "s_nop 3"]
    return L

def ln_part2(k, X, T):
    t = [f"v{T+i}" for i in range(8)]
    k.e(f"v_and_b32 {t[0]}, 7, v1")
    k.e(f"v_lshrrev_b32 {t[1]}, 3, v1")
    k.e(f"v_mul_u32_u24 {t[2]}, 2064, {t[0]}")
    k.e(f"v_lshl_add_u32 {t[2]}, {t[1]}, 4, {t[2]}")
    k.e("s_lshl_b32 s36, s28, 8")
    k.e(f"s_add_u32 s36, s36, {LDS_X}")
    k.e(f"v_add_u32 {t[2]}, s36, {t[2]}")
    k.e(f"ds_read_b128 {v(X,4)}, {t[2]}")
    k.e(f"ds_read_b128 {v(X+4,4)}, {t[2]} offset:128")
    k.e(f"v_lshlrev_b32 {t[0]}, 4, {t[0]}")
    k.e(f"v_lshl_add_u32 {t[0]}, {t[1]}, 8, {t[0]}")
    k.e("s_lshr_b32 s36, s2, 1")
    k.e("s_lshl_b32 s36, s36, 15")
    k.e("s_and_b32 s37, s2, 1")
    k.e("s_lshl_b32 s37, s37, 7")
    k.e("s_add_u32 s36, s36, s37")
    k.e("s_lshl_b32 s37, s28, 12")
    k.e("s_add_u32 s36, s36, s37")
    k.e("s_waitcnt lgkmcnt(0)")
    k.e(f"buffer_store_dwordx4 {v(X,4)}, {t[0]}, s[24:27], s36 offen{SC}")
    k.e(f"buffer_store_dwordx4 {v(X+4,4)}, {t[0]}, s[24:27], s36 offen offset:2048{SC}")

KP = 128
WF = 64
XF = [24, 96]
def xld2(xs, s_):
    return [VM(f"buffer_load_dwordx4 {v(XF[xs]+(s_*2+rb)*4,4)}, v{6+rb}, s[8:11], s32 offen offset:{s_*1024}{SC}", ("x", xs, s_)) for rb in range(2)]
vPOLL = "v56"
vZ = "v57"

def p1_retarget(cfg):
    L = ["v_lshrrev_b32 v3, 4, v1", "s_lshl_b32 s37, s28, 4", "v_add_u32 v19, s37, v3", "v_lshlrev_b32 v19, 13, v19",
         "s_lshl_b32 s37, s29, 8", "v_add_u32 v19, s37, v19", "v_and_b32 v16, 15, v1", "v_lshlrev_b32 v3, 1, v3",
         "v_xor_b32 v16, v16, v3", "v_lshl_add_u32 v2, v16, 4, v19", f"v_add_u32 v3, {32768-1024}, v2",
         "v_xor_b32 v16, 8, v16", "v_lshl_add_u32 v4, v16, 4, v19", f"v_add_u32 v4, {2*(32768-1024)}, v4",
         f"v_add_u32 v5, {32768-1024}, v4"]
    L += lines(srd, 4, 96, 8388608)
    L += ["s_mov_b32 s31, 0", f"s_mov_b32 s40, {128*8192}", "s_mov_b32 s10, 0", "s_mov_b32 s34, 0x30000"]
    return L

def p1(k, cfg, st):
    ACC = 128
    FR = [20, 68]
    XA, XB, WP, WR = 20, 28, 36, 44
    k.e("s_load_dwordx4 s[44:47], s[0:1], 0")
    k.e("s_load_dwordx2 s[52:53], s[0:1], 56")
    k.e("s_load_dwordx4 s[48:51], s[0:1], 24")
    k.e("s_getpc_b64 s[36:37]")
    k.label("L_pc")
    k.e("s_lshr_b32 s38, s2, 3")
    k.e("s_lshl_b32 s38, s38, 7")
    k.e("v_lshl_add_u32 v16, v0, 12, s38")
    k.e("v_cmp_gt_u32 vcc, L_end-L_pc-4, v16")
    k.e("v_mov_b32 v17, s37")
    k.e("s_and_b64 exec, exec, vcc")
    k.e("s_cbranch_execz L_nocpf")
    k.e("v_add_co_u32 v16, vcc, s36, v16")
    k.e("s_nop 1")
    k.e("v_addc_co_u32 v17, vcc, 0, v17, vcc")
    if not cfg.get("nocpf"): k.e("global_load_dword v119, v[16:17], off")
    k.label("L_nocpf")
    k.e("s_mov_b64 exec, -1")
    k.e("v_lshrrev_b32 v16, 6, v0")
    k.e("v_and_b32 v1, 63, v0")
    k.e("v_readfirstlane_b32 s28, v16")
    k.e("v_lshlrev_b32 v116, 4, v1")
    k.e("s_lshl_b32 s42, s2, 3")
    k.e("s_cmp_lt_u32 s28, 4")
    k.e("s_cbranch_scc1 L_nox")
    k.e("s_add_u32 s43, s42, s28")
    k.e("s_sub_u32 s42, s43, 4")
    k.e("v_lshl_add_u32 v18, s42, 11, v116")
    k.e("v_add_u32 v19, 8192, v18")
    k.e("s_waitcnt lgkmcnt(0)")
    for X_, a_ in ((XA, "v18"), (XB, "v19")):
        k.e(f"global_load_dwordx4 {v(X_,4)}, {a_}, s[44:45]{NT(cfg, 'x')}")
        k.e(f"global_load_dwordx4 {v(X_+4,4)}, {a_}, s[44:45] offset:1024{NT(cfg, 'x')}")
    k.e(f"global_load_dwordx4 {v(WP,4)}, v116, s[52:53]")
    k.e(f"global_load_dwordx4 {v(WP+4,4)}, v116, s[52:53] offset:1024")
    k.label("L_nox")
    k.e("s_load_dwordx4 s[88:91], s[0:1], 96")
    k.e("s_load_dwordx4 s[92:95], s[0:1], 64")
    k.e("s_load_dwordx2 s[96:97], s[0:1], 16")
    k.e("s_and_b32 s29, s2, 7")
    k.e("s_lshl_b32 s29, s29, 2")
    k.e("s_bfe_u32 s36, s2, 0x20003")
    k.e("s_add_u32 s29, s29, s36")
    k.e("s_lshr_b32 s30, s2, 5")
    k.e("v_lshrrev_b32 v16, 3, v1")
    k.e("s_lshl_b32 s36, s30, 8")
    k.e("s_lshl_b32 s37, s28, 5")
    k.e("s_add_u32 s36, s36, s37")
    k.e("v_add_u32 v16, s36, v16")
    k.e("v_lshlrev_b32 v16, 10, v16")
    k.e("v_lshrrev_b32 v18, 4, v1")
    k.e("v_and_b32 v19, 7, v1")
    k.e("v_xor_b32 v19, v19, v18")
    k.e("v_lshl_add_u32 v2, v19, 4, v16")
    k.e("v_xor_b32 v19, 4, v19")
    k.e("v_lshl_add_u32 v3, v19, 4, v16")
    k.e(f"v_add_u32 v3, {8192-1024}, v3")
    k.e(f"v_add_u32 v4, {2*(8192-1024)}, v2")
    k.e(f"v_add_u32 v5, {2*(8192-1024)}, v3")
    k.e("s_and_b32 s36, s28, 3")
    k.e("s_lshl_b32 s37, s36, 4")
    k.e("v_add_u32 v16, s37, v18")
    k.e("v_lshlrev_b32 v16, 13, v16")
    k.e("s_lshl_b32 s37, s29, 8")
    k.e("v_add_u32 v16, s37, v16")
    k.e("v_and_b32 v19, 15, v1")
    k.e("v_lshlrev_b32 v18, 1, v18")
    k.e("v_xor_b32 v19, v19, v18")
    k.e("v_lshl_add_u32 v6, v19, 4, v16")
    k.e(f"v_add_u32 v7, {32768-1024}, v6")
    k.e("v_xor_b32 v19, 8, v19")
    k.e("v_lshl_add_u32 v8, v19, 4, v16")
    k.e(f"v_add_u32 v8, {2*(32768-1024)}, v8")
    k.e(f"v_add_u32 v9, {32768-1024}, v8")
    k.e("s_lshl_b32 s33, s28, 12")
    k.e("s_add_u32 s34, s33, 65536")
    k.e("s_mov_b32 s31, 0")
    k.e("s_mov_b32 s32, 0")
    k.e("s_mov_b32 s40, 128")
    k.e(f"s_mov_b32 s41, {64*8192}")
    def dma_list(stage):
        c = [f"buffer_load_dwordx4 v{2+j}, s[4:7], s31 offen offset:{j*1024}{NT(cfg, 'c')} lds" for j in range(4)]
        w = [f"buffer_load_dwordx4 v{6+j}, s[8:11], s32 offen offset:{j*1024}{NT(cfg, 'w')} lds" for j in range(4)]
        return f"s_add_u32 m0, s33, {stage*32768}", c, f"s_add_u32 m0, s34, {stage*32768}", w
    def dma_both(stage):
        mc, c, mw, w = dma_list(stage)
        k.e(mc); k.e(f"s_add_u32 s36, s31, {128*1024}"); k.e(c)
        k.e(mw); k.e("s_nop 0"); k.e(w)
        k.e(f"s_add_u32 m0, s33, {stage*32768+16384}"); k.e("s_nop 0"); k.e([x.replace("s31", "s36") for x in c])
        k.e(f"s_add_u32 m0, s34, {stage*32768+16384}"); k.e("s_nop 0"); k.e([x.replace("s[8:11]", "s[20:23]") for x in w])
        k.e("s_add_u32 s31, s31, s40")
        k.e("s_add_u32 s32, s32, s41")
    def setup_rest():
        k.e(f"s_add_u32 s54, s90, {int(cfg.get('wsoff', 0)) << 20}")
        k.e("s_addc_u32 s55, s91, 0")
        srd(k, 12, 54, 33554432, WS_KV)
        srd(k, 24, 54, 80 << 20)
        k.e(f"s_add_u32 s90, s54, {WS_CNT}")
        k.e("s_addc_u32 s91, s55, 0")
        k.e("v_and_b32 v16, 15, v1")
        k.e("v_lshrrev_b32 v17, 4, v1")
        k.e("s_bfe_u32 s36, s28, 0x10001")
        k.e("s_lshl_b32 s36, s36, 14")
        k.e("v_lshl_add_u32 v18, v16, 7, s36")
        k.e("v_lshrrev_b32 v19, 1, v16")
        k.e("v_xor_b32 v19, v19, v17")
        k.e("v_lshl_add_u32 v10, v19, 4, v18")
        k.e("v_xor_b32 v19, 4, v19")
        k.e("v_lshl_add_u32 v11, v19, 4, v18")
        k.e("v_lshrrev_b32 v16, 2, v16")
        k.e("v_lshl_add_u32 v18, v17, 3, v16")
        k.e("v_lshlrev_b32 v18, 8, v18")
        k.e("s_lshr_b32 s36, s28, 2")
        k.e("s_lshl_b32 s36, s36, 14")
        k.e("s_add_u32 s36, s36, 65536")
        k.e("v_add_u32 v18, s36, v18")
        k.e("v_and_b32 v19, 3, v1")
        k.e("v_lshl_add_u32 v18, v19, 3, v18")
        k.e("v_and_b32 v17, 1, v17")
        k.e("v_lshl_add_u32 v16, v17, 2, v16")
        k.e("s_and_b32 s36, s28, 1")
        k.e("s_lshl_b32 s36, s36, 2")
        for cb in range(4):
            k.e(f"s_add_u32 s37, s36, {cb}")
            k.e("v_xor_b32 v19, s37, v16")
            k.e(f"v_lshl_add_u32 v{12+cb}, v19, 5, v18")
        k.e(zero(ACC, 128))
        k.e("v_mov_b32 v118, 0")
        k.e("v_mov_b32 v117, 0")
        k.e(["s_lshl_b32 s36, s30, 7", "s_lshl_b32 s37, s28, 4", "s_add_u32 s36, s36, s37", "v_bfe_u32 v17, v1, 1, 2",
             "v_add_u32 v17, s36, v17", "v_lshlrev_b32 v17, 13, v17", "v_and_b32 v19, 1, v1", "v_lshl_add_u32 v17, v19, 7, v17",
             "s_lshl_b32 s36, s29, 8", "v_add_u32 v17, s36, v17", f"s_mov_b32 s45, {4*8192}"])
    k.e("s_waitcnt lgkmcnt(0)")
    srd(k, 4, 46, 2097152)
    srd(k, 8, 48, 4194304)
    srd(k, 20, 50, 4194304)
    k.e("s_cmp_lt_u32 s28, 4")
    k.e("s_cbranch_scc0 L_pro_s")
    emit(k, A.ool(k, ["s_cmp_eq_u32 s2, 0"], "s_cbranch_scc1",
                  ["s_mul_i32 s36, s28, 12288", f"s_add_u32 s36, s36, {WS_CNT + (int(cfg.get('wsoff', 0)) << 20)}", "v_lshl_add_u32 v16, v1, 4, s36",
                   "v_mov_b32 v108, 0", "v_mov_b32 v109, 0", "v_mov_b32 v110, 0", "v_mov_b32 v111, 0"] +
                  flat([[f"global_store_dwordx4 v16, v[108:111], s[90:91]{SC}", "v_add_u32 v16, 1024, v16"] for _ in range(12)])))
    dma_both(0)
    k.label("L_pro_s")
    st.mark()
    setup_rest()
    st.mark()
    k.e("s_cmp_lt_u32 s28, 4")
    k.e("s_cbranch_scc0 L_pro_b")
    dma_both(1)
    k.e("s_waitcnt vmcnt(16)")
    k.e("s_branch L_pro_j")
    k.label("L_pro_b")
    k.e("s_mov_b64 s[8:9], s[20:21]")
    k.e("s_mov_b32 s31, 256")
    k.e(f"s_mov_b32 s32, {2*64*8192}")
    k.e("s_and_b32 s60, s28, 3")
    if cfg.get("nodry"): k.e("s_waitcnt vmcnt(0)")
    k.e(f"s_mov_b32 s3, {0 if cfg.get('nodry') else 0xD0}")
    k.label("L_ln")
    for i in range(8):
        k.e(f"v_lshlrev_b32 v{WR+2*i}, 16, v{WP+i}")
        k.e(f"v_and_b32 v{WR+2*i+1}, 0xffff0000, v{WP+i}")
    k.e(zip2(ln_row(XA, 108, WR, 60, 92, 36, "s42", "s60"), ln_row(XB, 120, WR, 76, 100, 56, "s43", "s28")))
    k.e("s_waitcnt vmcnt(0) lgkmcnt(0)")
    k.e("s_cmp_eq_u32 s3, 0")
    k.e("s_mov_b32 s3, 0")
    k.e("s_cbranch_scc0 L_ln")
    k.label("L_pro_j")
    st.mark()
    def reads(s_, stage, fs):
        b = FR[fs]
        c = [f"ds_read_b128 {v(b+4*i,4)}, v{10+s_} offset:{stage*32768+i*2048}" for i in range(8)]
        w = [[f"ds_read_b64_tr_b16 {v(b+32+4*cb+2*t,2)}, v{12+cb} offset:{stage*32768+(32*s_+4*t)*256}" for t in range(2)] for cb in range(4)]
        return [c[0]] + w[0] + w[1] + w[2] + w[3] + c[1:]
    def accreg(i, cb, vtype):
        return ACC + ((cb*8+i) if vtype else (i*4+cb))*4
    def mfmas(fs, vtype):
        b = FR[fs]; L = []
        for i in range(8):
            for cb in range(4):
                a = accreg(i, cb, vtype)
                cf, wf = v(b+4*i, 4), v(b+32+4*cb, 4)
                Aop, Bop = (cf, wf) if vtype else (wf, cf)
                L.append(f"{MF} {v(a,4)}, {Aop}, {Bop}, {v(a,4)}")
        return L
    k.e("s_barrier")
    k.e(reads(0, 0, 0))
    emit(k, A.ool(k, ["s_add_u32 s36, s2, s28", "s_cmp_eq_u32 s36, 0"], "s_cbranch_scc1",
                  ["v_mov_b32 v19, 1", "s_mov_b64 exec, 1", "global_store_dword v118, v19, s[88:89] sc1", "s_mov_b64 exec, -1"]))
    ln_part2(k, 120, 100)
    emit(k, A.ool(k, ["s_cmp_eq_u32 s28, 7"], "s_cbranch_scc1", ln_part3(108)))
    st.mark()
    k.e("s_mov_b32 s35, 0")
    k.e("s_cmp_eq_u32 s28, 0")
    k.e("s_cselect_b32 s43, 9, 0")
    k.e("s_cselect_b32 s44, 2, 1")
    k.e("s_cmp_lt_u32 s28, 4")
    k.e("s_cbranch_scc0 L_kv_vloop")
    for vtype in range(2):
        lp = "L_kv_vloop" if vtype else "L_kv_kloop"
        k.align(6)
        k.label(lp)
        for stage in range(2):
            for s_ in range(2):
                fills = [[] for _ in range(32)]
                pre = []
                if s_ == 0:
                    k.e("s_waitcnt lgkmcnt(0)")
                    rd = reads(1, stage, 1)
                    if stage == 1 and vtype == 0:
                        fills[20] += A.ool(k, ["s_bitcmp1_b32 s43, s35"], "s_cbranch_scc1", switch(k, "s35", [
                            (0, ["global_load_dword v116, v118, s[88:89] sc1"]),
                            (3, ["v_and_b32 v117, 15, v1", f"v_add_u32 v117, {CNT_LN}, v117", "v_lshlrev_b32 v117, 7, v117",
                                 "global_load_dword v116, v117, s[90:91] sc1"])]))
                else:
                    nt = 0 if cfg.get("notouch") else 1
                    if vtype == 0 and stage == 0:
                        emit(k, A.ool(k, ["s_cmp_eq_u32 s35, 3"], "s_cbranch_scc1", p1_retarget(cfg)))
                    la, lb = k.newlabel("w0"), k.newlabel("w0b")
                    if stage == 1 and vtype == 0:
                        A.OOL.append([la + ":", "s_waitcnt vmcnt(0)"] + switch(k, "s35", [(0, check(k, "s[88:89]", "v118", "v116", 1)), (3, ln_check(k))]) + [f"s_branch {lb}"])
                        emit(k, ["s_bitcmp1_b32 s43, s35", f"s_cbranch_scc1 {la}", f"s_waitcnt vmcnt({nt})", lb + ":", "s_waitcnt lgkmcnt(0)"])
                    elif stage == 1:
                        k.e(f"s_waitcnt vmcnt({nt}) lgkmcnt(0)")
                    else:
                        A.OOL.append([la + ":"] + switch(k, "s35", [(0, ["s_waitcnt vmcnt(2)"]), (1, [f"s_waitcnt vmcnt({nt+1})"])]) + [f"s_branch {lb}"])
                        emit(k, ["s_cmp_lt_u32 s35, s44", f"s_cbranch_scc1 {la}", f"s_waitcnt vmcnt({nt})", lb + ":", "s_waitcnt lgkmcnt(0)"])
                    if nt:
                        tp = int(cfg.get("tpos", 31))
                        tl = ["s_mov_b64 exec, 0xff", f"global_load_dword v{[119, 0][stage]}, v17, s[96:97]", "s_mov_b64 exec, -1"]
                        if stage == 1: tl += ["s_cmp_eq_u32 s35, 0", "s_cselect_b32 s45, s45, 0"]
                        tl += ["v_add_u32 v17, s45, v17"]
                        fills[tp] += tl + ["s_nop 1"]
                    if stage == 1: k.e("s_cmp_eq_u32 s35, 3")
                    k.e("s_barrier")
                    if stage == 1: k.e(f"s_cbranch_scc1 L_p1_fin{vtype}")
                    rd = reads(0, stage ^ 1, 0)
                    if stage == 1 and vtype == 0:
                        fills[30] += A.ool(k, ["s_add_u32 s36, s35, s28", "s_cmp_eq_u32 s36, 0"], "s_cbranch_scc1",
                                          ["s_lshr_b32 s36, s2, 4", f"s_add_u32 s36, s36, {CNT_LN}", "s_lshl_b32 s36, s36, 7"] + signal("s[90:91]", "s36", "v16", "v19"))
                for g in range(16): fills[g].append(rd[g])
                if s_ == 1:
                    mc, c, mw, w = dma_list(stage)
                    tail = ["s_add_u32 s31, s31, s40", "s_add_u32 s32, s32, s41"]
                    if vtype == 1:
                        pre = [mc, "s_nop 0"] + c + [mw, "s_nop 0"] + w + tail
                        if stage == 1:
                            pre += A.ool(k, ["s_cmp_eq_u32 s35, 2"], "s_cbranch_scc1", p1_retarget(cfg))
                    else:
                        fills[0].append(mc)
                        for j in range(4): fills[1+3*j].append(c[j])
                        fills[12].append(mw)
                        for j in range(4): fills[13+3*j].append(w[j])
                        fills[31] += tail
                emit(k, pre)
                emit(k, weave(mfmas(s_, vtype), fills))
                if s_ == 1: k.e(cfg["sth1"].hist(8, first=(vtype == 0 and stage == 0)))
        k.e("s_add_u32 s35, s35, 1")
        k.e(f"s_branch {lp}")
        k.label(f"L_p1_fin{vtype}")
        mc, c, mw, w = dma_list(1)
        head = lines(p2_setup) + lines(srd, 8, 54, 4194304)
        lds = flat([xld2(0, s_) for s_ in range(4)]) + [mc] + c + ["s_add_u32 s31, s31, s40", "s_add_u32 s32, s32, 4096"]
        rest = lines(p2_setup2)
        fills = [[] for _ in range(32)]
        if vtype == 1:
            emit(k, head + lds[:9] + ["s_nop 0"] + lds[9:])
        else:
            fills[0] += head
            for i, x in enumerate(lds): fills[1+2*i] += [x]
        for i, x in enumerate(rest): fills[min(2+i, 31)] += [x]
        emit(k, weave(mfmas(1, vtype), fills))
        k.e(cfg["sth1"].hist(8, first=False))
        if vtype == 0: k.e("s_branch L_p1_done")
    k.label("L_p1_done")

def kv_pack(k):
    for q in range(16):
        a = 128 + 8*q
        for e in range(4):
            k.e(f"v_cvt_pk_bf16_f32 v{KP+4*q+e}, v{a+2*e}, v{a+2*e+1}")
    k.e("s_lshl_b32 s38, s29, 20")
    k.e("s_lshl_b32 s37, s30, 17")
    k.e("s_add_u32 s38, s38, s37")
    k.e("s_bfe_u32 s37, s28, 0x10001")
    k.e("s_lshl_b32 s37, s37, 16")
    k.e("s_add_u32 s38, s38, s37")
    k.e("s_lshr_b32 s36, s28, 2")
    k.e("s_lshl_b32 s37, s36, 15")
    k.e("s_add_u32 s38, s38, s37")
    k.e("s_and_b32 s37, s28, 1")
    k.e("s_add_u32 s36, s36, 11")
    k.e("s_lshl_b32 s37, s37, s36")
    k.e("s_add_u32 s38, s38, s37")
    k.e("s_cmp_lt_u32 s28, 4")
    k.e("s_cselect_b32 s36, 4, 32")
    k.e("s_cselect_b32 s37, 16, 64")
    k.e("s_cselect_b32 s39, 32, 4")
    k.e("s_lshl_b32 s36, s36, 8")
    k.e("s_lshl_b32 s37, s37, 8")
    k.e("s_lshl_b32 s39, s39, 8")
    k.e("s_mov_b64 s[16:17], s[12:13]")
    k.e("s_mov_b64 s[18:19], s[14:15]")
    k.e("s_cmp_eq_u32 s30, 0")
    k.e("s_cselect_b32 s52, 2, 4")
    k.e("v_lshlrev_b32 v58, 4, v1")
    k.e("v_add_u32 v59, s36, v58")
    k.e("v_add_u32 v60, s37, v58")
    k.e("v_add_u32 v61, s36, v60")

def p2_setup(k):
    k.e("s_and_b32 s36, s28, 3")
    k.e("s_sub_u32 s37, 15, s30")
    k.e("s_cmp_lt_u32 s28, 4")
    k.e("s_cselect_b32 s37, s37, s30")
    k.e("s_lshl_b32 s37, s37, 2")
    k.e("s_add_u32 s37, s37, s36")
    k.e("s_lshl_b32 s37, s37, 16")
    k.e("v_lshl_add_u32 v6, v1, 4, s37")
    k.e("v_add_u32 v7, 32768, v6")
    k.e("s_mov_b32 s32, 0")

def p2_setup2(k):
    k.e("v_lshrrev_b32 v18, 4, v1")
    k.e("v_bfe_u32 v20, v1, 2, 2")
    k.e("v_lshl_add_u32 v19, v18, 3, v20")
    k.e("v_lshlrev_b32 v19, 8, v19")
    k.e("v_and_b32 v21, 3, v1")
    k.e("v_lshl_add_u32 v19, v21, 3, v19")
    k.e("v_and_b32 v21, 1, v18")
    k.e("v_lshl_add_u32 v20, v21, 2, v20")
    for db in range(8):
        k.e(f"v_xor_b32 v21, {db}, v20")
        k.e(f"v_lshl_add_u32 v{10+db}, v21, 5, v19")
    k.e("s_lshl_b32 s45, s29, 20")

def p2_pieces(k, cfg, evA, evB):
    def wdma(stage):
        return [f"s_add_u32 m0, s33, {stage*32768}"], [VM(f"buffer_load_dwordx4 v{2+j}, s[4:7], s31 offen offset:{j*1024}{SC}{NT(cfg, 'q')} lds", ("W", stage)) for j in range(4)]
    xld = xld2
    def wrd(stage, s_, db):
        return [DS(f"ds_read_b64_tr_b16 {v(WF+4*db+2*t,2)}, v{10+db} offset:{stage*32768+(32*s_+4*t)*256}", ("w", db)) for t in range(2)]
    def store(q, so="s38"):
        return VM(f"buffer_store_dwordx4 {v(KP+4*q,4)}, v{58+(q&3)}, s[16:19], {so} offen{SC}", "kvst")
    early = ["s_lshl_b32 s36, s39, 1", "s_add_u32 s36, s36, s38", "s_add_u32 s37, s36, s39"] + [store(q, f"s{34+q//4}") for q in range(8, 16)]
    prox = [xld(1, s_) for s_ in range(3)]
    D = 6
    pro2 = [wrd(0, 0, db) for db in range(D)]
    halves = []
    for stage in range(2):
        M, fills, pre = [], [[] for _ in range(64)], {}
        for s_ in range(4):
            for db in range(8):
                for rb in range(2):
                    o = A.Oreg(rb, db)
                    M.append(f"{MF} {v(o,4)}, {v(WF+4*db,4)}, {v(XF[stage]+(s_*2+rb)*4,4)}, {v(o,4)}")
        for p in range(32):
            if p % 2 == 0: pre[2*p] = [Need("ds", [("w", p % 8), ("w", (p+1) % 8)])]
            if p % 8 == 0: pre[2*p] += [Need("vm", [("x", stage, p // 8)])]
            f = p + D
            if f < 32:
                r = wrd(stage, f // 8, f % 8)
                fills[2*p] += [r[0]]; fills[2*p+1] += [r[1]]
        pre[0] = [evB[stage]] + pre[0]
        fills[2*27+1] += [evA[stage], "s_waitcnt lgkmcnt(0)", Need("vm", [("W", stage ^ 1)]), "s_barrier"]
        nx = {28: [0, 1], 29: [2, 3], 30: [4], 31: [5]}
        for p, fl in nx.items():
            for i, f in enumerate(fl):
                fills[2*p+i] += wrd(stage ^ 1, 0, f)
        for s_ in range(4):
            xl = xld(stage ^ 1, 3) if s_ == 0 else xld(stage, s_-1)
            fills[16*s_+2] += [xl[0]]; fills[16*s_+6] += [xl[1]]
            if s_ == 0:
                fills[7] += ["s_add_u32 s32, s32, 4096"]
                if stage == 0:
                    fills[8] += ["s_cmp_lt_u32 s35, 3", "s_cselect_b32 s10, 4194304, 0"]
        if not cfg.get("nokvst"):
            spos = [int(x) for x in cfg.get("spos", "10,30").split(",")]
            for i in range(2):
                q = 2*stage + i
                fills[spos[i]] += [store(q)]
                for g in range(3):
                    for h in range(2):
                        r = KP + 16*g + 4*q + 2*h
                        fills[spos[i]+2+2*(2*g+h)] += [f"v_mov_b64 v[{r}:{r+1}], v[{r+16}:{r+17}]"]
            if stage == 1: fills[spos[1]+1] += ["s_add_u32 s38, s38, s39"]
            if stage == 0: fills[9] += ["s_cmp_lt_u32 s35, s52", "s_cselect_b32 s18, s18, 0"]
        m, d = wdma(stage)
        fills[2*29+1] += m
        fills[60] += [d[0]]; fills[61] += [d[1]]; fills[62] += [d[2]]; fills[63] += [d[3], "s_add_u32 s31, s31, s40"]
        halves.append(weave(M, fills, pre))
    return prox, pro2, halves, early

def p2_events(k, cfg):
    W0 = (["s_cmp_eq_u32 s28, 0"], "s_cbranch_scc0")
    def E3():
        return ["s_mov_b64 s[4:5], s[12:13]", "s_mov_b32 s6, s14", "s_mov_b32 s31, s45", "s_mov_b32 s40, 65536",
                "v_add_u32 v2, s33, v58", "v_mov_b32 v3, v2", "v_mov_b32 v4, v2", "v_mov_b32 v5, v2"]
    def V0():
        return ["s_add_u32 m0, s33, 65536", "s_add_u32 s36, s45, 32768"] + \
               [VM(f"buffer_load_dwordx4 v2, s[12:15], s36 offen offset:{j*1024}{SC} lds", "v0") for j in range(4)]
    off0 = [f"s_add_u32 s36, s29, {CNT_KV0}", "s_lshl_b32 s36, s36, 7"]
    sig0 = guard(k, ["s_add_u32 s36, s28, s30", "s_cmp_eq_u32 s36, 4"], "s_cbranch_scc0", off0 + signal("s[90:91]", "s36", "v62", "v63"), "sg")
    pol0 = guard(k, *W0, off0 + [f"v_mov_b32 {vZ}, s36", VM(f"global_load_dword {vPOLL}, {vZ}, s[90:91] sc1", "poll")], "w0")
    chk0 = guard(k, *W0, [Need("vm", ["poll"])] + check(k, "s[90:91]", vZ, vPOLL, 1), "w0")
    evs = {"A": {(2, 0): [], (2, 1): [pol0], (3, 0): E3() + [chk0]},
           "B": {(2, 0): [], (2, 1): [sig0], (3, 0): E3()}}
    v0 = V0()
    out = {}
    for g, cmp_ in (("A", "s_cmp_lt_u32 s28, 4"), ("B", "s_cmp_ge_u32 s28, 4")):
        out[g] = []
        for stage in range(2):
            cs = [(it, evs[g][(it, st_)]) for (it, st_) in sorted(evs[g]) if st_ == stage]
            inner = []
            if g == "B" and stage == 1:
                l = k.newlabel("nv0")
                inner += ["s_cmp_eq_u32 s35, 3", f"s_cbranch_scc0 {l}"] + v0 + [l + ":"]
                cs = cs + [(3, [])]
            elif stage == 1: cs = cs + [(3, [])]
            l = k.newlabel("ng")
            inner += [cmp_, f"s_cbranch_scc0 {l}"] + switch(k, "s35", cs) + [l + ":"]
            def pick(c, g=g, stage=stage):
                r = []
                if g == "B" and stage == 1 and c["it"] == 3: r += v0
                if c["grp"] == g: r += evs[g].get((c["it"], stage), [])
                return r
            out[g].append(Alt(A.ool(k, ["s_cmp_ge_u32 s35, 2"], "s_cbranch_scc1", inner), pick))
    return out["A"], out["B"]

def p2(k, cfg, st):
    evA, evB = p2_events(k, cfg)
    prox, pro2, halves, early = p2_pieces(k, cfg, evA, evB)
    earlyA = Alt(A.ool(k, ["s_cmp_eq_u32 s30, 0"], "s_cbranch_scc1", early), lambda c: early if c["fast"] else [])
    body = [halves[0], cfg["sth2"].hist(8), halves[1], cfg["sth2"].hist(8, first=False)]
    nq = Need("vm", [("W", 0), "v0", "kvst", "xsel"] + [("x", a, b) for a in range(2) for b in range(4)])
    n0 = Need("vm", [("x", 0, 3)])
    scen = []
    for grp, w0 in (("A", 0), ("A", 1), ("B", 0), ("B", 1)):
        for ffn in (0,):
            for fast in (0, 1):
                sq = flat([xld2(0, s_) for s_ in range(4)]) + [VM("", ("W", 1))]*4 + flat([prox, pro2, n0, earlyA], dict(fast=fast))
                for it in range(4): sq += flat(body, dict(it=it, w0=w0, ffn=ffn, fast=fast, grp=grp, sg=fast and w0))
                scen.append(sq + [nq])
    resolve(scen)
    cfg["qwait"] = nq.n
    st.mark()
    k.e("s_waitcnt vmcnt(12)")
    emit(k, prox)
    emit(k, pro2)
    kv_pack(k)
    k.e(zero(A.O_, 64))
    k.e("s_mov_b32 s35, 0")
    emit(k, [n0, earlyA])
    st.mark()
    k.align(6)
    k.label("L_p2_loop")
    emit(k, body)
    k.e("s_add_u32 s35, s35, 1")
    k.e("s_cmp_lt_u32 s35, 4")
    k.e("s_cbranch_scc1 L_p2_loop")
    st.mark()
```

```python
from common import *
import attn as A
import ffn as F
import oproj as O
from fused_a import *

X32, G = 96, 112
XI, YA = 40, 24
WR4, XF4 = 64, [128, 160]
PRE, FW, HH, DD = 96, 112, 36, 96
LDS_P4 = 65536

CFG = {}
def after_q(k, grp):
    srd(k, 16, 54, 16777216, WS_CTX)
    if grp == 0:
        srd(k, 4, 92, 7340032)
        srd(k, 8, 94, 7340032)
        k.e("s_and_b32 s60, s29, 3")
        k.e(f"s_add_u32 s60, s60, {CFG.get('e0', 4)}")
        k.e("s_sub_u32 s3, s2, 32")
        k.e("s_cmp_eq_u32 s28, 0")
        k.e("s_cselect_b32 s36, 0xad, 0x2d")
        k.e("s_cselect_b32 s42, 14, 12")
        k.e("s_cmp_lt_u32 s3, 224")
        k.e("s_cselect_b32 s36, s36, 0")
        k.e("s_lshl_b32 s36, s36, s60")
        k.e("s_or_b32 s42, s42, s36")
    else:
        emit(k, A.ool(k, ["s_cmp_eq_u32 s28, 4"], "s_cbranch_scc1", ["s_lshl_b32 s36, s29, 7"] + signal("s[90:91]", "s36", "v20", "v21")))
        k.e("s_sub_u32 s36, s2, 128")
        k.e("s_lshl_b32 s36, s36, 2")
        k.e("s_and_b32 s37, s28, 3")
        k.e("s_add_u32 s36, s36, s37")
        k.e("s_lshl_b32 s36, s36, 14")
        k.e("v_lshl_add_u32 v13, v1, 7, s36")
        k.e("s_cmp_ge_u32 s2, 128")
        k.e(f"s_cselect_b32 s39, {2 if CFG.get('nobt') else 0x1fe}, 2")

def pro_wait(k, grp):
    if grp == 0: return ["s_waitcnt vmcnt(0)"]
    l = k.newlabel("pw")
    return ["s_waitcnt vmcnt(1)", "s_cmp_eq_u32 s28, 4", f"s_cbranch_scc1 {l}", "s_waitcnt vmcnt(0)", l + ":"]

def pro_hook(k, grp):
    if grp == 0:
        return A.ool(k, ["s_cmp_eq_u32 s28, 0"], "s_cbranch_scc1",
                     ["s_lshl_b32 s36, s29, 7", "v_mov_b32 v13, s36", "global_load_dword v14, v13, s[90:91] sc1"])
    return []

def b_hook(k):
    l = k.newlabel("bt")
    mats = ((92, 7340032), (94, 7340032), (34, 7340032), (32, 8388608))
    if CFG.get("bt", "2") == "2": mats = mats[2:]
    n = 8 // len(mats)
    def t(p, size, h, i):
        L = [f"v_add_u32 v11, {16384//n*h}, v13", f"v_min_u32 v11, {size-128}, v11"] + ["s_waitcnt vmcnt(3)"]
        ld = f"global_load_dword v{[10, 16, 17, 0][i % 4]}, v11, s[{p}:{p+1}]"
        return L + ([ld] if n == 2 else ["s_mov_b32 exec_hi, 0", ld, "s_mov_b32 exec_hi, -1", "s_nop 1"])
    cases = [(1+n*i+h, t(p, sz, h, n*i+h)) for i, (p, sz) in enumerate(mats) for h in range(n)]
    cases[0] = (1, ["s_cmp_lt_u32 s2, 128", f"s_cbranch_scc1 {l}"] + cases[0][1] + [l + ":"])
    return switch(k, "s40", cases)

def bar_hook(k, grp):
    if grp == 1: return []
    QS = A.QS_
    keys = [f"s_mov_b32 s36, {F.WS_KEY}"] + [f"buffer_load_dwordx4 {v(QS+4*i,4)}, {A.vL16}, s[24:27], s36 offen offset:{i*1024}{SC}" for i in range(2)]
    t2 = K("t"); F.top2(t2, QS, 26, 8, 20)
    top = [x.strip() for x in t2.lines]
    top += ["v_and_b32 v26, 1, v1", "v_mov_b32 v27, s56", "v_mov_b32 v28, s57", "v_cmp_eq_u32 vcc, 1, v26", "s_nop 1",
            "v_cndmask_b32 v27, v27, v28, vcc", "v_lshrrev_b32 v28, 4, v27", "v_lshlrev_b32 v28, 15, v28", "v_and_b32 v27, 15, v27",
            "v_lshl_add_u32 v28, v27, 4, v28", "v_lshrrev_b32 v29, 4, v1", "v_lshl_add_u32 v28, v29, 8, v28",
            "s_and_b32 s36, s3, 3", "s_lshl_b32 s36, s36, 13", "s_add_u32 s37, s36, 4096",
            "s_mov_b32 exec_lo, 0x00030003", "s_mov_b32 exec_hi, 0x00030003"]
    top += [f"buffer_load_dwordx4 {v(QS+4*i,4)}, v28, s[24:27], s{36+i//4} offen offset:{(i%4)*1024}{SC}" for i in range(8)]
    top += ["s_mov_b64 exec, -1"]
    def dma(m):
        L = ["s_and_b32 s20, s3, 3", "s_lshl_b32 s20, s20, 8", "s_lshl_b32 s21, s28, 5", "s_add_u32 s20, s20, s21",
             "s_lshr_b32 s21, s3, 2", "s_lshl_b32 s21, s21, 7"] + lines(F.wdma_addr, 26, "s20", 7168, "s21")
        L += ["s_lshl_b32 s36, s28, 13", f"s_add_u32 m0, s36, {LDS_X}", f"s_mov_b32 s37, {32*7168}"]
        L += [f"buffer_load_dwordx4 v{26+j}, s[{4+4*m}:{7+4*m}], 0 offen offset:{j*1024}{NT(CFG, 'f')} lds" for j in range(4)]
        L += [f"s_add_u32 m0, s36, {LDS_X+4096}", "s_nop 0"]
        L += [f"buffer_load_dwordx4 v{26+j}, s[{4+4*m}:{7+4*m}], s37 offen offset:{j*1024}{NT(CFG, 'f')} lds" for j in range(4)]
        return L
    def mm(m):
        L = lines(F.wrd_addr, "v20", "v21", "v8")
        L += ["v_xor_b32 v21, s28, v21", "v_lshl_add_u32 v20, v21, 5, v20", f"v_add_u32 v20, {LDS_X}, v20"]
        rd = lambda h: [f"ds_read_b64_tr_b16 {v(22+4*s_+2*t,2)}, v20 offset:{(32*(4*h+s_)+4*t)*128}" for s_ in range(4) for t in range(2)]
        L += rd(0)
        L += ["s_and_b32 s36, s3, 3", "s_lshl_b32 s36, s36, 6", "s_lshr_b32 s37, s3, 2", "s_lshl_b32 s37, s37, 12", "s_add_u32 s36, s36, s37",
              "s_lshl_b32 s37, s28, 10", "s_add_u32 s36, s36, s37", f"s_add_u32 s36, s36, {WS_PRE + 32*m}",
              "v_and_b32 v9, 1, v1", "v_lshlrev_b32 v9, 4, v9", "v_lshl_add_u32 v9, v8, 8, v9", "s_waitcnt lgkmcnt(0)"]
        L += [f"{MF} v[10:13], {v(22+4*s_,4)}, {v(QS+4*s_,4)}, {'v[10:13]' if s_ else '0'}" for s_ in range(4)]
        L += rd(1) + ["s_waitcnt lgkmcnt(0)"]
        L += [f"{MF} v[10:13], {v(22+4*s_,4)}, {v(QS+16+4*s_,4)}, v[10:13]" for s_ in range(4)]
        L += ["s_nop 5", "s_mov_b32 exec_lo, 0x00030003", "s_mov_b32 exec_hi, 0x00030003",
              f"buffer_store_dwordx4 v[10:13], v9, s[24:27], s36 offen{SC}", "s_mov_b64 exec, -1", "s_nop 1"]
        return L
    sig = ["s_mul_i32 s36, s3, 2341", "s_lshr_b32 s36, s36, 16", f"s_add_u32 s36, s36, {CNT_F1}", "s_lshl_b32 s36, s36, 7"] + signal("s[90:91]", "s36", "v20", "v21")
    ffn = ["s_sub_u32 s38, s40, s60"] + switch(k, "s38", [(0, dma(0)), (2, mm(0)), (3, dma(1)), (5, mm(1)), (7, sig)])
    return A.ool(k, ["s_bitcmp1_b32 s42, s40"], "s_cbranch_scc1",
                 switch(k, "s40", [(1, check(k, "s[90:91]", "v13", "v14", 8)), (2, keys), (3, top), (4, ffn)]))

def before_tail(k, grp):
    srd(k, 4, 34, 7340032)
    srd(k, 8, 32, 8388608)
    k.e("s_lshr_b32 s38, s2, 4")
    k.e("s_mul_i32 s38, s38, 224")
    k.e("s_and_b32 s39, s2, 15")
    k.e("s_lshl_b32 s39, s39, 7")
    F.wdma_addr(k, 26, "s38", 2048, "s39")
    k.e("s_lshl_b32 s36, s28, 12")
    k.e(f"s_add_u32 s36, s36, {LDS_X}")
    k.e("s_cmp_lt_u32 s28, 7")
    k.e("s_cselect_b32 m0, s36, 0x30000")
    k.e("s_cselect_b32 s6, 7340032, 0")
    for j in range(4): k.e(f"buffer_load_dwordx4 v{26+j}, s[4:7], 0 offen offset:{j*1024} lds")
    k.e("s_lshr_b32 s36, s2, 5")
    k.e(f"s_add_u32 s36, s36, {CNT_F1}")
    k.e("s_lshl_b32 s36, s36, 7")
    k.e("v_mov_b32 v12, s36")
    k.e("global_load_dword v11, v12, s[90:91] sc1")

def before_merge(k):
    k.e("s_waitcnt vmcnt(0)")
    emit(k, check(k, "s[90:91]", "v12", "v11", 28))
    k.e(["s_lshr_b32 s36, s2, 4", "s_mul_i32 s36, s36, 7", "s_min_u32 s37, s28, 6", "s_add_u32 s36, s36, s37",
         "s_lshl_b32 s36, s36, 11", f"s_add_u32 s36, s36, {WS_PRE}", "v_and_b32 v11, 15, v1", "v_lshlrev_b32 v11, 4, v11",
         "v_lshrrev_b32 v12, 4, v1", "v_lshl_add_u32 v11, v12, 9, v11"])
    k.e([f"buffer_load_dwordx4 {v(PRE+4*h,4)}, v11, s[24:27], s36 offen offset:{256*h}{SC}" for h in range(2)])

def gcalc(k, withy, cbs=range(4)):
    for cb in cbs:
        for h in range(2):
            a, b = X32+4*cb+2*h, X32+4*cb+2*h+1
            ga, gb = G+4*cb+2*h, G+4*cb+2*h+1
            k.e(f"v_lshlrev_b32 v{a}, 16, v{XI+2*cb+h}")
            k.e(f"v_and_b32 v{b}, 0xffff0000, v{XI+2*cb+h}")
            k.e(f"v_sub_f32 v{ga}, v{a}, v{XI+8}")
            k.e(f"v_sub_f32 v{gb}, v{b}, v{XI+8}")
            def rnd2():
                k.e(f"v_cvt_pk_bf16_f32 v10, v{ga}, v{gb}")
                k.e(f"v_lshlrev_b32 v{ga}, 16, v10")
                k.e(f"v_and_b32 v{gb}, 0xffff0000, v10")
            rnd2()
            k.e(f"v_mul_f32 v{ga}, v{ga}, v{XI+9}")
            k.e(f"v_mul_f32 v{gb}, v{gb}, v{XI+9}")
            rnd2()
            if withy:
                k.e(f"v_add_f32 v{ga}, v{ga}, v{YA+4*cb+2*h}")
                k.e(f"v_add_f32 v{gb}, v{gb}, v{YA+4*cb+2*h+1}")
                rnd2()
            k.e(f"v_mul_f32 v11, 0xbfb8aa3b, v{ga}")
            k.e(f"v_mul_f32 v12, 0xbfb8aa3b, v{gb}")
            k.e("v_exp_f32 v11, v11")
            k.e("v_exp_f32 v12, v12")
            k.e("s_nop 0")
            k.e("v_add_f32 v11, 1.0, v11")
            k.e("v_add_f32 v12, 1.0, v12")
            k.e("v_rcp_f32 v11, v11")
            k.e("v_rcp_f32 v12, v12")
            k.e("s_nop 0")
            k.e(f"v_mul_f32 v{ga}, v{ga}, v11")
            k.e(f"v_mul_f32 v{gb}, v{gb}, v12")
            rnd2()

def ffn2_math(k):
    F.wrd_addr(k, "v26", "v27", "v28")
    k.e("s_lshl_b32 s36, s28, 12")
    k.e(f"s_add_u32 s36, s36, {LDS_X}")
    k.e("v_add_u32 v26, s36, v26")
    for cb in range(4):
        k.e(f"v_xor_b32 v28, {cb}, v27")
        k.e("v_lshl_add_u32 v28, v28, 5, v26")
        for t in range(2):
            k.e(f"ds_read_b64_tr_b16 {v(FW+4*cb+2*t,2)}, v28 offset:{4*t*128}")
    for m in ("row_ror:4", "row_ror:8"):
        for e in range(8): k.e(f"v_add_f32_dpp v{PRE+e}, v{PRE+e}, v{PRE+e} {m} row_mask:0xf bank_mask:0xf")
    for e in range(0, 8, 2):
        k.e(f"v_cvt_pk_bf16_f32 v29, v{PRE+e}, v{PRE+e+1}")
        k.e(f"v_lshlrev_b32 v{PRE+e}, 16, v29")
        k.e(f"v_and_b32 v{PRE+e+1}, 0xffff0000, v29")
    for e in range(8): k.e(f"v_mul_f32 v{PRE+8+e}, 0xbfb8aa3b, v{PRE+e}")
    for e in range(8): k.e(f"v_exp_f32 v{PRE+8+e}, v{PRE+8+e}")
    for e in range(8): k.e(f"v_add_f32 v{PRE+8+e}, 1.0, v{PRE+8+e}")
    for e in range(8): k.e(f"v_rcp_f32 v{PRE+8+e}, v{PRE+8+e}")
    for e in range(8): k.e(f"v_mul_f32 v{PRE+8+e}, v{PRE+e}, v{PRE+8+e}")
    for e in range(0, 8, 2):
        k.e(f"v_cvt_pk_bf16_f32 v29, v{PRE+8+e}, v{PRE+8+e+1}")
        k.e(f"v_lshlrev_b32 v{PRE+8+e}, 16, v29")
        k.e(f"v_and_b32 v{PRE+8+e+1}, 0xffff0000, v29")
    for e in range(8): k.e(f"v_mul_f32_dpp v{PRE+e}, v{PRE+e}, v{PRE+8+e} quad_perm:[2,3,0,1] row_mask:0xf bank_mask:0xf")
    for q in range(4): k.e(f"v_cvt_pk_bf16_f32 v{HH+q}, v{PRE+2*q}, v{PRE+2*q+1}")
    k.e("s_waitcnt lgkmcnt(0)")
    k.e("v_lshl_add_u32 v28, v1, 4, s36")
    for cb in range(4): k.e(f"{MF} {v(DD+4*cb,4)}, {v(FW+4*cb,4)}, {v(HH,4)}, 0")
    k.e("s_nop 7")
    for cb in range(4): k.e(f"ds_write_b128 v28, {v(DD+4*cb,4)} offset:{cb*1024}")

def ffn2_reduce():
    L = ["s_lshl_b32 s36, s28, 10", f"s_add_u32 s36, s36, {LDS_X}", "v_lshl_add_u32 v28, v1, 4, s36"]
    L += [f"ds_read_b128 {v(PRE+4*w,4)}, v28 offset:{w*4096}" for w in range(7)]
    L += ["s_lshr_b32 s36, s2, 4", "s_lshl_b32 s36, s36, 13", "s_and_b32 s37, s2, 15", "s_lshl_b32 s37, s37, 8", "s_add_u32 s36, s36, s37",
          "s_lshl_b32 s37, s28, 6", "s_add_u32 s36, s36, s37", f"s_add_u32 s36, s36, {WS_YP}",
          "v_and_b32 v28, 1, v1", "v_lshlrev_b32 v28, 12, v28", "v_lshl_add_u32 v28, v19, 4, v28", "s_waitcnt lgkmcnt(0)"]
    for w in range(1, 7):
        L += [f"v_add_f32 v{PRE+e}, v{PRE+e}, v{PRE+4*w+e}" for e in range(4)]
    L += ["s_mov_b32 exec_lo, 0x00030003", "s_mov_b32 exec_hi, 0x00030003",
          VM(f"buffer_store_dwordx4 {v(DD,4)}, v28, s[24:27], s36 offen{SC}", "yp"), "s_mov_b64 exec, -1", "s_nop 3"]
    return L

def p4_setup(k):
    k.e("s_and_b32 s63, s30, 1")
    k.e("s_bfe_u32 s36, s2, 0x10002")
    k.e("s_lshl_b32 s36, s36, 3")
    k.e("s_add_u32 s30, s30, s36")
    k.e("s_and_b32 s29, s29, 15")
    k.e("s_and_b32 s36, s28, 3")
    k.e("s_lshl_b32 s37, s29, 2")
    k.e("s_add_u32 s36, s36, s37")
    k.e("s_lshl_b32 s36, s36, 18")
    k.e("s_lshr_b32 s37, s28, 2")
    k.e("s_lshl_b32 s37, s37, 12")
    k.e("s_add_u32 s36, s36, s37")
    k.e("s_lshl_b32 s37, s63, 16")
    k.e("s_add_u32 s36, s36, s37")
    k.e("v_lshl_add_u32 v2, v1, 4, s36")
    k.e(f"v_add_u32 v3, {1<<17}, v2")
    k.e("v_lshrrev_b32 v19, 4, v1")
    k.e("s_lshr_b32 s36, s28, 2")
    k.e("s_lshl_b32 s36, s36, 7")
    k.e("s_and_b32 s37, s28, 3")
    k.e("s_lshl_b32 s37, s37, 4")
    k.e("s_add_u32 s36, s36, s37")
    k.e("s_lshl_b32 s33, s36, 8")
    k.e("s_lshl_b32 s37, s63, 11")
    k.e("s_add_u32 s36, s36, s37")
    k.e("v_add_u32 v18, s36, v19")
    k.e("v_lshlrev_b32 v18, 11, v18")
    k.e("s_lshr_b32 s36, s30, 1")
    k.e("s_lshl_b32 s36, s36, 8")
    k.e("v_add_u32 v18, s36, v18")
    k.e("v_lshlrev_b32 v20, 1, v19")
    k.e("v_and_b32 v21, 15, v1")
    k.e("v_xor_b32 v20, v20, v21")
    k.e("v_lshl_add_u32 v6, v20, 4, v18")
    k.e("v_xor_b32 v20, 8, v20")
    k.e("v_lshl_add_u32 v7, v20, 4, v18")
    k.e(f"v_add_u32 v7, {8192-1024}, v7")
    k.e(f"v_add_u32 v8, {2*(8192-1024)}, v6")
    k.e(f"v_add_u32 v9, {2*(8192-1024)}, v7")
    k.e("s_add_u32 s36, s2, 1")
    k.e("s_and_b32 s62, s36, 3")
    k.e("s_lshl_b32 s31, s62, 14")
    k.e("s_lshl_b32 s32, s62, 20")

def p4_setup2(k):
    k.e("v_bfe_u32 v20, v1, 2, 2")
    k.e("v_lshl_add_u32 v18, v19, 2, v20")
    k.e("v_and_b32 v20, 7, v18")
    k.e("v_lshlrev_b32 v18, 8, v18")
    k.e("s_lshr_b32 s36, s28, 2")
    k.e("s_lshl_b32 s36, s36, 15")
    k.e("s_add_u32 s36, s36, 65536")
    k.e("v_add_u32 v18, s36, v18")
    k.e("v_and_b32 v21, 3, v1")
    k.e("v_lshl_add_u32 v18, v21, 3, v18")
    for cb in range(8):
        k.e(f"v_xor_b32 v21, {cb}, v20")
        k.e(f"v_lshl_add_u32 v{50+cb}, v21, 5, v18")
    k.e(zero(A.O_, 64))

def ctx_ready(k, n, pre=None):
    l, le, lc = k.newlabel("cspin"), k.newlabel("cspinx"), k.newlabel("cchk")
    L = ["s_mov_b32 s61, 0x40000"]
    if pre is not None: L += [f"s_waitcnt vmcnt({pre})", f"s_branch {lc}"]
    return L + [l + ":", "s_sub_u32 s61, s61, 1", f"s_cbranch_scc1 {le}",
            "global_load_dword v59, v58, s[90:91] sc1", "s_waitcnt vmcnt(0)", lc + ":", "v_cmp_le_u32 vcc, 4, v59", "s_nop 0",
            "s_and_b32 s60, vcc_lo, 15", f"s_and_b32 s36, s60, {(1<<n)-1}", f"s_cmp_eq_u32 s36, {(1<<n)-1}", f"s_cbranch_scc1 {le}",
            "s_sleep 6", f"s_branch {l}", le + ":"]

def p4_pieces(k, cfg, tops):
    def wdma(stage, h):
        L = [[f"s_add_u32 m0, s34, {(stage^1)*65536 + h*16384}"]]
        L += [[VM(f"buffer_load_dwordx4 v{6+j}, s[8:11], s32 offen offset:{j*1024} lds", ("W", stage, h))] for j in range(4)]
        L.append([f"s_add_u32 s32, s32, {64*2048}"] if h == 0 else [f"s_add_u32 s32, s32, {192*2048}", "s_and_b32 s32, s32, 0x3fffff"])
        return L
    def xld(xs, s_):
        return [VM(f"buffer_load_dwordx4 {v(XF4[xs]+(s_*2+rb)*4,4)}, v{2+rb}, s[4:7], s31 offen offset:{s_*1024}{SC}", ("x", xs, s_)) for rb in range(2)]
    def wrd(s_, cb):
        return [DS(f"ds_read_b64_tr_b16 {v(WR4+4*cb+2*t,2)}, v{50+cb} offset:{(32*s_+16*t)*256}", ("w", cb)) for t in range(2)]
    xadv = ["s_add_u32 s31, s31, 8192", "s_and_b32 s31, s31, 0xffff"]
    nopw = lambda L: [g + (["s_nop 0"] if i == 0 else []) for i, g in enumerate(L)]
    prow0 = ["s_mov_b32 s34, s33"] + [nopw(wdma(t, h)) for t in range(2) for h in range(2)]
    prox = [xld(0, s_) for s_ in range(4)] + xadv
    D = 6
    pro2 = [wrd(0, cb) for cb in range(D)] + ["s_mov_b32 s35, 0", Need("vm", [("x", 0, int(cfg.get("xw", 3)))])] + [xld(1, s_) for s_ in range(3)]
    body = []
    for stage in range(2):
        for hh in range(2):
            M, fills, pre = [], [[] for _ in range(32)], {}
            for s_ in range(2*hh, 2*hh+2):
                for cb in range(8):
                    for rb in range(2):
                        o = A.Oreg(rb, cb)
                        M.append(f"{MF} {v(o,4)}, {v(WR4+4*cb,4)}, {v(XF4[stage]+(s_*2+rb)*4,4)}, {v(o,4)}")
            for p in range(16):
                if p % 2 == 0: pre[2*p] = [Need("ds", [("w", p % 8), ("w", (p+1) % 8)])]
                if p % 8 == 0: pre[2*p] += [Need("vm", [("x", stage, 2*hh + p // 8)])]
                f = p + D
                if f < 16:
                    r = wrd(2*hh + f // 8, f % 8)
                    fills[2*p] += [r[0]]; fills[2*p+1] += [r[1]]
                    if hh == 1 and f >= 8: fills[2*p+1] += [f"v_xor_b32 v{50+f%8}, 65536, v{50+f%8}"]
            if hh == 0: pre[0] = [tops[stage]] + pre[0]
            ev = []
            if stage == 1 and hh == 1:
                chk = switch(k, "s35", [(0, ctx_ready(k, 3, 8)), (1, ctx_ready(k, 4, 8))])
                ev = [Alt(A.ool(k, ["s_cmp_lt_u32 s60, 15"], "s_cbranch_scc1", chk), lambda c: [])]
            if stage == 1 and hh == 0:
                ev = [Alt(A.ool(k, ["s_cmp_lt_u32 s60, 15"], "s_cbranch_scc1", ["global_load_dword v59, v58, s[90:91] sc1"]), lambda c: [])]
            nxt = (stage, 1) if hh == 0 else (stage ^ 1, 0)
            fills[2*11+1] += ev + ["s_waitcnt lgkmcnt(0)", Need("vm", [("W",) + nxt, "yp" if (stage, hh) == (1, 1) else None]), "s_barrier"]
            nx = {12: [0, 1], 13: [2, 3], 14: [4], 15: [5]}
            for p, fl in nx.items():
                for i, f in enumerate(fl): fills[2*p+i] += wrd(2*nxt[1], f)
            wpos = {"0": [25, 26, 28, 30, 31, 31], "1": [24, 25, 27, 29, 31, 31]}[cfg.get("wp", "0")]
            for i, g in enumerate(wdma(stage, hh)): fills[wpos[i]] += g
            xp = {"0": [3, 9, 17, 21], "1": [5, 11, 17, 22], "2": [1, 3, 17, 19]}[cfg.get("xp", "0")]
            for i in range(2):
                s_ = 2*hh + i
                xl = xld(stage ^ 1, 3) if s_ == 0 else xld(stage, s_-1)
                fills[xp[2*i]] += [xl[0]]; fills[xp[2*i+1]] += [xl[1]]
                if s_ == 0:
                    fills[xp[1]] += xadv
                    if stage == 0:
                        fills[xp[1]+1] += ["s_cmp_lt_u32 s35, 3", "s_cselect_b32 s6, 16777216, 0", "s_cselect_b32 s10, 8388608, 0"]
                        fills[xp[1]+2] += ["s_cmp_lt_u32 s35, 3", "s_cselect_b32 s34, s33, 0x20000"]
                    else:
                        fills[xp[1]+2] += ["s_cmp_lt_u32 s35, 3", "s_cselect_b32 s34, s33, 0x30000"]
            body += weave(M, fills, pre)
            if hh == 1: body += cfg["sth4"].hist(8, first=(stage == 0))
    return prow0, prox, pro2, body

def routed(k, part):
    if part == 0:
        k.e([f"s_add_u32 s36, s30, {CNT_F2}", "s_lshl_b32 s36, s36, 7", "v_mov_b32 v60, s36", "global_load_dword v61, v60, s[90:91] sc1"])
        return
    if part == 1:
        k.e("s_waitcnt vmcnt(16)")
        emit(k, check(k, "s[90:91]", "v60", "v61", 16, 1))
        k.e(["s_lshl_b32 s37, s30, 8", f"s_add_u32 s36, s37, {WS_YP}", "s_add_u32 s37, s36, 4096",
             "v_and_b32 v60, 15, v1", "v_lshlrev_b32 v60, 13, v60", "v_lshl_add_u32 v60, v19, 4, v60"])
        for t in range(2):
            for cb in range(4):
                k.e(f"buffer_load_dwordx4 {v(96+16*t+4*cb,4)}, v60, s[24:27], s{36+t} offen offset:{cb*64}{SC}")
        return
    k.e(zero(YA, 16))
    k.e("s_waitcnt vmcnt(16)")
    for t in range(2):
        lsk = k.newlabel("noy")
        R = 96 + 16*t
        k.e(f"s_sub_u32 s36, s{56+t}, s38")
        k.e("s_cmp_lt_u32 s36, 16")
        k.e(f"s_cbranch_scc0 {lsk}")
        k.e(f"s_and_b32 s36, s{58+t}, 0xffff0000")
        k.e("s_cmp_lt_i32 s36, 0")
        k.e("s_cselect_b32 s37, 0x80000000, -1")
        k.e("s_xor_b32 s36, s36, s37")
        k.e("s_and_b32 s36, s36, 0xffff0000")
        k.e("v_mov_b32 v62, s36")
        k.e("v_mul_f32 v62, 0xbfb8aa3b, v62")
        k.e("v_exp_f32 v62, v62")
        k.e("s_nop 0")
        k.e("v_add_f32 v62, 1.0, v62")
        k.e("v_rcp_f32 v62, v62")
        k.e("s_nop 0")
        rbf(k, "v62")
        for m in ["quad_perm:[1,0,3,2]", "quad_perm:[2,3,0,1]", "row_half_mirror", "row_mirror"]:
            for r in range(16):
                k.e(f"v_add_f32_dpp v{R+r}, v{R+r}, v{R+r} {m} row_mask:0xf bank_mask:0xf")
        k.e(f"v_cmp_eq_u32 vcc, s{56+t}, v14")
        for r in range(0, 16, 2):
            for rep in range(2):
                k.e(f"v_cvt_pk_bf16_f32 v63, v{R+r}, v{R+r+1}")
                k.e(f"v_lshlrev_b32 v{R+r}, 16, v63")
                k.e(f"v_and_b32 v{R+r+1}, 0xffff0000, v63")
                if rep == 0: k.e(pkmul(R+r, 2, 62))
            k.e(f"v_cndmask_b32 v{YA+r}, v{YA+r}, v{R+r}, vcc")
            k.e(f"v_cndmask_b32 v{YA+r+1}, v{YA+r+1}, v{R+r+1}, vcc")
        k.label(lsk)

def p4_epilogue(k, cfg, kh):
    o = 1 - kh
    for cb in range(4): k.e(f"ds_read_b64 {v(XI+2*cb,2)}, v17 offset:{cb*32}")
    for cb in range(8): k.e(f"ds_write_b128 v20, {v(A.Oreg(o,cb),4)} offset:{cb*1024}")
    k.e("s_waitcnt lgkmcnt(0)")
    k.e("s_barrier")
    for cb in range(8): k.e(f"ds_read_b128 {v(128+4*cb,4)}, v21 offset:{cb*1024}")
    for cb in range(8):
        k.e(f"s_waitcnt lgkmcnt({7-cb})")
        for e in (0, 2): k.e(f"v_pk_add_f32 {v(128+4*cb+e,2)}, {v(128+4*cb+e,2)}, {v(A.Oreg(kh,cb)+e,2)}")

RT = ["s_sub_u32 s36, s56, s38", "s_sub_u32 s37, s57, s38", "s_min_u32 s36, s36, s37", "s_cmp_lt_u32 s36, 16"]
def ex_addr():
    return ["s_lshl_b32 s36, s2, 15", "s_lshl_b32 s37, s28, 12", "s_add_u32 s36, s36, s37", f"s_add_u32 s36, s36, {WS_EX}"]

def p4_final(k, cfg):
    l1 = k.newlabel("p1")
    k.e("s_cmp_eq_u32 s63, 0")
    k.e(f"s_cbranch_scc1 {l1}")
    for r in range(16): k.e(f"v_swap_b32 v{128+r}, v{144+r}")
    k.label(l1)
    k.e(ex_addr())
    k.e(f"s_xor_b32 s39, s36, {32 << 15}")
    k.e("v_lshlrev_b32 v22, 4, v1")
    for cb in range(4):
        k.e(f"buffer_store_dwordx4 {v(144+4*cb,4)}, v22, s[24:27], s36 offen offset:{cb*1024}{SC}")
    k.e(f"s_add_u32 s40, s2, {CNT_EX}")
    k.e("s_lshl_b32 s40, s40, 7")
    k.e(f"s_xor_b32 s37, s40, {32 << 7}")
    k.e("v_mov_b32 v5, s37")
    cfg["st5"].mark()
    gs = int(cfg.get("gs", 2))
    flag = ["s_waitcnt vmcnt(0)"] + signal("s[90:91]", "s40", "v4", "v13")[:-1]
    lr, lb = k.newlabel("gy"), k.newlabel("gyb")
    A.OOL.append([lr + ":"] + lines(gcalc, True, range(gs)) + flag + lines(gcalc, True, range(gs, 4)) + [f"s_branch {lb}"])
    emit(k, RT + [f"s_cbranch_scc1 {lr}"])
    gcalc(k, False, range(gs))
    k.e(flag)
    gcalc(k, False, range(gs, 4))
    k.label(lb)
    cfg["st5"].mark()
    emit(k, A.ool(k, [f"s_cmp_eq_u32 s28, {cfg.get('exp', 7)}"], "s_cbranch_scc1", spin(k, "s[90:91]", "v5", "v23", 8, int(cfg.get("exs", 1)))))
    k.e("s_barrier")
    cfg["st5"].mark()
    for cb in range(4): k.e(f"buffer_load_dwordx4 {v(64+4*cb,4)}, v22, s[24:27], s39 offen offset:{cb*1024}{SC}")
    for cb in range(4):
        k.e(f"s_waitcnt vmcnt({3-cb})")
        for h in range(2):
            a, b = 128+4*cb+2*h, 128+4*cb+2*h+1
            k.e(f"v_pk_add_f32 {v(a,2)}, {v(a,2)}, {v(64+4*cb+2*h,2)}")
            def rnd2():
                k.e(f"v_cvt_pk_bf16_f32 v23, v{a}, v{b}")
                k.e(f"v_lshlrev_b32 v{a}, 16, v23")
                k.e(f"v_and_b32 v{b}, 0xffff0000, v23")
            rnd2()
            k.e(f"v_pk_mul_f32 {v(a,2)}, {v(a,2)}, {v(G+4*cb+2*h,2)}")
            rnd2()
            k.e(f"v_pk_add_f32 {v(a,2)}, {v(a,2)}, {v(X32+4*cb+2*h,2)}")
            k.e(f"v_cvt_pk_bf16_f32 v{80+2*cb+h}, v{a}, v{b}")
        k.e(f"ds_write_b64 v17, {v(80+2*cb,2)} offset:{cb*32}")
    k.e("v_add_u32 v22, s42, v22")
    k.e(f"s_mov_b32 s36, {8*2048}")
    k.e("s_waitcnt lgkmcnt(0)")
    k.e("ds_read_b128 v[64:67], v22")
    k.e("ds_read_b128 v[68:71], v22 offset:1024")
    k.e("s_waitcnt lgkmcnt(1)")
    k.e(f"buffer_store_dwordx4 v[64:67], v15, s[20:23], 0 offen {cfg.get('ofl', '')}")
    k.e("s_waitcnt lgkmcnt(0)")
    k.e(f"buffer_store_dwordx4 v[68:71], v15, s[20:23], s36 offen {cfg.get('ofl', '')}")

def p4(k, cfg, st):
    kx = K("tmp")
    kx.e(["s_lshl_b32 s36, s29, 7", "s_and_b32 s37, s28, 3", "s_lshl_b32 s37, s37, 5", "s_add_u32 s36, s36, s37",
          "s_lshr_b32 s37, s28, 2", "s_lshl_b32 s37, s37, 4", "s_add_u32 s38, s36, s37",
          "v_and_b32 v17, 15, v1", "v_add_u32 v14, s38, v17", "v_lshlrev_b32 v16, 3, v14",
          "v_lshrrev_b32 v15, 3, v1", "v_add_u32 v15, s38, v15", "v_lshlrev_b32 v15, 11, v15", "v_and_b32 v4, 7, v1",
          "v_lshl_add_u32 v15, v4, 4, v15", "s_lshl_b32 s36, s30, 7", "v_add_u32 v15, s36, v15",
          "s_lshl_b32 s36, s28, 12", f"s_add_u32 s42, s36, {LDS_X}", "v_lshl_add_u32 v17, v17, 7, s42", "v_lshl_add_u32 v17, v19, 3, v17"])
    xl = ["s_mov_b32 m0, s42", f"s_mov_b32 s36, {8*2048-1024}", VM("buffer_load_dwordx4 v15, s[16:19], 0 offen lds"),
          VM("buffer_load_dwordx4 v15, s[16:19], s36 offen offset:1024 lds"),
          f"s_mov_b32 s36, {WS_ST}", VM(f"buffer_load_dwordx2 {v(XI+8,2)}, v16, s[24:27], s36 offen{SC}")]
    n_ctx = Need("vm", ["ctxst"])
    sig = ["v_mov_b32 v26, s40", "v_mov_b32 v28, 1", "v_writelane_b32 v26, s41, 1",
           "s_mov_b64 exec, 3", "global_atomic_add v26, v28, s[90:91]", "s_mov_b64 exec, -1"]
    sigA = Alt(A.ool(k, ["s_cmp_eq_u32 s28, 0"], "s_cbranch_scc1", sig), lambda c: sig if c["w0"] else [])
    redA = guard(k, ["s_cmp_lt_u32 s28, 4"], "s_cbranch_scc0", ffn2_reduce(), "lo")
    f2 = ["s_and_b32 s36, s2, 15", f"s_add_u32 s36, s36, {CNT_F2}", "s_lshl_b32 s36, s36, 7"] + signal("s[90:91]", "s36", "v26", "v27")
    f2A = guard(k, ["s_cmp_eq_u32 s28, 0"], "s_cbranch_scc0", f2, "w0")
    def rt(part):
        kr = K(k.name + f"_rt{part}"); routed(kr, part)
        lrt = k.newlabel("nrt")
        return Alt(RT + [f"s_cbranch_scc0 {lrt}"] + [x.strip() for x in kr.lines] + [lrt + ":"], lambda c: [])
    ev0 = {1: [f2A], 2: [rt(0)], 3: [rt(2)] + xl}
    ev1 = {2: [rt(1)]}
    tops = [Alt(A.ool(k, ["s_cmp_lg_u32 s35, 0"], "s_cbranch_scc1", switch(k, "s35", sorted(ev0.items()))), lambda c: ev0.get(c["it"])),
            Alt(A.ool(k, ["s_cmp_eq_u32 s35, 2"], "s_cbranch_scc1", switch(k, "s35", sorted(ev1.items()))), lambda c: ev1.get(c["it"]))]
    prow0, prox, pro2, body = p4_pieces(k, cfg, tops)
    n_w0 = Need("vm", [("W", 0, 0)])
    scen = []
    for w0, lo, n7 in ((1, 1, 1), (0, 1, 1), (0, 0, 1), (0, 0, 0)):
        c = dict(w0=w0, lo=lo, n7=n7, it=0)
        sq = flat([VM("", "ctxst"), n_ctx, sigA, prow0, n_w0, prox, redA, pro2], c)
        for it in range(4): sq += flat([body], dict(c, it=it))
        scen.append(sq)
    resolve(scen)
    k.e("s_and_b32 s36, s2, 7")
    k.e("s_lshl_b32 s36, s36, 2")
    k.e(f"s_sub_u32 s40, {15+CNT_CTX}, s30")
    k.e("s_lshl_b32 s40, s40, 7")
    k.e("s_add_u32 s40, s40, s36")
    k.e(f"s_add_u32 s41, s30, {CNT_CTX}")
    k.e("s_lshl_b32 s41, s41, 7")
    k.e("s_add_u32 s41, s41, s36")
    p4_setup(k)
    emit(k, [n_ctx, "s_barrier", sigA])
    st.mark()
    lm, lm1, lm2 = k.newlabel("f2m"), k.newlabel("f2a"), k.newlabel("f2b")
    A.OOL.append([lm + ":"] + lines(ffn2_math) + ["s_cmp_lt_u32 s28, 4", f"s_cbranch_scc1 {lm2}", f"s_branch {lm1}"])
    k.e("s_bitcmp1_b32 0x70, s28")
    k.e(f"s_cbranch_scc1 {lm}")
    k.label(lm1)
    emit(k, prow0)
    k.e("s_cmp_lt_u32 s28, 4")
    k.e(f"s_cbranch_scc1 {lm}")
    k.label(lm2)
    srd(k, 4, 54, 16777216, WS_CTX)
    srd(k, 16, 96, 4194304)
    srd(k, 20, 98, 4194304)
    k.lines += kx.lines
    p4_setup2(k)
    k.e("s_mov_b32 s60, 15")
    lj = k.newlabel("w7j")
    k.e(f"s_cmp_eq_u32 s28, {cfg.get('pw', 3)}")
    k.e(f"s_cbranch_scc0 {lj}")
    k.e("v_add_u32 v58, s62, v1")
    k.e("v_and_b32 v58, 3, v58")
    k.e(f"s_add_u32 s36, s29, {CNT_CTX}")
    k.e("s_lshl_b32 s36, s36, 7")
    k.e("s_lshl_b32 s37, s63, 4")
    k.e("s_add_u32 s36, s36, s37")
    k.e("v_lshl_add_u32 v58, v58, 2, s36")
    emit(k, ctx_ready(k, int(cfg.get("rdy0", 2))))
    k.label(lj)
    emit(k, [n_w0])
    k.e("s_waitcnt lgkmcnt(0)")
    st.mark()
    k.e("s_barrier")
    st.mark()
    emit(k, prox)
    emit(k, [redA])
    k.e("s_lshl_b32 s36, s28, 13")
    k.e("s_add_u32 s36, s36, 65536")
    k.e("v_lshl_add_u32 v20, v1, 4, s36")
    k.e("v_xor_b32 v21, 32768, v20")
    emit(k, pro2)
    st.mark()
    if cfg.get("p4prio"):
        emit(k, ["s_cmp_lt_u32 s28, 4", "s_cbranch_scc1 L_p4_np", "s_setprio 1", "L_p4_np:"])
    k.align(6)
    k.label("L_p4_loop")
    emit(k, body)
    k.e("s_add_u32 s35, s35, 1")
    k.e("s_cmp_lt_u32 s35, 4")
    k.e("s_cbranch_scc1 L_p4_loop")
    st.mark()
    k.e("s_waitcnt vmcnt(0) lgkmcnt(0)")
    k.e("s_nop 3")
    k.e("s_cmp_lt_u32 s28, 4")
    k.e("s_cbranch_scc0 L_p4_e1")
    p4_epilogue(k, cfg, 0)
    k.e("s_branch L_p4_done")
    k.label("L_p4_e1")
    p4_epilogue(k, cfg, 1)
    k.label("L_p4_done")
    st.mark()
    cfg["st5"].mark()
    p4_final(k, cfg)
    cfg["st5"].mark()

def gen_fused(cfg, name):
    cfg = dict(cfg, stflag=SC, pro_hook=pro_hook, pro_wait=pro_wait, bar_hook=bar_hook, b_hook=b_hook, before_merge=before_merge, share=1)
    CFG.update(cfg)
    Z64[0] = not cfg.get("noz64")
    k = K(name)
    k.e("s_cmp_ge_u32 s2, 256")
    k.e("s_cbranch_scc1 L_end")
    stq = cfg.get("stamp", "")
    st = Stamps(k, bool(stq), kid=0)
    off = Stamps(k, False)
    st.mark()
    cfg["sth4"] = st if "d" in stq else off
    cfg["st5"] = st if "5" in stq else off
    cfg["sth1"] = st if "a" in stq else off
    cfg["sth2"] = st if "b" in stq else off
    p1(k, cfg, st if "1" in stq else off)
    if "b" in stq: st.mark()
    p2(k, cfg, st if "2" in stq else off)
    k.e("s_load_dwordx2 s[32:33], s[0:1], 40")
    k.e("s_load_dwordx2 s[34:35], s[0:1], 80")
    k.e("s_load_dwordx2 s[96:97], s[0:1], 0")
    k.e("s_load_dwordx2 s[98:99], s[0:1], 88")
    s3 = st if "3" in stq else off
    k.e("s_cmp_lt_u32 s28, 4")
    k.e("s_cbranch_scc0 L_grp1")
    A.gen_p3(k, cfg, 0, s3, after_q, before_tail)
    k.e("s_branch L_p3_done")
    A.flush_ool(k)
    k.label("L_grp1")
    A.gen_p3(k, cfg, 1, s3, after_q, before_tail)
    k.e("s_branch L_p3_done")
    A.flush_ool(k)
    k.label("L_p3_done")
    st.mark()
    k.e("s_waitcnt vmcnt(4)")
    p4(k, cfg, st if "4" in stq else off)
    st.dump(54, "s28")
    if cfg.get("stdbg"):
        k.e("s_lshl_b32 s36, s28, 8"); k.e("s_add_u32 s36, s36, s2")
        k.e(f"s_cmp_eq_u32 s36, {cfg['stdbg']}"); k.e("s_cbranch_scc0 L_end")
        k.e("v_mov_b32 v2, 0"); k.e("s_mov_b64 exec, 1")
        for i in range(1, st.n):
            k.e(f"s_sub_u32 s36, s{st.base+2*i+1}, s{st.base+1}")
            k.e("v_mov_b32 v3, s36")
            k.e(f"global_store_dword v2, v3, s[88:89] offset:{4*i}")
    k.e("s_endpgm")
    A.flush_ool(k)
    k.label("L_end")
    return wrap(k, 256)
```

```python
import re, sys

class K:
    def __init__(self, name):
        self.name = name
        self.lines = []
        self.nl = 0
    def e(self, s):
        if isinstance(s, (list, tuple)):
            for x in s: self.e(x)
            return
        self.lines.append("    " + s)
    def c(self, s):
        self.lines.append("    ; " + s)
    def label(self, l):
        self.lines.append(l + ":")
    def newlabel(self, base):
        self.nl += 1
        return f"L_{self.name}_{base}_{self.nl}"
    def align(self, p):
        self.lines.append(f"    .p2align {p}")
    def text(self):
        return "\n".join(self.lines)

def v(a, n=1):
    return f"v[{a}:{a+n-1}]" if n > 1 else f"v{a}"
def s(a, n=1):
    return f"s[{a}:{a+n-1}]" if n > 1 else f"s{a}"
def a_(a, n=1):
    return f"a[{a}:{a+n-1}]" if n > 1 else f"a{a}"

def wrap(k, vgprs, agprs=0, sgprs=102):
    name = k.name
    acc = (vgprs + 3) // 4 * 4
    nfv = acc + agprs if agprs else vgprs
    out = [f".globl {name}", ".p2align 8", f".type {name},@function", f"{name}:", k.text(), "    s_endpgm"]
    kd = [".p2align 6", f".amdhsa_kernel {name}",
          f"  .amdhsa_next_free_vgpr {nfv}", f"  .amdhsa_next_free_sgpr {sgprs}",
          f"  .amdhsa_accum_offset {acc}", "  .amdhsa_group_segment_fixed_size 0",
          "  .amdhsa_kernarg_size 112", "  .amdhsa_user_sgpr_count 2",
          "  .amdhsa_user_sgpr_kernarg_segment_ptr 1", "  .amdhsa_system_sgpr_workgroup_id_x 1",
          ".end_amdhsa_kernel"]
    check(k)
    return "\n".join(out), "\n".join(kd)

def srd(k, d, base, nbytes, add=0):
    if add:
        k.e(f"s_add_u32 s{d}, s{base}, {add}")
        k.e(f"s_addc_u32 s{d+1}, s{base+1}, 0")
        k.e(f"s_and_b32 s{d+1}, s{d+1}, 0xffff")
    else:
        k.e(f"s_mov_b32 s{d}, s{base}")
        k.e(f"s_and_b32 s{d+1}, s{base+1}, 0xffff")
    k.e(f"s_mov_b32 s{d+2}, {nbytes}")
    k.e(f"s_mov_b32 s{d+3}, 0x20000")

def build(parts, launches, path):
    out = ["; generated by gen2/gen.py -- do not edit by hand"] + launches
    out += ['.amdgcn_target "amdgcn-amd-amdhsa--gfx950"', ".text"]
    out += [c for c, _ in parts]
    out.append('.section .rodata,"a"')
    out += [kd for _, kd in parts]
    open(path, "w").write("\n".join(out) + "\n")

REG = re.compile(r"^(-|abs\()?([vsa])(\d+|\[(\d+):(\d+)\])\)?$")
def regs(op):
    op = op.strip()
    if op in ("vcc",): return {("s", 106), ("s", 107)}
    if op == "vcc_lo": return {("s", 106)}
    if op == "vcc_hi": return {("s", 107)}
    if op == "exec": return {("s", 126), ("s", 127)}
    if op == "exec_lo": return {("s", 126)}
    if op == "exec_hi": return {("s", 127)}
    if op == "m0": return {("s", 124)}
    m = REG.match(op)
    if not m: return set()
    t = m.group(2)
    if m.group(4) is not None:
        return {(t, i) for i in range(int(m.group(4)), int(m.group(5)) + 1)}
    return {(t, int(m.group(3)))}

TRANS = ("v_exp_f32", "v_log_f32", "v_rcp_f32", "v_rsq_f32", "v_sqrt_f32", "v_sin_f32", "v_cos_f32")
class I:
    pass

def parse(line):
    t = line.split(";")[0].strip()
    i = I(); i.text = t
    if not t or t.startswith("."):
        return None
    if t.endswith(":"):
        i.kind = "label"; i.name = t[:-1]; return i
    sp = t.split(None, 1)
    mn = sp[0]; rest = sp[1] if len(sp) > 1 else ""
    rest = re.sub(r"\s+(op_sel|op_sel_hi|neg_lo|neg_hi):\[[^\]]*\]", "", rest)
    rest = re.sub(r"quad_perm:\[(\d),(\d),(\d),(\d)\]", r"quad_perm:\1\2\3\4", rest)
    ops = [o.strip() for o in rest.split(",")] if rest else []
    mods = []
    if ops:
        last = ops[-1].split()
        if last:
            ops[-1] = last[0]; mods = last[1:]
    i.mn = mn; i.ops = ops; i.mods = mods
    i.w = set(); i.r = set(); i.ws = 1; i.kind = "other"; i.target = None
    i.A = i.B = i.C = set()
    R = lambda lst: set().union(*[regs(o) for o in lst]) if lst else set()
    if mn.startswith("v_mfma"):
        i.kind = "mfma"; i.w = regs(ops[0]); i.A = regs(ops[1]); i.B = regs(ops[2]); i.C = regs(ops[3])
        i.r = i.A | i.B | i.C
        i.passes = 8 if "32x32x16" in mn else 4
    elif mn.startswith("v_"):
        i.kind = "valu"
        if (mn.startswith("v_permlane") and "swap" in mn) or mn.startswith("v_swap"):
            i.w = R(ops[:2]); i.r = R(ops[:2])
        elif mn.startswith("v_cmp"):
            i.w = regs(ops[0]); i.r = R(ops[1:])
            if mn.startswith("v_cmpx"): i.w |= regs("exec")
        elif "_co_" in mn:
            i.w = R(ops[:2]); i.r = R(ops[2:])
        elif mn == "v_nop":
            pass
        else:
            i.w = regs(ops[0]); i.r = R(ops[1:])
            if mn.startswith(("v_fmac", "v_mac", "v_dot2c", "v_writelane")) or "dpp" in mn or any(m.startswith(("quad_perm", "row_")) for m in mods):
                i.r |= i.w
        i.trans = mn.startswith(TRANS)
        i.dpp = "dpp" in mn or any(m.startswith(("quad_perm", "row_", "wave_")) for m in mods)
    elif mn.startswith("ds_"):
        i.kind = "ds"
        if mn.startswith(("ds_read", "ds_bpermute", "ds_permute", "ds_swizzle")):
            i.w = regs(ops[0]); i.r = R(ops[1:])
        else:
            i.r = R(ops)
    elif mn.startswith(("buffer_", "global_")):
        i.kind = "vmem"
        i.lds = "lds" in mods
        if mn in ("buffer_wbl2", "buffer_inv"):
            pass
        elif i.lds:
            i.r = R(ops) | regs("m0")
        elif "load" in mn:
            i.w = regs(ops[0]); i.r = R(ops[1:])
        elif "atomic" in mn:
            i.r = R(ops)
            if "sc0" in mods: i.w = regs(ops[0])
        else:
            i.r = R(ops)
            i.data = regs(ops[0]) if mn.startswith("buffer_") else regs(ops[1])
            i.wide = mn.endswith(("x3", "x4"))
    elif mn.startswith("s_"):
        i.kind = "salu"
        if mn == "s_nop":
            i.ws = int(ops[0], 0) + 1
        elif mn == "s_waitcnt":
            i.kind = "wait"
            i.vm = i.lgkm = None
            for m in re.finditer(r"(vmcnt|lgkmcnt)\((\d+)\)", rest):
                if m.group(1) == "vmcnt": i.vm = int(m.group(2))
                else: i.lgkm = int(m.group(2))
        elif mn.startswith(("s_cbranch", "s_branch")):
            i.kind = "branch"; i.target = ops[0]
            if "vcc" in mn: i.r = regs("vcc")
        elif mn.startswith(("s_load", "s_memtime", "s_memrealtime", "s_buffer_load", "s_atomic")):
            i.kind = "smem"; i.w = regs(ops[0]); i.r = R(ops[1:])
        elif mn.startswith(("s_cmp", "s_barrier", "s_setprio", "s_endpgm", "s_sleep", "s_bitcmp")):
            i.r = R(ops)
        else:
            i.w = regs(ops[0]); i.r = R(ops[1:])
            if "saveexec" in mn: i.w |= regs("exec")
    return i

def need(p, c):
    n = 0
    vw = {r for r in p.w if r[0] in "va"}
    sw = {r for r in p.w if r[0] == "s"}
    if p.kind == "valu":
        if c.kind == "mfma" and vw & c.r: n = max(n, 2)
        if c.kind == "valu":
            if p.trans and not c.trans and vw & c.r: n = max(n, 1)
            if sw & c.r: n = max(n, 4 if c.mn.startswith(("v_readlane", "v_writelane")) else 2)
            if c.mn.startswith(("v_readlane", "v_readfirstlane")) and vw & c.r: n = max(n, 1)
            if c.mn.startswith("v_permlane") and vw & c.r: n = max(n, 2)
            if c.dpp and vw & c.r: n = max(n, 2)
            if regs("exec") & p.w and c.dpp: n = max(n, 5)
            if p.mn.startswith("v_dot") and p.mn != c.mn and vw & (c.r | c.w): n = max(n, 3)
        if c.kind == "vmem" and sw & c.r: n = max(n, 5)
        if c.kind == "mfma" and regs("exec") & p.w: n = max(n, 4)
        if c.kind in ("salu", "smem") and sw & c.r: n = max(n, 1)
    if p.kind == "mfma":
        big = 12 if p.passes == 8 else 8
        if c.kind == "mfma":
            if p.w & (c.A | c.B): n = max(n, big)
            if p.w & c.C and not (p.w == c.C and p.passes == c.passes): n = max(n, big - 2)
            if p.w & c.w and not (p.w == c.w): n = max(n, big - 2)
        elif c.kind in ("valu", "ds", "vmem"):
            if p.w & (c.r | c.w): n = max(n, big)
            if c.kind == "valu" and p.C & c.w: n = max(n, 7 if p.passes == 8 else 3)
    if p.kind == "salu" and regs("m0") & p.w and c.kind == "vmem" and c.lds: n = max(n, 1)
    if p.kind == "vmem" and getattr(p, "wide", False):
        if p.data & c.w: n = max(n, 2 if c.kind == "valu" else 1)
    return n

WGS = [0, 77, 230, 255]
WAVES = [0, 1, 4, 7]
M32 = 0xffffffff
def sx(x): return x - (1 << 32) if x >> 31 else x
def walk(ins, lab, wg, wave, errs):
    import operator
    CMP = {"eq": operator.eq, "lg": operator.ne, "lt": operator.lt, "le": operator.le, "gt": operator.gt, "ge": operator.ge}
    N = len(ins)
    def val(S, op):
        if op[0] == "s" and op[1:].isdigit(): return S.get(int(op[1:]))
        if op in ("m0", "vcc", "exec", "vcc_lo", "vcc_hi", "exec_lo", "exec_hi") or op[0] in "sv": return None
        try: return int(op, 0) & M32
        except ValueError: return None
    ends = set(); seen = set()
    stack = [(0, (), (), {2: wg}, None, 0)]
    while stack:
        n, lq, vq, S, scc, nb = stack.pop()
        while n < N:
            x = ins[n]
            if x.kind == "label":
                n += 1; continue
            if x.kind == "wait":
                if x.lgkm is not None:
                    if any(e[0] == "smem" for e in lq):
                        if x.lgkm == 0: lq = ()
                    elif x.lgkm < len(lq): lq = lq[len(lq) - x.lgkm:] if x.lgkm else ()
                if x.vm is not None and x.vm < len(vq): vq = vq[len(vq) - x.vm:] if x.vm else ()
                n += 1; continue
            touch = x.w if S.get(3) == 0xD0 else x.r | x.w
            if touch:
                for e in lq + vq:
                    if e[1] & touch:
                        errs.append(f"WAITCNT: [{x.text}] touches pending {sorted(e[1] & touch)[:4]}")
            if x.kind == "ds": lq = lq + (("ds", x.fw),)
            elif x.kind == "smem": lq = lq + (("smem", x.fw),)
            elif x.kind == "vmem":
                vq = vq + (("vm", x.fw),)
                if len(vq) > 63: errs.append(f"VMCNT overflow at [{x.text}]")
            mn = x.mn
            if x.kind == "salu":
                o = x.ops
                if mn == "s_endpgm": break
                if mn == "s_barrier": nb += 1
                elif mn.startswith("s_cmp_"):
                    p = mn.split("_")
                    a, b = val(S, o[0]), val(S, o[1])
                    if a is None or b is None or p[3] == "u64": scc = None
                    else: scc = CMP[p[2]](sx(a), sx(b)) if p[3] == "i32" else CMP[p[2]](a, b)
                elif mn.startswith("s_bitcmp"):
                    a, b = val(S, o[0]), val(S, o[1])
                    scc = None if a is None or b is None else ((a >> (b & 31)) & 1) == int(mn[8])
                elif x.w:
                    r = None; keep = False
                    a = val(S, o[1]) if len(o) > 1 else None
                    b = val(S, o[2]) if len(o) > 2 else None
                    ok = a is not None and b is not None
                    if mn == "s_mov_b32": r = a; keep = True
                    elif mn == "s_cselect_b32": r = None if scc is None else (a if scc else b); keep = True
                    elif mn in ("s_mov_b64", "s_cselect_b64", "s_getreg_b32"): keep = True
                    elif mn == "s_mul_i32": r = (a * b) & M32 if ok else None; keep = True
                    elif mn in ("s_add_u32", "s_add_i32"): r = (a + b) & M32 if ok else None; scc = (a + b) > M32 if ok else None; keep = True
                    elif mn in ("s_sub_u32", "s_sub_i32"): r = (a - b) & M32 if ok else None; scc = a < b if ok else None; keep = True
                    elif mn == "s_lshl_b32": r = (a << (b & 31)) & M32 if ok else None
                    elif mn == "s_lshr_b32": r = a >> (b & 31) if ok else None
                    elif mn == "s_and_b32": r = a & b if ok else None
                    elif mn == "s_or_b32": r = a | b if ok else None
                    elif mn == "s_xor_b32": r = a ^ b if ok else None
                    elif mn == "s_min_u32": r = min(a, b) if ok else None
                    elif mn == "s_max_u32": r = max(a, b) if ok else None
                    elif mn == "s_bfe_u32": r = (a >> (b & 31)) & ((1 << ((b >> 16) & 0x7f)) - 1) if ok else None
                    if not keep: scc = None
                    S = dict(S)
                    for t, i in x.w: S.pop(i, None)
                    if r is not None and len(x.w) == 1:
                        i = next(iter(x.w))[1]
                        if i != 61: S[i] = r
                    if ("s", 61) in x.w: scc = None
            elif x.kind in ("valu", "smem"):
                sw = [i for t, i in x.w if t == "s"]
                if sw:
                    S = dict(S)
                    for i in sw: S.pop(i, None)
                    if mn == "v_readfirstlane_b32" and sw == [28]: S[28] = wave
            elif x.kind == "branch":
                if mn == "s_branch": n = lab[x.target]; continue
                if mn in ("s_cbranch_scc0", "s_cbranch_scc1") and scc is not None:
                    if scc == (mn == "s_cbranch_scc1"): n = lab[x.target]; continue
                else:
                    key = (n, lq, vq, tuple(sorted(S.items())), nb)
                    if key in seen: nb = None; break
                    seen.add(key)
                    St = S
                    p = ins[n-1]
                    if p.kind == "salu" and p.mn == "s_cmp_eq_u32" and p.ops[0] == "s43" and val(S, p.ops[1]) is not None:
                        c_ = val(S, p.ops[1]); eq = dict(S); eq[43] = c_; ne = dict(S); ne[43] = c_ ^ 1
                        St, S = (eq, ne) if mn == "s_cbranch_scc1" else (ne, eq)
                    stack.append((lab[x.target], lq, vq, St, scc, nb))
            n += 1
        if nb is not None: ends.add(nb)
    return frozenset(ends)

def check(k, verbose=True):
    ins = [x for x in (parse(l) for l in k.lines) if x is not None]
    lab = {x.name: n for n, x in enumerate(ins) if x.kind == "label"}
    for x in ins:
        if x.kind != "label": x.fw = frozenset(x.w)
    N = len(ins)
    def succ(n):
        x = ins[n]
        if x.kind == "branch":
            t = [lab[x.target]]
            if x.mn != "s_branch": t.append(n + 1)
            return [q for q in t if q < N]
        if x.kind != "label" and x.mn == "s_endpgm": return []
        return [n + 1] if n + 1 < N else []
    errs = []
    for n, p in enumerate(ins):
        if p.kind in ("label", "wait", "branch", "other"): continue
        if not (p.w or p.kind in ("mfma", "vmem")): continue
        stack = [(q, 0) for q in succ(n)]
        seen = {}
        while stack:
            q, d = stack.pop()
            if d >= 13 or seen.get(q, 99) <= d: continue
            seen[q] = d
            c = ins[q]
            if c.kind == "label":
                stack += [(z, d) for z in succ(q)]; continue
            nd = need(p, c)
            if nd > d:
                errs.append(f"HAZARD need {nd} have {d}: [{p.text}] -> [{c.text}]")
            stack += [(z, d + c.ws) for z in succ(q)]
    bars = {}
    for wg in WGS:
        for wave in WAVES:
            nb = walk(ins, lab, wg, wave, errs)
            bars.setdefault(wg, set()).add(nb)
    for wg, st_ in bars.items():
        if len(st_) != 1: errs.append(f"BARRIER count mismatch in wg {wg}: {st_}")
    errs = list(dict.fromkeys(errs))
    if errs:
        print(f"== {k.name}: {len(errs)} problems", file=sys.stderr)
        for e in errs[:40]: print("  " + e, file=sys.stderr)
        raise SystemExit(1)
    mx = {"v": -1, "s": -1, "a": -1}
    for x in ins:
        if x.kind == "label": continue
        for t, i in (x.r | x.w):
            if not (t == "s" and i >= 102): mx[t] = max(mx[t], i)
    if verbose:
        print(f"{k.name}: {N} lines, max v{mx['v']} s{mx['s']} a{mx['a']}", file=sys.stderr)

class Op:
    def __init__(self, kind, text, tag=None):
        self.kind, self.text, self.tag = kind, text, tag
class Need:
    def __init__(self, kind, tags):
        self.kind, self.tags, self.n = kind, set(t for t in tags if t is not None), None
def DS(text, tag=None): return Op("ds", text, tag)
def VM(text, tag=None): return Op("vm", text, tag)

class Alt:
    def __init__(self, inline, pick):
        self.inline, self.pick = inline, pick

def flat(items, ctx=None):
    out = []
    for x in items:
        if isinstance(x, (list, tuple)): out += flat(x, ctx)
        elif isinstance(x, Alt):
            out += flat(x.inline) if ctx is None else flat(x.pick(ctx) or [], ctx)
        else: out.append(x)
    return out

def simulate(seq, final=False):
    q = {"vm": [], "ds": []}
    for x in seq:
        if isinstance(x, Op):
            q[x.kind].append(x.tag)
        elif isinstance(x, Need):
            Q = q[x.kind]
            pos = [i for i, t in enumerate(Q) if t in x.tags]
            if pos:
                n = len(Q) - 1 - max(pos)
                n = min(n, 63 if x.kind == "vm" else 15)
                if final: assert x.n is not None and x.n <= n
                x.n = n if x.n is None else min(x.n, n)
            if x.n is not None:
                del Q[:max(0, len(Q) - x.n)]
        elif isinstance(x, str):
            t = x.strip()
            if t.startswith("s_waitcnt"):
                for m in re.finditer(r"(vmcnt|lgkmcnt)\((\d+)\)", t):
                    Q = q["vm" if m.group(1) == "vmcnt" else "ds"]
                    del Q[:max(0, len(Q) - int(m.group(2)))]
            elif t.startswith(("ds_",)): q["ds"].append(None)
            elif t.startswith(("buffer_", "global_")): q["vm"].append(None)

def resolve(scenarios):
    for _ in range(3):
        for sc in scenarios: simulate(flat(sc))
    for sc in scenarios: simulate(flat(sc), final=True)

def emit(k, piece):
    for x in flat(piece):
        if isinstance(x, Op): k.e(x.text)
        elif isinstance(x, Need):
            if x.n is not None:
                k.e(f"s_waitcnt {'vmcnt' if x.kind == 'vm' else 'lgkmcnt'}({x.n})")
        elif x.endswith(":"): k.label(x[:-1])
        else: k.e(x)

def weave(mfmas, fills, pre=None):
    out = []
    for i, m in enumerate(mfmas):
        if pre and pre.get(i): out += pre[i]
        out.append(m)
        if i < len(fills): out += fills[i]
    return out
```

```python
from common import *
import attn as A
import ffn as F

WS_CNT = 59 << 20
CNT_KV, CNT_CTX, CNT_F1, CNT_F2, CNT_KV0, CNT_EX, CNT_LN = 0, 32, 48, 96, 64, 128, 112
WS_EX = 64 << 20
SC = " sc1"
LDS_X = 131072

def NT(cfg, key):
    return " nt" if key in cfg.get("nt", "") else ""

def lines(fn, *a, **kw):
    t = K("tmp"); fn(t, *a, **kw); return [x.strip() for x in t.lines]

def signal(saddr_pair, off, t0, t1):
    return [f"v_mov_b32 {t0}, {off}", f"v_mov_b32 {t1}, 1", "s_mov_b64 exec, 1",
            f"global_atomic_add {t0}, {t1}, {saddr_pair}", "s_mov_b64 exec, -1", "s_nop 3"]

def switch(k, sreg, cases):
    L = []
    lend = k.newlabel("swend")
    for i, (val, items) in enumerate(cases):
        if i + 1 < len(cases):
            ln = k.newlabel("swn")
            L += [f"s_cmp_eq_u32 {sreg}, {val}", f"s_cbranch_scc0 {ln}"] + items + [f"s_branch {lend}", ln + ":"]
        else:
            L += items
    return L + [lend + ":"]

def guard(k, cond, br, items, key):
    l = k.newlabel("g")
    return Alt(cond + [f"{br} {l}"] + items + [l + ":"], lambda c: items if c[key] else [])

def spin(k, saddr, voff, vtmp, target, slp=8):
    l, le = k.newlabel("spin"), k.newlabel("spinx")
    return ["s_mov_b32 s61, 0x40000", l + ":", "s_sub_u32 s61, s61, 1", f"s_cbranch_scc1 {le}", f"s_sleep {slp}",
            f"global_load_dword {vtmp}, {voff}, {saddr} sc1", "s_waitcnt vmcnt(0)",
            f"v_readfirstlane_b32 s36, {vtmp}", "s_nop 0", f"s_cmp_lt_u32 s36, {target}", f"s_cbranch_scc1 {l}", le + ":"]

def check(k, saddr, voff, vtmp, target, slp=8):
    return A.ool(k, [f"v_readfirstlane_b32 s36, {vtmp}", "s_nop 0", f"s_cmp_lt_u32 s36, {target}"], "s_cbranch_scc1",
                 spin(k, saddr, voff, vtmp, target, slp))

def ln_check(k):
    l, le = k.newlabel("lspin"), k.newlabel("lspinx")
    return ["s_mov_b32 s61, 0x40000", l + ":", "v_cmp_gt_u32 vcc, 16, v116", "s_nop 0", "s_cmp_eq_u64 vcc, 0",
            f"s_cbranch_scc1 {le}", "s_sub_u32 s61, s61, 1", f"s_cbranch_scc1 {le}", "s_sleep 8",
            "global_load_dword v116, v117, s[90:91] sc1", "s_waitcnt vmcnt(0)", f"s_branch {l}", le + ":"]

def ln_row(X, XO, WR, Fr, T, SB, srow, sslot):
    k = K("t")
    t = [f"v{T+i}" for i in range(8)]
    for i in range(8):
        k.e(f"v_lshlrev_b32 v{Fr+2*i}, 16, v{X+i}")
        k.e(f"v_and_b32 v{Fr+2*i+1}, 0xffff0000, v{X+i}")
    k.e(f"v_add_f32 {t[0]}, v{Fr}, v{Fr+1}")
    for i in range(2, 16): k.e(f"v_add_f32 {t[0]}, {t[0]}, v{Fr+i}")
    wave_sum(k, t[0], t[1], SB)
    k.e(f"v_mul_f32 {t[1]}, 0x3a800000, {t[1]}")
    k.e(f"v_sub_f32 {t[2]}, v{Fr}, {t[1]}")
    k.e(f"v_mul_f32 {t[0]}, {t[2]}, {t[2]}")
    for i in range(1, 16):
        k.e(f"v_sub_f32 {t[2]}, v{Fr+i}, {t[1]}")
        k.e(f"v_fmac_f32 {t[0]}, {t[2]}, {t[2]}")
    wave_sum(k, t[0], t[2], SB)
    k.e(f"v_mul_f32 {t[2]}, 0x3a800000, {t[2]}")
    k.e(f"v_cvt_pk_bf16_f32 {t[3]}, {t[1]}, {t[2]}")
    k.e(f"v_lshlrev_b32 {t[6]}, 16, {t[3]}")
    k.e(f"v_and_b32 {t[2]}, 0xffff0000, {t[3]}")
    k.e(f"v_add_f32 {t[2]}, 0x3727c5ac, {t[2]}")
    rbf(k, t[2])
    k.e(f"v_sqrt_f32 {t[2]}, {t[2]}")
    k.e("s_nop 0")
    rbf(k, t[2])
    k.e(f"v_rcp_f32 {t[7]}, {t[2]}")
    k.e("s_nop 0")
    k.e(f"v_fma_f32 {t[4]}, -{t[2]}, {t[7]}, 1.0")
    k.e(f"v_fma_f32 {t[7]}, {t[4]}, {t[7]}, {t[7]}")
    for i in range(8):
        a, b = f"v{Fr+2*i}", f"v{Fr+2*i+1}"
        k.e(f"v_sub_f32 {a}, {a}, {t[6]}")
        k.e(f"v_sub_f32 {b}, {b}, {t[6]}")
        k.e(f"v_cvt_pk_bf16_f32 {t[4]}, {a}, {b}")
        k.e(f"v_lshlrev_b32 {a}, 16, {t[4]}")
        k.e(f"v_and_b32 {b}, 0xffff0000, {t[4]}")
        k.e(f"v_mul_f32 {a}, {a}, {t[7]}")
        k.e(f"v_mul_f32 {b}, {b}, {t[7]}")
        k.e(f"v_cvt_pk_bf16_f32 v{XO+i}, {a}, {b}")
        k.e(f"v_lshlrev_b32 {a}, 16, v{XO+i}")
        k.e(f"v_and_b32 {b}, 0xffff0000, v{XO+i}")
        if i == 0: k.e(f"v_mul_f32 {t[0]}, {a}, v{WR}")
        else: k.e(f"v_fmac_f32 {t[0]}, {a}, v{WR+2*i}")
        k.e(f"v_fmac_f32 {t[0]}, {b}, v{WR+2*i+1}")
    k.e(f"s_mul_i32 s{SB}, {sslot}, 2064")
    k.e(f"s_add_u32 s{SB}, s{SB}, {LDS_X}")
    k.e(f"v_lshl_add_u32 {t[3]}, v1, 4, s{SB}")
    k.e(f"ds_write_b128 {t[3]}, {v(XO,4)}")
    k.e(f"ds_write_b128 {t[3]}, {v(XO+4,4)} offset:1024")
    wave_sum(k, t[0], t[1], SB)
    rbf(k, t[1])
    k.e(f"v_ashrrev_i32 {t[3]}, 31, {t[1]}")
    k.e(f"v_or_b32 {t[3]}, 0x80000000, {t[3]}")
    k.e(f"v_xor_b32 {t[3]}, {t[1]}, {t[3]}")
    k.e(f"v_and_b32 {t[3]}, 0xffff0000, {t[3]}")
    k.e(f"s_sub_u32 s{SB}, 0xffff, {srow}")
    k.e(f"v_or_b32 {t[3]}, s{SB}, {t[3]}")
    k.e(f"s_lshl_b32 s{SB+1}, {sslot}, 3")
    k.e(f"s_add_u32 s{SB+1}, s{SB+1}, {LDS_X + 16640}")
    k.e(f"v_mov_b32 {t[2]}, s{SB+1}")
    k.e(f"ds_write_b64 {t[2]}, {v(T+6,2)}")
    k.e(f"ds_write_b32 {t[2]}, {t[3]} offset:64")
    return [x.strip() for x in k.lines]

def zip2(a, b):
    out = []
    for x, y in zip(a, b):
        if x == "s_nop 0": continue
        if x == "s_nop 1": out.append("s_nop 0"); continue
        out += [x, y]
    return out

def ln_part3(T):
    t = [f"v{T+i}" for i in range(8)]
    L = [f"v_and_b32 {t[0]}, 7, v1", f"v_lshlrev_b32 {t[0]}, 3, {t[0]}", f"v_add_u32 {t[1]}, {LDS_X + 16640}, {t[0]}",
         f"ds_read_b64 {v(T+2,2)}, {t[1]}", f"ds_read_b32 {t[4]}, {t[1]} offset:64",
         "s_lshl_b32 s36, s2, 6", f"s_add_u32 s36, s36, {WS_ST}", "s_lshl_b32 s37, s2, 3", f"s_add_u32 s37, s37, {F.WS_KEY}",
         "s_waitcnt lgkmcnt(0)", f"v_mov_b32 {t[6]}, {t[4]}"]
    red = lambda x: flat([["s_nop 1", f"v_max_u32_dpp {x}, {x}, {x} {m} row_mask:0xf bank_mask:0xf"]
                          for m in ("quad_perm:[1,0,3,2]", "quad_perm:[2,3,0,1]", "row_half_mirror")])
    L += red(t[6]) + [f"v_cmp_eq_u32 vcc, {t[6]}, {t[4]}", "s_nop 1", f"v_cndmask_b32 {t[7]}, {t[4]}, v118, vcc"] + red(t[7])
    L += ["s_mov_b64 exec, 0xff", f"buffer_store_dwordx2 {v(T+2,2)}, {t[0]}, s[24:27], s36 offen{SC}",
          "s_mov_b64 exec, 1", f"buffer_store_dwordx2 {v(T+6,2)}, {t[0]}, s[24:27], s37 offen{SC}", "s_mov_b64 exec, -1", "s_nop 3"]
    return L

def ln_part2(k, X, T):
    t = [f"v{T+i}" for i in range(8)]
    k.e(f"v_and_b32 {t[0]}, 7, v1")
    k.e(f"v_lshrrev_b32 {t[1]}, 3, v1")
    k.e(f"v_mul_u32_u24 {t[2]}, 2064, {t[0]}")
    k.e(f"v_lshl_add_u32 {t[2]}, {t[1]}, 4, {t[2]}")
    k.e("s_lshl_b32 s36, s28, 8")
    k.e(f"s_add_u32 s36, s36, {LDS_X}")
    k.e(f"v_add_u32 {t[2]}, s36, {t[2]}")
    k.e(f"ds_read_b128 {v(X,4)}, {t[2]}")
    k.e(f"ds_read_b128 {v(X+4,4)}, {t[2]} offset:128")
    k.e(f"v_lshlrev_b32 {t[0]}, 4, {t[0]}")
    k.e(f"v_lshl_add_u32 {t[0]}, {t[1]}, 8, {t[0]}")
    k.e("s_lshr_b32 s36, s2, 1")
    k.e("s_lshl_b32 s36, s36, 15")
    k.e("s_and_b32 s37, s2, 1")
    k.e("s_lshl_b32 s37, s37, 7")
    k.e("s_add_u32 s36, s36, s37")
    k.e("s_lshl_b32 s37, s28, 12")
    k.e("s_add_u32 s36, s36, s37")
    k.e("s_waitcnt lgkmcnt(0)")
    k.e(f"buffer_store_dwordx4 {v(X,4)}, {t[0]}, s[24:27], s36 offen{SC}")
    k.e(f"buffer_store_dwordx4 {v(X+4,4)}, {t[0]}, s[24:27], s36 offen offset:2048{SC}")

KP = 128
WF = 64
XF = [24, 96]
def xld2(xs, s_):
    return [VM(f"buffer_load_dwordx4 {v(XF[xs]+(s_*2+rb)*4,4)}, v{6+rb}, s[8:11], s32 offen offset:{s_*1024}{SC}", ("x", xs, s_)) for rb in range(2)]
vPOLL = "v56"
vZ = "v57"

def code_touch(k, a, dst):
    l = k.newlabel("pc")
    return ["s_getpc_b64 s[36:37]", l + ":", f"s_sub_u32 s36, s36, {l}-L_pc", "s_subb_u32 s37, s37, 0",
            "s_lshr_b32 s38, s2, 3", "s_lshl_b32 s38, s38, 7", f"v_lshl_add_u32 v{a}, v1, 12, s38", f"v_min_u32 v{a}, L_end-L_pc-4, v{a}",
            f"v_mov_b32 v{a+1}, s37", f"v_add_co_u32 v{a}, vcc, s36, v{a}", "s_mov_b64 exec, 0xffff", "s_nop 0",
            f"v_addc_co_u32 v{a+1}, vcc, 0, v{a+1}, vcc", f"global_load_dword {dst}, v[{a}:{a+1}], off", "s_mov_b64 exec, -1", "s_nop 1"]

def p1_retarget(cfg):
    L = ["v_lshrrev_b32 v3, 4, v1", "s_lshl_b32 s37, s28, 4", "v_add_u32 v19, s37, v3", "v_lshlrev_b32 v19, 13, v19",
         "s_lshl_b32 s37, s29, 8", "v_add_u32 v19, s37, v19", "v_and_b32 v16, 15, v1", "v_lshlrev_b32 v3, 1, v3",
         "v_xor_b32 v16, v16, v3", "v_lshl_add_u32 v2, v16, 4, v19", f"v_add_u32 v3, {32768-1024}, v2",
         "v_xor_b32 v16, 8, v16", "v_lshl_add_u32 v4, v16, 4, v19", f"v_add_u32 v4, {2*(32768-1024)}, v4",
         f"v_add_u32 v5, {32768-1024}, v4"]
    L += lines(srd, 4, 96, 8388608)
    L += ["s_mov_b32 s31, 0", f"s_mov_b32 s40, {128*8192}", "s_mov_b32 s10, 0", "s_mov_b32 s34, 0x30000"]
    return L

def p1(k, cfg, st):
    ACC = 128
    FR = [20, 68]
    XA, XB, WP, WR = 20, 28, 36, 44
    k.e("s_load_dwordx4 s[44:47], s[0:1], 0")
    k.e("s_load_dwordx2 s[52:53], s[0:1], 56")
    k.e("s_load_dwordx4 s[48:51], s[0:1], 24")
    k.e("s_getpc_b64 s[36:37]")
    k.label("L_pc")
    k.e("s_lshr_b32 s38, s2, 3")
    k.e("s_lshl_b32 s38, s38, 7")
    k.e("v_lshl_add_u32 v16, v0, 12, s38")
    k.e("v_cmp_gt_u32 vcc, L_end-L_pc-4, v16")
    k.e("v_mov_b32 v17, s37")
    k.e("s_and_b64 exec, exec, vcc")
    k.e("s_cbranch_execz L_nocpf")
    k.e("v_add_co_u32 v16, vcc, s36, v16")
    k.e("s_nop 1")
    k.e("v_addc_co_u32 v17, vcc, 0, v17, vcc")
    if not cfg.get("nocpf"): k.e("global_load_dword v119, v[16:17], off")
    k.label("L_nocpf")
    k.e("s_mov_b64 exec, -1")
    k.e("v_lshrrev_b32 v16, 6, v0")
    k.e("v_and_b32 v1, 63, v0")
    k.e("v_readfirstlane_b32 s28, v16")
    k.e("v_lshlrev_b32 v116, 4, v1")
    k.e("s_lshl_b32 s42, s2, 3")
    k.e("s_cmp_lt_u32 s28, 4")
    k.e("s_cbranch_scc1 L_nox")
    k.e("s_add_u32 s43, s42, s28")
    k.e("s_sub_u32 s42, s43, 4")
    k.e("v_lshl_add_u32 v18, s42, 11, v116")
    k.e("v_add_u32 v19, 8192, v18")
    k.e("s_waitcnt lgkmcnt(0)")
    for X_, a_ in ((XA, "v18"), (XB, "v19")):
        k.e(f"global_load_dwordx4 {v(X_,4)}, {a_}, s[44:45]{NT(cfg, 'x')}")
        k.e(f"global_load_dwordx4 {v(X_+4,4)}, {a_}, s[44:45] offset:1024{NT(cfg, 'x')}")
    k.e(f"global_load_dwordx4 {v(WP,4)}, v116, s[52:53]")
    k.e(f"global_load_dwordx4 {v(WP+4,4)}, v116, s[52:53] offset:1024")
    k.label("L_nox")
    k.e("s_load_dwordx4 s[88:91], s[0:1], 96")
    k.e("s_load_dwordx4 s[92:95], s[0:1], 64")
    k.e("s_load_dwordx2 s[96:97], s[0:1], 16")
    k.e("s_and_b32 s29, s2, 7")
    k.e("s_lshl_b32 s29, s29, 2")
    k.e("s_bfe_u32 s36, s2, 0x20003")
    k.e("s_add_u32 s29, s29, s36")
    k.e("s_lshr_b32 s30, s2, 5")
    k.e("v_lshrrev_b32 v16, 3, v1")
    k.e("s_lshl_b32 s36, s30, 8")
    k.e("s_lshl_b32 s37, s28, 5")
    k.e("s_add_u32 s36, s36, s37")
    k.e("v_add_u32 v16, s36, v16")
    k.e("v_lshlrev_b32 v16, 10, v16")
    k.e("v_lshrrev_b32 v18, 4, v1")
    k.e("v_and_b32 v19, 7, v1")
    k.e("v_xor_b32 v19, v19, v18")
    k.e("v_lshl_add_u32 v2, v19, 4, v16")
    k.e("v_xor_b32 v19, 4, v19")
    k.e("v_lshl_add_u32 v3, v19, 4, v16")
    k.e(f"v_add_u32 v3, {8192-1024}, v3")
    k.e(f"v_add_u32 v4, {2*(8192-1024)}, v2")
    k.e(f"v_add_u32 v5, {2*(8192-1024)}, v3")
    k.e("s_and_b32 s36, s28, 3")
    k.e("s_lshl_b32 s37, s36, 4")
    k.e("v_add_u32 v16, s37, v18")
    k.e("v_lshlrev_b32 v16, 13, v16")
    k.e("s_lshl_b32 s37, s29, 8")
    k.e("v_add_u32 v16, s37, v16")
    k.e("v_and_b32 v19, 15, v1")
    k.e("v_lshlrev_b32 v18, 1, v18")
    k.e("v_xor_b32 v19, v19, v18")
    k.e("v_lshl_add_u32 v6, v19, 4, v16")
    k.e(f"v_add_u32 v7, {32768-1024}, v6")
    k.e("v_xor_b32 v19, 8, v19")
    k.e("v_lshl_add_u32 v8, v19, 4, v16")
    k.e(f"v_add_u32 v8, {2*(32768-1024)}, v8")
    k.e(f"v_add_u32 v9, {32768-1024}, v8")
    k.e("s_lshl_b32 s33, s28, 12")
    k.e("s_add_u32 s34, s33, 65536")
    k.e("s_mov_b32 s31, 0")
    k.e("s_mov_b32 s32, 0")
    k.e("s_mov_b32 s40, 128")
    k.e(f"s_mov_b32 s41, {64*8192}")
    def dma_list(stage):
        c = [f"buffer_load_dwordx4 v{2+j}, s[4:7], s31 offen offset:{j*1024}{NT(cfg, 'c')} lds" for j in range(4)]
        w = [f"buffer_load_dwordx4 v{6+j}, s[8:11], s32 offen offset:{j*1024}{NT(cfg, 'w')} lds" for j in range(4)]
        return f"s_add_u32 m0, s33, {stage*32768}", c, f"s_add_u32 m0, s34, {stage*32768}", w
    def dma_both(stage):
        mc, c, mw, w = dma_list(stage)
        k.e(mc); k.e(f"s_add_u32 s36, s31, {128*1024}"); k.e(c)
        k.e(mw); k.e("s_nop 0"); k.e(w)
        k.e(f"s_add_u32 m0, s33, {stage*32768+16384}"); k.e("s_nop 0"); k.e([x.replace("s31", "s36") for x in c])
        k.e(f"s_add_u32 m0, s34, {stage*32768+16384}"); k.e("s_nop 0"); k.e([x.replace("s[8:11]", "s[20:23]") for x in w])
        k.e("s_add_u32 s31, s31, s40")
        k.e("s_add_u32 s32, s32, s41")
    def setup_rest():
        k.e(f"s_add_u32 s54, s90, {int(cfg.get('wsoff', 0)) << 20}")
        k.e("s_addc_u32 s55, s91, 0")
        srd(k, 12, 54, 33554432, WS_KV)
        srd(k, 24, 54, 80 << 20)
        k.e(f"s_add_u32 s90, s54, {WS_CNT}")
        k.e("s_addc_u32 s91, s55, 0")
        k.e("v_and_b32 v16, 15, v1")
        k.e("v_lshrrev_b32 v17, 4, v1")
        k.e("s_bfe_u32 s36, s28, 0x10001")
        k.e("s_lshl_b32 s36, s36, 14")
        k.e("v_lshl_add_u32 v18, v16, 7, s36")
        k.e("v_lshrrev_b32 v19, 1, v16")
        k.e("v_xor_b32 v19, v19, v17")
        k.e("v_lshl_add_u32 v10, v19, 4, v18")
        k.e("v_xor_b32 v19, 4, v19")
        k.e("v_lshl_add_u32 v11, v19, 4, v18")
        k.e("v_lshrrev_b32 v16, 2, v16")
        k.e("v_lshl_add_u32 v18, v17, 3, v16")
        k.e("v_lshlrev_b32 v18, 8, v18")
        k.e("s_lshr_b32 s36, s28, 2")
        k.e("s_lshl_b32 s36, s36, 14")
        k.e("s_add_u32 s36, s36, 65536")
        k.e("v_add_u32 v18, s36, v18")
        k.e("v_and_b32 v19, 3, v1")
        k.e("v_lshl_add_u32 v18, v19, 3, v18")
        k.e("v_and_b32 v17, 1, v17")
        k.e("v_lshl_add_u32 v16, v17, 2, v16")
        k.e("s_and_b32 s36, s28, 1")
        k.e("s_lshl_b32 s36, s36, 2")
        for cb in range(4):
            k.e(f"s_add_u32 s37, s36, {cb}")
            k.e("v_xor_b32 v19, s37, v16")
            k.e(f"v_lshl_add_u32 v{12+cb}, v19, 5, v18")
        k.e(zero(ACC, 128))
        k.e("v_mov_b32 v118, 0")
        k.e("v_mov_b32 v117, 0")
        k.e(["s_lshl_b32 s36, s30, 7", "s_lshl_b32 s37, s28, 4", "s_add_u32 s36, s36, s37", "v_bfe_u32 v17, v1, 1, 3",
             "v_add_u32 v17, s36, v17", "v_lshlrev_b32 v17, 13, v17", "v_and_b32 v19, 1, v1", "v_lshl_add_u32 v17, v19, 7, v17",
             "s_lshl_b32 s36, s29, 8", "v_add_u32 v17, s36, v17", f"s_mov_b32 s45, {int(cfg.get('tl', 8))//2*8192}"])
    k.e("s_waitcnt lgkmcnt(0)")
    srd(k, 4, 46, 2097152)
    srd(k, 8, 48, 4194304)
    srd(k, 20, 50, 4194304)
    k.e("s_cmp_lt_u32 s28, 4")
    k.e("s_cbranch_scc0 L_pro_s")
    emit(k, A.ool(k, ["s_cmp_eq_u32 s2, 0"], "s_cbranch_scc1",
                  ["s_mul_i32 s36, s28, 12288", f"s_add_u32 s36, s36, {WS_CNT + (int(cfg.get('wsoff', 0)) << 20)}", "v_lshl_add_u32 v16, v1, 4, s36",
                   "v_mov_b32 v108, 0", "v_mov_b32 v109, 0", "v_mov_b32 v110, 0", "v_mov_b32 v111, 0"] +
                  flat([[f"global_store_dwordx4 v16, v[108:111], s[90:91]{SC}", "v_add_u32 v16, 1024, v16"] for _ in range(12)])))
    dma_both(0)
    k.label("L_pro_s")
    st.mark()
    setup_rest()
    st.mark()
    k.e("s_cmp_lt_u32 s28, 4")
    k.e("s_cbranch_scc0 L_pro_b")
    dma_both(1)
    k.e("s_waitcnt vmcnt(16)")
    k.e("s_branch L_pro_j")
    k.label("L_pro_b")
    k.e("s_mov_b64 s[8:9], s[20:21]")
    k.e("s_mov_b32 s31, 256")
    k.e(f"s_mov_b32 s32, {2*64*8192}")
    k.e("s_and_b32 s60, s28, 3")
    if cfg.get("nodry"): k.e("s_waitcnt vmcnt(0)")
    k.e(f"s_mov_b32 s3, {0 if cfg.get('nodry') else 0xD0}")
    k.label("L_ln")
    for i in range(8):
        k.e(f"v_lshlrev_b32 v{WR+2*i}, 16, v{WP+i}")
        k.e(f"v_and_b32 v{WR+2*i+1}, 0xffff0000, v{WP+i}")
    k.e(zip2(ln_row(XA, 108, WR, 60, 92, 36, "s42", "s60"), ln_row(XB, 120, WR, 76, 100, 56, "s43", "s28")))
    k.e("s_waitcnt vmcnt(0) lgkmcnt(0)")
    k.e("s_cmp_eq_u32 s3, 0")
    k.e("s_mov_b32 s3, 0")
    k.e("s_cbranch_scc0 L_ln")
    k.label("L_pro_j")
    st.mark()
    def reads(s_, stage, fs):
        b = FR[fs]
        c = [f"ds_read_b128 {v(b+4*i,4)}, v{10+s_} offset:{stage*32768+i*2048}" for i in range(8)]
        w = [[f"ds_read_b64_tr_b16 {v(b+32+4*cb+2*t,2)}, v{12+cb} offset:{stage*32768+(32*s_+4*t)*256}" for t in range(2)] for cb in range(4)]
        return [c[0]] + w[0] + w[1] + w[2] + w[3] + c[1:]
    def accreg(i, cb, vtype):
        return ACC + ((cb*8+i) if vtype else (i*4+cb))*4
    def mfmas(fs, vtype):
        b = FR[fs]; L = []
        for i in range(8):
            for cb in range(4):
                a = accreg(i, cb, vtype)
                cf, wf = v(b+4*i, 4), v(b+32+4*cb, 4)
                Aop, Bop = (cf, wf) if vtype else (wf, cf)
                L.append(f"{MF} {v(a,4)}, {Aop}, {Bop}, {v(a,4)}")
        return L
    k.e("s_barrier")
    k.e(reads(0, 0, 0))
    emit(k, A.ool(k, ["s_add_u32 s36, s2, s28", "s_cmp_eq_u32 s36, 0"], "s_cbranch_scc1",
                  ["v_mov_b32 v19, 1", "s_mov_b64 exec, 1", "global_store_dword v118, v19, s[88:89] sc1", "s_mov_b64 exec, -1"]))
    ln_part2(k, 120, 100)
    emit(k, A.ool(k, ["s_cmp_eq_u32 s28, 7"], "s_cbranch_scc1", ln_part3(108)))
    st.mark()
    k.e("s_mov_b32 s35, 0")
    k.e("s_cmp_eq_u32 s28, 0")
    k.e("s_cselect_b32 s43, 9, 0")
    k.e("s_cselect_b32 s44, 2, 1")
    k.e("s_cmp_lt_u32 s28, 4")
    k.e("s_cbranch_scc0 L_kv_vloop")
    for vtype in range(2):
        lp = "L_kv_vloop" if vtype else "L_kv_kloop"
        k.align(6)
        k.label(lp)
        for stage in range(2):
            for s_ in range(2):
                fills = [[] for _ in range(32)]
                pre = []
                if s_ == 0:
                    k.e("s_waitcnt lgkmcnt(0)")
                    rd = reads(1, stage, 1)
                    if stage == 1 and vtype == 0:
                        fills[20] += A.ool(k, ["s_bitcmp1_b32 s43, s35"], "s_cbranch_scc1", switch(k, "s35", [
                            (0, ["global_load_dword v116, v118, s[88:89] sc1"]),
                            (3, ["v_and_b32 v117, 15, v1", f"v_add_u32 v117, {CNT_LN}, v117", "v_lshlrev_b32 v117, 7, v117",
                                 "global_load_dword v116, v117, s[90:91] sc1"])]))
                else:
                    nt = 0 if cfg.get("notouch") else 1
                    if vtype == 0 and stage == 0:
                        emit(k, A.ool(k, ["s_cmp_eq_u32 s35, 3"], "s_cbranch_scc1", p1_retarget(cfg)))
                    la, lb = k.newlabel("w0"), k.newlabel("w0b")
                    if stage == 1 and vtype == 0:
                        A.OOL.append([la + ":", "s_waitcnt vmcnt(0)"] + switch(k, "s35", [(0, check(k, "s[88:89]", "v118", "v116", 1)), (3, ln_check(k))]) + [f"s_branch {lb}"])
                        emit(k, ["s_bitcmp1_b32 s43, s35", f"s_cbranch_scc1 {la}", f"s_waitcnt vmcnt({nt})", lb + ":", "s_waitcnt lgkmcnt(0)"])
                    elif stage == 1:
                        k.e(f"s_waitcnt vmcnt({nt}) lgkmcnt(0)")
                    else:
                        A.OOL.append([la + ":"] + switch(k, "s35", [(0, ["s_waitcnt vmcnt(2)"]), (1, [f"s_waitcnt vmcnt({nt+1})"])]) + [f"s_branch {lb}"])
                        emit(k, ["s_cmp_lt_u32 s35, s44", f"s_cbranch_scc1 {la}", f"s_waitcnt vmcnt({nt})", lb + ":", "s_waitcnt lgkmcnt(0)"])
                    if nt:
                        tp = int(cfg.get("tpos", 31))
                        nl = int(cfg.get("tl", 8))
                        tl = [f"s_mov_b64 exec, {(1 << nl) - 1}", f"global_load_dword v{[119, 0][stage]}, v17, s[96:97]", "s_mov_b64 exec, -1"]
                        if stage == 1: tl += [f"s_cmp_lt_u32 s35, {-(-16 // nl) - 1}", "s_cselect_b32 s45, s45, 0"]
                        tl += ["v_add_u32 v17, s45, v17", f"v_min_u32 v17, {8388608-128}, v17"]
                        fills[tp] += tl + ["s_nop 1"]
                    if stage == 1: k.e("s_cmp_eq_u32 s35, 3")
                    k.e("s_barrier")
                    if stage == 1: k.e(f"s_cbranch_scc1 L_p1_fin{vtype}")
                    rd = reads(0, stage ^ 1, 0)
                    if stage == 1 and vtype == 0:
                        fills[30] += A.ool(k, ["s_add_u32 s36, s35, s28", "s_cmp_eq_u32 s36, 0"], "s_cbranch_scc1",
                                          ["s_lshr_b32 s36, s2, 4", f"s_add_u32 s36, s36, {CNT_LN}", "s_lshl_b32 s36, s36, 7"] + signal("s[90:91]", "s36", "v16", "v19"))
                for g in range(16): fills[g].append(rd[g])
                if s_ == 1:
                    mc, c, mw, w = dma_list(stage)
                    tail = ["s_add_u32 s31, s31, s40", "s_add_u32 s32, s32, s41"]
                    if vtype == 1:
                        pre = [mc, "s_nop 0"] + c + [mw, "s_nop 0"] + w + tail
                        if stage == 1:
                            pre += A.ool(k, ["s_cmp_eq_u32 s35, 2"], "s_cbranch_scc1", p1_retarget(cfg))
                    else:
                        fills[0].append(mc)
                        for j in range(4): fills[1+3*j].append(c[j])
                        fills[12].append(mw)
                        for j in range(4): fills[13+3*j].append(w[j])
                        fills[31] += tail
                emit(k, pre)
                emit(k, weave(mfmas(s_, vtype), fills))
                if s_ == 1: k.e(cfg["sth1"].hist(8, first=(vtype == 0 and stage == 0)))
        k.e("s_add_u32 s35, s35, 1")
        k.e(f"s_branch {lp}")
        k.label(f"L_p1_fin{vtype}")
        mc, c, mw, w = dma_list(1)
        head = lines(p2_setup) + lines(srd, 8, 54, 4194304)
        lds = flat([xld2(0, s_) for s_ in range(4)]) + [mc] + c + ["s_add_u32 s31, s31, s40", "s_add_u32 s32, s32, 4096"]
        rest = lines(p2_setup2)
        fills = [[] for _ in range(32)]
        if vtype == 1:
            emit(k, head + lds[:9] + ["s_nop 0"] + lds[9:])
        else:
            fills[0] += head
            for i, x in enumerate(lds): fills[1+2*i] += [x]
        for i, x in enumerate(rest): fills[min(2+i, 31)] += [x]
        emit(k, weave(mfmas(1, vtype), fills))
        k.e(cfg["sth1"].hist(8, first=False))
        if vtype == 0: k.e("s_branch L_p1_done")
    k.label("L_p1_done")

def kv_pack(k):
    for q in range(16):
        a = 128 + 8*q
        for e in range(4):
            k.e(f"v_cvt_pk_bf16_f32 v{KP+4*q+e}, v{a+2*e}, v{a+2*e+1}")
    k.e("s_lshl_b32 s38, s29, 20")
    k.e("s_lshl_b32 s37, s30, 17")
    k.e("s_add_u32 s38, s38, s37")
    k.e("s_bfe_u32 s37, s28, 0x10001")
    k.e("s_lshl_b32 s37, s37, 16")
    k.e("s_add_u32 s38, s38, s37")
    k.e("s_lshr_b32 s36, s28, 2")
    k.e("s_lshl_b32 s37, s36, 15")
    k.e("s_add_u32 s38, s38, s37")
    k.e("s_and_b32 s37, s28, 1")
    k.e("s_add_u32 s36, s36, 11")
    k.e("s_lshl_b32 s37, s37, s36")
    k.e("s_add_u32 s38, s38, s37")
    k.e("s_cmp_lt_u32 s28, 4")
    k.e("s_cselect_b32 s36, 4, 32")
    k.e("s_cselect_b32 s37, 16, 64")
    k.e("s_cselect_b32 s39, 32, 4")
    k.e("s_lshl_b32 s36, s36, 8")
    k.e("s_lshl_b32 s37, s37, 8")
    k.e("s_lshl_b32 s39, s39, 8")
    k.e("s_mov_b64 s[16:17], s[12:13]")
    k.e("s_mov_b64 s[18:19], s[14:15]")
    k.e("s_cmp_eq_u32 s30, 0")
    k.e("s_cselect_b32 s52, 2, 4")
    k.e("v_lshlrev_b32 v58, 4, v1")
    k.e("v_add_u32 v59, s36, v58")
    k.e("v_add_u32 v60, s37, v58")
    k.e("v_add_u32 v61, s36, v60")

def p2_setup(k):
    k.e("s_and_b32 s36, s28, 3")
    k.e("s_sub_u32 s37, 15, s30")
    k.e("s_cmp_lt_u32 s28, 4")
    k.e("s_cselect_b32 s37, s37, s30")
    k.e("s_lshl_b32 s37, s37, 2")
    k.e("s_add_u32 s37, s37, s36")
    k.e("s_lshl_b32 s37, s37, 16")
    k.e("v_lshl_add_u32 v6, v1, 4, s37")
    k.e("v_add_u32 v7, 32768, v6")
    k.e("s_mov_b32 s32, 0")

def p2_setup2(k):
    k.e("v_lshrrev_b32 v18, 4, v1")
    k.e("v_bfe_u32 v20, v1, 2, 2")
    k.e("v_lshl_add_u32 v19, v18, 3, v20")
    k.e("v_lshlrev_b32 v19, 8, v19")
    k.e("v_and_b32 v21, 3, v1")
    k.e("v_lshl_add_u32 v19, v21, 3, v19")
    k.e("v_and_b32 v21, 1, v18")
    k.e("v_lshl_add_u32 v20, v21, 2, v20")
    for db in range(8):
        k.e(f"v_xor_b32 v21, {db}, v20")
        k.e(f"v_lshl_add_u32 v{10+db}, v21, 5, v19")
    k.e("s_lshl_b32 s45, s29, 20")

def p2_pieces(k, cfg, evA, evB):
    def wdma(stage):
        return [f"s_add_u32 m0, s33, {stage*32768}"], [VM(f"buffer_load_dwordx4 v{2+j}, s[4:7], s31 offen offset:{j*1024}{SC}{NT(cfg, 'q')} lds", ("W", stage)) for j in range(4)]
    xld = xld2
    def wrd(stage, s_, db):
        return [DS(f"ds_read_b64_tr_b16 {v(WF+4*db+2*t,2)}, v{10+db} offset:{stage*32768+(32*s_+4*t)*256}", ("w", db)) for t in range(2)]
    def store(q, so="s38"):
        return VM(f"buffer_store_dwordx4 {v(KP+4*q,4)}, v{58+(q&3)}, s[16:19], {so} offen{SC}", "kvst")
    early = ["s_lshl_b32 s36, s39, 1", "s_add_u32 s36, s36, s38", "s_add_u32 s37, s36, s39"] + [store(q, f"s{34+q//4}") for q in range(8, 16)]
    prox = [xld(1, s_) for s_ in range(3)]
    D = 6
    pro2 = [wrd(0, 0, db) for db in range(D)]
    halves = []
    for stage in range(2):
        M, fills, pre = [], [[] for _ in range(64)], {}
        for s_ in range(4):
            for db in range(8):
                for rb in range(2):
                    o = A.Oreg(rb, db)
                    M.append(f"{MF} {v(o,4)}, {v(WF+4*db,4)}, {v(XF[stage]+(s_*2+rb)*4,4)}, {v(o,4)}")
        for p in range(32):
            if p % 2 == 0: pre[2*p] = [Need("ds", [("w", p % 8), ("w", (p+1) % 8)])]
            if p % 8 == 0: pre[2*p] += [Need("vm", [("x", stage, p // 8)])]
            f = p + D
            if f < 32:
                r = wrd(stage, f // 8, f % 8)
                fills[2*p] += [r[0]]; fills[2*p+1] += [r[1]]
        pre[0] = [evB[stage]] + pre[0]
        fills[2*27+1] += [evA[stage], "s_waitcnt lgkmcnt(0)", Need("vm", [("W", stage ^ 1)]), "s_barrier"]
        nx = {28: [0, 1], 29: [2, 3], 30: [4], 31: [5]}
        for p, fl in nx.items():
            for i, f in enumerate(fl):
                fills[2*p+i] += wrd(stage ^ 1, 0, f)
        for s_ in range(4):
            xl = xld(stage ^ 1, 3) if s_ == 0 else xld(stage, s_-1)
            fills[16*s_+2] += [xl[0]]; fills[16*s_+6] += [xl[1]]
            if s_ == 0:
                fills[7] += ["s_add_u32 s32, s32, 4096"]
                if stage == 0:
                    fills[8] += ["s_cmp_lt_u32 s35, 3", "s_cselect_b32 s10, 4194304, 0"]
        if not cfg.get("nokvst"):
            spos = [int(x) for x in cfg.get("spos", "10,30").split(",")]
            for i in range(2):
                q = 2*stage + i
                fills[spos[i]] += [store(q)]
                for g in range(3):
                    for h in range(2):
                        r = KP + 16*g + 4*q + 2*h
                        fills[spos[i]+2+2*(2*g+h)] += [f"v_mov_b64 v[{r}:{r+1}], v[{r+16}:{r+17}]"]
            if stage == 1: fills[spos[1]+1] += ["s_add_u32 s38, s38, s39"]
            if stage == 0: fills[9] += ["s_cmp_lt_u32 s35, s52", "s_cselect_b32 s18, s18, 0"]
        m, d = wdma(stage)
        fills[2*29+1] += m
        fills[60] += [d[0]]; fills[61] += [d[1]]; fills[62] += [d[2]]; fills[63] += [d[3], "s_add_u32 s31, s31, s40"]
        halves.append(weave(M, fills, pre))
    return prox, pro2, halves, early

def p2_events(k, cfg):
    W0 = (["s_cmp_eq_u32 s28, 0"], "s_cbranch_scc0")
    def E3():
        return ["s_mov_b64 s[4:5], s[12:13]", "s_mov_b32 s6, s14", "s_mov_b32 s31, s45", "s_mov_b32 s40, 65536",
                "v_add_u32 v2, s33, v58", "v_mov_b32 v3, v2", "v_mov_b32 v4, v2", "v_mov_b32 v5, v2"]
    def V0():
        return ["s_add_u32 m0, s33, 65536", "s_add_u32 s36, s45, 32768"] + \
               [VM(f"buffer_load_dwordx4 v2, s[12:15], s36 offen offset:{j*1024}{SC} lds", "v0") for j in range(4)]
    off0 = [f"s_add_u32 s36, s29, {CNT_KV0}", "s_lshl_b32 s36, s36, 7"]
    sig0 = guard(k, ["s_add_u32 s36, s28, s30", "s_cmp_eq_u32 s36, 4"], "s_cbranch_scc0", off0 + signal("s[90:91]", "s36", "v62", "v63"), "sg")
    pol0 = guard(k, *W0, off0 + [f"v_mov_b32 {vZ}, s36", VM(f"global_load_dword {vPOLL}, {vZ}, s[90:91] sc1", "poll")], "w0")
    chk0 = guard(k, *W0, [Need("vm", ["poll"])] + check(k, "s[90:91]", vZ, vPOLL, 1), "w0")
    evs = {"A": {(2, 0): [], (2, 1): [pol0], (3, 0): E3() + [chk0]},
           "B": {(2, 0): [], (2, 1): [sig0], (3, 0): E3()}}
    if "2" in cfg.get("cpf", ""):
        evs["B"][(2, 0)] = [guard(k, ["s_cmp_eq_u32 s28, 5"], "s_cbranch_scc0", ["s_mov_b32 s60, s38"] + code_touch(k, 20, "v22") + ["s_mov_b32 s38, s60"], "w0")]
    v0 = V0()
    out = {}
    for g, cmp_ in (("A", "s_cmp_lt_u32 s28, 4"), ("B", "s_cmp_ge_u32 s28, 4")):
        out[g] = []
        for stage in range(2):
            cs = [(it, evs[g][(it, st_)]) for (it, st_) in sorted(evs[g]) if st_ == stage]
            inner = []
            if g == "B" and stage == 1:
                l = k.newlabel("nv0")
                inner += ["s_cmp_eq_u32 s35, 3", f"s_cbranch_scc0 {l}"] + v0 + [l + ":"]
                cs = cs + [(3, [])]
            elif stage == 1: cs = cs + [(3, [])]
            l = k.newlabel("ng")
            inner += [cmp_, f"s_cbranch_scc0 {l}"] + switch(k, "s35", cs) + [l + ":"]
            def pick(c, g=g, stage=stage):
                r = []
                if g == "B" and stage == 1 and c["it"] == 3: r += v0
                if c["grp"] == g: r += evs[g].get((c["it"], stage), [])
                return r
            out[g].append(Alt(A.ool(k, ["s_cmp_ge_u32 s35, 2"], "s_cbranch_scc1", inner), pick))
    return out["A"], out["B"]

def p2(k, cfg, st):
    evA, evB = p2_events(k, cfg)
    prox, pro2, halves, early = p2_pieces(k, cfg, evA, evB)
    earlyA = Alt(A.ool(k, ["s_cmp_eq_u32 s30, 0"], "s_cbranch_scc1", early), lambda c: early if c["fast"] else [])
    body = [halves[0], cfg["sth2"].hist(8), halves[1], cfg["sth2"].hist(8, first=False)]
    nq = Need("vm", [("W", 0), "v0", "kvst", "xsel"] + [("x", a, b) for a in range(2) for b in range(4)])
    n0 = Need("vm", [("x", 0, 3)])
    scen = []
    for grp, w0 in (("A", 0), ("A", 1), ("B", 0), ("B", 1)):
        for ffn in (0,):
            for fast in (0, 1):
                sq = flat([xld2(0, s_) for s_ in range(4)]) + [VM("", ("W", 1))]*4 + flat([prox, pro2, n0, earlyA], dict(fast=fast))
                for it in range(4): sq += flat(body, dict(it=it, w0=w0, ffn=ffn, fast=fast, grp=grp, sg=fast and w0))
                scen.append(sq + [nq])
    resolve(scen)
    cfg["qwait"] = nq.n
    st.mark()
    k.e("s_waitcnt vmcnt(12)")
    emit(k, prox)
    emit(k, pro2)
    kv_pack(k)
    k.e(zero(A.O_, 64))
    k.e("s_mov_b32 s35, 0")
    emit(k, [n0, earlyA])
    st.mark()
    k.align(6)
    k.label("L_p2_loop")
    emit(k, body)
    k.e("s_add_u32 s35, s35, 1")
    k.e("s_cmp_lt_u32 s35, 4")
    k.e("s_cbranch_scc1 L_p2_loop")
    st.mark()
```

```python
from common import *
import attn as A
import ffn as F
import oproj as O
from fused_a import *

X32, G = 96, 112
XI, YA = 40, 24
WR4, XF4 = 64, [128, 160]
PRE, FW, HH, DD = 96, 112, 36, 96
LDS_P4 = 65536

CFG = {}
def after_q(k, grp):
    srd(k, 16, 54, 16777216, WS_CTX)
    if grp == 0:
        srd(k, 4, 92, 7340032)
        srd(k, 8, 94, 7340032)
        k.e("s_and_b32 s60, s29, 3")
        k.e(f"s_add_u32 s60, s60, {CFG.get('e0', 4)}")
        k.e("s_sub_u32 s3, s2, 32")
        k.e("s_cmp_eq_u32 s28, 0")
        k.e("s_cselect_b32 s36, 0xad, 0x2d")
        k.e("s_cselect_b32 s42, 14, 12")
        k.e("s_cmp_lt_u32 s3, 224")
        k.e("s_cselect_b32 s36, s36, 0")
        k.e("s_lshl_b32 s36, s36, s60")
        k.e("s_or_b32 s42, s42, s36")
    else:
        emit(k, A.ool(k, ["s_cmp_eq_u32 s28, 4"], "s_cbranch_scc1", ["s_lshl_b32 s36, s29, 7"] + signal("s[90:91]", "s36", "v20", "v21")))
        k.e("s_sub_u32 s36, s2, 128")
        k.e("s_lshl_b32 s36, s36, 2")
        k.e("s_and_b32 s37, s28, 3")
        k.e("s_add_u32 s36, s36, s37")
        k.e("s_lshl_b32 s36, s36, 14")
        k.e("v_lshl_add_u32 v13, v1, 7, s36")
        k.e("s_cmp_ge_u32 s2, 128")
        k.e(f"s_cselect_b32 s39, {2 if CFG.get('nobt') else 0x1fe}, 2")
        if "3" in CFG.get("cpf", ""):
            k.e("s_cmp_eq_u32 s28, 5")
            k.e(f"s_cselect_b32 s36, {1 << int(CFG.get('cpt', 13))}, 0")
            k.e("s_or_b32 s39, s39, s36")

def pro_wait(k, grp):
    if grp == 0: return ["s_waitcnt vmcnt(0)"]
    l = k.newlabel("pw")
    return ["s_waitcnt vmcnt(1)", "s_cmp_eq_u32 s28, 4", f"s_cbranch_scc1 {l}", "s_waitcnt vmcnt(0)", l + ":"]

def pro_hook(k, grp):
    if grp == 0:
        return A.ool(k, ["s_cmp_eq_u32 s28, 0"], "s_cbranch_scc1",
                     ["s_lshl_b32 s36, s29, 7", "v_mov_b32 v13, s36", "global_load_dword v14, v13, s[90:91] sc1"])
    return []

def b_hook(k):
    l = k.newlabel("bt")
    mats = ((92, 7340032), (94, 7340032), (34, 7340032), (32, 8388608))
    if CFG.get("bt", "2") == "2": mats = mats[2:]
    n = 8 // len(mats)
    def t(p, size, h, i):
        L = [f"v_add_u32 v11, {16384//n*h}, v13", f"v_min_u32 v11, {size-128}, v11"] + ["s_waitcnt vmcnt(3)"]
        ld = f"global_load_dword v{[10, 16, 17, 0][i % 4]}, v11, s[{p}:{p+1}]"
        return L + ([ld] if n == 2 else ["s_mov_b32 exec_hi, 0", ld, "s_mov_b32 exec_hi, -1", "s_nop 1"])
    cases = [(1+n*i+h, t(p, sz, h, n*i+h)) for i, (p, sz) in enumerate(mats) for h in range(n)]
    cases[0] = (1, ["s_cmp_lt_u32 s2, 128", f"s_cbranch_scc1 {l}"] + cases[0][1] + [l + ":"])
    return switch(k, "s40", cases + [(13, ["s_waitcnt vmcnt(3)"] + code_touch(k, 26, "v10"))])

def bar_hook(k, grp):
    if grp == 1: return []
    QS = A.QS_
    keys = [f"s_mov_b32 s36, {F.WS_KEY}"] + [f"buffer_load_dwordx4 {v(QS+4*i,4)}, {A.vL16}, s[24:27], s36 offen offset:{i*1024}{SC}" for i in range(2)]
    t2 = K("t"); F.top2(t2, QS, 26, 8, 20)
    top = [x.strip() for x in t2.lines]
    top += ["v_and_b32 v26, 1, v1", "v_mov_b32 v27, s56", "v_mov_b32 v28, s57", "v_cmp_eq_u32 vcc, 1, v26", "s_nop 1",
            "v_cndmask_b32 v27, v27, v28, vcc", "v_lshrrev_b32 v28, 4, v27", "v_lshlrev_b32 v28, 15, v28", "v_and_b32 v27, 15, v27",
            "v_lshl_add_u32 v28, v27, 4, v28", "v_lshrrev_b32 v29, 4, v1", "v_lshl_add_u32 v28, v29, 8, v28",
            "s_and_b32 s36, s3, 3", "s_lshl_b32 s36, s36, 13", "s_add_u32 s37, s36, 4096",
            "s_mov_b32 exec_lo, 0x00030003", "s_mov_b32 exec_hi, 0x00030003"]
    top += [f"buffer_load_dwordx4 {v(QS+4*i,4)}, v28, s[24:27], s{36+i//4} offen offset:{(i%4)*1024}{SC}" for i in range(8)]
    top += ["s_mov_b64 exec, -1"]
    def dma(m):
        L = ["s_and_b32 s20, s3, 3", "s_lshl_b32 s20, s20, 8", "s_lshl_b32 s21, s28, 5", "s_add_u32 s20, s20, s21",
             "s_lshr_b32 s21, s3, 2", "s_lshl_b32 s21, s21, 7"] + lines(F.wdma_addr, 26, "s20", 7168, "s21")
        L += ["s_lshl_b32 s36, s28, 13", f"s_add_u32 m0, s36, {LDS_X}", f"s_mov_b32 s37, {32*7168}"]
        L += [f"buffer_load_dwordx4 v{26+j}, s[{4+4*m}:{7+4*m}], 0 offen offset:{j*1024}{NT(CFG, 'f')} lds" for j in range(4)]
        L += [f"s_add_u32 m0, s36, {LDS_X+4096}", "s_nop 0"]
        L += [f"buffer_load_dwordx4 v{26+j}, s[{4+4*m}:{7+4*m}], s37 offen offset:{j*1024}{NT(CFG, 'f')} lds" for j in range(4)]
        return L
    def mm(m):
        L = lines(F.wrd_addr, "v20", "v21", "v8")
        L += ["v_xor_b32 v21, s28, v21", "v_lshl_add_u32 v20, v21, 5, v20", f"v_add_u32 v20, {LDS_X}, v20"]
        rd = lambda h: [f"ds_read_b64_tr_b16 {v(22+4*s_+2*t,2)}, v20 offset:{(32*(4*h+s_)+4*t)*128}" for s_ in range(4) for t in range(2)]
        L += rd(0)
        L += ["s_and_b32 s36, s3, 3", "s_lshl_b32 s36, s36, 6", "s_lshr_b32 s37, s3, 2", "s_lshl_b32 s37, s37, 12", "s_add_u32 s36, s36, s37",
              "s_lshl_b32 s37, s28, 10", "s_add_u32 s36, s36, s37", f"s_add_u32 s36, s36, {WS_PRE + 32*m}",
              "v_and_b32 v9, 1, v1", "v_lshlrev_b32 v9, 4, v9", "v_lshl_add_u32 v9, v8, 8, v9", "s_waitcnt lgkmcnt(0)"]
        L += [f"{MF} v[10:13], {v(22+4*s_,4)}, {v(QS+4*s_,4)}, {'v[10:13]' if s_ else '0'}" for s_ in range(4)]
        L += rd(1) + ["s_waitcnt lgkmcnt(0)"]
        L += [f"{MF} v[10:13], {v(22+4*s_,4)}, {v(QS+16+4*s_,4)}, v[10:13]" for s_ in range(4)]
        L += ["s_nop 5", "s_mov_b32 exec_lo, 0x00030003", "s_mov_b32 exec_hi, 0x00030003",
              f"buffer_store_dwordx4 v[10:13], v9, s[24:27], s36 offen{SC}", "s_mov_b64 exec, -1", "s_nop 1"]
        return L
    sig = ["s_mul_i32 s36, s3, 2341", "s_lshr_b32 s36, s36, 16", f"s_add_u32 s36, s36, {CNT_F1}", "s_lshl_b32 s36, s36, 7"] + signal("s[90:91]", "s36", "v20", "v21")
    ffn = ["s_sub_u32 s38, s40, s60"] + switch(k, "s38", [(0, dma(0)), (2, mm(0)), (3, dma(1)), (5, mm(1)), (7, sig)])
    return A.ool(k, ["s_bitcmp1_b32 s42, s40"], "s_cbranch_scc1",
                 switch(k, "s40", [(1, check(k, "s[90:91]", "v13", "v14", 8)), (2, keys), (3, top), (4, ffn)]))

def before_tail(k, grp):
    srd(k, 4, 34, 7340032)
    srd(k, 8, 32, 8388608)
    k.e("s_lshr_b32 s38, s2, 4")
    k.e("s_mul_i32 s38, s38, 224")
    k.e("s_and_b32 s39, s2, 15")
    k.e("s_lshl_b32 s39, s39, 7")
    F.wdma_addr(k, 26, "s38", 2048, "s39")
    k.e("s_lshl_b32 s36, s28, 12")
    k.e(f"s_add_u32 s36, s36, {LDS_X}")
    k.e("s_cmp_lt_u32 s28, 7")
    k.e("s_cselect_b32 m0, s36, 0x30000")
    k.e("s_cselect_b32 s6, 7340032, 0")
    for j in range(4): k.e(f"buffer_load_dwordx4 v{26+j}, s[4:7], 0 offen offset:{j*1024} lds")
    k.e("s_lshr_b32 s36, s2, 5")
    k.e(f"s_add_u32 s36, s36, {CNT_F1}")
    k.e("s_lshl_b32 s36, s36, 7")
    k.e("v_mov_b32 v12, s36")
    k.e("global_load_dword v11, v12, s[90:91] sc1")

def before_merge(k):
    k.e("s_waitcnt vmcnt(0)")
    emit(k, check(k, "s[90:91]", "v12", "v11", 28))
    k.e(["s_lshr_b32 s36, s2, 4", "s_mul_i32 s36, s36, 7", "s_min_u32 s37, s28, 6", "s_add_u32 s36, s36, s37",
         "s_lshl_b32 s36, s36, 11", f"s_add_u32 s36, s36, {WS_PRE}", "v_and_b32 v11, 15, v1", "v_lshlrev_b32 v11, 4, v11",
         "v_lshrrev_b32 v12, 4, v1", "v_lshl_add_u32 v11, v12, 9, v11"])
    k.e([f"buffer_load_dwordx4 {v(PRE+4*h,4)}, v11, s[24:27], s36 offen offset:{256*h}{SC}" for h in range(2)])

def gcalc(k, withy, cbs=range(4)):
    for cb in cbs:
        for h in range(2):
            a, b = X32+4*cb+2*h, X32+4*cb+2*h+1
            ga, gb = G+4*cb+2*h, G+4*cb+2*h+1
            k.e(f"v_lshlrev_b32 v{a}, 16, v{XI+2*cb+h}")
            k.e(f"v_and_b32 v{b}, 0xffff0000, v{XI+2*cb+h}")
            k.e(f"v_sub_f32 v{ga}, v{a}, v{XI+8}")
            k.e(f"v_sub_f32 v{gb}, v{b}, v{XI+8}")
            def rnd2():
                k.e(f"v_cvt_pk_bf16_f32 v10, v{ga}, v{gb}")
                k.e(f"v_lshlrev_b32 v{ga}, 16, v10")
                k.e(f"v_and_b32 v{gb}, 0xffff0000, v10")
            rnd2()
            k.e(f"v_mul_f32 v{ga}, v{ga}, v{XI+9}")
            k.e(f"v_mul_f32 v{gb}, v{gb}, v{XI+9}")
            rnd2()
            if withy:
                k.e(f"v_add_f32 v{ga}, v{ga}, v{YA+4*cb+2*h}")
                k.e(f"v_add_f32 v{gb}, v{gb}, v{YA+4*cb+2*h+1}")
                rnd2()
            k.e(f"v_mul_f32 v11, 0xbfb8aa3b, v{ga}")
            k.e(f"v_mul_f32 v12, 0xbfb8aa3b, v{gb}")
            k.e("v_exp_f32 v11, v11")
            k.e("v_exp_f32 v12, v12")
            k.e("s_nop 0")
            k.e("v_add_f32 v11, 1.0, v11")
            k.e("v_add_f32 v12, 1.0, v12")
            k.e("v_rcp_f32 v11, v11")
            k.e("v_rcp_f32 v12, v12")
            k.e("s_nop 0")
            k.e(f"v_mul_f32 v{ga}, v{ga}, v11")
            k.e(f"v_mul_f32 v{gb}, v{gb}, v12")
            rnd2()

def ffn2_math(k):
    F.wrd_addr(k, "v26", "v27", "v28")
    k.e("s_lshl_b32 s36, s28, 12")
    k.e(f"s_add_u32 s36, s36, {LDS_X}")
    k.e("v_add_u32 v26, s36, v26")
    for cb in range(4):
        k.e(f"v_xor_b32 v28, {cb}, v27")
        k.e("v_lshl_add_u32 v28, v28, 5, v26")
        for t in range(2):
            k.e(f"ds_read_b64_tr_b16 {v(FW+4*cb+2*t,2)}, v28 offset:{4*t*128}")
    for m in ("row_ror:4", "row_ror:8"):
        for e in range(8): k.e(f"v_add_f32_dpp v{PRE+e}, v{PRE+e}, v{PRE+e} {m} row_mask:0xf bank_mask:0xf")
    for e in range(0, 8, 2):
        k.e(f"v_cvt_pk_bf16_f32 v29, v{PRE+e}, v{PRE+e+1}")
        k.e(f"v_lshlrev_b32 v{PRE+e}, 16, v29")
        k.e(f"v_and_b32 v{PRE+e+1}, 0xffff0000, v29")
    for e in range(8): k.e(f"v_mul_f32 v{PRE+8+e}, 0xbfb8aa3b, v{PRE+e}")
    for e in range(8): k.e(f"v_exp_f32 v{PRE+8+e}, v{PRE+8+e}")
    for e in range(8): k.e(f"v_add_f32 v{PRE+8+e}, 1.0, v{PRE+8+e}")
    for e in range(8): k.e(f"v_rcp_f32 v{PRE+8+e}, v{PRE+8+e}")
    for e in range(8): k.e(f"v_mul_f32 v{PRE+8+e}, v{PRE+e}, v{PRE+8+e}")
    for e in range(0, 8, 2):
        k.e(f"v_cvt_pk_bf16_f32 v29, v{PRE+8+e}, v{PRE+8+e+1}")
        k.e(f"v_lshlrev_b32 v{PRE+8+e}, 16, v29")
        k.e(f"v_and_b32 v{PRE+8+e+1}, 0xffff0000, v29")
    for e in range(8): k.e(f"v_mul_f32_dpp v{PRE+e}, v{PRE+e}, v{PRE+8+e} quad_perm:[2,3,0,1] row_mask:0xf bank_mask:0xf")
    for q in range(4): k.e(f"v_cvt_pk_bf16_f32 v{HH+q}, v{PRE+2*q}, v{PRE+2*q+1}")
    k.e("s_waitcnt lgkmcnt(0)")
    k.e("v_lshl_add_u32 v28, v1, 4, s36")
    for cb in range(4): k.e(f"{MF} {v(DD+4*cb,4)}, {v(FW+4*cb,4)}, {v(HH,4)}, 0")
    k.e("s_nop 7")
    for cb in range(4): k.e(f"ds_write_b128 v28, {v(DD+4*cb,4)} offset:{cb*1024}")

def ffn2_reduce():
    L = ["s_lshl_b32 s36, s28, 10", f"s_add_u32 s36, s36, {LDS_X}", "v_lshl_add_u32 v28, v1, 4, s36"]
    L += [f"ds_read_b128 {v(PRE+4*w,4)}, v28 offset:{w*4096}" for w in range(7)]
    L += ["s_lshr_b32 s36, s2, 4", "s_lshl_b32 s36, s36, 13", "s_and_b32 s37, s2, 15", "s_lshl_b32 s37, s37, 8", "s_add_u32 s36, s36, s37",
          "s_lshl_b32 s37, s28, 6", "s_add_u32 s36, s36, s37", f"s_add_u32 s36, s36, {WS_YP}",
          "v_and_b32 v28, 1, v1", "v_lshlrev_b32 v28, 12, v28", "v_lshl_add_u32 v28, v19, 4, v28", "s_waitcnt lgkmcnt(0)"]
    for w in range(1, 7):
        L += [f"v_add_f32 v{PRE+e}, v{PRE+e}, v{PRE+4*w+e}" for e in range(4)]
    L += ["s_mov_b32 exec_lo, 0x00030003", "s_mov_b32 exec_hi, 0x00030003",
          VM(f"buffer_store_dwordx4 {v(DD,4)}, v28, s[24:27], s36 offen{SC}", "yp"), "s_mov_b64 exec, -1", "s_nop 3"]
    return L

def p4_setup(k):
    k.e("s_and_b32 s63, s30, 1")
    k.e("s_bfe_u32 s36, s2, 0x10002")
    k.e("s_lshl_b32 s36, s36, 3")
    k.e("s_add_u32 s30, s30, s36")
    k.e("s_and_b32 s29, s29, 15")
    k.e("s_and_b32 s36, s28, 3")
    k.e("s_lshl_b32 s37, s29, 2")
    k.e("s_add_u32 s36, s36, s37")
    k.e("s_lshl_b32 s36, s36, 18")
    k.e("s_lshr_b32 s37, s28, 2")
    k.e("s_lshl_b32 s37, s37, 12")
    k.e("s_add_u32 s36, s36, s37")
    k.e("s_lshl_b32 s37, s63, 16")
    k.e("s_add_u32 s36, s36, s37")
    k.e("v_lshl_add_u32 v2, v1, 4, s36")
    k.e(f"v_add_u32 v3, {1<<17}, v2")
    k.e("v_lshrrev_b32 v19, 4, v1")
    k.e("s_lshr_b32 s36, s28, 2")
    k.e("s_lshl_b32 s36, s36, 7")
    k.e("s_and_b32 s37, s28, 3")
    k.e("s_lshl_b32 s37, s37, 4")
    k.e("s_add_u32 s36, s36, s37")
    k.e("s_lshl_b32 s33, s36, 8")
    k.e("s_lshl_b32 s37, s63, 11")
    k.e("s_add_u32 s36, s36, s37")
    k.e("v_add_u32 v18, s36, v19")
    k.e("v_lshlrev_b32 v18, 11, v18")
    k.e("s_lshr_b32 s36, s30, 1")
    k.e("s_lshl_b32 s36, s36, 8")
    k.e("v_add_u32 v18, s36, v18")
    k.e("v_lshlrev_b32 v20, 1, v19")
    k.e("v_and_b32 v21, 15, v1")
    k.e("v_xor_b32 v20, v20, v21")
    k.e("v_lshl_add_u32 v6, v20, 4, v18")
    k.e("v_xor_b32 v20, 8, v20")
    k.e("v_lshl_add_u32 v7, v20, 4, v18")
    k.e(f"v_add_u32 v7, {8192-1024}, v7")
    k.e(f"v_add_u32 v8, {2*(8192-1024)}, v6")
    k.e(f"v_add_u32 v9, {2*(8192-1024)}, v7")
    k.e("s_add_u32 s36, s2, 1")
    k.e("s_and_b32 s62, s36, 3")
    k.e("s_lshl_b32 s31, s62, 14")
    k.e("s_lshl_b32 s32, s62, 20")

def p4_setup2(k):
    k.e("v_bfe_u32 v20, v1, 2, 2")
    k.e("v_lshl_add_u32 v18, v19, 2, v20")
    k.e("v_and_b32 v20, 7, v18")
    k.e("v_lshlrev_b32 v18, 8, v18")
    k.e("s_lshr_b32 s36, s28, 2")
    k.e("s_lshl_b32 s36, s36, 15")
    k.e("s_add_u32 s36, s36, 65536")
    k.e("v_add_u32 v18, s36, v18")
    k.e("v_and_b32 v21, 3, v1")
    k.e("v_lshl_add_u32 v18, v21, 3, v18")
    for cb in range(8):
        k.e(f"v_xor_b32 v21, {cb}, v20")
        k.e(f"v_lshl_add_u32 v{50+cb}, v21, 5, v18")
    k.e(zero(A.O_, 64))

def ctx_ready(k, n, pre=None):
    l, le, lc = k.newlabel("cspin"), k.newlabel("cspinx"), k.newlabel("cchk")
    L = ["s_mov_b32 s61, 0x40000"]
    if pre is not None: L += [f"s_waitcnt vmcnt({pre})", f"s_branch {lc}"]
    return L + [l + ":", "s_sub_u32 s61, s61, 1", f"s_cbranch_scc1 {le}",
            "global_load_dword v59, v58, s[90:91] sc1", "s_waitcnt vmcnt(0)", lc + ":", "v_cmp_le_u32 vcc, 4, v59", "s_nop 0",
            "s_and_b32 s60, vcc_lo, 15", f"s_and_b32 s36, s60, {(1<<n)-1}", f"s_cmp_eq_u32 s36, {(1<<n)-1}", f"s_cbranch_scc1 {le}",
            "s_sleep 6", f"s_branch {l}", le + ":"]

def p4_pieces(k, cfg, tops):
    def wdma(stage, h):
        L = [[f"s_add_u32 m0, s34, {(stage^1)*65536 + h*16384}"]]
        L += [[VM(f"buffer_load_dwordx4 v{6+j}, s[8:11], s32 offen offset:{j*1024} lds", ("W", stage, h))] for j in range(4)]
        L.append([f"s_add_u32 s32, s32, {64*2048}"] if h == 0 else [f"s_add_u32 s32, s32, {192*2048}", "s_and_b32 s32, s32, 0x3fffff"])
        return L
    def xld(xs, s_):
        return [VM(f"buffer_load_dwordx4 {v(XF4[xs]+(s_*2+rb)*4,4)}, v{2+rb}, s[4:7], s31 offen offset:{s_*1024}{SC}", ("x", xs, s_)) for rb in range(2)]
    def wrd(s_, cb):
        return [DS(f"ds_read_b64_tr_b16 {v(WR4+4*cb+2*t,2)}, v{50+cb} offset:{(32*s_+16*t)*256}", ("w", cb)) for t in range(2)]
    xadv = ["s_add_u32 s31, s31, 8192", "s_and_b32 s31, s31, 0xffff"]
    nopw = lambda L: [g + (["s_nop 0"] if i == 0 else []) for i, g in enumerate(L)]
    prow0 = ["s_mov_b32 s34, s33"] + [nopw(wdma(t, h)) for t in range(2) for h in range(2)]
    prox = [xld(0, s_) for s_ in range(4)] + xadv
    D = 6
    pro2 = [wrd(0, cb) for cb in range(D)] + ["s_mov_b32 s35, 0", Need("vm", [("x", 0, int(cfg.get("xw", 3)))])] + [xld(1, s_) for s_ in range(3)]
    body = []
    for stage in range(2):
        for hh in range(2):
            M, fills, pre = [], [[] for _ in range(32)], {}
            for s_ in range(2*hh, 2*hh+2):
                for cb in range(8):
                    for rb in range(2):
                        o = A.Oreg(rb, cb)
                        M.append(f"{MF} {v(o,4)}, {v(WR4+4*cb,4)}, {v(XF4[stage]+(s_*2+rb)*4,4)}, {v(o,4)}")
            for p in range(16):
                if p % 2 == 0: pre[2*p] = [Need("ds", [("w", p % 8), ("w", (p+1) % 8)])]
                if p % 8 == 0: pre[2*p] += [Need("vm", [("x", stage, 2*hh + p // 8)])]
                f = p + D
                if f < 16:
                    r = wrd(2*hh + f // 8, f % 8)
                    fills[2*p] += [r[0]]; fills[2*p+1] += [r[1]]
                    if hh == 1 and f >= 8: fills[2*p+1] += [f"v_xor_b32 v{50+f%8}, 65536, v{50+f%8}"]
            if hh == 0: pre[0] = [tops[stage]] + pre[0]
            ev = []
            if stage == 1 and hh == 1:
                chk = switch(k, "s35", [(0, ctx_ready(k, 3, 8)), (1, ctx_ready(k, 4, 8))])
                ev = [Alt(A.ool(k, ["s_cmp_lt_u32 s60, 15"], "s_cbranch_scc1", chk), lambda c: [])]
            if stage == 1 and hh == 0:
                ev = [Alt(A.ool(k, ["s_cmp_lt_u32 s60, 15"], "s_cbranch_scc1", ["global_load_dword v59, v58, s[90:91] sc1"]), lambda c: [])]
            nxt = (stage, 1) if hh == 0 else (stage ^ 1, 0)
            fills[2*11+1] += ev + ["s_waitcnt lgkmcnt(0)", Need("vm", [("W",) + nxt, "yp" if (stage, hh) == (1, 1) else None]), "s_barrier"]
            nx = {12: [0, 1], 13: [2, 3], 14: [4], 15: [5]}
            for p, fl in nx.items():
                for i, f in enumerate(fl): fills[2*p+i] += wrd(2*nxt[1], f)
            wpos = {"0": [25, 26, 28, 30, 31, 31], "1": [24, 25, 27, 29, 31, 31]}[cfg.get("wp", "0")]
            for i, g in enumerate(wdma(stage, hh)): fills[wpos[i]] += g
            xp = {"0": [3, 9, 17, 21], "1": [5, 11, 17, 22], "2": [1, 3, 17, 19]}[cfg.get("xp", "0")]
            for i in range(2):
                s_ = 2*hh + i
                xl = xld(stage ^ 1, 3) if s_ == 0 else xld(stage, s_-1)
                fills[xp[2*i]] += [xl[0]]; fills[xp[2*i+1]] += [xl[1]]
                if s_ == 0:
                    fills[xp[1]] += xadv
                    if stage == 0:
                        fills[xp[1]+1] += ["s_cmp_lt_u32 s35, 3", "s_cselect_b32 s6, 16777216, 0", "s_cselect_b32 s10, 8388608, 0"]
                        fills[xp[1]+2] += ["s_cmp_lt_u32 s35, 3", "s_cselect_b32 s34, s33, 0x20000"]
                    else:
                        fills[xp[1]+2] += ["s_cmp_lt_u32 s35, 3", "s_cselect_b32 s34, s33, 0x30000"]
            body += weave(M, fills, pre)
            if hh == 1: body += cfg["sth4"].hist(8, first=(stage == 0))
    return prow0, prox, pro2, body

def routed(k, part):
    if part == 0:
        k.e([f"s_add_u32 s36, s30, {CNT_F2}", "s_lshl_b32 s36, s36, 7", "v_mov_b32 v60, s36", "global_load_dword v61, v60, s[90:91] sc1"])
        return
    if part == 1:
        k.e("s_waitcnt vmcnt(16)")
        emit(k, check(k, "s[90:91]", "v60", "v61", 16, 1))
        k.e(["s_lshl_b32 s37, s30, 8", f"s_add_u32 s36, s37, {WS_YP}", "s_add_u32 s37, s36, 4096",
             "v_and_b32 v60, 15, v1", "v_lshlrev_b32 v60, 13, v60", "v_lshl_add_u32 v60, v19, 4, v60"])
        for t in range(2):
            for cb in range(4):
                k.e(f"buffer_load_dwordx4 {v(96+16*t+4*cb,4)}, v60, s[24:27], s{36+t} offen offset:{cb*64}{SC}")
        return
    k.e(zero(YA, 16))
    k.e("s_waitcnt vmcnt(16)")
    for t in range(2):
        lsk = k.newlabel("noy")
        R = 96 + 16*t
        k.e(f"s_sub_u32 s36, s{56+t}, s38")
        k.e("s_cmp_lt_u32 s36, 16")
        k.e(f"s_cbranch_scc0 {lsk}")
        k.e(f"s_and_b32 s36, s{58+t}, 0xffff0000")
        k.e("s_cmp_lt_i32 s36, 0")
        k.e("s_cselect_b32 s37, 0x80000000, -1")
        k.e("s_xor_b32 s36, s36, s37")
        k.e("s_and_b32 s36, s36, 0xffff0000")
        k.e("v_mov_b32 v62, s36")
        k.e("v_mul_f32 v62, 0xbfb8aa3b, v62")
        k.e("v_exp_f32 v62, v62")
        k.e("s_nop 0")
        k.e("v_add_f32 v62, 1.0, v62")
        k.e("v_rcp_f32 v62, v62")
        k.e("s_nop 0")
        rbf(k, "v62")
        for m in ["quad_perm:[1,0,3,2]", "quad_perm:[2,3,0,1]", "row_half_mirror", "row_mirror"]:
            for r in range(16):
                k.e(f"v_add_f32_dpp v{R+r}, v{R+r}, v{R+r} {m} row_mask:0xf bank_mask:0xf")
        k.e(f"v_cmp_eq_u32 vcc, s{56+t}, v14")
        for r in range(0, 16, 2):
            for rep in range(2):
                k.e(f"v_cvt_pk_bf16_f32 v63, v{R+r}, v{R+r+1}")
                k.e(f"v_lshlrev_b32 v{R+r}, 16, v63")
                k.e(f"v_and_b32 v{R+r+1}, 0xffff0000, v63")
                if rep == 0: k.e(pkmul(R+r, 2, 62))
            k.e(f"v_cndmask_b32 v{YA+r}, v{YA+r}, v{R+r}, vcc")
            k.e(f"v_cndmask_b32 v{YA+r+1}, v{YA+r+1}, v{R+r+1}, vcc")
        k.label(lsk)

def p4_epilogue(k, cfg, kh):
    o = 1 - kh
    for cb in range(4): k.e(f"ds_read_b64 {v(XI+2*cb,2)}, v17 offset:{cb*32}")
    for cb in range(8): k.e(f"ds_write_b128 v20, {v(A.Oreg(o,cb),4)} offset:{cb*1024}")
    k.e("s_waitcnt lgkmcnt(0)")
    k.e("s_barrier")
    for cb in range(8): k.e(f"ds_read_b128 {v(128+4*cb,4)}, v21 offset:{cb*1024}")
    for cb in range(8):
        k.e(f"s_waitcnt lgkmcnt({7-cb})")
        for e in (0, 2): k.e(f"v_pk_add_f32 {v(128+4*cb+e,2)}, {v(128+4*cb+e,2)}, {v(A.Oreg(kh,cb)+e,2)}")

RT = ["s_sub_u32 s36, s56, s38", "s_sub_u32 s37, s57, s38", "s_min_u32 s36, s36, s37", "s_cmp_lt_u32 s36, 16"]
def ex_addr():
    return ["s_lshl_b32 s36, s2, 15", "s_lshl_b32 s37, s28, 12", "s_add_u32 s36, s36, s37", f"s_add_u32 s36, s36, {WS_EX}"]

def p4_final(k, cfg):
    l1 = k.newlabel("p1")
    k.e("s_cmp_eq_u32 s63, 0")
    k.e(f"s_cbranch_scc1 {l1}")
    for r in range(16): k.e(f"v_swap_b32 v{128+r}, v{144+r}")
    k.label(l1)
    k.e(ex_addr())
    k.e(f"s_xor_b32 s39, s36, {32 << 15}")
    k.e("v_lshlrev_b32 v22, 4, v1")
    for cb in range(4):
        k.e(f"buffer_store_dwordx4 {v(144+4*cb,4)}, v22, s[24:27], s36 offen offset:{cb*1024}{SC}")
    k.e(f"s_add_u32 s40, s2, {CNT_EX}")
    k.e("s_lshl_b32 s40, s40, 7")
    k.e(f"s_xor_b32 s37, s40, {32 << 7}")
    k.e("v_mov_b32 v5, s37")
    cfg["st5"].mark()
    gs = int(cfg.get("gs", 2))
    exm = cfg.get("exm", "0")
    def mkflag():
        if exm == "0": return ["s_waitcnt vmcnt(0)"] + signal("s[90:91]", "s40", "v4", "v13")[:-1]
        l = k.newlabel("fl")
        op = f"global_store_dword v4, v13, s[90:91]{SC}" if exm == "1" else "global_atomic_add v4, v13, s[90:91]"
        return ["s_waitcnt vmcnt(0)", "s_barrier", "s_cmp_eq_u32 s28, 0", f"s_cbranch_scc0 {l}", "v_mov_b32 v4, s40", "v_mov_b32 v13, 8",
                "s_mov_b64 exec, 1", op, "s_mov_b64 exec, -1", l + ":"]
    lr, lb = k.newlabel("gy"), k.newlabel("gyb")
    A.OOL.append([lr + ":"] + lines(gcalc, True, range(gs)) + mkflag() + lines(gcalc, True, range(gs, 4)) + [f"s_branch {lb}"])
    emit(k, RT + [f"s_cbranch_scc1 {lr}"])
    gcalc(k, False, range(gs))
    emit(k, mkflag())
    gcalc(k, False, range(gs, 4))
    k.label(lb)
    cfg["st5"].mark()
    emit(k, A.ool(k, [f"s_cmp_eq_u32 s28, {cfg.get('exp', 7)}"], "s_cbranch_scc1", spin(k, "s[90:91]", "v5", "v23", 8, int(cfg.get("exs", 1)))))
    k.e("s_barrier")
    cfg["st5"].mark()
    for cb in range(4): k.e(f"buffer_load_dwordx4 {v(64+4*cb,4)}, v22, s[24:27], s39 offen offset:{cb*1024}{SC}")
    for cb in range(4):
        k.e(f"s_waitcnt vmcnt({3-cb})")
        for h in range(2):
            a, b = 128+4*cb+2*h, 128+4*cb+2*h+1
            k.e(f"v_pk_add_f32 {v(a,2)}, {v(a,2)}, {v(64+4*cb+2*h,2)}")
            def rnd2():
                k.e(f"v_cvt_pk_bf16_f32 v23, v{a}, v{b}")
                k.e(f"v_lshlrev_b32 v{a}, 16, v23")
                k.e(f"v_and_b32 v{b}, 0xffff0000, v23")
            rnd2()
            k.e(f"v_pk_mul_f32 {v(a,2)}, {v(a,2)}, {v(G+4*cb+2*h,2)}")
            rnd2()
            k.e(f"v_pk_add_f32 {v(a,2)}, {v(a,2)}, {v(X32+4*cb+2*h,2)}")
            k.e(f"v_cvt_pk_bf16_f32 v{80+2*cb+h}, v{a}, v{b}")
        k.e(f"ds_write_b64 v17, {v(80+2*cb,2)} offset:{cb*32}")
    k.e("v_add_u32 v22, s42, v22")
    k.e(f"s_mov_b32 s36, {8*2048}")
    k.e("s_waitcnt lgkmcnt(0)")
    k.e("ds_read_b128 v[64:67], v22")
    k.e("ds_read_b128 v[68:71], v22 offset:1024")
    k.e("s_waitcnt lgkmcnt(1)")
    k.e(f"buffer_store_dwordx4 v[64:67], v15, s[20:23], 0 offen {cfg.get('ofl', '')}")
    k.e("s_waitcnt lgkmcnt(0)")
    k.e(f"buffer_store_dwordx4 v[68:71], v15, s[20:23], s36 offen {cfg.get('ofl', '')}")

def p4(k, cfg, st):
    kx = K("tmp")
    kx.e(["s_lshl_b32 s36, s29, 7", "s_and_b32 s37, s28, 3", "s_lshl_b32 s37, s37, 5", "s_add_u32 s36, s36, s37",
          "s_lshr_b32 s37, s28, 2", "s_lshl_b32 s37, s37, 4", "s_add_u32 s38, s36, s37",
          "v_and_b32 v17, 15, v1", "v_add_u32 v14, s38, v17", "v_lshlrev_b32 v16, 3, v14",
          "v_lshrrev_b32 v15, 3, v1", "v_add_u32 v15, s38, v15", "v_lshlrev_b32 v15, 11, v15", "v_and_b32 v4, 7, v1",
          "v_lshl_add_u32 v15, v4, 4, v15", "s_lshl_b32 s36, s30, 7", "v_add_u32 v15, s36, v15",
          "s_lshl_b32 s36, s28, 12", f"s_add_u32 s42, s36, {LDS_X}", "v_lshl_add_u32 v17, v17, 7, s42", "v_lshl_add_u32 v17, v19, 3, v17"])
    xl = ["s_mov_b32 m0, s42", f"s_mov_b32 s36, {8*2048-1024}", VM("buffer_load_dwordx4 v15, s[16:19], 0 offen lds"),
          VM("buffer_load_dwordx4 v15, s[16:19], s36 offen offset:1024 lds"),
          f"s_mov_b32 s36, {WS_ST}", VM(f"buffer_load_dwordx2 {v(XI+8,2)}, v16, s[24:27], s36 offen{SC}")]
    n_ctx = Need("vm", ["ctxst"])
    sig = ["v_mov_b32 v26, s40", "v_mov_b32 v28, 1", "v_writelane_b32 v26, s41, 1",
           "s_mov_b64 exec, 3", "global_atomic_add v26, v28, s[90:91]", "s_mov_b64 exec, -1"]
    sigA = Alt(A.ool(k, ["s_cmp_eq_u32 s28, 0"], "s_cbranch_scc1", sig), lambda c: sig if c["w0"] else [])
    redA = guard(k, ["s_cmp_lt_u32 s28, 4"], "s_cbranch_scc0", ffn2_reduce(), "lo")
    f2 = ["s_and_b32 s36, s2, 15", f"s_add_u32 s36, s36, {CNT_F2}", "s_lshl_b32 s36, s36, 7"] + signal("s[90:91]", "s36", "v26", "v27")
    f2A = guard(k, ["s_cmp_eq_u32 s28, 0"], "s_cbranch_scc0", f2, "w0")
    def rt(part):
        kr = K(k.name + f"_rt{part}"); routed(kr, part)
        lrt = k.newlabel("nrt")
        return Alt(RT + [f"s_cbranch_scc0 {lrt}"] + [x.strip() for x in kr.lines] + [lrt + ":"], lambda c: [])
    ev0 = {1: [f2A], 2: [rt(0)], 3: [rt(2)] + xl}
    ev1 = {2: [rt(1)]}
    if "4" in cfg.get("cpf", ""):
        ev1[2] = [guard(k, ["s_cmp_eq_u32 s28, 0"], "s_cbranch_scc0", ["s_mov_b32 s43, s38"] + code_touch(k, 4, "v63") + ["s_mov_b32 s38, s43"], "w0")] + ev1[2]
    tops = [Alt(A.ool(k, ["s_cmp_lg_u32 s35, 0"], "s_cbranch_scc1", switch(k, "s35", sorted(ev0.items()))), lambda c: ev0.get(c["it"])),
            Alt(A.ool(k, ["s_cmp_eq_u32 s35, 2"], "s_cbranch_scc1", switch(k, "s35", sorted(ev1.items()))), lambda c: ev1.get(c["it"]))]
    prow0, prox, pro2, body = p4_pieces(k, cfg, tops)
    n_w0 = Need("vm", [("W", 0, 0)])
    scen = []
    for w0, lo, n7 in ((1, 1, 1), (0, 1, 1), (0, 0, 1), (0, 0, 0)):
        c = dict(w0=w0, lo=lo, n7=n7, it=0)
        sq = flat([VM("", "ctxst"), n_ctx, sigA, prow0, n_w0, prox, redA, pro2], c)
        for it in range(4): sq += flat([body], dict(c, it=it))
        scen.append(sq)
    resolve(scen)
    k.e("s_and_b32 s36, s2, 7")
    k.e("s_lshl_b32 s36, s36, 2")
    k.e(f"s_sub_u32 s40, {15+CNT_CTX}, s30")
    k.e("s_lshl_b32 s40, s40, 7")
    k.e("s_add_u32 s40, s40, s36")
    k.e(f"s_add_u32 s41, s30, {CNT_CTX}")
    k.e("s_lshl_b32 s41, s41, 7")
    k.e("s_add_u32 s41, s41, s36")
    p4_setup(k)
    emit(k, [n_ctx, "s_barrier", sigA])
    st.mark()
    lm, lm1, lm2 = k.newlabel("f2m"), k.newlabel("f2a"), k.newlabel("f2b")
    A.OOL.append([lm + ":"] + lines(ffn2_math) + ["s_cmp_lt_u32 s28, 4", f"s_cbranch_scc1 {lm2}", f"s_branch {lm1}"])
    k.e("s_bitcmp1_b32 0x70, s28")
    k.e(f"s_cbranch_scc1 {lm}")
    k.label(lm1)
    emit(k, prow0)
    k.e("s_cmp_lt_u32 s28, 4")
    k.e(f"s_cbranch_scc1 {lm}")
    k.label(lm2)
    srd(k, 4, 54, 16777216, WS_CTX)
    srd(k, 16, 96, 4194304)
    srd(k, 20, 98, 4194304)
    k.lines += kx.lines
    p4_setup2(k)
    k.e("s_mov_b32 s60, 15")
    lj = k.newlabel("w7j")
    k.e(f"s_cmp_eq_u32 s28, {cfg.get('pw', 3)}")
    k.e(f"s_cbranch_scc0 {lj}")
    k.e("v_add_u32 v58, s62, v1")
    k.e("v_and_b32 v58, 3, v58")
    k.e(f"s_add_u32 s36, s29, {CNT_CTX}")
    k.e("s_lshl_b32 s36, s36, 7")
    k.e("s_lshl_b32 s37, s63, 4")
    k.e("s_add_u32 s36, s36, s37")
    k.e("v_lshl_add_u32 v58, v58, 2, s36")
    emit(k, ctx_ready(k, int(cfg.get("rdy0", 2))))
    k.label(lj)
    emit(k, [n_w0])
    k.e("s_waitcnt lgkmcnt(0)")
    st.mark()
    k.e("s_barrier")
    st.mark()
    emit(k, prox)
    emit(k, [redA])
    k.e("s_lshl_b32 s36, s28, 13")
    k.e("s_add_u32 s36, s36, 65536")
    k.e("v_lshl_add_u32 v20, v1, 4, s36")
    k.e("v_xor_b32 v21, 32768, v20")
    emit(k, pro2)
    st.mark()
    if cfg.get("p4prio"):
        emit(k, ["s_cmp_lt_u32 s28, 4", "s_cbranch_scc1 L_p4_np", "s_setprio 1", "L_p4_np:"])
    k.align(6)
    k.label("L_p4_loop")
    emit(k, body)
    k.e("s_add_u32 s35, s35, 1")
    k.e("s_cmp_lt_u32 s35, 4")
    k.e("s_cbranch_scc1 L_p4_loop")
    st.mark()
    k.e("s_waitcnt vmcnt(0) lgkmcnt(0)")
    k.e("s_nop 3")
    k.e("s_cmp_lt_u32 s28, 4")
    k.e("s_cbranch_scc0 L_p4_e1")
    p4_epilogue(k, cfg, 0)
    k.e("s_branch L_p4_done")
    k.label("L_p4_e1")
    p4_epilogue(k, cfg, 1)
    k.label("L_p4_done")
    st.mark()
    cfg["st5"].mark()
    p4_final(k, cfg)
    cfg["st5"].mark()

def gen_fused(cfg, name):
    cfg = dict(cfg, stflag=SC, pro_hook=pro_hook, pro_wait=pro_wait, bar_hook=bar_hook, b_hook=b_hook, before_merge=before_merge, share=1)
    CFG.update(cfg)
    Z64[0] = not cfg.get("noz64")
    k = K(name)
    k.e("s_cmp_ge_u32 s2, 256")
    k.e("s_cbranch_scc1 L_end")
    stq = cfg.get("stamp", "")
    st = Stamps(k, bool(stq), kid=0)
    off = Stamps(k, False)
    st.mark()
    cfg["sth4"] = st if "d" in stq else off
    cfg["st5"] = st if "5" in stq else off
    cfg["sth1"] = st if "a" in stq else off
    cfg["sth2"] = st if "b" in stq else off
    p1(k, cfg, st if "1" in stq else off)
    if "b" in stq: st.mark()
    p2(k, cfg, st if "2" in stq else off)
    k.e("s_load_dwordx2 s[32:33], s[0:1], 40")
    k.e("s_load_dwordx2 s[34:35], s[0:1], 80")
    k.e("s_load_dwordx2 s[96:97], s[0:1], 0")
    k.e("s_load_dwordx2 s[98:99], s[0:1], 88")
    s3 = st if "3" in stq else off
    k.e("s_cmp_lt_u32 s28, 4")
    k.e("s_cbranch_scc0 L_grp1")
    A.gen_p3(k, cfg, 0, s3, after_q, before_tail)
    k.e("s_branch L_p3_done")
    A.flush_ool(k)
    k.label("L_grp1")
    A.gen_p3(k, cfg, 1, s3, after_q, before_tail)
    k.e("s_branch L_p3_done")
    A.flush_ool(k)
    k.label("L_p3_done")
    st.mark()
    k.e("s_waitcnt vmcnt(4)")
    p4(k, cfg, st if "4" in stq else off)
    st.dump(54, "s28")
    if cfg.get("stdbg"):
        k.e("s_lshl_b32 s36, s28, 8"); k.e("s_add_u32 s36, s36, s2")
        k.e(f"s_cmp_eq_u32 s36, {cfg['stdbg']}"); k.e("s_cbranch_scc0 L_end")
        k.e("v_mov_b32 v2, 0"); k.e("s_mov_b64 exec, 1")
        for i in range(1, st.n):
            k.e(f"s_sub_u32 s36, s{st.base+2*i+1}, s{st.base+1}")
            k.e("v_mov_b32 v3, s36")
            k.e(f"global_store_dword v2, v3, s[88:89] offset:{4*i}")
    k.e("s_endpgm")
    A.flush_ool(k)
    k.label("L_end")
    return wrap(k, 256)
```

```python
from common import *
import attn as A
import ffn as F

WS_CNT = 59 << 20
CNT_KV, CNT_CTX, CNT_F1, CNT_F2, CNT_KV0, CNT_EX, CNT_LN = 0, 32, 48, 96, 64, 128, 112
WS_EX = 64 << 20
SC = " sc1"
LDS_X = 131072

def NT(cfg, key):
    return " nt" if key in cfg.get("nt", "") else ""

def lines(fn, *a, **kw):
    t = K("tmp"); fn(t, *a, **kw); return [x.strip() for x in t.lines]

def signal(saddr_pair, off, t0, t1):
    return [f"v_mov_b32 {t0}, {off}", f"v_mov_b32 {t1}, 1", "s_mov_b64 exec, 1",
            f"global_atomic_add {t0}, {t1}, {saddr_pair}", "s_mov_b64 exec, -1", "s_nop 3"]

def switch(k, sreg, cases):
    L = []
    lend = k.newlabel("swend")
    for i, (val, items) in enumerate(cases):
        if i + 1 < len(cases):
            ln = k.newlabel("swn")
            L += [f"s_cmp_eq_u32 {sreg}, {val}", f"s_cbranch_scc0 {ln}"] + items + [f"s_branch {lend}", ln + ":"]
        else:
            L += items
    return L + [lend + ":"]

def guard(k, cond, br, items, key):
    l = k.newlabel("g")
    return Alt(cond + [f"{br} {l}"] + items + [l + ":"], lambda c: items if c[key] else [])

def spin(k, saddr, voff, vtmp, target, slp=8):
    l, le = k.newlabel("spin"), k.newlabel("spinx")
    return ["s_mov_b32 s61, 0x40000", l + ":", "s_sub_u32 s61, s61, 1", f"s_cbranch_scc1 {le}", f"s_sleep {slp}",
            f"global_load_dword {vtmp}, {voff}, {saddr} sc1", "s_waitcnt vmcnt(0)",
            f"v_readfirstlane_b32 s36, {vtmp}", "s_nop 0", f"s_cmp_lt_u32 s36, {target}", f"s_cbranch_scc1 {l}", le + ":"]

def check(k, saddr, voff, vtmp, target, slp=8):
    return A.ool(k, [f"v_readfirstlane_b32 s36, {vtmp}", "s_nop 0", f"s_cmp_lt_u32 s36, {target}"], "s_cbranch_scc1",
                 spin(k, saddr, voff, vtmp, target, slp))

def ln_check(k):
    l, le = k.newlabel("lspin"), k.newlabel("lspinx")
    return ["s_mov_b32 s61, 0x40000", l + ":", "v_cmp_gt_u32 vcc, 16, v116", "s_nop 0", "s_cmp_eq_u64 vcc, 0",
            f"s_cbranch_scc1 {le}", "s_sub_u32 s61, s61, 1", f"s_cbranch_scc1 {le}", "s_sleep 8",
            "global_load_dword v116, v117, s[90:91] sc1", "s_waitcnt vmcnt(0)", f"s_branch {l}", le + ":"]

def ln_row(X, XO, WR, Fr, T, SB, srow, sslot):
    k = K("t")
    t = [f"v{T+i}" for i in range(8)]
    for i in range(8):
        k.e(f"v_lshlrev_b32 v{Fr+2*i}, 16, v{X+i}")
        k.e(f"v_and_b32 v{Fr+2*i+1}, 0xffff0000, v{X+i}")
    k.e(f"v_add_f32 {t[0]}, v{Fr}, v{Fr+1}")
    for i in range(2, 16): k.e(f"v_add_f32 {t[0]}, {t[0]}, v{Fr+i}")
    wave_sum(k, t[0], t[1], SB)
    k.e(f"v_mul_f32 {t[1]}, 0x3a800000, {t[1]}")
    k.e(f"v_sub_f32 {t[2]}, v{Fr}, {t[1]}")
    k.e(f"v_mul_f32 {t[0]}, {t[2]}, {t[2]}")
    for i in range(1, 16):
        k.e(f"v_sub_f32 {t[2]}, v{Fr+i}, {t[1]}")
        k.e(f"v_fmac_f32 {t[0]}, {t[2]}, {t[2]}")
    wave_sum(k, t[0], t[2], SB)
    k.e(f"v_mul_f32 {t[2]}, 0x3a800000, {t[2]}")
    k.e(f"v_cvt_pk_bf16_f32 {t[3]}, {t[1]}, {t[2]}")
    k.e(f"v_lshlrev_b32 {t[6]}, 16, {t[3]}")
    k.e(f"v_and_b32 {t[2]}, 0xffff0000, {t[3]}")
    k.e(f"v_add_f32 {t[2]}, 0x3727c5ac, {t[2]}")
    rbf(k, t[2])
    k.e(f"v_sqrt_f32 {t[2]}, {t[2]}")
    k.e("s_nop 0")
    rbf(k, t[2])
    k.e(f"v_rcp_f32 {t[7]}, {t[2]}")
    k.e("s_nop 0")
    k.e(f"v_fma_f32 {t[4]}, -{t[2]}, {t[7]}, 1.0")
    k.e(f"v_fma_f32 {t[7]}, {t[4]}, {t[7]}, {t[7]}")
    for i in range(8):
        a, b = f"v{Fr+2*i}", f"v{Fr+2*i+1}"
        k.e(f"v_sub_f32 {a}, {a}, {t[6]}")
        k.e(f"v_sub_f32 {b}, {b}, {t[6]}")
        k.e(f"v_cvt_pk_bf16_f32 {t[4]}, {a}, {b}")
        k.e(f"v_lshlrev_b32 {a}, 16, {t[4]}")
        k.e(f"v_and_b32 {b}, 0xffff0000, {t[4]}")
        k.e(f"v_mul_f32 {a}, {a}, {t[7]}")
        k.e(f"v_mul_f32 {b}, {b}, {t[7]}")
        k.e(f"v_cvt_pk_bf16_f32 v{XO+i}, {a}, {b}")
        k.e(f"v_lshlrev_b32 {a}, 16, v{XO+i}")
        k.e(f"v_and_b32 {b}, 0xffff0000, v{XO+i}")
        if i == 0: k.e(f"v_mul_f32 {t[0]}, {a}, v{WR}")
        else: k.e(f"v_fmac_f32 {t[0]}, {a}, v{WR+2*i}")
        k.e(f"v_fmac_f32 {t[0]}, {b}, v{WR+2*i+1}")
    k.e(f"s_mul_i32 s{SB}, {sslot}, 2064")
    k.e(f"s_add_u32 s{SB}, s{SB}, {LDS_X}")
    k.e(f"v_lshl_add_u32 {t[3]}, v1, 4, s{SB}")
    k.e(f"ds_write_b128 {t[3]}, {v(XO,4)}")
    k.e(f"ds_write_b128 {t[3]}, {v(XO+4,4)} offset:1024")
    wave_sum(k, t[0], t[1], SB)
    rbf(k, t[1])
    k.e(f"v_ashrrev_i32 {t[3]}, 31, {t[1]}")
    k.e(f"v_or_b32 {t[3]}, 0x80000000, {t[3]}")
    k.e(f"v_xor_b32 {t[3]}, {t[1]}, {t[3]}")
    k.e(f"v_and_b32 {t[3]}, 0xffff0000, {t[3]}")
    k.e(f"s_sub_u32 s{SB}, 0xffff, {srow}")
    k.e(f"v_or_b32 {t[3]}, s{SB}, {t[3]}")
    k.e(f"s_lshl_b32 s{SB+1}, {sslot}, 3")
    k.e(f"s_add_u32 s{SB+1}, s{SB+1}, {LDS_X + 16640}")
    k.e(f"v_mov_b32 {t[2]}, s{SB+1}")
    k.e(f"ds_write_b64 {t[2]}, {v(T+6,2)}")
    k.e(f"ds_write_b32 {t[2]}, {t[3]} offset:64")
    return [x.strip() for x in k.lines]

def zip2(a, b):
    out = []
    for x, y in zip(a, b):
        if x == "s_nop 0": continue
        if x == "s_nop 1": out.append("s_nop 0"); continue
        out += [x, y]
    return out

def ln_part3(T):
    t = [f"v{T+i}" for i in range(8)]
    L = [f"v_and_b32 {t[0]}, 7, v1", f"v_lshlrev_b32 {t[0]}, 3, {t[0]}", f"v_add_u32 {t[1]}, {LDS_X + 16640}, {t[0]}",
         f"ds_read_b64 {v(T+2,2)}, {t[1]}", f"ds_read_b32 {t[4]}, {t[1]} offset:64",
         "s_lshl_b32 s36, s2, 6", f"s_add_u32 s36, s36, {WS_ST}", "s_lshl_b32 s37, s2, 3", f"s_add_u32 s37, s37, {F.WS_KEY}",
         "s_waitcnt lgkmcnt(0)", f"v_mov_b32 {t[6]}, {t[4]}"]
    red = lambda x: flat([["s_nop 1", f"v_max_u32_dpp {x}, {x}, {x} {m} row_mask:0xf bank_mask:0xf"]
                          for m in ("quad_perm:[1,0,3,2]", "quad_perm:[2,3,0,1]", "row_half_mirror")])
    L += red(t[6]) + [f"v_cmp_eq_u32 vcc, {t[6]}, {t[4]}", "s_nop 1", f"v_cndmask_b32 {t[7]}, {t[4]}, v118, vcc"] + red(t[7])
    L += ["s_mov_b64 exec, 0xff", f"buffer_store_dwordx2 {v(T+2,2)}, {t[0]}, s[24:27], s36 offen{SC}",
          "s_mov_b64 exec, 1", f"buffer_store_dwordx2 {v(T+6,2)}, {t[0]}, s[24:27], s37 offen{SC}", "s_mov_b64 exec, -1", "s_nop 3"]
    return L

def ln_part2(k, X, T):
    t = [f"v{T+i}" for i in range(8)]
    k.e(f"v_and_b32 {t[0]}, 7, v1")
    k.e(f"v_lshrrev_b32 {t[1]}, 3, v1")
    k.e(f"v_mul_u32_u24 {t[2]}, 2064, {t[0]}")
    k.e(f"v_lshl_add_u32 {t[2]}, {t[1]}, 4, {t[2]}")
    k.e("s_lshl_b32 s36, s28, 8")
    k.e(f"s_add_u32 s36, s36, {LDS_X}")
    k.e(f"v_add_u32 {t[2]}, s36, {t[2]}")
    k.e(f"ds_read_b128 {v(X,4)}, {t[2]}")
    k.e(f"ds_read_b128 {v(X+4,4)}, {t[2]} offset:128")
    k.e(f"v_lshlrev_b32 {t[0]}, 4, {t[0]}")
    k.e(f"v_lshl_add_u32 {t[0]}, {t[1]}, 8, {t[0]}")
    k.e("s_lshr_b32 s36, s2, 1")
    k.e("s_lshl_b32 s36, s36, 15")
    k.e("s_and_b32 s37, s2, 1")
    k.e("s_lshl_b32 s37, s37, 7")
    k.e("s_add_u32 s36, s36, s37")
    k.e("s_lshl_b32 s37, s28, 12")
    k.e("s_add_u32 s36, s36, s37")
    k.e("s_waitcnt lgkmcnt(0)")
    k.e(f"buffer_store_dwordx4 {v(X,4)}, {t[0]}, s[24:27], s36 offen{SC}")
    k.e(f"buffer_store_dwordx4 {v(X+4,4)}, {t[0]}, s[24:27], s36 offen offset:2048{SC}")

KP = 128
WF = 64
XF = [24, 96]
def xld2(xs, s_):
    return [VM(f"buffer_load_dwordx4 {v(XF[xs]+(s_*2+rb)*4,4)}, v{6+rb}, s[8:11], s32 offen offset:{s_*1024}{SC}", ("x", xs, s_)) for rb in range(2)]
vPOLL = "v56"
vZ = "v57"

def code_touch(k, a, dst):
    l = k.newlabel("pc")
    return ["s_getpc_b64 s[36:37]", l + ":", f"s_sub_u32 s36, s36, {l}-L_pc", "s_subb_u32 s37, s37, 0",
            "s_lshr_b32 s38, s2, 3", "s_lshl_b32 s38, s38, 7", f"v_lshl_add_u32 v{a}, v1, 12, s38", f"v_min_u32 v{a}, L_end-L_pc-4, v{a}",
            f"v_mov_b32 v{a+1}, s37", f"v_add_co_u32 v{a}, vcc, s36, v{a}", "s_mov_b64 exec, 0xffff", "s_nop 0",
            f"v_addc_co_u32 v{a+1}, vcc, 0, v{a+1}, vcc", f"global_load_dword {dst}, v[{a}:{a+1}], off", "s_mov_b64 exec, -1", "s_nop 1"]

def p1_retarget(cfg):
    L = ["v_lshrrev_b32 v3, 4, v1", "s_lshl_b32 s37, s28, 4", "v_add_u32 v19, s37, v3", "v_lshlrev_b32 v19, 13, v19",
         "s_lshl_b32 s37, s29, 8", "v_add_u32 v19, s37, v19", "v_and_b32 v16, 15, v1", "v_lshlrev_b32 v3, 1, v3",
         "v_xor_b32 v16, v16, v3", "v_lshl_add_u32 v2, v16, 4, v19", f"v_add_u32 v3, {32768-1024}, v2",
         "v_xor_b32 v16, 8, v16", "v_lshl_add_u32 v4, v16, 4, v19", f"v_add_u32 v4, {2*(32768-1024)}, v4",
         f"v_add_u32 v5, {32768-1024}, v4"]
    L += lines(srd, 4, 96, 8388608)
    L += ["s_mov_b32 s31, 0", f"s_mov_b32 s40, {128*8192}", "s_mov_b32 s10, 0", "s_mov_b32 s34, 0x30000"]
    return L

def p1(k, cfg, st):
    ACC = 128
    FR = [20, 68]
    XA, XB, WP, WR = 20, 28, 36, 44
    k.e("s_load_dwordx4 s[44:47], s[0:1], 0")
    k.e("s_load_dwordx2 s[52:53], s[0:1], 56")
    k.e("s_load_dwordx4 s[48:51], s[0:1], 24")
    k.e("s_getpc_b64 s[36:37]")
    k.label("L_pc")
    k.e("s_lshr_b32 s38, s2, 3")
    k.e("s_lshl_b32 s38, s38, 7")
    k.e("v_lshl_add_u32 v16, v0, 12, s38")
    k.e("v_cmp_gt_u32 vcc, L_end-L_pc-4, v16")
    k.e("v_mov_b32 v17, s37")
    k.e("s_and_b64 exec, exec, vcc")
    k.e("s_cbranch_execz L_nocpf")
    k.e("v_add_co_u32 v16, vcc, s36, v16")
    k.e("s_nop 1")
    k.e("v_addc_co_u32 v17, vcc, 0, v17, vcc")
    if not cfg.get("nocpf"): k.e("global_load_dword v119, v[16:17], off")
    k.label("L_nocpf")
    k.e("s_mov_b64 exec, -1")
    k.e("v_lshrrev_b32 v16, 6, v0")
    k.e("v_and_b32 v1, 63, v0")
    k.e("v_readfirstlane_b32 s28, v16")
    k.e("v_lshlrev_b32 v116, 4, v1")
    k.e("s_lshl_b32 s42, s2, 3")
    k.e("s_cmp_lt_u32 s28, 4")
    k.e("s_cbranch_scc1 L_nox")
    k.e("s_add_u32 s43, s42, s28")
    k.e("s_sub_u32 s42, s43, 4")
    k.e("v_lshl_add_u32 v18, s42, 11, v116")
    k.e("v_add_u32 v19, 8192, v18")
    k.e("s_waitcnt lgkmcnt(0)")
    for X_, a_ in ((XA, "v18"), (XB, "v19")):
        k.e(f"global_load_dwordx4 {v(X_,4)}, {a_}, s[44:45]{NT(cfg, 'x')}")
        k.e(f"global_load_dwordx4 {v(X_+4,4)}, {a_}, s[44:45] offset:1024{NT(cfg, 'x')}")
    k.e(f"global_load_dwordx4 {v(WP,4)}, v116, s[52:53]")
    k.e(f"global_load_dwordx4 {v(WP+4,4)}, v116, s[52:53] offset:1024")
    k.label("L_nox")
    k.e("s_load_dwordx4 s[88:91], s[0:1], 96")
    k.e("s_load_dwordx4 s[92:95], s[0:1], 64")
    k.e("s_load_dwordx2 s[96:97], s[0:1], 16")
    k.e("s_and_b32 s29, s2, 7")
    k.e("s_lshl_b32 s29, s29, 2")
    k.e("s_bfe_u32 s36, s2, 0x20003")
    k.e("s_add_u32 s29, s29, s36")
    k.e("s_lshr_b32 s30, s2, 5")
    k.e("v_lshrrev_b32 v16, 3, v1")
    k.e("s_lshl_b32 s36, s30, 8")
    k.e("s_lshl_b32 s37, s28, 5")
    k.e("s_add_u32 s36, s36, s37")
    k.e("v_add_u32 v16, s36, v16")
    k.e("v_lshlrev_b32 v16, 10, v16")
    k.e("v_lshrrev_b32 v18, 4, v1")
    k.e("v_and_b32 v19, 7, v1")
    k.e("v_xor_b32 v19, v19, v18")
    k.e("v_lshl_add_u32 v2, v19, 4, v16")
    k.e("v_xor_b32 v19, 4, v19")
    k.e("v_lshl_add_u32 v3, v19, 4, v16")
    k.e(f"v_add_u32 v3, {8192-1024}, v3")
    k.e(f"v_add_u32 v4, {2*(8192-1024)}, v2")
    k.e(f"v_add_u32 v5, {2*(8192-1024)}, v3")
    k.e("s_and_b32 s36, s28, 3")
    k.e("s_lshl_b32 s37, s36, 4")
    k.e("v_add_u32 v16, s37, v18")
    k.e("v_lshlrev_b32 v16, 13, v16")
    k.e("s_lshl_b32 s37, s29, 8")
    k.e("v_add_u32 v16, s37, v16")
    k.e("v_and_b32 v19, 15, v1")
    k.e("v_lshlrev_b32 v18, 1, v18")
    k.e("v_xor_b32 v19, v19, v18")
    k.e("v_lshl_add_u32 v6, v19, 4, v16")
    k.e(f"v_add_u32 v7, {32768-1024}, v6")
    k.e("v_xor_b32 v19, 8, v19")
    k.e("v_lshl_add_u32 v8, v19, 4, v16")
    k.e(f"v_add_u32 v8, {2*(32768-1024)}, v8")
    k.e(f"v_add_u32 v9, {32768-1024}, v8")
    k.e("s_lshl_b32 s33, s28, 12")
    k.e("s_add_u32 s34, s33, 65536")
    k.e("s_mov_b32 s31, 0")
    k.e("s_mov_b32 s32, 0")
    k.e("s_mov_b32 s40, 128")
    k.e(f"s_mov_b32 s41, {64*8192}")
    def dma_list(stage):
        c = [f"buffer_load_dwordx4 v{2+j}, s[4:7], s31 offen offset:{j*1024}{NT(cfg, 'c')} lds" for j in range(4)]
        w = [f"buffer_load_dwordx4 v{6+j}, s[8:11], s32 offen offset:{j*1024}{NT(cfg, 'w')} lds" for j in range(4)]
        return f"s_add_u32 m0, s33, {stage*32768}", c, f"s_add_u32 m0, s34, {stage*32768}", w
    def dma_both(stage):
        mc, c, mw, w = dma_list(stage)
        k.e(mc); k.e(f"s_add_u32 s36, s31, {128*1024}"); k.e(c)
        k.e(mw); k.e("s_nop 0"); k.e(w)
        k.e(f"s_add_u32 m0, s33, {stage*32768+16384}"); k.e("s_nop 0"); k.e([x.replace("s31", "s36") for x in c])
        k.e(f"s_add_u32 m0, s34, {stage*32768+16384}"); k.e("s_nop 0"); k.e([x.replace("s[8:11]", "s[20:23]") for x in w])
        k.e("s_add_u32 s31, s31, s40")
        k.e("s_add_u32 s32, s32, s41")
    def setup_rest():
        k.e(f"s_add_u32 s54, s90, {int(cfg.get('wsoff', 0)) << 20}")
        k.e("s_addc_u32 s55, s91, 0")
        srd(k, 12, 54, 33554432, WS_KV)
        srd(k, 24, 54, 80 << 20)
        k.e(f"s_add_u32 s90, s54, {WS_CNT}")
        k.e("s_addc_u32 s91, s55, 0")
        k.e("v_and_b32 v16, 15, v1")
        k.e("v_lshrrev_b32 v17, 4, v1")
        k.e("s_bfe_u32 s36, s28, 0x10001")
        k.e("s_lshl_b32 s36, s36, 14")
        k.e("v_lshl_add_u32 v18, v16, 7, s36")
        k.e("v_lshrrev_b32 v19, 1, v16")
        k.e("v_xor_b32 v19, v19, v17")
        k.e("v_lshl_add_u32 v10, v19, 4, v18")
        k.e("v_xor_b32 v19, 4, v19")
        k.e("v_lshl_add_u32 v11, v19, 4, v18")
        k.e("v_lshrrev_b32 v16, 2, v16")
        k.e("v_lshl_add_u32 v18, v17, 3, v16")
        k.e("v_lshlrev_b32 v18, 8, v18")
        k.e("s_lshr_b32 s36, s28, 2")
        k.e("s_lshl_b32 s36, s36, 14")
        k.e("s_add_u32 s36, s36, 65536")
        k.e("v_add_u32 v18, s36, v18")
        k.e("v_and_b32 v19, 3, v1")
        k.e("v_lshl_add_u32 v18, v19, 3, v18")
        k.e("v_and_b32 v17, 1, v17")
        k.e("v_lshl_add_u32 v16, v17, 2, v16")
        k.e("s_and_b32 s36, s28, 1")
        k.e("s_lshl_b32 s36, s36, 2")
        for cb in range(4):
            k.e(f"s_add_u32 s37, s36, {cb}")
            k.e("v_xor_b32 v19, s37, v16")
            k.e(f"v_lshl_add_u32 v{12+cb}, v19, 5, v18")
        k.e(zero(ACC, 128))
        k.e("v_mov_b32 v118, 0")
        k.e("v_mov_b32 v117, 0")
        k.e(["s_lshl_b32 s36, s30, 7", "s_lshl_b32 s37, s28, 4", "s_add_u32 s36, s36, s37", "v_bfe_u32 v17, v1, 1, 3",
             "v_add_u32 v17, s36, v17", "v_lshlrev_b32 v17, 13, v17", "v_and_b32 v19, 1, v1", "v_lshl_add_u32 v17, v19, 7, v17",
             "s_lshl_b32 s36, s29, 8", "v_add_u32 v17, s36, v17", f"s_mov_b32 s45, {int(cfg.get('tl', 8))//2*8192}"])
    k.e("s_waitcnt lgkmcnt(0)")
    srd(k, 4, 46, 2097152)
    srd(k, 8, 48, 4194304)
    srd(k, 20, 50, 4194304)
    k.e("s_cmp_lt_u32 s28, 4")
    k.e("s_cbranch_scc0 L_pro_s")
    emit(k, A.ool(k, ["s_cmp_eq_u32 s2, 0"], "s_cbranch_scc1",
                  ["s_mul_i32 s36, s28, 12288", f"s_add_u32 s36, s36, {WS_CNT + (int(cfg.get('wsoff', 0)) << 20)}", "v_lshl_add_u32 v16, v1, 4, s36",
                   "v_mov_b32 v108, 0", "v_mov_b32 v109, 0", "v_mov_b32 v110, 0", "v_mov_b32 v111, 0"] +
                  flat([[f"global_store_dwordx4 v16, v[108:111], s[90:91]{SC}", "v_add_u32 v16, 1024, v16"] for _ in range(12)])))
    dma_both(0)
    k.label("L_pro_s")
    st.mark()
    setup_rest()
    st.mark()
    k.e("s_cmp_lt_u32 s28, 4")
    k.e("s_cbranch_scc0 L_pro_b")
    dma_both(1)
    k.e("s_waitcnt vmcnt(16)")
    k.e("s_branch L_pro_j")
    k.label("L_pro_b")
    k.e("s_mov_b64 s[8:9], s[20:21]")
    k.e("s_mov_b32 s31, 256")
    k.e(f"s_mov_b32 s32, {2*64*8192}")
    k.e("s_and_b32 s60, s28, 3")
    if cfg.get("nodry"): k.e("s_waitcnt vmcnt(0)")
    k.e(f"s_mov_b32 s3, {0 if cfg.get('nodry') else 0xD0}")
    k.label("L_ln")
    for i in range(8):
        k.e(f"v_lshlrev_b32 v{WR+2*i}, 16, v{WP+i}")
        k.e(f"v_and_b32 v{WR+2*i+1}, 0xffff0000, v{WP+i}")
    k.e(zip2(ln_row(XA, 108, WR, 60, 92, 36, "s42", "s60"), ln_row(XB, 120, WR, 76, 100, 56, "s43", "s28")))
    k.e("s_waitcnt vmcnt(0) lgkmcnt(0)")
    k.e("s_cmp_eq_u32 s3, 0")
    k.e("s_mov_b32 s3, 0")
    k.e("s_cbranch_scc0 L_ln")
    k.label("L_pro_j")
    st.mark()
    def reads(s_, stage, fs):
        b = FR[fs]
        c = [f"ds_read_b128 {v(b+4*i,4)}, v{10+s_} offset:{stage*32768+i*2048}" for i in range(8)]
        w = [[f"ds_read_b64_tr_b16 {v(b+32+4*cb+2*t,2)}, v{12+cb} offset:{stage*32768+(32*s_+4*t)*256}" for t in range(2)] for cb in range(4)]
        return [c[0]] + w[0] + w[1] + w[2] + w[3] + c[1:]
    def accreg(i, cb, vtype):
        return ACC + ((cb*8+i) if vtype else (i*4+cb))*4
    def mfmas(fs, vtype):
        b = FR[fs]; L = []
        for i in range(8):
            for cb in range(4):
                a = accreg(i, cb, vtype)
                cf, wf = v(b+4*i, 4), v(b+32+4*cb, 4)
                Aop, Bop = (cf, wf) if vtype else (wf, cf)
                L.append(f"{MF} {v(a,4)}, {Aop}, {Bop}, {v(a,4)}")
        return L
    k.e("s_barrier")
    k.e(reads(0, 0, 0))
    emit(k, A.ool(k, ["s_add_u32 s36, s2, s28", "s_cmp_eq_u32 s36, 0"], "s_cbranch_scc1",
                  ["v_mov_b32 v19, 1", "s_mov_b64 exec, 1", "global_store_dword v118, v19, s[88:89] sc1", "s_mov_b64 exec, -1"]))
    ln_part2(k, 120, 100)
    emit(k, A.ool(k, ["s_cmp_eq_u32 s28, 7"], "s_cbranch_scc1", ln_part3(108)))
    st.mark()
    k.e("s_mov_b32 s35, 0")
    k.e("s_cmp_eq_u32 s28, 0")
    k.e("s_cselect_b32 s43, 9, 0")
    k.e("s_cselect_b32 s44, 2, 1")
    k.e("s_cmp_lt_u32 s28, 4")
    k.e("s_cbranch_scc0 L_kv_vloop")
    for vtype in range(2):
        lp = "L_kv_vloop" if vtype else "L_kv_kloop"
        k.align(6)
        k.label(lp)
        for stage in range(2):
            for s_ in range(2):
                fills = [[] for _ in range(32)]
                pre = []
                if s_ == 0:
                    k.e("s_waitcnt lgkmcnt(0)")
                    rd = reads(1, stage, 1)
                    if stage == 1 and vtype == 0:
                        fills[20] += A.ool(k, ["s_bitcmp1_b32 s43, s35"], "s_cbranch_scc1", switch(k, "s35", [
                            (0, ["global_load_dword v116, v118, s[88:89] sc1"]),
                            (3, ["v_and_b32 v117, 15, v1", f"v_add_u32 v117, {CNT_LN}, v117", "v_lshlrev_b32 v117, 7, v117",
                                 "global_load_dword v116, v117, s[90:91] sc1"])]))
                else:
                    nt = 0 if cfg.get("notouch") else 1
                    if vtype == 0 and stage == 0:
                        emit(k, A.ool(k, ["s_cmp_eq_u32 s35, 3"], "s_cbranch_scc1", p1_retarget(cfg)))
                    la, lb = k.newlabel("w0"), k.newlabel("w0b")
                    if stage == 1 and vtype == 0:
                        A.OOL.append([la + ":", "s_waitcnt vmcnt(0)"] + switch(k, "s35", [(0, check(k, "s[88:89]", "v118", "v116", 1)), (3, ln_check(k))]) + [f"s_branch {lb}"])
                        emit(k, ["s_bitcmp1_b32 s43, s35", f"s_cbranch_scc1 {la}", f"s_waitcnt vmcnt({nt})", lb + ":", "s_waitcnt lgkmcnt(0)"])
                    elif stage == 1:
                        k.e(f"s_waitcnt vmcnt({nt}) lgkmcnt(0)")
                    else:
                        A.OOL.append([la + ":"] + switch(k, "s35", [(0, ["s_waitcnt vmcnt(2)"]), (1, [f"s_waitcnt vmcnt({nt+1})"])]) + [f"s_branch {lb}"])
                        emit(k, ["s_cmp_lt_u32 s35, s44", f"s_cbranch_scc1 {la}", f"s_waitcnt vmcnt({nt})", lb + ":", "s_waitcnt lgkmcnt(0)"])
                    if nt:
                        tp = int(cfg.get("tpos", 31))
                        nl = int(cfg.get("tl", 8))
                        tl = [f"s_mov_b64 exec, {(1 << nl) - 1}", f"global_load_dword v{[119, 0][stage]}, v17, s[96:97]", "s_mov_b64 exec, -1"]
                        if stage == 1: tl += [f"s_cmp_lt_u32 s35, {-(-16 // nl) - 1}", "s_cselect_b32 s45, s45, 0"]
                        tl += ["v_add_u32 v17, s45, v17", f"v_min_u32 v17, {8388608-128}, v17"]
                        fills[tp] += tl + ["s_nop 1"]
                    if stage == 1: k.e("s_cmp_eq_u32 s35, 3")
                    k.e("s_barrier")
                    if stage == 1: k.e(f"s_cbranch_scc1 L_p1_fin{vtype}")
                    rd = reads(0, stage ^ 1, 0)
                    if stage == 1 and vtype == 0:
                        fills[30] += A.ool(k, ["s_add_u32 s36, s35, s28", "s_cmp_eq_u32 s36, 0"], "s_cbranch_scc1",
                                          ["s_lshr_b32 s36, s2, 4", f"s_add_u32 s36, s36, {CNT_LN}", "s_lshl_b32 s36, s36, 7"] + signal("s[90:91]", "s36", "v16", "v19"))
                for g in range(16): fills[g].append(rd[g])
                if s_ == 1:
                    mc, c, mw, w = dma_list(stage)
                    tail = ["s_add_u32 s31, s31, s40", "s_add_u32 s32, s32, s41"]
                    if vtype == 1:
                        pre = [mc, "s_nop 0"] + c + [mw, "s_nop 0"] + w + tail
                        if stage == 1:
                            pre += A.ool(k, ["s_cmp_eq_u32 s35, 2"], "s_cbranch_scc1", p1_retarget(cfg))
                    else:
                        fills[0].append(mc)
                        for j in range(4): fills[1+3*j].append(c[j])
                        fills[12].append(mw)
                        for j in range(4): fills[13+3*j].append(w[j])
                        fills[31] += tail
                emit(k, pre)
                emit(k, weave(mfmas(s_, vtype), fills))
                if s_ == 1: k.e(cfg["sth1"].hist(8, first=(vtype == 0 and stage == 0)))
        k.e("s_add_u32 s35, s35, 1")
        k.e(f"s_branch {lp}")
        k.label(f"L_p1_fin{vtype}")
        mc, c, mw, w = dma_list(1)
        head = lines(p2_setup) + lines(srd, 8, 54, 4194304)
        lds = flat([xld2(0, s_) for s_ in range(4)]) + [mc] + c + ["s_add_u32 s31, s31, s40", "s_add_u32 s32, s32, 4096"]
        rest = lines(p2_setup2)
        fills = [[] for _ in range(32)]
        if vtype == 1:
            emit(k, head + lds[:9] + ["s_nop 0"] + lds[9:])
        else:
            fills[0] += head
            for i, x in enumerate(lds): fills[1+2*i] += [x]
        for i, x in enumerate(rest): fills[min(2+i, 31)] += [x]
        emit(k, weave(mfmas(1, vtype), fills))
        k.e(cfg["sth1"].hist(8, first=False))
        if vtype == 0: k.e("s_branch L_p1_done")
    k.label("L_p1_done")
    if cfg.get("diag") == "mfma":
        k.e("s_mov_b32 s35, 64")
        k.label("L_diag")
        for i in range(16): k.e(f"{MF} v[{56+4*(i&1)}:{59+4*(i&1)}], {v(68+4*(i%8),4)}, {v(100+4*(i//4),4)}, v[{56+4*(i&1)}:{59+4*(i&1)}]")
        k.e(["s_sub_u32 s35, s35, 1", "s_cmp_lg_u32 s35, 0", "s_cbranch_scc1 L_diag", "s_nop 7"])
    if cfg.get("diag") == "idle":
        k.e("s_mov_b32 s35, 256")
        k.label("L_diag")
        k.e(["s_nop 15"]*2 + ["s_sub_u32 s35, s35, 1", "s_cmp_lg_u32 s35, 0", "s_cbranch_scc1 L_diag"])

def kv_pack(k):
    for q in range(16):
        a = 128 + 8*q
        for e in range(4):
            k.e(f"v_cvt_pk_bf16_f32 v{KP+4*q+e}, v{a+2*e}, v{a+2*e+1}")
    k.e("s_lshl_b32 s38, s29, 20")
    k.e("s_lshl_b32 s37, s30, 17")
    k.e("s_add_u32 s38, s38, s37")
    k.e("s_bfe_u32 s37, s28, 0x10001")
    k.e("s_lshl_b32 s37, s37, 16")
    k.e("s_add_u32 s38, s38, s37")
    k.e("s_lshr_b32 s36, s28, 2")
    k.e("s_lshl_b32 s37, s36, 15")
    k.e("s_add_u32 s38, s38, s37")
    k.e("s_and_b32 s37, s28, 1")
    k.e("s_add_u32 s36, s36, 11")
    k.e("s_lshl_b32 s37, s37, s36")
    k.e("s_add_u32 s38, s38, s37")
    k.e("s_cmp_lt_u32 s28, 4")
    k.e("s_cselect_b32 s36, 4, 32")
    k.e("s_cselect_b32 s37, 16, 64")
    k.e("s_cselect_b32 s39, 32, 4")
    k.e("s_lshl_b32 s36, s36, 8")
    k.e("s_lshl_b32 s37, s37, 8")
    k.e("s_lshl_b32 s39, s39, 8")
    k.e("s_mov_b64 s[16:17], s[12:13]")
    k.e("s_mov_b64 s[18:19], s[14:15]")
    k.e("s_cmp_eq_u32 s30, 0")
    k.e("s_cselect_b32 s52, 2, 4")
    k.e("v_lshlrev_b32 v58, 4, v1")
    k.e("v_add_u32 v59, s36, v58")
    k.e("v_add_u32 v60, s37, v58")
    k.e("v_add_u32 v61, s36, v60")

def p2_setup(k):
    k.e("s_and_b32 s36, s28, 3")
    k.e("s_sub_u32 s37, 15, s30")
    k.e("s_cmp_lt_u32 s28, 4")
    k.e("s_cselect_b32 s37, s37, s30")
    k.e("s_lshl_b32 s37, s37, 2")
    k.e("s_add_u32 s37, s37, s36")
    k.e("s_lshl_b32 s37, s37, 16")
    k.e("v_lshl_add_u32 v6, v1, 4, s37")
    k.e("v_add_u32 v7, 32768, v6")
    k.e("s_mov_b32 s32, 0")

def p2_setup2(k):
    k.e("v_lshrrev_b32 v18, 4, v1")
    k.e("v_bfe_u32 v20, v1, 2, 2")
    k.e("v_lshl_add_u32 v19, v18, 3, v20")
    k.e("v_lshlrev_b32 v19, 8, v19")
    k.e("v_and_b32 v21, 3, v1")
    k.e("v_lshl_add_u32 v19, v21, 3, v19")
    k.e("v_and_b32 v21, 1, v18")
    k.e("v_lshl_add_u32 v20, v21, 2, v20")
    for db in range(8):
        k.e(f"v_xor_b32 v21, {db}, v20")
        k.e(f"v_lshl_add_u32 v{10+db}, v21, 5, v19")
    k.e("s_lshl_b32 s45, s29, 20")

def p2_pieces(k, cfg, evA, evB):
    def wdma(stage):
        return [f"s_add_u32 m0, s33, {stage*32768}"], [VM(f"buffer_load_dwordx4 v{2+j}, s[4:7], s31 offen offset:{j*1024}{SC}{NT(cfg, 'q')} lds", ("W", stage)) for j in range(4)]
    xld = xld2
    def wrd(stage, s_, db):
        return [DS(f"ds_read_b64_tr_b16 {v(WF+4*db+2*t,2)}, v{10+db} offset:{stage*32768+(32*s_+4*t)*256}", ("w", db)) for t in range(2)]
    def store(q, so="s38"):
        return VM(f"buffer_store_dwordx4 {v(KP+4*q,4)}, v{58+(q&3)}, s[16:19], {so} offen{SC}", "kvst")
    early = ["s_lshl_b32 s36, s39, 1", "s_add_u32 s36, s36, s38", "s_add_u32 s37, s36, s39"] + [store(q, f"s{34+q//4}") for q in range(8, 16)]
    prox = [xld(1, s_) for s_ in range(3)]
    D = 6
    pro2 = [wrd(0, 0, db) for db in range(D)]
    halves = []
    for stage in range(2):
        M, fills, pre = [], [[] for _ in range(64)], {}
        for s_ in range(4):
            for db in range(8):
                for rb in range(2):
                    o = A.Oreg(rb, db)
                    M.append(f"{MF} {v(o,4)}, {v(WF+4*db,4)}, {v(XF[stage]+(s_*2+rb)*4,4)}, {v(o,4)}")
        for p in range(32):
            if p % 2 == 0: pre[2*p] = [Need("ds", [("w", p % 8), ("w", (p+1) % 8)])]
            if p % 8 == 0: pre[2*p] += [Need("vm", [("x", stage, p // 8)])]
            f = p + D
            if f < 32:
                r = wrd(stage, f // 8, f % 8)
                fills[2*p] += [r[0]]; fills[2*p+1] += [r[1]]
        pre[0] = [evB[stage]] + pre[0]
        fills[2*27+1] += [evA[stage], "s_waitcnt lgkmcnt(0)", Need("vm", [("W", stage ^ 1)]), "s_barrier"]
        nx = {28: [0, 1], 29: [2, 3], 30: [4], 31: [5]}
        for p, fl in nx.items():
            for i, f in enumerate(fl):
                fills[2*p+i] += wrd(stage ^ 1, 0, f)
        for s_ in range(4):
            xl = xld(stage ^ 1, 3) if s_ == 0 else xld(stage, s_-1)
            fills[16*s_+2] += [xl[0]]; fills[16*s_+6] += [xl[1]]
            if s_ == 0:
                fills[7] += ["s_add_u32 s32, s32, 4096"]
                if stage == 0:
                    fills[8] += ["s_cmp_lt_u32 s35, 3", "s_cselect_b32 s10, 4194304, 0"]
        if not cfg.get("nokvst"):
            spos = [int(x) for x in cfg.get("spos", "10,30").split(",")]
            for i in range(2):
                q = 2*stage + i
                fills[spos[i]] += [store(q)]
                for g in range(3):
                    for h in range(2):
                        r = KP + 16*g + 4*q + 2*h
                        fills[spos[i]+2+2*(2*g+h)] += [f"v_mov_b64 v[{r}:{r+1}], v[{r+16}:{r+17}]"]
            if stage == 1: fills[spos[1]+1] += ["s_add_u32 s38, s38, s39"]
            if stage == 0: fills[9] += ["s_cmp_lt_u32 s35, s52", "s_cselect_b32 s18, s18, 0"]
        m, d = wdma(stage)
        fills[2*29+1] += m
        fills[60] += [d[0]]; fills[61] += [d[1]]; fills[62] += [d[2]]; fills[63] += [d[3], "s_add_u32 s31, s31, s40"]
        halves.append(weave(M, fills, pre))
    return prox, pro2, halves, early

def p2_events(k, cfg):
    W0 = (["s_cmp_eq_u32 s28, 0"], "s_cbranch_scc0")
    def E3():
        return ["s_mov_b64 s[4:5], s[12:13]", "s_mov_b32 s6, s14", "s_mov_b32 s31, s45", "s_mov_b32 s40, 65536",
                "v_add_u32 v2, s33, v58", "v_mov_b32 v3, v2", "v_mov_b32 v4, v2", "v_mov_b32 v5, v2"]
    def V0():
        return ["s_add_u32 m0, s33, 65536", "s_add_u32 s36, s45, 32768"] + \
               [VM(f"buffer_load_dwordx4 v2, s[12:15], s36 offen offset:{j*1024}{SC} lds", "v0") for j in range(4)]
    off0 = [f"s_add_u32 s36, s29, {CNT_KV0}", "s_lshl_b32 s36, s36, 7"]
    sig0 = guard(k, ["s_add_u32 s36, s28, s30", "s_cmp_eq_u32 s36, 4"], "s_cbranch_scc0", off0 + signal("s[90:91]", "s36", "v62", "v63"), "sg")
    pol0 = guard(k, *W0, off0 + [f"v_mov_b32 {vZ}, s36", VM(f"global_load_dword {vPOLL}, {vZ}, s[90:91] sc1", "poll")], "w0")
    chk0 = guard(k, *W0, [Need("vm", ["poll"])] + check(k, "s[90:91]", vZ, vPOLL, 1), "w0")
    evs = {"A": {(2, 0): [], (2, 1): [pol0], (3, 0): E3() + [chk0]},
           "B": {(2, 0): [], (2, 1): [sig0], (3, 0): E3()}}
    if "2" in cfg.get("cpf", ""):
        evs["B"][(2, 0)] = [guard(k, ["s_cmp_eq_u32 s28, 5"], "s_cbranch_scc0", ["s_mov_b32 s60, s38"] + code_touch(k, 20, "v22") + ["s_mov_b32 s38, s60"], "w0")]
    v0 = V0()
    out = {}
    for g, cmp_ in (("A", "s_cmp_lt_u32 s28, 4"), ("B", "s_cmp_ge_u32 s28, 4")):
        out[g] = []
        for stage in range(2):
            cs = [(it, evs[g][(it, st_)]) for (it, st_) in sorted(evs[g]) if st_ == stage]
            inner = []
            if g == "B" and stage == 1:
                l = k.newlabel("nv0")
                inner += ["s_cmp_eq_u32 s35, 3", f"s_cbranch_scc0 {l}"] + v0 + [l + ":"]
                cs = cs + [(3, [])]
            elif stage == 1: cs = cs + [(3, [])]
            l = k.newlabel("ng")
            inner += [cmp_, f"s_cbranch_scc0 {l}"] + switch(k, "s35", cs) + [l + ":"]
            def pick(c, g=g, stage=stage):
                r = []
                if g == "B" and stage == 1 and c["it"] == 3: r += v0
                if c["grp"] == g: r += evs[g].get((c["it"], stage), [])
                return r
            out[g].append(Alt(A.ool(k, ["s_cmp_ge_u32 s35, 2"], "s_cbranch_scc1", inner), pick))
    return out["A"], out["B"]

def p2(k, cfg, st):
    evA, evB = p2_events(k, cfg)
    prox, pro2, halves, early = p2_pieces(k, cfg, evA, evB)
    earlyA = Alt(A.ool(k, ["s_cmp_eq_u32 s30, 0"], "s_cbranch_scc1", early), lambda c: early if c["fast"] else [])
    body = [halves[0], cfg["sth2"].hist(8), halves[1], cfg["sth2"].hist(8, first=False)]
    nq = Need("vm", [("W", 0), "v0", "kvst", "xsel"] + [("x", a, b) for a in range(2) for b in range(4)])
    n0 = Need("vm", [("x", 0, 3)])
    scen = []
    for grp, w0 in (("A", 0), ("A", 1), ("B", 0), ("B", 1)):
        for ffn in (0,):
            for fast in (0, 1):
                sq = flat([xld2(0, s_) for s_ in range(4)]) + [VM("", ("W", 1))]*4 + flat([prox, pro2, n0, earlyA], dict(fast=fast))
                for it in range(4): sq += flat(body, dict(it=it, w0=w0, ffn=ffn, fast=fast, grp=grp, sg=fast and w0))
                scen.append(sq + [nq])
    resolve(scen)
    cfg["qwait"] = nq.n
    st.mark()
    k.e("s_waitcnt vmcnt(12)")
    emit(k, prox)
    emit(k, pro2)
    kv_pack(k)
    k.e(zero(A.O_, 64))
    k.e("s_mov_b32 s35, 0")
    emit(k, [n0, earlyA])
    st.mark()
    k.align(6)
    k.label("L_p2_loop")
    emit(k, body)
    k.e("s_add_u32 s35, s35, 1")
    k.e("s_cmp_lt_u32 s35, 4")
    k.e("s_cbranch_scc1 L_p2_loop")
    st.mark()
```

```python
from common import *

O_  = 192
Q_  = 128
QS_ = 160
S_  = 96
RG_ = 64
P_  = 48
NM_ = 40
L_  = 28
ONE = 36
vKr, vVr, vD, vNx, vMk, vD2, vL16 = "v2", "v3", "v4", "v5", "v18", "v6", "v7"
LS_ = 8
T_  = 20
LDS_W = 98304
LDS_X = 131072
CSCALE = 0x3e0293ee
NEGBIG = 0xf149f2ca

def Oreg(qb, db): return O_ + (qb*8+db)*4
def Sreg(buf, qb, kb): return S_ + buf*16 + (qb*2+kb)*4
def Preg(buf, qb): return P_ + buf*8 + qb*4

def p2_setup(k):
    k.e("s_and_b32 s36, s28, 3")
    k.e("s_sub_u32 s37, 15, s30")
    k.e("s_cmp_lt_u32 s28, 4")
    k.e("s_cselect_b32 s37, s37, s30")
    k.e("s_lshl_b32 s37, s37, 2")
    k.e("s_add_u32 s37, s37, s36")
    k.e("s_lshl_b32 s37, s37, 16")
    k.e("v_lshl_add_u32 v2, v1, 4, s37")
    k.e("v_add_u32 v3, 32768, v2")
    k.e("v_lshrrev_b32 v18, 4, v1")
    k.e("s_lshl_b32 s37, s28, 4")
    k.e("v_add_u32 v19, s37, v18")
    k.e("v_lshlrev_b32 v19, 13, v19")
    k.e("s_lshl_b32 s37, s29, 8")
    k.e("v_add_u32 v19, s37, v19")
    k.e("v_and_b32 v20, 15, v1")
    k.e("v_lshlrev_b32 v21, 1, v18")
    k.e("v_xor_b32 v21, v20, v21")
    k.e("v_lshl_add_u32 v6, v21, 4, v19")
    k.e(f"v_add_u32 v7, {32768-1024}, v6")
    k.e("v_xor_b32 v21, 8, v21")
    k.e("v_lshl_add_u32 v8, v21, 4, v19")
    k.e(f"v_add_u32 v8, {2*(32768-1024)}, v8")
    k.e(f"v_add_u32 v9, {32768-1024}, v8")
    k.e("s_lshl_b32 s33, s28, 12")
    k.e(f"s_add_u32 s33, s33, {LDS_W}")
    k.e("s_mov_b32 s31, 0")
    k.e("s_mov_b32 s32, 0")

def p2_setup2(k):
    k.e("v_lshrrev_b32 v20, 2, v20")
    k.e("v_lshl_add_u32 v19, v18, 3, v20")
    k.e("v_lshlrev_b32 v19, 8, v19")
    k.e(f"v_add_u32 v19, {LDS_W}, v19")
    k.e("v_and_b32 v21, 3, v1")
    k.e("v_lshl_add_u32 v19, v21, 3, v19")
    k.e("v_and_b32 v21, 1, v18")
    k.e("v_lshl_add_u32 v20, v21, 2, v20")
    for db in range(8):
        k.e(f"v_xor_b32 v21, {db}, v20")
        k.e(f"v_lshl_add_u32 v{10+db}, v21, 5, v19")
    k.e("s_lshl_b32 s43, s28, 12")
    k.e("v_lshl_add_u32 v4, v1, 4, s43")
    k.e("s_add_u32 s44, s43, 65536")
    k.e("s_lshl_b32 s45, s29, 20")
    for r in range(64):
        k.e(f"v_mov_b32 v{O_+r}, 0")

def p2_pieces(cfg):
    WF = [64, 96]; XF = [128, 160]
    def wdma(stage):
        return [f"s_add_u32 m0, s34, {stage*32768}"] , [VM(f"buffer_load_dwordx4 v{6+j}, s[8:11], s32 offen offset:{j*1024} lds", ("W", stage)) for j in range(4)]
    def xld(xs, s_):
        return [VM(f"buffer_load_dwordx4 {v(XF[xs]+(s_*2+rb)*4,4)}, v{2+rb}, s[4:7], s31 offen offset:{s_*1024}", ("x", xs, s_)) for rb in range(2)]
    def wrd(stage, s_, fs):
        return [DS(f"ds_read_b64_tr_b16 {v(WF[fs]+4*db+2*t,2)}, v{10+db} offset:{stage*32768+(32*s_+4*t)*256}", ("w", fs)) for db in range(8) for t in range(2)]
    def mf(fs, xs, s_):
        return [f"{MF} {v(Oreg(rb,db),4)}, {v(WF[fs]+4*db,4)}, {v(XF[xs]+(s_*2+rb)*4,4)}, {v(Oreg(rb,db),4)}" for db in range(8) for rb in range(2)]
    pro = ["s_mov_b32 s34, s33"]
    for t in range(2):
        m, d = wdma(t)
        pro += m + ["s_nop 0"] + d + [f"s_add_u32 s32, s32, {128*8192}"]
        for s_ in range(4 if t == 0 else 3): pro += xld(t, s_)
        if t == 0: pro += ["s_add_u32 s31, s31, 4096"]
    pro2 = [Need("vm", [("W", 0)]), "s_barrier"] + wrd(0, 0, 0) + ["s_mov_b32 s35, 0"]
    kvpre = ["s_mov_b32 m0, s43", "s_add_u32 s46, s45, 65536"]
    kvpre += [VM(f"buffer_load_dwordx4 {vD}, s[12:15], s45 offen offset:{j*1024} lds", "kv") for j in range(4)]
    kvpre += ["s_add_u32 m0, s43, 32768", "s_add_u32 s47, s45, 32768"]
    kvpre += [VM(f"buffer_load_dwordx4 {vD}, s[12:15], s46 offen offset:{j*1024} lds", "kv") for j in range(4)]
    kvpre += ["s_mov_b32 m0, s44", "s_nop 0"]
    kvpre += [VM(f"buffer_load_dwordx4 {vD}, s[12:15], s47 offen offset:{j*1024} lds", "kv") for j in range(4)]
    body = []
    for stage in range(2):
        for s_ in range(4):
            fills = [[] for _ in range(16)]
            if s_ < 3:
                body += [Need("ds", [("w", s_ & 1)])]
                rd = wrd(stage, s_+1, (s_+1) & 1)
            else:
                body += [Need("ds", [("w", 1)]), Need("vm", [("W", stage ^ 1)]), "s_barrier"]
                rd = wrd(stage ^ 1, 0, 0)
            body += [Need("vm", [("x", stage, s_)])]
            for g in range(8): fills[g] += rd[2*g:2*g+2]
            if s_ == 0:
                xl = xld(stage ^ 1, 3)
                fills[8] += [xl[0]]; fills[9] += [xl[1], "s_add_u32 s31, s31, 4096"]
                if stage == 0:
                    fills[10] += ["s_cmp_lt_u32 s35, 3", "s_cselect_b32 s6, 4194304, 0", "s_cselect_b32 s10, 8388608, 0", "s_cselect_b32 s34, s33, 0x30000"]
            else:
                xl = xld(stage, s_-1)
                fills[8] += [xl[0]]; fills[9] += [xl[1]]
            if s_ == 3:
                m, d = wdma(stage)
                fills[9] += m
                for j in range(4): fills[10+j] += [d[j]]
                fills[14] += [f"s_add_u32 s32, s32, {128*8192}"]
            body += weave(mf(s_ & 1, stage, s_), fills)
    return pro, pro2, kvpre, body

def q_pack(k, grp, qwait=0):
    k.e(f"v_mov_b32 v20, {CSCALE}")
    k.e("v_mov_b32 v21, v20")
    k.e("s_and_b32 s37, s28, 3")
    k.e("s_lshl_b32 s37, s37, 13")
    k.e(f"v_lshlrev_b32 {vL16}, 4, v1")
    k.e(f"v_add_u32 {vD}, s37, {vL16}")
    k.e(f"v_add_u32 {vD2}, 4096, {vD}")
    k.e(f"v_add_u32 v19, {LDS_X}, {vD}")
    k.e("s_add_u32 s43, s37, 32768")
    k.e("s_add_u32 s44, s37, 98304")
    k.e(f"s_waitcnt vmcnt({qwait}) lgkmcnt(0)")
    for f in range(8):
        a = O_ + 8*f
        k.e(pkmul(a, 8, 20))
        for q in range(4): k.e(f"v_cvt_pk_bf16_f32 v{Q_+4*f+q}, v{a+2*q}, v{a+2*q+1}")
        if grp == 0: k.e(f"ds_write_b128 v19, {v(Q_+4*f,4)} offset:{f*1024}")
    k.e(f"v_mov_b32 {vKr}, {vL16}")
    k.e("v_and_b32 v21, 15, v1")
    k.e("v_lshrrev_b32 v22, 4, v1")
    k.e("v_lshlrev_b32 v22, 2, v22")
    k.e(f"v_sub_u32 {vMk}, v21, v22")
    k.e("s_mov_b32 s40, 0")
    k.e("s_mov_b32 s41, 16384")
    k.e("s_mov_b32 s49, 0xffff")
    k.e("s_lshl_b32 s51, s30, 1")
    k.e("s_add_u32 s51, s51, 1")
    k.e("s_and_b32 s50, s28, 3")
    k.e("s_lshl_b32 s50, s50, 5")
    for r in range(4): k.e(f"v_mov_b32 v{ONE+r}, 0x3f803f80")
    if grp == 1:
        k.e("s_lshl_b32 s42, 7, s51")
        k.e("s_lshr_b32 s42, s42, 2")
        k.e("s_or_b32 s42, s42, 0x8001")
    else:
        k.e("s_lshl_b32 s31, 1, s51")
        k.e("s_or_b32 s31, s31, 0x8000")
        k.e("s_add_u32 s36, s51, 1")
        k.e("s_lshl_b32 s36, -1, s36")
        k.e("s_or_b32 s48, s36, 0xaaaaaaab")
        k.e("s_and_b32 s48, s48, 0x7fff")
        k.e("s_or_b32 s39, s36, 0x55555555")
        k.e("s_and_b32 s39, s39, 0xffff")
        k.e(f"s_add_u32 s46, s45, 65536")
        k.e(f"s_add_u32 s47, s45, {65536+32768}")
    k.e("s_mov_b64 s[52:53], 0")
    k.e("s_waitcnt lgkmcnt(0)")
    k.e("s_barrier")
    if grp == 1:
        for f in range(8):
            k.e(f"ds_read_b128 {v(QS_+4*f,4)}, v19 offset:{f*1024}")

OOL = []
MSK = ["s[20:21]", "s[22:23]", "s[62:63]", "vcc"]
LDS_MSG = LDS_X + 28672
def ool(k, cond, br, block):
    lr, lb = k.newlabel("rare"), k.newlabel("back")
    OOL.append([lr + ":"] + block + [f"s_branch {lb}"])
    return cond + [f"{br} {lr}", lb + ":"]
def flush_ool(k):
    while OOL: emit(k, OOL.pop(0))

def maskblk(k, buf, sU, inline=False):
    L = [f"v_mov_b32 v{T_}, {NEGBIG}", f"v_subrev_u32 v{T_+1}, {sU}, {vMk}"]
    for qb in range(2):
        for kb in range(2):
            for e in range(4):
                L.append(f"v_cmp_gt_i32 {MSK[e]}, {16*(kb-qb) + e}, v{T_+1}")
            for e in range(4):
                r = Sreg(buf, qb, kb) + e
                L.append(f"v_cndmask_b32 v{r}, v{r}, v{T_}, {MSK[e]}")
    if inline:
        l = k.newlabel("nm")
        return [f"s_cmp_lt_i32 {sU}, 0", f"s_cbranch_scc1 {l}"] + L + [l + ":"]
    return ool(k, [f"s_cmp_lt_i32 {sU}, 0"], "s_cbranch_scc0", L)

def qk(buf, fr0, czero):
    L = []
    for kb in range(2):
        for sg in range(4):
            f = RG_ + 4*((fr0 + kb*4 + sg) % 8)
            for qb in range(2):
                d = Sreg(buf, qb, kb)
                c = v(d, 4) if sg else ("0" if czero else v(NM_+4*qb, 4))
                L.append(f"{MF} {v(d,4)}, {v(f,4)}, {v(Q_+(qb*4+sg)*4,4)}, {c}")
    return L

def pv(buf, fr0, ones=True):
    L = []
    for db in range(8):
        f = RG_ + 4*((fr0 + db) % 8)
        for qb in range(2):
            x = f"{MF} {v(Oreg(qb,db),4)}, {v(f,4)}, {v(Preg(buf,qb),4)}, {v(Oreg(qb,db),4)}"
            if ones and qb == 1 and db % 4 == 2:
                x = [x, f"{MF} {v(L_+4*(db//4),4)}, {v(ONE,4)}, {v(Preg(buf,db//4),4)}, {v(L_+4*(db//4),4)}"]
            L.append(x)
    return L

def sm_elems(buf, add=False):
    out = []
    for kb in range(2):
        for qb in range(2):
            for e in range(4):
                r = Sreg(buf, qb, kb) + e
                post = [f"v_add_f32 v{L_+4*qb}, v{L_+4*qb}, v{r}"] if add else []
                if e & 1: post.append(f"v_cvt_pk_bf16_f32 v{Preg(buf,qb)+2*kb+e//2}, v{r-1}, v{r}")
                out.append((f"v_exp_f32 v{r}, v{r}", post))
    return out

def rd(frag, base, off):
    s_ = frag % 8
    return DS(f"ds_read_b128 {v(RG_+4*s_,4)}, {base} offset:{off}", ("r", s_))

def rowred(op, x, t):
    return [f"v_mov_b32 {t}, {x}", "s_nop 1", f"v_permlane16_swap_b32 {x}, {t}", "s_nop 1", f"{op} {x}, {x}, {t}",
            f"v_mov_b32 {t}, {x}", "s_nop 1", f"v_permlane32_swap_b32 {x}, {t}", "s_nop 1", f"{op} {x}, {x}, {t}"]


ADV = [f"v_add_u32 {vVr}, 65536, {vKr}", f"v_add_u32 {vKr}, s41, {vKr}", f"v_and_b32 {vKr}, s49, {vKr}"]

def dma_clumps(k, cs):
    out = []
    for which in range(2):
        msk, base, soff = ("s48", "s43", "s46") if which == 0 else ("s39", "s44", "s47")
        for c in range(8 // cs):
            lskip = k.newlabel("nodma")
            j0 = c * cs
            L = [f"s_bitcmp1_b32 {msk}, s40", f"s_cbranch_scc0 {lskip}", f"s_add_u32 m0, {base}, {(j0 // 4)*4096}", "s_nop 0"]
            for j in range(j0, j0 + cs):
                L.append(f"buffer_load_dwordx4 {vD if j < 4 else vD2}, s[12:15], {soff} offen offset:{(j%4)*1024} sc1 lds")
            if c == 8 // cs - 1:
                L += [f"s_add_u32 {soff}, {soff}, 65536", f"s_xor_b32 {base}, {base}, 32768"]
            out.append(L + [lskip + ":"])
    return out

def p3_pieces(k, cfg, grp):
    pro = [rd(f, vKr, f*1024) for f in range(8)]
    m0 = qk(0, 0, True); m1 = qk(1, 8, True)
    zl = zero(O_, 64) + zero(L_, 8)
    fills = [[] for _ in range(32)]; pre = {}
    for p in range(16):
        pre[2*p] = [Need("ds", [("r", p % 8)])]
        if p < 8: fills[2*p+1].append(rd(p+8, vKr, (p+8)*1024))
    for i, z in enumerate(zl): fills[i * 20 // len(zl)].append(z)
    if grp == 1:
        fills[20] += ool(k, ["s_add_u32 s36, s30, s50", "s_cmp_eq_u32 s36, 0"], "s_cbranch_scc1", maskblk(k, 0, "s36", True))
    x = [f"v{T_+2}", f"v{T_+3}"]; t = [f"v{T_+4}", f"v{T_+5}"]
    for qb in range(2):
        a = Sreg(0, qb, 0)
        ch = [f"v_max3_f32 {x[qb]}, v{a}, v{a+1}, v{a+2}", f"v_max3_f32 {x[qb]}, {x[qb]}, v{a+3}, v{a+4}",
              f"v_max3_f32 {x[qb]}, {x[qb]}, v{a+5}, v{a+6}", f"v_max_f32 {x[qb]}, {x[qb]}, v{a+7}",
              f"v_mov_b32 {t[qb]}, {x[qb]}", f"v_permlane16_swap_b32 {x[qb]}, {t[qb]}", f"v_max_f32 {x[qb]}, {x[qb]}, {t[qb]}",
              f"v_mov_b32 {t[qb]}, {x[qb]}", f"v_permlane32_swap_b32 {x[qb]}, {t[qb]}", f"v_max_f32 {x[qb]}, {x[qb]}, {t[qb]}"]
        for i, c in enumerate(ch): fills[21+i].append(c)
        fills[31] += [f"v_sub_f32 v{NM_+4*qb+e}, 0, {x[qb]}" for e in range(4)]
    pro += weave(m0 + m1, fills, pre)
    pro += ADV + cfg.get("pro_wait", lambda k, g: [])(k, grp) + ["s_barrier"] + cfg.get("pro_hook", lambda k, g: [])(k, grp) + [rd(f, vKr, f*1024) for f in range(7)]
    if grp == 0:
        pro += [DS(f"ds_write_b32 v19, v{NM_}"), DS(f"ds_write_b32 v19, v{NM_+4} offset:4")]
    for buf in range(2):
        for qb in range(2):
            a = Sreg(buf, qb, 0)
            pro += [f"v_pk_add_f32 {v(a+e,2)}, {v(a+e,2)}, {v(NM_+4*qb,2)}" for e in range(0, 8, 2)]
    el = sm_elems(0)
    pro += [e[0] for e in el] + [e[1] for e in el]
    M = qk(0, 0, False) + pv(0, 8) + qk(1, 16, False) + pv(1, 24)
    fills = [[] for _ in range(64)]; pre = {}
    def src(f):
        return (vKr, (f % 8)*1024 + (f // 16)*8192) if (f // 8) % 2 == 0 else (vVr, (f % 8)*1024 + (f // 16)*8192)
    wstep = int(cfg.get("wstep", 2))
    for p in range(32):
        if p % wstep == 0:
            pre[2*p] = [Need("ds", [("r", (p+i) % 8) for i in range(wstep)])]
    lag = int(cfg.get("lag", 0))
    for rnd in range(2):
        el = sm_elems(1 - rnd)
        for e in range(16):
            p = rnd*16 + e
            fills[2*p].append(el[e][0])
            fills[2*min(p+lag, rnd*16+15)+1] += el[e][1]
    for p in range(25):
        b, o = src(p + 7)
        fills[2*p+1].insert(0, rd(p+7, b, o))
    last = ["s_mov_b32 s41, 65536", "s_mov_b32 s49, 0x1ffff"]
    l1, l2, l3 = k.newlabel("r"), k.newlabel("r"), k.newlabel("r")
    if grp == 0:
        r32 = ["s_mov_b32 s41, 32768", "s_cmp_eq_u32 s40, 15", f"s_cbranch_scc0 {l1}"] + last + ["s_sub_u32 s36, 0, s50"] + maskblk(k, 0, "s36", True) + [l1 + ":"]
        pre[32] = ool(k, ["s_bitcmp1_b32 s31, s40"], "s_cbranch_scc1", r32) + pre[32]
    else:
        r0 = ["s_add_u32 s36, s40, 1", "s_sub_u32 s36, s36, s51", "s_cmp_lt_u32 s36, 2", f"s_cbranch_scc0 {l1}", "s_lshl_b32 s36, s36, 6",
              "s_add_u32 s36, s36, 32", "s_sub_u32 s36, s36, s50"] + maskblk(k, 1, "s36", True) + [l1 + ":"]
        pre[0] = ool(k, ["s_bitcmp1_b32 s42, s40"], "s_cbranch_scc1", r0) + pre[0]
        r32 = ["s_add_u32 s36, s40, 2", "s_sub_u32 s36, s36, s51", "s_cmp_eq_u32 s36, 1", "s_cselect_b32 s41, 0x8000, s41",
               "s_cmp_eq_u32 s40, 15", f"s_cbranch_scc0 {l2}"] + last + ["s_mov_b32 s36, 1", l2 + ":",
               "s_cmp_lt_u32 s36, 2", f"s_cbranch_scc0 {l3}", "s_lshl_b32 s36, s36, 6", "s_sub_u32 s36, s36, s50"] + maskblk(k, 0, "s36", True) + [l3 + ":"]
        pre[32] = ool(k, ["s_bitcmp1_b32 s42, s40"], "s_cbranch_scc1", r32) + pre[32]
    if grp == 0: fills[2*26] += ["s_add_u32 s40, s40, 1"]
    fills[2*25+1] += ADV[:2]; fills[2*26] += ADV[2:]
    bp = 26
    lr = k.newlabel("rlx")
    wt = ["s_waitcnt vmcnt(8) lgkmcnt(0)", "s_cmp_le_u32 s40, s51", f"s_cbranch_scc1 {lr}", "s_waitcnt vmcnt(0)", lr + ":"]
    fills[2*bp+1] += (wt if grp == 0 else ["s_waitcnt lgkmcnt(0)"]) + cfg.get("bar_hook", lambda k, g: [])(k, grp) + ["s_barrier"]
    nx = {27: [0, 1], 28: [2, 3], 29: [4], 30: [5], 31: [6]}
    for p, fl in nx.items():
        for f in fl: fills[2*p+1].insert(0, rd(f, vKr, f*1024))
    if grp == 0 and not cfg.get("nodma"):
        cs = int(cfg.get("cs", 4)); d0 = int(cfg.get("d0", 0)); dsp = float(cfg.get("dsp", 4))
        for c, cl in enumerate(dma_clumps(k, cs)):
            fills[2*int(d0 + c*dsp)+1] += cl
    if grp == 1: fills[int(cfg.get("btp", 24))] += cfg.get("b_inline", [])
    body = weave(M, fills, pre)
    M = pv(0, 0) + pv(1, 8)
    fills = [[] for _ in range(32)]; pre = {}
    for p in range(16):
        pre[2*p] = [Need("ds", [("r", p % 8)])]
        if p + 7 < 16: fills[2*p+1].insert(0, rd(p+7, vVr, (p+7)*1024))
    el = sm_elems(1)
    for e in range(16):
        fills[e].append(el[e][0])
        fills[e+1 if e < 15 else 15] += (["s_nop 0"] if e == 15 else []) + el[e][1]
    pre[16] = ["s_nop 1"] + pre[16]
    tail = [f"s_sub_u32 s36, {32 + 64*grp}, s50"] + maskblk(k, 1, "s36") + weave(M, fills, pre)
    return pro, body, tail

def lcheck(k, l):
    k.e(f"v_cmp_nge_f32 vcc, s36, {l}")
    k.e("s_nop 0")
    k.e("s_or_b64 s[52:53], s[52:53], vcc")

def ctx_base(k, sblk, add):
    k.e(f"s_lshl_b32 s38, {sblk}, 3")
    k.e("s_and_b32 s37, s28, 3")
    k.e("s_lshl_b32 s37, s37, 1")
    k.e("s_add_u32 s38, s38, s37")
    if add: k.e(f"s_add_u32 s38, s38, {add}")
    k.e("s_lshl_b32 s38, s38, 17")
    k.e("s_lshl_b32 s37, s29, 12")
    k.e("s_add_u32 s38, s38, s37")

def epi_own(k, cfg, sblk, fast):
    if fast: k.e("s_nop 4")
    else:
        for qb in range(2): k.e(rowred("v_add_f32", f"v{L_+4*qb}", f"v{T_}"))
    k.e("s_mov_b32 s36, 0x5d800000")
    for qb in range(2): lcheck(k, f"v{L_+4*qb}")
    for qb in range(2): k.e(f"v_rcp_f32 v{T_+2*qb}, v{L_+4*qb}")
    ctx_base(k, sblk, 0)
    for qb in range(2): k.e(f"v_mov_b32 v{T_+2*qb+1}, v{T_+2*qb}")
    for qb in range(2):
        for sg in range(4):
            a = Oreg(qb, 2*sg)
            k.e(pkmul(a, 8, T_+2*qb))
            for q in range(4): k.e(f"v_cvt_pk_bf16_f32 v{a+q}, v{a+2*q}, v{a+2*q+1}")
            k.e(f"buffer_store_dwordx4 {v(a,4)}, {vL16}, s[16:19], s38 offen offset:{sg*1024}{cfg.get('stflag','')}")
        if qb == 0: k.e(f"s_add_u32 s38, s38, {1<<17}")
    if fast: k.e(zero(L_, 8) + zero(O_, 64))

def merge(k, cfg, kh):
    T_ = 104
    t = [f"v{T_+i}" for i in range(18)]
    o = 1 - kh
    k.e("s_lshl_b32 s37, s28, 13")
    k.e(f"v_add_u32 {t[1]}, s37, {vL16}")
    k.e(f"v_xor_b32 {t[2]}, 32768, {t[1]}")
    k.e("s_lshl_b32 s37, s28, 8")
    k.e(f"s_add_u32 s37, s37, {LDS_MSG}")
    k.e(f"v_lshl_add_u32 {t[3]}, v1, 2, s37")
    k.e(f"v_xor_b32 {t[4]}, 1024, {t[3]}")
    k.e(f"ds_write_b32 {t[3]}, v{L_+4*o}")
    k.e("s_mov_b32 s36, 0x5d800000")
    for qb in range(2): lcheck(k, f"v{L_+4*qb}")
    k.e("s_or_b32 s36, s52, s53")
    k.e(f"v_mov_b32 {t[6]}, s36")
    k.e("s_lshl_b32 s37, s28, 2")
    k.e(f"s_add_u32 s37, s37, {LDS_MSG+2048}")
    k.e(f"v_mov_b32 {t[7]}, s37")
    k.e(f"ds_write_b32 {t[7]}, {t[6]}")
    for db in range(8):
        k.e(f"ds_write_b128 {t[1]}, {v(Oreg(o,db),4)} offset:{db*1024}")
    k.e(f"v_mov_b32 {t[8]}, {LDS_MSG+2112}")
    if kh == 0 and cfg.get("share"):
        for i in range(4): k.e(f"v_mov_b32 v{T_+10+i}, s{56+i}")
        k.e(f"ds_write_b128 {t[8]}, {v(T_+10,4)}")
    k.e(f"v_and_b32 {t[7]}, 7, v1")
    k.e(f"v_lshlrev_b32 {t[7]}, 2, {t[7]}")
    k.e(f"v_add_u32 {t[7]}, {LDS_MSG+2048}, {t[7]}")
    k.e("s_sub_u32 s36, 15, s30")
    ctx_base(k, "s36", kh)
    k.e("s_waitcnt lgkmcnt(0)")
    k.e("s_barrier")
    if kh == 1 and cfg.get("share"): k.e(f"ds_read_b128 {v(T_+10,4)}, {t[8]}")
    k.e(f"ds_read_b32 {t[6]}, {t[7]}")
    k.e(f"ds_read_b32 {t[5]}, {t[4]}")
    for db in range(8):
        k.e(f"ds_read_b128 {v(RG_+4*db,4)}, {t[2]} offset:{db*1024}")
    k.e("s_waitcnt lgkmcnt(8)")
    k.e(f"v_add_f32 {t[5]}, {t[5]}, v{L_+4*kh}")
    k.e(f"v_cmp_ne_u32 s[52:53], 0, {t[6]}")
    if kh == 1 and cfg.get("share"):
        for i in range(4): k.e(f"v_readfirstlane_b32 s{56+i}, v{T_+10+i}")
    k.e(f"v_rcp_f32 {t[5]}, {t[5]}")
    k.e("s_nop 0")
    k.e(f"v_mov_b32 {t[4]}, {t[5]}")
    for sg in range(4):
        k.e(f"s_waitcnt lgkmcnt({6-2*sg})")
        a = Oreg(kh, 2*sg)
        for e in range(0, 8, 2): k.e(f"v_pk_add_f32 {v(a+e,2)}, {v(a+e,2)}, {v(RG_+8*sg+e,2)}")
        k.e(pkmul(a, 8, T_+4))
        for q in range(4): k.e(f"v_cvt_pk_bf16_f32 v{P_+4*sg+q}, v{a+2*q}, v{a+2*q+1}")
        k.e(f"buffer_store_dwordx4 {v(P_+4*sg,4)}, {vL16}, s[16:19], s38 offen offset:{sg*1024}{cfg.get('stflag','')}")

def safe_path(k, cfg, grp):
    M_ = NM_
    t = [f"v{T_+i}" for i in range(18)]
    if grp == 1:
        for r in range(32): k.e(f"v_swap_b32 v{Q_+r}, v{QS_+r}")
    for r in range(64): k.e(f"v_mov_b32 v{O_+r}, 0")
    for qb in range(2):
        k.e(f"v_mov_b32 v{L_+4*qb}, 0")
        k.e(f"v_mov_b32 v{M_+qb}, {NEGBIG}")
    k.e("s_lshl_b32 s43, s28, 12")
    k.e(f"v_add_u32 {vD}, s43, {vL16}")
    k.e("s_mov_b32 s46, s45")
    k.e("s_sub_u32 s40, 16, s30")
    k.e("s_sub_u32 s39, 15, s30" if grp == 0 else "s_mov_b32 s39, s30")
    k.e("s_lshl_b32 s37, s39, 7")
    k.e("s_and_b32 s36, s28, 3")
    k.e("s_lshl_b32 s36, s36, 5")
    k.e("s_add_u32 s36, s36, s37")
    k.e("s_sub_u32 s50, 0, s36")
    lt, lu, ln_ = k.newlabel("stile"), k.newlabel("sunit"), k.newlabel("snext")
    k.label(lt)
    k.e("s_waitcnt vmcnt(0) lgkmcnt(0)")
    k.e("s_barrier")
    k.e("s_mov_b32 m0, s43")
    k.e("s_add_u32 s47, s46, 32768")
    for j in range(4): k.e(f"buffer_load_dwordx4 {vD}, s[12:15], s46 offen offset:{j*1024} sc1 lds")
    k.e("s_add_u32 m0, s43, 32768")
    k.e("s_add_u32 s46, s46, 65536")
    for j in range(4): k.e(f"buffer_load_dwordx4 {vD}, s[12:15], s47 offen offset:{j*1024} sc1 lds")
    k.e(f"v_mov_b32 {vKr}, {vL16}")
    k.e("s_mov_b32 s41, 4")
    k.e("s_waitcnt vmcnt(0)")
    k.e("s_barrier")
    k.label(lu)
    k.e("s_cmp_gt_i32 s50, 0")
    k.e(f"s_cbranch_scc1 {ln_}")
    for f in range(8): k.e(f"ds_read_b128 {v(RG_+4*f,4)}, {vKr} offset:{f*1024}")
    k.e("s_waitcnt lgkmcnt(0)")
    k.e(qk(0, 0, True))
    for f in range(8): k.e(f"ds_read_b128 {v(RG_+4*f,4)}, {vKr} offset:{32768+f*1024}")
    k.e("s_nop 1")
    emit(k, maskblk(k, 0, "s50"))
    for qb in range(2):
        a = Sreg(0, qb, 0); x = t[2+qb]
        k.e([f"v_max3_f32 {x}, v{a}, v{a+1}, v{a+2}", f"v_max3_f32 {x}, {x}, v{a+3}, v{a+4}",
             f"v_max3_f32 {x}, {x}, v{a+5}, v{a+6}", f"v_max3_f32 {x}, {x}, v{a+7}, v{M_+qb}"])
        k.e(rowred("v_max_f32", x, t[4]))
        k.e(f"v_sub_f32 {t[5]}, v{M_+qb}, {x}")
        k.e(f"v_exp_f32 {t[5]}, {t[5]}")
        k.e(f"v_mov_b32 v{M_+qb}, {x}")
        k.e(f"v_mul_f32 v{L_+4*qb}, v{L_+4*qb}, {t[5]}")
        for r in range(32): k.e(f"v_mul_f32 v{Oreg(qb,0)+r}, v{Oreg(qb,0)+r}, {t[5]}")
        for e in range(8): k.e(f"v_sub_f32 v{a+e}, v{a+e}, {x}")
    el = sm_elems(0, True)
    for e in range(16): k.e(el[e][0])
    for e in range(16): k.e(el[e][1])
    k.e("s_waitcnt lgkmcnt(0)")
    k.e("s_nop 0")
    k.e(pv(0, 0, False))
    k.label(ln_)
    k.e(f"v_add_u32 {vKr}, 8192, {vKr}")
    k.e("s_add_u32 s50, s50, 32")
    k.e("s_sub_u32 s41, s41, 1")
    k.e("s_cmp_lg_u32 s41, 0")
    k.e(f"s_cbranch_scc1 {lu}")
    k.e("s_sub_u32 s40, s40, 1")
    k.e("s_cmp_lg_u32 s40, 0")
    k.e(f"s_cbranch_scc1 {lt}")
    epi_own(k, cfg, "s39", False)

def gen_p3(k, cfg, grp, st, after_q=None, before_tail=None):
    n0 = st.n
    q_pack(k, grp, cfg.get('qwait', 0))
    if after_q: after_q(k, grp)
    st.mark()
    pro, body, tail = p3_pieces(k, cfg, grp)
    sw = []
    if grp == 1:
        sw = [f"v_swap_b32 v{Q_+r}, v{QS_+r}" for r in range(32)]
        sw += [f"v_mov_b32 v{NM_+r}, v{14+r//4}" for r in range(8)] + ["s_nop 1"]
    resolve([[pro, body, body, body, tail], [pro, body, sw, body, body, tail]])
    if cfg.get("prio") and grp == int(cfg["prio"]) - 1: k.e("s_setprio 1")
    emit(k, pro)
    st.mark()
    if cfg.get("bwait"): k.e("s_mov_b32 s98, 0")
    lb = f"L_body{grp}"
    k.align(6)
    k.label(lb)
    emit(k, body)
    if grp == 1:
        ke = K(k.name + "_epi")
        epi_own(ke, cfg, "s30", True)
        l1, l2, l3 = k.newlabel("nm"), k.newlabel("ns"), k.newlabel("ne")
        post = ["s_cmp_eq_u32 s40, 0", f"s_cbranch_scc0 {l1}", "ds_read_b64 v[14:15], v19", "s_waitcnt lgkmcnt(0)", l1 + ":"]
        post += cfg.get("b_hook", lambda k: [])(k)
        post += ["s_add_u32 s36, s40, 1", "s_cmp_eq_u32 s36, s51", f"s_cbranch_scc0 {l2}"] + sw + [l2 + ":"]
        post += ["s_cmp_eq_u32 s40, s51", f"s_cbranch_scc0 {l3}"] + [x.strip() for x in ke.lines] + [l3 + ":"]
        emit(k, ool(k, ["s_bitcmp1_b32 s42, s40"], "s_cbranch_scc1", post))
        k.e("s_add_u32 s40, s40, 1")
    k.e("s_cmp_lg_u32 s40, 16")
    k.e(f"s_cbranch_scc1 {lb}")
    st.mark()
    if cfg.get("bwait"):
        st.mark()
        k.e(f"s_add_u32 s{st.base+2*st.n-2}, s{st.base+2*st.n-4}, s98")
    if before_tail: before_tail(k, grp)
    emit(k, tail)
    st.mark()
    cfg.get("before_merge", lambda k: None)(k)
    merge(k, cfg, grp)
    st.mark()
    k.e("s_cmp_eq_u64 s[52:53], 0")
    k.e("s_cbranch_scc1 L_p3_done")
    if cfg.get("dbgsafe"):
        k.e("s_load_dwordx2 s[20:21], s[0:1], 96")
        k.e("s_waitcnt lgkmcnt(0)")
        k.e("v_mov_b32 v20, 0"); k.e("v_mov_b32 v21, 1")
        k.e("s_mov_b64 exec, 1")
        k.e("global_atomic_add v20, v21, s[20:21]")
        k.e("s_mov_b64 exec, -1")
    k.e("s_waitcnt vmcnt(0)")
    for r in range(8): k.e(f"v_mov_b32 v{S_+16+r}, v{S_+r}")
    safe_path(k, cfg, grp)
    for r in range(8): k.e(f"v_mov_b32 v{S_+r}, v{S_+16+r}")
    if grp == 0: st.n = n0

def gen_attn(cfg=None):
    cfg = cfg or {}
    k = K("attn_kernel")
    k.e("s_cmp_ge_u32 s2, 256")
    k.e("s_cbranch_scc1 L_attn_end")
    st = Stamps(k, cfg.get("stamp"), kid=1)
    st.mark()
    k.e("s_load_dwordx2 s[50:51], s[0:1], 16")
    k.e("s_load_dwordx2 s[54:55], s[0:1], 104")
    k.e("v_and_b32 v1, 63, v0")
    k.e("v_lshrrev_b32 v16, 6, v0")
    k.e("s_and_b32 s29, s2, 7")
    k.e("v_readfirstlane_b32 s28, v16")
    k.e("s_lshl_b32 s29, s29, 2")
    k.e("s_bfe_u32 s36, s2, 0x20003")
    k.e("s_add_u32 s29, s29, s36")
    k.e("s_lshr_b32 s30, s2, 5")
    p2_setup(k)
    k.e("s_waitcnt lgkmcnt(0)")
    srd(k, 4, 54, 4194304)
    srd(k, 8, 50, 8388608)
    pro, pro2, kvpre, body = p2_pieces(cfg)
    resolve([[pro, pro2, body, body, body, kvpre, body]])
    emit(k, pro)
    srd(k, 12, 54, 33554432, WS_KV)
    srd(k, 16, 54, 16777216, WS_CTX)
    p2_setup2(k)
    st.mark()
    emit(k, pro2)
    st.mark()
    k.align(6)
    k.label("L_p2_loop")
    k.e("s_cmp_lg_u32 s35, 3")
    k.e("s_cbranch_scc1 L_p2_nokv")
    emit(k, kvpre)
    k.label("L_p2_nokv")
    emit(k, body)
    k.e("s_add_u32 s35, s35, 1")
    k.e("s_cmp_lt_u32 s35, 4")
    k.e("s_cbranch_scc1 L_p2_loop")
    st.mark()
    k.e("s_cmp_lt_u32 s28, 4")
    k.e("s_cbranch_scc0 L_grp1")
    gen_p3(k, cfg, 0, st)
    k.e("s_branch L_p3_done")
    flush_ool(k)
    k.label("L_grp1")
    gen_p3(k, cfg, 1, st)
    k.e("s_branch L_p3_done")
    flush_ool(k)
    k.label("L_p3_done")
    st.dump(54, "s28")
    k.label("L_attn_end")
    return wrap(k, 256)
```

```python
from lib import *

WS_XN  = 0
WS_ST  = 4 << 20
WS_R   = (4 << 20) + 65536
WS_KV  = 8 << 20
WS_CTX = 40 << 20
WS_PRE = 56 << 20
WS_YP  = 57 << 20
WS_IDX = 58 << 20

MF = "v_mfma_f32_16x16x32_bf16"

def wave_sum(k, x, t, sd):
    for m in ["quad_perm:[1,0,3,2]", "quad_perm:[2,3,0,1]", "row_half_mirror", "row_mirror"]:
        k.e("s_nop 1")
        k.e(f"v_add_f32_dpp {x}, {x}, {x} {m} row_mask:0xf bank_mask:0xf")
    k.e("s_nop 0")
    for q in range(4):
        k.e(f"v_readlane_b32 s{sd+q}, {x}, {16*q}")
    k.e(f"v_mov_b32 {t}, s{sd}")
    k.e(f"v_add_f32 {t}, s{sd+1}, {t}")
    k.e(f"v_add_f32 {t}, s{sd+2}, {t}")
    k.e(f"v_add_f32 {t}, s{sd+3}, {t}")

def rbf(k, x):
    k.e(f"v_cvt_pk_bf16_f32 {x}, {x}, {x}")
    k.e(f"v_lshlrev_b32 {x}, 16, {x}")

def interleave(k, mfmas, fills):
    for i, m in enumerate(mfmas):
        k.e(m)
        if i < len(fills):
            for f in fills[i]: k.e(f)
    for f in fills[len(mfmas):]:
        for x in f: k.e(x)

WS_STAMP = 60 << 20
class Stamps:
    def __init__(self, k, on, base=64, kid=0):
        self.k, self.on, self.base, self.n, self.kid = k, on, base, 0, kid
    def mark(self, real=False):
        if not self.on: return
        if real: return
        b = self.base + 2*self.n
        assert b + 1 < 88
        self.k.e(f"s_memtime s[{b}:{b+1}]")
        self.k.e(f"s_memrealtime s[100:101]")
        self.k.e("s_waitcnt lgkmcnt(0)")
        self.k.e(f"s_mov_b32 s{b+1}, s100")
        self.n += 1
    def hist(self, n, first=True):
        if not self.on: return []
        if first: self.h0 = self.n; self.n += n
        b = self.base + 2*self.h0
        assert b + 2*n < 88
        L = [f"s_mov_b64 s[{b+2*i}:{b+2*i+1}], s[{b+2*i+2}:{b+2*i+3}]" for i in range(n-1)]
        e = b + 2*(n-1)
        return L + [f"s_memtime s[{e}:{e+1}]", "s_memrealtime s[100:101]", "s_waitcnt lgkmcnt(0)", f"s_mov_b32 s{e+1}, s100"]
    def dump(self, wsbase, swave):
        if not self.on: return
        k = self.k
        k.e("s_waitcnt vmcnt(0) lgkmcnt(0)")
        self.mark(); self.mark(real=True)
        k.e(f"s_add_u32 s60, s{wsbase}, {WS_STAMP + self.kid*(1<<20)}")
        k.e(f"s_addc_u32 s61, s{wsbase+1}, 0")
        k.e("s_and_b32 s61, s61, 0xffff")
        k.e("s_mov_b32 s62, 0x100000")
        k.e("s_mov_b32 s63, 0x20000")
        k.e("s_lshl_b32 s100, s2, 3")
        k.e(f"s_add_u32 s100, s100, {swave}")
        k.e("s_lshl_b32 s100, s100, 8")
        k.e("s_getreg_b32 s101, hwreg(HW_REG_XCC_ID)")
        k.e("v_mov_b32 v2, 0")
        k.e("s_mov_b64 exec, 1")
        for i in range(2*self.n):
            k.e(f"v_mov_b32 v3, s{self.base+i}")
            k.e(f"buffer_store_dword v3, v2, s[60:63], s100 offen offset:{4*i}")
        k.e("v_mov_b32 v3, s101")
        k.e(f"buffer_store_dword v3, v2, s[60:63], s100 offen offset:252")
        k.e(f"v_mov_b32 v3, {0x5a5a00 + self.n}")
        k.e(f"buffer_store_dword v3, v2, s[60:63], s100 offen offset:248")
        k.e("s_mov_b64 exec, -1")

Z64 = [True]
def zero(r0, n):
    if Z64[0]: return [f"v_mov_b64 v[{r}:{r+1}], 0" for r in range(r0, r0+n, 2)]
    return [f"v_mov_b32 v{r}, 0" for r in range(r0, r0+n)]

def pkmul(a, n, f):
    assert f % 2 == 0
    return [f"v_pk_mul_f32 v[{r}:{r+1}], v[{r}:{r+1}], v[{f}:{f+1}]" for r in range(a, a+n, 2)]

def ladder(fills, start, n, on, levels=(3, 2, 1, 0)):
    if not on: return
    for i, p in enumerate(levels):
        fills[(start + i * n // len(levels)) % len(fills)].append(f"s_setprio {p}")
```

```python
from common import *
import attn as A
import ffn as F

WS_CNT = 59 << 20
CNT_KV, CNT_CTX, CNT_F1, CNT_F2, CNT_KV0, CNT_EX, CNT_LN = 0, 32, 48, 96, 64, 128, 112
WS_EX = 64 << 20
SC = " sc1"
LDS_X = 131072

def NT(cfg, key):
    return " nt" if key in cfg.get("nt", "") else ""

def lines(fn, *a, **kw):
    t = K("tmp"); fn(t, *a, **kw); return [x.strip() for x in t.lines]

def signal(saddr_pair, off, t0, t1):
    return [f"v_mov_b32 {t0}, {off}", f"v_mov_b32 {t1}, 1", "s_mov_b64 exec, 1",
            f"global_atomic_add {t0}, {t1}, {saddr_pair}", "s_mov_b64 exec, -1", "s_nop 3"]

def switch(k, sreg, cases):
    L = []
    lend = k.newlabel("swend")
    for i, (val, items) in enumerate(cases):
        if i + 1 < len(cases):
            ln = k.newlabel("swn")
            L += [f"s_cmp_eq_u32 {sreg}, {val}", f"s_cbranch_scc0 {ln}"] + items + [f"s_branch {lend}", ln + ":"]
        else:
            L += items
    return L + [lend + ":"]

def guard(k, cond, br, items, key):
    l = k.newlabel("g")
    return Alt(cond + [f"{br} {l}"] + items + [l + ":"], lambda c: items if c[key] else [])

def spin(k, saddr, voff, vtmp, target, slp=8):
    l, le = k.newlabel("spin"), k.newlabel("spinx")
    return ["s_mov_b32 s61, 0x40000", l + ":", "s_sub_u32 s61, s61, 1", f"s_cbranch_scc1 {le}", f"s_sleep {slp}",
            f"global_load_dword {vtmp}, {voff}, {saddr} sc1", "s_waitcnt vmcnt(0)",
            f"v_readfirstlane_b32 s36, {vtmp}", "s_nop 0", f"s_cmp_lt_u32 s36, {target}", f"s_cbranch_scc1 {l}", le + ":"]

def check(k, saddr, voff, vtmp, target, slp=8):
    return A.ool(k, [f"v_readfirstlane_b32 s36, {vtmp}", "s_nop 0", f"s_cmp_lt_u32 s36, {target}"], "s_cbranch_scc1",
                 spin(k, saddr, voff, vtmp, target, slp))

def ln_check(k):
    l, le = k.newlabel("lspin"), k.newlabel("lspinx")
    return ["s_mov_b32 s61, 0x40000", l + ":", "v_cmp_gt_u32 vcc, 16, v116", "s_nop 0", "s_cmp_eq_u64 vcc, 0",
            f"s_cbranch_scc1 {le}", "s_sub_u32 s61, s61, 1", f"s_cbranch_scc1 {le}", "s_sleep 8",
            "global_load_dword v116, v117, s[90:91] sc1", "s_waitcnt vmcnt(0)", f"s_branch {l}", le + ":"]

def ln_row(X, XO, WR, Fr, T, SB, srow, sslot):
    k = K("t")
    t = [f"v{T+i}" for i in range(8)]
    for i in range(8):
        k.e(f"v_lshlrev_b32 v{Fr+2*i}, 16, v{X+i}")
        k.e(f"v_and_b32 v{Fr+2*i+1}, 0xffff0000, v{X+i}")
    P = lambda r: v(r, 2)
    k.e(f"v_pk_add_f32 {P(T)}, {P(Fr)}, {P(Fr+2)}")
    for i in range(2, 8): k.e(f"v_pk_add_f32 {P(T)}, {P(T)}, {P(Fr+2*i)}")
    k.e(f"v_add_f32 {t[0]}, {t[0]}, {t[1]}")
    wave_sum(k, t[0], t[4], SB)
    k.e(f"v_mul_f32 {t[4]}, 0xba800000, {t[4]}")
    k.e(f"v_mov_b32 {t[5]}, {t[4]}")
    for i in range(8):
        k.e(f"v_pk_add_f32 {P(T+2)}, {P(Fr+2*i)}, {P(T+4)}")
        k.e(f"v_pk_mul_f32 {P(T)}, {P(T+2)}, {P(T+2)}" if i == 0 else f"v_pk_fma_f32 {P(T)}, {P(T+2)}, {P(T+2)}, {P(T)}")
    k.e(f"v_add_f32 {t[0]}, {t[0]}, {t[1]}")
    wave_sum(k, t[0], t[2], SB)
    k.e(f"v_mul_f32 {t[2]}, 0x3a800000, {t[2]}")
    k.e(f"v_cvt_pk_bf16_f32 {t[3]}, {t[4]}, {t[2]}")
    k.e(f"v_lshlrev_b32 {t[4]}, 16, {t[3]}")
    k.e(f"v_and_b32 {t[2]}, 0xffff0000, {t[3]}")
    k.e(f"v_add_f32 {t[2]}, 0x3727c5ac, {t[2]}")
    rbf(k, t[2])
    k.e(f"v_sqrt_f32 {t[2]}, {t[2]}")
    k.e(f"v_mov_b32 {t[5]}, {t[4]}")
    rbf(k, t[2])
    k.e(f"v_rcp_f32 {t[7]}, {t[2]}")
    k.e("s_nop 0")
    k.e(f"v_fma_f32 {t[3]}, -{t[2]}, {t[7]}, 1.0")
    k.e(f"v_fma_f32 {t[7]}, {t[3]}, {t[7]}, {t[7]}")
    k.e(f"v_mov_b32 {t[6]}, {t[7]}")
    for i in range(8):
        a, b = f"v{Fr+2*i}", f"v{Fr+2*i+1}"
        k.e(f"v_pk_add_f32 {P(Fr+2*i)}, {P(Fr+2*i)}, {P(T+4)}")
        k.e(f"v_cvt_pk_bf16_f32 {t[2]}, {a}, {b}")
        k.e(f"v_lshlrev_b32 {a}, 16, {t[2]}")
        k.e(f"v_and_b32 {b}, 0xffff0000, {t[2]}")
        k.e(f"v_pk_mul_f32 {P(Fr+2*i)}, {P(Fr+2*i)}, {P(T+6)}")
        k.e(f"v_cvt_pk_bf16_f32 v{XO+i}, {a}, {b}")
        k.e(f"v_lshlrev_b32 {a}, 16, v{XO+i}")
        k.e(f"v_and_b32 {b}, 0xffff0000, v{XO+i}")
        k.e(f"v_pk_mul_f32 {P(T)}, {P(Fr)}, {P(WR)}" if i == 0 else f"v_pk_fma_f32 {P(T)}, {P(Fr+2*i)}, {P(WR+2*i)}, {P(T)}")
    k.e(f"v_add_f32 {t[0]}, {t[0]}, {t[1]}")
    k.e(f"v_xor_b32 {t[6]}, 0x80000000, {t[4]}")
    k.e(f"s_mul_i32 s{SB}, {sslot}, 2064")
    k.e(f"s_add_u32 s{SB}, s{SB}, {LDS_X}")
    k.e(f"v_lshl_add_u32 {t[3]}, v1, 4, s{SB}")
    k.e(f"ds_write_b128 {t[3]}, {v(XO,4)}")
    k.e(f"ds_write_b128 {t[3]}, {v(XO+4,4)} offset:1024")
    wave_sum(k, t[0], t[1], SB)
    rbf(k, t[1])
    k.e(f"v_ashrrev_i32 {t[3]}, 31, {t[1]}")
    k.e(f"v_or_b32 {t[3]}, 0x80000000, {t[3]}")
    k.e(f"v_xor_b32 {t[3]}, {t[1]}, {t[3]}")
    k.e(f"v_and_b32 {t[3]}, 0xffff0000, {t[3]}")
    k.e(f"s_sub_u32 s{SB}, 0xffff, {srow}")
    k.e(f"v_or_b32 {t[3]}, s{SB}, {t[3]}")
    k.e(f"s_lshl_b32 s{SB+1}, {sslot}, 3")
    k.e(f"s_add_u32 s{SB+1}, s{SB+1}, {LDS_X + 16640}")
    k.e(f"v_mov_b32 {t[2]}, s{SB+1}")
    k.e(f"ds_write_b64 {t[2]}, {v(T+6,2)}")
    k.e(f"ds_write_b32 {t[2]}, {t[3]} offset:64")
    return [x.strip() for x in k.lines]

def zip2(a, b):
    out = []
    for x, y in zip(a, b):
        if x == "s_nop 0": continue
        if x == "s_nop 1": out.append("s_nop 0"); continue
        out += [x, y]
    return out

def ln_part3(T):
    t = [f"v{T+i}" for i in range(8)]
    L = [f"v_and_b32 {t[0]}, 7, v1", f"v_lshlrev_b32 {t[0]}, 3, {t[0]}", f"v_add_u32 {t[1]}, {LDS_X + 16640}, {t[0]}",
         f"ds_read_b64 {v(T+2,2)}, {t[1]}", f"ds_read_b32 {t[4]}, {t[1]} offset:64",
         "s_lshl_b32 s36, s2, 6", f"s_add_u32 s36, s36, {WS_ST}", "s_lshl_b32 s37, s2, 3", f"s_add_u32 s37, s37, {F.WS_KEY}",
         "s_waitcnt lgkmcnt(0)", f"v_mov_b32 {t[6]}, {t[4]}"]
    red = lambda x: flat([["s_nop 1", f"v_max_u32_dpp {x}, {x}, {x} {m} row_mask:0xf bank_mask:0xf"]
                          for m in ("quad_perm:[1,0,3,2]", "quad_perm:[2,3,0,1]", "row_half_mirror")])
    L += red(t[6]) + [f"v_cmp_eq_u32 vcc, {t[6]}, {t[4]}", "s_nop 1", f"v_cndmask_b32 {t[7]}, {t[4]}, v118, vcc"] + red(t[7])
    L += ["s_mov_b64 exec, 0xff", f"buffer_store_dwordx2 {v(T+2,2)}, {t[0]}, s[24:27], s36 offen{SC}",
          "s_mov_b64 exec, 1", f"buffer_store_dwordx2 {v(T+6,2)}, {t[0]}, s[24:27], s37 offen{SC}", "s_mov_b64 exec, -1", "s_nop 3"]
    return L

def ln_part2(k, X):
    t = ["v16", "v18", "v19"]
    k.e(f"v_and_b32 {t[0]}, 7, v1")
    k.e(f"v_lshrrev_b32 {t[1]}, 3, v1")
    k.e(f"v_mul_u32_u24 {t[2]}, 2064, {t[0]}")
    k.e(f"v_lshl_add_u32 {t[2]}, {t[1]}, 4, {t[2]}")
    k.e("s_lshl_b32 s36, s28, 8")
    k.e(f"s_add_u32 s36, s36, {LDS_X}")
    k.e(f"v_add_u32 {t[2]}, s36, {t[2]}")
    k.e(f"ds_read_b128 {v(X,4)}, {t[2]}")
    k.e(f"ds_read_b128 {v(X+4,4)}, {t[2]} offset:128")
    k.e(f"v_lshlrev_b32 {t[0]}, 4, {t[0]}")
    k.e(f"v_lshl_add_u32 {t[0]}, {t[1]}, 8, {t[0]}")
    k.e("s_lshr_b32 s36, s2, 1")
    k.e("s_lshl_b32 s36, s36, 15")
    k.e("s_and_b32 s37, s2, 1")
    k.e("s_lshl_b32 s37, s37, 7")
    k.e("s_add_u32 s36, s36, s37")
    k.e("s_lshl_b32 s37, s28, 12")
    k.e("s_add_u32 s36, s36, s37")
    k.e("s_waitcnt lgkmcnt(0)")
    k.e(f"buffer_store_dwordx4 {v(X,4)}, {t[0]}, s[24:27], s36 offen{SC}")
    k.e(f"buffer_store_dwordx4 {v(X+4,4)}, {t[0]}, s[24:27], s36 offen offset:2048{SC}")

KP = 128
WF = 64
XF = [24, 96]
def xld2(xs, s_):
    return [VM(f"buffer_load_dwordx4 {v(XF[xs]+(s_*2+rb)*4,4)}, v{6+rb}, s[8:11], s32 offen offset:{s_*1024}{SC}", ("x", xs, s_)) for rb in range(2)]
vPOLL = "v56"
vZ = "v57"

def code_touch(k, a, dst):
    l = k.newlabel("pc")
    return ["s_getpc_b64 s[36:37]", l + ":", f"s_sub_u32 s36, s36, {l}-L_pc", "s_subb_u32 s37, s37, 0",
            "s_lshr_b32 s38, s2, 3", "s_lshl_b32 s38, s38, 7", f"v_lshl_add_u32 v{a}, v1, 12, s38", f"v_min_u32 v{a}, L_end-L_pc-4, v{a}",
            f"v_mov_b32 v{a+1}, s37", f"v_add_co_u32 v{a}, vcc, s36, v{a}", "s_mov_b64 exec, 0xffff", "s_nop 0",
            f"v_addc_co_u32 v{a+1}, vcc, 0, v{a+1}, vcc", f"global_load_dword {dst}, v[{a}:{a+1}], off", "s_mov_b64 exec, -1", "s_nop 1"]

def p1_retarget(cfg):
    L = ["v_lshrrev_b32 v3, 4, v1", "s_lshl_b32 s37, s28, 4", "v_add_u32 v19, s37, v3", "v_lshlrev_b32 v19, 13, v19",
         "s_lshl_b32 s37, s29, 8", "v_add_u32 v19, s37, v19", "v_and_b32 v16, 15, v1", "v_lshlrev_b32 v3, 1, v3",
         "v_xor_b32 v16, v16, v3", "v_lshl_add_u32 v2, v16, 4, v19", f"v_add_u32 v3, {32768-1024}, v2",
         "v_xor_b32 v16, 8, v16", "v_lshl_add_u32 v4, v16, 4, v19", f"v_add_u32 v4, {2*(32768-1024)}, v4",
         f"v_add_u32 v5, {32768-1024}, v4"]
    L += lines(srd, 4, 96, 8388608)
    L += ["s_mov_b32 s31, 0", f"s_mov_b32 s40, {128*8192}", "s_mov_b64 s[8:9], s[4:5]", "s_mov_b32 s10, s6", f"s_mov_b32 s32, {2*128*8192}"]
    L += [f"v_mov_b32 v{6+j}, v{2+j}" for j in range(4)]
    return L

W1 = []
def p1(k, cfg, st):
    ACC = 128
    FR = [20, 68]
    XA, XB, WP, WR = 20, 28, 36, 44
    k.e("s_load_dwordx4 s[44:47], s[0:1], 0")
    k.e("s_load_dwordx2 s[52:53], s[0:1], 56")
    k.e("s_load_dwordx4 s[48:51], s[0:1], 24")
    k.e("s_getpc_b64 s[36:37]")
    k.label("L_pc")
    k.e("s_lshr_b32 s38, s2, 3")
    k.e("s_lshl_b32 s38, s38, 7")
    k.e("v_lshl_add_u32 v16, v0, 12, s38")
    k.e("v_cmp_gt_u32 vcc, L_end-L_pc-4, v16")
    k.e("v_mov_b32 v17, s37")
    k.e("s_and_b64 exec, exec, vcc")
    k.e("s_cbranch_execz L_nocpf")
    k.e("v_add_co_u32 v16, vcc, s36, v16")
    k.e("s_nop 1")
    k.e("v_addc_co_u32 v17, vcc, 0, v17, vcc")
    if not cfg.get("nocpf"): k.e("global_load_dword v119, v[16:17], off")
    k.label("L_nocpf")
    k.e("s_mov_b64 exec, -1")
    k.e("v_lshrrev_b32 v16, 6, v0")
    k.e("v_and_b32 v1, 63, v0")
    k.e("v_readfirstlane_b32 s28, v16")
    k.e("v_lshlrev_b32 v116, 4, v1")
    k.e("s_lshl_b32 s42, s2, 3")
    k.e("s_cmp_lt_u32 s28, 4")
    k.e("s_cbranch_scc1 L_nox")
    k.e("s_add_u32 s43, s42, s28")
    k.e("s_sub_u32 s42, s43, 4")
    k.e("v_lshl_add_u32 v18, s42, 11, v116")
    k.e("v_add_u32 v19, 8192, v18")
    k.e("s_waitcnt lgkmcnt(0)")
    for X_, a_ in ((XA, "v18"), (XB, "v19")):
        k.e(f"global_load_dwordx4 {v(X_,4)}, {a_}, s[44:45]{NT(cfg, 'x')}")
        k.e(f"global_load_dwordx4 {v(X_+4,4)}, {a_}, s[44:45] offset:1024{NT(cfg, 'x')}")
    k.e(f"global_load_dwordx4 {v(WP,4)}, v116, s[52:53]")
    k.e(f"global_load_dwordx4 {v(WP+4,4)}, v116, s[52:53] offset:1024")
    if not cfg.get("nob0"): k.e("s_barrier")
    k.label("L_nox")
    k.e("s_load_dwordx4 s[88:91], s[0:1], 96")
    k.e("s_load_dwordx4 s[92:95], s[0:1], 64")
    k.e("s_load_dwordx2 s[96:97], s[0:1], 16")
    k.e("s_and_b32 s29, s2, 7")
    k.e("s_lshl_b32 s29, s29, 2")
    k.e("s_bfe_u32 s36, s2, 0x20003")
    k.e("s_add_u32 s29, s29, s36")
    k.e("s_lshr_b32 s30, s2, 5")
    k.e("v_lshrrev_b32 v16, 3, v1")
    k.e("s_lshl_b32 s36, s30, 8")
    k.e("s_lshl_b32 s37, s28, 5")
    k.e("s_add_u32 s36, s36, s37")
    k.e("v_add_u32 v16, s36, v16")
    k.e("v_lshlrev_b32 v16, 10, v16")
    k.e("v_lshrrev_b32 v18, 4, v1")
    k.e("v_and_b32 v19, 7, v1")
    k.e("v_xor_b32 v19, v19, v18")
    k.e("v_lshl_add_u32 v2, v19, 4, v16")
    k.e("v_xor_b32 v19, 4, v19")
    k.e("v_lshl_add_u32 v3, v19, 4, v16")
    k.e(f"v_add_u32 v3, {8192-1024}, v3")
    k.e(f"v_add_u32 v4, {2*(8192-1024)}, v2")
    k.e(f"v_add_u32 v5, {2*(8192-1024)}, v3")
    k.e("s_and_b32 s36, s28, 3")
    k.e("s_lshl_b32 s37, s36, 4")
    k.e("v_add_u32 v16, s37, v18")
    k.e("v_lshlrev_b32 v16, 13, v16")
    k.e("s_lshl_b32 s37, s29, 8")
    k.e("v_add_u32 v16, s37, v16")
    k.e("v_and_b32 v19, 15, v1")
    k.e("v_lshlrev_b32 v18, 1, v18")
    k.e("v_xor_b32 v19, v19, v18")
    k.e("v_lshl_add_u32 v6, v19, 4, v16")
    k.e(f"v_add_u32 v7, {32768-1024}, v6")
    k.e("v_xor_b32 v19, 8, v19")
    k.e("v_lshl_add_u32 v8, v19, 4, v16")
    k.e(f"v_add_u32 v8, {2*(32768-1024)}, v8")
    k.e(f"v_add_u32 v9, {32768-1024}, v8")
    k.e("s_lshl_b32 s33, s28, 12")
    k.e("s_add_u32 s34, s33, 65536")
    k.e("s_mov_b32 s31, 0")
    k.e("s_mov_b32 s32, 0")
    k.e("s_mov_b32 s40, 128")
    k.e(f"s_mov_b32 s41, {64*8192}")
    def dma_list(stage):
        c = [f"buffer_load_dwordx4 v{2+j}, s[4:7], s31 offen offset:{j*1024}{NT(cfg, 'c')} lds" for j in range(4)]
        w = [f"buffer_load_dwordx4 v{6+j}, s[8:11], s32 offen offset:{j*1024}{NT(cfg, 'w')} lds" for j in range(4)]
        return f"s_add_u32 m0, s33, {stage*32768}", c, f"s_add_u32 m0, s34, {stage*32768}", w
    def dma_both(stage):
        mc, c, mw, w = dma_list(stage)
        k.e(mc); k.e(f"s_add_u32 s36, s31, {128*1024}"); k.e(c)
        k.e(mw); k.e("s_nop 0"); k.e(w)
        k.e(f"s_add_u32 m0, s33, {stage*32768+16384}"); k.e("s_nop 0"); k.e([x.replace("s31", "s36") for x in c])
        k.e(f"s_add_u32 m0, s34, {stage*32768+16384}"); k.e("s_nop 0"); k.e([x.replace("s[8:11]", "s[20:23]") for x in w])
        k.e("s_add_u32 s31, s31, s40")
        k.e("s_add_u32 s32, s32, s41")
    def setup_rest():
        k.e(f"s_add_u32 s54, s90, {int(cfg.get('wsoff', 0)) << 20}")
        k.e("s_addc_u32 s55, s91, 0")
        srd(k, 12, 54, 33554432, WS_KV)
        srd(k, 24, 54, 80 << 20)
        k.e(f"s_add_u32 s90, s54, {WS_CNT}")
        k.e("s_addc_u32 s91, s55, 0")
        k.e("v_and_b32 v16, 15, v1")
        k.e("v_lshrrev_b32 v17, 4, v1")
        k.e("s_bfe_u32 s36, s28, 0x10001")
        k.e("s_lshl_b32 s36, s36, 14")
        k.e("v_lshl_add_u32 v18, v16, 7, s36")
        k.e("v_lshrrev_b32 v19, 1, v16")
        k.e("v_xor_b32 v19, v19, v17")
        k.e("v_lshl_add_u32 v10, v19, 4, v18")
        k.e("v_xor_b32 v19, 4, v19")
        k.e("v_lshl_add_u32 v11, v19, 4, v18")
        k.e("v_lshrrev_b32 v16, 2, v16")
        k.e("v_lshl_add_u32 v18, v17, 3, v16")
        k.e("v_lshlrev_b32 v18, 8, v18")
        k.e("s_lshr_b32 s36, s28, 2")
        k.e("s_lshl_b32 s36, s36, 14")
        k.e("s_add_u32 s36, s36, 65536")
        k.e("v_add_u32 v18, s36, v18")
        k.e("v_and_b32 v19, 3, v1")
        k.e("v_lshl_add_u32 v18, v19, 3, v18")
        k.e("v_and_b32 v17, 1, v17")
        k.e("v_lshl_add_u32 v16, v17, 2, v16")
        k.e("s_and_b32 s36, s28, 1")
        k.e("s_lshl_b32 s36, s36, 2")
        for cb in range(4):
            k.e(f"s_add_u32 s37, s36, {cb}")
            k.e("v_xor_b32 v19, s37, v16")
            k.e(f"v_lshl_add_u32 v{12+cb}, v19, 5, v18")
        k.e(zero(ACC, 128))
        k.e("v_mov_b32 v118, 0")
        k.e("v_mov_b32 v117, 0")
        k.e(["s_lshl_b32 s36, s30, 7", "s_lshl_b32 s37, s28, 4", "s_add_u32 s36, s36, s37", "v_bfe_u32 v17, v1, 1, 4",
             "v_add_u32 v17, s36, v17", "v_lshlrev_b32 v17, 13, v17", "v_and_b32 v19, 1, v1", "v_lshl_add_u32 v17, v19, 7, v17",
             "s_lshl_b32 s36, s29, 8", "v_add_u32 v17, s36, v17", f"s_mov_b32 s45, {int(cfg.get('tl', 8))//2*8192}"])
    k.e("s_waitcnt lgkmcnt(0)")
    srd(k, 4, 46, 2097152)
    srd(k, 8, 48, 4194304)
    srd(k, 20, 50, 4194304)
    k.e("s_cmp_lt_u32 s28, 4")
    k.e("s_cbranch_scc0 L_pro_s")
    if not cfg.get("nob0"): k.e("s_barrier")
    emit(k, A.ool(k, ["s_cmp_eq_u32 s2, 0"], "s_cbranch_scc1",
                  ["s_mul_i32 s36, s28, 12288", f"s_add_u32 s36, s36, {WS_CNT + (int(cfg.get('wsoff', 0)) << 20)}", "v_lshl_add_u32 v16, v1, 4, s36",
                   "v_mov_b32 v108, 0", "v_mov_b32 v109, 0", "v_mov_b32 v110, 0", "v_mov_b32 v111, 0"] +
                  flat([[f"global_store_dwordx4 v16, v[108:111], s[90:91]{SC}", "v_add_u32 v16, 1024, v16"] for _ in range(12)])))
    dma_both(0)
    k.label("L_pro_s")
    st.mark()
    setup_rest()
    st.mark()
    k.e("s_cmp_lt_u32 s28, 4")
    k.e("s_cbranch_scc0 L_pro_b")
    dma_both(1)
    k.e("s_waitcnt vmcnt(16)")
    k.e("s_branch L_pro_j")
    k.label("L_pro_b")
    k.e("s_mov_b64 s[8:9], s[20:21]")
    k.e("s_mov_b32 s31, 256")
    k.e(f"s_mov_b32 s32, {2*64*8192}")
    k.e("s_and_b32 s60, s28, 3")
    if cfg.get("nodry"): k.e("s_waitcnt vmcnt(0)")
    k.e(f"s_mov_b32 s3, {0 if cfg.get('nodry') else 0xD0}")
    k.label("L_ln")
    for i in range(8):
        k.e(f"v_lshlrev_b32 v{WR+2*i}, 16, v{WP+i}")
        k.e(f"v_and_b32 v{WR+2*i+1}, 0xffff0000, v{WP+i}")
    k.e(zip2(ln_row(XA, 108, WR, 60, 92, 36, "s42", "s60"), ln_row(XB, 120, WR, 76, 100, 56, "s43", "s28")))
    k.e("s_waitcnt vmcnt(0) lgkmcnt(0)")
    k.e("s_cmp_eq_u32 s3, 0")
    k.e("s_mov_b32 s3, 0")
    k.e("s_cbranch_scc0 L_ln")
    k.label("L_pro_j")
    st.mark()
    def reads(s_, stage, fs):
        b = FR[fs]
        c = [f"ds_read_b128 {v(b+4*i,4)}, v{10+s_} offset:{stage*32768+i*2048}" for i in range(8)]
        w = [[f"ds_read_b64_tr_b16 {v(b+32+4*cb+2*t,2)}, v{12+cb} offset:{stage*32768+(32*s_+4*t)*256}" for t in range(2)] for cb in range(4)]
        return [c[0]] + w[0] + w[1] + w[2] + w[3] + c[1:]
    def accreg(i, cb, vtype):
        return ACC + ((cb*8+i) if vtype else (i*4+cb))*4
    def mfmas(fs, vtype):
        b = FR[fs]; L = []
        for i in range(8):
            for cb in range(4):
                a = accreg(i, cb, vtype)
                cf, wf = v(b+4*i, 4), v(b+32+4*cb, 4)
                Aop, Bop = (cf, wf) if vtype else (wf, cf)
                L.append(f"{MF} {v(a,4)}, {Aop}, {Bop}, {v(a,4)}")
        return L
    k.e("s_barrier")
    k.e(reads(0, 0, 0))
    emit(k, A.ool(k, ["s_add_u32 s36, s2, s28", "s_cmp_eq_u32 s36, 0"], "s_cbranch_scc1",
                  ["v_mov_b32 v19, 1", "s_mov_b64 exec, 1", "global_store_dword v118, v19, s[88:89] sc1", "s_mov_b64 exec, -1"]))
    st.mark()
    k.e("s_mov_b32 s35, 0")
    k.e("s_cmp_eq_u32 s28, 0")
    k.e("s_cselect_b32 s43, 9, 0")
    k.e("s_cselect_b32 s44, 2, 1")
    k.e("s_cmp_lt_u32 s28, 4")
    k.e("s_cbranch_scc0 L_kv_vloop")
    for vtype in range(2):
        lp = "L_kv_vloop" if vtype else "L_kv_kloop"
        k.align(6)
        k.label(lp)
        for stage in range(2):
            for s_ in range(2):
                fills = [[] for _ in range(32)]
                pre = []
                if s_ == 0:
                    k.e("s_waitcnt lgkmcnt(0)")
                    rd = reads(1, stage, 1)
                    if stage == 1 and vtype == 0:
                        fills[20] += A.ool(k, ["s_bitcmp1_b32 s43, s35"], "s_cbranch_scc1", switch(k, "s35", [
                            (0, ["global_load_dword v116, v118, s[88:89] sc1"]),
                            (3, ["v_and_b32 v117, 15, v1", f"v_add_u32 v117, {CNT_LN}, v117", "v_lshlrev_b32 v117, 7, v117",
                                 "global_load_dword v116, v117, s[90:91] sc1"])]))
                else:
                    nt = 0 if cfg.get("notouch") else 1
                    if vtype == 0 and stage == 0:
                        emit(k, A.ool(k, ["s_cmp_eq_u32 s35, 3"], "s_cbranch_scc1", p1_retarget(cfg)))
                    la, lb = k.newlabel("w0"), k.newlabel("w0b")
                    if stage == 1 and vtype == 0:
                        A.OOL.append([la + ":", "s_waitcnt vmcnt(0)"] + switch(k, "s35", [(0, check(k, "s[88:89]", "v118", "v116", 1)), (3, ln_check(k))]) + [f"s_branch {lb}"])
                        emit(k, ["s_bitcmp1_b32 s43, s35", f"s_cbranch_scc1 {la}", f"s_waitcnt vmcnt({nt})", lb + ":", "s_waitcnt lgkmcnt(0)"])
                    elif stage == 1:
                        k.e(f"s_waitcnt vmcnt({nt}) lgkmcnt(0)")
                    else:
                        A.OOL.append([la + ":"] + switch(k, "s35", [(0, (lines(ln_part2, 120) if vtype == 0 else []) + ["s_waitcnt vmcnt(2)"]), (1, [f"s_waitcnt vmcnt({nt+1})"])]) + [f"s_branch {lb}"])
                        emit(k, ["s_cmp_lt_u32 s35, s44", f"s_cbranch_scc1 {la}", f"s_waitcnt vmcnt({nt})", lb + ":", "s_waitcnt lgkmcnt(0)"])
                    if nt:
                        tp = int(cfg.get("tpos", 31))
                        nl = int(cfg.get("tl", 8)); t0 = int(cfg.get("t0", 0))
                        on = [t for t in range(t0, t0 + -(-32 // nl)) if t % 2 == stage]
                        tl = [f"s_bitcmp1_b32 {sum(1 << (t // 2) for t in on)}, s35", f"s_cselect_b32 exec_lo, {(1 << nl) - 1 if nl < 32 else -1}, 1", "s_mov_b32 exec_hi, 0",
                              f"global_load_dword v0, v17, s[96:97]", "s_mov_b64 exec, -1", "s_cselect_b32 s36, s45, 0",
                              "v_add_u32 v17, s36, v17", f"v_min_u32 v17, {8388608-128}, v17"]
                        fills[tp] += tl + ["s_nop 1"]
                    if stage == 1: k.e("s_cmp_eq_u32 s35, 3")
                    k.e("s_barrier")
                    if stage == 1: k.e(f"s_cbranch_scc1 L_p1_fin{vtype}")
                    rd = reads(0, stage ^ 1, 0)
                    if stage == 1 and vtype == 0:
                        fills[30] += A.ool(k, ["s_add_u32 s36, s35, s28", "s_cmp_eq_u32 s36, 0"], "s_cbranch_scc1",
                                          ["s_lshr_b32 s36, s2, 4", f"s_add_u32 s36, s36, {CNT_LN}", "s_lshl_b32 s36, s36, 7"] + signal("s[90:91]", "s36", "v16", "v19"))
                for g in range(16): fills[g].append(rd[g])
                if s_ == 1:
                    mc, c, mw, w = dma_list(stage)
                    tail = ["s_add_u32 s31, s31, s40", "s_add_u32 s32, s32, s41"]
                    if vtype == 1:
                        pre = [mc, "s_nop 0"] + c + [mw, "s_nop 0"] + w + tail
                        if stage == 1:
                            pre += A.ool(k, ["s_cmp_eq_u32 s35, 2"], "s_cbranch_scc1", p1_retarget(cfg))
                        else:
                            l7 = k.newlabel("l7")
                            pre += A.ool(k, ["s_cmp_eq_u32 s35, 0"], "s_cbranch_scc1", lines(ln_part2, 120) +
                                         ["s_cmp_eq_u32 s28, 7", f"s_cbranch_scc0 {l7}"] + ln_part3(120) + [l7 + ":"])
                    else:
                        fills[0].append(mc)
                        for j in range(4): fills[1+3*j].append(c[j])
                        fills[12].append(mw)
                        for j in range(4): fills[13+3*j].append(w[j])
                        fills[31] += tail
                ladder(fills, 0, 32, "1" in cfg.get("lad", ""), (3, 2) if s_ == 1 else (1, 0))
                emit(k, pre)
                emit(k, weave(mfmas(s_, vtype), fills))
                if s_ == 1: k.e(cfg["sth1"].hist(8, first=(vtype == 0 and stage == 0)))
        k.e("s_add_u32 s35, s35, 1")
        k.e(f"s_branch {lp}")
        k.label(f"L_p1_fin{vtype}")
        mc, c, mw, w = dma_list(1)
        head = lines(p2_setup) + lines(srd, 8, 54, 4194304)
        lds = flat([xld2(0, s_) for s_ in range(4)])
        W1[:] = [[mc, "s_add_u32 s32, s32, 4096"]] + [[x] for x in c] + [[mw, f"s_mov_b32 s31, {3*128*8192}"]] + [[x] for x in c] + \
                [["s_add_u32 s31, s31, s40", "s_mov_b32 s34, s33"]]
        rest = lines(p2_setup2)
        fills = [[] for _ in range(32)]
        if vtype == 1: emit(k, head)
        else: fills[0] += head
        fs = int(cfg.get("fs", 4))
        for i, x in enumerate(lds): fills[1+fs*i] += [x]
        for i, x in enumerate(rest): fills[min(2+i, 31)] += [x]
        emit(k, weave(mfmas(1, vtype), fills))
        k.e(cfg["sth1"].hist(8, first=False))
        if vtype == 0: k.e("s_branch L_p1_done")
    k.label("L_p1_done")
    if cfg.get("diag") == "mfma":
        k.e("s_mov_b32 s35, 64")
        k.label("L_diag")
        for i in range(16): k.e(f"{MF} v[{56+4*(i&1)}:{59+4*(i&1)}], {v(68+4*(i%8),4)}, {v(100+4*(i//4),4)}, v[{56+4*(i&1)}:{59+4*(i&1)}]")
        k.e(["s_sub_u32 s35, s35, 1", "s_cmp_lg_u32 s35, 0", "s_cbranch_scc1 L_diag", "s_nop 7"])
    if cfg.get("diag") == "idle":
        k.e("s_mov_b32 s35, 256")
        k.label("L_diag")
        k.e(["s_nop 15"]*2 + ["s_sub_u32 s35, s35, 1", "s_cmp_lg_u32 s35, 0", "s_cbranch_scc1 L_diag"])

def kv_pack(k):
    for q in range(16):
        a = 128 + 8*q
        for e in range(4):
            k.e(f"v_cvt_pk_bf16_f32 v{KP+4*q+e}, v{a+2*e}, v{a+2*e+1}")
    k.e("s_lshl_b32 s38, s29, 20")
    k.e("s_lshl_b32 s37, s30, 17")
    k.e("s_add_u32 s38, s38, s37")
    k.e("s_bfe_u32 s37, s28, 0x10001")
    k.e("s_lshl_b32 s37, s37, 16")
    k.e("s_add_u32 s38, s38, s37")
    k.e("s_lshr_b32 s36, s28, 2")
    k.e("s_lshl_b32 s37, s36, 15")
    k.e("s_add_u32 s38, s38, s37")
    k.e("s_and_b32 s37, s28, 1")
    k.e("s_add_u32 s36, s36, 11")
    k.e("s_lshl_b32 s37, s37, s36")
    k.e("s_add_u32 s38, s38, s37")
    k.e("s_cmp_lt_u32 s28, 4")
    k.e("s_cselect_b32 s36, 4, 32")
    k.e("s_cselect_b32 s37, 16, 64")
    k.e("s_cselect_b32 s39, 32, 4")
    k.e("s_lshl_b32 s36, s36, 8")
    k.e("s_lshl_b32 s37, s37, 8")
    k.e("s_lshl_b32 s39, s39, 8")
    k.e("s_mov_b64 s[16:17], s[12:13]")
    k.e("s_mov_b64 s[18:19], s[14:15]")
    k.e("s_cmp_eq_u32 s30, 0")
    k.e("s_cselect_b32 s52, 2, 4")
    k.e("v_lshlrev_b32 v58, 4, v1")
    k.e("v_add_u32 v59, s36, v58")
    k.e("v_add_u32 v60, s37, v58")
    k.e("v_add_u32 v61, s36, v60")

def p2_setup(k):
    k.e("s_and_b32 s36, s28, 3")
    k.e("s_sub_u32 s37, 15, s30")
    k.e("s_cmp_lt_u32 s28, 4")
    k.e("s_cselect_b32 s37, s37, s30")
    k.e("s_lshl_b32 s37, s37, 2")
    k.e("s_add_u32 s37, s37, s36")
    k.e("s_lshl_b32 s37, s37, 16")
    k.e("v_lshl_add_u32 v6, v1, 4, s37")
    k.e("v_add_u32 v7, 32768, v6")
    k.e("s_mov_b32 s32, 0")

def p2_setup2(k):
    k.e("v_lshrrev_b32 v18, 4, v1")
    k.e("v_bfe_u32 v20, v1, 2, 2")
    k.e("v_lshl_add_u32 v19, v18, 3, v20")
    k.e("v_lshlrev_b32 v19, 8, v19")
    k.e("v_and_b32 v21, 3, v1")
    k.e("v_lshl_add_u32 v19, v21, 3, v19")
    k.e("v_and_b32 v21, 1, v18")
    k.e("v_lshl_add_u32 v20, v21, 2, v20")
    for db in range(8):
        k.e(f"v_xor_b32 v21, {db}, v20")
        k.e(f"v_lshl_add_u32 v{10+db}, v21, 5, v19")
    k.e("s_lshl_b32 s45, s29, 20")

def WOp(text, stage):
    ops = [VM(text, ("W", 2*it + stage + 4)) for it in range(4)]
    return Alt([ops[0]], lambda c: [ops[c["it"]]])
class NeedW(Alt):
    def __init__(self, stage):
        self.nd = Need("vm", [])
        def pick(c):
            return [SetTags(self.nd, [("W", 2*c["it"] + stage + 1)] if 2*c["it"] + stage + 1 < 8 else []), self.nd]
        Alt.__init__(self, [self.nd], pick)

def p2_pieces(k, cfg, evA, evB):
    def wdma(stage):
        return [f"s_add_u32 m0, s34, {stage*32768}"], [WOp(f"buffer_load_dwordx4 v{2+j}, s[4:7], s31 offen offset:{j*1024}{SC}{NT(cfg, 'q')} lds", stage) for j in range(4)]
    xld = xld2
    def wrd(stage, s_, db):
        return [DS(f"ds_read_b64_tr_b16 {v(WF+4*db+2*t,2)}, v{10+db} offset:{stage*32768+(32*s_+4*t)*256}", ("w", db)) for t in range(2)]
    def store(q, so="s38"):
        return VM(f"buffer_store_dwordx4 {v(KP+4*q,4)}, v{58+(q&3)}, s[16:19], {so} offen{'' if cfg.get('xkv') else SC}", "kvst")
    early = ["s_lshl_b32 s36, s39, 1", "s_add_u32 s36, s36, s38", "s_add_u32 s37, s36, s39"] + [store(q, f"s{34+q//4}") for q in range(8, 16)]
    prox = [xld(1, s_) for s_ in range(3)]
    D = 6
    pro2 = [wrd(0, 0, db) for db in range(D)]
    halves = []
    nkv = Need("vm", ["kvst1"])
    kvw = [Alt(A.ool(k, ["s_cmp_eq_u32 s35, s52"], "s_cbranch_scc1", [nkv]), lambda c: [nkv] if c["fast"] and c["it"] == 2 else []), []]
    for stage in range(2):
        M, fills, pre = [], [[] for _ in range(64)], {}
        for s_ in range(4):
            for db in range(8):
                for rb in range(2):
                    o = A.Oreg(rb, db)
                    M.append(f"{MF} {v(o,4)}, {v(WF+4*db,4)}, {v(XF[stage]+(s_*2+rb)*4,4)}, {v(o,4)}")
        for p in range(32):
            if p % 2 == 0: pre[2*p] = [Need("ds", [("w", p % 8), ("w", (p+1) % 8)])]
            if p % 8 == 0: pre[2*p] += [Need("vm", [("x", stage, p // 8)])]
            f = p + D
            if f < 32:
                r = wrd(stage, f // 8, f % 8)
                fills[2*p] += [r[0]]; fills[2*p+1] += [r[1]]
                if stage == 1 and f >= 24: fills[2*p+1] += [f"v_xor_b32 v{10+f%8}, 65536, v{10+f%8}"]
        pre[0] = [evB[stage]] + pre[0]
        fills[2*27+1] += [evA[stage], "s_waitcnt lgkmcnt(0)", NeedW(stage), kvw[stage], "s_barrier"]
        nx = {28: [0, 1], 29: [2, 3], 30: [4], 31: [5]}
        for p, fl in nx.items():
            for i, f in enumerate(fl):
                fills[2*p+i] += wrd(stage ^ 1, 0, f)
        for s_ in range(4):
            xl = xld(stage ^ 1, 3) if s_ == 0 else xld(stage, s_-1)
            fills[16*s_+2] += [xl[0]]; fills[16*s_+6] += [xl[1]]
            if s_ == 0:
                fills[7] += ["s_add_u32 s32, s32, 4096"]
                if stage == 0:
                    fills[8] += ["s_cmp_lt_u32 s35, 3", "s_cselect_b32 s10, 4194304, 0"]
        if not cfg.get("nokvst"):
            spos = [int(x) for x in cfg.get("spos", "10,30").split(",")]
            for i in range(2):
                q = 2*stage + i
                s0, s1 = store(q), store(q); s1.tag = "kvst1"
                fills[spos[i]] += [Alt([s0], lambda c, s0=s0, s1=s1: [s1 if c["it"] == 1 else s0])]
                for g in range(3):
                    for h in range(2):
                        r = KP + 16*g + 4*q + 2*h
                        fills[spos[i]+2+2*(2*g+h)] += [f"v_mov_b64 v[{r}:{r+1}], v[{r+16}:{r+17}]"]
            if stage == 1: fills[spos[1]+1] += ["s_add_u32 s38, s38, s39"]
            if stage == 0: fills[9] += ["s_cmp_lt_u32 s35, s52", "s_cselect_b32 s18, s18, 0"]
        m, d = wdma(stage)
        fills[2*29+1] += m
        fills[60] += [d[0]]; fills[61] += [d[1]]; fills[62] += [d[2]]; fills[63] += [d[3], "s_add_u32 s31, s31, s40"]
        if stage == 1: fills[63] += ["s_xor_b32 s34, s34, 65536"]
        ladder(fills, 56, 64, "2" in cfg.get("lad", ""))
        halves.append(weave(M, fills, pre))
    return prox, pro2, halves, early

def p2_events(k, cfg):
    W0 = (["s_cmp_eq_u32 s28, 0"], "s_cbranch_scc0")
    def E3():
        return ["s_mov_b64 s[4:5], s[12:13]", "s_mov_b32 s6, s14", "s_mov_b32 s31, s45", "s_mov_b32 s40, 32768", "s_mov_b32 s34, s33",
                "v_add_u32 v2, s33, v58", "v_mov_b32 v3, v2", "v_mov_b32 v4, v2", "v_mov_b32 v5, v2"]
    off0 = [f"s_add_u32 s36, s29, {CNT_KV0}", "s_lshl_b32 s36, s36, 7"]
    sig0 = guard(k, ["s_add_u32 s36, s28, s30", "s_cmp_eq_u32 s36, 4"], "s_cbranch_scc0", off0 + signal("s[90:91]", "s36", "v62", "v63"), "sg")
    pol0 = guard(k, *W0, off0 + [f"v_mov_b32 {vZ}, s36", VM(f"global_load_dword {vPOLL}, {vZ}, s[90:91] sc1", "poll")], "w0")
    chk0 = guard(k, *W0, [Need("vm", ["poll"])] + check(k, "s[90:91]", vZ, vPOLL, 1), "w0")
    off = ["s_mov_b32 s6, 0", "s_mov_b32 s34, 0x30000"]
    evs = {"A": {(2, 0): off, (3, 0): E3() + [chk0]},
           "B": {(2, 0): off, (2, 1): [sig0], (3, 0): E3()}}
    if "2" in cfg.get("cpf", ""):
        evs["B"][(2, 0)] = off + [guard(k, ["s_cmp_eq_u32 s28, 5"], "s_cbranch_scc0", ["s_mov_b32 s60, s38"] + code_touch(k, 20, "v22") + ["s_mov_b32 s38, s60"], "w0")]
    top = {(3, 0): [pol0], (3, 1): ["s_add_u32 s34, s33, 32768"]}
    out = {}
    for g, cmp_ in (("A", "s_cmp_lt_u32 s28, 4"), ("B", "s_cmp_ge_u32 s28, 4")):
        out[g] = []
        for stage in range(2):
            if g == "A" and stage == 1:
                out[g].append([]); continue
            cs = [(it, evs[g].get((it, stage), [])) for it in (2, 3)]
            inner = []
            if g == "B":
                l = k.newlabel("nv0")
                inner += ["s_cmp_eq_u32 s35, 3", f"s_cbranch_scc0 {l}"] + top[(3, stage)] + [l + ":"]
            l = k.newlabel("ng")
            inner += [cmp_, f"s_cbranch_scc0 {l}"] + switch(k, "s35", cs) + [l + ":"]
            def pick(c, g=g, stage=stage):
                r = []
                if g == "B" and c["it"] == 3 and (c["grp"] == "A" or stage == 1): r += top[(3, stage)]
                if c["grp"] == g: r += evs[g].get((c["it"], stage), [])
                return r
            out[g].append(Alt(A.ool(k, ["s_cmp_ge_u32 s35, 2"], "s_cbranch_scc1", inner), pick))
    return out["A"], out["B"]

def p2(k, cfg, st):
    evA, evB = p2_events(k, cfg)
    prox, pro2, halves, early = p2_pieces(k, cfg, evA, evB)
    earlyA = Alt(A.ool(k, ["s_cmp_eq_u32 s30, 0"], "s_cbranch_scc1", early), lambda c: early if c["fast"] else [])
    body = [halves[0], cfg["sth2"].hist(8), halves[1], cfg["sth2"].hist(8, first=False)]
    nq = Need("vm", [("W", 10), "v0", "kvst", "xsel"] + [("x", a, b) for a in range(2) for b in range(4)])
    n0 = Need("vm", [("x", 0, 3)])
    scen = []
    for grp, w0 in (("A", 0), ("A", 1), ("B", 0), ("B", 1)):
        for ffn in (0,):
            for fast in (0, 1):
                sq = flat([xld2(0, s_) for s_ in range(4)]) + [VM("", ("W", 1))]*4 + [VM("", ("W", 3))]*4 + flat([pro2, prox, n0, earlyA], dict(fast=fast))
                for it in range(4): sq += flat(body, dict(it=it, w0=w0, ffn=ffn, fast=fast, grp=grp, sg=fast and w0))
                scen.append(sq + [nq])
    resolve(scen)
    cfg["qwait"] = nq.n
    st.mark()
    k.e("s_waitcnt vmcnt(8)")
    emit(k, pro2)
    work = lines(kv_pack) + zero(A.O_, 64)
    ops = W1 + [[x] for x in flat(prox)]
    step = 64 // len(ops) + 1
    for i, x in enumerate(work):
        if i % step == 0 and i // step < len(ops) and i < 64: emit(k, ops[i // step])
        k.e(x)
    for g in ops[-(-64 // step):]: emit(k, g)
    k.e("s_mov_b32 s35, 0")
    emit(k, [n0, earlyA])
    st.mark()
    k.align(6)
    k.label("L_p2_loop")
    emit(k, body)
    k.e("s_add_u32 s35, s35, 1")
    k.e("s_cmp_lt_u32 s35, 4")
    k.e("s_cbranch_scc1 L_p2_loop")
    st.mark()
```

```python
from common import *
import attn as A
import ffn as F
import oproj as O
from fused_a import *

X32, G = 96, 112
XI, YA = 40, 24
WR4, XF4 = 64, [128, 160]
PRE, FW, HH, DD = 96, 112, 36, 96
LDS_P4 = 65536

CFG = {}
def after_q(k, grp):
    srd(k, 16, 54, 16777216, WS_CTX)
    if grp == 0:
        srd(k, 4, 92, 7340032)
        srd(k, 8, 94, 7340032)
        k.e("s_and_b32 s60, s29, 3")
        k.e(f"s_add_u32 s60, s60, {CFG.get('e0', 4)}")
        k.e("s_sub_u32 s3, s2, 32")
        k.e("s_cmp_eq_u32 s28, 0")
        k.e("s_cselect_b32 s36, 0xad, 0x2d")
        k.e("s_cselect_b32 s42, 14, 12")
        k.e("s_cmp_lt_u32 s3, 224")
        k.e("s_cselect_b32 s36, s36, 0")
        k.e("s_lshl_b32 s36, s36, s60")
        k.e("s_or_b32 s42, s42, s36")
    else:
        emit(k, A.ool(k, ["s_cmp_eq_u32 s28, 4"], "s_cbranch_scc1", ["s_lshl_b32 s36, s29, 7", "s_cmp_eq_u32 s30, 0", "s_cselect_b32 s37, 4, 0", "s_add_u32 s36, s36, s37"] + signal("s[90:91]", "s36", "v20", "v21")))
        nl = int(CFG.get("btl", 32))
        k.e("s_and_b32 s36, s2, 127" if CFG.get("btall") else "s_sub_u32 s36, s2, 128")
        k.e("s_lshl_b32 s36, s36, 1")
        k.e("s_and_b32 s37, s28, 1")
        k.e("s_add_u32 s36, s36, s37")
        k.e("s_cmp_lt_u32 s28, 6")
        k.e("s_cselect_b64 s[4:5], s[32:33], s[34:35]")
        k.e("s_cselect_b32 s37, 32, 28")
        k.e("s_lshl_b32 s37, s37, 3")
        k.e("s_cmp_lt_u32 s36, s37")
        k.e(f"s_cselect_b32 s6, {0 if CFG.get('nobt') else 32768*int(CFG.get('btn', 1))}, 0")
        k.e("s_cselect_b32 s36, s36, 0")
        k.e("s_sub_u32 s37, s37, s36")
        k.e("s_lshl_b32 s37, s37, 15")
        k.e("s_min_u32 s6, s6, s37")
        k.e("s_lshl_b32 s36, s36, 15")
        k.e("s_add_u32 s4, s4, s36")
        k.e("s_addc_u32 s5, s5, 0")
        k.e("s_and_b32 s5, s5, 0xffff")
        k.e("s_mov_b32 s7, 0x20000")
        k.e(f"v_cmp_gt_u32 vcc, {nl}, v1")
        k.e("v_lshlrev_b32 v13, 7, v1")
        k.e("v_mov_b32 v12, 0x100000")
        k.e("v_cndmask_b32 v13, v12, v13, vcc")
        k.e("s_mov_b32 s48, 0")
        if CFG.get("btall"):
            k.e("s_cmp_lt_u32 s2, 128")
            k.e(f"s_cselect_b32 s48, {-8*128*nl + 65536}, 0")
            k.e(f"s_cselect_b32 s36, {1<<20}, 0")
        if "3" in CFG.get("cpf", ""):
            k.e("s_cmp_eq_u32 s28, 5")
            k.e("s_cselect_b32 s36, 0x1000, 0")
            k.e("s_or_b32 s42, s42, s36")

def pro_wait(k, grp):
    if grp == 0: return ["s_waitcnt vmcnt(0)"]
    l = k.newlabel("pw")
    return ["s_waitcnt vmcnt(1)", "s_cmp_eq_u32 s28, 4", f"s_cbranch_scc1 {l}", "s_waitcnt vmcnt(0)", l + ":"]

def pro_hook(k, grp):
    if grp == 0:
        return A.ool(k, ["s_cmp_eq_u32 s28, 0"], "s_cbranch_scc1",
                     ["s_lshl_b32 s36, s29, 7", "v_mov_b32 v13, s36", "global_load_dword v14, v13, s[90:91] sc1"])
    return []

def b_hook(k):
    l = k.newlabel("bh")
    return ["s_cmp_eq_u32 s40, 12", f"s_cbranch_scc0 {l}"] + code_touch(k, 26, "v0") + [l + ":"]

def f1dma(m):
    L = ["s_and_b32 s20, s3, 3", "s_lshl_b32 s20, s20, 8", "s_lshl_b32 s21, s28, 5", "s_add_u32 s20, s20, s21",
         "s_lshr_b32 s21, s3, 2", "s_lshl_b32 s21, s21, 7"] + lines(F.wdma_addr, 24, "s20", 7168, "s21")
    L += ["s_lshl_b32 s36, s28, 13", f"s_add_u32 m0, s36, {LDS_X}", f"s_mov_b32 s37, {32*7168}"]
    L += [f"buffer_load_dwordx4 v{24+j}, s[{4+4*m}:{7+4*m}], 0 offen offset:{j*1024}{NT(CFG, 'f')} lds" for j in range(4)]
    L += [f"s_add_u32 m0, s36, {LDS_X+4096}", "s_nop 0"]
    L += [f"buffer_load_dwordx4 v{24+j}, s[{4+4*m}:{7+4*m}], s37 offen offset:{j*1024}{NT(CFG, 'f')} lds" for j in range(4)]
    return L

def bar_hook(k, grp):
    if grp == 1: return []
    QS = A.QS_
    keys = [f"s_mov_b32 s36, {F.WS_KEY}"] + [f"buffer_load_dwordx4 {v(QS+4*i,4)}, {A.vL16}, s[24:27], s36 offen offset:{i*1024}{SC}" for i in range(2)]
    t2 = K("t"); F.top2(t2, QS, 24, 8, 20)
    top = [x.strip() for x in t2.lines]
    top += ["v_and_b32 v24, 1, v1", "v_mov_b32 v25, s56", "v_mov_b32 v26, s57", "v_cmp_eq_u32 vcc, 1, v24", "s_nop 1",
            "v_cndmask_b32 v25, v25, v26, vcc", "v_lshrrev_b32 v26, 4, v25", "v_lshlrev_b32 v26, 15, v26", "v_and_b32 v25, 15, v25",
            "v_lshl_add_u32 v26, v25, 4, v26", "v_lshrrev_b32 v27, 4, v1", "v_lshl_add_u32 v26, v27, 8, v26",
            "s_and_b32 s36, s3, 3", "s_lshl_b32 s36, s36, 13", "s_add_u32 s37, s36, 4096",
            "s_mov_b32 exec_lo, 0x00030003", "s_mov_b32 exec_hi, 0x00030003"]
    top += [f"buffer_load_dwordx4 {v(QS+4*i,4)}, v26, s[24:27], s{36+i//4} offen offset:{(i%4)*1024}{SC}" for i in range(8)]
    top += ["s_mov_b64 exec, -1"]
    dma = f1dma
    def mm(m):
        FRG = [14, 20, 24]
        L = lines(F.wrd_addr, "v5", "v9", "v8")
        L += ["v_xor_b32 v9, s28, v9", "v_lshl_add_u32 v5, v9, 5, v5", f"v_add_u32 v5, {LDS_X}, v5"]
        rd = lambda ss: [f"ds_read_b64_tr_b16 {v(FRG[s_%3]+2*t,2)}, v5 offset:{(32*s_+4*t)*128}" for s_ in ss for t in range(2)]
        L += rd(range(3))
        L += ["s_and_b32 s36, s3, 3", "s_lshl_b32 s36, s36, 6", "s_lshr_b32 s37, s3, 2", "s_lshl_b32 s37, s37, 12", "s_add_u32 s36, s36, s37",
              "s_lshl_b32 s37, s28, 10", "s_add_u32 s36, s36, s37", f"s_add_u32 s36, s36, {WS_PRE + 32*m}",
              "v_and_b32 v9, 1, v1", "v_lshlrev_b32 v9, 4, v9", "v_lshl_add_u32 v9, v8, 8, v9"]
        for s_ in range(8):
            L += [f"s_waitcnt lgkmcnt({2*min(2, 7-s_)})", f"{MF} v[10:13], {v(FRG[s_%3],4)}, {v(QS+4*s_,4)}, {'v[10:13]' if s_ else '0'}"]
            if s_ + 3 < 8: L += rd([s_+3])
        L += ["s_nop 5", "s_mov_b32 exec_lo, 0x00030003", "s_mov_b32 exec_hi, 0x00030003",
              f"buffer_store_dwordx4 v[10:13], v9, s[24:27], s36 offen{SC}", "s_mov_b64 exec, -1", "s_nop 1"]
        return L
    sig = ["s_mul_i32 s36, s3, 2341", "s_lshr_b32 s36, s36, 16", f"s_add_u32 s36, s36, {CNT_F1}", "s_lshl_b32 s36, s36, 7"] + signal("s[90:91]", "s36", "v20", "v21")
    dbg = CFG.get("f1", "")
    if "d" in dbg: dma = lambda m: []
    if "m" in dbg: mm = lambda m: []
    if "t" in dbg: keys = []; top = ["s_mov_b32 s56, 0", "s_mov_b32 s57, 0"]
    ffn = ["s_sub_u32 s38, s40, s60"] + switch(k, "s38", [(0, dma(0)), (2, mm(0)), (3, dma(1)), (5, mm(1)), (7, sig)])
    return A.ool(k, ["s_bitcmp1_b32 s42, s40"], "s_cbranch_scc1",
                 switch(k, "s40", [(1, check(k, "s[90:91]", "v13", "v14", 7)), (2, keys), (3, top), (4, ffn)]))

def before_tail(k, grp):
    srd(k, 4, 34, 7340032)
    srd(k, 8, 32, 8388608)
    k.e("s_lshr_b32 s38, s2, 4")
    k.e("s_mul_i32 s38, s38, 224")
    k.e("s_and_b32 s39, s2, 15")
    k.e("s_lshl_b32 s39, s39, 7")
    F.wdma_addr(k, 24, "s38", 2048, "s39")
    k.e("s_lshl_b32 s36, s28, 12")
    k.e(f"s_add_u32 s36, s36, {LDS_X}")
    k.e("s_cmp_lt_u32 s28, 7")
    k.e("s_cselect_b32 m0, s36, 0x30000")
    k.e("s_cselect_b32 s6, 7340032, 0")
    for j in range(4): k.e(f"buffer_load_dwordx4 v{24+j}, s[4:7], 0 offen offset:{j*1024} lds")
    k.e("s_lshr_b32 s36, s2, 5")
    k.e(f"s_add_u32 s36, s36, {CNT_F1}")
    k.e("s_lshl_b32 s36, s36, 7")
    k.e("v_mov_b32 v12, s36")
    k.e("global_load_dword v11, v12, s[90:91] sc1")

def before_merge(k):
    k.e("s_waitcnt vmcnt(0)")
    emit(k, check(k, "s[90:91]", "v12", "v11", 28))
    k.e(["s_lshr_b32 s36, s2, 4", "s_mul_i32 s36, s36, 7", "s_min_u32 s37, s28, 6", "s_add_u32 s36, s36, s37",
         "s_lshl_b32 s36, s36, 11", f"s_add_u32 s36, s36, {WS_PRE}", "v_and_b32 v11, 15, v1", "v_lshlrev_b32 v11, 4, v11",
         "v_lshrrev_b32 v12, 4, v1", "v_lshl_add_u32 v11, v12, 9, v11"])
    k.e([f"buffer_load_dwordx4 {v(PRE+4*h,4)}, v11, s[24:27], s36 offen offset:{256*h}{SC}" for h in range(2)])

def gcalc(k, withy, cbs=range(4)):
    for cb in cbs:
        for h in range(2):
            a, b = X32+4*cb+2*h, X32+4*cb+2*h+1
            ga, gb = G+4*cb+2*h, G+4*cb+2*h+1
            k.e(f"v_lshlrev_b32 v{a}, 16, v{XI+2*cb+h}")
            k.e(f"v_and_b32 v{b}, 0xffff0000, v{XI+2*cb+h}")
            k.e(f"v_sub_f32 v{ga}, v{a}, v{XI+8}")
            k.e(f"v_sub_f32 v{gb}, v{b}, v{XI+8}")
            def rnd2():
                k.e(f"v_cvt_pk_bf16_f32 v10, v{ga}, v{gb}")
                k.e(f"v_lshlrev_b32 v{ga}, 16, v10")
                k.e(f"v_and_b32 v{gb}, 0xffff0000, v10")
            rnd2()
            k.e(f"v_mul_f32 v{ga}, v{ga}, v{XI+9}")
            k.e(f"v_mul_f32 v{gb}, v{gb}, v{XI+9}")
            rnd2()
            if withy:
                k.e(f"v_add_f32 v{ga}, v{ga}, v{YA+4*cb+2*h}")
                k.e(f"v_add_f32 v{gb}, v{gb}, v{YA+4*cb+2*h+1}")
                rnd2()
            k.e(f"v_mul_f32 v11, 0xbfb8aa3b, v{ga}")
            k.e(f"v_mul_f32 v12, 0xbfb8aa3b, v{gb}")
            k.e("v_exp_f32 v11, v11")
            k.e("v_exp_f32 v12, v12")
            k.e("s_nop 0")
            k.e("v_add_f32 v11, 1.0, v11")
            k.e("v_add_f32 v12, 1.0, v12")
            k.e("v_rcp_f32 v11, v11")
            k.e("v_rcp_f32 v12, v12")
            k.e("s_nop 0")
            k.e(f"v_mul_f32 v{ga}, v{ga}, v11")
            k.e(f"v_mul_f32 v{gb}, v{gb}, v12")
            rnd2()

def ffn2_math(k):
    F.wrd_addr(k, "v26", "v27", "v28")
    k.e("s_lshl_b32 s36, s28, 12")
    k.e(f"s_add_u32 s36, s36, {LDS_X}")
    k.e("v_add_u32 v26, s36, v26")
    for cb in range(4):
        k.e(f"v_xor_b32 v28, {cb}, v27")
        k.e("v_lshl_add_u32 v28, v28, 5, v26")
        for t in range(2):
            k.e(f"ds_read_b64_tr_b16 {v(FW+4*cb+2*t,2)}, v28 offset:{4*t*128}")
    for m in ("row_ror:4", "row_ror:8"):
        for e in range(8): k.e(f"v_add_f32_dpp v{PRE+e}, v{PRE+e}, v{PRE+e} {m} row_mask:0xf bank_mask:0xf")
    for e in range(0, 8, 2):
        k.e(f"v_cvt_pk_bf16_f32 v29, v{PRE+e}, v{PRE+e+1}")
        k.e(f"v_lshlrev_b32 v{PRE+e}, 16, v29")
        k.e(f"v_and_b32 v{PRE+e+1}, 0xffff0000, v29")
    for e in range(8): k.e(f"v_mul_f32 v{PRE+8+e}, 0xbfb8aa3b, v{PRE+e}")
    for e in range(8): k.e(f"v_exp_f32 v{PRE+8+e}, v{PRE+8+e}")
    for e in range(8): k.e(f"v_add_f32 v{PRE+8+e}, 1.0, v{PRE+8+e}")
    for e in range(8): k.e(f"v_rcp_f32 v{PRE+8+e}, v{PRE+8+e}")
    for e in range(8): k.e(f"v_mul_f32 v{PRE+8+e}, v{PRE+e}, v{PRE+8+e}")
    for e in range(0, 8, 2):
        k.e(f"v_cvt_pk_bf16_f32 v29, v{PRE+8+e}, v{PRE+8+e+1}")
        k.e(f"v_lshlrev_b32 v{PRE+8+e}, 16, v29")
        k.e(f"v_and_b32 v{PRE+8+e+1}, 0xffff0000, v29")
    for e in range(8): k.e(f"v_mul_f32_dpp v{PRE+e}, v{PRE+e}, v{PRE+8+e} quad_perm:[2,3,0,1] row_mask:0xf bank_mask:0xf")
    for q in range(4): k.e(f"v_cvt_pk_bf16_f32 v{HH+q}, v{PRE+2*q}, v{PRE+2*q+1}")
    k.e("s_waitcnt lgkmcnt(0)")
    k.e("v_lshl_add_u32 v28, v1, 4, s36")
    for cb in range(4): k.e(f"{MF} {v(DD+4*cb,4)}, {v(FW+4*cb,4)}, {v(HH,4)}, 0")
    k.e("s_nop 7")
    for cb in range(4): k.e(f"ds_write_b128 v28, {v(DD+4*cb,4)} offset:{cb*1024}")

def ffn2_reduce():
    L = ["s_lshl_b32 s36, s28, 10", f"s_add_u32 s36, s36, {LDS_X}", "v_lshl_add_u32 v28, v1, 4, s36"]
    L += [f"ds_read_b128 {v(PRE+4*w,4)}, v28 offset:{w*4096}" for w in range(7)]
    L += ["s_lshr_b32 s36, s2, 4", "s_lshl_b32 s36, s36, 13", "s_and_b32 s37, s2, 15", "s_lshl_b32 s37, s37, 8", "s_add_u32 s36, s36, s37",
          "s_lshl_b32 s37, s28, 6", "s_add_u32 s36, s36, s37", f"s_add_u32 s36, s36, {WS_YP}",
          "v_and_b32 v28, 1, v1", "v_lshlrev_b32 v28, 12, v28", "v_lshl_add_u32 v28, v19, 4, v28", "s_waitcnt lgkmcnt(0)"]
    for w in range(1, 7):
        L += [f"v_add_f32 v{PRE+e}, v{PRE+e}, v{PRE+4*w+e}" for e in range(4)]
    L += ["s_mov_b32 exec_lo, 0x00030003", "s_mov_b32 exec_hi, 0x00030003",
          VM(f"buffer_store_dwordx4 {v(DD,4)}, v28, s[24:27], s36 offen{SC}", "yp"), "s_mov_b64 exec, -1", "s_nop 3"]
    return L

def p4_setup(k):
    k.e("s_and_b32 s63, s30, 1")
    k.e("s_bfe_u32 s36, s2, 0x10002")
    k.e("s_lshl_b32 s36, s36, 3")
    k.e("s_add_u32 s30, s30, s36")
    k.e("s_and_b32 s29, s29, 15")
    k.e("s_and_b32 s36, s28, 3")
    k.e("s_lshl_b32 s37, s29, 2")
    k.e("s_add_u32 s36, s36, s37")
    k.e("s_lshl_b32 s36, s36, 18")
    k.e("s_lshr_b32 s37, s28, 2")
    k.e("s_lshl_b32 s37, s37, 12")
    k.e("s_add_u32 s36, s36, s37")
    k.e("s_lshl_b32 s37, s63, 16")
    k.e("s_add_u32 s36, s36, s37")
    k.e("s_lshr_b32 s37, s28, 2")
    k.e("s_lshl_b32 s37, s37, 17")
    k.e("s_add_u32 s36, s36, s37")
    k.e("v_lshl_add_u32 v2, v1, 4, s36")
    k.e(f"v_xor_b32 v3, {1<<17}, v2")
    k.e("v_lshrrev_b32 v19, 4, v1")
    k.e("s_lshr_b32 s36, s28, 2")
    k.e("s_lshl_b32 s36, s36, 7")
    k.e("s_and_b32 s37, s28, 3")
    k.e("s_lshl_b32 s37, s37, 4")
    k.e("s_add_u32 s36, s36, s37")
    k.e("s_lshl_b32 s33, s36, 8")
    k.e("s_lshl_b32 s37, s63, 11")
    k.e("s_add_u32 s36, s36, s37")
    k.e("v_add_u32 v18, s36, v19")
    k.e("v_lshlrev_b32 v18, 11, v18")
    k.e("s_lshr_b32 s36, s30, 1")
    k.e("s_lshl_b32 s36, s36, 8")
    k.e("v_add_u32 v18, s36, v18")
    k.e("v_lshlrev_b32 v20, 1, v19")
    k.e("v_and_b32 v21, 15, v1")
    k.e("v_xor_b32 v20, v20, v21")
    k.e("v_lshl_add_u32 v6, v20, 4, v18")
    k.e("v_xor_b32 v20, 8, v20")
    k.e("v_lshl_add_u32 v7, v20, 4, v18")
    k.e(f"v_add_u32 v7, {8192-1024}, v7")
    k.e(f"v_add_u32 v8, {2*(8192-1024)}, v6")
    k.e(f"v_add_u32 v9, {2*(8192-1024)}, v7")
    k.e("s_add_u32 s36, s2, 1")
    k.e("s_and_b32 s62, s36, 3")
    k.e("s_lshl_b32 s31, s62, 14")
    k.e("s_lshl_b32 s32, s62, 20")

def p4_setup2(k):
    k.e("v_bfe_u32 v20, v1, 2, 2")
    k.e("v_lshl_add_u32 v18, v19, 2, v20")
    k.e("v_and_b32 v20, 7, v18")
    k.e("s_lshl_b32 s36, s63, 2")
    k.e("s_xor_b32 s36, s36, 4")
    k.e("v_xor_b32 v20, s36, v20")
    k.e("v_lshlrev_b32 v18, 8, v18")
    k.e("s_lshr_b32 s36, s28, 2")
    k.e("s_lshl_b32 s36, s36, 15")
    k.e("s_add_u32 s36, s36, 65536")
    k.e("v_add_u32 v18, s36, v18")
    k.e("v_and_b32 v21, 3, v1")
    k.e("v_lshl_add_u32 v18, v21, 3, v18")
    for cb in range(8):
        k.e(f"v_xor_b32 v21, {cb}, v20")
        k.e(f"v_lshl_add_u32 v{50+cb}, v21, 5, v18")
    k.e(zero(A.O_, 64))

def ctx_ready(k, n, pre=None):
    l, le, lc = k.newlabel("cspin"), k.newlabel("cspinx"), k.newlabel("cchk")
    L = ["s_mov_b32 s61, 0x40000"]
    if pre is not None: L += [f"s_waitcnt vmcnt({pre})", f"s_branch {lc}"]
    return L + [l + ":", "s_sub_u32 s61, s61, 1", f"s_cbranch_scc1 {le}",
            "global_load_dword v59, v58, s[90:91] sc1", "s_waitcnt vmcnt(0)", lc + ":", "v_cmp_le_u32 vcc, 4, v59", "s_nop 0",
            "s_and_b32 s60, vcc_lo, 15", f"s_and_b32 s36, s60, {(1<<n)-1}", f"s_cmp_eq_u32 s36, {(1<<n)-1}", f"s_cbranch_scc1 {le}",
            "s_sleep 6", f"s_branch {l}", le + ":"]

def p4_pieces(k, cfg, tops):
    def wdma(stage, h):
        L = [[f"s_add_u32 m0, s34, {(stage^1)*65536 + h*16384}"]]
        L += [[VM(f"buffer_load_dwordx4 v{6+j}, s[8:11], s32 offen offset:{j*1024} lds", ("W", stage, h))] for j in range(4)]
        L.append([f"s_add_u32 s32, s32, {64*2048}"] if h == 0 else [f"s_add_u32 s32, s32, {192*2048}", "s_and_b32 s32, s32, 0x3fffff"])
        return L
    def xld(xs, s_):
        return [VM(f"buffer_load_dwordx4 {v(XF4[xs]+(s_*2+rb)*4,4)}, v{2+rb}, s[4:7], s31 offen offset:{s_*1024}{SC}", ("x", xs, s_)) for rb in range(2)]
    def wrd(s_, cb):
        return [DS(f"ds_read_b64_tr_b16 {v(WR4+4*cb+2*t,2)}, v{50+cb} offset:{(32*s_+16*t)*256}", ("w", cb)) for t in range(2)]
    xadv = ["s_add_u32 s31, s31, 8192", "s_and_b32 s31, s31, 0xffff"]
    nopw = lambda L: [g + (["s_nop 0"] if i == 0 else []) for i, g in enumerate(L)]
    prow0 = ["s_mov_b32 s34, s33"] + [nopw(wdma(t, h)) for t in range(2) for h in range(2)]
    prox = [xld(0, s_) for s_ in range(4)] + xadv
    D = 6
    pro2 = [wrd(0, cb) for cb in range(D)] + ["s_mov_b32 s35, 0", Need("vm", [("x", 0, int(cfg.get("xw", 3)))])] + [xld(1, s_) for s_ in range(3)]
    body = []
    for stage in range(2):
        for hh in range(2):
            M, fills, pre = [], [[] for _ in range(32)], {}
            for s_ in range(2*hh, 2*hh+2):
                for cb in range(8):
                    for rb in range(2):
                        o = A.Oreg(rb, cb)
                        M.append(f"{MF} {v(o,4)}, {v(WR4+4*cb,4)}, {v(XF4[stage]+(s_*2+rb)*4,4)}, {v(o,4)}")
            for p in range(16):
                if p % 2 == 0: pre[2*p] = [Need("ds", [("w", p % 8), ("w", (p+1) % 8)])]
                if p % 8 == 0: pre[2*p] += [Need("vm", [("x", stage, 2*hh + p // 8)])]
                f = p + D
                if f < 16:
                    r = wrd(2*hh + f // 8, f % 8)
                    fills[2*p] += [r[0]]; fills[2*p+1] += [r[1]]
                    if hh == 1 and f >= 8: fills[2*p+1] += [f"v_xor_b32 v{50+f%8}, 65536, v{50+f%8}"]
            if hh == 0: pre[0] = [tops[stage]] + pre[0]
            ev = []
            if stage == 1 and hh == 1:
                chk = switch(k, "s35", [(0, ctx_ready(k, 3, 8)), (1, ctx_ready(k, 4, 8))])
                ev = [Alt(A.ool(k, ["s_cmp_lt_u32 s60, 15"], "s_cbranch_scc1", chk), lambda c: [])]
            if stage == 1 and hh == 0:
                ev = [Alt(A.ool(k, ["s_cmp_lt_u32 s60, 15"], "s_cbranch_scc1", ["global_load_dword v59, v58, s[90:91] sc1"]), lambda c: [])]
            nxt = (stage, 1) if hh == 0 else (stage ^ 1, 0)
            fills[2*11+1] += ev + ["s_waitcnt lgkmcnt(0)", Need("vm", [("W",) + nxt, "yp" if (stage, hh) == (1, 1) else None]), "s_barrier"]
            nx = {12: [0, 1], 13: [2, 3], 14: [4], 15: [5]}
            for p, fl in nx.items():
                for i, f in enumerate(fl): fills[2*p+i] += wrd(2*nxt[1], f)
            wpos = {"0": [25, 26, 28, 30, 31, 31], "1": [24, 25, 27, 29, 31, 31]}[cfg.get("wp", "0")]
            for i, g in enumerate(wdma(stage, hh)): fills[wpos[i]] += g
            xp = {"0": [3, 9, 17, 21], "1": [5, 11, 17, 22], "2": [1, 3, 17, 19]}[cfg.get("xp", "0")]
            for i in range(2):
                s_ = 2*hh + i
                xl = xld(stage ^ 1, 3) if s_ == 0 else xld(stage, s_-1)
                fills[xp[2*i]] += [xl[0]]; fills[xp[2*i+1]] += [xl[1]]
                if s_ == 0:
                    fills[xp[1]] += xadv
            ladder(fills, 24, 32, "4" in cfg.get("lad", ""))
            body += weave(M, fills, pre)
            if hh == 1: body += cfg["sth4"].hist(8, first=(stage == 0))
    seq = [(0, 0, cb) for cb in range(8)]
    for c0 in (0, 4): seq += [(t, s_, cb) for t in range(2) for s_ in range(4) if (t, s_) != (0, 0) for cb in range(c0, c0+4)]
    M, fills, pre = [], [[] for _ in range(128)], {}
    seen = set()
    for p, (t, s_, cb) in enumerate(seq):
        for rb in range(2):
            o = A.Oreg(rb, cb)
            M.append(f"{MF} {v(o,4)}, {v(WR4+4*(p%8),4)}, {v(XF4[t]+(s_*2+rb)*4,4)}, {v(o,4)}")
        if p % 2 == 0: pre[2*p] = [Need("ds", [("w", p % 8), ("w", (p+1) % 8)])]
        if (t, s_) not in seen:
            seen.add((t, s_)); pre[2*p] += [Need("vm", [("x", t, s_)])]
        f = p + D
        if f < 64:
            t2, s2, c2 = seq[f]
            for h in range(2):
                fills[2*p+h] += [DS(f"ds_read_b64_tr_b16 {v(WR4+4*(f%8)+2*h,2)}, v{50+c2} offset:{(32*s2+16*h)*256}", ("w", f % 8))]
            if (t2, s2) == (0, 3): fills[2*p+1] += [f"v_xor_b32 v{50+c2}, 65536, v{50+c2}"]
    xl7 = xld(1, 3)
    fills[1] += [xl7[0]]; fills[5] += [xl7[1]]
    pre[12] = [Need("vm", [("W", 0, 1), ("W", 1, 0)]), "s_barrier"] + pre[12]
    pre[44] = [Need("vm", [("W", 1, 1)]), "s_barrier"] + pre[44]
    g = [x for x in lines(gcalc, False) if x != "s_nop 0"]
    g0, g1 = 8, int(cfg.get("g1", 72))
    pre[g0] += [Need("ds", ["xi"])]
    for i in range(0, len(g), 2):
        fills[g0 + i * (g1 - g0) // len(g)] += g[i:i+2]
    e1 = int(cfg.get("e1", 82))
    for cb in range(4):
        fills[74+cb] += [DS(f"ds_write_b128 v20, {v(A.Oreg(1,cb),4)} offset:{cb*1024}", "e1w")]
        fills[e1+1+cb//2] += [DS(f"ds_read_b128 {v(A.Oreg(1,cb),4)}, v21 offset:{cb*1024}", ("e1r", cb))]
        o0, o1 = A.Oreg(0, cb), A.Oreg(1, cb)
        fills[e1+6+2*cb] += [Need("ds", [("e1r", cb)])] + [f"v_add_f32 v{o0+e}, v{o0+e}, v{o1+e}" for e in range(2)]
        fills[e1+7+2*cb] += [f"v_add_f32 v{o0+e}, v{o0+e}, v{o1+e}" for e in range(2, 4)]
        fills[e1+7+2*cb] += [VM(f"buffer_store_dwordx4 {v(o0,4)}, v22, s[24:27], s41 offen offset:{cb*1024}{SC}", "ex")]
    fills[e1] += [Need("ds", ["e1w"]), "s_barrier"]
    fills[110] += ["s_lshr_b32 s36, s28, 2", "s_lshl_b32 s36, s36, 15", "s_and_b32 s37, s28, 3"]
    fills[111] += ["s_lshl_b32 s37, s37, 12", "s_add_u32 s36, s36, s37", "s_add_u32 s36, s36, 65536"]
    fills[112] += ["v_add_u32 v20, s36, v22", "v_xor_b32 v21, 32768, v20"]
    sp = int(cfg.get("sgp", 127))
    fills[sp] += ["s_waitcnt vmcnt(0)"] + signal("s[90:91]", "s40", "v4", "v13")
    fin = ["s_waitcnt vmcnt(16)", Need("vm", ["xl"])] + [DS(f"ds_read_b64 {v(XI+2*cb,2)}, v17 offset:{cb*32}", "xi") for cb in range(4)] + weave(M, fills, pre)
    return prow0, prox, pro2, body, fin

def routed(k, part):
    if part == 0:
        k.e([f"s_add_u32 s36, s30, {CNT_F2}", "s_lshl_b32 s36, s36, 7", "v_mov_b32 v60, s36", "global_load_dword v61, v60, s[90:91] sc1"])
        return
    if part == 1:
        k.e("s_waitcnt vmcnt(16)")
        emit(k, check(k, "s[90:91]", "v60", "v61", 16, 1))
        k.e(["s_lshl_b32 s37, s30, 8", f"s_add_u32 s36, s37, {WS_YP}", "s_add_u32 s37, s36, 4096",
             "v_and_b32 v60, 15, v1", "v_lshlrev_b32 v60, 13, v60", "v_lshl_add_u32 v60, v19, 4, v60"])
        for t in range(2):
            for cb in range(4):
                k.e(f"buffer_load_dwordx4 {v(96+16*t+4*cb,4)}, v60, s[24:27], s{36+t} offen offset:{cb*64}{SC}")
        return
    k.e(zero(YA, 16))
    k.e("s_waitcnt vmcnt(16)")
    for t in range(2):
        lsk = k.newlabel("noy")
        R = 96 + 16*t
        k.e(f"s_sub_u32 s36, s{56+t}, s38")
        k.e("s_cmp_lt_u32 s36, 16")
        k.e(f"s_cbranch_scc0 {lsk}")
        k.e(f"s_and_b32 s36, s{58+t}, 0xffff0000")
        k.e("s_cmp_lt_i32 s36, 0")
        k.e("s_cselect_b32 s37, 0x80000000, -1")
        k.e("s_xor_b32 s36, s36, s37")
        k.e("s_and_b32 s36, s36, 0xffff0000")
        k.e("v_mov_b32 v62, s36")
        k.e("v_mul_f32 v62, 0xbfb8aa3b, v62")
        k.e("v_exp_f32 v62, v62")
        k.e("s_nop 0")
        k.e("v_add_f32 v62, 1.0, v62")
        k.e("v_rcp_f32 v62, v62")
        k.e("s_nop 0")
        rbf(k, "v62")
        for m in ["quad_perm:[1,0,3,2]", "quad_perm:[2,3,0,1]", "row_half_mirror", "row_mirror"]:
            for r in range(16):
                k.e(f"v_add_f32_dpp v{R+r}, v{R+r}, v{R+r} {m} row_mask:0xf bank_mask:0xf")
        k.e(f"v_cmp_eq_u32 vcc, s{56+t}, v14")
        for r in range(0, 16, 2):
            for rep in range(2):
                k.e(f"v_cvt_pk_bf16_f32 v63, v{R+r}, v{R+r+1}")
                k.e(f"v_lshlrev_b32 v{R+r}, 16, v63")
                k.e(f"v_and_b32 v{R+r+1}, 0xffff0000, v63")
                if rep == 0: k.e([f"v_mul_f32 v{R+r}, v62, v{R+r}", f"v_mul_f32 v{R+r+1}, v62, v{R+r+1}"])
            k.e(f"v_cndmask_b32 v{YA+r}, v{YA+r}, v{R+r}, vcc")
            k.e(f"v_cndmask_b32 v{YA+r+1}, v{YA+r+1}, v{R+r+1}, vcc")
        k.label(lsk)

RT = ["s_sub_u32 s36, s56, s38", "s_sub_u32 s37, s57, s38", "s_min_u32 s36, s36, s37", "s_cmp_lt_u32 s36, 16"]
import os
if os.environ.get("NORT"): RT[-1] = "s_cmp_lt_u32 s36, 0"
def ex_addr():
    return ["s_lshl_b32 s36, s2, 15", "s_lshl_b32 s37, s28, 12", "s_add_u32 s36, s36, s37", f"s_add_u32 s36, s36, {WS_EX}"]

def p4_final(k, cfg):
    k.e("s_nop 4")
    for cb in range(4): k.e(f"ds_write_b128 v20, {v(A.Oreg(1,4+cb),4)} offset:{cb*1024}")
    emit(k, A.ool(k, RT, "s_cbranch_scc1", lines(gcalc, True)))
    cfg["st5"].mark()
    emit(k, A.ool(k, [f"s_cmp_eq_u32 s28, {cfg.get('exp', 3)}"], "s_cbranch_scc1", spin(k, "s[90:91]", "v5", "v23", 8, int(cfg.get("exs", 1)))))
    k.e("s_waitcnt lgkmcnt(0)")
    k.e("s_barrier")
    cfg["st5"].mark()
    for cb in range(4): k.e(f"buffer_load_dwordx4 {v(64+4*cb,4)}, v22, s[24:27], s39 offen offset:{cb*1024}{SC}")
    for cb in range(4): k.e(f"ds_read_b128 {v(128+4*cb,4)}, v21 offset:{cb*1024}")
    for cb in range(4):
        k.e(f"s_waitcnt lgkmcnt({3-cb})")
        for e in (0, 2): k.e(f"v_pk_add_f32 {v(128+4*cb+e,2)}, {v(128+4*cb+e,2)}, {v(A.Oreg(0,4+cb)+e,2)}")
    for cb in range(4):
        k.e(f"s_waitcnt vmcnt({3-cb})")
        for h in range(2):
            a, b = 128+4*cb+2*h, 128+4*cb+2*h+1
            k.e(f"v_pk_add_f32 {v(a,2)}, {v(a,2)}, {v(64+4*cb+2*h,2)}")
            def rnd2():
                k.e(f"v_cvt_pk_bf16_f32 v23, v{a}, v{b}")
                k.e(f"v_lshlrev_b32 v{a}, 16, v23")
                k.e(f"v_and_b32 v{b}, 0xffff0000, v23")
            rnd2()
            k.e(f"v_pk_mul_f32 {v(a,2)}, {v(a,2)}, {v(G+4*cb+2*h,2)}")
            rnd2()
            k.e(f"v_pk_add_f32 {v(a,2)}, {v(a,2)}, {v(X32+4*cb+2*h,2)}")
            k.e(f"v_cvt_pk_bf16_f32 v{80+2*cb+h}, v{a}, v{b}")
        k.e(f"ds_write_b64 v17, {v(80+2*cb,2)} offset:{cb*32}")
    k.e("v_add_u32 v22, s42, v22")
    k.e(f"s_mov_b32 s36, {8*2048}")
    k.e("s_waitcnt lgkmcnt(0)")
    k.e("ds_read_b128 v[64:67], v22")
    k.e("ds_read_b128 v[68:71], v22 offset:1024")
    k.e("s_waitcnt lgkmcnt(1)")
    k.e(f"buffer_store_dwordx4 v[64:67], v15, s[20:23], 0 offen {cfg.get('ofl', '')}")
    k.e("s_waitcnt lgkmcnt(0)")
    k.e(f"buffer_store_dwordx4 v[68:71], v15, s[20:23], s36 offen {cfg.get('ofl', '')}")

def p4(k, cfg, st):
    kx = K("tmp")
    kx.e(["s_lshl_b32 s36, s29, 7", "s_and_b32 s37, s28, 3", "s_lshl_b32 s37, s37, 5", "s_add_u32 s36, s36, s37",
          "s_lshr_b32 s37, s28, 2", "s_lshl_b32 s37, s37, 4", "s_add_u32 s38, s36, s37",
          "v_and_b32 v17, 15, v1", "v_add_u32 v14, s38, v17", "v_lshlrev_b32 v16, 3, v14",
          "v_lshrrev_b32 v15, 3, v1", "v_add_u32 v15, s38, v15", "v_lshlrev_b32 v15, 11, v15", "v_and_b32 v4, 7, v1",
          "v_lshl_add_u32 v15, v4, 4, v15", "s_lshl_b32 s36, s30, 7", "v_add_u32 v15, s36, v15",
          "s_lshl_b32 s36, s28, 12", f"s_add_u32 s42, s36, {LDS_X}", "v_lshl_add_u32 v17, v17, 7, s42", "v_lshl_add_u32 v17, v19, 3, v17"])
    xl = ["s_mov_b32 m0, s42", f"s_mov_b32 s36, {8*2048-1024}", VM("buffer_load_dwordx4 v15, s[16:19], 0 offen lds"),
          VM("buffer_load_dwordx4 v15, s[16:19], s36 offen offset:1024 lds"),
          f"s_mov_b32 s36, {WS_ST}", VM(f"buffer_load_dwordx2 {v(XI+8,2)}, v16, s[24:27], s36 offen{SC}", "xl")]
    n_ctx = Need("vm", ["ctxst"])
    sig = ["v_mov_b32 v26, s40", "v_mov_b32 v28, 1", "v_writelane_b32 v26, s41, 1",
           "s_mov_b64 exec, 3", "global_atomic_add v26, v28, s[90:91]", "s_mov_b64 exec, -1"]
    sigA = Alt(A.ool(k, ["s_cmp_eq_u32 s28, 0"], "s_cbranch_scc1", sig), lambda c: sig if c["w0"] else [])
    redA = guard(k, ["s_cmp_lt_u32 s28, 4"], "s_cbranch_scc0", ffn2_reduce(), "lo")
    f2 = ["s_and_b32 s36, s2, 15", f"s_add_u32 s36, s36, {CNT_F2}", "s_lshl_b32 s36, s36, 7"] + signal("s[90:91]", "s36", "v26", "v27")
    f2A = guard(k, ["s_cmp_eq_u32 s28, 0"], "s_cbranch_scc0", f2, "w0")
    def rt(part):
        kr = K(k.name + f"_rt{part}"); routed(kr, part)
        lrt = k.newlabel("nrt")
        return Alt(RT + [f"s_cbranch_scc0 {lrt}"] + [x.strip() for x in kr.lines] + [lrt + ":"], lambda c: [])
    ev0 = {1: [f2A], 2: [rt(0)] + xl}
    ev1 = {2: [rt(1)]}
    if "4" in cfg.get("cpf", ""):
        ev1[2] = [guard(k, ["s_cmp_eq_u32 s28, 0"], "s_cbranch_scc0", ["s_mov_b32 s43, s38"] + code_touch(k, 4, "v63") + ["s_mov_b32 s38, s43"], "w0")] + ev1[2]
    tops = [Alt(A.ool(k, ["s_cmp_lg_u32 s35, 0"], "s_cbranch_scc1", switch(k, "s35", sorted(ev0.items()))), lambda c: ev0.get(c["it"])),
            Alt(A.ool(k, ["s_cmp_eq_u32 s35, 2"], "s_cbranch_scc1", switch(k, "s35", sorted(ev1.items()))), lambda c: ev1.get(c["it"]))]
    prow0, prox, pro2, body, fin = p4_pieces(k, cfg, tops)
    n_w0 = Need("vm", [("W", 0, 0)])
    scen = []
    for w0, lo, n7 in ((1, 1, 1), (0, 1, 1), (0, 0, 1), (0, 0, 0)):
        c = dict(w0=w0, lo=lo, n7=n7, it=0)
        sq = flat([VM("", "ctxst"), n_ctx, sigA, prow0, n_w0, prox, redA, pro2], c)
        for it in range(3): sq += flat([body], dict(c, it=it))
        scen.append(sq + flat(fin, c))
    resolve(scen)
    k.e("s_and_b32 s36, s2, 7")
    k.e("s_lshl_b32 s36, s36, 2")
    k.e(f"s_sub_u32 s40, {15+CNT_CTX}, s30")
    k.e("s_lshl_b32 s40, s40, 7")
    k.e("s_add_u32 s40, s40, s36")
    k.e(f"s_add_u32 s41, s30, {CNT_CTX}")
    k.e("s_lshl_b32 s41, s41, 7")
    k.e("s_add_u32 s41, s41, s36")
    p4_setup(k)
    emit(k, [n_ctx, "s_barrier", sigA])
    st.mark()
    lm, lm1, lm2 = k.newlabel("f2m"), k.newlabel("f2a"), k.newlabel("f2b")
    A.OOL.append([lm + ":"] + lines(ffn2_math) + ["s_cmp_lt_u32 s28, 4", f"s_cbranch_scc1 {lm2}", f"s_branch {lm1}"])
    k.e("s_bitcmp1_b32 0x70, s28")
    k.e(f"s_cbranch_scc1 {lm}")
    k.label(lm1)
    emit(k, prow0)
    k.e("s_cmp_lt_u32 s28, 4")
    k.e(f"s_cbranch_scc1 {lm}")
    k.label(lm2)
    srd(k, 4, 54, 16777216, WS_CTX)
    srd(k, 16, 96, 4194304)
    srd(k, 20, 98, 4194304)
    k.lines += kx.lines
    p4_setup2(k)
    k.e("s_mov_b32 s60, 15")
    lj = k.newlabel("w7j")
    k.e(f"s_cmp_eq_u32 s28, {cfg.get('pw', 3)}")
    k.e(f"s_cbranch_scc0 {lj}")
    k.e("v_add_u32 v58, s62, v1")
    k.e("v_and_b32 v58, 3, v58")
    k.e(f"s_add_u32 s36, s29, {CNT_CTX}")
    k.e("s_lshl_b32 s36, s36, 7")
    k.e("s_lshl_b32 s37, s63, 4")
    k.e("s_add_u32 s36, s36, s37")
    k.e("v_lshl_add_u32 v58, v58, 2, s36")
    emit(k, ctx_ready(k, int(cfg.get("rdy0", 2))))
    k.label(lj)
    emit(k, [n_w0])
    k.e("s_waitcnt lgkmcnt(0)")
    st.mark()
    k.e("s_barrier")
    st.mark()
    emit(k, prox)
    emit(k, [redA])
    k.e("v_lshlrev_b32 v22, 4, v1")
    k.e("v_add_u32 v20, s42, v22")
    k.e("v_xor_b32 v21, 16384, v20")
    k.e(ex_addr())
    k.e("s_mov_b32 s41, s36")
    k.e(f"s_xor_b32 s39, s36, {32 << 15}")
    k.e(f"s_add_u32 s40, s2, {CNT_EX}")
    k.e("s_lshl_b32 s40, s40, 7")
    emit(k, pro2)
    st.mark()
    if cfg.get("p4prio"):
        emit(k, ["s_cmp_lt_u32 s28, 4", "s_cbranch_scc1 L_p4_np", "s_setprio 1", "L_p4_np:"])
    k.align(6)
    k.label("L_p4_loop")
    emit(k, body)
    k.e("s_add_u32 s35, s35, 1")
    k.e("s_cmp_lt_u32 s35, 3")
    k.e("s_cbranch_scc1 L_p4_loop")
    st.mark()
    kr = K(k.name + "_rt2"); routed(kr, 2)
    emit(k, A.ool(k, RT, "s_cbranch_scc1", [x.strip() for x in kr.lines]))
    k.e(f"s_xor_b32 s37, s40, {32 << 7}")
    k.e("v_mov_b32 v5, s37")
    emit(k, fin)
    st.mark()
    cfg["st5"].mark()
    p4_final(k, cfg)
    cfg["st5"].mark()

def gen_fused(cfg, name):
    cfg = dict(cfg, stflag=SC, pro_hook=pro_hook, pro_wait=pro_wait, bar_hook=bar_hook, b_hook=b_hook, b_inline=["buffer_load_dword v0, v13, s[4:7], s48 offen", f"s_add_u32 s48, s48, {128*int(cfg.get('btl', 32))}"], before_merge=before_merge, share=1)
    CFG.update(cfg)
    Z64[0] = not cfg.get("noz64")
    k = K(name)
    k.e("s_cmp_ge_u32 s2, 256")
    k.e("s_cbranch_scc1 L_end")
    stq = cfg.get("stamp", "")
    st = Stamps(k, bool(stq), kid=0)
    off = Stamps(k, False)
    st.mark()
    cfg["sth4"] = st if "d" in stq else off
    cfg["st5"] = st if "5" in stq else off
    cfg["sth1"] = st if "a" in stq else off
    cfg["sth2"] = st if "b" in stq else off
    p1(k, cfg, st if "1" in stq else off)
    if "b" in stq: st.mark()
    p2(k, cfg, st if "2" in stq else off)
    k.e("s_load_dwordx2 s[32:33], s[0:1], 40")
    k.e("s_load_dwordx2 s[34:35], s[0:1], 80")
    k.e("s_load_dwordx2 s[96:97], s[0:1], 0")
    k.e("s_load_dwordx2 s[98:99], s[0:1], 88")
    s3 = st if "3" in stq else off
    k.e("s_cmp_lt_u32 s28, 4")
    k.e("s_cbranch_scc0 L_grp1")
    A.gen_p3(k, cfg, 0, s3, after_q, before_tail)
    k.e("s_branch L_p3_done")
    A.flush_ool(k)
    k.label("L_grp1")
    A.gen_p3(k, cfg, 1, s3, after_q, before_tail)
    k.e("s_branch L_p3_done")
    A.flush_ool(k)
    k.label("L_p3_done")
    st.mark()
    k.e("s_waitcnt vmcnt(4)")
    p4(k, cfg, st if "4" in stq else off)
    st.dump(54, "s28")
    if cfg.get("stdbg"):
        k.e("s_lshl_b32 s36, s28, 8"); k.e("s_add_u32 s36, s36, s2")
        k.e(f"s_cmp_eq_u32 s36, {cfg['stdbg']}"); k.e("s_cbranch_scc0 L_end")
        k.e("v_mov_b32 v2, 0"); k.e("s_mov_b64 exec, 1")
        for i in range(1, st.n):
            k.e(f"s_sub_u32 s36, s{st.base+2*i+1}, s{st.base+1}")
            k.e("v_mov_b32 v3, s36")
            k.e(f"global_store_dword v2, v3, s[88:89] offset:{4*i}")
    k.e("s_endpgm")
    A.flush_ool(k)
    k.label("L_end")
    return wrap(k, 256)
```

```python
import re, sys

class K:
    def __init__(self, name):
        self.name = name
        self.lines = []
        self.nl = 0
    def e(self, s):
        if isinstance(s, (list, tuple)):
            for x in s: self.e(x)
            return
        self.lines.append("    " + s)
    def c(self, s):
        self.lines.append("    ; " + s)
    def label(self, l):
        self.lines.append(l + ":")
    def newlabel(self, base):
        self.nl += 1
        return f"L_{self.name}_{base}_{self.nl}"
    def align(self, p):
        self.lines.append(f"    .p2align {p}")
    def text(self):
        return "\n".join(self.lines)

def v(a, n=1):
    return f"v[{a}:{a+n-1}]" if n > 1 else f"v{a}"
def s(a, n=1):
    return f"s[{a}:{a+n-1}]" if n > 1 else f"s{a}"
def a_(a, n=1):
    return f"a[{a}:{a+n-1}]" if n > 1 else f"a{a}"

def wrap(k, vgprs, agprs=0, sgprs=102):
    name = k.name
    acc = (vgprs + 3) // 4 * 4
    nfv = acc + agprs if agprs else vgprs
    out = [f".globl {name}", ".p2align 8", f".type {name},@function", f"{name}:", k.text(), "    s_endpgm"]
    kd = [".p2align 6", f".amdhsa_kernel {name}",
          f"  .amdhsa_next_free_vgpr {nfv}", f"  .amdhsa_next_free_sgpr {sgprs}",
          f"  .amdhsa_accum_offset {acc}", "  .amdhsa_group_segment_fixed_size 0",
          "  .amdhsa_kernarg_size 112", "  .amdhsa_user_sgpr_count 2",
          "  .amdhsa_user_sgpr_kernarg_segment_ptr 1", "  .amdhsa_system_sgpr_workgroup_id_x 1",
          ".end_amdhsa_kernel"]
    check(k)
    return "\n".join(out), "\n".join(kd)

def srd(k, d, base, nbytes, add=0):
    if add:
        k.e(f"s_add_u32 s{d}, s{base}, {add}")
        k.e(f"s_addc_u32 s{d+1}, s{base+1}, 0")
        k.e(f"s_and_b32 s{d+1}, s{d+1}, 0xffff")
    else:
        k.e(f"s_mov_b32 s{d}, s{base}")
        k.e(f"s_and_b32 s{d+1}, s{base+1}, 0xffff")
    k.e(f"s_mov_b32 s{d+2}, {nbytes}")
    k.e(f"s_mov_b32 s{d+3}, 0x20000")

def build(parts, launches, path):
    out = ["; generated by gen2/gen.py -- do not edit by hand"] + launches
    out += ['.amdgcn_target "amdgcn-amd-amdhsa--gfx950"', ".text"]
    out += [c for c, _ in parts]
    out.append('.section .rodata,"a"')
    out += [kd for _, kd in parts]
    open(path, "w").write("\n".join(out) + "\n")

REG = re.compile(r"^(-|abs\()?([vsa])(\d+|\[(\d+):(\d+)\])\)?$")
def regs(op):
    op = op.strip()
    if op in ("vcc",): return {("s", 106), ("s", 107)}
    if op == "vcc_lo": return {("s", 106)}
    if op == "vcc_hi": return {("s", 107)}
    if op == "exec": return {("s", 126), ("s", 127)}
    if op == "exec_lo": return {("s", 126)}
    if op == "exec_hi": return {("s", 127)}
    if op == "m0": return {("s", 124)}
    m = REG.match(op)
    if not m: return set()
    t = m.group(2)
    if m.group(4) is not None:
        return {(t, i) for i in range(int(m.group(4)), int(m.group(5)) + 1)}
    return {(t, int(m.group(3)))}

TRANS = ("v_exp_f32", "v_log_f32", "v_rcp_f32", "v_rsq_f32", "v_sqrt_f32", "v_sin_f32", "v_cos_f32")
class I:
    pass

def parse(line):
    t = line.split(";")[0].strip()
    i = I(); i.text = t
    if not t or t.startswith("."):
        return None
    if t.endswith(":"):
        i.kind = "label"; i.name = t[:-1]; return i
    sp = t.split(None, 1)
    mn = sp[0]; rest = sp[1] if len(sp) > 1 else ""
    rest = re.sub(r"\s+(op_sel|op_sel_hi|neg_lo|neg_hi):\[[^\]]*\]", "", rest)
    rest = re.sub(r"quad_perm:\[(\d),(\d),(\d),(\d)\]", r"quad_perm:\1\2\3\4", rest)
    ops = [o.strip() for o in rest.split(",")] if rest else []
    mods = []
    if ops:
        last = ops[-1].split()
        if last:
            ops[-1] = last[0]; mods = last[1:]
    i.mn = mn; i.ops = ops; i.mods = mods
    i.w = set(); i.r = set(); i.ws = 1; i.kind = "other"; i.target = None
    i.A = i.B = i.C = set()
    R = lambda lst: set().union(*[regs(o) for o in lst]) if lst else set()
    if mn.startswith("v_mfma"):
        i.kind = "mfma"; i.w = regs(ops[0]); i.A = regs(ops[1]); i.B = regs(ops[2]); i.C = regs(ops[3])
        i.r = i.A | i.B | i.C
        i.passes = 8 if "32x32x16" in mn else 4
    elif mn.startswith("v_"):
        i.kind = "valu"
        if (mn.startswith("v_permlane") and "swap" in mn) or mn.startswith("v_swap"):
            i.w = R(ops[:2]); i.r = R(ops[:2])
        elif mn.startswith("v_cmp"):
            i.w = regs(ops[0]); i.r = R(ops[1:])
            if mn.startswith("v_cmpx"): i.w |= regs("exec")
        elif "_co_" in mn:
            i.w = R(ops[:2]); i.r = R(ops[2:])
        elif mn == "v_nop":
            pass
        else:
            i.w = regs(ops[0]); i.r = R(ops[1:])
            if mn.startswith(("v_fmac", "v_mac", "v_dot2c", "v_writelane")) or "dpp" in mn or any(m.startswith(("quad_perm", "row_")) for m in mods):
                i.r |= i.w
        i.trans = mn.startswith(TRANS)
        i.dpp = "dpp" in mn or any(m.startswith(("quad_perm", "row_", "wave_")) for m in mods)
    elif mn.startswith("ds_"):
        i.kind = "ds"
        if mn.startswith(("ds_read", "ds_bpermute", "ds_permute", "ds_swizzle")):
            i.w = regs(ops[0]); i.r = R(ops[1:])
        else:
            i.r = R(ops)
    elif mn.startswith(("buffer_", "global_")):
        i.kind = "vmem"
        i.lds = "lds" in mods
        if mn in ("buffer_wbl2", "buffer_inv"):
            pass
        elif i.lds:
            i.r = R(ops) | regs("m0")
        elif "load" in mn:
            i.w = regs(ops[0]); i.r = R(ops[1:])
        elif "atomic" in mn:
            i.r = R(ops)
            if "sc0" in mods: i.w = regs(ops[0])
        else:
            i.r = R(ops)
            i.data = regs(ops[0]) if mn.startswith("buffer_") else regs(ops[1])
            i.wide = mn.endswith(("x3", "x4"))
    elif mn.startswith("s_"):
        i.kind = "salu"
        if mn == "s_nop":
            i.ws = int(ops[0], 0) + 1
        elif mn == "s_waitcnt":
            i.kind = "wait"
            i.vm = i.lgkm = None
            for m in re.finditer(r"(vmcnt|lgkmcnt)\((\d+)\)", rest):
                if m.group(1) == "vmcnt": i.vm = int(m.group(2))
                else: i.lgkm = int(m.group(2))
        elif mn.startswith(("s_cbranch", "s_branch")):
            i.kind = "branch"; i.target = ops[0]
            if "vcc" in mn: i.r = regs("vcc")
        elif mn.startswith(("s_load", "s_memtime", "s_memrealtime", "s_buffer_load", "s_atomic")):
            i.kind = "smem"; i.w = regs(ops[0]); i.r = R(ops[1:])
        elif mn.startswith(("s_cmp", "s_barrier", "s_setprio", "s_endpgm", "s_sleep", "s_bitcmp")):
            i.r = R(ops)
        else:
            i.w = regs(ops[0]); i.r = R(ops[1:])
            if "saveexec" in mn: i.w |= regs("exec")
    return i

def need(p, c):
    n = 0
    vw = {r for r in p.w if r[0] in "va"}
    sw = {r for r in p.w if r[0] == "s"}
    if p.kind == "valu":
        if c.kind == "mfma" and vw & c.r: n = max(n, 2)
        if c.kind == "valu":
            if p.trans and not c.trans and vw & c.r: n = max(n, 1)
            if sw & c.r: n = max(n, 4 if c.mn.startswith(("v_readlane", "v_writelane")) else 2)
            if c.mn.startswith(("v_readlane", "v_readfirstlane")) and vw & c.r: n = max(n, 1)
            if c.mn.startswith("v_permlane") and vw & c.r: n = max(n, 2)
            if c.dpp and vw & c.r: n = max(n, 2)
            if regs("exec") & p.w and c.dpp: n = max(n, 5)
            if p.mn.startswith("v_dot") and p.mn != c.mn and vw & (c.r | c.w): n = max(n, 3)
        if c.kind == "vmem" and sw & c.r: n = max(n, 5)
        if c.kind == "mfma" and regs("exec") & p.w: n = max(n, 4)
        if c.kind in ("salu", "smem") and sw & c.r: n = max(n, 1)
    if p.kind == "mfma":
        big = 12 if p.passes == 8 else 8
        if c.kind == "mfma":
            if p.w & (c.A | c.B): n = max(n, big)
            if p.w & c.C and not (p.w == c.C and p.passes == c.passes): n = max(n, big - 2)
            if p.w & c.w and not (p.w == c.w): n = max(n, big - 2)
        elif c.kind in ("valu", "ds", "vmem"):
            if p.w & (c.r | c.w): n = max(n, big)
            if c.kind == "valu" and p.C & c.w: n = max(n, 7 if p.passes == 8 else 3)
    if p.kind == "salu" and regs("m0") & p.w and c.kind == "vmem" and c.lds: n = max(n, 1)
    if p.kind == "vmem" and getattr(p, "wide", False):
        if p.data & c.w: n = max(n, 2 if c.kind == "valu" else 1)
    return n

WGS = [0, 77, 230, 255]
WAVES = [0, 1, 4, 7]
M32 = 0xffffffff
def sx(x): return x - (1 << 32) if x >> 31 else x
def walk(ins, lab, wg, wave, errs):
    import operator
    CMP = {"eq": operator.eq, "lg": operator.ne, "lt": operator.lt, "le": operator.le, "gt": operator.gt, "ge": operator.ge}
    N = len(ins)
    def val(S, op):
        if op[0] == "s" and op[1:].isdigit(): return S.get(int(op[1:]))
        if op in ("m0", "vcc", "exec", "vcc_lo", "vcc_hi", "exec_lo", "exec_hi") or op[0] in "sv": return None
        try: return int(op, 0) & M32
        except ValueError: return None
    ends = set(); seen = set()
    stack = [(0, (), (), {2: wg}, None, 0)]
    while stack:
        n, lq, vq, S, scc, nb = stack.pop()
        while n < N:
            x = ins[n]
            if x.kind == "label":
                n += 1; continue
            if x.kind == "wait":
                if x.lgkm is not None:
                    if any(e[0] == "smem" for e in lq):
                        if x.lgkm == 0: lq = ()
                    elif x.lgkm < len(lq): lq = lq[len(lq) - x.lgkm:] if x.lgkm else ()
                if x.vm is not None and x.vm < len(vq): vq = vq[len(vq) - x.vm:] if x.vm else ()
                n += 1; continue
            touch = x.w if S.get(3) == 0xD0 else x.r | x.w
            if touch:
                for e in lq + vq:
                    if e[1] & touch:
                        errs.append(f"WAITCNT: [{x.text}] touches pending {sorted(e[1] & touch)[:4]}")
            if x.kind == "ds": lq = lq + (("ds", x.fw),)
            elif x.kind == "smem": lq = lq + (("smem", x.fw),)
            elif x.kind == "vmem":
                vq = vq + (("vm", x.fw),)
                if len(vq) > 63: errs.append(f"VMCNT overflow at [{x.text}]")
            mn = x.mn
            if x.kind == "salu":
                o = x.ops
                if mn == "s_endpgm": break
                if mn == "s_barrier": nb += 1
                elif mn.startswith("s_cmp_"):
                    p = mn.split("_")
                    a, b = val(S, o[0]), val(S, o[1])
                    if a is None or b is None or p[3] == "u64": scc = None
                    else: scc = CMP[p[2]](sx(a), sx(b)) if p[3] == "i32" else CMP[p[2]](a, b)
                elif mn.startswith("s_bitcmp"):
                    a, b = val(S, o[0]), val(S, o[1])
                    scc = None if a is None or b is None else ((a >> (b & 31)) & 1) == int(mn[8])
                elif x.w:
                    r = None; keep = False
                    a = val(S, o[1]) if len(o) > 1 else None
                    b = val(S, o[2]) if len(o) > 2 else None
                    ok = a is not None and b is not None
                    if mn == "s_mov_b32": r = a; keep = True
                    elif mn == "s_cselect_b32": r = None if scc is None else (a if scc else b); keep = True
                    elif mn in ("s_mov_b64", "s_cselect_b64", "s_getreg_b32"): keep = True
                    elif mn == "s_mul_i32": r = (a * b) & M32 if ok else None; keep = True
                    elif mn in ("s_add_u32", "s_add_i32"): r = (a + b) & M32 if ok else None; scc = (a + b) > M32 if ok else None; keep = True
                    elif mn in ("s_sub_u32", "s_sub_i32"): r = (a - b) & M32 if ok else None; scc = a < b if ok else None; keep = True
                    elif mn == "s_lshl_b32": r = (a << (b & 31)) & M32 if ok else None
                    elif mn == "s_lshr_b32": r = a >> (b & 31) if ok else None
                    elif mn == "s_and_b32": r = a & b if ok else None
                    elif mn == "s_or_b32": r = a | b if ok else None
                    elif mn == "s_xor_b32": r = a ^ b if ok else None
                    elif mn == "s_min_u32": r = min(a, b) if ok else None
                    elif mn == "s_max_u32": r = max(a, b) if ok else None
                    elif mn == "s_bfe_u32": r = (a >> (b & 31)) & ((1 << ((b >> 16) & 0x7f)) - 1) if ok else None
                    if not keep: scc = None
                    S = dict(S)
                    for t, i in x.w: S.pop(i, None)
                    if r is not None and len(x.w) == 1:
                        i = next(iter(x.w))[1]
                        if i != 61: S[i] = r
                    if ("s", 61) in x.w: scc = None
            elif x.kind in ("valu", "smem"):
                sw = [i for t, i in x.w if t == "s"]
                if sw:
                    S = dict(S)
                    for i in sw: S.pop(i, None)
                    if mn == "v_readfirstlane_b32" and sw == [28]: S[28] = wave
            elif x.kind == "branch":
                if mn == "s_branch": n = lab[x.target]; continue
                if mn in ("s_cbranch_scc0", "s_cbranch_scc1") and scc is not None:
                    if scc == (mn == "s_cbranch_scc1"): n = lab[x.target]; continue
                else:
                    key = (n, lq, vq, tuple(sorted(S.items())), nb)
                    if key in seen: nb = None; break
                    seen.add(key)
                    St = S
                    p = ins[n-1]
                    if p.kind == "salu" and p.mn == "s_cmp_eq_u32" and p.ops[0] == "s43" and val(S, p.ops[1]) is not None:
                        c_ = val(S, p.ops[1]); eq = dict(S); eq[43] = c_; ne = dict(S); ne[43] = c_ ^ 1
                        St, S = (eq, ne) if mn == "s_cbranch_scc1" else (ne, eq)
                    stack.append((lab[x.target], lq, vq, St, scc, nb))
            n += 1
        if nb is not None: ends.add(nb)
    return frozenset(ends)

def check(k, verbose=True):
    ins = [x for x in (parse(l) for l in k.lines) if x is not None]
    lab = {x.name: n for n, x in enumerate(ins) if x.kind == "label"}
    for x in ins:
        if x.kind != "label": x.fw = frozenset(x.w - {("v", 0)})
    N = len(ins)
    def succ(n):
        x = ins[n]
        if x.kind == "branch":
            t = [lab[x.target]]
            if x.mn != "s_branch": t.append(n + 1)
            return [q for q in t if q < N]
        if x.kind != "label" and x.mn == "s_endpgm": return []
        return [n + 1] if n + 1 < N else []
    errs = []
    for n, p in enumerate(ins):
        if p.kind in ("label", "wait", "branch", "other"): continue
        if not (p.w or p.kind in ("mfma", "vmem")): continue
        stack = [(q, 0) for q in succ(n)]
        seen = {}
        while stack:
            q, d = stack.pop()
            if d >= 13 or seen.get(q, 99) <= d: continue
            seen[q] = d
            c = ins[q]
            if c.kind == "label":
                stack += [(z, d) for z in succ(q)]; continue
            nd = need(p, c)
            if nd > d:
                errs.append(f"HAZARD need {nd} have {d}: [{p.text}] -> [{c.text}]")
            stack += [(z, d + c.ws) for z in succ(q)]
    bars = {}
    for wg in WGS:
        for wave in WAVES:
            nb = walk(ins, lab, wg, wave, errs)
            bars.setdefault(wg, set()).add(nb)
    for wg, st_ in bars.items():
        if len(st_) != 1: errs.append(f"BARRIER count mismatch in wg {wg}: {st_}")
    errs = list(dict.fromkeys(errs))
    if errs:
        print(f"== {k.name}: {len(errs)} problems", file=sys.stderr)
        for e in errs[:40]: print("  " + e, file=sys.stderr)
        raise SystemExit(1)
    mx = {"v": -1, "s": -1, "a": -1}
    for x in ins:
        if x.kind == "label": continue
        for t, i in (x.r | x.w):
            if not (t == "s" and i >= 102): mx[t] = max(mx[t], i)
    if verbose:
        print(f"{k.name}: {N} lines, max v{mx['v']} s{mx['s']} a{mx['a']}", file=sys.stderr)

class Op:
    def __init__(self, kind, text, tag=None):
        self.kind, self.text, self.tag = kind, text, tag
class Need:
    def __init__(self, kind, tags):
        self.kind, self.tags, self.n = kind, set(t for t in tags if t is not None), None
def DS(text, tag=None): return Op("ds", text, tag)
def VM(text, tag=None): return Op("vm", text, tag)

class SetTags:
    def __init__(self, nd, tags): self.nd, self.tags = nd, set(tags)

class Alt:
    def __init__(self, inline, pick):
        self.inline, self.pick = inline, pick

def flat(items, ctx=None):
    out = []
    for x in items:
        if isinstance(x, (list, tuple)): out += flat(x, ctx)
        elif isinstance(x, Alt):
            out += flat(x.inline) if ctx is None else flat(x.pick(ctx) or [], ctx)
        else: out.append(x)
    return out

def simulate(seq, final=False):
    q = {"vm": [], "ds": []}
    for x in seq:
        if isinstance(x, SetTags):
            x.nd.tags = x.tags
        elif isinstance(x, Op):
            q[x.kind].append(x.tag)
        elif isinstance(x, Need):
            Q = q[x.kind]
            pos = [i for i, t in enumerate(Q) if t in x.tags]
            if pos:
                n = len(Q) - 1 - max(pos)
                n = min(n, 63 if x.kind == "vm" else 15)
                if final: assert x.n is not None and x.n <= n
                x.n = n if x.n is None else min(x.n, n)
            if x.n is not None:
                del Q[:max(0, len(Q) - x.n)]
        elif isinstance(x, str):
            t = x.strip()
            if t.startswith("s_waitcnt"):
                for m in re.finditer(r"(vmcnt|lgkmcnt)\((\d+)\)", t):
                    Q = q["vm" if m.group(1) == "vmcnt" else "ds"]
                    del Q[:max(0, len(Q) - int(m.group(2)))]
            elif t.startswith(("ds_",)): q["ds"].append(None)
            elif t.startswith(("buffer_", "global_")): q["vm"].append(None)

def resolve(scenarios):
    for _ in range(3):
        for sc in scenarios: simulate(flat(sc))
    for sc in scenarios: simulate(flat(sc), final=True)

def emit(k, piece):
    for x in flat(piece):
        if isinstance(x, Op): k.e(x.text)
        elif isinstance(x, Need):
            if x.n is not None:
                k.e(f"s_waitcnt {'vmcnt' if x.kind == 'vm' else 'lgkmcnt'}({x.n})")
        elif x.endswith(":"): k.label(x[:-1])
        else: k.e(x)

def weave(mfmas, fills, pre=None):
    out = []
    for i, m in enumerate(mfmas):
        if pre and pre.get(i): out += pre[i]
        out.append(m)
        if i < len(fills): out += fills[i]
    return out
```

```python
from common import *

O_  = 192
Q_  = 128
QS_ = 160
S_  = 96
RG_ = 64
P_  = 48
NM_ = 40
L_  = 28
ONE = 36
vKr, vVr, vD, vNx, vMk, vD2, vL16 = "v2", "v3", "v4", "v5", "v18", "v6", "v7"
LS_ = 8
T_  = 20
LDS_W = 98304
LDS_X = 131072
CSCALE = 0x3e0293ee
NEGBIG = 0xf149f2ca

def Oreg(qb, db): return O_ + (qb*8+db)*4
def Sreg(buf, qb, kb): return S_ + buf*16 + (qb*2+kb)*4
def Preg(buf, qb): return P_ + buf*8 + qb*4

def p2_setup(k):
    k.e("s_and_b32 s36, s28, 3")
    k.e("s_sub_u32 s37, 15, s30")
    k.e("s_cmp_lt_u32 s28, 4")
    k.e("s_cselect_b32 s37, s37, s30")
    k.e("s_lshl_b32 s37, s37, 2")
    k.e("s_add_u32 s37, s37, s36")
    k.e("s_lshl_b32 s37, s37, 16")
    k.e("v_lshl_add_u32 v2, v1, 4, s37")
    k.e("v_add_u32 v3, 32768, v2")
    k.e("v_lshrrev_b32 v18, 4, v1")
    k.e("s_lshl_b32 s37, s28, 4")
    k.e("v_add_u32 v19, s37, v18")
    k.e("v_lshlrev_b32 v19, 13, v19")
    k.e("s_lshl_b32 s37, s29, 8")
    k.e("v_add_u32 v19, s37, v19")
    k.e("v_and_b32 v20, 15, v1")
    k.e("v_lshlrev_b32 v21, 1, v18")
    k.e("v_xor_b32 v21, v20, v21")
    k.e("v_lshl_add_u32 v6, v21, 4, v19")
    k.e(f"v_add_u32 v7, {32768-1024}, v6")
    k.e("v_xor_b32 v21, 8, v21")
    k.e("v_lshl_add_u32 v8, v21, 4, v19")
    k.e(f"v_add_u32 v8, {2*(32768-1024)}, v8")
    k.e(f"v_add_u32 v9, {32768-1024}, v8")
    k.e("s_lshl_b32 s33, s28, 12")
    k.e(f"s_add_u32 s33, s33, {LDS_W}")
    k.e("s_mov_b32 s31, 0")
    k.e("s_mov_b32 s32, 0")

def p2_setup2(k):
    k.e("v_lshrrev_b32 v20, 2, v20")
    k.e("v_lshl_add_u32 v19, v18, 3, v20")
    k.e("v_lshlrev_b32 v19, 8, v19")
    k.e(f"v_add_u32 v19, {LDS_W}, v19")
    k.e("v_and_b32 v21, 3, v1")
    k.e("v_lshl_add_u32 v19, v21, 3, v19")
    k.e("v_and_b32 v21, 1, v18")
    k.e("v_lshl_add_u32 v20, v21, 2, v20")
    for db in range(8):
        k.e(f"v_xor_b32 v21, {db}, v20")
        k.e(f"v_lshl_add_u32 v{10+db}, v21, 5, v19")
    k.e("s_lshl_b32 s43, s28, 12")
    k.e("v_lshl_add_u32 v4, v1, 4, s43")
    k.e("s_add_u32 s44, s43, 65536")
    k.e("s_lshl_b32 s45, s29, 20")
    for r in range(64):
        k.e(f"v_mov_b32 v{O_+r}, 0")

def p2_pieces(cfg):
    WF = [64, 96]; XF = [128, 160]
    def wdma(stage):
        return [f"s_add_u32 m0, s34, {stage*32768}"] , [VM(f"buffer_load_dwordx4 v{6+j}, s[8:11], s32 offen offset:{j*1024} lds", ("W", stage)) for j in range(4)]
    def xld(xs, s_):
        return [VM(f"buffer_load_dwordx4 {v(XF[xs]+(s_*2+rb)*4,4)}, v{2+rb}, s[4:7], s31 offen offset:{s_*1024}", ("x", xs, s_)) for rb in range(2)]
    def wrd(stage, s_, fs):
        return [DS(f"ds_read_b64_tr_b16 {v(WF[fs]+4*db+2*t,2)}, v{10+db} offset:{stage*32768+(32*s_+4*t)*256}", ("w", fs)) for db in range(8) for t in range(2)]
    def mf(fs, xs, s_):
        return [f"{MF} {v(Oreg(rb,db),4)}, {v(WF[fs]+4*db,4)}, {v(XF[xs]+(s_*2+rb)*4,4)}, {v(Oreg(rb,db),4)}" for db in range(8) for rb in range(2)]
    pro = ["s_mov_b32 s34, s33"]
    for t in range(2):
        m, d = wdma(t)
        pro += m + ["s_nop 0"] + d + [f"s_add_u32 s32, s32, {128*8192}"]
        for s_ in range(4 if t == 0 else 3): pro += xld(t, s_)
        if t == 0: pro += ["s_add_u32 s31, s31, 4096"]
    pro2 = [Need("vm", [("W", 0)]), "s_barrier"] + wrd(0, 0, 0) + ["s_mov_b32 s35, 0"]
    kvpre = ["s_mov_b32 m0, s43", "s_add_u32 s46, s45, 65536"]
    kvpre += [VM(f"buffer_load_dwordx4 {vD}, s[12:15], s45 offen offset:{j*1024} lds", "kv") for j in range(4)]
    kvpre += ["s_add_u32 m0, s43, 32768", "s_add_u32 s47, s45, 32768"]
    kvpre += [VM(f"buffer_load_dwordx4 {vD}, s[12:15], s46 offen offset:{j*1024} lds", "kv") for j in range(4)]
    kvpre += ["s_mov_b32 m0, s44", "s_nop 0"]
    kvpre += [VM(f"buffer_load_dwordx4 {vD}, s[12:15], s47 offen offset:{j*1024} lds", "kv") for j in range(4)]
    body = []
    for stage in range(2):
        for s_ in range(4):
            fills = [[] for _ in range(16)]
            if s_ < 3:
                body += [Need("ds", [("w", s_ & 1)])]
                rd = wrd(stage, s_+1, (s_+1) & 1)
            else:
                body += [Need("ds", [("w", 1)]), Need("vm", [("W", stage ^ 1)]), "s_barrier"]
                rd = wrd(stage ^ 1, 0, 0)
            body += [Need("vm", [("x", stage, s_)])]
            for g in range(8): fills[g] += rd[2*g:2*g+2]
            if s_ == 0:
                xl = xld(stage ^ 1, 3)
                fills[8] += [xl[0]]; fills[9] += [xl[1], "s_add_u32 s31, s31, 4096"]
                if stage == 0:
                    fills[10] += ["s_cmp_lt_u32 s35, 3", "s_cselect_b32 s6, 4194304, 0", "s_cselect_b32 s10, 8388608, 0", "s_cselect_b32 s34, s33, 0x30000"]
            else:
                xl = xld(stage, s_-1)
                fills[8] += [xl[0]]; fills[9] += [xl[1]]
            if s_ == 3:
                m, d = wdma(stage)
                fills[9] += m
                for j in range(4): fills[10+j] += [d[j]]
                fills[14] += [f"s_add_u32 s32, s32, {128*8192}"]
            body += weave(mf(s_ & 1, stage, s_), fills)
    return pro, pro2, kvpre, body

def q_pack(k, grp, qwait=0):
    k.e(f"v_mov_b32 v20, {CSCALE}")
    k.e("v_mov_b32 v21, v20")
    k.e("s_and_b32 s37, s28, 3")
    k.e("s_lshl_b32 s37, s37, 13")
    k.e(f"v_lshlrev_b32 {vL16}, 4, v1")
    k.e(f"v_add_u32 {vD}, s37, {vL16}")
    k.e(f"v_add_u32 {vD2}, 4096, {vD}")
    k.e(f"v_add_u32 v19, {LDS_X}, {vD}")
    k.e("s_add_u32 s43, s37, 32768")
    k.e("s_add_u32 s44, s37, 98304")
    k.e(f"s_waitcnt vmcnt({qwait}) lgkmcnt(0)")
    for f in range(8):
        a = O_ + 8*f
        k.e(pkmul(a, 8, 20))
        for q in range(4): k.e(f"v_cvt_pk_bf16_f32 v{Q_+4*f+q}, v{a+2*q}, v{a+2*q+1}")
        if grp == 0: k.e(f"ds_write_b128 v19, {v(Q_+4*f,4)} offset:{f*1024}")
    k.e(f"v_mov_b32 {vKr}, {vL16}")
    k.e("v_and_b32 v21, 15, v1")
    k.e("v_lshrrev_b32 v22, 4, v1")
    k.e("v_lshlrev_b32 v22, 2, v22")
    k.e(f"v_sub_u32 {vMk}, v21, v22")
    k.e("s_mov_b32 s40, 0")
    k.e("s_mov_b32 s41, 16384")
    k.e("s_mov_b32 s49, 0xffff")
    k.e("s_lshl_b32 s51, s30, 1")
    k.e("s_add_u32 s51, s51, 1")
    k.e("s_and_b32 s50, s28, 3")
    k.e("s_lshl_b32 s50, s50, 5")
    for r in range(4): k.e(f"v_mov_b32 v{ONE+r}, 0x3f803f80")
    if grp == 1:
        k.e("s_lshl_b32 s42, 7, s51")
        k.e("s_lshr_b32 s42, s42, 2")
        k.e("s_or_b32 s42, s42, 0x8001")
    else:
        k.e("s_lshl_b32 s31, 1, s51")
        k.e("s_or_b32 s31, s31, 0x8000")
        k.e("s_add_u32 s36, s51, 1")
        k.e("s_lshl_b32 s36, -1, s36")
        k.e("s_or_b32 s48, s36, 0xaaaaaaab")
        k.e("s_and_b32 s48, s48, 0x7fff")
        k.e("s_or_b32 s39, s36, 0x55555555")
        k.e("s_and_b32 s39, s39, 0xffff")
        k.e(f"s_add_u32 s46, s45, 65536")
        k.e(f"s_add_u32 s47, s45, {65536+32768}")
    k.e("s_mov_b64 s[52:53], 0")
    k.e("s_waitcnt lgkmcnt(0)")
    k.e("s_barrier")
    if grp == 1:
        for f in range(8):
            k.e(f"ds_read_b128 {v(QS_+4*f,4)}, v19 offset:{f*1024}")

OOL = []
MSK = ["s[20:21]", "s[22:23]", "s[62:63]", "vcc"]
LDS_MSG = LDS_X + 28672
def ool(k, cond, br, block):
    lr, lb = k.newlabel("rare"), k.newlabel("back")
    OOL.append([lr + ":"] + block + [f"s_branch {lb}"])
    return cond + [f"{br} {lr}", lb + ":"]
def flush_ool(k):
    while OOL: emit(k, OOL.pop(0))

def maskblk(k, buf, sU, inline=False):
    L = [f"v_mov_b32 v{T_}, {NEGBIG}", f"v_subrev_u32 v{T_+1}, {sU}, {vMk}"]
    for qb in range(2):
        for kb in range(2):
            for e in range(4):
                L.append(f"v_cmp_gt_i32 {MSK[e]}, {16*(kb-qb) + e}, v{T_+1}")
            for e in range(4):
                r = Sreg(buf, qb, kb) + e
                L.append(f"v_cndmask_b32 v{r}, v{r}, v{T_}, {MSK[e]}")
    if inline:
        l = k.newlabel("nm")
        return [f"s_cmp_lt_i32 {sU}, 0", f"s_cbranch_scc1 {l}"] + L + [l + ":"]
    return ool(k, [f"s_cmp_lt_i32 {sU}, 0"], "s_cbranch_scc0", L)

def qk(buf, fr0, czero):
    L = []
    for kb in range(2):
        for sg in range(4):
            f = RG_ + 4*((fr0 + kb*4 + sg) % 8)
            for qb in range(2):
                d = Sreg(buf, qb, kb)
                c = v(d, 4) if sg else ("0" if czero else v(NM_+4*qb, 4))
                L.append(f"{MF} {v(d,4)}, {v(f,4)}, {v(Q_+(qb*4+sg)*4,4)}, {c}")
    return L

def pv(buf, fr0, ones=True):
    L = []
    for db in range(8):
        f = RG_ + 4*((fr0 + db) % 8)
        for qb in range(2):
            x = f"{MF} {v(Oreg(qb,db),4)}, {v(f,4)}, {v(Preg(buf,qb),4)}, {v(Oreg(qb,db),4)}"
            if ones and qb == 1 and db % 4 == 2:
                x = [x, f"{MF} {v(L_+4*(db//4),4)}, {v(ONE,4)}, {v(Preg(buf,db//4),4)}, {v(L_+4*(db//4),4)}"]
            L.append(x)
    return L

def sm_elems(buf, add=False):
    out = []
    for kb in range(2):
        for qb in range(2):
            for e in range(4):
                r = Sreg(buf, qb, kb) + e
                post = [f"v_add_f32 v{L_+4*qb}, v{L_+4*qb}, v{r}"] if add else []
                if e & 1: post.append(f"v_cvt_pk_bf16_f32 v{Preg(buf,qb)+2*kb+e//2}, v{r-1}, v{r}")
                out.append((f"v_exp_f32 v{r}, v{r}", post))
    return out

def rd(frag, base, off):
    s_ = frag % 8
    return DS(f"ds_read_b128 {v(RG_+4*s_,4)}, {base} offset:{off}", ("r", s_))

def rowred(op, x, t):
    return [f"v_mov_b32 {t}, {x}", "s_nop 1", f"v_permlane16_swap_b32 {x}, {t}", "s_nop 1", f"{op} {x}, {x}, {t}",
            f"v_mov_b32 {t}, {x}", "s_nop 1", f"v_permlane32_swap_b32 {x}, {t}", "s_nop 1", f"{op} {x}, {x}, {t}"]


ADV = [f"v_add_u32 {vVr}, 65536, {vKr}", f"v_add_u32 {vKr}, s41, {vKr}", f"v_and_b32 {vKr}, s49, {vKr}"]

def dma_clumps(k, cs):
    out = []
    for which in range(2):
        msk, base, soff = ("s48", "s43", "s46") if which == 0 else ("s39", "s44", "s47")
        for c in range(8 // cs):
            lskip = k.newlabel("nodma")
            j0 = c * cs
            L = [f"s_bitcmp1_b32 {msk}, s40", f"s_cbranch_scc0 {lskip}", f"s_add_u32 m0, {base}, {(j0 // 4)*4096}", "s_nop 0"]
            for j in range(j0, j0 + cs):
                L.append(f"buffer_load_dwordx4 {vD if j < 4 else vD2}, s[12:15], {soff} offen offset:{(j%4)*1024} sc1 lds")
            if c == 8 // cs - 1:
                L += [f"s_add_u32 {soff}, {soff}, 65536", f"s_xor_b32 {base}, {base}, 32768"]
            out.append(L + [lskip + ":"])
    return out

def p3_pieces(k, cfg, grp):
    pro = [rd(f, vKr, f*1024) for f in range(8)]
    m0 = qk(0, 0, True); m1 = qk(1, 8, True)
    zl = zero(O_, 64) + zero(L_, 8)
    fills = [[] for _ in range(32)]; pre = {}
    for p in range(16):
        pre[2*p] = [Need("ds", [("r", p % 8)])]
        if p < 8: fills[2*p+1].append(rd(p+8, vKr, (p+8)*1024))
    if cfg.get("pz") == "1": pro += zl
    else:
        for i, z in enumerate(zl): fills[i * 20 // len(zl)].append(z)
    if grp == 1:
        fills[20] += ool(k, ["s_add_u32 s36, s30, s50", "s_cmp_eq_u32 s36, 0"], "s_cbranch_scc1", maskblk(k, 0, "s36", True))
    x = [f"v{T_+2}", f"v{T_+3}"]; t = [f"v{T_+4}", f"v{T_+5}"]
    for qb in range(2):
        a = Sreg(0, qb, 0)
        ch = [f"v_max3_f32 {x[qb]}, v{a}, v{a+1}, v{a+2}", f"v_max3_f32 {x[qb]}, {x[qb]}, v{a+3}, v{a+4}",
              f"v_max3_f32 {x[qb]}, {x[qb]}, v{a+5}, v{a+6}", f"v_max_f32 {x[qb]}, {x[qb]}, v{a+7}",
              f"v_mov_b32 {t[qb]}, {x[qb]}", f"v_permlane16_swap_b32 {x[qb]}, {t[qb]}", f"v_max_f32 {x[qb]}, {x[qb]}, {t[qb]}",
              f"v_mov_b32 {t[qb]}, {x[qb]}", f"v_permlane32_swap_b32 {x[qb]}, {t[qb]}", f"v_max_f32 {x[qb]}, {x[qb]}, {t[qb]}"]
        for i, c in enumerate(ch): fills[21+i].append(c)
        fills[31] += [f"v_sub_f32 v{NM_+4*qb+e}, 0, {x[qb]}" for e in range(4)]
    pro += weave(m0 + m1, fills, pre)
    pro += ADV + cfg.get("pro_wait", lambda k, g: [])(k, grp) + ["s_barrier"] + cfg.get("pro_hook", lambda k, g: [])(k, grp) + [rd(f, vKr, f*1024) for f in range(7)]
    if grp == 0:
        pro += [DS(f"ds_write_b32 v19, v{NM_}"), DS(f"ds_write_b32 v19, v{NM_+4} offset:4")]
    for buf in range(2):
        for qb in range(2):
            a = Sreg(buf, qb, 0)
            pro += [f"v_pk_add_f32 {v(a+e,2)}, {v(a+e,2)}, {v(NM_+4*qb,2)}" for e in range(0, 8, 2)]
    el = sm_elems(0)
    pro += [e[0] for e in el] + [e[1] for e in el]
    M = qk(0, 0, False) + pv(0, 8) + qk(1, 16, False) + pv(1, 24)
    fills = [[] for _ in range(64)]; pre = {}
    def src(f):
        return (vKr, (f % 8)*1024 + (f // 16)*8192) if (f // 8) % 2 == 0 else (vVr, (f % 8)*1024 + (f // 16)*8192)
    wstep = int(cfg.get("wstep", 2))
    for p in range(32):
        if p % wstep == 0:
            pre[2*p] = [Need("ds", [("r", (p+i) % 8) for i in range(wstep)])]
    lag = int(cfg.get("lag", 0))
    for rnd in range(2):
        el = sm_elems(1 - rnd)
        for e in range(16):
            p = rnd*16 + e
            fills[2*p].append(el[e][0])
            fills[2*min(p+lag, rnd*16+15)+1] += (["s_nop 0"] if e == 15 and int(cfg.get("g3", 1)) > 1 else []) + el[e][1]
    for p in range(25):
        b, o = src(p + 7)
        fills[2*p+1].insert(0, rd(p+7, b, o))
    last = ["s_mov_b32 s41, 65536", "s_mov_b32 s49, 0x1ffff"]
    l1, l2, l3 = k.newlabel("r"), k.newlabel("r"), k.newlabel("r")
    if grp == 0:
        r32 = ["s_mov_b32 s41, 32768", "s_cmp_eq_u32 s40, 15", f"s_cbranch_scc0 {l1}"] + last + ["s_sub_u32 s36, 0, s50"] + maskblk(k, 0, "s36", True) + [l1 + ":"]
        pre[32] = ool(k, ["s_bitcmp1_b32 s31, s40"], "s_cbranch_scc1", r32) + pre[32]
    else:
        r0 = ["s_add_u32 s36, s40, 1", "s_sub_u32 s36, s36, s51", "s_cmp_lt_u32 s36, 2", f"s_cbranch_scc0 {l1}", "s_lshl_b32 s36, s36, 6",
              "s_add_u32 s36, s36, 32", "s_sub_u32 s36, s36, s50"] + maskblk(k, 1, "s36", True) + [l1 + ":"]
        pre[0] = ool(k, ["s_bitcmp1_b32 s42, s40"], "s_cbranch_scc1", r0) + pre[0]
        r32 = ["s_add_u32 s36, s40, 2", "s_sub_u32 s36, s36, s51", "s_cmp_eq_u32 s36, 1", "s_cselect_b32 s41, 0x8000, s41",
               "s_cmp_eq_u32 s40, 15", f"s_cbranch_scc0 {l2}"] + last + ["s_mov_b32 s36, 1", l2 + ":",
               "s_cmp_lt_u32 s36, 2", f"s_cbranch_scc0 {l3}", "s_lshl_b32 s36, s36, 6", "s_sub_u32 s36, s36, s50"] + maskblk(k, 0, "s36", True) + [l3 + ":"]
        pre[32] = ool(k, ["s_bitcmp1_b32 s42, s40"], "s_cbranch_scc1", r32) + pre[32]
    if grp == 0: fills[2*26] += ["s_add_u32 s40, s40, 1"]
    fills[2*25+1] += ADV[:2]; fills[2*26] += ADV[2:]
    bp = 26
    lr = k.newlabel("rlx")
    wt = ["s_waitcnt vmcnt(8) lgkmcnt(0)", "s_cmp_le_u32 s40, s51", f"s_cbranch_scc1 {lr}", "s_waitcnt vmcnt(0)", lr + ":"]
    fills[2*bp+1] += (wt if grp == 0 else ["s_waitcnt lgkmcnt(0)"]) + cfg.get("bar_hook", lambda k, g: [])(k, grp) + ["s_barrier"]
    nx = {27: [0, 1], 28: [2, 3], 29: [4], 30: [5], 31: [6]}
    for p, fl in nx.items():
        for f in fl: fills[2*p+1].insert(0, rd(f, vKr, f*1024))
    if grp == 0 and not cfg.get("nodma"):
        cs = int(cfg.get("cs", 4)); d0 = int(cfg.get("d0", 0)); dsp = float(cfg.get("dsp", 4))
        for c, cl in enumerate(dma_clumps(k, cs)):
            fills[2*int(d0 + c*dsp)+1] += cl
    if grp == 1: fills[int(cfg.get("btp", 24))] += cfg.get("b_inline", [])
    body = weave(M, fills, pre, int(cfg.get("g3", 1)))
    M = pv(0, 0) + pv(1, 8)
    fills = [[] for _ in range(32)]; pre = {}
    for p in range(16):
        pre[2*p] = [Need("ds", [("r", p % 8)])]
        if p + 7 < 16: fills[2*p+1].insert(0, rd(p+7, vVr, (p+7)*1024))
    el = sm_elems(1)
    for e in range(16):
        fills[e].append(el[e][0])
        fills[e+1 if e < 15 else 15] += (["s_nop 0"] if e == 15 else []) + el[e][1]
    pre[16] = ["s_nop 1"] + pre[16]
    wr = [DS(f"ds_write_b128 v5, {v(Oreg(1-grp,db),4)} offset:{db*1024}") for db in range(8)]
    for db in range(4): fills[2*(8+db+4)+1] += [wr[db]]
    extra = cfg.get("tail_extra", lambda k, g: [])(k, grp)
    for i, x in enumerate(extra): fills[16 + i * 8 // len(extra)] += x
    tail = [f"s_sub_u32 s36, {32 + 64*grp}, s50"] + maskblk(k, 1, "s36") + ["s_lshl_b32 s37, s28, 13", f"v_add_u32 v5, s37, {vL16}"] + \
           weave(M, fills, pre) + wr[4:6]
    return pro, body, tail

def lcheck(k, l):
    k.e(f"v_cmp_nge_f32 vcc, s36, {l}")
    k.e("s_nop 0")
    k.e("s_or_b64 s[52:53], s[52:53], vcc")

def ctx_base(k, sblk, add):
    k.e(f"s_lshl_b32 s38, {sblk}, 3")
    k.e("s_and_b32 s37, s28, 3")
    k.e("s_lshl_b32 s37, s37, 1")
    k.e("s_add_u32 s38, s38, s37")
    if add: k.e(f"s_add_u32 s38, s38, {add}")
    k.e("s_lshl_b32 s38, s38, 17")
    k.e("s_lshl_b32 s37, s29, 12")
    k.e("s_add_u32 s38, s38, s37")

def epi_own(k, cfg, sblk, fast):
    if fast: k.e("s_nop 4")
    else:
        for qb in range(2): k.e(rowred("v_add_f32", f"v{L_+4*qb}", f"v{T_}"))
    k.e("s_mov_b32 s36, 0x5d800000")
    for qb in range(2): lcheck(k, f"v{L_+4*qb}")
    for qb in range(2): k.e(f"v_rcp_f32 v{T_+2*qb}, v{L_+4*qb}")
    ctx_base(k, sblk, 0)
    for qb in range(2): k.e(f"v_mov_b32 v{T_+2*qb+1}, v{T_+2*qb}")
    for qb in range(2):
        for sg in range(4):
            a = Oreg(qb, 2*sg)
            k.e(pkmul(a, 8, T_+2*qb))
            for q in range(4): k.e(f"v_cvt_pk_bf16_f32 v{a+q}, v{a+2*q}, v{a+2*q+1}")
            k.e(f"buffer_store_dwordx4 {v(a,4)}, {vL16}, s[16:19], s38 offen offset:{sg*1024}{cfg.get('stflag','')}")
        if qb == 0: k.e(f"s_add_u32 s38, s38, {1<<17}")
    if fast: k.e(zero(L_, 8) + zero(O_, 64))

def merge(k, cfg, kh):
    T_ = 104
    t = [f"v{T_+i}" for i in range(18)]
    o = 1 - kh
    k.e(f"v_xor_b32 {t[2]}, 32768, v5")
    k.e("s_lshl_b32 s37, s28, 8")
    k.e(f"s_add_u32 s37, s37, {LDS_MSG}")
    k.e(f"v_lshl_add_u32 {t[3]}, v1, 2, s37")
    k.e(f"v_xor_b32 {t[4]}, 1024, {t[3]}")
    for db in range(6, 8):
        k.e(f"ds_write_b128 v5, {v(Oreg(o,db),4)} offset:{db*1024}")
    k.e(f"ds_write_b32 {t[3]}, v{L_+4*o}")
    k.e("s_mov_b32 s36, 0x5d800000")
    for qb in range(2): lcheck(k, f"v{L_+4*qb}")
    k.e("s_or_b32 s36, s52, s53")
    k.e(f"v_mov_b32 {t[6]}, s36")
    k.e("s_lshl_b32 s37, s28, 2")
    k.e(f"s_add_u32 s37, s37, {LDS_MSG+2048}")
    k.e(f"v_mov_b32 {t[7]}, s37")
    k.e(f"ds_write_b32 {t[7]}, {t[6]}")
    k.e(f"v_mov_b32 {t[8]}, {LDS_MSG+2112}")
    if kh == 0 and cfg.get("share"):
        for i in range(4): k.e(f"v_mov_b32 v{T_+10+i}, s{56+i}")
        k.e(f"ds_write_b128 {t[8]}, {v(T_+10,4)}")
    k.e(f"v_and_b32 {t[7]}, 7, v1")
    k.e(f"v_lshlrev_b32 {t[7]}, 2, {t[7]}")
    k.e(f"v_add_u32 {t[7]}, {LDS_MSG+2048}, {t[7]}")
    k.e("s_sub_u32 s36, 15, s30")
    ctx_base(k, "s36", kh)
    cfg.get("before_merge", lambda k: None)(k)
    k.e("s_waitcnt lgkmcnt(0)")
    k.e("s_barrier")
    if kh == 1 and cfg.get("share"): k.e(f"ds_read_b128 {v(T_+10,4)}, {t[8]}")
    k.e(f"ds_read_b32 {t[6]}, {t[7]}")
    k.e(f"ds_read_b32 {t[5]}, {t[4]}")
    for db in range(8):
        k.e(f"ds_read_b128 {v(RG_+4*db,4)}, {t[2]} offset:{db*1024}")
    k.e("s_waitcnt lgkmcnt(8)")
    k.e(f"v_add_f32 {t[5]}, {t[5]}, v{L_+4*kh}")
    k.e(f"v_cmp_ne_u32 s[52:53], 0, {t[6]}")
    if kh == 1 and cfg.get("share"):
        for i in range(4): k.e(f"v_readfirstlane_b32 s{56+i}, v{T_+10+i}")
    k.e(f"v_rcp_f32 {t[5]}, {t[5]}")
    k.e("s_nop 0")
    k.e(f"v_mov_b32 {t[4]}, {t[5]}")
    for sg in range(4):
        k.e(f"s_waitcnt lgkmcnt({6-2*sg})")
        a = Oreg(kh, 2*sg)
        for e in range(0, 8, 2): k.e(f"v_pk_add_f32 {v(a+e,2)}, {v(a+e,2)}, {v(RG_+8*sg+e,2)}")
        k.e(pkmul(a, 8, T_+4))
        for q in range(4): k.e(f"v_cvt_pk_bf16_f32 v{P_+4*sg+q}, v{a+2*q}, v{a+2*q+1}")
        k.e(f"buffer_store_dwordx4 {v(P_+4*sg,4)}, {vL16}, s[16:19], s38 offen offset:{sg*1024}{cfg.get('stflag','')}")

def safe_path(k, cfg, grp):
    M_ = NM_
    t = [f"v{T_+i}" for i in range(18)]
    if grp == 1:
        for r in range(32): k.e(f"v_swap_b32 v{Q_+r}, v{QS_+r}")
    for r in range(64): k.e(f"v_mov_b32 v{O_+r}, 0")
    for qb in range(2):
        k.e(f"v_mov_b32 v{L_+4*qb}, 0")
        k.e(f"v_mov_b32 v{M_+qb}, {NEGBIG}")
    k.e("s_lshl_b32 s43, s28, 12")
    k.e(f"v_add_u32 {vD}, s43, {vL16}")
    k.e("s_mov_b32 s46, s45")
    k.e("s_sub_u32 s40, 16, s30")
    k.e("s_sub_u32 s39, 15, s30" if grp == 0 else "s_mov_b32 s39, s30")
    k.e("s_lshl_b32 s37, s39, 7")
    k.e("s_and_b32 s36, s28, 3")
    k.e("s_lshl_b32 s36, s36, 5")
    k.e("s_add_u32 s36, s36, s37")
    k.e("s_sub_u32 s50, 0, s36")
    lt, lu, ln_ = k.newlabel("stile"), k.newlabel("sunit"), k.newlabel("snext")
    k.label(lt)
    k.e("s_waitcnt vmcnt(0) lgkmcnt(0)")
    k.e("s_barrier")
    k.e("s_mov_b32 m0, s43")
    k.e("s_add_u32 s47, s46, 32768")
    for j in range(4): k.e(f"buffer_load_dwordx4 {vD}, s[12:15], s46 offen offset:{j*1024} sc1 lds")
    k.e("s_add_u32 m0, s43, 32768")
    k.e("s_add_u32 s46, s46, 65536")
    for j in range(4): k.e(f"buffer_load_dwordx4 {vD}, s[12:15], s47 offen offset:{j*1024} sc1 lds")
    k.e(f"v_mov_b32 {vKr}, {vL16}")
    k.e("s_mov_b32 s41, 4")
    k.e("s_waitcnt vmcnt(0)")
    k.e("s_barrier")
    k.label(lu)
    k.e("s_cmp_gt_i32 s50, 0")
    k.e(f"s_cbranch_scc1 {ln_}")
    for f in range(8): k.e(f"ds_read_b128 {v(RG_+4*f,4)}, {vKr} offset:{f*1024}")
    k.e("s_waitcnt lgkmcnt(0)")
    k.e(qk(0, 0, True))
    for f in range(8): k.e(f"ds_read_b128 {v(RG_+4*f,4)}, {vKr} offset:{32768+f*1024}")
    k.e("s_nop 1")
    emit(k, maskblk(k, 0, "s50"))
    for qb in range(2):
        a = Sreg(0, qb, 0); x = t[2+qb]
        k.e([f"v_max3_f32 {x}, v{a}, v{a+1}, v{a+2}", f"v_max3_f32 {x}, {x}, v{a+3}, v{a+4}",
             f"v_max3_f32 {x}, {x}, v{a+5}, v{a+6}", f"v_max3_f32 {x}, {x}, v{a+7}, v{M_+qb}"])
        k.e(rowred("v_max_f32", x, t[4]))
        k.e(f"v_sub_f32 {t[5]}, v{M_+qb}, {x}")
        k.e(f"v_exp_f32 {t[5]}, {t[5]}")
        k.e(f"v_mov_b32 v{M_+qb}, {x}")
        k.e(f"v_mul_f32 v{L_+4*qb}, v{L_+4*qb}, {t[5]}")
        for r in range(32): k.e(f"v_mul_f32 v{Oreg(qb,0)+r}, v{Oreg(qb,0)+r}, {t[5]}")
        for e in range(8): k.e(f"v_sub_f32 v{a+e}, v{a+e}, {x}")
    el = sm_elems(0, True)
    for e in range(16): k.e(el[e][0])
    for e in range(16): k.e(el[e][1])
    k.e("s_waitcnt lgkmcnt(0)")
    k.e("s_nop 0")
    k.e(pv(0, 0, False))
    k.label(ln_)
    k.e(f"v_add_u32 {vKr}, 8192, {vKr}")
    k.e("s_add_u32 s50, s50, 32")
    k.e("s_sub_u32 s41, s41, 1")
    k.e("s_cmp_lg_u32 s41, 0")
    k.e(f"s_cbranch_scc1 {lu}")
    k.e("s_sub_u32 s40, s40, 1")
    k.e("s_cmp_lg_u32 s40, 0")
    k.e(f"s_cbranch_scc1 {lt}")
    epi_own(k, cfg, "s39", False)

def gen_p3(k, cfg, grp, st, after_q=None, before_tail=None):
    n0 = st.n
    q_pack(k, grp, cfg.get('qwait', 0))
    if after_q: after_q(k, grp)
    st.mark()
    pro, body, tail = p3_pieces(k, cfg, grp)
    sw = []
    if grp == 1:
        sw = [f"v_swap_b32 v{Q_+r}, v{QS_+r}" for r in range(32)]
        sw += [f"v_mov_b32 v{NM_+r}, v{14+r//4}" for r in range(8)] + ["s_nop 1"]
    resolve([[pro, body, body, body, tail], [pro, body, sw, body, body, tail]])
    if cfg.get("prio") and grp == int(cfg["prio"]) - 1: k.e("s_setprio 1")
    emit(k, pro)
    st.mark()
    if cfg.get("bwait"): k.e("s_mov_b32 s98, 0")
    lb = f"L_body{grp}"
    k.align(6)
    k.label(lb)
    emit(k, body)
    if grp == 1:
        ke = K(k.name + "_epi")
        epi_own(ke, cfg, "s30", True)
        l1, l2, l3 = k.newlabel("nm"), k.newlabel("ns"), k.newlabel("ne")
        post = ["s_cmp_eq_u32 s40, 0", f"s_cbranch_scc0 {l1}", "ds_read_b64 v[14:15], v19", "s_waitcnt lgkmcnt(0)", l1 + ":"]
        post += cfg.get("b_hook", lambda k: [])(k)
        post += ["s_add_u32 s36, s40, 1", "s_cmp_eq_u32 s36, s51", f"s_cbranch_scc0 {l2}"] + sw + [l2 + ":"]
        post += ["s_cmp_eq_u32 s40, s51", f"s_cbranch_scc0 {l3}"] + [x.strip() for x in ke.lines] + [l3 + ":"]
        emit(k, ool(k, ["s_bitcmp1_b32 s42, s40"], "s_cbranch_scc1", post))
        k.e("s_add_u32 s40, s40, 1")
    k.e("s_cmp_lg_u32 s40, 16")
    k.e(f"s_cbranch_scc1 {lb}")
    st.mark()
    if cfg.get("bwait"):
        st.mark()
        k.e(f"s_add_u32 s{st.base+2*st.n-2}, s{st.base+2*st.n-4}, s98")
    if before_tail: before_tail(k, grp)
    emit(k, tail)
    st.mark()
    merge(k, cfg, grp)
    st.mark()
    k.e("s_cmp_eq_u64 s[52:53], 0")
    k.e("s_cbranch_scc1 L_p3_done")
    if cfg.get("dbgsafe"):
        k.e("s_load_dwordx2 s[20:21], s[0:1], 96")
        k.e("s_waitcnt lgkmcnt(0)")
        k.e("v_mov_b32 v20, 0"); k.e("v_mov_b32 v21, 1")
        k.e("s_mov_b64 exec, 1")
        k.e("global_atomic_add v20, v21, s[20:21]")
        k.e("s_mov_b64 exec, -1")
    k.e("s_waitcnt vmcnt(0)")
    for r in range(8): k.e(f"v_mov_b32 v{S_+16+r}, v{S_+r}")
    safe_path(k, cfg, grp)
    for r in range(8): k.e(f"v_mov_b32 v{S_+r}, v{S_+16+r}")
    if grp == 0: st.n = n0

def gen_attn(cfg=None):
    cfg = cfg or {}
    k = K("attn_kernel")
    k.e("s_cmp_ge_u32 s2, 256")
    k.e("s_cbranch_scc1 L_attn_end")
    st = Stamps(k, cfg.get("stamp"), kid=1)
    st.mark()
    k.e("s_load_dwordx2 s[50:51], s[0:1], 16")
    k.e("s_load_dwordx2 s[54:55], s[0:1], 104")
    k.e("v_and_b32 v1, 63, v0")
    k.e("v_lshrrev_b32 v16, 6, v0")
    k.e("s_and_b32 s29, s2, 7")
    k.e("v_readfirstlane_b32 s28, v16")
    k.e("s_lshl_b32 s29, s29, 2")
    k.e("s_bfe_u32 s36, s2, 0x20003")
    k.e("s_add_u32 s29, s29, s36")
    k.e("s_lshr_b32 s30, s2, 5")
    p2_setup(k)
    k.e("s_waitcnt lgkmcnt(0)")
    srd(k, 4, 54, 4194304)
    srd(k, 8, 50, 8388608)
    pro, pro2, kvpre, body = p2_pieces(cfg)
    resolve([[pro, pro2, body, body, body, kvpre, body]])
    emit(k, pro)
    srd(k, 12, 54, 33554432, WS_KV)
    srd(k, 16, 54, 16777216, WS_CTX)
    p2_setup2(k)
    st.mark()
    emit(k, pro2)
    st.mark()
    k.align(6)
    k.label("L_p2_loop")
    k.e("s_cmp_lg_u32 s35, 3")
    k.e("s_cbranch_scc1 L_p2_nokv")
    emit(k, kvpre)
    k.label("L_p2_nokv")
    emit(k, body)
    k.e("s_add_u32 s35, s35, 1")
    k.e("s_cmp_lt_u32 s35, 4")
    k.e("s_cbranch_scc1 L_p2_loop")
    st.mark()
    k.e("s_cmp_lt_u32 s28, 4")
    k.e("s_cbranch_scc0 L_grp1")
    gen_p3(k, cfg, 0, st)
    k.e("s_branch L_p3_done")
    flush_ool(k)
    k.label("L_grp1")
    gen_p3(k, cfg, 1, st)
    k.e("s_branch L_p3_done")
    flush_ool(k)
    k.label("L_p3_done")
    st.dump(54, "s28")
    k.label("L_attn_end")
    return wrap(k, 256)
```

```python
from common import *
import attn as A
import ffn as F

WS_CNT = 59 << 20
CNT_KV, CNT_CTX, CNT_F1, CNT_F2, CNT_KV0, CNT_EX, CNT_LN = 0, 32, 48, 96, 64, 128, 112
WS_EX = 64 << 20
SC = " sc1"
LDS_X = 131072

def NT(cfg, key):
    return " nt" if key in cfg.get("nt", "") else ""

def lines(fn, *a, **kw):
    t = K("tmp"); fn(t, *a, **kw); return [x.strip() for x in t.lines]

def signal(saddr_pair, off, t0, t1):
    return [f"v_mov_b32 {t0}, {off}", f"v_mov_b32 {t1}, 1", "s_mov_b64 exec, 1",
            f"global_atomic_add {t0}, {t1}, {saddr_pair}", "s_mov_b64 exec, -1", "s_nop 3"]

def switch(k, sreg, cases):
    L = []
    lend = k.newlabel("swend")
    for i, (val, items) in enumerate(cases):
        if i + 1 < len(cases):
            ln = k.newlabel("swn")
            L += [f"s_cmp_eq_u32 {sreg}, {val}", f"s_cbranch_scc0 {ln}"] + items + [f"s_branch {lend}", ln + ":"]
        else:
            L += items
    return L + [lend + ":"]

def guard(k, cond, br, items, key):
    l = k.newlabel("g")
    return Alt(cond + [f"{br} {l}"] + items + [l + ":"], lambda c: items if c[key] else [])

def spin(k, saddr, voff, vtmp, target, slp=8):
    l, le = k.newlabel("spin"), k.newlabel("spinx")
    return ["s_mov_b32 s61, 0x40000", l + ":", "s_sub_u32 s61, s61, 1", f"s_cbranch_scc1 {le}", f"s_sleep {slp}",
            f"global_load_dword {vtmp}, {voff}, {saddr} sc1", "s_waitcnt vmcnt(0)",
            f"v_readfirstlane_b32 s36, {vtmp}", "s_nop 0", f"s_cmp_lt_u32 s36, {target}", f"s_cbranch_scc1 {l}", le + ":"]

def check(k, saddr, voff, vtmp, target, slp=8):
    return A.ool(k, [f"v_readfirstlane_b32 s36, {vtmp}", "s_nop 0", f"s_cmp_lt_u32 s36, {target}"], "s_cbranch_scc1",
                 spin(k, saddr, voff, vtmp, target, slp))

def ln_check(k):
    l, le = k.newlabel("lspin"), k.newlabel("lspinx")
    return ["s_mov_b32 s61, 0x40000", l + ":", "v_cmp_gt_u32 vcc, 16, v116", "s_nop 0", "s_cmp_eq_u64 vcc, 0",
            f"s_cbranch_scc1 {le}", "s_sub_u32 s61, s61, 1", f"s_cbranch_scc1 {le}", "s_sleep 8",
            "global_load_dword v116, v117, s[90:91] sc1", "s_waitcnt vmcnt(0)", f"s_branch {l}", le + ":"]

def ln_row(X, XO, WR, Fr, T, SB, srow, sslot):
    k = K("t")
    t = [f"v{T+i}" for i in range(8)]
    for i in range(8):
        k.e(f"v_lshlrev_b32 v{Fr+2*i}, 16, v{X+i}")
        k.e(f"v_and_b32 v{Fr+2*i+1}, 0xffff0000, v{X+i}")
    P = lambda r: v(r, 2)
    k.e(f"v_pk_add_f32 {P(T)}, {P(Fr)}, {P(Fr+2)}")
    for i in range(2, 8): k.e(f"v_pk_add_f32 {P(T)}, {P(T)}, {P(Fr+2*i)}")
    k.e(f"v_add_f32 {t[0]}, {t[0]}, {t[1]}")
    wave_sum(k, t[0], t[4], SB)
    k.e(f"v_mul_f32 {t[4]}, 0xba800000, {t[4]}")
    k.e(f"v_mov_b32 {t[5]}, {t[4]}")
    for i in range(8):
        k.e(f"v_pk_add_f32 {P(T+2)}, {P(Fr+2*i)}, {P(T+4)}")
        k.e(f"v_pk_mul_f32 {P(T)}, {P(T+2)}, {P(T+2)}" if i == 0 else f"v_pk_fma_f32 {P(T)}, {P(T+2)}, {P(T+2)}, {P(T)}")
    k.e(f"v_add_f32 {t[0]}, {t[0]}, {t[1]}")
    wave_sum(k, t[0], t[2], SB)
    k.e(f"v_mul_f32 {t[2]}, 0x3a800000, {t[2]}")
    k.e(f"v_cvt_pk_bf16_f32 {t[3]}, {t[4]}, {t[2]}")
    k.e(f"v_lshlrev_b32 {t[4]}, 16, {t[3]}")
    k.e(f"v_and_b32 {t[2]}, 0xffff0000, {t[3]}")
    k.e(f"v_add_f32 {t[2]}, 0x3727c5ac, {t[2]}")
    rbf(k, t[2])
    k.e(f"v_sqrt_f32 {t[2]}, {t[2]}")
    k.e(f"v_mov_b32 {t[5]}, {t[4]}")
    rbf(k, t[2])
    k.e(f"v_rcp_f32 {t[7]}, {t[2]}")
    k.e("s_nop 0")
    k.e(f"v_fma_f32 {t[3]}, -{t[2]}, {t[7]}, 1.0")
    k.e(f"v_fma_f32 {t[7]}, {t[3]}, {t[7]}, {t[7]}")
    k.e(f"v_mov_b32 {t[6]}, {t[7]}")
    for i in range(8):
        a, b = f"v{Fr+2*i}", f"v{Fr+2*i+1}"
        k.e(f"v_pk_add_f32 {P(Fr+2*i)}, {P(Fr+2*i)}, {P(T+4)}")
        k.e(f"v_cvt_pk_bf16_f32 {t[2]}, {a}, {b}")
        k.e(f"v_lshlrev_b32 {a}, 16, {t[2]}")
        k.e(f"v_and_b32 {b}, 0xffff0000, {t[2]}")
        k.e(f"v_pk_mul_f32 {P(Fr+2*i)}, {P(Fr+2*i)}, {P(T+6)}")
        k.e(f"v_cvt_pk_bf16_f32 v{XO+i}, {a}, {b}")
        k.e(f"v_lshlrev_b32 {a}, 16, v{XO+i}")
        k.e(f"v_and_b32 {b}, 0xffff0000, v{XO+i}")
        k.e(f"v_pk_mul_f32 {P(T)}, {P(Fr)}, {P(WR)}" if i == 0 else f"v_pk_fma_f32 {P(T)}, {P(Fr+2*i)}, {P(WR+2*i)}, {P(T)}")
    k.e(f"v_add_f32 {t[0]}, {t[0]}, {t[1]}")
    k.e(f"v_xor_b32 {t[6]}, 0x80000000, {t[4]}")
    k.e(f"s_mul_i32 s{SB}, {sslot}, 2064")
    k.e(f"s_add_u32 s{SB}, s{SB}, {LDS_X}")
    k.e(f"v_lshl_add_u32 {t[3]}, v1, 4, s{SB}")
    k.e(f"ds_write_b128 {t[3]}, {v(XO,4)}")
    k.e(f"ds_write_b128 {t[3]}, {v(XO+4,4)} offset:1024")
    wave_sum(k, t[0], t[1], SB)
    rbf(k, t[1])
    k.e(f"v_ashrrev_i32 {t[3]}, 31, {t[1]}")
    k.e(f"v_or_b32 {t[3]}, 0x80000000, {t[3]}")
    k.e(f"v_xor_b32 {t[3]}, {t[1]}, {t[3]}")
    k.e(f"v_and_b32 {t[3]}, 0xffff0000, {t[3]}")
    k.e(f"s_sub_u32 s{SB}, 0xffff, {srow}")
    k.e(f"v_or_b32 {t[3]}, s{SB}, {t[3]}")
    k.e(f"s_lshl_b32 s{SB+1}, {sslot}, 3")
    k.e(f"s_add_u32 s{SB+1}, s{SB+1}, {LDS_X + 16640}")
    k.e(f"v_mov_b32 {t[2]}, s{SB+1}")
    k.e(f"ds_write_b64 {t[2]}, {v(T+6,2)}")
    k.e(f"ds_write_b32 {t[2]}, {t[3]} offset:64")
    return [x.strip() for x in k.lines]

def zip2(a, b):
    out = []
    for x, y in zip(a, b):
        if x == "s_nop 0": continue
        if x == "s_nop 1": out.append("s_nop 0"); continue
        out += [x, y]
    return out

def ln_part3(T):
    t = [f"v{T+i}" for i in range(8)]
    L = [f"v_and_b32 {t[0]}, 7, v1", f"v_lshlrev_b32 {t[0]}, 3, {t[0]}", f"v_add_u32 {t[1]}, {LDS_X + 16640}, {t[0]}",
         f"ds_read_b64 {v(T+2,2)}, {t[1]}", f"ds_read_b32 {t[4]}, {t[1]} offset:64",
         "s_lshl_b32 s36, s2, 6", f"s_add_u32 s36, s36, {WS_ST}", "s_lshl_b32 s37, s2, 3", f"s_add_u32 s37, s37, {F.WS_KEY}",
         "s_waitcnt lgkmcnt(0)", f"v_mov_b32 {t[6]}, {t[4]}"]
    red = lambda x: flat([["s_nop 1", f"v_max_u32_dpp {x}, {x}, {x} {m} row_mask:0xf bank_mask:0xf"]
                          for m in ("quad_perm:[1,0,3,2]", "quad_perm:[2,3,0,1]", "row_half_mirror")])
    L += red(t[6]) + [f"v_cmp_eq_u32 vcc, {t[6]}, {t[4]}", "s_nop 1", f"v_cndmask_b32 {t[7]}, {t[4]}, v118, vcc"] + red(t[7])
    L += ["s_mov_b64 exec, 0xff", f"buffer_store_dwordx2 {v(T+2,2)}, {t[0]}, s[24:27], s36 offen{SC}",
          "s_mov_b64 exec, 1", f"buffer_store_dwordx2 {v(T+6,2)}, {t[0]}, s[24:27], s37 offen{SC}", "s_mov_b64 exec, -1", "s_nop 3"]
    return L

def ln_part2(k, X):
    t = ["v16", "v18", "v19"]
    k.e(f"v_and_b32 {t[0]}, 7, v1")
    k.e(f"v_lshrrev_b32 {t[1]}, 3, v1")
    k.e(f"v_mul_u32_u24 {t[2]}, 2064, {t[0]}")
    k.e(f"v_lshl_add_u32 {t[2]}, {t[1]}, 4, {t[2]}")
    k.e("s_lshl_b32 s36, s28, 8")
    k.e(f"s_add_u32 s36, s36, {LDS_X}")
    k.e(f"v_add_u32 {t[2]}, s36, {t[2]}")
    k.e(f"ds_read_b128 {v(X,4)}, {t[2]}")
    k.e(f"ds_read_b128 {v(X+4,4)}, {t[2]} offset:128")
    k.e(f"v_lshlrev_b32 {t[0]}, 4, {t[0]}")
    k.e(f"v_lshl_add_u32 {t[0]}, {t[1]}, 8, {t[0]}")
    k.e("s_lshr_b32 s36, s2, 1")
    k.e("s_lshl_b32 s36, s36, 15")
    k.e("s_and_b32 s37, s2, 1")
    k.e("s_lshl_b32 s37, s37, 7")
    k.e("s_add_u32 s36, s36, s37")
    k.e("s_lshl_b32 s37, s28, 12")
    k.e("s_add_u32 s36, s36, s37")
    k.e("s_waitcnt lgkmcnt(0)")
    k.e(f"buffer_store_dwordx4 {v(X,4)}, {t[0]}, s[24:27], s36 offen{SC}")
    k.e(f"buffer_store_dwordx4 {v(X+4,4)}, {t[0]}, s[24:27], s36 offen offset:2048{SC}")

KP = 128
WF = 64
XF = [24, 96]
def xld2(xs, s_):
    return [VM(f"buffer_load_dwordx4 {v(XF[xs]+(s_*2+rb)*4,4)}, v{6+rb}, s[8:11], s32 offen offset:{s_*1024}{SC}", ("x", xs, s_)) for rb in range(2)]
vPOLL = "v56"
vZ = "v57"

def code_touch(k, a, dst):
    l = k.newlabel("pc")
    return ["s_getpc_b64 s[36:37]", l + ":", f"s_sub_u32 s36, s36, {l}-L_pc", "s_subb_u32 s37, s37, 0",
            "s_lshr_b32 s38, s2, 3", "s_lshl_b32 s38, s38, 7", f"v_lshl_add_u32 v{a}, v1, 12, s38", f"v_min_u32 v{a}, L_end-L_pc-4, v{a}",
            f"v_mov_b32 v{a+1}, s37", f"v_add_co_u32 v{a}, vcc, s36, v{a}", "s_mov_b64 exec, 0xffff", "s_nop 0",
            f"v_addc_co_u32 v{a+1}, vcc, 0, v{a+1}, vcc", f"global_load_dword {dst}, v[{a}:{a+1}], off", "s_mov_b64 exec, -1", "s_nop 1"]

def p1_retarget(cfg):
    L = ["v_lshrrev_b32 v3, 4, v1", "s_lshl_b32 s37, s28, 4", "v_add_u32 v19, s37, v3", "v_lshlrev_b32 v19, 13, v19",
         "s_lshl_b32 s37, s29, 8", "v_add_u32 v19, s37, v19", "v_and_b32 v16, 15, v1", "v_lshlrev_b32 v3, 1, v3",
         "v_xor_b32 v16, v16, v3", "v_lshl_add_u32 v2, v16, 4, v19", f"v_add_u32 v3, {32768-1024}, v2",
         "v_xor_b32 v16, 8, v16", "v_lshl_add_u32 v4, v16, 4, v19", f"v_add_u32 v4, {2*(32768-1024)}, v4",
         f"v_add_u32 v5, {32768-1024}, v4"]
    L += lines(srd, 4, 96, 8388608)
    L += ["s_mov_b32 s31, 0", f"s_mov_b32 s40, {128*8192}", "s_mov_b64 s[8:9], s[4:5]", "s_mov_b32 s10, s6", f"s_mov_b32 s32, {2*128*8192}"]
    L += [f"v_mov_b32 v{6+j}, v{2+j}" for j in range(4)]
    return L

W1 = []
def p1(k, cfg, st):
    ACC = 128
    FR = [20, 68]
    XA, XB, WP, WR = 20, 28, 36, 44
    k.e("s_load_dwordx4 s[44:47], s[0:1], 0")
    k.e("s_load_dwordx2 s[52:53], s[0:1], 56")
    k.e("s_load_dwordx4 s[48:51], s[0:1], 24")
    k.e("s_getpc_b64 s[36:37]")
    k.label("L_pc")
    k.e("s_lshr_b32 s38, s2, 3")
    k.e("s_lshl_b32 s38, s38, 7")
    k.e("v_lshl_add_u32 v16, v0, 12, s38")
    k.e("v_cmp_gt_u32 vcc, L_end-L_pc-4, v16")
    k.e("v_mov_b32 v17, s37")
    k.e("s_and_b64 exec, exec, vcc")
    k.e("s_cbranch_execz L_nocpf")
    k.e("v_add_co_u32 v16, vcc, s36, v16")
    k.e("s_nop 1")
    k.e("v_addc_co_u32 v17, vcc, 0, v17, vcc")
    if not cfg.get("nocpf"): k.e("global_load_dword v119, v[16:17], off")
    k.label("L_nocpf")
    k.e("s_mov_b64 exec, -1")
    k.e("v_lshrrev_b32 v16, 6, v0")
    k.e("v_and_b32 v1, 63, v0")
    k.e("v_readfirstlane_b32 s28, v16")
    k.e("v_lshlrev_b32 v116, 4, v1")
    k.e("s_lshl_b32 s42, s2, 3")
    k.e("s_cmp_lt_u32 s28, 4")
    k.e("s_cbranch_scc1 L_nox")
    k.e("s_add_u32 s43, s42, s28")
    k.e("s_sub_u32 s42, s43, 4")
    k.e("v_lshl_add_u32 v18, s42, 11, v116")
    k.e("v_add_u32 v19, 8192, v18")
    k.e("s_waitcnt lgkmcnt(0)")
    for X_, a_ in ((XA, "v18"), (XB, "v19")):
        k.e(f"global_load_dwordx4 {v(X_,4)}, {a_}, s[44:45]{NT(cfg, 'x')}")
        k.e(f"global_load_dwordx4 {v(X_+4,4)}, {a_}, s[44:45] offset:1024{NT(cfg, 'x')}")
    k.e(f"global_load_dwordx4 {v(WP,4)}, v116, s[52:53]")
    k.e(f"global_load_dwordx4 {v(WP+4,4)}, v116, s[52:53] offset:1024")
    if not cfg.get("nob0"): k.e("s_barrier")
    k.label("L_nox")
    k.e("s_load_dwordx4 s[88:91], s[0:1], 96")
    k.e("s_load_dwordx4 s[92:95], s[0:1], 64")
    k.e("s_load_dwordx2 s[96:97], s[0:1], 16")
    if cfg.get("evn"):
        k.e("s_and_b32 s29, s2, 7")
        k.e("s_lshl_b32 s29, s29, 2")
        k.e(f"s_lshr_b32 s29, {cfg['evn']}, s29")
        k.e("s_and_b32 s29, s29, 7")
    else:
        k.e("s_and_b32 s29, s2, 7")
    k.e("s_lshl_b32 s29, s29, 2")
    k.e("s_bfe_u32 s36, s2, 0x20003")
    k.e("s_add_u32 s29, s29, s36")
    k.e("s_lshr_b32 s30, s2, 5")
    k.e("v_lshrrev_b32 v16, 3, v1")
    k.e("s_lshl_b32 s36, s30, 8")
    k.e("s_lshl_b32 s37, s28, 5")
    k.e("s_add_u32 s36, s36, s37")
    k.e("v_add_u32 v16, s36, v16")
    k.e("v_lshlrev_b32 v16, 10, v16")
    k.e("v_lshrrev_b32 v18, 4, v1")
    k.e("v_and_b32 v19, 7, v1")
    k.e("v_xor_b32 v19, v19, v18")
    k.e("v_lshl_add_u32 v2, v19, 4, v16")
    k.e("v_xor_b32 v19, 4, v19")
    k.e("v_lshl_add_u32 v3, v19, 4, v16")
    k.e(f"v_add_u32 v3, {8192-1024}, v3")
    k.e(f"v_add_u32 v4, {2*(8192-1024)}, v2")
    k.e(f"v_add_u32 v5, {2*(8192-1024)}, v3")
    k.e("s_and_b32 s36, s28, 3")
    k.e("s_lshl_b32 s37, s36, 4")
    k.e("v_add_u32 v16, s37, v18")
    k.e("v_lshlrev_b32 v16, 13, v16")
    k.e("s_lshl_b32 s37, s29, 8")
    k.e("v_add_u32 v16, s37, v16")
    k.e("v_and_b32 v19, 15, v1")
    k.e("v_lshlrev_b32 v18, 1, v18")
    k.e("v_xor_b32 v19, v19, v18")
    k.e("v_lshl_add_u32 v6, v19, 4, v16")
    k.e(f"v_add_u32 v7, {32768-1024}, v6")
    k.e("v_xor_b32 v19, 8, v19")
    k.e("v_lshl_add_u32 v8, v19, 4, v16")
    k.e(f"v_add_u32 v8, {2*(32768-1024)}, v8")
    k.e(f"v_add_u32 v9, {32768-1024}, v8")
    k.e("s_lshl_b32 s33, s28, 12")
    k.e("s_add_u32 s34, s33, 65536")
    k.e("s_mov_b32 s31, 0")
    k.e("s_mov_b32 s32, 0")
    k.e("s_mov_b32 s40, 128")
    k.e(f"s_mov_b32 s41, {64*8192}")
    def dma_list(stage):
        c = [f"buffer_load_dwordx4 v{2+j}, s[4:7], s31 offen offset:{j*1024}{NT(cfg, 'c')} lds" for j in range(4)]
        w = [f"buffer_load_dwordx4 v{6+j}, s[8:11], s32 offen offset:{j*1024}{NT(cfg, 'w')} lds" for j in range(4)]
        return f"s_add_u32 m0, s33, {stage*32768}", c, f"s_add_u32 m0, s34, {stage*32768}", w
    def dma_both(stage):
        mc, c, mw, w = dma_list(stage)
        k.e(mc); k.e(f"s_add_u32 s36, s31, {128*1024}"); k.e(c)
        k.e(mw); k.e("s_nop 0"); k.e(w)
        k.e(f"s_add_u32 m0, s33, {stage*32768+16384}"); k.e("s_nop 0"); k.e([x.replace("s31", "s36") for x in c])
        k.e(f"s_add_u32 m0, s34, {stage*32768+16384}"); k.e("s_nop 0"); k.e([x.replace("s[8:11]", "s[20:23]") for x in w])
        k.e("s_add_u32 s31, s31, s40")
        k.e("s_add_u32 s32, s32, s41")
    def setup_rest():
        k.e(f"s_add_u32 s54, s90, {int(cfg.get('wsoff', 0)) << 20}")
        k.e("s_addc_u32 s55, s91, 0")
        srd(k, 12, 54, 33554432, WS_KV)
        srd(k, 24, 54, 80 << 20)
        k.e(f"s_add_u32 s90, s54, {WS_CNT}")
        k.e("s_addc_u32 s91, s55, 0")
        k.e("v_and_b32 v16, 15, v1")
        k.e("v_lshrrev_b32 v17, 4, v1")
        k.e("s_bfe_u32 s36, s28, 0x10001")
        k.e("s_lshl_b32 s36, s36, 14")
        k.e("v_lshl_add_u32 v18, v16, 7, s36")
        k.e("v_lshrrev_b32 v19, 1, v16")
        k.e("v_xor_b32 v19, v19, v17")
        k.e("v_lshl_add_u32 v10, v19, 4, v18")
        k.e("v_xor_b32 v19, 4, v19")
        k.e("v_lshl_add_u32 v11, v19, 4, v18")
        k.e("v_lshrrev_b32 v16, 2, v16")
        k.e("v_lshl_add_u32 v18, v17, 3, v16")
        k.e("v_lshlrev_b32 v18, 8, v18")
        k.e("s_lshr_b32 s36, s28, 2")
        k.e("s_lshl_b32 s36, s36, 14")
        k.e("s_add_u32 s36, s36, 65536")
        k.e("v_add_u32 v18, s36, v18")
        k.e("v_and_b32 v19, 3, v1")
        k.e("v_lshl_add_u32 v18, v19, 3, v18")
        k.e("v_and_b32 v17, 1, v17")
        k.e("v_lshl_add_u32 v16, v17, 2, v16")
        k.e("s_and_b32 s36, s28, 1")
        k.e("s_lshl_b32 s36, s36, 2")
        for cb in range(4):
            k.e(f"s_add_u32 s37, s36, {cb}")
            k.e("v_xor_b32 v19, s37, v16")
            k.e(f"v_lshl_add_u32 v{12+cb}, v19, 5, v18")
        k.e(zero(ACC, 128))
        k.e("v_mov_b32 v118, 0")
        k.e("v_mov_b32 v117, 0")
        k.e(["s_lshl_b32 s36, s30, 7", "s_lshl_b32 s37, s28, 4", "s_add_u32 s36, s36, s37", "v_bfe_u32 v17, v1, 1, 4",
             "v_add_u32 v17, s36, v17", "v_lshlrev_b32 v17, 13, v17", "v_and_b32 v19, 1, v1", "v_lshl_add_u32 v17, v19, 7, v17",
             "s_lshl_b32 s36, s29, 8", "v_add_u32 v17, s36, v17", f"s_mov_b32 s45, {int(cfg.get('tl', 8))//2*8192}"])
    k.e("s_waitcnt lgkmcnt(0)")
    srd(k, 4, 46, 2097152)
    srd(k, 8, 48, 4194304)
    srd(k, 20, 50, 4194304)
    k.e("s_cmp_lt_u32 s28, 4")
    k.e("s_cbranch_scc0 L_pro_s")
    if not cfg.get("nob0"): k.e("s_barrier")
    emit(k, A.ool(k, ["s_cmp_eq_u32 s2, 0"], "s_cbranch_scc1",
                  ["s_mul_i32 s36, s28, 12288", f"s_add_u32 s36, s36, {WS_CNT + (int(cfg.get('wsoff', 0)) << 20)}", "v_lshl_add_u32 v16, v1, 4, s36",
                   "v_mov_b32 v108, 0", "v_mov_b32 v109, 0", "v_mov_b32 v110, 0", "v_mov_b32 v111, 0"] +
                  flat([[f"global_store_dwordx4 v16, v[108:111], s[90:91]{SC}", "v_add_u32 v16, 1024, v16"] for _ in range(12)])))
    dma_both(0)
    k.label("L_pro_s")
    st.mark()
    setup_rest()
    st.mark()
    k.e("s_cmp_lt_u32 s28, 4")
    k.e("s_cbranch_scc0 L_pro_b")
    dma_both(1)
    k.e("s_waitcnt vmcnt(16)")
    k.e("s_branch L_pro_j")
    k.label("L_pro_b")
    k.e("s_mov_b64 s[8:9], s[20:21]")
    k.e("s_mov_b32 s31, 256")
    k.e(f"s_mov_b32 s32, {2*64*8192}")
    k.e("s_and_b32 s60, s28, 3")
    if cfg.get("nodry"): k.e("s_waitcnt vmcnt(0)")
    k.e(f"s_mov_b32 s3, {0 if cfg.get('nodry') else 0xD0}")
    k.label("L_ln")
    for i in range(8):
        k.e(f"v_lshlrev_b32 v{WR+2*i}, 16, v{WP+i}")
        k.e(f"v_and_b32 v{WR+2*i+1}, 0xffff0000, v{WP+i}")
    k.e(zip2(ln_row(XA, 108, WR, 60, 92, 36, "s42", "s60"), ln_row(XB, 120, WR, 76, 100, 56, "s43", "s28")))
    k.e("s_waitcnt vmcnt(0) lgkmcnt(0)")
    k.e("s_cmp_eq_u32 s3, 0")
    k.e("s_mov_b32 s3, 0")
    k.e("s_cbranch_scc0 L_ln")
    k.label("L_pro_j")
    st.mark()
    def reads(s_, stage, fs):
        b = FR[fs]
        c = [f"ds_read_b128 {v(b+4*i,4)}, v{10+s_} offset:{stage*32768+i*2048}" for i in range(8)]
        w = [[f"ds_read_b64_tr_b16 {v(b+32+4*cb+2*t,2)}, v{12+cb} offset:{stage*32768+(32*s_+4*t)*256}" for t in range(2)] for cb in range(4)]
        return [c[0]] + w[0] + w[1] + w[2] + w[3] + c[1:]
    def accreg(i, cb, vtype):
        return ACC + ((cb*8+i) if vtype else (i*4+cb))*4
    def mfmas(fs, vtype):
        b = FR[fs]; L = []
        for i in range(8):
            for cb in range(4):
                a = accreg(i, cb, vtype)
                cf, wf = v(b+4*i, 4), v(b+32+4*cb, 4)
                Aop, Bop = (cf, wf) if vtype else (wf, cf)
                L.append(f"{MF} {v(a,4)}, {Aop}, {Bop}, {v(a,4)}")
        return L
    k.e("s_barrier")
    k.e(reads(0, 0, 0))
    emit(k, A.ool(k, ["s_add_u32 s36, s2, s28", "s_cmp_eq_u32 s36, 0"], "s_cbranch_scc1",
                  ["v_mov_b32 v19, 1", "s_mov_b64 exec, 1", "global_store_dword v118, v19, s[88:89] sc1", "s_mov_b64 exec, -1"]))
    st.mark()
    k.e("s_mov_b32 s35, 0")
    k.e("s_cmp_eq_u32 s28, 0")
    k.e("s_cselect_b32 s43, 9, 0")
    k.e("s_cselect_b32 s44, 2, 1")
    k.e("s_cmp_lt_u32 s28, 4")
    k.e("s_cbranch_scc0 L_kv_vloop")
    for vtype in range(2):
        lp = "L_kv_vloop" if vtype else "L_kv_kloop"
        k.align(6)
        k.label(lp)
        for stage in range(2):
            for s_ in range(2):
                fills = [[] for _ in range(32)]
                pre = []
                if s_ == 0:
                    k.e("s_waitcnt lgkmcnt(0)")
                    rd = reads(1, stage, 1)
                    if stage == 1 and vtype == 0:
                        fills[20] += A.ool(k, ["s_bitcmp1_b32 s43, s35"], "s_cbranch_scc1", switch(k, "s35", [
                            (0, ["global_load_dword v116, v118, s[88:89] sc1"]),
                            (3, ["v_and_b32 v117, 15, v1", f"v_add_u32 v117, {CNT_LN}, v117", "v_lshlrev_b32 v117, 7, v117",
                                 "global_load_dword v116, v117, s[90:91] sc1"])]))
                else:
                    nt = 0 if cfg.get("notouch") else 1
                    if vtype == 0 and stage == 0:
                        emit(k, A.ool(k, ["s_cmp_eq_u32 s35, 3"], "s_cbranch_scc1", p1_retarget(cfg)))
                    la, lb = k.newlabel("w0"), k.newlabel("w0b")
                    if stage == 1 and vtype == 0:
                        A.OOL.append([la + ":", "s_waitcnt vmcnt(0)"] + switch(k, "s35", [(0, check(k, "s[88:89]", "v118", "v116", 1)), (3, ln_check(k))]) + [f"s_branch {lb}"])
                        emit(k, ["s_bitcmp1_b32 s43, s35", f"s_cbranch_scc1 {la}", f"s_waitcnt vmcnt({nt})", lb + ":", "s_waitcnt lgkmcnt(0)"])
                    elif stage == 1:
                        k.e(f"s_waitcnt vmcnt({nt}) lgkmcnt(0)")
                    else:
                        A.OOL.append([la + ":"] + switch(k, "s35", [(0, (lines(ln_part2, 120) if vtype == 0 else []) + ["s_waitcnt vmcnt(2)"]), (1, [f"s_waitcnt vmcnt({nt+1})"])]) + [f"s_branch {lb}"])
                        emit(k, ["s_cmp_lt_u32 s35, s44", f"s_cbranch_scc1 {la}", f"s_waitcnt vmcnt({nt})", lb + ":", "s_waitcnt lgkmcnt(0)"])
                    if nt:
                        tp = int(cfg.get("tpos", 31))
                        nl = int(cfg.get("tl", 8)); t0 = int(cfg.get("t0", 0))
                        on = [t for t in range(t0, t0 + -(-32 // nl)) if t % 2 == stage]
                        tl = [f"s_bitcmp1_b32 {sum(1 << (t // 2) for t in on)}, s35", f"s_cselect_b32 exec_lo, {(1 << nl) - 1 if nl < 32 else -1}, 1", "s_mov_b32 exec_hi, 0",
                              f"global_load_dword v0, v17, s[96:97]", "s_mov_b64 exec, -1", "s_cselect_b32 s36, s45, 0",
                              "v_add_u32 v17, s36, v17", f"v_min_u32 v17, {8388608-128}, v17"]
                        fills[tp] += tl + ["s_nop 1"]
                    if stage == 1: k.e("s_cmp_eq_u32 s35, 3")
                    k.e("s_barrier")
                    if stage == 1: k.e(f"s_cbranch_scc1 L_p1_fin{vtype}")
                    rd = reads(0, stage ^ 1, 0)
                    if stage == 1 and vtype == 0:
                        fills[30] += A.ool(k, ["s_add_u32 s36, s35, s28", "s_cmp_eq_u32 s36, 0"], "s_cbranch_scc1",
                                          ["s_lshr_b32 s36, s2, 4", f"s_add_u32 s36, s36, {CNT_LN}", "s_lshl_b32 s36, s36, 7"] + signal("s[90:91]", "s36", "v16", "v19"))
                for g in range(16): fills[g].append(rd[g])
                if s_ == 1:
                    mc, c, mw, w = dma_list(stage)
                    tail = ["s_add_u32 s31, s31, s40", "s_add_u32 s32, s32, s41"]
                    if vtype == 1:
                        pre = [mc, "s_nop 0"] + c + [mw, "s_nop 0"] + w + tail
                        if cfg.get("p1w"): pre = [mw, "s_nop 0"] + w + [mc, "s_nop 0"] + c + tail
                        if stage == 1:
                            pre += A.ool(k, ["s_cmp_eq_u32 s35, 2"], "s_cbranch_scc1", p1_retarget(cfg))
                        else:
                            l7 = k.newlabel("l7")
                            pre += A.ool(k, ["s_cmp_eq_u32 s35, 0"], "s_cbranch_scc1", lines(ln_part2, 120) +
                                         ["s_cmp_eq_u32 s28, 7", f"s_cbranch_scc0 {l7}"] + ln_part3(120) + [l7 + ":"])
                    else:
                        fills[0].append(mc)
                        ds_ = int(cfg.get("p1s", 3))
                        if cfg.get("p1w"): mc, mw, c, w = mw, mc, w, c; fills[0][-1] = mc
                        for j in range(4): fills[1+ds_*j].append(c[j])
                        fills[4*ds_].append(mw)
                        for j in range(4): fills[1+ds_*(4+j)].append(w[j])
                        fills[31] += tail
                ladder(fills, 0, 32, "1" in cfg.get("lad", ""), (3, 2) if s_ == 1 else (1, 0))
                emit(k, pre)
                emit(k, weave(mfmas(s_, vtype), fills, None, int(cfg.get('g1_', 1))))
                if s_ == 1: k.e(cfg["sth1"].hist(8, first=(vtype == 0 and stage == 0)))
        k.e("s_add_u32 s35, s35, 1")
        k.e(f"s_branch {lp}")
        k.label(f"L_p1_fin{vtype}")
        mc, c, mw, w = dma_list(1)
        head = lines(p2_setup) + lines(srd, 8, 54, 4194304)
        lds = flat([xld2(0, s_) for s_ in range(4)])
        W1[:] = [[mc, "s_add_u32 s32, s32, 4096"]] + [[x] for x in c] + [[mw, f"s_mov_b32 s31, {3*128*8192}"]] + [[x] for x in c] + \
                [["s_add_u32 s31, s31, s40", "s_mov_b32 s34, s33"]]
        rest = lines(p2_setup2)
        fills = [[] for _ in range(32)]
        if vtype == 1: emit(k, head)
        else: fills[0] += head
        fs = int(cfg.get("fs", 4))
        for i, x in enumerate(lds): fills[1+fs*i] += [x]
        for i, x in enumerate(rest): fills[min(2+i, 31)] += [x]
        emit(k, weave(mfmas(1, vtype), fills))
        k.e(cfg["sth1"].hist(8, first=False))
        if vtype == 0: k.e("s_branch L_p1_done")
    k.label("L_p1_done")
    if cfg.get("diag") == "mfma":
        k.e("s_mov_b32 s35, 64")
        k.label("L_diag")
        for i in range(16): k.e(f"{MF} v[{56+4*(i&1)}:{59+4*(i&1)}], {v(68+4*(i%8),4)}, {v(100+4*(i//4),4)}, v[{56+4*(i&1)}:{59+4*(i&1)}]")
        k.e(["s_sub_u32 s35, s35, 1", "s_cmp_lg_u32 s35, 0", "s_cbranch_scc1 L_diag", "s_nop 7"])
    if cfg.get("diag") == "idle":
        k.e(f"s_mov_b32 s35, {cfg.get('idn', 256)}")
        k.label("L_diag")
        k.e(["s_nop 15"]*2 + ["s_sub_u32 s35, s35, 1", "s_cmp_lg_u32 s35, 0", "s_cbranch_scc1 L_diag"])

def kv_pack(k):
    for q in range(16):
        a = 128 + 8*q
        for e in range(4):
            k.e(f"v_cvt_pk_bf16_f32 v{KP+4*q+e}, v{a+2*e}, v{a+2*e+1}")
    k.e("s_lshl_b32 s38, s29, 20")
    k.e("s_lshl_b32 s37, s30, 17")
    k.e("s_add_u32 s38, s38, s37")
    k.e("s_bfe_u32 s37, s28, 0x10001")
    k.e("s_lshl_b32 s37, s37, 16")
    k.e("s_add_u32 s38, s38, s37")
    k.e("s_lshr_b32 s36, s28, 2")
    k.e("s_lshl_b32 s37, s36, 15")
    k.e("s_add_u32 s38, s38, s37")
    k.e("s_and_b32 s37, s28, 1")
    k.e("s_add_u32 s36, s36, 11")
    k.e("s_lshl_b32 s37, s37, s36")
    k.e("s_add_u32 s38, s38, s37")
    k.e("s_cmp_lt_u32 s28, 4")
    k.e("s_cselect_b32 s36, 4, 32")
    k.e("s_cselect_b32 s37, 16, 64")
    k.e("s_cselect_b32 s39, 32, 4")
    k.e("s_lshl_b32 s36, s36, 8")
    k.e("s_lshl_b32 s37, s37, 8")
    k.e("s_lshl_b32 s39, s39, 8")
    k.e("s_mov_b64 s[16:17], s[12:13]")
    k.e("s_mov_b64 s[18:19], s[14:15]")
    k.e("s_cmp_eq_u32 s30, 0")
    k.e("s_cselect_b32 s52, 2, 4")
    k.e("v_lshlrev_b32 v58, 4, v1")
    k.e("v_add_u32 v59, s36, v58")
    k.e("v_add_u32 v60, s37, v58")
    k.e("v_add_u32 v61, s36, v60")

def p2_setup(k):
    k.e("s_and_b32 s36, s28, 3")
    k.e("s_sub_u32 s37, 15, s30")
    k.e("s_cmp_lt_u32 s28, 4")
    k.e("s_cselect_b32 s37, s37, s30")
    k.e("s_lshl_b32 s37, s37, 2")
    k.e("s_add_u32 s37, s37, s36")
    k.e("s_lshl_b32 s37, s37, 16")
    k.e("v_lshl_add_u32 v6, v1, 4, s37")
    k.e("v_add_u32 v7, 32768, v6")
    k.e("s_mov_b32 s32, 0")

def p2_setup2(k):
    k.e("v_lshrrev_b32 v18, 4, v1")
    k.e("v_bfe_u32 v20, v1, 2, 2")
    k.e("v_lshl_add_u32 v19, v18, 3, v20")
    k.e("v_lshlrev_b32 v19, 8, v19")
    k.e("v_and_b32 v21, 3, v1")
    k.e("v_lshl_add_u32 v19, v21, 3, v19")
    k.e("v_and_b32 v21, 1, v18")
    k.e("v_lshl_add_u32 v20, v21, 2, v20")
    for db in range(8):
        k.e(f"v_xor_b32 v21, {db}, v20")
        k.e(f"v_lshl_add_u32 v{10+db}, v21, 5, v19")
    k.e("s_lshl_b32 s45, s29, 20")

def WOp(text, stage):
    ops = [VM(text, ("W", 2*it + stage + 4)) for it in range(4)]
    return Alt([ops[0]], lambda c: [ops[c["it"]]])
class NeedW(Alt):
    def __init__(self, stage):
        self.nd = Need("vm", [])
        def pick(c):
            return [SetTags(self.nd, [("W", 2*c["it"] + stage + 1)] if 2*c["it"] + stage + 1 < 8 else []), self.nd]
        Alt.__init__(self, [self.nd], pick)

def p2_pieces(k, cfg, evA, evB):
    def wdma(stage):
        return [f"s_add_u32 m0, s34, {stage*32768}"], [WOp(f"buffer_load_dwordx4 v{2+j}, s[4:7], s31 offen offset:{j*1024}{SC}{NT(cfg, 'q')} lds", stage) for j in range(4)]
    xld = xld2
    def wrd(stage, s_, db):
        return [DS(f"ds_read_b64_tr_b16 {v(WF+4*db+2*t,2)}, v{10+db} offset:{stage*32768+(32*s_+4*t)*256}", ("w", db)) for t in range(2)]
    def store(q, so="s38"):
        return VM(f"buffer_store_dwordx4 {v(KP+4*q,4)}, v{58+(q&3)}, s[16:19], {so} offen{'' if cfg.get('xkv') else SC}", "kvst")
    early = ["s_lshl_b32 s36, s39, 1", "s_add_u32 s36, s36, s38", "s_add_u32 s37, s36, s39"] + [store(q, f"s{34+q//4}") for q in range(8, 16)]
    prox = [xld(1, s_) for s_ in range(3)]
    D = 6
    pro2 = [wrd(0, 0, db) for db in range(D)]
    halves = []
    nkv = Need("vm", ["kvst1"])
    kvw = [Alt(A.ool(k, ["s_cmp_eq_u32 s35, s52"], "s_cbranch_scc1", [nkv]), lambda c: [nkv] if c["fast"] and c["it"] == 2 else []), []]
    for stage in range(2):
        M, fills, pre = [], [[] for _ in range(64)], {}
        for s_ in range(4):
            for db in range(8):
                for rb in range(2):
                    o = A.Oreg(rb, db)
                    M.append(f"{MF} {v(o,4)}, {v(WF+4*db,4)}, {v(XF[stage]+(s_*2+rb)*4,4)}, {v(o,4)}")
        for p in range(32):
            if p % 2 == 0: pre[2*p] = [Need("ds", [("w", p % 8), ("w", (p+1) % 8)])]
            if p % 8 == 0: pre[2*p] += [Need("vm", [("x", stage, p // 8)])]
            f = p + D
            if f < 32:
                r = wrd(stage, f // 8, f % 8)
                fills[2*p] += [r[0]]; fills[2*p+1] += [r[1]]
                if stage == 1 and f >= 24: fills[2*p+1] += [f"v_xor_b32 v{10+f%8}, 65536, v{10+f%8}"]
        pre[0] = [evB[stage]] + pre[0]
        fills[2*27+1] += [evA[stage], "s_waitcnt lgkmcnt(0)", NeedW(stage), kvw[stage], "s_barrier"]
        nx = {28: [0, 1], 29: [2, 3], 30: [4], 31: [5]}
        for p, fl in nx.items():
            for i, f in enumerate(fl):
                fills[2*p+i] += wrd(stage ^ 1, 0, f)
        for s_ in range(4):
            xl = xld(stage ^ 1, 3) if s_ == 0 else xld(stage, s_-1)
            fills[16*s_+2] += [xl[0]]; fills[16*s_+6] += [xl[1]]
            if s_ == 0:
                fills[7] += ["s_add_u32 s32, s32, 4096"]
                if stage == 0:
                    fills[8] += ["s_cmp_lt_u32 s35, 3", "s_cselect_b32 s10, 4194304, 0"]
        if not cfg.get("nokvst"):
            spos = [int(x) for x in cfg.get("spos", "10,30").split(",")]
            for i in range(2):
                q = 2*stage + i
                s0, s1 = store(q), store(q); s1.tag = "kvst1"
                fills[spos[i]] += [Alt([s0], lambda c, s0=s0, s1=s1: [s1 if c["it"] == 1 else s0])]
                for g in range(3):
                    for h in range(2):
                        r = KP + 16*g + 4*q + 2*h
                        if cfg.get("sh32"):
                            fills[spos[i]+2+2*(2*g+h)] += [f"v_mov_b32 v{r}, v{r+16}"]
                            fills[spos[i]+3+2*(2*g+h)] += [f"v_mov_b32 v{r+1}, v{r+17}"]
                        elif not cfg.get("nosh"): fills[spos[i]+2+2*(2*g+h)] += [f"v_mov_b64 v[{r}:{r+1}], v[{r+16}:{r+17}]"]
            if stage == 1: fills[spos[1]+1] += ["s_add_u32 s38, s38, s39"]
            if stage == 0: fills[9] += ["s_cmp_lt_u32 s35, s52", "s_cselect_b32 s18, s18, 0"]
        m, d = wdma(stage)
        fills[2*29+1] += m
        fills[60] += [d[0]]; fills[61] += [d[1]]; fills[62] += [d[2]]; fills[63] += [d[3], "s_add_u32 s31, s31, s40"]
        if stage == 1: fills[63] += ["s_xor_b32 s34, s34, 65536"]
        ladder(fills, 56, 64, "2" in cfg.get("lad", ""))
        halves.append(weave(M, fills, pre, int(cfg.get('g2', 1))))
    return prox, pro2, halves, early

def p2_events(k, cfg):
    W0 = (["s_cmp_eq_u32 s28, 0"], "s_cbranch_scc0")
    def E3():
        return ["s_mov_b64 s[4:5], s[12:13]", "s_mov_b32 s6, s14", "s_mov_b32 s31, s45", "s_mov_b32 s40, 32768", "s_mov_b32 s34, s33",
                "v_add_u32 v2, s33, v58", "v_mov_b32 v3, v2", "v_mov_b32 v4, v2", "v_mov_b32 v5, v2"]
    off0 = [f"s_add_u32 s36, s29, {CNT_KV0}", "s_lshl_b32 s36, s36, 7"]
    sig0 = guard(k, ["s_add_u32 s36, s28, s30", "s_cmp_eq_u32 s36, 4"], "s_cbranch_scc0", off0 + signal("s[90:91]", "s36", "v62", "v63"), "sg")
    pol0 = guard(k, *W0, off0 + [f"v_mov_b32 {vZ}, s36", VM(f"global_load_dword {vPOLL}, {vZ}, s[90:91] sc1", "poll")], "w0")
    chk0 = guard(k, *W0, [Need("vm", ["poll"])] + check(k, "s[90:91]", vZ, vPOLL, 1), "w0")
    off = ["s_mov_b32 s6, 0", "s_mov_b32 s34, 0x30000"]
    evs = {"A": {(2, 0): off, (3, 0): E3() + [chk0]},
           "B": {(2, 0): off, (2, 1): [sig0], (3, 0): E3()}}
    if "2" in cfg.get("cpf", ""):
        evs["B"][(2, 0)] = off + [guard(k, ["s_cmp_eq_u32 s28, 5"], "s_cbranch_scc0", ["s_mov_b32 s60, s38"] + code_touch(k, 20, "v22") + ["s_mov_b32 s38, s60"], "w0")]
    top = {(3, 0): [pol0], (3, 1): ["s_add_u32 s34, s33, 32768"]}
    out = {}
    for g, cmp_ in (("A", "s_cmp_lt_u32 s28, 4"), ("B", "s_cmp_ge_u32 s28, 4")):
        out[g] = []
        for stage in range(2):
            if g == "A" and stage == 1:
                out[g].append([]); continue
            cs = [(it, evs[g].get((it, stage), [])) for it in (2, 3)]
            inner = []
            if g == "B":
                l = k.newlabel("nv0")
                inner += ["s_cmp_eq_u32 s35, 3", f"s_cbranch_scc0 {l}"] + top[(3, stage)] + [l + ":"]
            l = k.newlabel("ng")
            inner += [cmp_, f"s_cbranch_scc0 {l}"] + switch(k, "s35", cs) + [l + ":"]
            def pick(c, g=g, stage=stage):
                r = []
                if g == "B" and c["it"] == 3 and (c["grp"] == "A" or stage == 1): r += top[(3, stage)]
                if c["grp"] == g: r += evs[g].get((c["it"], stage), [])
                return r
            out[g].append(Alt(A.ool(k, ["s_cmp_ge_u32 s35, 2"], "s_cbranch_scc1", inner), pick))
    return out["A"], out["B"]

def p2(k, cfg, st):
    evA, evB = p2_events(k, cfg)
    prox, pro2, halves, early = p2_pieces(k, cfg, evA, evB)
    earlyA = Alt(A.ool(k, ["s_cmp_eq_u32 s30, 0"], "s_cbranch_scc1", early), lambda c: early if c["fast"] else [])
    body = [halves[0], cfg["sth2"].hist(8), halves[1], cfg["sth2"].hist(8, first=False)]
    nq = Need("vm", [("W", 10), "v0", "kvst", "xsel"] + [("x", a, b) for a in range(2) for b in range(4)])
    n0 = Need("vm", [("x", 0, 3)])
    scen = []
    for grp, w0 in (("A", 0), ("A", 1), ("B", 0), ("B", 1)):
        for ffn in (0,):
            for fast in (0, 1):
                sq = flat([xld2(0, s_) for s_ in range(4)]) + [VM("", ("W", 1))]*4 + [VM("", ("W", 3))]*4 + flat([pro2, prox, n0, earlyA], dict(fast=fast))
                for it in range(4): sq += flat(body, dict(it=it, w0=w0, ffn=ffn, fast=fast, grp=grp, sg=fast and w0))
                scen.append(sq + [nq])
    resolve(scen)
    cfg["qwait"] = nq.n
    st.mark()
    k.e("s_waitcnt vmcnt(8)")
    emit(k, pro2)
    work = lines(kv_pack) + zero(A.O_, 64)
    ops = W1 + [[x] for x in flat(prox)]
    step = 64 // len(ops) + 1
    for i, x in enumerate(work):
        if i % step == 0 and i // step < len(ops) and i < 64: emit(k, ops[i // step])
        k.e(x)
    for g in ops[-(-64 // step):]: emit(k, g)
    k.e("s_mov_b32 s35, 0")
    emit(k, [n0, earlyA])
    st.mark()
    k.align(6)
    k.label("L_p2_loop")
    emit(k, body)
    k.e("s_add_u32 s35, s35, 1")
    k.e("s_cmp_lt_u32 s35, 4")
    k.e("s_cbranch_scc1 L_p2_loop")
    st.mark()
```

```python
from common import *
import attn as A
import ffn as F
import oproj as O
from fused_a import *

X32, G = 96, 112
XI, YA = 40, 24
WR4, XF4 = 64, [128, 160]
PRE, FW, HH, DD = 96, 112, 36, 96
LDS_P4 = 65536

CFG = {}
def PX(): return 4
def after_q(k, grp):
    srd(k, 16, 54, 16777216, WS_CTX)
    if grp == 0:
        srd(k, 4, 92, 7340032)
        srd(k, 8, 94, 7340032)
        k.e("s_and_b32 s60, s29, 3")
        k.e(f"s_add_u32 s60, s60, {CFG.get('e0', 4)}")
        k.e("s_sub_u32 s3, s2, 32")
        k.e("s_cmp_eq_u32 s28, 0")
        k.e("s_cselect_b32 s36, 0xad, 0x2d")
        k.e("s_cselect_b32 s42, 14, 12")
        k.e("s_cmp_lt_u32 s3, 224")
        k.e("s_cselect_b32 s36, s36, 0")
        k.e("s_lshl_b32 s36, s36, s60")
        k.e("s_or_b32 s42, s42, s36")
    else:
        emit(k, A.ool(k, ["s_cmp_eq_u32 s28, 4"], "s_cbranch_scc1", ["s_lshl_b32 s36, s29, 7", "s_cmp_eq_u32 s30, 0", "s_cselect_b32 s37, 4, 0", "s_add_u32 s36, s36, s37"] + signal("s[90:91]", "s36", "v20", "v21")))
        nl = int(CFG.get("btl", 32))
        j0 = int(CFG.get("btj", 4)); ev = int(CFG.get("bte", 0))
        nw = (8 - j0) * (32 >> ev) * 2
        ch = -(-8388608 // nw // 128) * 128
        k.e(f"s_sub_u32 s36, s2, {32*j0}")
        if ev:
            k.e("s_and_b32 s37, s2, 1")
            k.e("s_lshl_b32 s37, s37, 20")
            k.e("s_or_b32 s36, s36, s37")
        else: k.e("s_lshl_b32 s36, s36, 1")
        k.e("s_and_b32 s37, s28, 1")
        k.e("s_add_u32 s36, s36, s37")
        k.e("s_min_u32 s36, s36, 1024")
        k.e(f"s_mul_i32 s36, s36, {ch}")
        k.e("s_cmp_lt_u32 s28, 6")
        k.e("s_cselect_b64 s[4:5], s[32:33], s[34:35]")
        k.e("s_cselect_b32 s37, 32, 28")
        k.e("s_lshl_b32 s37, s37, 18")
        k.e("s_min_u32 s36, s36, s37")
        k.e("s_sub_u32 s6, s37, s36")
        k.e(f"s_min_u32 s6, s6, {0 if CFG.get('nobt') else ch}")
        k.e("s_add_u32 s4, s4, s36")
        k.e("s_addc_u32 s5, s5, 0")
        k.e("s_and_b32 s5, s5, 0xffff")
        k.e("s_mov_b32 s7, 0x20000")
        k.e(f"v_cmp_gt_u32 vcc, {nl}, v1")
        k.e("v_lshlrev_b32 v13, 7, v1")
        k.e("v_mov_b32 v12, 0x100000")
        k.e("v_cndmask_b32 v13, v12, v13, vcc")
        k.e("s_mov_b32 s48, 0")
        if "3" in CFG.get("cpf", ""):
            k.e("s_cmp_eq_u32 s28, 5")
            k.e("s_cselect_b32 s36, 0x1000, 0")
            k.e("s_or_b32 s42, s42, s36")

def pro_wait(k, grp):
    if grp == 0: return ["s_waitcnt vmcnt(0)"]
    l = k.newlabel("pw")
    return ["s_waitcnt vmcnt(1)", "s_cmp_eq_u32 s28, 4", f"s_cbranch_scc1 {l}", "s_waitcnt vmcnt(0)", l + ":"]

def pro_hook(k, grp):
    if grp == 0:
        return A.ool(k, ["s_cmp_eq_u32 s28, 0"], "s_cbranch_scc1",
                     ["s_lshl_b32 s36, s29, 7", "v_mov_b32 v13, s36", "global_load_dword v14, v13, s[90:91] sc1"])
    return []

def b_hook(k):
    l = k.newlabel("bh")
    return ["s_cmp_eq_u32 s40, 12", f"s_cbranch_scc0 {l}"] + code_touch(k, 26, "v0") + [l + ":"]

def f1dma(m):
    L = ["s_and_b32 s20, s3, 3", "s_lshl_b32 s20, s20, 8", "s_lshl_b32 s21, s28, 5", "s_add_u32 s20, s20, s21",
         "s_lshr_b32 s21, s3, 2", "s_lshl_b32 s21, s21, 7"] + lines(F.wdma_addr, 24, "s20", 7168, "s21")
    L += ["s_lshl_b32 s36, s28, 13", f"s_add_u32 m0, s36, {LDS_X}", f"s_mov_b32 s37, {32*7168}"]
    L += [f"buffer_load_dwordx4 v{24+j}, s[{4+4*m}:{7+4*m}], 0 offen offset:{j*1024}{NT(CFG, 'f')} lds" for j in range(4)]
    L += [f"s_add_u32 m0, s36, {LDS_X+4096}", "s_nop 0"]
    L += [f"buffer_load_dwordx4 v{24+j}, s[{4+4*m}:{7+4*m}], s37 offen offset:{j*1024}{NT(CFG, 'f')} lds" for j in range(4)]
    return L

def bar_hook(k, grp):
    if grp == 1: return []
    QS = A.QS_
    keys = [f"s_mov_b32 s36, {F.WS_KEY}"] + [f"buffer_load_dwordx4 {v(QS+4*i,4)}, {A.vL16}, s[24:27], s36 offen offset:{i*1024}{SC}" for i in range(2)]
    t2 = K("t"); F.top2(t2, QS, 24, 8, 20)
    top = [x.strip() for x in t2.lines]
    top += ["v_and_b32 v24, 1, v1", "v_mov_b32 v25, s56", "v_mov_b32 v26, s57", "v_cmp_eq_u32 vcc, 1, v24", "s_nop 1",
            "v_cndmask_b32 v25, v25, v26, vcc", "v_lshrrev_b32 v26, 4, v25", "v_lshlrev_b32 v26, 15, v26", "v_and_b32 v25, 15, v25",
            "v_lshl_add_u32 v26, v25, 4, v26", "v_lshrrev_b32 v27, 4, v1", "v_lshl_add_u32 v26, v27, 8, v26",
            "s_and_b32 s36, s3, 3", "s_lshl_b32 s36, s36, 13", "s_add_u32 s37, s36, 4096",
            "s_mov_b32 exec_lo, 0x00030003", "s_mov_b32 exec_hi, 0x00030003"]
    top += [f"buffer_load_dwordx4 {v(QS+4*i,4)}, v26, s[24:27], s{36+i//4} offen offset:{(i%4)*1024}{SC}" for i in range(8)]
    top += ["s_mov_b64 exec, -1"]
    dma = f1dma
    def mm(m):
        FRG = [14, 20, 24]
        L = lines(F.wrd_addr, "v5", "v9", "v8")
        L += ["v_xor_b32 v9, s28, v9", "v_lshl_add_u32 v5, v9, 5, v5", f"v_add_u32 v5, {LDS_X}, v5"]
        rd = lambda ss: [f"ds_read_b64_tr_b16 {v(FRG[s_%3]+2*t,2)}, v5 offset:{(32*s_+4*t)*128}" for s_ in ss for t in range(2)]
        L += rd(range(3))
        L += ["s_and_b32 s36, s3, 3", "s_lshl_b32 s36, s36, 6", "s_lshr_b32 s37, s3, 2", "s_lshl_b32 s37, s37, 12", "s_add_u32 s36, s36, s37",
              "s_lshl_b32 s37, s28, 10", "s_add_u32 s36, s36, s37", f"s_add_u32 s36, s36, {WS_PRE + 32*m}",
              "v_and_b32 v9, 1, v1", "v_lshlrev_b32 v9, 4, v9", "v_lshl_add_u32 v9, v8, 8, v9"]
        for s_ in range(8):
            L += [f"s_waitcnt lgkmcnt({2*min(2, 7-s_)})", f"{MF} v[10:13], {v(FRG[s_%3],4)}, {v(QS+4*s_,4)}, {'v[10:13]' if s_ else '0'}"]
            if s_ + 3 < 8: L += rd([s_+3])
        L += ["s_nop 5", "s_mov_b32 exec_lo, 0x00030003", "s_mov_b32 exec_hi, 0x00030003",
              f"buffer_store_dwordx4 v[10:13], v9, s[24:27], s36 offen{SC}", "s_mov_b64 exec, -1", "s_nop 1"]
        return L
    sig = ["s_mul_i32 s36, s3, 2341", "s_lshr_b32 s36, s36, 16", f"s_add_u32 s36, s36, {CNT_F1}", "s_lshl_b32 s36, s36, 7"] + signal("s[90:91]", "s36", "v20", "v21")
    dbg = CFG.get("f1", "")
    if "d" in dbg: dma = lambda m: []
    if "m" in dbg: mm = lambda m: []
    if "t" in dbg: keys = []; top = ["s_mov_b32 s56, 0", "s_mov_b32 s57, 0"]
    ffn = ["s_sub_u32 s38, s40, s60"] + switch(k, "s38", [(0, dma(0)), (2, mm(0)), (3, dma(1)), (5, mm(1)), (7, sig)])
    return A.ool(k, ["s_bitcmp1_b32 s42, s40"], "s_cbranch_scc1",
                 switch(k, "s40", [(1, check(k, "s[90:91]", "v13", "v14", 7)), (2, keys), (3, top), (4, ffn)]))

def before_tail(k, grp):
    k.e("s_lshr_b32 s36, s2, 5")
    k.e(f"s_add_u32 s36, s36, {CNT_F1}")
    k.e("s_lshl_b32 s36, s36, 7")
    k.e("v_mov_b32 v12, s36")
    k.e("global_load_dword v11, v12, s[90:91] sc1")

def tail_extra(k, grp):
    L = lines(srd, 4, 34, 7340032) + lines(srd, 8, 32, 8388608)
    L += ["s_lshr_b32 s38, s2, 4", "s_mul_i32 s38, s38, 224", "s_and_b32 s39, s2, 15", "s_lshl_b32 s39, s39, 7"]
    L += lines(F.wdma_addr, 24, "s38", 2048, "s39")
    L += ["s_lshl_b32 s36, s28, 12", f"s_add_u32 s36, s36, {LDS_X}"]
    G = [[x] for x in L] + [["s_cmp_lt_u32 s28, 7", "s_cselect_b32 m0, s36, 0x30000", "s_cselect_b32 s6, 7340032, 0"]]
    return G + [[f"buffer_load_dwordx4 v{24+j}, s[4:7], 0 offen offset:{j*1024} lds"] for j in range(4)]

def before_merge(k):
    k.e("s_waitcnt vmcnt(4)")
    emit(k, check(k, "s[90:91]", "v12", "v11", 28))
    k.e(["s_lshr_b32 s36, s2, 4", "s_mul_i32 s36, s36, 7", "s_min_u32 s37, s28, 6", "s_add_u32 s36, s36, s37",
         "s_lshl_b32 s36, s36, 11", f"s_add_u32 s36, s36, {WS_PRE}", "v_and_b32 v11, 15, v1", "v_lshlrev_b32 v11, 4, v11",
         "v_lshrrev_b32 v12, 4, v1", "v_lshl_add_u32 v11, v12, 9, v11"])
    k.e([f"buffer_load_dwordx4 {v(PRE+4*h,4)}, v11, s[24:27], s36 offen offset:{256*h}{SC}" for h in range(2)])

def gcalc(k, withy, cbs=range(4)):
    for cb in cbs:
        for h in range(2):
            a, b = X32+4*cb+2*h, X32+4*cb+2*h+1
            ga, gb = G+4*cb+2*h, G+4*cb+2*h+1
            k.e(f"v_lshlrev_b32 v{a}, 16, v{XI+2*cb+h}")
            k.e(f"v_and_b32 v{b}, 0xffff0000, v{XI+2*cb+h}")
            k.e(f"v_sub_f32 v{ga}, v{a}, v{XI+8}")
            k.e(f"v_sub_f32 v{gb}, v{b}, v{XI+8}")
            def rnd2():
                k.e(f"v_cvt_pk_bf16_f32 v10, v{ga}, v{gb}")
                k.e(f"v_lshlrev_b32 v{ga}, 16, v10")
                k.e(f"v_and_b32 v{gb}, 0xffff0000, v10")
            rnd2()
            k.e(f"v_mul_f32 v{ga}, v{ga}, v{XI+9}")
            k.e(f"v_mul_f32 v{gb}, v{gb}, v{XI+9}")
            rnd2()
            if withy:
                k.e(f"v_add_f32 v{ga}, v{ga}, v{YA+4*cb+2*h}")
                k.e(f"v_add_f32 v{gb}, v{gb}, v{YA+4*cb+2*h+1}")
                rnd2()
            k.e(f"v_mul_f32 v11, 0xbfb8aa3b, v{ga}")
            k.e(f"v_mul_f32 v12, 0xbfb8aa3b, v{gb}")
            k.e("v_exp_f32 v11, v11")
            k.e("v_exp_f32 v12, v12")
            k.e("s_nop 0")
            k.e("v_add_f32 v11, 1.0, v11")
            k.e("v_add_f32 v12, 1.0, v12")
            k.e("v_rcp_f32 v11, v11")
            k.e("v_rcp_f32 v12, v12")
            k.e("s_nop 0")
            k.e(f"v_mul_f32 v{ga}, v{ga}, v11")
            k.e(f"v_mul_f32 v{gb}, v{gb}, v12")
            rnd2()

def ffn2_math(k):
    F.wrd_addr(k, "v26", "v27", "v28")
    k.e("s_lshl_b32 s36, s28, 12")
    k.e(f"s_add_u32 s36, s36, {LDS_X}")
    k.e("v_add_u32 v26, s36, v26")
    for cb in range(4):
        k.e(f"v_xor_b32 v28, {cb}, v27")
        k.e("v_lshl_add_u32 v28, v28, 5, v26")
        for t in range(2):
            k.e(f"ds_read_b64_tr_b16 {v(FW+4*cb+2*t,2)}, v28 offset:{4*t*128}")
    for m in ("row_ror:4", "row_ror:8"):
        for e in range(8): k.e(f"v_add_f32_dpp v{PRE+e}, v{PRE+e}, v{PRE+e} {m} row_mask:0xf bank_mask:0xf")
    for e in range(0, 8, 2):
        k.e(f"v_cvt_pk_bf16_f32 v29, v{PRE+e}, v{PRE+e+1}")
        k.e(f"v_lshlrev_b32 v{PRE+e}, 16, v29")
        k.e(f"v_and_b32 v{PRE+e+1}, 0xffff0000, v29")
    for e in range(8): k.e(f"v_mul_f32 v{PRE+8+e}, 0xbfb8aa3b, v{PRE+e}")
    for e in range(8): k.e(f"v_exp_f32 v{PRE+8+e}, v{PRE+8+e}")
    for e in range(8): k.e(f"v_add_f32 v{PRE+8+e}, 1.0, v{PRE+8+e}")
    for e in range(8): k.e(f"v_rcp_f32 v{PRE+8+e}, v{PRE+8+e}")
    for e in range(8): k.e(f"v_mul_f32 v{PRE+8+e}, v{PRE+e}, v{PRE+8+e}")
    for e in range(0, 8, 2):
        k.e(f"v_cvt_pk_bf16_f32 v29, v{PRE+8+e}, v{PRE+8+e+1}")
        k.e(f"v_lshlrev_b32 v{PRE+8+e}, 16, v29")
        k.e(f"v_and_b32 v{PRE+8+e+1}, 0xffff0000, v29")
    for e in range(8): k.e(f"v_mul_f32_dpp v{PRE+e}, v{PRE+e}, v{PRE+8+e} quad_perm:[2,3,0,1] row_mask:0xf bank_mask:0xf")
    for q in range(4): k.e(f"v_cvt_pk_bf16_f32 v{HH+q}, v{PRE+2*q}, v{PRE+2*q+1}")
    k.e("s_waitcnt lgkmcnt(0)")
    k.e("v_lshl_add_u32 v28, v1, 4, s36")
    for cb in range(4): k.e(f"{MF} {v(DD+4*cb,4)}, {v(FW+4*cb,4)}, {v(HH,4)}, 0")
    k.e("s_nop 7")
    for cb in range(4): k.e(f"ds_write_b128 v28, {v(DD+4*cb,4)} offset:{cb*1024}")

def ffn2_reduce():
    L = ["s_lshl_b32 s36, s28, 10", f"s_add_u32 s36, s36, {LDS_X}", "v_lshl_add_u32 v28, v1, 4, s36"]
    L += [f"ds_read_b128 {v(PRE+4*w,4)}, v28 offset:{w*4096}" for w in range(7)]
    L += ["s_lshr_b32 s36, s2, 4", "s_lshl_b32 s36, s36, 13", "s_and_b32 s37, s2, 15", "s_lshl_b32 s37, s37, 8", "s_add_u32 s36, s36, s37",
          "s_lshl_b32 s37, s28, 6", "s_add_u32 s36, s36, s37", f"s_add_u32 s36, s36, {WS_YP}",
          "v_and_b32 v28, 1, v1", "v_lshlrev_b32 v28, 12, v28", "v_lshl_add_u32 v28, v19, 4, v28", "s_waitcnt lgkmcnt(0)"]
    for w in range(1, 7):
        L += [f"v_add_f32 v{PRE+e}, v{PRE+e}, v{PRE+4*w+e}" for e in range(4)]
    L += ["s_mov_b32 exec_lo, 0x00030003", "s_mov_b32 exec_hi, 0x00030003",
          VM(f"buffer_store_dwordx4 {v(DD,4)}, v28, s[24:27], s36 offen{SC}", "yp"), "s_mov_b64 exec, -1", "s_nop 3"]
    return L

def p4_setup(k):
    two = CFG.get("two", "1") == "1"
    k.e("s_lshr_b32 s63, s29, 4")
    k.e("s_lshl_b32 s36, s30, 2")
    k.e(f"s_lshr_b32 s30, {CFG.get('jp', '0x76534210')}, s36")
    k.e("s_and_b32 s30, s30, 7")
    if two:
        k.e("s_and_b32 s36, s30, 4")
        k.e("s_add_u32 s43, s30, s36")
        k.e("s_lshl_b32 s36, s63, 2")
        k.e("s_add_u32 s30, s43, s36")
    else:
        k.e("s_lshl_b32 s43, s30, 1")
        k.e("s_add_u32 s30, s43, s63")
    k.e("s_and_b32 s29, s29, 15")
    k.e("s_and_b32 s36, s28, 3")
    k.e("s_lshl_b32 s37, s29, 2")
    k.e("s_add_u32 s36, s36, s37")
    k.e("s_lshl_b32 s36, s36, 18")
    k.e("s_lshr_b32 s37, s28, 2")
    k.e("s_lshl_b32 s37, s37, 12")
    k.e("s_add_u32 s36, s36, s37")
    k.e("s_lshl_b32 s37, s63, 16")
    k.e("s_add_u32 s36, s36, s37")
    k.e("s_lshr_b32 s37, s28, 2")
    k.e("s_lshl_b32 s37, s37, 17")
    k.e("s_add_u32 s36, s36, s37")
    k.e("v_lshl_add_u32 v2, v1, 4, s36")
    k.e(f"v_xor_b32 v3, {1<<17}, v2")
    k.e("v_lshrrev_b32 v19, 4, v1")
    k.e("s_lshr_b32 s36, s28, 2")
    k.e("s_lshl_b32 s36, s36, 7")
    k.e("s_and_b32 s37, s28, 3")
    k.e("s_lshl_b32 s37, s37, 4")
    k.e("s_add_u32 s36, s36, s37")
    k.e("s_lshl_b32 s33, s36, 8")
    k.e("s_lshl_b32 s37, s63, 11")
    k.e("s_add_u32 s36, s36, s37")
    k.e("v_add_u32 v18, s36, v19")
    k.e("v_lshlrev_b32 v18, 11, v18")
    k.e("s_lshl_b32 s36, s43, 7")
    k.e("v_add_u32 v18, s36, v18")
    k.e("v_lshlrev_b32 v20, 1, v19")
    k.e("v_and_b32 v21, 7, v1")
    k.e("v_xor_b32 v20, v20, v21")
    k.e("v_lshl_add_u32 v18, v20, 4, v18")
    k.e("v_and_b32 v21, 8, v1")
    k.e(f"v_lshl_add_u32 v6, v21, {6 if two else 4}, v18")
    k.e("v_xor_b32 v21, 8, v21")
    k.e(f"v_lshl_add_u32 v7, v21, {6 if two else 4}, v18")
    k.e(f"v_add_u32 v7, {8192-1024}, v7")
    k.e(f"v_add_u32 v8, {2*(8192-1024)}, v6")
    k.e(f"v_add_u32 v9, {2*(8192-1024)}, v7")
    k.e("s_add_u32 s36, s2, 1")
    k.e("s_mov_b32 s62, 0" if CFG.get("evn") else "s_and_b32 s62, s36, 3")
    k.e("s_lshl_b32 s31, s62, 14")
    k.e("s_lshl_b32 s32, s62, 20")

def p4_setup2(k):
    k.e("v_bfe_u32 v20, v1, 2, 2")
    k.e("v_lshl_add_u32 v18, v19, 2, v20")
    k.e("v_and_b32 v20, 7, v18")
    k.e("s_lshl_b32 s36, s63, 2")
    k.e("s_xor_b32 s36, s36, 4")
    k.e("v_xor_b32 v20, s36, v20")
    k.e("v_lshlrev_b32 v18, 8, v18")
    k.e("s_lshr_b32 s36, s28, 2")
    k.e("s_lshl_b32 s36, s36, 15")
    k.e("s_add_u32 s36, s36, 65536")
    k.e("v_add_u32 v18, s36, v18")
    k.e("v_and_b32 v21, 3, v1")
    k.e("v_lshl_add_u32 v18, v21, 3, v18")
    for cb in range(8):
        k.e(f"v_xor_b32 v21, {cb}, v20")
        k.e(f"v_lshl_add_u32 v{50+cb}, v21, 5, v18")
    k.e(zero(A.O_, 64))

def ctx_ready(k, n, pre=None):
    l, le, lc = k.newlabel("cspin"), k.newlabel("cspinx"), k.newlabel("cchk")
    L = ["s_mov_b32 s61, 0x40000"]
    if pre is not None: L += [f"s_waitcnt vmcnt({pre})", f"s_branch {lc}"]
    return L + [l + ":", "s_sub_u32 s61, s61, 1", f"s_cbranch_scc1 {le}",
            "global_load_dword v59, v58, s[90:91] sc1", "s_waitcnt vmcnt(0)", lc + ":", "v_cmp_le_u32 vcc, 4, v59", "s_nop 0",
            "s_and_b32 s60, vcc_lo, 15", f"s_and_b32 s36, s60, {(1<<n)-1}", f"s_cmp_eq_u32 s36, {(1<<n)-1}", f"s_cbranch_scc1 {le}",
            "s_sleep 6", f"s_branch {l}", le + ":"]

def p4_pieces(k, cfg, tops):
    def wdma(stage, h):
        L = [[f"s_add_u32 m0, s34, {(stage^1)*65536 + h*16384}"]]
        L += [[VM(f"buffer_load_dwordx4 v{6+j}, s[8:11], s32 offen offset:{j*1024} lds", ("W", stage, h))] for j in range(4)]
        L.append([f"s_add_u32 s32, s32, {64*2048}"] if h == 0 else [f"s_add_u32 s32, s32, {192*2048}", "s_and_b32 s32, s32, 0x3fffff"])
        return L
    def xld(xs, s_):
        return [VM(f"buffer_load_dwordx4 {v(XF4[xs]+(s_*2+rb)*4,4)}, v{2+rb}, s[4:7], s31 offen offset:{s_*1024}{SC}", ("x", xs, s_)) for rb in range(2)]
    def wrd(s_, cb):
        return [DS(f"ds_read_b64_tr_b16 {v(WR4+4*cb+2*t,2)}, v{50+cb} offset:{(32*s_+16*t)*256}", ("w", cb)) for t in range(2)]
    xadv = ["s_add_u32 s31, s31, 8192", "s_and_b32 s31, s31, 0xffff"]
    nopw = lambda L: [g + (["s_nop 0"] if i == 0 else []) for i, g in enumerate(L)]
    prow0 = ["s_mov_b32 s34, s33"] + [nopw(wdma(t, h)) for t in range(2) for h in range(2)]
    prox = [xld(0, s_) for s_ in range(4)] + xadv
    D = 6
    XA = int(cfg.get("xa", 3))
    pro2 = [wrd(0, cb) for cb in range(D)] + ["s_mov_b32 s35, 0", Need("vm", [("x", 0, int(cfg.get("xw", 3)))])] + [xld(1, s_) for s_ in range(XA)]
    body = []
    for stage in range(2):
        for hh in range(2):
            M, fills, pre = [], [[] for _ in range(32)], {}
            for s_ in range(2*hh, 2*hh+2):
                for cb in range(8):
                    for rb in range(2):
                        o = A.Oreg(rb, cb)
                        M.append(f"{MF} {v(o,4)}, {v(WR4+4*cb,4)}, {v(XF4[stage]+(s_*2+rb)*4,4)}, {v(o,4)}")
            for p in range(16):
                if p % 2 == 0: pre[2*p] = [Need("ds", [("w", p % 8), ("w", (p+1) % 8)])]
                if p % 8 == 0: pre[2*p] += [Need("vm", [("x", stage, 2*hh + p // 8)])]
                f = p + D
                if f < 16:
                    r = wrd(2*hh + f // 8, f % 8)
                    fills[2*p] += [r[0]]; fills[2*p+1] += [r[1]]
                    if hh == 1 and f >= 8: fills[2*p+1] += [f"v_xor_b32 v{50+f%8}, 65536, v{50+f%8}"]
            if hh == 0: pre[0] = [tops[stage]] + pre[0]
            ev = []
            if stage == 1 and hh == 1:
                chk = switch(k, "s35", [(0, ctx_ready(k, 3, 8)), (1, ctx_ready(k, 4, 8))])
                ev = [Alt(A.ool(k, ["s_cmp_lt_u32 s60, 15"], "s_cbranch_scc1", chk), lambda c: [])]
            if stage == 1 and hh == 0:
                ev = [Alt(A.ool(k, ["s_cmp_lt_u32 s60, 15"], "s_cbranch_scc1", ["global_load_dword v59, v58, s[90:91] sc1"]), lambda c: [])]
            nxt = (stage, 1) if hh == 0 else (stage ^ 1, 0)
            fills[2*11+1] += ev + ["s_waitcnt lgkmcnt(0)", Need("vm", [("W",) + nxt, "yp" if (stage, hh) == (1, 1) else None]), "s_barrier"]
            nx = {12: [0, 1], 13: [2, 3], 14: [4], 15: [5]}
            for p, fl in nx.items():
                for i, f in enumerate(fl): fills[2*p+i] += wrd(2*nxt[1], f)
            wpos = {"0": [25, 26, 28, 30, 31, 31], "1": [24, 25, 27, 29, 31, 31]}[cfg.get("wp", "0")]
            for i, g in enumerate(wdma(stage, hh)): fills[wpos[i]] += g
            xp = {"0": [3, 9, 17, 21], "1": [5, 11, 17, 22], "2": [1, 3, 17, 19]}[cfg.get("xp", "0")]
            for i in range(2):
                s_ = 2*hh + i
                ts = s_ + XA
                xl = xld(stage ^ 1, ts) if ts < 4 else xld(stage, ts - 4)
                fills[xp[2*i]] += [xl[0]]; fills[xp[2*i+1]] += [xl[1]]
                if ts == 3: fills[xp[2*i+1]] += xadv
            ladder(fills, 24, 32, "4" in cfg.get("lad", ""))
            body += weave(M, fills, pre, int(cfg.get("g4", 1)))
            if hh == 1: body += cfg["sth4"].hist(8, first=(stage == 0))
    nf = int(cfg.get("nf", 1))
    seq = [(0, s_, cb) for s_ in range(nf) for cb in range(8)]
    for c0 in (0, 4): seq += [(t, s_, cb) for t in range(2) for s_ in range(4) if 4*t + s_ >= nf for cb in range(c0, c0+4)]
    p2s = 2 * (32 + 4*nf)
    first = lambda t, s_: 2 * ((min(i for i, q in enumerate(seq) if q[:2] == (t, s_)) - D) // 2 * 2)
    M, fills, pre = [], [[] for _ in range(128)], {}
    seen = set()
    for p, (t, s_, cb) in enumerate(seq):
        for rb in range(2):
            o = A.Oreg(rb, cb)
            M.append(f"{MF} {v(o,4)}, {v(WR4+4*(p%8),4)}, {v(XF4[t]+(s_*2+rb)*4,4)}, {v(o,4)}")
        if p % 2 == 0: pre[2*p] = [Need("ds", [("w", p % 8), ("w", (p+1) % 8)])]
        if (t, s_) not in seen:
            seen.add((t, s_)); pre[2*p] += [Need("vm", [("x", t, s_)])]
        f = p + D
        if f < 64:
            t2, s2, c2 = seq[f]
            for h in range(2):
                fills[2*p+h] += [DS(f"ds_read_b64_tr_b16 {v(WR4+4*(f%8)+2*h,2)}, v{50+c2} offset:{(32*s2+16*h)*256}", ("w", f % 8))]
            if (t2, s2) == (0, 3): fills[2*p+1] += [f"v_xor_b32 v{50+c2}, 65536, v{50+c2}"]
    for i, x in enumerate(flat([xld(1, s_) for s_ in range(XA, 4)])): fills[1+3*i] += [x]
    pre[first(0, 2)] = [Need("vm", [("W", 0, 1)]), "s_barrier"] + pre[first(0, 2)]
    pre[first(1, 0)] = [Need("vm", [("W", 1, 0)]), "s_barrier"] + pre[first(1, 0)]
    pre[first(1, 2)] = [Need("vm", [("W", 1, 1)]), "s_barrier"] + pre[first(1, 2)]
    g = [x for x in lines(gcalc, False) if x != "s_nop 0"]
    g0, g1 = 8, int(cfg.get("g1", 72))
    pre[g0] += [Need("ds", ["xi"])]
    for i in range(0, len(g), 2):
        fills[g0 + i * (g1 - g0) // len(g)] += g[i:i+2]
    e1 = p2s + 10
    for cb in range(4):
        fills[p2s+2+cb] += [DS(f"ds_write_b128 v20, {v(A.Oreg(1,cb),4)} offset:{cb*1024}", "e1w")]
        fills[e1+1+cb//2] += [DS(f"ds_read_b128 {v(A.Oreg(1,cb),4)}, v21 offset:{cb*1024}", ("e1r", cb))]
        o0, o1 = A.Oreg(0, cb), A.Oreg(1, cb)
        fills[e1+6+2*cb] += [Need("ds", [("e1r", cb)])] + [f"v_add_f32 v{o0+e}, v{o0+e}, v{o1+e}" for e in range(2)]
        fills[e1+7+2*cb] += [f"v_add_f32 v{o0+e}, v{o0+e}, v{o1+e}" for e in range(2, 4)]
        fills[e1+7+2*cb] += [VM(f"buffer_store_dwordx4 {v(o0,4)}, v22, s[24:27], s41 offen offset:{cb*1024}{SC}", "ex")]
    fills[e1] += [Need("ds", ["e1w"]), "s_barrier"]
    fills[122] += ["s_lshr_b32 s36, s28, 2", "s_lshl_b32 s36, s36, 15", "s_and_b32 s37, s28, 3"]
    fills[123] += ["s_lshl_b32 s37, s37, 12", "s_add_u32 s36, s36, s37", "s_add_u32 s36, s36, 65536"]
    fills[124] += ["v_add_u32 v20, s36, v22", "v_xor_b32 v21, 32768, v20"]
    sp = int(cfg.get("sgp", 127))
    fills[sp] += ["s_waitcnt vmcnt(0)"] + signal("s[90:91]", "s40", "v4", "v13")
    fin = ["s_waitcnt vmcnt(16)", Need("vm", ["xl"])] + [DS(f"ds_read_b64 {v(XI+2*cb,2)}, v17 offset:{cb*32}", "xi") for cb in range(4)] + weave(M, fills, pre)
    return prow0, prox, pro2, body, fin

def routed(k, part):
    if part == 0:
        k.e([f"s_add_u32 s36, s30, {CNT_F2}", "s_lshl_b32 s36, s36, 7", "v_mov_b32 v60, s36", "global_load_dword v61, v60, s[90:91] sc1"])
        return
    if part == 1:
        k.e("s_waitcnt vmcnt(16)")
        emit(k, check(k, "s[90:91]", "v60", "v61", 16, 1))
        k.e(["s_lshl_b32 s37, s30, 8", f"s_add_u32 s36, s37, {WS_YP}", "s_add_u32 s37, s36, 4096",
             "v_and_b32 v60, 15, v1", "v_lshlrev_b32 v60, 13, v60", "v_lshl_add_u32 v60, v19, 4, v60"])
        for t in range(2):
            for cb in range(4):
                k.e(f"buffer_load_dwordx4 {v(96+16*t+4*cb,4)}, v60, s[24:27], s{36+t} offen offset:{cb*64}{SC}")
        return
    k.e(zero(YA, 16))
    k.e("s_waitcnt vmcnt(16)")
    for t in range(2):
        lsk = k.newlabel("noy")
        R = 96 + 16*t
        k.e(f"s_sub_u32 s36, s{56+t}, s38")
        k.e("s_cmp_lt_u32 s36, 16")
        k.e(f"s_cbranch_scc0 {lsk}")
        k.e(f"s_and_b32 s36, s{58+t}, 0xffff0000")
        k.e("s_cmp_lt_i32 s36, 0")
        k.e("s_cselect_b32 s37, 0x80000000, -1")
        k.e("s_xor_b32 s36, s36, s37")
        k.e("s_and_b32 s36, s36, 0xffff0000")
        k.e("v_mov_b32 v62, s36")
        k.e("v_mul_f32 v62, 0xbfb8aa3b, v62")
        k.e("v_exp_f32 v62, v62")
        k.e("s_nop 0")
        k.e("v_add_f32 v62, 1.0, v62")
        k.e("v_rcp_f32 v62, v62")
        k.e("s_nop 0")
        rbf(k, "v62")
        for m in ["quad_perm:[1,0,3,2]", "quad_perm:[2,3,0,1]", "row_half_mirror", "row_mirror"]:
            for r in range(16):
                k.e(f"v_add_f32_dpp v{R+r}, v{R+r}, v{R+r} {m} row_mask:0xf bank_mask:0xf")
        k.e(f"v_cmp_eq_u32 vcc, s{56+t}, v14")
        for r in range(0, 16, 2):
            for rep in range(2):
                k.e(f"v_cvt_pk_bf16_f32 v63, v{R+r}, v{R+r+1}")
                k.e(f"v_lshlrev_b32 v{R+r}, 16, v63")
                k.e(f"v_and_b32 v{R+r+1}, 0xffff0000, v63")
                if rep == 0: k.e([f"v_mul_f32 v{R+r}, v62, v{R+r}", f"v_mul_f32 v{R+r+1}, v62, v{R+r+1}"])
            k.e(f"v_cndmask_b32 v{YA+r}, v{YA+r}, v{R+r}, vcc")
            k.e(f"v_cndmask_b32 v{YA+r+1}, v{YA+r+1}, v{R+r+1}, vcc")
        k.label(lsk)

RT = ["s_sub_u32 s36, s56, s38", "s_sub_u32 s37, s57, s38", "s_min_u32 s36, s36, s37", "s_cmp_lt_u32 s36, 16"]
import os
if os.environ.get("NORT"): RT[-1] = "s_cmp_lt_u32 s36, 0"
def ex_addr():
    return ["s_lshl_b32 s36, s2, 15", "s_lshl_b32 s37, s28, 12", "s_add_u32 s36, s36, s37", f"s_add_u32 s36, s36, {WS_EX}"]

def p4_final(k, cfg):
    k.e("s_nop 4")
    for cb in range(4): k.e(f"ds_write_b128 v20, {v(A.Oreg(1,4+cb),4)} offset:{cb*1024}")
    emit(k, A.ool(k, RT, "s_cbranch_scc1", lines(gcalc, True)))
    cfg["st5"].mark()
    emit(k, A.ool(k, [f"s_cmp_eq_u32 s28, {cfg.get('exp', 3)}"], "s_cbranch_scc1", spin(k, "s[90:91]", "v5", "v23", 8, int(cfg.get("exs", 1)))))
    k.e("s_waitcnt lgkmcnt(0)")
    k.e("s_barrier")
    cfg["st5"].mark()
    for cb in range(4): k.e(f"buffer_load_dwordx4 {v(64+4*cb,4)}, v22, s[24:27], s39 offen offset:{cb*1024}{SC}")
    for cb in range(4): k.e(f"ds_read_b128 {v(128+4*cb,4)}, v21 offset:{cb*1024}")
    for cb in range(4):
        k.e(f"s_waitcnt lgkmcnt({3-cb})")
        for e in (0, 2): k.e(f"v_pk_add_f32 {v(128+4*cb+e,2)}, {v(128+4*cb+e,2)}, {v(A.Oreg(0,4+cb)+e,2)}")
    for cb in range(4):
        k.e(f"s_waitcnt vmcnt({3-cb})")
        for h in range(2):
            a, b = 128+4*cb+2*h, 128+4*cb+2*h+1
            k.e(f"v_pk_add_f32 {v(a,2)}, {v(a,2)}, {v(64+4*cb+2*h,2)}")
            def rnd2():
                k.e(f"v_cvt_pk_bf16_f32 v23, v{a}, v{b}")
                k.e(f"v_lshlrev_b32 v{a}, 16, v23")
                k.e(f"v_and_b32 v{b}, 0xffff0000, v23")
            rnd2()
            k.e(f"v_pk_mul_f32 {v(a,2)}, {v(a,2)}, {v(G+4*cb+2*h,2)}")
            rnd2()
            k.e(f"v_pk_add_f32 {v(a,2)}, {v(a,2)}, {v(X32+4*cb+2*h,2)}")
            k.e(f"v_cvt_pk_bf16_f32 v{80+2*cb+h}, v{a}, v{b}")
        k.e(f"ds_write_b64 v17, {v(80+2*cb,2)} offset:{cb*32}")
    k.e("v_add_u32 v22, s42, v22")
    k.e(f"s_mov_b32 s36, {8*2048}")
    k.e("s_waitcnt lgkmcnt(0)")
    k.e("ds_read_b128 v[64:67], v22")
    k.e("ds_read_b128 v[68:71], v22 offset:1024")
    k.e("s_waitcnt lgkmcnt(1)")
    k.e(f"buffer_store_dwordx4 v[64:67], v15, s[20:23], 0 offen {cfg.get('ofl', '')}")
    k.e("s_waitcnt lgkmcnt(0)")
    k.e(f"buffer_store_dwordx4 v[68:71], v15, s[20:23], s36 offen {cfg.get('ofl', '')}")

def p4(k, cfg, st):
    kx = K("tmp")
    kx.e(["s_lshl_b32 s36, s29, 7", "s_and_b32 s37, s28, 3", "s_lshl_b32 s37, s37, 5", "s_add_u32 s36, s36, s37",
          "s_lshr_b32 s37, s28, 2", "s_lshl_b32 s37, s37, 4", "s_add_u32 s38, s36, s37",
          "v_and_b32 v17, 15, v1", "v_add_u32 v14, s38, v17", "v_lshlrev_b32 v16, 3, v14",
          "v_lshrrev_b32 v15, 3, v1", "v_add_u32 v15, s38, v15", "v_lshlrev_b32 v15, 11, v15", "v_and_b32 v4, 7, v1",
          "v_lshl_add_u32 v15, v4, 4, v15", "s_lshl_b32 s36, s30, 7", "v_add_u32 v15, s36, v15",
          "s_lshl_b32 s36, s28, 12", f"s_add_u32 s42, s36, {LDS_X}", "v_lshl_add_u32 v17, v17, 7, s42", "v_lshl_add_u32 v17, v19, 3, v17"])
    xl = ["s_mov_b32 m0, s42", f"s_mov_b32 s36, {8*2048-1024}", VM("buffer_load_dwordx4 v15, s[16:19], 0 offen lds"),
          VM("buffer_load_dwordx4 v15, s[16:19], s36 offen offset:1024 lds"),
          f"s_mov_b32 s36, {WS_ST}", VM(f"buffer_load_dwordx2 {v(XI+8,2)}, v16, s[24:27], s36 offen{SC}", "xl")]
    n_ctx = Need("vm", ["ctxst"])
    sig = ["v_mov_b32 v26, s40", "v_mov_b32 v28, 1", "v_writelane_b32 v26, s41, 1",
           "s_mov_b64 exec, 3", "global_atomic_add v26, v28, s[90:91]", "s_mov_b64 exec, -1"]
    sigA = Alt(A.ool(k, ["s_cmp_eq_u32 s28, 0"], "s_cbranch_scc1", sig), lambda c: sig if c["w0"] else [])
    redA = guard(k, ["s_cmp_lt_u32 s28, 4"], "s_cbranch_scc0", ffn2_reduce(), "lo")
    f2 = ["s_and_b32 s36, s2, 15", f"s_add_u32 s36, s36, {CNT_F2}", "s_lshl_b32 s36, s36, 7"] + signal("s[90:91]", "s36", "v26", "v27")
    f2A = guard(k, ["s_cmp_eq_u32 s28, 0"], "s_cbranch_scc0", f2, "w0")
    def rt(part):
        kr = K(k.name + f"_rt{part}"); routed(kr, part)
        lrt = k.newlabel("nrt")
        return Alt(RT + [f"s_cbranch_scc0 {lrt}"] + [x.strip() for x in kr.lines] + [lrt + ":"], lambda c: [])
    ev0 = {1: [f2A], 2: [rt(0)] + xl}
    ev1 = {2: [rt(1)]}
    if "4" in cfg.get("cpf", ""):
        ev1[2] = [guard(k, ["s_cmp_eq_u32 s28, 0"], "s_cbranch_scc0", ["s_mov_b32 s43, s38"] + code_touch(k, 4, "v63") + ["s_mov_b32 s38, s43"], "w0")] + ev1[2]
    tops = [Alt(A.ool(k, ["s_cmp_lg_u32 s35, 0"], "s_cbranch_scc1", switch(k, "s35", sorted(ev0.items()))), lambda c: ev0.get(c["it"])),
            Alt(A.ool(k, ["s_cmp_eq_u32 s35, 2"], "s_cbranch_scc1", switch(k, "s35", sorted(ev1.items()))), lambda c: ev1.get(c["it"]))]
    prow0, prox, pro2, body, fin = p4_pieces(k, cfg, tops)
    n_w0 = Need("vm", [("W", 0, 0)])
    scen = []
    for w0, lo, n7 in ((1, 1, 1), (0, 1, 1), (0, 0, 1), (0, 0, 0)):
        c = dict(w0=w0, lo=lo, n7=n7, it=0)
        sq = flat([VM("", "ctxst"), n_ctx, sigA, prow0, n_w0, prox, redA, pro2], c)
        for it in range(3): sq += flat([body], dict(c, it=it))
        scen.append(sq + flat(fin, c))
    resolve(scen)
    k.e("s_and_b32 s36, s29, 28")
    k.e(f"s_sub_u32 s40, {15+CNT_CTX}, s30")
    k.e("s_lshl_b32 s40, s40, 7")
    k.e("s_add_u32 s40, s40, s36")
    k.e(f"s_add_u32 s41, s30, {CNT_CTX}")
    k.e("s_lshl_b32 s41, s41, 7")
    k.e("s_add_u32 s41, s41, s36")
    p4_setup(k)
    pb = cfg.get("pb", "")
    rest = lines(srd, 4, 54, 16777216, WS_CTX) + lines(srd, 16, 96, 4194304) + lines(srd, 20, 98, 4194304) + [x.strip() for x in kx.lines] + lines(p4_setup2)
    if "s" in pb: k.e(rest)
    if "m" in pb:
        l7 = k.newlabel("w7")
        emit(k, ["s_waitcnt vmcnt(4)", "s_cmp_eq_u32 s28, 7", f"s_cbranch_scc1 {l7}"] + lines(ffn2_math) + [l7 + ":"])
    emit(k, [n_ctx, "s_barrier", sigA])
    st.mark()
    if "m" in pb: emit(k, prow0)
    else:
        lm, lm1, lm2 = k.newlabel("f2m"), k.newlabel("f2a"), k.newlabel("f2b")
        A.OOL.append([lm + ":"] + lines(ffn2_math) + ["s_cmp_lt_u32 s28, 4", f"s_cbranch_scc1 {lm2}", f"s_branch {lm1}"])
        k.e("s_bitcmp1_b32 0x70, s28")
        k.e(f"s_cbranch_scc1 {lm}")
        k.label(lm1)
        emit(k, prow0)
        k.e("s_cmp_lt_u32 s28, 4")
        k.e(f"s_cbranch_scc1 {lm}")
        k.label(lm2)
    if "s" not in pb: k.e(rest)
    k.e("s_mov_b32 s60, 15")
    lj = k.newlabel("w7j")
    k.e(f"s_cmp_eq_u32 s28, {cfg.get('pw', 3)}")
    k.e(f"s_cbranch_scc0 {lj}")
    k.e("v_add_u32 v58, s62, v1")
    k.e("v_and_b32 v58, 3, v58")
    k.e(f"s_add_u32 s36, s29, {CNT_CTX}")
    k.e("s_lshl_b32 s36, s36, 7")
    k.e("s_lshl_b32 s37, s63, 4")
    k.e("s_add_u32 s36, s36, s37")
    k.e("v_lshl_add_u32 v58, v58, 2, s36")
    emit(k, ctx_ready(k, int(cfg.get("rdy0", 2))))
    k.label(lj)
    emit(k, [n_w0])
    k.e("s_waitcnt lgkmcnt(0)")
    st.mark()
    k.e("s_barrier")
    st.mark()
    emit(k, prox)
    emit(k, [redA])
    k.e("v_lshlrev_b32 v22, 4, v1")
    k.e("v_add_u32 v20, s42, v22")
    k.e("v_xor_b32 v21, 16384, v20")
    k.e(ex_addr())
    k.e("s_mov_b32 s41, s36")
    k.e(f"s_xor_b32 s39, s36, {PX() << 15}")
    k.e(f"s_add_u32 s40, s2, {CNT_EX}")
    k.e("s_lshl_b32 s40, s40, 7")
    emit(k, pro2)
    st.mark()
    if cfg.get("p4prio"):
        emit(k, ["s_cmp_lt_u32 s28, 4", "s_cbranch_scc1 L_p4_np", "s_setprio 1", "L_p4_np:"])
    k.align(6)
    k.label("L_p4_loop")
    emit(k, body)
    k.e("s_add_u32 s35, s35, 1")
    k.e("s_cmp_lt_u32 s35, 3")
    k.e("s_cbranch_scc1 L_p4_loop")
    st.mark()
    kr = K(k.name + "_rt2"); routed(kr, 2)
    emit(k, A.ool(k, RT, "s_cbranch_scc1", [x.strip() for x in kr.lines]))
    k.e(f"s_xor_b32 s37, s40, {PX() << 7}")
    k.e("v_mov_b32 v5, s37")
    emit(k, fin)
    st.mark()
    cfg["st5"].mark()
    p4_final(k, cfg)
    cfg["st5"].mark()

def gen_fused(cfg, name):
    cfg = dict(cfg, stflag=SC, pro_hook=pro_hook, pro_wait=pro_wait, bar_hook=bar_hook, b_hook=b_hook, b_inline=["buffer_load_dword v0, v13, s[4:7], s48 offen", f"s_add_u32 s48, s48, {128*int(cfg.get('btl', 32))}"], before_merge=before_merge, tail_extra=tail_extra, share=1)
    CFG.update(cfg)
    Z64[0] = not cfg.get("noz64")
    k = K(name)
    k.e("s_cmp_ge_u32 s2, 256")
    k.e("s_cbranch_scc1 L_end")
    stq = cfg.get("stamp", "")
    st = Stamps(k, bool(stq), kid=0)
    off = Stamps(k, False)
    st.mark()
    cfg["sth4"] = st if "d" in stq else off
    cfg["st5"] = st if "5" in stq else off
    cfg["sth1"] = st if "a" in stq else off
    cfg["sth2"] = st if "b" in stq else off
    p1(k, cfg, st if "1" in stq else off)
    if "b" in stq: st.mark()
    p2(k, cfg, st if "2" in stq else off)
    k.e("s_load_dwordx2 s[32:33], s[0:1], 40")
    k.e("s_load_dwordx2 s[34:35], s[0:1], 80")
    k.e("s_load_dwordx2 s[96:97], s[0:1], 0")
    k.e("s_load_dwordx2 s[98:99], s[0:1], 88")
    s3 = st if "3" in stq else off
    k.e("s_cmp_lt_u32 s28, 4")
    k.e("s_cbranch_scc0 L_grp1")
    A.gen_p3(k, cfg, 0, s3, after_q, before_tail)
    k.e("s_branch L_p3_done")
    A.flush_ool(k)
    k.label("L_grp1")
    A.gen_p3(k, cfg, 1, s3, after_q, before_tail)
    k.e("s_branch L_p3_done")
    A.flush_ool(k)
    k.label("L_p3_done")
    st.mark()
    p4(k, cfg, st if "4" in stq else off)
    st.dump(54, "s28")
    if cfg.get("stdbg"):
        k.e("s_lshl_b32 s36, s28, 8"); k.e("s_add_u32 s36, s36, s2")
        k.e(f"s_cmp_eq_u32 s36, {cfg['stdbg']}"); k.e("s_cbranch_scc0 L_end")
        k.e("v_mov_b32 v2, 0"); k.e("s_mov_b64 exec, 1")
        for i in range(1, st.n):
            k.e(f"s_sub_u32 s36, s{st.base+2*i+1}, s{st.base+1}")
            k.e("v_mov_b32 v3, s36")
            k.e(f"global_store_dword v2, v3, s[88:89] offset:{4*i}")
    k.e("s_endpgm")
    A.flush_ool(k)
    k.label("L_end")
    return wrap(k, 256)
```

```python
import re, sys

class K:
    def __init__(self, name):
        self.name = name
        self.lines = []
        self.nl = 0
    def e(self, s):
        if isinstance(s, (list, tuple)):
            for x in s: self.e(x)
            return
        self.lines.append("    " + s)
    def c(self, s):
        self.lines.append("    ; " + s)
    def label(self, l):
        self.lines.append(l + ":")
    def newlabel(self, base):
        self.nl += 1
        return f"L_{self.name}_{base}_{self.nl}"
    def align(self, p):
        self.lines.append(f"    .p2align {p}")
    def text(self):
        return "\n".join(self.lines)

def v(a, n=1):
    return f"v[{a}:{a+n-1}]" if n > 1 else f"v{a}"
def s(a, n=1):
    return f"s[{a}:{a+n-1}]" if n > 1 else f"s{a}"
def a_(a, n=1):
    return f"a[{a}:{a+n-1}]" if n > 1 else f"a{a}"

def wrap(k, vgprs, agprs=0, sgprs=102):
    name = k.name
    acc = (vgprs + 3) // 4 * 4
    nfv = acc + agprs if agprs else vgprs
    out = [f".globl {name}", ".p2align 8", f".type {name},@function", f"{name}:", k.text(), "    s_endpgm"]
    kd = [".p2align 6", f".amdhsa_kernel {name}",
          f"  .amdhsa_next_free_vgpr {nfv}", f"  .amdhsa_next_free_sgpr {sgprs}",
          f"  .amdhsa_accum_offset {acc}", "  .amdhsa_group_segment_fixed_size 0",
          "  .amdhsa_kernarg_size 112", "  .amdhsa_user_sgpr_count 2",
          "  .amdhsa_user_sgpr_kernarg_segment_ptr 1", "  .amdhsa_system_sgpr_workgroup_id_x 1",
          ".end_amdhsa_kernel"]
    check(k)
    return "\n".join(out), "\n".join(kd)

def srd(k, d, base, nbytes, add=0):
    if add:
        k.e(f"s_add_u32 s{d}, s{base}, {add}")
        k.e(f"s_addc_u32 s{d+1}, s{base+1}, 0")
        k.e(f"s_and_b32 s{d+1}, s{d+1}, 0xffff")
    else:
        k.e(f"s_mov_b32 s{d}, s{base}")
        k.e(f"s_and_b32 s{d+1}, s{base+1}, 0xffff")
    k.e(f"s_mov_b32 s{d+2}, {nbytes}")
    k.e(f"s_mov_b32 s{d+3}, 0x20000")

def build(parts, launches, path):
    out = ["; generated by gen2/gen.py -- do not edit by hand"] + launches
    out += ['.amdgcn_target "amdgcn-amd-amdhsa--gfx950"', ".text"]
    out += [c for c, _ in parts]
    out.append('.section .rodata,"a"')
    out += [kd for _, kd in parts]
    open(path, "w").write("\n".join(out) + "\n")

REG = re.compile(r"^(-|abs\()?([vsa])(\d+|\[(\d+):(\d+)\])\)?$")
def regs(op):
    op = op.strip()
    if op in ("vcc",): return {("s", 106), ("s", 107)}
    if op == "vcc_lo": return {("s", 106)}
    if op == "vcc_hi": return {("s", 107)}
    if op == "exec": return {("s", 126), ("s", 127)}
    if op == "exec_lo": return {("s", 126)}
    if op == "exec_hi": return {("s", 127)}
    if op == "m0": return {("s", 124)}
    m = REG.match(op)
    if not m: return set()
    t = m.group(2)
    if m.group(4) is not None:
        return {(t, i) for i in range(int(m.group(4)), int(m.group(5)) + 1)}
    return {(t, int(m.group(3)))}

TRANS = ("v_exp_f32", "v_log_f32", "v_rcp_f32", "v_rsq_f32", "v_sqrt_f32", "v_sin_f32", "v_cos_f32")
class I:
    pass

def parse(line):
    t = line.split(";")[0].strip()
    i = I(); i.text = t
    if not t or t.startswith("."):
        return None
    if t.endswith(":"):
        i.kind = "label"; i.name = t[:-1]; return i
    sp = t.split(None, 1)
    mn = sp[0]; rest = sp[1] if len(sp) > 1 else ""
    rest = re.sub(r"\s+(op_sel|op_sel_hi|neg_lo|neg_hi):\[[^\]]*\]", "", rest)
    rest = re.sub(r"quad_perm:\[(\d),(\d),(\d),(\d)\]", r"quad_perm:\1\2\3\4", rest)
    ops = [o.strip() for o in rest.split(",")] if rest else []
    mods = []
    if ops:
        last = ops[-1].split()
        if last:
            ops[-1] = last[0]; mods = last[1:]
    i.mn = mn; i.ops = ops; i.mods = mods
    i.w = set(); i.r = set(); i.ws = 1; i.kind = "other"; i.target = None
    i.A = i.B = i.C = set()
    R = lambda lst: set().union(*[regs(o) for o in lst]) if lst else set()
    if mn.startswith("v_mfma"):
        i.kind = "mfma"; i.w = regs(ops[0]); i.A = regs(ops[1]); i.B = regs(ops[2]); i.C = regs(ops[3])
        i.r = i.A | i.B | i.C
        i.passes = 8 if "32x32x16" in mn else 4
    elif mn.startswith("v_"):
        i.kind = "valu"
        if (mn.startswith("v_permlane") and "swap" in mn) or mn.startswith("v_swap"):
            i.w = R(ops[:2]); i.r = R(ops[:2])
        elif mn.startswith("v_cmp"):
            i.w = regs(ops[0]); i.r = R(ops[1:])
            if mn.startswith("v_cmpx"): i.w |= regs("exec")
        elif "_co_" in mn:
            i.w = R(ops[:2]); i.r = R(ops[2:])
        elif mn == "v_nop":
            pass
        else:
            i.w = regs(ops[0]); i.r = R(ops[1:])
            if mn.startswith(("v_fmac", "v_mac", "v_dot2c", "v_writelane")) or "dpp" in mn or any(m.startswith(("quad_perm", "row_")) for m in mods):
                i.r |= i.w
        i.trans = mn.startswith(TRANS)
        i.dpp = "dpp" in mn or any(m.startswith(("quad_perm", "row_", "wave_")) for m in mods)
    elif mn.startswith("ds_"):
        i.kind = "ds"
        if mn.startswith(("ds_read", "ds_bpermute", "ds_permute", "ds_swizzle")):
            i.w = regs(ops[0]); i.r = R(ops[1:])
        else:
            i.r = R(ops)
    elif mn.startswith(("buffer_", "global_")):
        i.kind = "vmem"
        i.lds = "lds" in mods
        if mn in ("buffer_wbl2", "buffer_inv"):
            pass
        elif i.lds:
            i.r = R(ops) | regs("m0")
        elif "load" in mn:
            i.w = regs(ops[0]); i.r = R(ops[1:])
        elif "atomic" in mn:
            i.r = R(ops)
            if "sc0" in mods: i.w = regs(ops[0])
        else:
            i.r = R(ops)
            i.data = regs(ops[0]) if mn.startswith("buffer_") else regs(ops[1])
            i.wide = mn.endswith(("x3", "x4"))
    elif mn.startswith("s_"):
        i.kind = "salu"
        if mn == "s_nop":
            i.ws = int(ops[0], 0) + 1
        elif mn == "s_waitcnt":
            i.kind = "wait"
            i.vm = i.lgkm = None
            for m in re.finditer(r"(vmcnt|lgkmcnt)\((\d+)\)", rest):
                if m.group(1) == "vmcnt": i.vm = int(m.group(2))
                else: i.lgkm = int(m.group(2))
        elif mn.startswith(("s_cbranch", "s_branch")):
            i.kind = "branch"; i.target = ops[0]
            if "vcc" in mn: i.r = regs("vcc")
        elif mn.startswith(("s_load", "s_memtime", "s_memrealtime", "s_buffer_load", "s_atomic")):
            i.kind = "smem"; i.w = regs(ops[0]); i.r = R(ops[1:])
        elif mn.startswith(("s_cmp", "s_barrier", "s_setprio", "s_endpgm", "s_sleep", "s_bitcmp")):
            i.r = R(ops)
        else:
            i.w = regs(ops[0]); i.r = R(ops[1:])
            if "saveexec" in mn: i.w |= regs("exec")
    return i

def need(p, c):
    n = 0
    vw = {r for r in p.w if r[0] in "va"}
    sw = {r for r in p.w if r[0] == "s"}
    if p.kind == "valu":
        if c.kind == "mfma" and vw & c.r: n = max(n, 2)
        if c.kind == "valu":
            if p.trans and not c.trans and vw & c.r: n = max(n, 1)
            if sw & c.r: n = max(n, 4 if c.mn.startswith(("v_readlane", "v_writelane")) else 2)
            if c.mn.startswith(("v_readlane", "v_readfirstlane")) and vw & c.r: n = max(n, 1)
            if c.mn.startswith("v_permlane") and vw & c.r: n = max(n, 2)
            if c.dpp and vw & c.r: n = max(n, 2)
            if regs("exec") & p.w and c.dpp: n = max(n, 5)
            if p.mn.startswith("v_dot") and p.mn != c.mn and vw & (c.r | c.w): n = max(n, 3)
        if c.kind == "vmem" and sw & c.r: n = max(n, 5)
        if c.kind == "mfma" and regs("exec") & p.w: n = max(n, 4)
        if c.kind in ("salu", "smem") and sw & c.r: n = max(n, 1)
    if p.kind == "mfma":
        big = 12 if p.passes == 8 else 8
        if c.kind == "mfma":
            if p.w & (c.A | c.B): n = max(n, big)
            if p.w & c.C and not (p.w == c.C and p.passes == c.passes): n = max(n, big - 2)
            if p.w & c.w and not (p.w == c.w): n = max(n, big - 2)
        elif c.kind in ("valu", "ds", "vmem"):
            if p.w & (c.r | c.w): n = max(n, big)
            if c.kind == "valu" and p.C & c.w: n = max(n, 7 if p.passes == 8 else 3)
    if p.kind == "salu" and regs("m0") & p.w and c.kind == "vmem" and c.lds: n = max(n, 1)
    if p.kind == "vmem" and getattr(p, "wide", False):
        if p.data & c.w: n = max(n, 2 if c.kind == "valu" else 1)
    return n

WGS = [0, 77, 230, 255]
WAVES = [0, 1, 4, 7]
M32 = 0xffffffff
def sx(x): return x - (1 << 32) if x >> 31 else x
def walk(ins, lab, wg, wave, errs):
    import operator
    CMP = {"eq": operator.eq, "lg": operator.ne, "lt": operator.lt, "le": operator.le, "gt": operator.gt, "ge": operator.ge}
    N = len(ins)
    def val(S, op):
        if op[0] == "s" and op[1:].isdigit(): return S.get(int(op[1:]))
        if op in ("m0", "vcc", "exec", "vcc_lo", "vcc_hi", "exec_lo", "exec_hi") or op[0] in "sv": return None
        try: return int(op, 0) & M32
        except ValueError: return None
    ends = set(); seen = set()
    stack = [(0, (), (), {2: wg}, None, 0)]
    while stack:
        n, lq, vq, S, scc, nb = stack.pop()
        while n < N:
            x = ins[n]
            if x.kind == "label":
                n += 1; continue
            if x.kind == "wait":
                if x.lgkm is not None:
                    if any(e[0] == "smem" for e in lq):
                        if x.lgkm == 0: lq = ()
                    elif x.lgkm < len(lq): lq = lq[len(lq) - x.lgkm:] if x.lgkm else ()
                if x.vm is not None and x.vm < len(vq): vq = vq[len(vq) - x.vm:] if x.vm else ()
                n += 1; continue
            touch = x.w if S.get(3) == 0xD0 else x.r | x.w
            if touch:
                for e in lq + vq:
                    if e[1] & touch:
                        errs.append(f"WAITCNT: [{x.text}] touches pending {sorted(e[1] & touch)[:4]}")
            if x.kind == "ds": lq = lq + (("ds", x.fw),)
            elif x.kind == "smem": lq = lq + (("smem", x.fw),)
            elif x.kind == "vmem":
                vq = vq + (("vm", x.fw),)
                if len(vq) > 63: errs.append(f"VMCNT overflow at [{x.text}]")
            mn = x.mn
            if x.kind == "salu":
                o = x.ops
                if mn == "s_endpgm": break
                if mn == "s_barrier": nb += 1
                elif mn.startswith("s_cmp_"):
                    p = mn.split("_")
                    a, b = val(S, o[0]), val(S, o[1])
                    if a is None or b is None or p[3] == "u64": scc = None
                    else: scc = CMP[p[2]](sx(a), sx(b)) if p[3] == "i32" else CMP[p[2]](a, b)
                elif mn.startswith("s_bitcmp"):
                    a, b = val(S, o[0]), val(S, o[1])
                    scc = None if a is None or b is None else ((a >> (b & 31)) & 1) == int(mn[8])
                elif x.w:
                    r = None; keep = False
                    a = val(S, o[1]) if len(o) > 1 else None
                    b = val(S, o[2]) if len(o) > 2 else None
                    ok = a is not None and b is not None
                    if mn == "s_mov_b32": r = a; keep = True
                    elif mn == "s_cselect_b32": r = None if scc is None else (a if scc else b); keep = True
                    elif mn in ("s_mov_b64", "s_cselect_b64", "s_getreg_b32"): keep = True
                    elif mn == "s_mul_i32": r = (a * b) & M32 if ok else None; keep = True
                    elif mn in ("s_add_u32", "s_add_i32"): r = (a + b) & M32 if ok else None; scc = (a + b) > M32 if ok else None; keep = True
                    elif mn in ("s_sub_u32", "s_sub_i32"): r = (a - b) & M32 if ok else None; scc = a < b if ok else None; keep = True
                    elif mn == "s_lshl_b32": r = (a << (b & 31)) & M32 if ok else None
                    elif mn == "s_lshr_b32": r = a >> (b & 31) if ok else None
                    elif mn == "s_and_b32": r = a & b if ok else None
                    elif mn == "s_or_b32": r = a | b if ok else None
                    elif mn == "s_xor_b32": r = a ^ b if ok else None
                    elif mn == "s_min_u32": r = min(a, b) if ok else None
                    elif mn == "s_max_u32": r = max(a, b) if ok else None
                    elif mn == "s_bfe_u32": r = (a >> (b & 31)) & ((1 << ((b >> 16) & 0x7f)) - 1) if ok else None
                    if not keep: scc = None
                    S = dict(S)
                    for t, i in x.w: S.pop(i, None)
                    if r is not None and len(x.w) == 1:
                        i = next(iter(x.w))[1]
                        if i != 61: S[i] = r
                    if ("s", 61) in x.w: scc = None
            elif x.kind in ("valu", "smem"):
                sw = [i for t, i in x.w if t == "s"]
                if sw:
                    S = dict(S)
                    for i in sw: S.pop(i, None)
                    if mn == "v_readfirstlane_b32" and sw == [28]: S[28] = wave
            elif x.kind == "branch":
                if mn == "s_branch": n = lab[x.target]; continue
                if mn in ("s_cbranch_scc0", "s_cbranch_scc1") and scc is not None:
                    if scc == (mn == "s_cbranch_scc1"): n = lab[x.target]; continue
                else:
                    key = (n, lq, vq, tuple(sorted(S.items())), nb)
                    if key in seen: nb = None; break
                    seen.add(key)
                    St = S
                    p = ins[n-1]
                    if p.kind == "salu" and p.mn == "s_cmp_eq_u32" and p.ops[0] == "s43" and val(S, p.ops[1]) is not None:
                        c_ = val(S, p.ops[1]); eq = dict(S); eq[43] = c_; ne = dict(S); ne[43] = c_ ^ 1
                        St, S = (eq, ne) if mn == "s_cbranch_scc1" else (ne, eq)
                    stack.append((lab[x.target], lq, vq, St, scc, nb))
            n += 1
        if nb is not None: ends.add(nb)
    return frozenset(ends)

def check(k, verbose=True):
    ins = [x for x in (parse(l) for l in k.lines) if x is not None]
    lab = {x.name: n for n, x in enumerate(ins) if x.kind == "label"}
    for x in ins:
        if x.kind != "label": x.fw = frozenset(x.w - {("v", 0)})
    N = len(ins)
    def succ(n):
        x = ins[n]
        if x.kind == "branch":
            t = [lab[x.target]]
            if x.mn != "s_branch": t.append(n + 1)
            return [q for q in t if q < N]
        if x.kind != "label" and x.mn == "s_endpgm": return []
        return [n + 1] if n + 1 < N else []
    errs = []
    for n, p in enumerate(ins):
        if p.kind in ("label", "wait", "branch", "other"): continue
        if not (p.w or p.kind in ("mfma", "vmem")): continue
        stack = [(q, 0) for q in succ(n)]
        seen = {}
        while stack:
            q, d = stack.pop()
            if d >= 13 or seen.get(q, 99) <= d: continue
            seen[q] = d
            c = ins[q]
            if c.kind == "label":
                stack += [(z, d) for z in succ(q)]; continue
            nd = need(p, c)
            if nd > d:
                errs.append(f"HAZARD need {nd} have {d}: [{p.text}] -> [{c.text}]")
            stack += [(z, d + c.ws) for z in succ(q)]
    bars = {}
    for wg in WGS:
        for wave in WAVES:
            nb = walk(ins, lab, wg, wave, errs)
            bars.setdefault(wg, set()).add(nb)
    for wg, st_ in bars.items():
        if len(st_) != 1: errs.append(f"BARRIER count mismatch in wg {wg}: {st_}")
    errs = list(dict.fromkeys(errs))
    if errs:
        print(f"== {k.name}: {len(errs)} problems", file=sys.stderr)
        for e in errs[:40]: print("  " + e, file=sys.stderr)
        import os
        if not os.environ.get("NOCHK"): raise SystemExit(1)
    mx = {"v": -1, "s": -1, "a": -1}
    for x in ins:
        if x.kind == "label": continue
        for t, i in (x.r | x.w):
            if not (t == "s" and i >= 102): mx[t] = max(mx[t], i)
    if verbose:
        print(f"{k.name}: {N} lines, max v{mx['v']} s{mx['s']} a{mx['a']}", file=sys.stderr)

class Op:
    def __init__(self, kind, text, tag=None):
        self.kind, self.text, self.tag = kind, text, tag
class Need:
    def __init__(self, kind, tags):
        self.kind, self.tags, self.n = kind, set(t for t in tags if t is not None), None
def DS(text, tag=None): return Op("ds", text, tag)
def VM(text, tag=None): return Op("vm", text, tag)

class SetTags:
    def __init__(self, nd, tags): self.nd, self.tags = nd, set(tags)

class Alt:
    def __init__(self, inline, pick):
        self.inline, self.pick = inline, pick

def flat(items, ctx=None):
    out = []
    for x in items:
        if isinstance(x, (list, tuple)): out += flat(x, ctx)
        elif isinstance(x, Alt):
            out += flat(x.inline) if ctx is None else flat(x.pick(ctx) or [], ctx)
        else: out.append(x)
    return out

def simulate(seq, final=False):
    q = {"vm": [], "ds": []}
    for x in seq:
        if isinstance(x, SetTags):
            x.nd.tags = x.tags
        elif isinstance(x, Op):
            q[x.kind].append(x.tag)
        elif isinstance(x, Need):
            Q = q[x.kind]
            pos = [i for i, t in enumerate(Q) if t in x.tags]
            if pos:
                n = len(Q) - 1 - max(pos)
                n = min(n, 63 if x.kind == "vm" else 15)
                if final: assert x.n is not None and x.n <= n
                x.n = n if x.n is None else min(x.n, n)
            if x.n is not None:
                del Q[:max(0, len(Q) - x.n)]
        elif isinstance(x, str):
            t = x.strip()
            if t.startswith("s_waitcnt"):
                for m in re.finditer(r"(vmcnt|lgkmcnt)\((\d+)\)", t):
                    Q = q["vm" if m.group(1) == "vmcnt" else "ds"]
                    del Q[:max(0, len(Q) - int(m.group(2)))]
            elif t.startswith(("ds_",)): q["ds"].append(None)
            elif t.startswith(("buffer_", "global_")): q["vm"].append(None)

def resolve(scenarios):
    for _ in range(3):
        for sc in scenarios: simulate(flat(sc))
    for sc in scenarios: simulate(flat(sc), final=True)

def emit(k, piece):
    for x in flat(piece):
        if isinstance(x, Op): k.e(x.text)
        elif isinstance(x, Need):
            if x.n is not None:
                k.e(f"s_waitcnt {'vmcnt' if x.kind == 'vm' else 'lgkmcnt'}({x.n})")
        elif x.endswith(":"): k.label(x[:-1])
        else: k.e(x)

def weave(mfmas, fills, pre=None, group=1):
    out = []
    if group > 1:
        fills = [list(f) for f in fills]
        for i in range(len(fills)):
            if (i + 1) % group and i + 1 < len(fills) and not (pre and pre.get(i + 1)):
                fills[i + 1] = fills[i] + fills[i + 1]; fills[i] = []
    for i, m in enumerate(mfmas):
        if pre and pre.get(i): out += pre[i]
        out.append(m)
        if i < len(fills): out += fills[i]
    return out
```

```python
from common import *

O_  = 192
Q_  = 128
QS_ = 160
S_  = 96
RG_ = 64
P_  = 48
NM_ = 40
L_  = 28
ONE = 36
vKr, vVr, vD, vNx, vMk, vD2, vL16 = "v2", "v3", "v4", "v5", "v18", "v6", "v7"
LS_ = 8
T_  = 20
LDS_W = 98304
LDS_X = 131072
CSCALE = 0x3e0293ee
NEGBIG = 0xf149f2ca

def Oreg(qb, db): return O_ + (qb*8+db)*4
def Sreg(buf, qb, kb): return S_ + buf*16 + (qb*2+kb)*4
def Preg(buf, qb): return P_ + buf*8 + qb*4

def p2_setup(k):
    k.e("s_and_b32 s36, s28, 3")
    k.e("s_sub_u32 s37, 15, s30")
    k.e("s_cmp_lt_u32 s28, 4")
    k.e("s_cselect_b32 s37, s37, s30")
    k.e("s_lshl_b32 s37, s37, 2")
    k.e("s_add_u32 s37, s37, s36")
    k.e("s_lshl_b32 s37, s37, 16")
    k.e("v_lshl_add_u32 v2, v1, 4, s37")
    k.e("v_add_u32 v3, 32768, v2")
    k.e("v_lshrrev_b32 v18, 4, v1")
    k.e("s_lshl_b32 s37, s28, 4")
    k.e("v_add_u32 v19, s37, v18")
    k.e("v_lshlrev_b32 v19, 13, v19")
    k.e("s_lshl_b32 s37, s29, 8")
    k.e("v_add_u32 v19, s37, v19")
    k.e("v_and_b32 v20, 15, v1")
    k.e("v_lshlrev_b32 v21, 1, v18")
    k.e("v_xor_b32 v21, v20, v21")
    k.e("v_lshl_add_u32 v6, v21, 4, v19")
    k.e(f"v_add_u32 v7, {32768-1024}, v6")
    k.e("v_xor_b32 v21, 8, v21")
    k.e("v_lshl_add_u32 v8, v21, 4, v19")
    k.e(f"v_add_u32 v8, {2*(32768-1024)}, v8")
    k.e(f"v_add_u32 v9, {32768-1024}, v8")
    k.e("s_lshl_b32 s33, s28, 12")
    k.e(f"s_add_u32 s33, s33, {LDS_W}")
    k.e("s_mov_b32 s31, 0")
    k.e("s_mov_b32 s32, 0")

def p2_setup2(k):
    k.e("v_lshrrev_b32 v20, 2, v20")
    k.e("v_lshl_add_u32 v19, v18, 3, v20")
    k.e("v_lshlrev_b32 v19, 8, v19")
    k.e(f"v_add_u32 v19, {LDS_W}, v19")
    k.e("v_and_b32 v21, 3, v1")
    k.e("v_lshl_add_u32 v19, v21, 3, v19")
    k.e("v_and_b32 v21, 1, v18")
    k.e("v_lshl_add_u32 v20, v21, 2, v20")
    for db in range(8):
        k.e(f"v_xor_b32 v21, {db}, v20")
        k.e(f"v_lshl_add_u32 v{10+db}, v21, 5, v19")
    k.e("s_lshl_b32 s43, s28, 12")
    k.e("v_lshl_add_u32 v4, v1, 4, s43")
    k.e("s_add_u32 s44, s43, 65536")
    k.e("s_lshl_b32 s45, s29, 20")
    for r in range(64):
        k.e(f"v_mov_b32 v{O_+r}, 0")

def p2_pieces(cfg):
    WF = [64, 96]; XF = [128, 160]
    def wdma(stage):
        return [f"s_add_u32 m0, s34, {stage*32768}"] , [VM(f"buffer_load_dwordx4 v{6+j}, s[8:11], s32 offen offset:{j*1024} lds", ("W", stage)) for j in range(4)]
    def xld(xs, s_):
        return [VM(f"buffer_load_dwordx4 {v(XF[xs]+(s_*2+rb)*4,4)}, v{2+rb}, s[4:7], s31 offen offset:{s_*1024}", ("x", xs, s_)) for rb in range(2)]
    def wrd(stage, s_, fs):
        return [DS(f"ds_read_b64_tr_b16 {v(WF[fs]+4*db+2*t,2)}, v{10+db} offset:{stage*32768+(32*s_+4*t)*256}", ("w", fs)) for db in range(8) for t in range(2)]
    def mf(fs, xs, s_):
        return [f"{MF} {v(Oreg(rb,db),4)}, {v(WF[fs]+4*db,4)}, {v(XF[xs]+(s_*2+rb)*4,4)}, {v(Oreg(rb,db),4)}" for db in range(8) for rb in range(2)]
    pro = ["s_mov_b32 s34, s33"]
    for t in range(2):
        m, d = wdma(t)
        pro += m + ["s_nop 0"] + d + [f"s_add_u32 s32, s32, {128*8192}"]
        for s_ in range(4 if t == 0 else 3): pro += xld(t, s_)
        if t == 0: pro += ["s_add_u32 s31, s31, 4096"]
    pro2 = [Need("vm", [("W", 0)]), "s_barrier"] + wrd(0, 0, 0) + ["s_mov_b32 s35, 0"]
    kvpre = ["s_mov_b32 m0, s43", "s_add_u32 s46, s45, 65536"]
    kvpre += [VM(f"buffer_load_dwordx4 {vD}, s[12:15], s45 offen offset:{j*1024} lds", "kv") for j in range(4)]
    kvpre += ["s_add_u32 m0, s43, 32768", "s_add_u32 s47, s45, 32768"]
    kvpre += [VM(f"buffer_load_dwordx4 {vD}, s[12:15], s46 offen offset:{j*1024} lds", "kv") for j in range(4)]
    kvpre += ["s_mov_b32 m0, s44", "s_nop 0"]
    kvpre += [VM(f"buffer_load_dwordx4 {vD}, s[12:15], s47 offen offset:{j*1024} lds", "kv") for j in range(4)]
    body = []
    for stage in range(2):
        for s_ in range(4):
            fills = [[] for _ in range(16)]
            if s_ < 3:
                body += [Need("ds", [("w", s_ & 1)])]
                rd = wrd(stage, s_+1, (s_+1) & 1)
            else:
                body += [Need("ds", [("w", 1)]), Need("vm", [("W", stage ^ 1)]), "s_barrier"]
                rd = wrd(stage ^ 1, 0, 0)
            body += [Need("vm", [("x", stage, s_)])]
            for g in range(8): fills[g] += rd[2*g:2*g+2]
            if s_ == 0:
                xl = xld(stage ^ 1, 3)
                fills[8] += [xl[0]]; fills[9] += [xl[1], "s_add_u32 s31, s31, 4096"]
                if stage == 0:
                    fills[10] += ["s_cmp_lt_u32 s35, 3", "s_cselect_b32 s6, 4194304, 0", "s_cselect_b32 s10, 8388608, 0", "s_cselect_b32 s34, s33, 0x30000"]
            else:
                xl = xld(stage, s_-1)
                fills[8] += [xl[0]]; fills[9] += [xl[1]]
            if s_ == 3:
                m, d = wdma(stage)
                fills[9] += m
                for j in range(4): fills[10+j] += [d[j]]
                fills[14] += [f"s_add_u32 s32, s32, {128*8192}"]
            body += weave(mf(s_ & 1, stage, s_), fills)
    return pro, pro2, kvpre, body

def q_pack(k, grp, qwait=0):
    k.e(f"v_mov_b32 v20, {CSCALE}")
    k.e("v_mov_b32 v21, v20")
    k.e("s_and_b32 s37, s28, 3")
    k.e("s_lshl_b32 s37, s37, 13")
    k.e(f"v_lshlrev_b32 {vL16}, 4, v1")
    k.e(f"v_add_u32 {vD}, s37, {vL16}")
    k.e(f"v_add_u32 v19, {LDS_X}, {vD}")
    k.e(hole("k", vD))
    k.e(f"v_add_u32 {vD2}, 4096, {vD}")
    k.e("s_add_u32 s43, s37, 32768")
    k.e("s_add_u32 s44, s37, 98304")
    k.e(f"s_waitcnt vmcnt({qwait}) lgkmcnt(0)")
    for f in range(8):
        a = O_ + 8*f
        k.e(pkmul(a, 8, 20))
        for q in range(4): k.e(f"v_cvt_pk_bf16_f32 v{Q_+4*f+q}, v{a+2*q}, v{a+2*q+1}")
        if grp == 0: k.e(f"ds_write_b128 v19, {v(Q_+4*f,4)} offset:{f*1024}")
    k.e(f"v_mov_b32 {vKr}, {vL16}")
    k.e("v_and_b32 v21, 15, v1")
    k.e("v_lshrrev_b32 v22, 4, v1")
    k.e("v_lshlrev_b32 v22, 2, v22")
    k.e(f"v_sub_u32 {vMk}, v21, v22")
    k.e("s_mov_b32 s40, 0")
    k.e("s_mov_b32 s41, 16384")
    k.e("s_mov_b32 s49, 0xffff")
    k.e("s_lshl_b32 s51, s30, 1")
    k.e("s_add_u32 s51, s51, 1")
    k.e("s_and_b32 s50, s28, 3")
    k.e("s_lshl_b32 s50, s50, 5")
    for r in range(4): k.e(f"v_mov_b32 v{ONE+r}, 0x3f803f80")
    if grp == 1:
        k.e("s_lshl_b32 s42, 7, s51")
        k.e("s_lshr_b32 s42, s42, 2")
        k.e("s_or_b32 s42, s42, 0x8001")
    else:
        k.e("s_lshl_b32 s31, 1, s51")
        k.e("s_or_b32 s31, s31, 0x8000")
        k.e("s_add_u32 s36, s51, 1")
        k.e("s_lshl_b32 s36, -1, s36")
        k.e("s_or_b32 s48, s36, 0xaaaaaaab")
        k.e("s_and_b32 s48, s48, 0x7fff")
        k.e("s_or_b32 s39, s36, 0x55555555")
        k.e("s_and_b32 s39, s39, 0xffff")
        k.e(f"s_add_u32 s46, s45, 65536")
        k.e(f"s_add_u32 s47, s45, {65536+32768}")
    k.e("s_mov_b64 s[52:53], 0")
    k.e("s_waitcnt lgkmcnt(0)")
    k.e("s_barrier")
    if grp == 1:
        for f in range(8):
            k.e(f"ds_read_b128 {v(QS_+4*f,4)}, v19 offset:{f*1024}")

OOL = []
MSK = ["s[20:21]", "s[22:23]", "s[62:63]", "vcc"]
LDS_MSG = LDS_X + 28672
def ool(k, cond, br, block):
    lr, lb = k.newlabel("rare"), k.newlabel("back")
    OOL.append([lr + ":"] + block + [f"s_branch {lb}"])
    return cond + [f"{br} {lr}", lb + ":"]
def flush_ool(k):
    while OOL: emit(k, OOL.pop(0))

def maskblk(k, buf, sU, inline=False):
    L = [f"v_mov_b32 v{T_}, {NEGBIG}", f"v_subrev_u32 v{T_+1}, {sU}, {vMk}"]
    for qb in range(2):
        for kb in range(2):
            for e in range(4):
                L.append(f"v_cmp_gt_i32 {MSK[e]}, {16*(kb-qb) + e}, v{T_+1}")
            for e in range(4):
                r = Sreg(buf, qb, kb) + e
                L.append(f"v_cndmask_b32 v{r}, v{r}, v{T_}, {MSK[e]}")
    if inline:
        l = k.newlabel("nm")
        return [f"s_cmp_lt_i32 {sU}, 0", f"s_cbranch_scc1 {l}"] + L + [l + ":"]
    return ool(k, [f"s_cmp_lt_i32 {sU}, 0"], "s_cbranch_scc0", L)

def qk(buf, fr0, czero):
    L = []
    for kb in range(2):
        for sg in range(4):
            f = RG_ + 4*((fr0 + kb*4 + sg) % 8)
            for qb in range(2):
                d = Sreg(buf, qb, kb)
                c = v(d, 4) if sg else ("0" if czero else v(NM_+4*qb, 4))
                L.append(f"{MF} {v(d,4)}, {v(f,4)}, {v(Q_+(qb*4+sg)*4,4)}, {c}")
    return L

def pv(buf, fr0, ones=True):
    L = []
    for db in range(8):
        f = RG_ + 4*((fr0 + db) % 8)
        for qb in range(2):
            x = f"{MF} {v(Oreg(qb,db),4)}, {v(f,4)}, {v(Preg(buf,qb),4)}, {v(Oreg(qb,db),4)}"
            if ones and qb == 1 and db % 4 == 2:
                x = [x, f"{MF} {v(L_+4*(db//4),4)}, {v(ONE,4)}, {v(Preg(buf,db//4),4)}, {v(L_+4*(db//4),4)}"]
            L.append(x)
    return L

def sm_elems(buf, add=False):
    out = []
    for kb in range(2):
        for qb in range(2):
            for e in range(4):
                r = Sreg(buf, qb, kb) + e
                post = [f"v_add_f32 v{L_+4*qb}, v{L_+4*qb}, v{r}"] if add else []
                if e & 1: post.append(f"v_cvt_pk_bf16_f32 v{Preg(buf,qb)+2*kb+e//2}, v{r-1}, v{r}")
                out.append((f"v_exp_f32 v{r}, v{r}", post))
    return out

def rd(frag, base, off):
    s_ = frag % 8
    return DS(f"ds_read_b128 {v(RG_+4*s_,4)}, {base} offset:{off}", ("r", s_))

def rowred(op, x, t):
    return [f"v_mov_b32 {t}, {x}", "s_nop 1", f"v_permlane16_swap_b32 {x}, {t}", "s_nop 1", f"{op} {x}, {x}, {t}",
            f"v_mov_b32 {t}, {x}", "s_nop 1", f"v_permlane32_swap_b32 {x}, {t}", "s_nop 1", f"{op} {x}, {x}, {t}"]


ADV = [f"v_add_u32 {vVr}, 65536, {vKr}", f"v_add_u32 {vKr}, s41, {vKr}", f"v_and_b32 {vKr}, s49, {vKr}"]

def dma_clumps(k, cs):
    out = []
    for which in range(2):
        msk, base, soff = ("s48", "s43", "s46") if which == 0 else ("s39", "s44", "s47")
        for c in range(8 // cs):
            lskip = k.newlabel("nodma")
            j0 = c * cs
            L = [f"s_bitcmp1_b32 {msk}, s40", f"s_cbranch_scc0 {lskip}", f"s_add_u32 m0, {base}, {(j0 // 4)*4096}", "s_nop 0"]
            for j in range(j0, j0 + cs):
                L.append(f"buffer_load_dwordx4 {vD if j < 4 else vD2}, s[12:15], {soff} offen offset:{(j%4)*1024} sc1 lds")
            if c == 8 // cs - 1:
                L += [f"s_add_u32 {soff}, {soff}, 65536", f"s_xor_b32 {base}, {base}, 32768"]
            out.append(L + [lskip + ":"])
    return out

def p3_pieces(k, cfg, grp):
    pro = [rd(f, vKr, f*1024) for f in range(8)]
    m0 = qk(0, 0, True); m1 = qk(1, 8, True)
    zl = zero(O_, 64) + zero(L_, 8)
    fills = [[] for _ in range(32)]; pre = {}
    for p in range(16):
        pre[2*p] = [Need("ds", [("r", p % 8)])]
        if p < 8: fills[2*p+1].append(rd(p+8, vKr, (p+8)*1024))
    if cfg.get("pz") == "1": pro += zl
    else:
        for i, z in enumerate(zl): fills[i * 20 // len(zl)].append(z)
    if grp == 1:
        fills[20] += ool(k, ["s_add_u32 s36, s30, s50", "s_cmp_eq_u32 s36, 0"], "s_cbranch_scc1", maskblk(k, 0, "s36", True))
    x = [f"v{T_+2}", f"v{T_+3}"]; t = [f"v{T_+4}", f"v{T_+5}"]
    for qb in range(2):
        a = Sreg(0, qb, 0)
        ch = [f"v_max3_f32 {x[qb]}, v{a}, v{a+1}, v{a+2}", f"v_max3_f32 {x[qb]}, {x[qb]}, v{a+3}, v{a+4}",
              f"v_max3_f32 {x[qb]}, {x[qb]}, v{a+5}, v{a+6}", f"v_max_f32 {x[qb]}, {x[qb]}, v{a+7}",
              f"v_mov_b32 {t[qb]}, {x[qb]}", f"v_permlane16_swap_b32 {x[qb]}, {t[qb]}", f"v_max_f32 {x[qb]}, {x[qb]}, {t[qb]}",
              f"v_mov_b32 {t[qb]}, {x[qb]}", f"v_permlane32_swap_b32 {x[qb]}, {t[qb]}", f"v_max_f32 {x[qb]}, {x[qb]}, {t[qb]}"]
        for i, c in enumerate(ch): fills[21+i].append(c)
        fills[31] += [f"v_sub_f32 v{NM_+4*qb+e}, 0, {x[qb]}" for e in range(4)]
    pro += weave(m0 + m1, fills, pre)
    pro += ADV + cfg.get("pro_wait", lambda k, g: [])(k, grp) + ["s_barrier"] + cfg.get("pro_hook", lambda k, g: [])(k, grp) + [rd(f, vKr, f*1024) for f in range(7)]
    if grp == 0:
        pro += [DS(f"ds_write_b32 v19, v{NM_}"), DS(f"ds_write_b32 v19, v{NM_+4} offset:4")]
    for buf in range(2):
        for qb in range(2):
            a = Sreg(buf, qb, 0)
            pro += [f"v_pk_add_f32 {v(a+e,2)}, {v(a+e,2)}, {v(NM_+4*qb,2)}" for e in range(0, 8, 2)]
    el = sm_elems(0)
    pro += [e[0] for e in el] + [e[1] for e in el]
    M = qk(0, 0, False) + pv(0, 8) + qk(1, 16, False) + pv(1, 24)
    fills = [[] for _ in range(64)]; pre = {}
    def src(f):
        return (vKr, (f % 8)*1024 + (f // 16)*8192) if (f // 8) % 2 == 0 else (vVr, (f % 8)*1024 + (f // 16)*8192)
    wstep = int(cfg.get("wstep", 2))
    for p in range(32):
        if p % wstep == 0:
            pre[2*p] = [Need("ds", [("r", (p+i) % 8) for i in range(wstep)])]
    lag = int(cfg.get("lag", 0))
    for rnd in range(2):
        el = sm_elems(1 - rnd)
        for e in range(16):
            p = rnd*16 + e
            fills[2*p].append(el[e][0])
            fills[2*min(p+lag, rnd*16+15)+1] += (["s_nop 0"] if e == 15 and int(cfg.get("g3", 1)) > 1 else []) + el[e][1]
    for p in range(25):
        b, o = src(p + 7)
        fills[2*p+1].insert(0, rd(p+7, b, o))
    last = ["s_mov_b32 s41, 65536", "s_mov_b32 s49, 0x1ffff"]
    l1, l2, l3 = k.newlabel("r"), k.newlabel("r"), k.newlabel("r")
    if grp == 0:
        r32 = ["s_mov_b32 s41, 32768", "s_cmp_eq_u32 s40, 15", f"s_cbranch_scc0 {l1}"] + last + ["s_sub_u32 s36, 0, s50"] + maskblk(k, 0, "s36", True) + [l1 + ":"]
        pre[32] = ool(k, ["s_bitcmp1_b32 s31, s40"], "s_cbranch_scc1", r32) + pre[32]
    else:
        r0 = ["s_add_u32 s36, s40, 1", "s_sub_u32 s36, s36, s51", "s_cmp_lt_u32 s36, 2", f"s_cbranch_scc0 {l1}", "s_lshl_b32 s36, s36, 6",
              "s_add_u32 s36, s36, 32", "s_sub_u32 s36, s36, s50"] + maskblk(k, 1, "s36", True) + [l1 + ":"]
        pre[0] = ool(k, ["s_bitcmp1_b32 s42, s40"], "s_cbranch_scc1", r0) + pre[0]
        r32 = ["s_add_u32 s36, s40, 2", "s_sub_u32 s36, s36, s51", "s_cmp_eq_u32 s36, 1", "s_cselect_b32 s41, 0x8000, s41",
               "s_cmp_eq_u32 s40, 15", f"s_cbranch_scc0 {l2}"] + last + ["s_mov_b32 s36, 1", l2 + ":",
               "s_cmp_lt_u32 s36, 2", f"s_cbranch_scc0 {l3}", "s_lshl_b32 s36, s36, 6", "s_sub_u32 s36, s36, s50"] + maskblk(k, 0, "s36", True) + [l3 + ":"]
        pre[32] = ool(k, ["s_bitcmp1_b32 s42, s40"], "s_cbranch_scc1", r32) + pre[32]
    lr = k.newlabel("rlx")
    if cfg.get("np3"):
        lw = int(cfg["np3"])
        if grp == 0: fills[2*23+1] += ["s_add_u32 s40, s40, 1"]
        fills[2*20+1] += [f"v_add_u32 v{T_+2}, 65536, {vKr}"]; fills[2*22+1] += ADV[1:]
        fills[2*24+1] += [f"v_mov_b32 {vVr}, v{T_+2}"]
        wt = [f"s_waitcnt vmcnt(8) lgkmcnt({lw})", "s_cmp_le_u32 s40, s51", f"s_cbranch_scc1 {lr}", "s_waitcnt vmcnt(0)", lr + ":"]
        fills[2*25] += (wt if grp == 0 else [f"s_waitcnt lgkmcnt({lw})"]) + cfg.get("bar_hook", lambda k, g: [])(k, grp) + ["s_barrier"]
        for f in range(7): fills[2*(25+f)+1].insert(0, rd(f, vKr, f*1024))
    else:
        if grp == 0: fills[2*26] += ["s_add_u32 s40, s40, 1"]
        fills[2*25+1] += ADV[:2]; fills[2*26] += ADV[2:]
        bp = 26
        wt = ["s_waitcnt vmcnt(8) lgkmcnt(0)", "s_cmp_le_u32 s40, s51", f"s_cbranch_scc1 {lr}", "s_waitcnt vmcnt(0)", lr + ":"]
        fills[2*bp+1] += (wt if grp == 0 else ["s_waitcnt lgkmcnt(0)"]) + cfg.get("bar_hook", lambda k, g: [])(k, grp) + ["s_barrier"]
        nx = {27: [0, 1], 28: [2, 3], 29: [4], 30: [5], 31: [6]}
        for p, fl in nx.items():
            for f in fl: fills[2*p+1].insert(0, rd(f, vKr, f*1024))
    if grp == 0 and not cfg.get("nodma"):
        cs = int(cfg.get("cs", 4)); d0 = int(cfg.get("d0", 0)); dsp = float(cfg.get("dsp", 4))
        for c, cl in enumerate(dma_clumps(k, cs)):
            fills[2*int(d0 + c*dsp)+1] += cl
    if grp == 1: fills[int(cfg.get("btp", 24))] += cfg.get("b_inline", [])
    body = weave(M, fills, pre, int(cfg.get("g3", 1)))
    M = pv(0, 0) + pv(1, 8)
    fills = [[] for _ in range(32)]; pre = {}
    for p in range(16):
        pre[2*p] = [Need("ds", [("r", p % 8)])]
        if p + 7 < 16: fills[2*p+1].insert(0, rd(p+7, vVr, (p+7)*1024))
    el = sm_elems(1)
    for e in range(16):
        fills[e].append(el[e][0])
        fills[e+1 if e < 15 else 15] += (["s_nop 0"] if e == 15 else []) + el[e][1]
    pre[16] = ["s_nop 1"] + pre[16]
    wr = [DS(f"ds_write_b128 v5, {v(Oreg(1-grp,db),4)} offset:{db*1024}") for db in range(8)]
    for db in range(4): fills[2*(8+db+4)+1] += [wr[db]]
    extra = cfg.get("tail_extra", lambda k, g: [])(k, grp)
    for i, x in enumerate(extra): fills[16 + i * 8 // len(extra)] += x
    tail = [f"s_sub_u32 s36, {32 + 64*grp}, s50"] + maskblk(k, 1, "s36") + ["s_lshl_b32 s37, s28, 13", f"v_add_u32 v5, s37, {vL16}"] + \
           weave(M, fills, pre) + wr[4:6]
    return pro, body, tail

def lcheck(k, l):
    k.e(f"v_cmp_nge_f32 vcc, s36, {l}")
    k.e("s_nop 0")
    k.e("s_or_b64 s[52:53], s[52:53], vcc")

def ctx_base(k, sblk, add):
    k.e(f"s_lshl_b32 s38, {sblk}, 3")
    k.e("s_and_b32 s37, s28, 3")
    k.e("s_lshl_b32 s37, s37, 1")
    k.e("s_add_u32 s38, s38, s37")
    if add: k.e(f"s_add_u32 s38, s38, {add}")
    k.e("s_lshl_b32 s38, s38, 17")
    k.e("s_lshl_b32 s37, s29, 12")
    k.e("s_add_u32 s38, s38, s37")

def epi_own(k, cfg, sblk, fast):
    if fast: k.e("s_nop 4")
    else:
        for qb in range(2): k.e(rowred("v_add_f32", f"v{L_+4*qb}", f"v{T_}"))
    k.e("s_mov_b32 s36, 0x5d800000")
    for qb in range(2): lcheck(k, f"v{L_+4*qb}")
    for qb in range(2): k.e(f"v_rcp_f32 v{T_+2*qb}, v{L_+4*qb}")
    ctx_base(k, sblk, 0)
    for qb in range(2): k.e(f"v_mov_b32 v{T_+2*qb+1}, v{T_+2*qb}")
    k.e([f"v_mov_b32 v{T_+4}, {vL16}"] + hole("c", f"v{T_+4}"))
    for qb in range(2):
        for sg in range(4):
            a = Oreg(qb, 2*sg)
            k.e(pkmul(a, 8, T_+2*qb))
            for q in range(4): k.e(f"v_cvt_pk_bf16_f32 v{a+q}, v{a+2*q}, v{a+2*q+1}")
            k.e(f"buffer_store_dwordx4 {v(a,4)}, v{T_+4}, s[16:19], s38 offen offset:{sg*1024}{cfg.get('stflag','')}")
        if qb == 0: k.e(f"s_add_u32 s38, s38, {1<<17}")
    if fast: k.e(zero(L_, 8) + zero(O_, 64))

def merge(k, cfg, kh):
    T_ = 104
    t = [f"v{T_+i}" for i in range(18)]
    o = 1 - kh
    k.e(f"v_xor_b32 {t[2]}, 32768, v5")
    k.e("s_lshl_b32 s37, s28, 8")
    k.e(f"s_add_u32 s37, s37, {LDS_MSG}")
    k.e(f"v_lshl_add_u32 {t[3]}, v1, 2, s37")
    k.e(f"v_xor_b32 {t[4]}, 1024, {t[3]}")
    for db in range(6, 8):
        k.e(f"ds_write_b128 v5, {v(Oreg(o,db),4)} offset:{db*1024}")
    k.e(f"ds_write_b32 {t[3]}, v{L_+4*o}")
    k.e("s_mov_b32 s36, 0x5d800000")
    for qb in range(2): lcheck(k, f"v{L_+4*qb}")
    k.e("s_or_b32 s36, s52, s53")
    k.e(f"v_mov_b32 {t[6]}, s36")
    k.e("s_lshl_b32 s37, s28, 2")
    k.e(f"s_add_u32 s37, s37, {LDS_MSG+2048}")
    k.e(f"v_mov_b32 {t[7]}, s37")
    k.e(f"ds_write_b32 {t[7]}, {t[6]}")
    k.e(f"v_mov_b32 {t[8]}, {LDS_MSG+2112}")
    if kh == 0 and cfg.get("share"):
        for i in range(4): k.e(f"v_mov_b32 v{T_+10+i}, s{56+i}")
        k.e(f"ds_write_b128 {t[8]}, {v(T_+10,4)}")
    k.e(f"v_and_b32 {t[7]}, 7, v1")
    k.e(f"v_lshlrev_b32 {t[7]}, 2, {t[7]}")
    k.e(f"v_add_u32 {t[7]}, {LDS_MSG+2048}, {t[7]}")
    k.e([f"v_mov_b32 {t[9]}, {vL16}"] + hole("c", t[9]))
    k.e("s_sub_u32 s36, 15, s30")
    ctx_base(k, "s36", kh)
    cfg.get("before_merge", lambda k: None)(k)
    k.e("s_waitcnt lgkmcnt(0)")
    k.e("s_barrier")
    if kh == 1 and cfg.get("share"): k.e(f"ds_read_b128 {v(T_+10,4)}, {t[8]}")
    k.e(f"ds_read_b32 {t[6]}, {t[7]}")
    k.e(f"ds_read_b32 {t[5]}, {t[4]}")
    for db in range(8):
        k.e(f"ds_read_b128 {v(RG_+4*db,4)}, {t[2]} offset:{db*1024}")
    k.e("s_waitcnt lgkmcnt(8)")
    k.e(f"v_add_f32 {t[5]}, {t[5]}, v{L_+4*kh}")
    k.e(f"v_cmp_ne_u32 s[52:53], 0, {t[6]}")
    if kh == 1 and cfg.get("share"):
        for i in range(4): k.e(f"v_readfirstlane_b32 s{56+i}, v{T_+10+i}")
    k.e(f"v_rcp_f32 {t[5]}, {t[5]}")
    k.e("s_nop 0")
    k.e(f"v_mov_b32 {t[4]}, {t[5]}")
    for sg in range(4):
        k.e(f"s_waitcnt lgkmcnt({6-2*sg})")
        a = Oreg(kh, 2*sg)
        for e in range(0, 8, 2): k.e(f"v_pk_add_f32 {v(a+e,2)}, {v(a+e,2)}, {v(RG_+8*sg+e,2)}")
        k.e(pkmul(a, 8, T_+4))
        for q in range(4): k.e(f"v_cvt_pk_bf16_f32 v{P_+4*sg+q}, v{a+2*q}, v{a+2*q+1}")
        k.e(f"buffer_store_dwordx4 {v(P_+4*sg,4)}, {t[9]}, s[16:19], s38 offen offset:{sg*1024}{cfg.get('stflag','')}")

def safe_path(k, cfg, grp):
    M_ = NM_
    t = [f"v{T_+i}" for i in range(18)]
    if grp == 1:
        for r in range(32): k.e(f"v_swap_b32 v{Q_+r}, v{QS_+r}")
    for r in range(64): k.e(f"v_mov_b32 v{O_+r}, 0")
    for qb in range(2):
        k.e(f"v_mov_b32 v{L_+4*qb}, 0")
        k.e(f"v_mov_b32 v{M_+qb}, {NEGBIG}")
    k.e("s_lshl_b32 s43, s28, 12")
    k.e(f"v_add_u32 {vD}, s43, {vL16}")
    k.e(hole("k", vD))
    k.e("s_mov_b32 s46, s45")
    k.e("s_sub_u32 s40, 16, s30")
    k.e("s_sub_u32 s39, 15, s30" if grp == 0 else "s_mov_b32 s39, s30")
    k.e("s_lshl_b32 s37, s39, 7")
    k.e("s_and_b32 s36, s28, 3")
    k.e("s_lshl_b32 s36, s36, 5")
    k.e("s_add_u32 s36, s36, s37")
    k.e("s_sub_u32 s50, 0, s36")
    lt, lu, ln_ = k.newlabel("stile"), k.newlabel("sunit"), k.newlabel("snext")
    k.label(lt)
    k.e("s_waitcnt vmcnt(0) lgkmcnt(0)")
    k.e("s_barrier")
    k.e("s_mov_b32 m0, s43")
    k.e("s_add_u32 s47, s46, 32768")
    for j in range(4): k.e(f"buffer_load_dwordx4 {vD}, s[12:15], s46 offen offset:{j*1024} sc1 lds")
    k.e("s_add_u32 m0, s43, 32768")
    k.e("s_add_u32 s46, s46, 65536")
    for j in range(4): k.e(f"buffer_load_dwordx4 {vD}, s[12:15], s47 offen offset:{j*1024} sc1 lds")
    k.e(f"v_mov_b32 {vKr}, {vL16}")
    k.e("s_mov_b32 s41, 4")
    k.e("s_waitcnt vmcnt(0)")
    k.e("s_barrier")
    k.label(lu)
    k.e("s_cmp_gt_i32 s50, 0")
    k.e(f"s_cbranch_scc1 {ln_}")
    for f in range(8): k.e(f"ds_read_b128 {v(RG_+4*f,4)}, {vKr} offset:{f*1024}")
    k.e("s_waitcnt lgkmcnt(0)")
    k.e(qk(0, 0, True))
    for f in range(8): k.e(f"ds_read_b128 {v(RG_+4*f,4)}, {vKr} offset:{32768+f*1024}")
    k.e("s_nop 1")
    emit(k, maskblk(k, 0, "s50"))
    for qb in range(2):
        a = Sreg(0, qb, 0); x = t[2+qb]
        k.e([f"v_max3_f32 {x}, v{a}, v{a+1}, v{a+2}", f"v_max3_f32 {x}, {x}, v{a+3}, v{a+4}",
             f"v_max3_f32 {x}, {x}, v{a+5}, v{a+6}", f"v_max3_f32 {x}, {x}, v{a+7}, v{M_+qb}"])
        k.e(rowred("v_max_f32", x, t[4]))
        k.e(f"v_sub_f32 {t[5]}, v{M_+qb}, {x}")
        k.e(f"v_exp_f32 {t[5]}, {t[5]}")
        k.e(f"v_mov_b32 v{M_+qb}, {x}")
        k.e(f"v_mul_f32 v{L_+4*qb}, v{L_+4*qb}, {t[5]}")
        for r in range(32): k.e(f"v_mul_f32 v{Oreg(qb,0)+r}, v{Oreg(qb,0)+r}, {t[5]}")
        for e in range(8): k.e(f"v_sub_f32 v{a+e}, v{a+e}, {x}")
    el = sm_elems(0, True)
    for e in range(16): k.e(el[e][0])
    for e in range(16): k.e(el[e][1])
    k.e("s_waitcnt lgkmcnt(0)")
    k.e("s_nop 0")
    k.e(pv(0, 0, False))
    k.label(ln_)
    k.e(f"v_add_u32 {vKr}, 8192, {vKr}")
    k.e("s_add_u32 s50, s50, 32")
    k.e("s_sub_u32 s41, s41, 1")
    k.e("s_cmp_lg_u32 s41, 0")
    k.e(f"s_cbranch_scc1 {lu}")
    k.e("s_sub_u32 s40, s40, 1")
    k.e("s_cmp_lg_u32 s40, 0")
    k.e(f"s_cbranch_scc1 {lt}")
    epi_own(k, cfg, "s39", False)

def gen_p3(k, cfg, grp, st, after_q=None, before_tail=None):
    n0 = st.n
    q_pack(k, grp, cfg.get('qwait', 0))
    if after_q: after_q(k, grp)
    st.mark()
    pro, body, tail = p3_pieces(k, cfg, grp)
    sw = []
    if grp == 1:
        sw = [f"v_swap_b32 v{Q_+r}, v{QS_+r}" for r in range(32)]
        sw += [f"v_mov_b32 v{NM_+r}, v{14+r//4}" for r in range(8)] + ["s_nop 1"]
    resolve([[pro, body, body, body, tail], [pro, body, sw, body, body, tail]])
    if cfg.get("prio") and grp == int(cfg["prio"]) - 1: k.e("s_setprio 1")
    emit(k, pro)
    st.mark()
    if cfg.get("bwait"): k.e("s_mov_b32 s98, 0")
    lb = f"L_body{grp}"
    k.align(6)
    k.label(lb)
    emit(k, body)
    if grp == 1:
        ke = K(k.name + "_epi")
        epi_own(ke, cfg, "s30", True)
        l1, l2, l3 = k.newlabel("nm"), k.newlabel("ns"), k.newlabel("ne")
        post = ["s_cmp_eq_u32 s40, 0", f"s_cbranch_scc0 {l1}", "ds_read_b64 v[14:15], v19", "s_waitcnt lgkmcnt(0)", l1 + ":"]
        post += cfg.get("b_hook", lambda k: [])(k)
        post += ["s_add_u32 s36, s40, 1", "s_cmp_eq_u32 s36, s51", f"s_cbranch_scc0 {l2}"] + sw + [l2 + ":"]
        post += ["s_cmp_eq_u32 s40, s51", f"s_cbranch_scc0 {l3}"] + [x.strip() for x in ke.lines] + [l3 + ":"]
        emit(k, ool(k, ["s_bitcmp1_b32 s42, s40"], "s_cbranch_scc1", post))
        k.e("s_add_u32 s40, s40, 1")
    k.e("s_cmp_lg_u32 s40, 16")
    k.e(f"s_cbranch_scc1 {lb}")
    st.mark()
    if cfg.get("bwait"):
        st.mark()
        k.e(f"s_add_u32 s{st.base+2*st.n-2}, s{st.base+2*st.n-4}, s98")
    if before_tail: before_tail(k, grp)
    emit(k, tail)
    st.mark()
    merge(k, cfg, grp)
    st.mark()
    k.e("s_cmp_eq_u64 s[52:53], 0")
    k.e("s_cbranch_scc1 L_p3_done")
    if cfg.get("dbgsafe"):
        k.e("s_load_dwordx2 s[20:21], s[0:1], 96")
        k.e("s_waitcnt lgkmcnt(0)")
        k.e("v_mov_b32 v20, 0"); k.e("v_mov_b32 v21, 1")
        k.e("s_mov_b64 exec, 1")
        k.e("global_atomic_add v20, v21, s[20:21]")
        k.e("s_mov_b64 exec, -1")
    k.e("s_waitcnt vmcnt(0)")
    for r in range(8): k.e(f"v_mov_b32 v{S_+16+r}, v{S_+r}")
    safe_path(k, cfg, grp)
    for r in range(8): k.e(f"v_mov_b32 v{S_+r}, v{S_+16+r}")
    if grp == 0: st.n = n0

def gen_attn(cfg=None):
    cfg = cfg or {}
    k = K("attn_kernel")
    k.e("s_cmp_ge_u32 s2, 256")
    k.e("s_cbranch_scc1 L_attn_end")
    st = Stamps(k, cfg.get("stamp"), kid=1)
    st.mark()
    k.e("s_load_dwordx2 s[50:51], s[0:1], 16")
    k.e("s_load_dwordx2 s[54:55], s[0:1], 104")
    k.e("v_and_b32 v1, 63, v0")
    k.e("v_lshrrev_b32 v16, 6, v0")
    k.e("s_and_b32 s29, s2, 7")
    k.e("v_readfirstlane_b32 s28, v16")
    k.e("s_lshl_b32 s29, s29, 2")
    k.e("s_bfe_u32 s36, s2, 0x20003")
    k.e("s_add_u32 s29, s29, s36")
    k.e("s_lshr_b32 s30, s2, 5")
    p2_setup(k)
    k.e("s_waitcnt lgkmcnt(0)")
    srd(k, 4, 54, 4194304)
    srd(k, 8, 50, 8388608)
    pro, pro2, kvpre, body = p2_pieces(cfg)
    resolve([[pro, pro2, body, body, body, kvpre, body]])
    emit(k, pro)
    srd(k, 12, 54, 33554432, WS_KV)
    srd(k, 16, 54, 16777216, WS_CTX)
    p2_setup2(k)
    st.mark()
    emit(k, pro2)
    st.mark()
    k.align(6)
    k.label("L_p2_loop")
    k.e("s_cmp_lg_u32 s35, 3")
    k.e("s_cbranch_scc1 L_p2_nokv")
    emit(k, kvpre)
    k.label("L_p2_nokv")
    emit(k, body)
    k.e("s_add_u32 s35, s35, 1")
    k.e("s_cmp_lt_u32 s35, 4")
    k.e("s_cbranch_scc1 L_p2_loop")
    st.mark()
    k.e("s_cmp_lt_u32 s28, 4")
    k.e("s_cbranch_scc0 L_grp1")
    gen_p3(k, cfg, 0, st)
    k.e("s_branch L_p3_done")
    flush_ool(k)
    k.label("L_grp1")
    gen_p3(k, cfg, 1, st)
    k.e("s_branch L_p3_done")
    flush_ool(k)
    k.label("L_p3_done")
    st.dump(54, "s28")
    k.label("L_attn_end")
    return wrap(k, 256)
```

```python
from lib import *

WS_XN  = 0
WS_ST  = 4 << 20
WS_R   = (4 << 20) + 65536
WS_KV  = 8 << 20
WS_CTX = 40 << 20
WS_PRE = 56 << 20
WS_YP  = 57 << 20
WS_IDX = 58 << 20

MF = "v_mfma_f32_16x16x32_bf16"

def wave_sum(k, x, t, sd):
    for m in ["quad_perm:[1,0,3,2]", "quad_perm:[2,3,0,1]", "row_half_mirror", "row_mirror"]:
        k.e("s_nop 1")
        k.e(f"v_add_f32_dpp {x}, {x}, {x} {m} row_mask:0xf bank_mask:0xf")
    k.e("s_nop 0")
    for q in range(4):
        k.e(f"v_readlane_b32 s{sd+q}, {x}, {16*q}")
    k.e(f"v_mov_b32 {t}, s{sd}")
    k.e(f"v_add_f32 {t}, s{sd+1}, {t}")
    k.e(f"v_add_f32 {t}, s{sd+2}, {t}")
    k.e(f"v_add_f32 {t}, s{sd+3}, {t}")

def rbf(k, x):
    k.e(f"v_cvt_pk_bf16_f32 {x}, {x}, {x}")
    k.e(f"v_lshlrev_b32 {x}, 16, {x}")

def interleave(k, mfmas, fills):
    for i, m in enumerate(mfmas):
        k.e(m)
        if i < len(fills):
            for f in fills[i]: k.e(f)
    for f in fills[len(mfmas):]:
        for x in f: k.e(x)

WS_STAMP = 60 << 20
class Stamps:
    def __init__(self, k, on, base=64, kid=0):
        self.k, self.on, self.base, self.n, self.kid = k, on, base, 0, kid
    def mark(self, real=False):
        if not self.on: return
        if real: return
        b = self.base + 2*self.n
        assert b + 1 < 88
        self.k.e(f"s_memtime s[{b}:{b+1}]")
        self.k.e(f"s_memrealtime s[100:101]")
        self.k.e("s_waitcnt lgkmcnt(0)")
        self.k.e(f"s_mov_b32 s{b+1}, s100")
        self.n += 1
    def hist(self, n, first=True):
        if not self.on: return []
        if first: self.h0 = self.n; self.n += n
        b = self.base + 2*self.h0
        assert b + 2*n < 88
        L = [f"s_mov_b64 s[{b+2*i}:{b+2*i+1}], s[{b+2*i+2}:{b+2*i+3}]" for i in range(n-1)]
        e = b + 2*(n-1)
        return L + [f"s_memtime s[{e}:{e+1}]", "s_memrealtime s[100:101]", "s_waitcnt lgkmcnt(0)", f"s_mov_b32 s{e+1}, s100"]
    def dump(self, wsbase, swave):
        if not self.on: return
        k = self.k
        k.e("s_waitcnt vmcnt(0) lgkmcnt(0)")
        self.mark(); self.mark(real=True)
        k.e(f"s_add_u32 s60, s{wsbase}, {WS_STAMP + self.kid*(1<<20)}")
        k.e(f"s_addc_u32 s61, s{wsbase+1}, 0")
        k.e("s_and_b32 s61, s61, 0xffff")
        k.e("s_mov_b32 s62, 0x100000")
        k.e("s_mov_b32 s63, 0x20000")
        k.e("s_lshl_b32 s100, s2, 3")
        k.e(f"s_add_u32 s100, s100, {swave}")
        k.e("s_lshl_b32 s100, s100, 8")
        k.e("s_getreg_b32 s101, hwreg(HW_REG_XCC_ID)")
        k.e("v_mov_b32 v2, 0")
        k.e("s_mov_b64 exec, 1")
        for i in range(2*self.n):
            k.e(f"v_mov_b32 v3, s{self.base+i}")
            k.e(f"buffer_store_dword v3, v2, s[60:63], s100 offen offset:{4*i}")
        k.e("v_mov_b32 v3, s101")
        k.e(f"buffer_store_dword v3, v2, s[60:63], s100 offen offset:252")
        k.e(f"v_mov_b32 v3, {0x5a5a00 + self.n}")
        k.e(f"buffer_store_dword v3, v2, s[60:63], s100 offen offset:248")
        k.e("s_mov_b64 exec, -1")

Z64 = [True]
def zero(r0, n):
    if Z64[0]: return [f"v_mov_b64 v[{r}:{r+1}], 0" for r in range(r0, r0+n, 2)]
    return [f"v_mov_b32 v{r}, 0" for r in range(r0, r0+n)]

def pkmul(a, n, f):
    assert f % 2 == 0
    return [f"v_pk_mul_f32 v[{r}:{r+1}], v[{r}:{r+1}], v[{f}:{f+1}]" for r in range(a, a+n, 2)]

def ladder(fills, start, n, on, levels=(3, 2, 1, 0)):
    if not on: return
    for i, p in enumerate(levels):
        fills[(start + i * n // len(levels)) % len(fills)].append(f"s_setprio {p}")

DELTA = (96 << 20) + 128
HOLE = [""]
def hole(key, *regs):
    if key not in HOLE[0]: return []
    return ["s_mov_b32 exec_lo, 0xff000000", "s_mov_b32 exec_hi, 0"] + [f"v_add_u32 {r}, {DELTA}, {r}" for r in regs] + ["s_mov_b64 exec, -1", "s_nop 3"]
```

```python
from common import *
import attn as A
import ffn as F

WS_CNT = 59 << 20
CNT_KV, CNT_CTX, CNT_F1, CNT_F2, CNT_KV0, CNT_EX, CNT_LN = 0, 32, 48, 96, 64, 128, 112
WS_EX = 64 << 20
SC = " sc1"
LDS_X = 131072

def NT(cfg, key):
    return " nt" if key in cfg.get("nt", "") else ""

def lines(fn, *a, **kw):
    t = K("tmp"); fn(t, *a, **kw); return [x.strip() for x in t.lines]

def signal(saddr_pair, off, t0, t1):
    return [f"v_mov_b32 {t0}, {off}", f"v_mov_b32 {t1}, 1", "s_mov_b64 exec, 1",
            f"global_atomic_add {t0}, {t1}, {saddr_pair}", "s_mov_b64 exec, -1", "s_nop 3"]

def switch(k, sreg, cases):
    L = []
    lend = k.newlabel("swend")
    for i, (val, items) in enumerate(cases):
        if i + 1 < len(cases):
            ln = k.newlabel("swn")
            L += [f"s_cmp_eq_u32 {sreg}, {val}", f"s_cbranch_scc0 {ln}"] + items + [f"s_branch {lend}", ln + ":"]
        else:
            L += items
    return L + [lend + ":"]

def guard(k, cond, br, items, key):
    l = k.newlabel("g")
    return Alt(cond + [f"{br} {l}"] + items + [l + ":"], lambda c: items if c[key] else [])

def spin(k, saddr, voff, vtmp, target, slp=8):
    l, le = k.newlabel("spin"), k.newlabel("spinx")
    return ["s_mov_b32 s61, 0x40000", l + ":", "s_sub_u32 s61, s61, 1", f"s_cbranch_scc1 {le}", f"s_sleep {slp}",
            f"global_load_dword {vtmp}, {voff}, {saddr} sc1", "s_waitcnt vmcnt(0)",
            f"v_readfirstlane_b32 s36, {vtmp}", "s_nop 0", f"s_cmp_lt_u32 s36, {target}", f"s_cbranch_scc1 {l}", le + ":"]

def check(k, saddr, voff, vtmp, target, slp=8):
    return A.ool(k, [f"v_readfirstlane_b32 s36, {vtmp}", "s_nop 0", f"s_cmp_lt_u32 s36, {target}"], "s_cbranch_scc1",
                 spin(k, saddr, voff, vtmp, target, slp))

def ln_check(k):
    l, le = k.newlabel("lspin"), k.newlabel("lspinx")
    return ["s_mov_b32 s61, 0x40000", l + ":", "v_cmp_gt_u32 vcc, 16, v116", "s_nop 0", "s_cmp_eq_u64 vcc, 0",
            f"s_cbranch_scc1 {le}", "s_sub_u32 s61, s61, 1", f"s_cbranch_scc1 {le}", "s_sleep 8",
            "global_load_dword v116, v117, s[90:91] sc1", "s_waitcnt vmcnt(0)", f"s_branch {l}", le + ":"]

def ln_row(X, XO, WR, Fr, T, SB, srow, sslot):
    k = K("t")
    t = [f"v{T+i}" for i in range(8)]
    for i in range(8):
        k.e(f"v_lshlrev_b32 v{Fr+2*i}, 16, v{X+i}")
        k.e(f"v_and_b32 v{Fr+2*i+1}, 0xffff0000, v{X+i}")
    P = lambda r: v(r, 2)
    k.e(f"v_pk_add_f32 {P(T)}, {P(Fr)}, {P(Fr+2)}")
    for i in range(2, 8): k.e(f"v_pk_add_f32 {P(T)}, {P(T)}, {P(Fr+2*i)}")
    k.e(f"v_add_f32 {t[0]}, {t[0]}, {t[1]}")
    wave_sum(k, t[0], t[4], SB)
    k.e(f"v_mul_f32 {t[4]}, 0xba800000, {t[4]}")
    k.e(f"v_mov_b32 {t[5]}, {t[4]}")
    for i in range(8):
        k.e(f"v_pk_add_f32 {P(T+2)}, {P(Fr+2*i)}, {P(T+4)}")
        k.e(f"v_pk_mul_f32 {P(T)}, {P(T+2)}, {P(T+2)}" if i == 0 else f"v_pk_fma_f32 {P(T)}, {P(T+2)}, {P(T+2)}, {P(T)}")
    k.e(f"v_add_f32 {t[0]}, {t[0]}, {t[1]}")
    wave_sum(k, t[0], t[2], SB)
    k.e(f"v_mul_f32 {t[2]}, 0x3a800000, {t[2]}")
    k.e(f"v_cvt_pk_bf16_f32 {t[3]}, {t[4]}, {t[2]}")
    k.e(f"v_lshlrev_b32 {t[4]}, 16, {t[3]}")
    k.e(f"v_and_b32 {t[2]}, 0xffff0000, {t[3]}")
    k.e(f"v_add_f32 {t[2]}, 0x3727c5ac, {t[2]}")
    rbf(k, t[2])
    k.e(f"v_sqrt_f32 {t[2]}, {t[2]}")
    k.e(f"v_mov_b32 {t[5]}, {t[4]}")
    rbf(k, t[2])
    k.e(f"v_rcp_f32 {t[7]}, {t[2]}")
    k.e("s_nop 0")
    k.e(f"v_fma_f32 {t[3]}, -{t[2]}, {t[7]}, 1.0")
    k.e(f"v_fma_f32 {t[7]}, {t[3]}, {t[7]}, {t[7]}")
    k.e(f"v_mov_b32 {t[6]}, {t[7]}")
    for i in range(8):
        a, b = f"v{Fr+2*i}", f"v{Fr+2*i+1}"
        k.e(f"v_pk_add_f32 {P(Fr+2*i)}, {P(Fr+2*i)}, {P(T+4)}")
        k.e(f"v_cvt_pk_bf16_f32 {t[2]}, {a}, {b}")
        k.e(f"v_lshlrev_b32 {a}, 16, {t[2]}")
        k.e(f"v_and_b32 {b}, 0xffff0000, {t[2]}")
        k.e(f"v_pk_mul_f32 {P(Fr+2*i)}, {P(Fr+2*i)}, {P(T+6)}")
        k.e(f"v_cvt_pk_bf16_f32 v{XO+i}, {a}, {b}")
        k.e(f"v_lshlrev_b32 {a}, 16, v{XO+i}")
        k.e(f"v_and_b32 {b}, 0xffff0000, v{XO+i}")
        k.e(f"v_pk_mul_f32 {P(T)}, {P(Fr)}, {P(WR)}" if i == 0 else f"v_pk_fma_f32 {P(T)}, {P(Fr+2*i)}, {P(WR+2*i)}, {P(T)}")
    k.e(f"v_add_f32 {t[0]}, {t[0]}, {t[1]}")
    k.e(f"v_xor_b32 {t[6]}, 0x80000000, {t[4]}")
    k.e(f"s_mul_i32 s{SB}, {sslot}, 2064")
    k.e(f"s_add_u32 s{SB}, s{SB}, {LDS_X}")
    k.e(f"v_lshl_add_u32 {t[3]}, v1, 4, s{SB}")
    k.e(f"ds_write_b128 {t[3]}, {v(XO,4)}")
    k.e(f"ds_write_b128 {t[3]}, {v(XO+4,4)} offset:1024")
    wave_sum(k, t[0], t[1], SB)
    rbf(k, t[1])
    k.e(f"v_ashrrev_i32 {t[3]}, 31, {t[1]}")
    k.e(f"v_or_b32 {t[3]}, 0x80000000, {t[3]}")
    k.e(f"v_xor_b32 {t[3]}, {t[1]}, {t[3]}")
    k.e(f"v_and_b32 {t[3]}, 0xffff0000, {t[3]}")
    k.e(f"s_sub_u32 s{SB}, 0xffff, {srow}")
    k.e(f"v_or_b32 {t[3]}, s{SB}, {t[3]}")
    k.e(f"s_lshl_b32 s{SB+1}, {sslot}, 3")
    k.e(f"s_add_u32 s{SB+1}, s{SB+1}, {LDS_X + 16640}")
    k.e(f"v_mov_b32 {t[2]}, s{SB+1}")
    k.e(f"ds_write_b64 {t[2]}, {v(T+6,2)}")
    k.e(f"ds_write_b32 {t[2]}, {t[3]} offset:64")
    return [x.strip() for x in k.lines]

def zip2(a, b):
    out = []
    for x, y in zip(a, b):
        if x == "s_nop 0": continue
        if x == "s_nop 1": out.append("s_nop 0"); continue
        out += [x, y]
    return out

def ln_part3(T):
    t = [f"v{T+i}" for i in range(8)]
    L = [f"v_and_b32 {t[0]}, 7, v1", f"v_lshlrev_b32 {t[0]}, 3, {t[0]}", f"v_add_u32 {t[1]}, {LDS_X + 16640}, {t[0]}",
         f"ds_read_b64 {v(T+2,2)}, {t[1]}", f"ds_read_b32 {t[4]}, {t[1]} offset:64",
         "s_lshl_b32 s36, s2, 6", f"s_add_u32 s36, s36, {WS_ST}", "s_lshl_b32 s37, s2, 3", f"s_add_u32 s37, s37, {F.WS_KEY}",
         "s_waitcnt lgkmcnt(0)", f"v_mov_b32 {t[6]}, {t[4]}"]
    red = lambda x: flat([["s_nop 1", f"v_max_u32_dpp {x}, {x}, {x} {m} row_mask:0xf bank_mask:0xf"]
                          for m in ("quad_perm:[1,0,3,2]", "quad_perm:[2,3,0,1]", "row_half_mirror")])
    L += red(t[6]) + [f"v_cmp_eq_u32 vcc, {t[6]}, {t[4]}", "s_nop 1", f"v_cndmask_b32 {t[7]}, {t[4]}, v118, vcc"] + red(t[7])
    L += ["s_mov_b64 exec, 0xff", f"buffer_store_dwordx2 {v(T+2,2)}, {t[0]}, s[24:27], s36 offen{SC}",
          "s_mov_b64 exec, 1", f"buffer_store_dwordx2 {v(T+6,2)}, {t[0]}, s[24:27], s37 offen{SC}", "s_mov_b64 exec, -1", "s_nop 3"]
    return L

def ln_part2(k, X):
    t = ["v16", "v18", "v19"]
    k.e(f"v_and_b32 {t[0]}, 7, v1")
    k.e(f"v_lshrrev_b32 {t[1]}, 3, v1")
    k.e(f"v_mul_u32_u24 {t[2]}, 2064, {t[0]}")
    k.e(f"v_lshl_add_u32 {t[2]}, {t[1]}, 4, {t[2]}")
    k.e("s_lshl_b32 s36, s28, 8")
    k.e(f"s_add_u32 s36, s36, {LDS_X}")
    k.e(f"v_add_u32 {t[2]}, s36, {t[2]}")
    k.e(f"ds_read_b128 {v(X,4)}, {t[2]}")
    k.e(f"ds_read_b128 {v(X+4,4)}, {t[2]} offset:128")
    k.e(f"v_lshlrev_b32 {t[0]}, 4, {t[0]}")
    k.e(f"v_lshl_add_u32 {t[0]}, {t[1]}, 8, {t[0]}")
    k.e("s_lshr_b32 s36, s2, 1")
    k.e("s_lshl_b32 s36, s36, 15")
    k.e("s_and_b32 s37, s2, 1")
    k.e("s_lshl_b32 s37, s37, 7")
    k.e("s_add_u32 s36, s36, s37")
    k.e("s_lshl_b32 s37, s28, 12")
    k.e("s_add_u32 s36, s36, s37")
    if "x" in HOLE[0]:
        k.e("s_bitcmp1_b32 s2, 0")
        k.e(f"s_cselect_b32 s37, {DELTA}, 0")
        k.e("s_mov_b32 exec_lo, 0xff00")
        k.e("s_mov_b32 exec_hi, 0xff00")
        k.e(f"v_add_u32 {t[0]}, s37, {t[0]}")
        k.e("s_mov_b64 exec, -1")
    k.e("s_waitcnt lgkmcnt(0)")
    k.e(f"buffer_store_dwordx4 {v(X,4)}, {t[0]}, s[24:27], s36 offen{SC}")
    k.e(f"buffer_store_dwordx4 {v(X+4,4)}, {t[0]}, s[24:27], s36 offen offset:2048{SC}")

KP = 128
WF = 64
XF = [24, 96]
def xld2(xs, s_):
    return [VM(f"buffer_load_dwordx4 {v(XF[xs]+(s_*2+rb)*4,4)}, v{6+rb}, s[8:11], s32 offen offset:{s_*1024}{SC}", ("x", xs, s_)) for rb in range(2)]
vPOLL = "v56"
vZ = "v57"

def code_touch(k, a, dst):
    l = k.newlabel("pc")
    return ["s_getpc_b64 s[36:37]", l + ":", f"s_sub_u32 s36, s36, {l}-L_pc", "s_subb_u32 s37, s37, 0",
            "s_lshr_b32 s38, s2, 3", "s_lshl_b32 s38, s38, 7", f"v_lshl_add_u32 v{a}, v1, 12, s38", f"v_min_u32 v{a}, L_end-L_pc-4, v{a}",
            f"v_mov_b32 v{a+1}, s37", f"v_add_co_u32 v{a}, vcc, s36, v{a}", "s_mov_b64 exec, 0xffff", "s_nop 0",
            f"v_addc_co_u32 v{a+1}, vcc, 0, v{a+1}, vcc", f"global_load_dword {dst}, v[{a}:{a+1}], off", "s_mov_b64 exec, -1", "s_nop 1"]

def p1_retarget(cfg):
    L = ["v_lshrrev_b32 v3, 4, v1", "s_lshl_b32 s37, s28, 4", "v_add_u32 v19, s37, v3", "v_lshlrev_b32 v19, 13, v19",
         "s_lshl_b32 s37, s29, 8", "v_add_u32 v19, s37, v19", "v_and_b32 v16, 15, v1", "v_lshlrev_b32 v3, 1, v3",
         "v_xor_b32 v16, v16, v3", "v_lshl_add_u32 v2, v16, 4, v19", f"v_add_u32 v3, {32768-1024}, v2",
         "v_xor_b32 v16, 8, v16", "v_lshl_add_u32 v4, v16, 4, v19", f"v_add_u32 v4, {2*(32768-1024)}, v4",
         f"v_add_u32 v5, {32768-1024}, v4"]
    L += lines(srd, 4, 96, 8388608)
    L += ["s_mov_b32 s31, 0", f"s_mov_b32 s40, {128*8192}", "s_mov_b64 s[8:9], s[4:5]", "s_mov_b32 s10, s6", f"s_mov_b32 s32, {2*128*8192}"]
    L += [f"v_mov_b32 v{6+j}, v{2+j}" for j in range(4)]
    return L

def warm(w):
    return ["s_lshl_b32 s36, s2, 13", f"s_lshl_b32 s37, {w}, 11", "s_add_u32 s36, s36, s37", "v_lshl_add_u32 v16, v1, 7, s36",
            f"s_cmp_lt_u32 {w}, 2", "s_cselect_b64 s[38:39], s[48:49], s[50:51]",
            "s_lshr_b32 s36, s2, 3", "s_lshl_b32 s36, s36, 1", f"s_and_b32 s37, {w}, 1", "s_add_u32 s36, s36, s37", "s_lshl_b32 s36, s36, 16",
            "s_and_b32 s37, s29, 28", "s_lshl_b32 s37, s37, 8", "s_add_u32 s36, s36, s37",
            "s_sub_u32 s37, 256, s38", "s_and_b32 s37, s37, 0x300", "s_add_u32 s36, s36, s37", "v_lshrrev_b32 v18, 1, v1", "v_lshl_add_u32 v18, v18, 13, s36",
            "v_and_b32 v19, 1, v1", "v_lshl_add_u32 v18, v19, 7, v18",
            "s_mov_b64 exec, 0xffff", "global_load_dword v0, v16, s[46:47]", "global_load_dword v0, v18, s[38:39]", "s_mov_b64 exec, -1"]

W1 = []
def p1(k, cfg, st):
    cp = cfg.get("cp", "0")
    ACC = 128
    FR = [20, 68]
    XA, XB, WP, WR = 20, 28, 36, 44
    k.e("s_load_dwordx4 s[44:47], s[0:1], 0")
    k.e("s_load_dwordx2 s[52:53], s[0:1], 56")
    k.e("s_load_dwordx4 s[48:51], s[0:1], 24")
    k.e("s_getpc_b64 s[36:37]")
    k.label("L_pc")
    k.e("s_lshr_b32 s38, s2, 3")
    k.e("s_lshl_b32 s38, s38, 7")
    k.e("v_lshl_add_u32 v16, v0, 12, s38")
    k.e("v_cmp_gt_u32 vcc, L_end-L_pc-4, v16")
    k.e("v_mov_b32 v17, s37")
    k.e("s_and_b64 exec, exec, vcc")
    k.e("s_cbranch_execz L_nocpf")
    k.e("v_add_co_u32 v16, vcc, s36, v16")
    k.e("s_nop 1")
    k.e("v_addc_co_u32 v17, vcc, 0, v17, vcc")
    if not cfg.get("nocpf"): k.e("global_load_dword v119, v[16:17], off")
    k.label("L_nocpf")
    k.e("s_mov_b64 exec, -1")
    k.e("v_lshrrev_b32 v16, 6, v0")
    k.e("v_and_b32 v1, 63, v0")
    k.e("v_readfirstlane_b32 s28, v16")
    k.e("v_lshlrev_b32 v116, 4, v1")
    k.e("s_lshl_b32 s42, s2, 3")
    k.e("s_cmp_lt_u32 s28, 4")
    k.e("s_cbranch_scc1 L_nox")
    k.e("s_add_u32 s43, s42, s28")
    k.e("s_sub_u32 s42, s43, 4")
    k.e("v_lshl_add_u32 v18, s42, 11, v116")
    k.e("v_add_u32 v19, 8192, v18")
    k.e("s_waitcnt lgkmcnt(0)")
    for X_, a_ in ((XA, "v18"), (XB, "v19")):
        k.e(f"global_load_dwordx4 {v(X_,4)}, {a_}, s[44:45]{NT(cfg, 'x')}")
        k.e(f"global_load_dwordx4 {v(X_+4,4)}, {a_}, s[44:45] offset:1024{NT(cfg, 'x')}")
    k.e(f"global_load_dwordx4 {v(WP,4)}, v116, s[52:53]")
    k.e(f"global_load_dwordx4 {v(WP+4,4)}, v116, s[52:53] offset:1024")
    if not cfg.get("nob0"): k.e("s_barrier")
    k.label("L_nox")
    k.e("s_load_dwordx4 s[88:91], s[0:1], 96")
    k.e("s_load_dwordx4 s[92:95], s[0:1], 64")
    k.e("s_load_dwordx2 s[96:97], s[0:1], 16")
    if cfg.get("evn"):
        k.e("s_and_b32 s29, s2, 7")
        k.e("s_lshl_b32 s29, s29, 2")
        k.e(f"s_lshr_b32 s29, {cfg['evn']}, s29")
        k.e("s_and_b32 s29, s29, 7")
    else:
        k.e("s_and_b32 s29, s2, 7")
    k.e("s_lshl_b32 s29, s29, 2")
    k.e("s_bfe_u32 s36, s2, 0x20003")
    k.e("s_add_u32 s29, s29, s36")
    k.e("s_lshr_b32 s30, s2, 5")
    k.e("v_lshrrev_b32 v16, 3, v1")
    k.e("s_lshl_b32 s36, s30, 8")
    k.e("s_lshl_b32 s37, s28, 5")
    k.e("s_add_u32 s36, s36, s37")
    k.e("v_add_u32 v16, s36, v16")
    k.e("v_lshlrev_b32 v16, 10, v16")
    k.e("v_lshrrev_b32 v18, 4, v1")
    k.e("v_and_b32 v19, 7, v1")
    k.e("v_xor_b32 v19, v19, v18")
    k.e("v_lshl_add_u32 v2, v19, 4, v16")
    k.e("v_xor_b32 v19, 4, v19")
    k.e("v_lshl_add_u32 v3, v19, 4, v16")
    k.e(f"v_add_u32 v3, {8192-1024}, v3")
    k.e(f"v_add_u32 v4, {2*(8192-1024)}, v2")
    k.e(f"v_add_u32 v5, {2*(8192-1024)}, v3")
    k.e("s_and_b32 s36, s28, 3")
    k.e("s_lshl_b32 s37, s36, 4")
    k.e("v_add_u32 v16, s37, v18")
    k.e("v_lshlrev_b32 v16, 13, v16")
    k.e("s_lshl_b32 s37, s29, 8")
    k.e("v_add_u32 v16, s37, v16")
    k.e("v_and_b32 v19, 15, v1")
    k.e("v_lshlrev_b32 v18, 1, v18")
    k.e("v_xor_b32 v19, v19, v18")
    k.e("v_lshl_add_u32 v6, v19, 4, v16")
    k.e(f"v_add_u32 v7, {32768-1024}, v6")
    k.e("v_xor_b32 v19, 8, v19")
    k.e("v_lshl_add_u32 v8, v19, 4, v16")
    k.e(f"v_add_u32 v8, {2*(32768-1024)}, v8")
    k.e(f"v_add_u32 v9, {32768-1024}, v8")
    k.e("s_lshl_b32 s33, s28, 12")
    k.e("s_add_u32 s34, s33, 65536")
    k.e("s_mov_b32 s31, 0")
    k.e("s_mov_b32 s32, 0")
    k.e("s_mov_b32 s40, 128")
    k.e(f"s_mov_b32 s41, {64*8192}")
    def dma_list(stage):
        c = [f"buffer_load_dwordx4 v{2+j}, s[4:7], s31 offen offset:{j*1024}{NT(cfg, 'c')} lds" for j in range(4)]
        w = [f"buffer_load_dwordx4 v{6+j}, s[8:11], s32 offen offset:{j*1024}{NT(cfg, 'w')} lds" for j in range(4)]
        return f"s_add_u32 m0, s33, {stage*32768}", c, f"s_add_u32 m0, s34, {stage*32768}", w
    def dma_both(stage):
        mc, c, mw, w = dma_list(stage)
        k.e(mc); k.e(f"s_add_u32 s36, s31, {128*1024}"); k.e(c)
        k.e(mw); k.e("s_nop 0"); k.e(w)
        k.e(f"s_add_u32 m0, s33, {stage*32768+16384}"); k.e("s_nop 0"); k.e([x.replace("s31", "s36") for x in c])
        k.e(f"s_add_u32 m0, s34, {stage*32768+16384}"); k.e("s_nop 0"); k.e([x.replace("s[8:11]", "s[20:23]") for x in w])
        k.e("s_add_u32 s31, s31, s40")
        k.e("s_add_u32 s32, s32, s41")
    def setup_rest():
        k.e(f"s_add_u32 s54, s90, {int(cfg.get('wsoff', 0)) << 20}")
        k.e("s_addc_u32 s55, s91, 0")
        srd(k, 12, 54, 33554432 + DELTA, WS_KV)
        srd(k, 24, 54, (80 << 20) + DELTA)
        k.e(f"s_add_u32 s90, s54, {WS_CNT}")
        k.e("s_addc_u32 s91, s55, 0")
        k.e("v_and_b32 v16, 15, v1")
        k.e("v_lshrrev_b32 v17, 4, v1")
        k.e("s_bfe_u32 s36, s28, 0x10001")
        k.e("s_lshl_b32 s36, s36, 14")
        k.e("v_lshl_add_u32 v18, v16, 7, s36")
        k.e("v_lshrrev_b32 v19, 1, v16")
        k.e("v_xor_b32 v19, v19, v17")
        k.e("v_lshl_add_u32 v10, v19, 4, v18")
        k.e("v_xor_b32 v19, 4, v19")
        k.e("v_lshl_add_u32 v11, v19, 4, v18")
        k.e("v_lshrrev_b32 v16, 2, v16")
        k.e("v_lshl_add_u32 v18, v17, 3, v16")
        k.e("v_lshlrev_b32 v18, 8, v18")
        k.e("s_lshr_b32 s36, s28, 2")
        k.e("s_lshl_b32 s36, s36, 14")
        k.e("s_add_u32 s36, s36, 65536")
        k.e("v_add_u32 v18, s36, v18")
        k.e("v_and_b32 v19, 3, v1")
        k.e("v_lshl_add_u32 v18, v19, 3, v18")
        k.e("v_and_b32 v17, 1, v17")
        k.e("v_lshl_add_u32 v16, v17, 2, v16")
        k.e("s_and_b32 s36, s28, 1")
        k.e("s_lshl_b32 s36, s36, 2")
        for cb in range(4):
            k.e(f"s_add_u32 s37, s36, {cb}")
            k.e("v_xor_b32 v19, s37, v16")
            k.e(f"v_lshl_add_u32 v{12+cb}, v19, 5, v18")
        k.e(zero(ACC, 128))
        k.e("v_mov_b32 v118, 0")
        k.e("v_mov_b32 v117, 0")
        if cfg.get("tq"):
            k.e(["s_lshr_b32 s36, s2, 3", "s_lshl_b32 s36, s36, 5", "s_lshl_b32 s37, s28, 2", "s_add_u32 s36, s36, s37", "v_bfe_u32 v17, v1, 3, 2",
                 "v_add_u32 v17, s36, v17", "v_lshlrev_b32 v17, 13, v17", "v_and_b32 v19, 7, v1", "v_lshl_add_u32 v17, v19, 7, v17",
                 "s_and_b32 s36, s29, 28", "s_lshl_b32 s36, s36, 8", "v_add_u32 v17, s36, v17", f"s_mov_b32 s45, {int(cfg.get('tl', 8))//8*8192}"])
        else:
            k.e(["s_lshl_b32 s36, s30, 7", "s_lshl_b32 s37, s28, 4", "s_add_u32 s36, s36, s37", "v_bfe_u32 v17, v1, 1, 4",
                 "v_add_u32 v17, s36, v17", "v_lshlrev_b32 v17, 13, v17", "v_and_b32 v19, 1, v1", "v_lshl_add_u32 v17, v19, 7, v17",
                 "s_lshl_b32 s36, s29, 8", "v_add_u32 v17, s36, v17", f"s_mov_b32 s45, {int(cfg.get('tl', 8))//2*8192}"])
    k.e("s_waitcnt lgkmcnt(0)")
    srd(k, 4, 46, 2097152)
    srd(k, 8, 48, 4194304)
    srd(k, 20, 50, 4194304)
    k.e("s_cmp_lt_u32 s28, 4")
    k.e("s_cbranch_scc0 L_pro_s")
    if not cfg.get("nob0"): k.e("s_barrier")
    emit(k, A.ool(k, ["s_cmp_eq_u32 s2, 0"], "s_cbranch_scc1",
                  ["s_mul_i32 s36, s28, 12288", f"s_add_u32 s36, s36, {WS_CNT + (int(cfg.get('wsoff', 0)) << 20)}", "v_lshl_add_u32 v16, v1, 4, s36",
                   "v_mov_b32 v108, 0", "v_mov_b32 v109, 0", "v_mov_b32 v110, 0", "v_mov_b32 v111, 0"] +
                  flat([[f"global_store_dwordx4 v16, v[108:111], s[90:91]{SC}", "v_add_u32 v16, 1024, v16"] for _ in range(12)])))
    dma_both(0)
    k.label("L_pro_s")
    st.mark()
    setup_rest()
    st.mark()
    k.e("s_cmp_lt_u32 s28, 4")
    k.e("s_cbranch_scc0 L_pro_b")
    if cp == "2": k.e(warm("s28"))
    dma_both(1)
    if cp == "0": k.e(warm("s28"))
    k.e(f"s_waitcnt vmcnt({16 + (2 if cp in '02' else 0)})")
    k.e("s_branch L_pro_j")
    k.label("L_pro_b")
    k.e("s_mov_b64 s[8:9], s[20:21]")
    k.e("s_mov_b32 s31, 256")
    k.e(f"s_mov_b32 s32, {2*64*8192}")
    k.e("s_and_b32 s60, s28, 3")
    if cp == "1": k.e(warm("s60"))
    if cfg.get("nodry"): k.e(f"s_waitcnt vmcnt({2 if cp == '1' else 0})")
    k.e(f"s_mov_b32 s3, {0 if cfg.get('nodry') else 0xD0}")
    k.label("L_ln")
    for i in range(8):
        k.e(f"v_lshlrev_b32 v{WR+2*i}, 16, v{WP+i}")
        k.e(f"v_and_b32 v{WR+2*i+1}, 0xffff0000, v{WP+i}")
    k.e(zip2(ln_row(XA, 108, WR, 60, 92, 36, "s42", "s60"), ln_row(XB, 120, WR, 76, 100, 56, "s43", "s28")))
    if cp == "3": k.e(warm("s60"))
    k.e("s_waitcnt lgkmcnt(0)" if cfg.get("nodry") else "s_waitcnt vmcnt(0) lgkmcnt(0)")
    k.e("s_cmp_eq_u32 s3, 0")
    k.e("s_mov_b32 s3, 0")
    k.e("s_cbranch_scc0 L_ln")
    k.label("L_pro_j")
    st.mark()
    def reads(s_, stage, fs):
        b = FR[fs]
        c = [f"ds_read_b128 {v(b+4*i,4)}, v{10+s_} offset:{stage*32768+i*2048}" for i in range(8)]
        w = [[f"ds_read_b64_tr_b16 {v(b+32+4*cb+2*t,2)}, v{12+cb} offset:{stage*32768+(32*s_+4*t)*256}" for t in range(2)] for cb in range(4)]
        return [c[0]] + w[0] + w[1] + w[2] + w[3] + c[1:]
    def accreg(i, cb, vtype):
        return ACC + ((cb*8+i) if vtype else (i*4+cb))*4
    def mfmas(fs, vtype):
        b = FR[fs]; L = []
        for i in range(8):
            for cb in range(4):
                a = accreg(i, cb, vtype)
                cf, wf = v(b+4*i, 4), v(b+32+4*cb, 4)
                Aop, Bop = (cf, wf) if vtype else (wf, cf)
                L.append(f"{MF} {v(a,4)}, {Aop}, {Bop}, {v(a,4)}")
        return L
    k.e("s_barrier")
    k.e(reads(0, 0, 0))
    emit(k, A.ool(k, ["s_add_u32 s36, s2, s28", "s_cmp_eq_u32 s36, 0"], "s_cbranch_scc1",
                  ["v_mov_b32 v19, 1", "s_mov_b64 exec, 1", "global_store_dword v118, v19, s[88:89] sc1", "s_mov_b64 exec, -1"]))
    st.mark()
    k.e("s_mov_b32 s35, 0")
    k.e("s_cmp_eq_u32 s28, 0")
    k.e("s_cselect_b32 s43, 9, 0")
    k.e("s_cselect_b32 s44, 2, 1")
    k.e("s_cmp_lt_u32 s28, 4")
    k.e("s_cbranch_scc0 L_kv_vloop")
    for vtype in range(2):
        lp = "L_kv_vloop" if vtype else "L_kv_kloop"
        k.align(6)
        k.label(lp)
        for stage in range(2):
            for s_ in range(2):
                fills = [[] for _ in range(32)]
                pre = []
                if s_ == 0:
                    k.e("s_waitcnt lgkmcnt(0)")
                    rd = reads(1, stage, 1)
                    if stage == 1 and vtype == 0:
                        fills[20] += A.ool(k, ["s_bitcmp1_b32 s43, s35"], "s_cbranch_scc1", switch(k, "s35", [
                            (0, ["global_load_dword v116, v118, s[88:89] sc1"]),
                            (3, ["v_and_b32 v117, 15, v1", f"v_add_u32 v117, {CNT_LN}, v117", "v_lshlrev_b32 v117, 7, v117",
                                 "global_load_dword v116, v117, s[90:91] sc1"])]))
                else:
                    nt = 0 if cfg.get("notouch") else 1
                    if vtype == 0 and stage == 0:
                        emit(k, A.ool(k, ["s_cmp_eq_u32 s35, 3"], "s_cbranch_scc1", p1_retarget(cfg)))
                    la, lb = k.newlabel("w0"), k.newlabel("w0b")
                    if stage == 1 and vtype == 0:
                        A.OOL.append([la + ":", "s_waitcnt vmcnt(0)"] + switch(k, "s35", [(0, check(k, "s[88:89]", "v118", "v116", 1)), (3, ln_check(k))]) + [f"s_branch {lb}"])
                        emit(k, ["s_bitcmp1_b32 s43, s35", f"s_cbranch_scc1 {la}", f"s_waitcnt vmcnt({nt})", lb + ":", "s_waitcnt lgkmcnt(0)"])
                    elif stage == 1:
                        k.e(f"s_waitcnt vmcnt({nt}) lgkmcnt(0)")
                    else:
                        A.OOL.append([la + ":"] + switch(k, "s35", [(0, (lines(ln_part2, 120) if vtype == 0 else []) + [f"s_waitcnt vmcnt({4 if cp == '0' else 2})"]), (1, [f"s_waitcnt vmcnt({nt+1})"])]) + [f"s_branch {lb}"])
                        emit(k, ["s_cmp_lt_u32 s35, s44", f"s_cbranch_scc1 {la}", f"s_waitcnt vmcnt({nt})", lb + ":", "s_waitcnt lgkmcnt(0)"])
                    if nt:
                        tp = int(cfg.get("tpos", 31))
                        nl = int(cfg.get("tl", 8)); t0 = int(cfg.get("t0", 0))
                        on = [t for t in range(t0, t0 + -(-32 // nl)) if t % 2 == stage]
                        tl = [f"s_bitcmp1_b32 {sum(1 << (t // 2) for t in on)}, s35", f"s_cselect_b32 exec_lo, {(1 << nl) - 1 if nl < 32 else -1}, 1", "s_mov_b32 exec_hi, 0",
                              f"global_load_dword v0, v17, s[96:97]", "s_mov_b64 exec, -1", "s_cselect_b32 s36, s45, 0",
                              "v_add_u32 v17, s36, v17", f"v_min_u32 v17, {8388608-128}, v17"]
                        fills[tp] += tl + ["s_nop 1"]
                    if stage == 1: k.e("s_cmp_eq_u32 s35, 3")
                    k.e("s_barrier")
                    if stage == 1: k.e(f"s_cbranch_scc1 L_p1_fin{vtype}")
                    rd = reads(0, stage ^ 1, 0)
                    if stage == 1 and vtype == 0:
                        fills[30] += A.ool(k, ["s_add_u32 s36, s35, s28", "s_cmp_eq_u32 s36, 0"], "s_cbranch_scc1",
                                          ["s_lshr_b32 s36, s2, 4", f"s_add_u32 s36, s36, {CNT_LN}", "s_lshl_b32 s36, s36, 7"] + signal("s[90:91]", "s36", "v16", "v19"))
                for g in range(16): fills[g].append(rd[g])
                if s_ == 1:
                    mc, c, mw, w = dma_list(stage)
                    tail = ["s_add_u32 s31, s31, s40", "s_add_u32 s32, s32, s41"]
                    if vtype == 1:
                        pre = [mc, "s_nop 0"] + c + [mw, "s_nop 0"] + w + tail
                        if cfg.get("p1w"): pre = [mw, "s_nop 0"] + w + [mc, "s_nop 0"] + c + tail
                        if stage == 1:
                            pre += A.ool(k, ["s_cmp_eq_u32 s35, 2"], "s_cbranch_scc1", p1_retarget(cfg))
                        else:
                            l7 = k.newlabel("l7")
                            pre += A.ool(k, ["s_cmp_eq_u32 s35, 0"], "s_cbranch_scc1", lines(ln_part2, 120) +
                                         ["s_cmp_eq_u32 s28, 7", f"s_cbranch_scc0 {l7}"] + ln_part3(120) + [l7 + ":"])
                    else:
                        fills[0].append(mc)
                        ds_ = int(cfg.get("p1s", 3))
                        if cfg.get("p1w"): mc, mw, c, w = mw, mc, w, c; fills[0][-1] = mc
                        for j in range(4): fills[1+ds_*j].append(c[j])
                        fills[4*ds_].append(mw)
                        for j in range(4): fills[1+ds_*(4+j)].append(w[j])
                        fills[31] += tail
                ladder(fills, 0, 32, "1" in cfg.get("lad", ""), (3, 2) if s_ == 1 else (1, 0))
                emit(k, pre)
                emit(k, weave(mfmas(s_, vtype), fills, None, int(cfg.get('g1_', 1))))
                if s_ == 1: k.e(cfg["sth1"].hist(8, first=(vtype == 0 and stage == 0)))
        k.e("s_add_u32 s35, s35, 1")
        k.e(f"s_branch {lp}")
        k.label(f"L_p1_fin{vtype}")
        mc, c, mw, w = dma_list(1)
        head = lines(p2_setup) + lines(srd, 8, 54, 4194304 + DELTA)
        lds = flat([xld2(0, s_) for s_ in range(4)])
        W1[:] = [[mc, "s_add_u32 s32, s32, 4096"]] + [[x] for x in c] + [[f"s_mov_b32 s31, {3*128*8192}", "s_add_u32 s34, s33, 98304"]]
        rest = lines(p2_setup2)
        fills = [[] for _ in range(32)]
        if vtype == 1: emit(k, head)
        else: fills[0] += head
        fs = int(cfg.get("fs", 4))
        for i, x in enumerate(lds): fills[1+fs*i] += [x]
        for i, x in enumerate(rest): fills[min(2+i, 31)] += [x]
        emit(k, weave(mfmas(1, vtype), fills))
        k.e(cfg["sth1"].hist(8, first=False))
        if vtype == 0: k.e("s_branch L_p1_done")
    k.label("L_p1_done")
    if cfg.get("diag") == "mfma":
        k.e("s_mov_b32 s35, 64")
        k.label("L_diag")
        for i in range(16): k.e(f"{MF} v[{56+4*(i&1)}:{59+4*(i&1)}], {v(68+4*(i%8),4)}, {v(100+4*(i//4),4)}, v[{56+4*(i&1)}:{59+4*(i&1)}]")
        k.e(["s_sub_u32 s35, s35, 1", "s_cmp_lg_u32 s35, 0", "s_cbranch_scc1 L_diag", "s_nop 7"])
    if cfg.get("diag") == "idle":
        k.e(f"s_mov_b32 s35, {cfg.get('idn', 256)}")
        k.label("L_diag")
        k.e(["s_nop 15"]*2 + ["s_sub_u32 s35, s35, 1", "s_cmp_lg_u32 s35, 0", "s_cbranch_scc1 L_diag"])

def kv_pack(k):
    for q in range(16):
        a = 128 + 8*q
        for e in range(4):
            k.e(f"v_cvt_pk_bf16_f32 v{KP+4*q+e}, v{a+2*e}, v{a+2*e+1}")
    k.e("s_lshl_b32 s38, s29, 20")
    k.e("s_lshl_b32 s37, s30, 17")
    k.e("s_add_u32 s38, s38, s37")
    k.e("s_bfe_u32 s37, s28, 0x10001")
    k.e("s_lshl_b32 s37, s37, 16")
    k.e("s_add_u32 s38, s38, s37")
    k.e("s_lshr_b32 s36, s28, 2")
    k.e("s_lshl_b32 s37, s36, 15")
    k.e("s_add_u32 s38, s38, s37")
    k.e("s_and_b32 s37, s28, 1")
    k.e("s_add_u32 s36, s36, 11")
    k.e("s_lshl_b32 s37, s37, s36")
    k.e("s_add_u32 s38, s38, s37")
    k.e("s_cmp_lt_u32 s28, 4")
    k.e("s_cselect_b32 s36, 4, 32")
    k.e("s_cselect_b32 s37, 16, 64")
    k.e("s_cselect_b32 s39, 32, 4")
    k.e("s_lshl_b32 s36, s36, 8")
    k.e("s_lshl_b32 s37, s37, 8")
    k.e("s_lshl_b32 s39, s39, 8")
    k.e("s_mov_b64 s[16:17], s[12:13]")
    k.e("s_mov_b64 s[18:19], s[14:15]")
    k.e("s_cmp_eq_u32 s30, 0")
    k.e("s_cselect_b32 s52, 2, 4")
    k.e("v_lshlrev_b32 v58, 4, v1")
    k.e(hole("k", "v58"))
    k.e("v_add_u32 v59, s36, v58")
    k.e("v_add_u32 v60, s37, v58")
    k.e("v_add_u32 v61, s36, v60")

def p2_setup(k):
    k.e("s_and_b32 s36, s28, 3")
    k.e("s_sub_u32 s37, 15, s30")
    k.e("s_cmp_lt_u32 s28, 4")
    k.e("s_cselect_b32 s37, s37, s30")
    k.e("s_lshl_b32 s37, s37, 2")
    k.e("s_add_u32 s37, s37, s36")
    k.e("s_lshl_b32 s37, s37, 16")
    k.e("v_lshl_add_u32 v6, v1, 4, s37")
    k.e(hole("x", "v6"))
    k.e("v_add_u32 v7, 32768, v6")
    k.e("s_mov_b32 s32, 0")

def p2_setup2(k):
    k.e("v_lshrrev_b32 v18, 4, v1")
    k.e("v_bfe_u32 v20, v1, 2, 2")
    k.e("v_lshl_add_u32 v19, v18, 3, v20")
    k.e("v_lshlrev_b32 v19, 8, v19")
    k.e("v_and_b32 v21, 3, v1")
    k.e("v_lshl_add_u32 v19, v21, 3, v19")
    k.e("v_and_b32 v21, 1, v18")
    k.e("v_lshl_add_u32 v20, v21, 2, v20")
    for db in range(8):
        k.e(f"v_xor_b32 v21, {db}, v20")
        k.e(f"v_lshl_add_u32 v{10+db}, v21, 5, v19")
    k.e("s_lshl_b32 s45, s29, 20")

def WOp(text, stage):
    ops = [VM(text, ("W", 2*it + stage + 3)) for it in range(4)]
    return Alt([ops[0]], lambda c: [ops[c["it"]]])
class NeedW(Alt):
    def __init__(self, stage):
        self.nd = Need("vm", [])
        def pick(c):
            return [SetTags(self.nd, [("W", 2*c["it"] + stage + 1)] if 2*c["it"] + stage + 1 < 8 else []), self.nd]
        Alt.__init__(self, [self.nd], pick)

def p2_pieces(k, cfg, evA, evB):
    def wdma(stage):
        return ["s_mov_b32 m0, s34"], [WOp(f"buffer_load_dwordx4 v{2+j}, s[4:7], s31 offen offset:{j*1024}{SC}{NT(cfg, 'q')} lds", stage) for j in range(4)]
    xld = xld2
    def wrd(stage, s_, db):
        return [DS(f"ds_read_b64_tr_b16 {v(WF+4*db+2*t,2)}, v{10+db} offset:{stage*32768+(32*s_+4*t)*256}", ("w", db)) for t in range(2)]
    def store(q, so="s38"):
        return VM(f"buffer_store_dwordx4 {v(KP+4*q,4)}, v{58+(q&3)}, s[16:19], {so} offen{'' if cfg.get('xkv') else SC}", "kvst")
    early = ["s_lshl_b32 s36, s39, 1", "s_add_u32 s36, s36, s38", "s_add_u32 s37, s36, s39"] + [store(q, f"s{34+q//4}") for q in range(8, 16)]
    prox = [xld(1, s_) for s_ in range(3)]
    D = 6
    pro2 = [wrd(0, 0, db) for db in range(D)]
    halves = []
    nkv = Need("vm", ["kvst1"])
    kvw = [Alt(A.ool(k, ["s_cmp_eq_u32 s35, s52"], "s_cbranch_scc1", [nkv]), lambda c: [nkv] if c["fast"] and c["it"] == 2 else []), []]
    for stage in range(2):
        M, fills, pre = [], [[] for _ in range(64)], {}
        for s_ in range(4):
            for db in range(8):
                for rb in range(2):
                    o = A.Oreg(rb, db)
                    M.append(f"{MF} {v(o,4)}, {v(WF+4*db,4)}, {v(XF[stage]+(s_*2+rb)*4,4)}, {v(o,4)}")
        for p in range(32):
            if p % 2 == 0: pre[2*p] = [Need("ds", [("w", p % 8), ("w", (p+1) % 8)])]
            if p % 8 == 0: pre[2*p] += [Need("vm", [("x", stage, p // 8)])]
            f = p + D
            if f < 32:
                r = wrd(stage, f // 8, f % 8)
                fills[2*p] += [r[0]]; fills[2*p+1] += [r[1]]
                if stage == 1 and f >= 24: fills[2*p+1] += [f"v_xor_b32 v{10+f%8}, 65536, v{10+f%8}"]
        pre[0] = [evB[stage]] + pre[0]
        xp, wp, sp_ = {"0": ([1, 10, 19, 28, 33, 42, 51, 60], [5, 23, 37, 56], [14, 46]),
                       "1": ([2, 6, 18, 22, 34, 38, 50, 54], [12, 28, 44, 60], [10, 30]),
                       "2": ([0, 9, 17, 27, 35, 45, 49, 63], [4, 22, 40, 58], [13, 31])}[cfg.get("u2", "0")]
        fills[2*27+1] += [evA[stage], "s_waitcnt lgkmcnt(0)", NeedW(stage), kvw[stage], "s_barrier"]
        nx = {28: [0, 1], 29: [2, 3], 30: [4], 31: [5]}
        for p, fl in nx.items():
            for i, f in enumerate(fl):
                fills[2*p+i] += wrd(stage ^ 1, 0, f)
        for s_ in range(4):
            xl = xld(stage ^ 1, 3) if s_ == 0 else xld(stage, s_-1)
            fills[xp[2*s_]] += [xl[0]]; fills[xp[2*s_+1]] += [xl[1]]
            if s_ == 0:
                fills[xp[1]+1] += ["s_add_u32 s32, s32, 4096"]
                if stage == 0:
                    fills[xp[1]+2] += ["s_cmp_lt_u32 s35, 3", "s_cselect_b32 s10, s10, 0"]
        if not cfg.get("nokvst"):
            spos = sp_
            for i in range(2):
                q = 2*stage + i
                s0, s1 = store(q), store(q); s1.tag = "kvst1"
                fills[spos[i]] += [Alt([s0], lambda c, s0=s0, s1=s1: [s1 if c["it"] == 1 else s0])]
                for g in range(3):
                    for h in range(2):
                        r = KP + 16*g + 4*q + 2*h
                        if cfg.get("sh32"):
                            fills[spos[i]+2+2*(2*g+h)] += [f"v_mov_b32 v{r}, v{r+16}"]
                            fills[spos[i]+3+2*(2*g+h)] += [f"v_mov_b32 v{r+1}, v{r+17}"]
                        elif not cfg.get("nosh"): fills[spos[i]+2+2*(2*g+h)] += [f"v_mov_b64 v[{r}:{r+1}], v[{r+16}:{r+17}]"]
            if stage == 1: fills[spos[1]+1] += ["s_add_u32 s38, s38, s39"]
            if stage == 0: fills[7] += ["s_cmp_lt_u32 s35, s52", "s_cselect_b32 s18, s18, 0"]
        m, d = wdma(stage)
        fills[wp[0]-1] += m
        for j in range(4): fills[wp[j]] += [d[j]]
        fills[wp[3]+1] += ["s_add_u32 s31, s31, s40", "s_add_u32 s34, s34, 32768", "s_and_b32 s34, s34, s41"]
        ladder(fills, 56, 64, "2" in cfg.get("lad", ""))
        halves.append(weave(M, fills, pre, int(cfg.get('g2', 1))))
    return prox, pro2, halves, early

def p2_events(k, cfg):
    W0 = (["s_cmp_eq_u32 s28, 0"], "s_cbranch_scc0")
    def E3():
        return ["s_mov_b64 s[4:5], s[12:13]", "s_mov_b32 s6, s14", "s_mov_b32 s31, s45", "s_mov_b32 s40, 32768", "s_mov_b32 s34, s33",
                "v_add_u32 v2, s33, v58", "v_mov_b32 v3, v2", "v_mov_b32 v4, v2", "v_mov_b32 v5, v2"]
    off0 = [f"s_add_u32 s36, s29, {CNT_KV0}", "s_lshl_b32 s36, s36, 7"]
    sig0 = guard(k, ["s_lshl_b32 s36, s30, 3", "s_add_u32 s36, s28, s36", "s_cmp_eq_u32 s36, 4"], "s_cbranch_scc0", off0 + signal("s[90:91]", "s36", "v62", "v63"), "sg")
    pol0 = guard(k, *W0, off0 + [f"v_mov_b32 {vZ}, s36", VM(f"global_load_dword {vPOLL}, {vZ}, s[90:91] sc1", "poll")], "w0")
    chk0 = guard(k, *W0, [Need("vm", ["poll"])] + check(k, "s[90:91]", vZ, vPOLL, 1), "w0")
    off = ["s_mov_b32 s6, 0", "s_mov_b32 s34, 0x30000", "s_mov_b32 s41, 0x37fff"]
    t0 = {3: [pol0]}
    t1 = {2: off + [sig0], 3: E3()}
    out = {"A": [Alt(A.ool(k, ["s_cmp_eq_u32 s35, 3"], "s_cbranch_scc1", [chk0]), lambda c: [chk0] if c["it"] == 3 else []), []],
           "B": [Alt(A.ool(k, ["s_cmp_eq_u32 s35, 3"], "s_cbranch_scc1", t0[3]), lambda c: t0.get(c["it"])),
                 Alt(A.ool(k, ["s_cmp_ge_u32 s35, 2"], "s_cbranch_scc1", switch(k, "s35", sorted(t1.items()))), lambda c: t1.get(c["it"]))]}
    return out["A"], out["B"]

def p2(k, cfg, st):
    evA, evB = p2_events(k, cfg)
    prox, pro2, halves, early = p2_pieces(k, cfg, evA, evB)
    earlyA = Alt(A.ool(k, ["s_cmp_eq_u32 s30, 0"], "s_cbranch_scc1", early), lambda c: early if c["fast"] else [])
    body = [halves[0], cfg["sth2"].hist(8), halves[1], cfg["sth2"].hist(8, first=False)]
    nq = Need("vm", [("W", 10), "v0", "kvst", "xsel"] + [("x", a, b) for a in range(2) for b in range(4)])
    n0 = Need("vm", [("x", 0, 3)])
    v0 = ["s_add_u32 m0, s33, 65536", "s_nop 0"] + [VM(f"buffer_load_dwordx4 v2, s[4:7], s31 offen offset:{j*1024}{SC} lds") for j in range(4)]
    scen = []
    for grp, w0 in (("A", 0), ("A", 1), ("B", 0)):
        for ffn in (0,):
            for fast in (0, 1):
                sq = flat([xld2(0, s_) for s_ in range(4)]) + [VM("", ("W", 1))]*4 + flat([pro2, prox, n0, earlyA], dict(fast=fast))
                for it in range(4): sq += flat(body, dict(it=it, w0=w0, ffn=ffn, fast=fast, grp=grp, sg=fast and grp == "B"))
                scen.append(sq + v0 + [nq])
    resolve(scen)
    cfg["qwait"] = nq.n
    st.mark()
    k.e("s_waitcnt vmcnt(8)")
    emit(k, pro2)
    work = lines(kv_pack) + zero(A.O_, 64)
    ops = W1 + [[x] for x in flat(prox)]
    step = 64 // len(ops) + 1
    for i, x in enumerate(work):
        if i % step == 0 and i // step < len(ops) and i < 64: emit(k, ops[i // step])
        k.e(x)
    for g in ops[-(-64 // step):]: emit(k, g)
    k.e("s_mov_b32 s35, 0")
    k.e("s_mov_b32 s41, 0x1ffff")
    emit(k, [n0, earlyA])
    st.mark()
    k.align(6)
    k.label("L_p2_loop")
    emit(k, body)
    k.e("s_add_u32 s35, s35, 1")
    k.e("s_cmp_lt_u32 s35, 4")
    k.e("s_cbranch_scc1 L_p2_loop")
    emit(k, v0)
    st.mark()
```

```python
from common import *
import attn as A
import ffn as F
import oproj as O
from fused_a import *

X32, G = 96, 112
XI, YA = 40, 24
WR4, XF4 = 64, [128, 160]
PRE, FW, HH, DD = 96, 112, 36, 96
LDS_P4 = 65536

CFG = {}
def PX(): return 4
def after_q(k, grp):
    srd(k, 16, 54, 16777216 + DELTA, WS_CTX)
    if grp == 0:
        srd(k, 4, 92, 7340032)
        srd(k, 8, 94, 7340032)
        k.e("s_and_b32 s60, s29, 3")
        k.e(f"s_add_u32 s60, s60, {CFG.get('e0', 4)}")
        k.e("s_sub_u32 s3, s2, 32")
        k.e("s_cmp_eq_u32 s28, 0")
        k.e("s_cselect_b32 s36, 0xad, 0x2d")
        k.e("s_cselect_b32 s42, 14, 12")
        k.e("s_cmp_lt_u32 s3, 224")
        k.e("s_cselect_b32 s36, s36, 0")
        k.e("s_lshl_b32 s36, s36, s60")
        k.e("s_or_b32 s42, s42, s36")
    else:
        emit(k, A.ool(k, ["s_cmp_eq_u32 s28, 4"], "s_cbranch_scc1", ["s_lshl_b32 s36, s29, 7", "s_cmp_eq_u32 s30, 0", "s_cselect_b32 s37, 4, 0", "s_add_u32 s36, s36, s37"] + signal("s[90:91]", "s36", "v20", "v21")))
        nl = int(CFG.get("btl", 32))
        j0 = int(CFG.get("btj", 4)); ev = int(CFG.get("bte", 0))
        nw = (8 - j0) * (32 >> ev) * 2
        ch = -(-8388608 // nw // 128) * 128
        k.e(f"s_sub_u32 s36, s2, {32*j0}")
        if ev:
            k.e("s_and_b32 s37, s2, 1")
            k.e("s_lshl_b32 s37, s37, 20")
            k.e("s_or_b32 s36, s36, s37")
        else: k.e("s_lshl_b32 s36, s36, 1")
        k.e("s_and_b32 s37, s28, 1")
        k.e("s_add_u32 s36, s36, s37")
        k.e("s_min_u32 s36, s36, 1024")
        k.e(f"s_mul_i32 s36, s36, {ch}")
        k.e("s_cmp_lt_u32 s28, 6")
        k.e("s_cselect_b64 s[4:5], s[32:33], s[34:35]")
        k.e("s_cselect_b32 s37, 32, 28")
        k.e("s_lshl_b32 s37, s37, 18")
        k.e("s_min_u32 s36, s36, s37")
        k.e("s_sub_u32 s6, s37, s36")
        k.e(f"s_min_u32 s6, s6, {0 if CFG.get('nobt') else ch}")
        k.e("s_add_u32 s4, s4, s36")
        k.e("s_addc_u32 s5, s5, 0")
        k.e("s_and_b32 s5, s5, 0xffff")
        k.e("s_mov_b32 s7, 0x20000")
        k.e(f"v_cmp_gt_u32 vcc, {nl}, v1")
        k.e("v_lshlrev_b32 v13, 7, v1")
        k.e("v_mov_b32 v12, 0x100000")
        k.e("v_cndmask_b32 v13, v12, v13, vcc")
        k.e("s_mov_b32 s48, 0")
        if "3" in CFG.get("cpf", ""):
            k.e("s_cmp_eq_u32 s28, 5")
            k.e("s_cselect_b32 s36, 0x1000, 0")
            k.e("s_or_b32 s42, s42, s36")

def pro_wait(k, grp):
    if grp == 0: return ["s_waitcnt vmcnt(0)"]
    l = k.newlabel("pw")
    return ["s_waitcnt vmcnt(1)", "s_cmp_eq_u32 s28, 4", f"s_cbranch_scc1 {l}", "s_waitcnt vmcnt(0)", l + ":"]

def pro_hook(k, grp):
    if grp == 0:
        return A.ool(k, ["s_cmp_eq_u32 s28, 0"], "s_cbranch_scc1",
                     ["s_lshl_b32 s36, s29, 7", "v_mov_b32 v13, s36", "global_load_dword v14, v13, s[90:91] sc1"])
    return []

def b_hook(k):
    l = k.newlabel("bh")
    return ["s_cmp_eq_u32 s40, 12", f"s_cbranch_scc0 {l}"] + code_touch(k, 26, "v0") + [l + ":"]

def f1dma(m):
    L = ["s_and_b32 s20, s3, 3", "s_lshl_b32 s20, s20, 8", "s_lshl_b32 s21, s28, 5", "s_add_u32 s20, s20, s21",
         "s_lshr_b32 s21, s3, 2", "s_lshl_b32 s21, s21, 7"] + lines(F.wdma_addr, 24, "s20", 7168, "s21")
    L += ["s_lshl_b32 s36, s28, 13", f"s_add_u32 m0, s36, {LDS_X}", f"s_mov_b32 s37, {32*7168}"]
    L += [f"buffer_load_dwordx4 v{24+j}, s[{4+4*m}:{7+4*m}], 0 offen offset:{j*1024}{NT(CFG, 'f')} lds" for j in range(4)]
    L += [f"s_add_u32 m0, s36, {LDS_X+4096}", "s_nop 0"]
    L += [f"buffer_load_dwordx4 v{24+j}, s[{4+4*m}:{7+4*m}], s37 offen offset:{j*1024}{NT(CFG, 'f')} lds" for j in range(4)]
    return L

def bar_hook(k, grp):
    if grp == 1: return []
    QS = A.QS_
    keys = [f"s_mov_b32 s36, {F.WS_KEY}"] + [f"buffer_load_dwordx4 {v(QS+4*i,4)}, {A.vL16}, s[24:27], s36 offen offset:{i*1024}{SC}" for i in range(2)]
    t2 = K("t"); F.top2(t2, QS, 24, 8, 20)
    top = [x.strip() for x in t2.lines]
    top += ["v_and_b32 v24, 1, v1", "v_mov_b32 v25, s56", "v_mov_b32 v26, s57", "v_cmp_eq_u32 vcc, 1, v24", "s_nop 1",
            "v_cndmask_b32 v25, v25, v26, vcc", "v_lshrrev_b32 v26, 4, v25", "v_lshlrev_b32 v26, 15, v26", "v_and_b32 v25, 15, v25",
            "v_lshl_add_u32 v26, v25, 4, v26", "v_lshrrev_b32 v27, 4, v1", "v_lshl_add_u32 v26, v27, 8, v26",
            ] + (["v_bfe_u32 v25, v26, 7, 3", "v_cmp_eq_u32 vcc, 3, v25", f"v_add_u32 v25, {DELTA}, v26", "s_nop 0", "v_cndmask_b32 v26, v26, v25, vcc"] if "x" in HOLE[0] else []) + [
            "s_and_b32 s36, s3, 3", "s_lshl_b32 s36, s36, 13", "s_add_u32 s37, s36, 4096",
            "s_mov_b32 exec_lo, 0x00030003", "s_mov_b32 exec_hi, 0x00030003"]
    top += [f"buffer_load_dwordx4 {v(QS+4*i,4)}, v26, s[24:27], s{36+i//4} offen offset:{(i%4)*1024}{SC}" for i in range(8)]
    top += ["s_mov_b64 exec, -1"]
    dma = f1dma
    def mm(m):
        FRG = [14, 20, 24]
        L = lines(F.wrd_addr, "v5", "v9", "v8")
        L += ["v_xor_b32 v9, s28, v9", "v_lshl_add_u32 v5, v9, 5, v5", f"v_add_u32 v5, {LDS_X}, v5"]
        rd = lambda ss: [f"ds_read_b64_tr_b16 {v(FRG[s_%3]+2*t,2)}, v5 offset:{(32*s_+4*t)*128}" for s_ in ss for t in range(2)]
        L += rd(range(3))
        L += ["s_and_b32 s36, s3, 3", "s_lshl_b32 s36, s36, 6", "s_lshr_b32 s37, s3, 2", "s_lshl_b32 s37, s37, 12", "s_add_u32 s36, s36, s37",
              "s_lshl_b32 s37, s28, 10", "s_add_u32 s36, s36, s37", f"s_add_u32 s36, s36, {WS_PRE + 32*m}",
              "v_and_b32 v9, 1, v1", "v_lshlrev_b32 v9, 4, v9", "v_lshl_add_u32 v9, v8, 8, v9"]
        for s_ in range(8):
            L += [f"s_waitcnt lgkmcnt({2*min(2, 7-s_)})", f"{MF} v[10:13], {v(FRG[s_%3],4)}, {v(QS+4*s_,4)}, {'v[10:13]' if s_ else '0'}"]
            if s_ + 3 < 8: L += rd([s_+3])
        L += ["s_nop 5", "s_mov_b32 exec_lo, 0x00030003", "s_mov_b32 exec_hi, 0x00030003",
              f"buffer_store_dwordx4 v[10:13], v9, s[24:27], s36 offen{SC}", "s_mov_b64 exec, -1", "s_nop 1"]
        return L
    sig = ["s_mul_i32 s36, s3, 2341", "s_lshr_b32 s36, s36, 16", f"s_add_u32 s36, s36, {CNT_F1}", "s_lshl_b32 s36, s36, 7"] + signal("s[90:91]", "s36", "v20", "v21")
    dbg = CFG.get("f1", "")
    if "d" in dbg: dma = lambda m: []
    if "m" in dbg: mm = lambda m: []
    if "t" in dbg: keys = []; top = ["s_mov_b32 s56, 0", "s_mov_b32 s57, 0"]
    ffn = ["s_sub_u32 s38, s40, s60"] + switch(k, "s38", [(0, dma(0)), (2, mm(0)), (3, dma(1)), (5, mm(1)), (7, sig)])
    return A.ool(k, ["s_bitcmp1_b32 s42, s40"], "s_cbranch_scc1",
                 switch(k, "s40", [(1, check(k, "s[90:91]", "v13", "v14", 7)), (2, keys), (3, top), (4, ffn)]))

def before_tail(k, grp):
    k.e("s_lshr_b32 s36, s2, 5")
    k.e(f"s_add_u32 s36, s36, {CNT_F1}")
    k.e("s_lshl_b32 s36, s36, 7")
    k.e("v_mov_b32 v12, s36")
    k.e("global_load_dword v11, v12, s[90:91] sc1")

def tail_extra(k, grp):
    L = lines(srd, 4, 34, 7340032) + lines(srd, 8, 32, 8388608)
    L += ["s_lshr_b32 s38, s2, 4", "s_mul_i32 s38, s38, 224", "s_and_b32 s39, s2, 15", "s_lshl_b32 s39, s39, 7"]
    L += lines(F.wdma_addr, 24, "s38", 2048, "s39")
    L += ["s_lshl_b32 s36, s28, 12", f"s_add_u32 s36, s36, {LDS_X}"]
    G = [[x] for x in L] + [["s_cmp_lt_u32 s28, 7", "s_cselect_b32 m0, s36, 0x30000", "s_cselect_b32 s6, 7340032, 0"]]
    return G + [[f"buffer_load_dwordx4 v{24+j}, s[4:7], 0 offen offset:{j*1024} lds"] for j in range(4)]

def before_merge(k):
    k.e("s_waitcnt vmcnt(4)")
    emit(k, check(k, "s[90:91]", "v12", "v11", 28))
    k.e(["s_lshr_b32 s36, s2, 4", "s_mul_i32 s36, s36, 7", "s_min_u32 s37, s28, 6", "s_add_u32 s36, s36, s37",
         "s_lshl_b32 s36, s36, 11", f"s_add_u32 s36, s36, {WS_PRE}", "v_and_b32 v11, 15, v1", "v_lshlrev_b32 v11, 4, v11",
         "v_lshrrev_b32 v12, 4, v1", "v_lshl_add_u32 v11, v12, 9, v11"])
    k.e([f"buffer_load_dwordx4 {v(PRE+4*h,4)}, v11, s[24:27], s36 offen offset:{256*h}{SC}" for h in range(2)])

def gcalc(k, withy, cbs=range(4)):
    for cb in cbs:
        for h in range(2):
            a, b = X32+4*cb+2*h, X32+4*cb+2*h+1
            ga, gb = G+4*cb+2*h, G+4*cb+2*h+1
            k.e(f"v_lshlrev_b32 v{a}, 16, v{XI+2*cb+h}")
            k.e(f"v_and_b32 v{b}, 0xffff0000, v{XI+2*cb+h}")
            k.e(f"v_sub_f32 v{ga}, v{a}, v{XI+8}")
            k.e(f"v_sub_f32 v{gb}, v{b}, v{XI+8}")
            def rnd2():
                k.e(f"v_cvt_pk_bf16_f32 v10, v{ga}, v{gb}")
                k.e(f"v_lshlrev_b32 v{ga}, 16, v10")
                k.e(f"v_and_b32 v{gb}, 0xffff0000, v10")
            rnd2()
            k.e(f"v_mul_f32 v{ga}, v{ga}, v{XI+9}")
            k.e(f"v_mul_f32 v{gb}, v{gb}, v{XI+9}")
            rnd2()
            if withy:
                k.e(f"v_add_f32 v{ga}, v{ga}, v{YA+4*cb+2*h}")
                k.e(f"v_add_f32 v{gb}, v{gb}, v{YA+4*cb+2*h+1}")
                rnd2()
            k.e(f"v_mul_f32 v11, 0xbfb8aa3b, v{ga}")
            k.e(f"v_mul_f32 v12, 0xbfb8aa3b, v{gb}")
            k.e("v_exp_f32 v11, v11")
            k.e("v_exp_f32 v12, v12")
            k.e("s_nop 0")
            k.e("v_add_f32 v11, 1.0, v11")
            k.e("v_add_f32 v12, 1.0, v12")
            k.e("v_rcp_f32 v11, v11")
            k.e("v_rcp_f32 v12, v12")
            k.e("s_nop 0")
            k.e(f"v_mul_f32 v{ga}, v{ga}, v11")
            k.e(f"v_mul_f32 v{gb}, v{gb}, v12")
            rnd2()

def ffn2_math(k):
    F.wrd_addr(k, "v26", "v27", "v28")
    k.e("s_lshl_b32 s36, s28, 12")
    k.e(f"s_add_u32 s36, s36, {LDS_X}")
    k.e("v_add_u32 v26, s36, v26")
    for cb in range(4):
        k.e(f"v_xor_b32 v28, {cb}, v27")
        k.e("v_lshl_add_u32 v28, v28, 5, v26")
        for t in range(2):
            k.e(f"ds_read_b64_tr_b16 {v(FW+4*cb+2*t,2)}, v28 offset:{4*t*128}")
    for m in ("row_ror:4", "row_ror:8"):
        for e in range(8): k.e(f"v_add_f32_dpp v{PRE+e}, v{PRE+e}, v{PRE+e} {m} row_mask:0xf bank_mask:0xf")
    for e in range(0, 8, 2):
        k.e(f"v_cvt_pk_bf16_f32 v29, v{PRE+e}, v{PRE+e+1}")
        k.e(f"v_lshlrev_b32 v{PRE+e}, 16, v29")
        k.e(f"v_and_b32 v{PRE+e+1}, 0xffff0000, v29")
    for e in range(8): k.e(f"v_mul_f32 v{PRE+8+e}, 0xbfb8aa3b, v{PRE+e}")
    for e in range(8): k.e(f"v_exp_f32 v{PRE+8+e}, v{PRE+8+e}")
    for e in range(8): k.e(f"v_add_f32 v{PRE+8+e}, 1.0, v{PRE+8+e}")
    for e in range(8): k.e(f"v_rcp_f32 v{PRE+8+e}, v{PRE+8+e}")
    for e in range(8): k.e(f"v_mul_f32 v{PRE+8+e}, v{PRE+e}, v{PRE+8+e}")
    for e in range(0, 8, 2):
        k.e(f"v_cvt_pk_bf16_f32 v29, v{PRE+8+e}, v{PRE+8+e+1}")
        k.e(f"v_lshlrev_b32 v{PRE+8+e}, 16, v29")
        k.e(f"v_and_b32 v{PRE+8+e+1}, 0xffff0000, v29")
    for e in range(8): k.e(f"v_mul_f32_dpp v{PRE+e}, v{PRE+e}, v{PRE+8+e} quad_perm:[2,3,0,1] row_mask:0xf bank_mask:0xf")
    for q in range(4): k.e(f"v_cvt_pk_bf16_f32 v{HH+q}, v{PRE+2*q}, v{PRE+2*q+1}")
    k.e("s_waitcnt lgkmcnt(0)")
    k.e("v_lshl_add_u32 v28, v1, 4, s36")
    for cb in range(4): k.e(f"{MF} {v(DD+4*cb,4)}, {v(FW+4*cb,4)}, {v(HH,4)}, 0")
    k.e("s_nop 7")
    for cb in range(4): k.e(f"ds_write_b128 v28, {v(DD+4*cb,4)} offset:{cb*1024}")

def ffn2_reduce():
    L = ["s_lshl_b32 s36, s28, 10", f"s_add_u32 s36, s36, {LDS_X}", "v_lshl_add_u32 v28, v1, 4, s36"]
    L += [f"ds_read_b128 {v(PRE+4*w,4)}, v28 offset:{w*4096}" for w in range(7)]
    L += ["s_lshr_b32 s36, s2, 4", "s_lshl_b32 s36, s36, 13", "s_and_b32 s37, s2, 15", "s_lshl_b32 s37, s37, 8", "s_add_u32 s36, s36, s37",
          "s_lshl_b32 s37, s28, 6", "s_add_u32 s36, s36, s37", f"s_add_u32 s36, s36, {WS_YP}",
          "v_and_b32 v28, 1, v1", "v_lshlrev_b32 v28, 12, v28", "v_lshl_add_u32 v28, v19, 4, v28", "s_waitcnt lgkmcnt(0)"]
    for w in range(1, 7):
        L += [f"v_add_f32 v{PRE+e}, v{PRE+e}, v{PRE+4*w+e}" for e in range(4)]
    L += ["s_mov_b32 exec_lo, 0x00030003", "s_mov_b32 exec_hi, 0x00030003",
          VM(f"buffer_store_dwordx4 {v(DD,4)}, v28, s[24:27], s36 offen{SC}", "yp"), "s_mov_b64 exec, -1", "s_nop 3"]
    return L

def p4_setup(k):
    two = CFG.get("two", "1") == "1"
    k.e("s_lshr_b32 s63, s29, 4")
    k.e("s_lshl_b32 s36, s30, 2")
    k.e(f"s_lshr_b32 s30, {CFG.get('jp', '0x76534210')}, s36")
    k.e("s_and_b32 s30, s30, 7")
    if two:
        k.e("s_and_b32 s36, s30, 4")
        k.e("s_add_u32 s43, s30, s36")
        k.e("s_lshl_b32 s36, s63, 2")
        k.e("s_add_u32 s30, s43, s36")
    else:
        k.e("s_lshl_b32 s43, s30, 1")
        k.e("s_add_u32 s30, s43, s63")
    k.e("s_and_b32 s29, s29, 15")
    k.e("s_and_b32 s36, s28, 3")
    k.e("s_lshl_b32 s37, s29, 2")
    k.e("s_add_u32 s36, s36, s37")
    k.e("s_lshl_b32 s36, s36, 18")
    k.e("s_lshr_b32 s37, s28, 2")
    k.e("s_lshl_b32 s37, s37, 12")
    k.e("s_add_u32 s36, s36, s37")
    k.e("s_lshl_b32 s37, s63, 16")
    k.e("s_add_u32 s36, s36, s37")
    k.e("s_lshr_b32 s37, s28, 2")
    k.e("s_lshl_b32 s37, s37, 17")
    k.e("s_add_u32 s36, s36, s37")
    k.e("v_lshl_add_u32 v2, v1, 4, s36")
    k.e(hole("c", "v2"))
    k.e(f"v_xor_b32 v3, {1<<17}, v2")
    k.e("v_lshrrev_b32 v19, 4, v1")
    k.e("s_lshr_b32 s36, s28, 2")
    k.e("s_lshl_b32 s36, s36, 7")
    k.e("s_and_b32 s37, s28, 3")
    k.e("s_lshl_b32 s37, s37, 4")
    k.e("s_add_u32 s36, s36, s37")
    k.e("s_lshl_b32 s33, s36, 8")
    k.e("s_lshl_b32 s37, s63, 11")
    k.e("s_add_u32 s36, s36, s37")
    k.e("v_add_u32 v18, s36, v19")
    k.e("v_lshlrev_b32 v18, 11, v18")
    k.e("s_lshl_b32 s36, s43, 7")
    k.e("v_add_u32 v18, s36, v18")
    k.e("v_lshlrev_b32 v20, 1, v19")
    k.e("v_and_b32 v21, 7, v1")
    k.e("v_xor_b32 v20, v20, v21")
    k.e("v_lshl_add_u32 v18, v20, 4, v18")
    k.e("v_and_b32 v21, 8, v1")
    k.e(f"v_lshl_add_u32 v6, v21, {6 if two else 4}, v18")
    k.e("v_xor_b32 v21, 8, v21")
    k.e(f"v_lshl_add_u32 v7, v21, {6 if two else 4}, v18")
    k.e(f"v_add_u32 v7, {8192-1024}, v7")
    k.e(f"v_add_u32 v8, {2*(8192-1024)}, v6")
    k.e(f"v_add_u32 v9, {2*(8192-1024)}, v7")
    k.e("s_add_u32 s36, s2, 1")
    k.e("s_mov_b32 s62, 0" if CFG.get("evn") else "s_and_b32 s62, s36, 3")
    k.e("s_lshl_b32 s31, s62, 14")
    k.e("s_lshl_b32 s32, s62, 20")

def p4_setup2(k):
    k.e("v_bfe_u32 v20, v1, 2, 2")
    k.e("v_lshl_add_u32 v18, v19, 2, v20")
    k.e("v_and_b32 v20, 7, v18")
    k.e("s_lshl_b32 s36, s63, 2")
    k.e("s_xor_b32 s36, s36, 4")
    k.e("v_xor_b32 v20, s36, v20")
    k.e("v_lshlrev_b32 v18, 8, v18")
    k.e("s_lshr_b32 s36, s28, 2")
    k.e("s_lshl_b32 s36, s36, 15")
    k.e("s_add_u32 s36, s36, 65536")
    k.e("v_add_u32 v18, s36, v18")
    k.e("v_and_b32 v21, 3, v1")
    k.e("v_lshl_add_u32 v18, v21, 3, v18")
    for cb in range(8):
        k.e(f"v_xor_b32 v21, {cb}, v20")
        k.e(f"v_lshl_add_u32 v{50+cb}, v21, 5, v18")
    k.e(zero(A.O_, 64))

def ctx_ready(k, n, pre=None):
    l, le, lc = k.newlabel("cspin"), k.newlabel("cspinx"), k.newlabel("cchk")
    L = ["s_mov_b32 s61, 0x40000"]
    if pre is not None: L += [f"s_waitcnt vmcnt({pre})", f"s_branch {lc}"]
    return L + [l + ":", "s_sub_u32 s61, s61, 1", f"s_cbranch_scc1 {le}",
            "global_load_dword v59, v58, s[90:91] sc1", "s_waitcnt vmcnt(0)", lc + ":", "v_cmp_le_u32 vcc, 4, v59", "s_nop 0",
            "s_and_b32 s60, vcc_lo, 15", f"s_and_b32 s36, s60, {(1<<n)-1}", f"s_cmp_eq_u32 s36, {(1<<n)-1}", f"s_cbranch_scc1 {le}",
            "s_sleep 6", f"s_branch {l}", le + ":"]

def p4_pieces(k, cfg, tops):
    def wdma(stage, h):
        L = [[f"s_add_u32 m0, s34, {(stage^1)*65536 + h*16384}"]]
        L += [[VM(f"buffer_load_dwordx4 v{6+j}, s[8:11], s32 offen offset:{j*1024} lds", ("W", stage, h))] for j in range(4)]
        L.append([f"s_add_u32 s32, s32, {64*2048}"] if h == 0 else [f"s_add_u32 s32, s32, {192*2048}", "s_and_b32 s32, s32, 0x3fffff"])
        return L
    def xld(xs, s_):
        return [VM(f"buffer_load_dwordx4 {v(XF4[xs]+(s_*2+rb)*4,4)}, v{2+rb}, s[4:7], s31 offen offset:{s_*1024}{SC}", ("x", xs, s_)) for rb in range(2)]
    def wrd(s_, cb):
        return [DS(f"ds_read_b64_tr_b16 {v(WR4+4*cb+2*t,2)}, v{50+cb} offset:{(32*s_+16*t)*256}", ("w", cb)) for t in range(2)]
    xadv = ["s_add_u32 s31, s31, 8192", "s_and_b32 s31, s31, 0xffff"]
    nopw = lambda L: [g + (["s_nop 0"] if i == 0 else []) for i, g in enumerate(L)]
    uni = cfg.get("uni")
    prow0 = ["s_mov_b32 s34, s33"] + [nopw(wdma(t, h)) for t in range(2) for h in range(2)][:3 if uni else 4]
    prox = [xld(0, s_) for s_ in range(4)] + xadv
    D = 6
    XA = int(cfg.get("xa", 3))
    pro2 = [wrd(0, cb) for cb in range(D)] + ["s_mov_b32 s35, 0", Need("vm", [("x", 0, int(cfg.get("xw", 3)))])] + [xld(1, s_) for s_ in range(XA)]
    body = []
    for stage in range(2):
        for hh in range(2):
            M, fills, pre = [], [[] for _ in range(32)], {}
            for s_ in range(2*hh, 2*hh+2):
                for cb in range(8):
                    for rb in range(2):
                        o = A.Oreg(rb, cb)
                        M.append(f"{MF} {v(o,4)}, {v(WR4+4*cb,4)}, {v(XF4[stage]+(s_*2+rb)*4,4)}, {v(o,4)}")
            for p in range(16):
                if p % 2 == 0: pre[2*p] = [Need("ds", [("w", p % 8), ("w", (p+1) % 8)])]
                if p % 8 == 0: pre[2*p] += [Need("vm", [("x", stage, 2*hh + p // 8)])]
                f = p + D
                if f < 16:
                    r = wrd(2*hh + f // 8, f % 8)
                    fills[2*p] += [r[0]]; fills[2*p+1] += [r[1]]
                    if hh == 1 and f >= 8: fills[2*p+1] += [f"v_xor_b32 v{50+f%8}, 65536, v{50+f%8}"]
            if hh == 0: pre[0] = [tops[stage]] + pre[0]
            ev = []
            if stage == 1 and hh == 1:
                chk = switch(k, "s35", [(0, ctx_ready(k, 3, 7)), (1, ctx_ready(k, 4, 7))])
                ev = [Alt(A.ool(k, ["s_cmp_lt_u32 s60, 15"], "s_cbranch_scc1", chk), lambda c: [])]
            if stage == 1 and hh == 0:
                ev = [Alt(A.ool(k, ["s_cmp_lt_u32 s60, 15"], "s_cbranch_scc1", ["global_load_dword v59, v58, s[90:91] sc1"]), lambda c: [])]
            nxt = (stage, 1) if hh == 0 else (stage ^ 1, 0)
            fills[2*11+1] += ev + ["s_waitcnt lgkmcnt(0)", Need("vm", [("W",) + nxt, "yp" if (stage, hh) == (1, 1) else None]), "s_barrier"]
            nx = {12: [0, 1], 13: [2, 3], 14: [4], 15: [5]}
            for p, fl in nx.items():
                for i, f in enumerate(fl): fills[2*p+i] += wrd(2*nxt[1], f)
            if uni:
                wpos, xp = {"1": ([0, 1, 9, 17, 25, 26], [5, 13, 21, 29]), "2": ([0, 1, 5, 9, 13, 14], [17, 21, 25, 29]),
                            "3": ([3, 4, 12, 19, 28, 29], [0, 8, 16, 22])}[uni]
                for i, g in enumerate(wdma(stage, 0) if hh else wdma(stage ^ 1, 1)): fills[wpos[i]] += g
            else:
                wpos = {"0": [25, 26, 28, 30, 31, 31], "1": [24, 25, 27, 29, 31, 31]}[cfg.get("wp", "0")]
                for i, g in enumerate(wdma(stage, hh)): fills[wpos[i]] += g
                xp = {"0": [3, 9, 17, 21], "1": [5, 11, 17, 22], "2": [1, 3, 17, 19]}[cfg.get("xp", "0")]
            for i in range(2):
                s_ = 2*hh + i
                ts = s_ + XA
                xl = xld(stage ^ 1, ts) if ts < 4 else xld(stage, ts - 4)
                fills[xp[2*i]] += [xl[0]]; fills[xp[2*i+1]] += [xl[1]]
                if ts == 3: fills[xp[2*i+1]] += xadv
            ladder(fills, 24, 32, "4" in cfg.get("lad", ""))
            hb = flat(weave(M, fills, pre, int(cfg.get("g4", 1)))) if cfg.get("p4dbg") else weave(M, fills, pre, int(cfg.get("g4", 1)))
            dbg = cfg.get("p4dbg", "")
            if "b" in dbg or ("h" in dbg and hh == 0): hb = [x for x in hb if x != "s_barrier"]
            if "v" in dbg: hb = [x for x in hb if not (isinstance(x, Op) and x.kind == "vm")]
            if "w" in dbg: hb = [x for x in hb if not (isinstance(x, Op) and x.kind == "vm" and "lds" in x.text)]
            if "l" in dbg: hb = [x for x in hb if x != "s_waitcnt lgkmcnt(0)"]
            body += hb
            if hh == 1: body += cfg["sth4"].hist(8, first=(stage == 0))
    nf = int(cfg.get("nf", 1))
    seq = [(0, s_, cb) for s_ in range(nf) for cb in range(8)]
    for c0 in (0, 4): seq += [(t, s_, cb) for t in range(2) for s_ in range(4) if 4*t + s_ >= nf for cb in range(c0, c0+4)]
    p2s = 2 * (32 + 4*nf)
    first = lambda t, s_: 2 * ((min(i for i, q in enumerate(seq) if q[:2] == (t, s_)) - D) // 2 * 2)
    M, fills, pre = [], [[] for _ in range(128)], {}
    seen = set()
    for p, (t, s_, cb) in enumerate(seq):
        for rb in range(2):
            o = A.Oreg(rb, cb)
            M.append(f"{MF} {v(o,4)}, {v(WR4+4*(p%8),4)}, {v(XF4[t]+(s_*2+rb)*4,4)}, {v(o,4)}")
        if p % 2 == 0: pre[2*p] = [Need("ds", [("w", p % 8), ("w", (p+1) % 8)])]
        if (t, s_) not in seen:
            seen.add((t, s_)); pre[2*p] += [Need("vm", [("x", t, s_)])]
        f = p + D
        if f < 64:
            t2, s2, c2 = seq[f]
            for h in range(2):
                fills[2*p+h] += [DS(f"ds_read_b64_tr_b16 {v(WR4+4*(f%8)+2*h,2)}, v{50+c2} offset:{(32*s2+16*h)*256}", ("w", f % 8))]
            if (t2, s2) == (0, 3): fills[2*p+1] += [f"v_xor_b32 v{50+c2}, 65536, v{50+c2}"]
    ops = (wdma(1, 1)[:-1] if uni else []) + [[x] for x in flat([xld(1, s_) for s_ in range(XA, 4)])]
    for i, x in enumerate(ops): fills[3*i] += x
    pre[first(0, 2)] = [Need("vm", [("W", 0, 1)]), "s_barrier"] + pre[first(0, 2)]
    pre[first(1, 0)] = [Need("vm", [("W", 1, 0)]), "s_barrier"] + pre[first(1, 0)]
    pre[first(1, 2)] = [Need("vm", [("W", 1, 1)]), "s_barrier"] + pre[first(1, 2)]
    g = [x for x in lines(gcalc, False) if x != "s_nop 0"]
    g0, g1 = 8, int(cfg.get("g1", 72))
    pre[g0] += [Need("ds", ["xi"])]
    for i in range(0, len(g), 2):
        fills[g0 + i * (g1 - g0) // len(g)] += g[i:i+2]
    e1 = p2s + 10
    for cb in range(4):
        fills[p2s+2+cb] += [DS(f"ds_write_b128 v20, {v(A.Oreg(1,cb),4)} offset:{cb*1024}", "e1w")]
        fills[e1+1+cb//2] += [DS(f"ds_read_b128 {v(A.Oreg(1,cb),4)}, v21 offset:{cb*1024}", ("e1r", cb))]
        o0, o1 = A.Oreg(0, cb), A.Oreg(1, cb)
        fills[e1+6+2*cb] += [Need("ds", [("e1r", cb)])] + [f"v_add_f32 v{o0+e}, v{o0+e}, v{o1+e}" for e in range(2)]
        fills[e1+7+2*cb] += [f"v_add_f32 v{o0+e}, v{o0+e}, v{o1+e}" for e in range(2, 4)]
        fills[e1+7+2*cb] += [VM(f"buffer_store_dwordx4 {v(o0,4)}, v18, s[24:27], s41 offen offset:{cb*1024}{SC}", "ex")]
    fills[e1] += [Need("ds", ["e1w"]), "s_barrier"]
    fills[122] += ["s_lshr_b32 s36, s28, 2", "s_lshl_b32 s36, s36, 15", "s_and_b32 s37, s28, 3"]
    fills[123] += ["s_lshl_b32 s37, s37, 12", "s_add_u32 s36, s36, s37", "s_add_u32 s36, s36, 65536"]
    fills[124] += ["v_add_u32 v20, s36, v22", "v_xor_b32 v21, 32768, v20"]
    sp = int(cfg.get("sgp", 127))
    fills[sp] += ["s_waitcnt vmcnt(0)"] + signal("s[90:91]", "s40", "v4", "v13")
    fin = ["s_waitcnt vmcnt(16)", Need("vm", ["xl"])] + [DS(f"ds_read_b64 {v(XI+2*cb,2)}, v17 offset:{cb*32}", "xi") for cb in range(4)] + weave(M, fills, pre)
    return prow0, prox, pro2, body, fin

def routed(k, part):
    if part == 0:
        k.e([f"s_add_u32 s36, s30, {CNT_F2}", "s_lshl_b32 s36, s36, 7", "v_mov_b32 v60, s36", "global_load_dword v61, v60, s[90:91] sc1"])
        return
    if part == 1:
        k.e("s_waitcnt vmcnt(16)")
        emit(k, check(k, "s[90:91]", "v60", "v61", 16, 1))
        k.e(["s_lshl_b32 s37, s30, 8", f"s_add_u32 s36, s37, {WS_YP}", "s_add_u32 s37, s36, 4096",
             "v_and_b32 v60, 15, v1", "v_lshlrev_b32 v60, 13, v60", "v_lshl_add_u32 v60, v19, 4, v60"])
        for t in range(2):
            for cb in range(4):
                k.e(f"buffer_load_dwordx4 {v(96+16*t+4*cb,4)}, v60, s[24:27], s{36+t} offen offset:{cb*64}{SC}")
        return
    k.e(zero(YA, 16))
    k.e("s_waitcnt vmcnt(16)")
    for t in range(2):
        lsk = k.newlabel("noy")
        R = 96 + 16*t
        k.e(f"s_sub_u32 s36, s{56+t}, s38")
        k.e("s_cmp_lt_u32 s36, 16")
        k.e(f"s_cbranch_scc0 {lsk}")
        k.e(f"s_and_b32 s36, s{58+t}, 0xffff0000")
        k.e("s_cmp_lt_i32 s36, 0")
        k.e("s_cselect_b32 s37, 0x80000000, -1")
        k.e("s_xor_b32 s36, s36, s37")
        k.e("s_and_b32 s36, s36, 0xffff0000")
        k.e("v_mov_b32 v62, s36")
        k.e("v_mul_f32 v62, 0xbfb8aa3b, v62")
        k.e("v_exp_f32 v62, v62")
        k.e("s_nop 0")
        k.e("v_add_f32 v62, 1.0, v62")
        k.e("v_rcp_f32 v62, v62")
        k.e("s_nop 0")
        rbf(k, "v62")
        for m in ["quad_perm:[1,0,3,2]", "quad_perm:[2,3,0,1]", "row_half_mirror", "row_mirror"]:
            for r in range(16):
                k.e(f"v_add_f32_dpp v{R+r}, v{R+r}, v{R+r} {m} row_mask:0xf bank_mask:0xf")
        k.e(f"v_cmp_eq_u32 vcc, s{56+t}, v14")
        for r in range(0, 16, 2):
            for rep in range(2):
                k.e(f"v_cvt_pk_bf16_f32 v63, v{R+r}, v{R+r+1}")
                k.e(f"v_lshlrev_b32 v{R+r}, 16, v63")
                k.e(f"v_and_b32 v{R+r+1}, 0xffff0000, v63")
                if rep == 0: k.e([f"v_mul_f32 v{R+r}, v62, v{R+r}", f"v_mul_f32 v{R+r+1}, v62, v{R+r+1}"])
            k.e(f"v_cndmask_b32 v{YA+r}, v{YA+r}, v{R+r}, vcc")
            k.e(f"v_cndmask_b32 v{YA+r+1}, v{YA+r+1}, v{R+r+1}, vcc")
        k.label(lsk)

RT = ["s_sub_u32 s36, s56, s38", "s_sub_u32 s37, s57, s38", "s_min_u32 s36, s36, s37", "s_cmp_lt_u32 s36, 16"]
import os
if os.environ.get("NORT"): RT[-1] = "s_cmp_lt_u32 s36, 0"
def ex_addr():
    return ["s_lshl_b32 s36, s2, 15", "s_lshl_b32 s37, s28, 12", "s_add_u32 s36, s36, s37", f"s_add_u32 s36, s36, {WS_EX}"]

def p4_final(k, cfg):
    k.e("s_nop 4")
    for cb in range(4): k.e(f"ds_write_b128 v20, {v(A.Oreg(1,4+cb),4)} offset:{cb*1024}")
    emit(k, A.ool(k, RT, "s_cbranch_scc1", lines(gcalc, True)))
    cfg["st5"].mark()
    emit(k, A.ool(k, [f"s_cmp_eq_u32 s28, {cfg.get('exp', 3)}"], "s_cbranch_scc1", spin(k, "s[90:91]", "v5", "v23", 8, int(cfg.get("exs", 1)))))
    k.e("s_waitcnt lgkmcnt(0)")
    k.e("s_barrier")
    cfg["st5"].mark()
    for cb in range(4): k.e(f"buffer_load_dwordx4 {v(64+4*cb,4)}, v18, s[24:27], s39 offen offset:{cb*1024}{SC}")
    for cb in range(4): k.e(f"ds_read_b128 {v(128+4*cb,4)}, v21 offset:{cb*1024}")
    for cb in range(4):
        k.e(f"s_waitcnt lgkmcnt({3-cb})")
        for e in (0, 2): k.e(f"v_pk_add_f32 {v(128+4*cb+e,2)}, {v(128+4*cb+e,2)}, {v(A.Oreg(0,4+cb)+e,2)}")
    for cb in range(4):
        k.e(f"s_waitcnt vmcnt({3-cb})")
        for h in range(2):
            a, b = 128+4*cb+2*h, 128+4*cb+2*h+1
            k.e(f"v_pk_add_f32 {v(a,2)}, {v(a,2)}, {v(64+4*cb+2*h,2)}")
            def rnd2():
                k.e(f"v_cvt_pk_bf16_f32 v23, v{a}, v{b}")
                k.e(f"v_lshlrev_b32 v{a}, 16, v23")
                k.e(f"v_and_b32 v{b}, 0xffff0000, v23")
            rnd2()
            k.e(f"v_pk_mul_f32 {v(a,2)}, {v(a,2)}, {v(G+4*cb+2*h,2)}")
            rnd2()
            k.e(f"v_pk_add_f32 {v(a,2)}, {v(a,2)}, {v(X32+4*cb+2*h,2)}")
            k.e(f"v_cvt_pk_bf16_f32 v{80+2*cb+h}, v{a}, v{b}")
        k.e(f"ds_write_b64 v17, {v(80+2*cb,2)} offset:{cb*32}")
    k.e("v_add_u32 v22, s42, v22")
    k.e(f"s_mov_b32 s36, {8*2048}")
    k.e("s_waitcnt lgkmcnt(0)")
    k.e("ds_read_b128 v[64:67], v22")
    k.e("ds_read_b128 v[68:71], v22 offset:1024")
    k.e("s_waitcnt lgkmcnt(1)")
    k.e(f"buffer_store_dwordx4 v[64:67], v15, s[20:23], 0 offen {cfg.get('ofl', '')}")
    k.e("s_waitcnt lgkmcnt(0)")
    k.e(f"buffer_store_dwordx4 v[68:71], v15, s[20:23], s36 offen {cfg.get('ofl', '')}")

def p4(k, cfg, st):
    kx = K("tmp")
    kx.e(["s_lshl_b32 s36, s29, 7", "s_and_b32 s37, s28, 3", "s_lshl_b32 s37, s37, 5", "s_add_u32 s36, s36, s37",
          "s_lshr_b32 s37, s28, 2", "s_lshl_b32 s37, s37, 4", "s_add_u32 s38, s36, s37",
          "v_and_b32 v17, 15, v1", "v_add_u32 v14, s38, v17", "v_lshlrev_b32 v16, 3, v14",
          "v_lshrrev_b32 v15, 3, v1", "v_add_u32 v15, s38, v15", "v_lshlrev_b32 v15, 11, v15", "v_and_b32 v4, 7, v1",
          "v_lshl_add_u32 v15, v4, 4, v15", "s_lshl_b32 s36, s30, 7", "v_add_u32 v15, s36, v15",
          "s_lshl_b32 s36, s28, 12", f"s_add_u32 s42, s36, {LDS_X}", "v_lshl_add_u32 v17, v17, 7, s42", "v_lshl_add_u32 v17, v19, 3, v17"])
    xl = ["s_mov_b32 m0, s42", f"s_mov_b32 s36, {8*2048-1024}", VM("buffer_load_dwordx4 v15, s[16:19], 0 offen lds"),
          VM("buffer_load_dwordx4 v15, s[16:19], s36 offen offset:1024 lds"),
          f"s_mov_b32 s36, {WS_ST}", VM(f"buffer_load_dwordx2 {v(XI+8,2)}, v16, s[24:27], s36 offen{SC}", "xl")]
    n_ctx = Need("vm", ["ctxst"])
    sig = ["v_mov_b32 v26, s40", "v_mov_b32 v28, 1", "v_writelane_b32 v26, s41, 1",
           "s_mov_b64 exec, 3", "global_atomic_add v26, v28, s[90:91]", "s_mov_b64 exec, -1"]
    sigA = Alt(A.ool(k, ["s_cmp_eq_u32 s28, 0"], "s_cbranch_scc1", sig), lambda c: sig if c["w0"] else [])
    redA = guard(k, ["s_cmp_lt_u32 s28, 4"], "s_cbranch_scc0", ffn2_reduce(), "lo")
    f2 = ["s_and_b32 s36, s2, 15", f"s_add_u32 s36, s36, {CNT_F2}", "s_lshl_b32 s36, s36, 7"] + signal("s[90:91]", "s36", "v26", "v27")
    f2A = guard(k, ["s_cmp_eq_u32 s28, 0"], "s_cbranch_scc0", f2, "w0")
    def rt(part):
        kr = K(k.name + f"_rt{part}"); routed(kr, part)
        lrt = k.newlabel("nrt")
        return Alt(RT + [f"s_cbranch_scc0 {lrt}"] + [x.strip() for x in kr.lines] + [lrt + ":"], lambda c: [])
    ev0 = {1: [f2A], 2: [rt(0)] + xl}
    ev1 = {2: [rt(1)]}
    if "4" in cfg.get("cpf", ""):
        ev1[2] = [guard(k, ["s_cmp_eq_u32 s28, 0"], "s_cbranch_scc0", ["s_mov_b32 s43, s38"] + code_touch(k, 4, "v63") + ["s_mov_b32 s38, s43"], "w0")] + ev1[2]
    tops = [Alt(A.ool(k, ["s_cmp_lg_u32 s35, 0"], "s_cbranch_scc1", switch(k, "s35", sorted(ev0.items()))), lambda c: ev0.get(c["it"])),
            Alt(A.ool(k, ["s_cmp_eq_u32 s35, 2"], "s_cbranch_scc1", switch(k, "s35", sorted(ev1.items()))), lambda c: ev1.get(c["it"]))]
    prow0, prox, pro2, body, fin = p4_pieces(k, cfg, tops)
    n_w0 = Need("vm", [("W", 0, 0)])
    scen = []
    for w0, lo, n7 in ((1, 1, 1), (0, 1, 1), (0, 0, 1), (0, 0, 0)):
        c = dict(w0=w0, lo=lo, n7=n7, it=0)
        sq = flat([VM("", "ctxst"), n_ctx, sigA, prow0, n_w0, prox, redA, pro2], c)
        for it in range(3): sq += flat([body], dict(c, it=it))
        scen.append(sq + flat(fin, c))
    resolve(scen)
    k.e("s_and_b32 s36, s29, 28")
    k.e(f"s_sub_u32 s40, {15+CNT_CTX}, s30")
    k.e("s_lshl_b32 s40, s40, 7")
    k.e("s_add_u32 s40, s40, s36")
    k.e(f"s_add_u32 s41, s30, {CNT_CTX}")
    k.e("s_lshl_b32 s41, s41, 7")
    k.e("s_add_u32 s41, s41, s36")
    p4_setup(k)
    pb = cfg.get("pb", "")
    rest = lines(srd, 4, 54, 16777216 + DELTA, WS_CTX) + lines(srd, 16, 96, 4194304) + lines(srd, 20, 98, 4194304) + [x.strip() for x in kx.lines] + lines(p4_setup2)
    if "s" in pb: k.e(rest)
    if "m" in pb:
        l7 = k.newlabel("w7")
        emit(k, ["s_waitcnt vmcnt(4)", "s_cmp_eq_u32 s28, 7", f"s_cbranch_scc1 {l7}"] + lines(ffn2_math) + [l7 + ":"])
    emit(k, [n_ctx, "s_barrier", sigA])
    st.mark()
    if "m" in pb: emit(k, prow0)
    else:
        lm, lm1, lm2 = k.newlabel("f2m"), k.newlabel("f2a"), k.newlabel("f2b")
        A.OOL.append([lm + ":"] + lines(ffn2_math) + ["s_cmp_lt_u32 s28, 4", f"s_cbranch_scc1 {lm2}", f"s_branch {lm1}"])
        k.e("s_bitcmp1_b32 0x70, s28")
        k.e(f"s_cbranch_scc1 {lm}")
        k.label(lm1)
        emit(k, prow0)
        k.e("s_cmp_lt_u32 s28, 4")
        k.e(f"s_cbranch_scc1 {lm}")
        k.label(lm2)
    if "s" not in pb: k.e(rest)
    k.e("s_mov_b32 s60, 15")
    lj = k.newlabel("w7j")
    k.e(f"s_cmp_eq_u32 s28, {cfg.get('pw', 3)}")
    k.e(f"s_cbranch_scc0 {lj}")
    k.e("v_add_u32 v58, s62, v1")
    k.e("v_and_b32 v58, 3, v58")
    k.e(f"s_add_u32 s36, s29, {CNT_CTX}")
    k.e("s_lshl_b32 s36, s36, 7")
    k.e("s_lshl_b32 s37, s63, 4")
    k.e("s_add_u32 s36, s36, s37")
    k.e("v_lshl_add_u32 v58, v58, 2, s36")
    emit(k, ctx_ready(k, int(cfg.get("rdy0", 2))))
    k.label(lj)
    emit(k, [n_w0])
    k.e("s_waitcnt lgkmcnt(0)")
    st.mark()
    k.e("s_barrier")
    st.mark()
    emit(k, prox)
    emit(k, [redA])
    k.e("v_lshlrev_b32 v22, 4, v1")
    k.e(["v_mov_b32 v18, v22"] + hole("e", "v18"))
    k.e("v_add_u32 v20, s42, v22")
    k.e("v_xor_b32 v21, 16384, v20")
    k.e(ex_addr())
    k.e("s_mov_b32 s41, s36")
    k.e(f"s_xor_b32 s39, s36, {PX() << 15}")
    k.e(f"s_add_u32 s40, s2, {CNT_EX}")
    k.e("s_lshl_b32 s40, s40, 7")
    emit(k, pro2)
    if "x" in cfg.get("p4off", ""): k.e("s_mov_b32 s6, 0")
    if "w" in cfg.get("p4off", ""): k.e(["s_mov_b32 s10, 0", "s_mov_b32 s34, 0x28000"])
    st.mark()
    if cfg.get("p4prio"):
        emit(k, ["s_cmp_lt_u32 s28, 4", "s_cbranch_scc1 L_p4_np", "s_setprio 1", "L_p4_np:"])
    k.align(6)
    k.label("L_p4_loop")
    emit(k, body)
    k.e("s_add_u32 s35, s35, 1")
    k.e("s_cmp_lt_u32 s35, 3")
    k.e("s_cbranch_scc1 L_p4_loop")
    st.mark()
    kr = K(k.name + "_rt2"); routed(kr, 2)
    emit(k, A.ool(k, RT, "s_cbranch_scc1", [x.strip() for x in kr.lines]))
    k.e(f"s_xor_b32 s37, s40, {PX() << 7}")
    k.e("v_mov_b32 v5, s37")
    emit(k, fin)
    st.mark()
    cfg["st5"].mark()
    p4_final(k, cfg)
    cfg["st5"].mark()

def gen_fused(cfg, name):
    cfg = dict(cfg, stflag=SC, pro_hook=pro_hook, pro_wait=pro_wait, bar_hook=bar_hook, b_hook=b_hook, b_inline=["buffer_load_dword v0, v13, s[4:7], s48 offen", f"s_add_u32 s48, s48, {128*int(cfg.get('btl', 32))}"], before_merge=before_merge, tail_extra=tail_extra, share=1)
    CFG.update(cfg)
    HOLE[0] = cfg.get("hole", "")
    Z64[0] = not cfg.get("noz64")
    k = K(name)
    k.e("s_cmp_ge_u32 s2, 256")
    k.e("s_cbranch_scc1 L_end")
    stq = cfg.get("stamp", "")
    st = Stamps(k, bool(stq), kid=0)
    off = Stamps(k, False)
    st.mark()
    cfg["sth4"] = st if "d" in stq else off
    cfg["st5"] = st if "5" in stq else off
    cfg["sth1"] = st if "a" in stq else off
    cfg["sth2"] = st if "b" in stq else off
    p1(k, cfg, st if "1" in stq else off)
    if "b" in stq: st.mark()
    p2(k, cfg, st if "2" in stq else off)
    k.e("s_load_dwordx2 s[32:33], s[0:1], 40")
    k.e("s_load_dwordx2 s[34:35], s[0:1], 80")
    k.e("s_load_dwordx2 s[96:97], s[0:1], 0")
    k.e("s_load_dwordx2 s[98:99], s[0:1], 88")
    s3 = st if "3" in stq else off
    k.e("s_cmp_lt_u32 s28, 4")
    k.e("s_cbranch_scc0 L_grp1")
    A.gen_p3(k, cfg, 0, s3, after_q, before_tail)
    k.e("s_branch L_p3_done")
    A.flush_ool(k)
    k.label("L_grp1")
    A.gen_p3(k, cfg, 1, s3, after_q, before_tail)
    k.e("s_branch L_p3_done")
    A.flush_ool(k)
    k.label("L_p3_done")
    st.mark()
    p4(k, cfg, st if "4" in stq else off)
    st.dump(54, "s28")
    if cfg.get("stdbg"):
        k.e("s_lshl_b32 s36, s28, 8"); k.e("s_add_u32 s36, s36, s2")
        k.e(f"s_cmp_eq_u32 s36, {cfg['stdbg']}"); k.e("s_cbranch_scc0 L_end")
        k.e("v_mov_b32 v2, 0"); k.e("s_mov_b64 exec, 1")
        for i in range(1, st.n):
            k.e(f"s_sub_u32 s36, s{st.base+2*i+1}, s{st.base+1}")
            k.e("v_mov_b32 v3, s36")
            k.e(f"global_store_dword v2, v3, s[88:89] offset:{4*i}")
    k.e("s_endpgm")
    A.flush_ool(k)
    k.label("L_end")
    return wrap(k, 256)
```

```python
from common import *

O_  = 192
Q_  = 128
QS_ = 160
S_  = 96
RG_ = 64
P_  = 48
NM_ = 40
L_  = 28
ONE = 36
vKr, vVr, vD, vNx, vMk, vD2, vL16 = "v2", "v3", "v4", "v5", "v18", "v6", "v7"
LS_ = 8
T_  = 20
LDS_W = 98304
LDS_X = 131072
CSCALE = 0x3e0293ee
NEGBIG = 0xf149f2ca

def Oreg(qb, db): return O_ + (qb*8+db)*4
def Sreg(buf, qb, kb): return S_ + buf*16 + (qb*2+kb)*4
def Preg(buf, qb): return P_ + buf*8 + qb*4

def p2_setup(k):
    k.e("s_and_b32 s36, s28, 3")
    k.e("s_sub_u32 s37, 15, s30")
    k.e("s_cmp_lt_u32 s28, 4")
    k.e("s_cselect_b32 s37, s37, s30")
    k.e("s_lshl_b32 s37, s37, 2")
    k.e("s_add_u32 s37, s37, s36")
    k.e("s_lshl_b32 s37, s37, 16")
    k.e("v_lshl_add_u32 v2, v1, 4, s37")
    k.e("v_add_u32 v3, 32768, v2")
    k.e("v_lshrrev_b32 v18, 4, v1")
    k.e("s_lshl_b32 s37, s28, 4")
    k.e("v_add_u32 v19, s37, v18")
    k.e("v_lshlrev_b32 v19, 13, v19")
    k.e("s_lshl_b32 s37, s29, 8")
    k.e("v_add_u32 v19, s37, v19")
    k.e("v_and_b32 v20, 15, v1")
    k.e("v_lshlrev_b32 v21, 1, v18")
    k.e("v_xor_b32 v21, v20, v21")
    k.e("v_lshl_add_u32 v6, v21, 4, v19")
    k.e(f"v_add_u32 v7, {32768-1024}, v6")
    k.e("v_xor_b32 v21, 8, v21")
    k.e("v_lshl_add_u32 v8, v21, 4, v19")
    k.e(f"v_add_u32 v8, {2*(32768-1024)}, v8")
    k.e(f"v_add_u32 v9, {32768-1024}, v8")
    k.e("s_lshl_b32 s33, s28, 12")
    k.e(f"s_add_u32 s33, s33, {LDS_W}")
    k.e("s_mov_b32 s31, 0")
    k.e("s_mov_b32 s32, 0")

def p2_setup2(k):
    k.e("v_lshrrev_b32 v20, 2, v20")
    k.e("v_lshl_add_u32 v19, v18, 3, v20")
    k.e("v_lshlrev_b32 v19, 8, v19")
    k.e(f"v_add_u32 v19, {LDS_W}, v19")
    k.e("v_and_b32 v21, 3, v1")
    k.e("v_lshl_add_u32 v19, v21, 3, v19")
    k.e("v_and_b32 v21, 1, v18")
    k.e("v_lshl_add_u32 v20, v21, 2, v20")
    for db in range(8):
        k.e(f"v_xor_b32 v21, {db}, v20")
        k.e(f"v_lshl_add_u32 v{10+db}, v21, 5, v19")
    k.e("s_lshl_b32 s43, s28, 12")
    k.e("v_lshl_add_u32 v4, v1, 4, s43")
    k.e("s_add_u32 s44, s43, 65536")
    k.e("s_lshl_b32 s45, s29, 20")
    for r in range(64):
        k.e(f"v_mov_b32 v{O_+r}, 0")

def p2_pieces(cfg):
    WF = [64, 96]; XF = [128, 160]
    def wdma(stage):
        return [f"s_add_u32 m0, s34, {stage*32768}"] , [VM(f"buffer_load_dwordx4 v{6+j}, s[8:11], s32 offen offset:{j*1024} lds", ("W", stage)) for j in range(4)]
    def xld(xs, s_):
        return [VM(f"buffer_load_dwordx4 {v(XF[xs]+(s_*2+rb)*4,4)}, v{2+rb}, s[4:7], s31 offen offset:{s_*1024}", ("x", xs, s_)) for rb in range(2)]
    def wrd(stage, s_, fs):
        return [DS(f"ds_read_b64_tr_b16 {v(WF[fs]+4*db+2*t,2)}, v{10+db} offset:{stage*32768+(32*s_+4*t)*256}", ("w", fs)) for db in range(8) for t in range(2)]
    def mf(fs, xs, s_):
        return [f"{MF} {v(Oreg(rb,db),4)}, {v(WF[fs]+4*db,4)}, {v(XF[xs]+(s_*2+rb)*4,4)}, {v(Oreg(rb,db),4)}" for db in range(8) for rb in range(2)]
    pro = ["s_mov_b32 s34, s33"]
    for t in range(2):
        m, d = wdma(t)
        pro += m + ["s_nop 0"] + d + [f"s_add_u32 s32, s32, {128*8192}"]
        for s_ in range(4 if t == 0 else 3): pro += xld(t, s_)
        if t == 0: pro += ["s_add_u32 s31, s31, 4096"]
    pro2 = [Need("vm", [("W", 0)]), "s_barrier"] + wrd(0, 0, 0) + ["s_mov_b32 s35, 0"]
    kvpre = ["s_mov_b32 m0, s43", "s_add_u32 s46, s45, 65536"]
    kvpre += [VM(f"buffer_load_dwordx4 {vD}, s[12:15], s45 offen offset:{j*1024} lds", "kv") for j in range(4)]
    kvpre += ["s_add_u32 m0, s43, 32768", "s_add_u32 s47, s45, 32768"]
    kvpre += [VM(f"buffer_load_dwordx4 {vD}, s[12:15], s46 offen offset:{j*1024} lds", "kv") for j in range(4)]
    kvpre += ["s_mov_b32 m0, s44", "s_nop 0"]
    kvpre += [VM(f"buffer_load_dwordx4 {vD}, s[12:15], s47 offen offset:{j*1024} lds", "kv") for j in range(4)]
    body = []
    for stage in range(2):
        for s_ in range(4):
            fills = [[] for _ in range(16)]
            if s_ < 3:
                body += [Need("ds", [("w", s_ & 1)])]
                rd = wrd(stage, s_+1, (s_+1) & 1)
            else:
                body += [Need("ds", [("w", 1)]), Need("vm", [("W", stage ^ 1)]), "s_barrier"]
                rd = wrd(stage ^ 1, 0, 0)
            body += [Need("vm", [("x", stage, s_)])]
            for g in range(8): fills[g] += rd[2*g:2*g+2]
            if s_ == 0:
                xl = xld(stage ^ 1, 3)
                fills[8] += [xl[0]]; fills[9] += [xl[1], "s_add_u32 s31, s31, 4096"]
                if stage == 0:
                    fills[10] += ["s_cmp_lt_u32 s35, 3", "s_cselect_b32 s6, 4194304, 0", "s_cselect_b32 s10, 8388608, 0", "s_cselect_b32 s34, s33, 0x30000"]
            else:
                xl = xld(stage, s_-1)
                fills[8] += [xl[0]]; fills[9] += [xl[1]]
            if s_ == 3:
                m, d = wdma(stage)
                fills[9] += m
                for j in range(4): fills[10+j] += [d[j]]
                fills[14] += [f"s_add_u32 s32, s32, {128*8192}"]
            body += weave(mf(s_ & 1, stage, s_), fills)
    return pro, pro2, kvpre, body

def q_pack(k, grp, qwait=0):
    k.e(f"v_mov_b32 v20, {CSCALE}")
    k.e("v_mov_b32 v21, v20")
    k.e("s_and_b32 s37, s28, 3")
    k.e("s_lshl_b32 s37, s37, 13")
    k.e(f"v_lshlrev_b32 {vL16}, 4, v1")
    k.e(f"v_add_u32 {vD}, s37, {vL16}")
    k.e(f"v_add_u32 v19, {LDS_X}, {vD}")
    k.e(hole("k", vD))
    k.e(f"v_add_u32 {vD2}, 4096, {vD}")
    k.e("s_add_u32 s43, s37, 32768")
    k.e("s_add_u32 s44, s37, 98304")
    for f in range(8):
        a = O_ + 8*f
        k.e(pkmul(a, 8, 20))
        for q in range(4): k.e(f"v_cvt_pk_bf16_f32 v{Q_+4*f+q}, v{a+2*q}, v{a+2*q+1}")
        if grp == 0: k.e(f"ds_write_b128 v19, {v(Q_+4*f,4)} offset:{f*1024}")
    k.e(f"v_mov_b32 {vKr}, {vL16}")
    k.e("v_and_b32 v21, 15, v1")
    k.e("v_lshrrev_b32 v22, 4, v1")
    k.e("v_lshlrev_b32 v22, 2, v22")
    k.e(f"v_sub_u32 {vMk}, v21, v22")
    k.e("s_mov_b32 s40, 0")
    k.e("s_mov_b32 s41, 16384")
    k.e("s_mov_b32 s49, 0xffff")
    k.e("s_lshl_b32 s51, s30, 1")
    k.e("s_add_u32 s51, s51, 1")
    k.e("s_and_b32 s50, s28, 3")
    k.e("s_lshl_b32 s50, s50, 5")
    if grp == 1:
        k.e("s_lshl_b32 s42, 7, s51")
        k.e("s_lshr_b32 s42, s42, 2")
        k.e("s_or_b32 s42, s42, 0x8001")
    else:
        k.e("s_lshl_b32 s31, 1, s51")
        k.e("s_or_b32 s31, s31, 0x8000")
        k.e("s_add_u32 s36, s51, 1")
        k.e("s_lshl_b32 s36, -1, s36")
        k.e("s_or_b32 s48, s36, 0xaaaaaaab")
        k.e("s_and_b32 s48, s48, 0x7fff")
        k.e("s_or_b32 s39, s36, 0x55555555")
        k.e("s_and_b32 s39, s39, 0xffff")
        k.e(f"s_add_u32 s46, s45, 65536")
        k.e(f"s_add_u32 s47, s45, {65536+32768}")
    k.e("s_mov_b64 s[52:53], 0")
    k.e(f"s_waitcnt vmcnt({qwait}) lgkmcnt(0)")
    k.e("s_barrier")

OOL = []
MSK = ["s[20:21]", "s[22:23]", "s[62:63]", "vcc"]
LDS_MSG = LDS_X + 28672
def ool(k, cond, br, block):
    lr, lb = k.newlabel("rare"), k.newlabel("back")
    OOL.append([lr + ":"] + block + [f"s_branch {lb}"])
    return cond + [f"{br} {lr}", lb + ":"]
def flush_ool(k):
    while OOL: emit(k, OOL.pop(0))

def maskblk(k, buf, sU, inline=False):
    lf, le = k.newlabel("mf"), k.newlabel("me")
    L = [f"v_mov_b32 v{T_}, {NEGBIG}", f"s_cmp_gt_i32 {sU}, 0", f"s_cbranch_scc1 {lf}"]
    L += [f"v_cmp_gt_i32 {MSK[e]}, {e}, {vMk}" for e in range(4)]
    L += [f"v_mov_b32 v{Sreg(buf, 0, 1)+e}, v{T_}" for e in range(4)]
    for q in range(2):
        L += [f"v_cndmask_b32 v{Sreg(buf, q, q)+e}, v{Sreg(buf, q, q)+e}, v{T_}, {MSK[e]}" for e in range(4)]
    L += [f"s_branch {le}", lf + ":"] + [f"v_mov_b32 v{Sreg(buf, 0, 0)+r}, v{T_}" for r in range(16)] + [le + ":"]
    if inline:
        l = k.newlabel("nm")
        return [f"s_cmp_lt_i32 {sU}, 0", f"s_cbranch_scc1 {l}"] + L + [l + ":"]
    return ool(k, [f"s_cmp_lt_i32 {sU}, 0"], "s_cbranch_scc0", L)

def qk(buf, fr0, czero, qb0=Q_):
    L = []
    for kb in range(2):
        for sg in range(4):
            f = RG_ + 4*((fr0 + kb*4 + sg) % 8)
            for qb in range(2):
                d = Sreg(buf, qb, kb)
                c = v(d, 4) if sg else ("0" if czero else v(NM_+4*qb, 4))
                L.append(f"{MF} {v(d,4)}, {v(f,4)}, {v(qb0+(qb*4+sg)*4,4)}, {c}")
    return L

def pv(buf, fr0, ones=True):
    L = []
    for db in range(8):
        f = RG_ + 4*((fr0 + db) % 8)
        for qb in range(2):
            x = f"{MF} {v(Oreg(qb,db),4)}, {v(f,4)}, {v(Preg(buf,qb),4)}, {v(Oreg(qb,db),4)}"
            if ones and qb == 1 and db % 4 == 2:
                x = [x, f"{MF} {v(L_+4*(db//4),4)}, {v(ONE,4)}, {v(Preg(buf,db//4),4)}, {v(L_+4*(db//4),4)}"]
            L.append(x)
    return L

def sm_elems(buf, add=False):
    out = []
    for kb in range(2):
        for qb in range(2):
            for e in range(4):
                r = Sreg(buf, qb, kb) + e
                post = [f"v_add_f32 v{L_+4*qb}, v{L_+4*qb}, v{r}"] if add else []
                if e & 1: post.append(f"v_cvt_pk_bf16_f32 v{Preg(buf,qb)+2*kb+e//2}, v{r-1}, v{r}")
                out.append((f"v_exp_f32 v{r}, v{r}", post))
    return out

def rd(frag, base, off):
    s_ = frag % 8
    return DS(f"ds_read_b128 {v(RG_+4*s_,4)}, {base} offset:{off}", ("r", s_))

def rowred(op, x, t):
    return [f"v_mov_b32 {t}, {x}", "s_nop 1", f"v_permlane16_swap_b32 {x}, {t}", "s_nop 1", f"{op} {x}, {x}, {t}",
            f"v_mov_b32 {t}, {x}", "s_nop 1", f"v_permlane32_swap_b32 {x}, {t}", "s_nop 1", f"{op} {x}, {x}, {t}"]


ADV = [f"v_add_u32 {vVr}, 65536, {vKr}", f"v_add_u32 {vKr}, s41, {vKr}", f"v_and_b32 {vKr}, s49, {vKr}"]

def dma_clumps(k, cs):
    out = []
    for which in range(2):
        msk, base, soff = ("s48", "s43", "s46") if which == 0 else ("s39", "s44", "s47")
        for c in range(8 // cs):
            lskip = k.newlabel("nodma")
            j0 = c * cs
            L = [f"s_bitcmp1_b32 {msk}, s40", f"s_cbranch_scc0 {lskip}", f"s_add_u32 m0, {base}, {(j0 // 4)*4096}", "s_nop 0"]
            for j in range(j0, j0 + cs):
                L.append(f"buffer_load_dwordx4 {vD if j < 4 else vD2}, s[12:15], {soff} offen offset:{(j%4)*1024} sc1 lds")
            if c == 8 // cs - 1:
                L += [f"s_add_u32 {soff}, {soff}, 65536", f"s_xor_b32 {base}, {base}, 32768"]
            out.append(L + [lskip + ":"])
    return out

def p3_pro(k, cfg, grp):
    pro = [rd(f, vKr, f*1024) for f in range(8)]
    m0 = qk(0, 0, True); m1 = qk(1, 8, True)
    zl = zero(O_, 64) + zero(L_, 8)
    fills = [[] for _ in range(32)]; pre = {}
    for p in range(16):
        pre[2*p] = [Need("ds", [("r", p % 8)])]
        if p < 8: fills[2*p+1].append(rd(p+8, vKr, (p+8)*1024))
    if cfg.get("pz") == "1": pro += zl
    else:
        for i, z in enumerate(zl): fills[i * 20 // len(zl)].append(z)
    if grp == 1:
        fills[20] += ool(k, ["s_add_u32 s36, s30, s50", "s_cmp_eq_u32 s36, 0"], "s_cbranch_scc1", maskblk(k, 0, "s36", True))
    x = [f"v{T_+2}", f"v{T_+3}"]; t = [f"v{T_+4}", f"v{T_+5}"]
    for qb in range(2):
        a = Sreg(0, qb, 0)
        ch = [f"v_max3_f32 {x[qb]}, v{a}, v{a+1}, v{a+2}", f"v_max3_f32 {x[qb]}, {x[qb]}, v{a+3}, v{a+4}",
              f"v_max3_f32 {x[qb]}, {x[qb]}, v{a+5}, v{a+6}", f"v_max_f32 {x[qb]}, {x[qb]}, v{a+7}",
              f"v_mov_b32 {t[qb]}, {x[qb]}", f"v_permlane16_swap_b32 {x[qb]}, {t[qb]}", f"v_max_f32 {x[qb]}, {x[qb]}, {t[qb]}",
              f"v_mov_b32 {t[qb]}, {x[qb]}", f"v_permlane32_swap_b32 {x[qb]}, {t[qb]}", f"v_max_f32 {x[qb]}, {x[qb]}, {t[qb]}"]
        for i, c in enumerate(ch): fills[21+i].append(c)
        fills[31] += [f"v_sub_f32 v{NM_+4*qb+e}, 0, {x[qb]}" for e in range(4)]
    pro += weave(m0 + m1, fills, pre)
    pro += ADV + cfg.get("pro_wait", lambda k, g: [])(k, grp) + ["s_barrier"] + cfg.get("pro_hook", lambda k, g: [])(k, grp) + [rd(f, vKr, f*1024) for f in range(7)]
    if grp == 0:
        pro += [DS(f"ds_write_b32 v19, v{NM_}"), DS(f"ds_write_b32 v19, v{NM_+4} offset:4")]
    for buf in range(2):
        for qb in range(2):
            a = Sreg(buf, qb, 0)
            pro += [f"v_pk_add_f32 {v(a+e,2)}, {v(a+e,2)}, {v(NM_+4*qb,2)}" for e in range(0, 8, 2)]
    el = sm_elems(0)
    pro += [e[0] for e in el] + [e[1] for e in el]
    return pro

def p3_body(k, cfg, grp, qb0=Q_):
    M = qk(0, 0, False, qb0) + pv(0, 8) + qk(1, 16, False, qb0) + pv(1, 24)
    fills = [[] for _ in range(64)]; pre = {}
    def src(f):
        return (vKr, (f % 8)*1024 + (f // 16)*8192) if (f // 8) % 2 == 0 else (vVr, (f % 8)*1024 + (f // 16)*8192)
    wstep = int(cfg.get("wstep", 2))
    for p in range(32):
        if p % wstep == 0:
            pre[2*p] = [Need("ds", [("r", (p+i) % 8) for i in range(wstep)])]
    lag = int(cfg.get("lag", 0))
    for rnd in range(2):
        el = sm_elems(1 - rnd)
        for e in range(16):
            p = rnd*16 + e
            fills[2*p].append(el[e][0])
            fills[2*min(p+lag, rnd*16+15)+1] += (["s_nop 0"] if e == 15 and int(cfg.get("g3", 1)) > 1 else []) + el[e][1]
    for p in range(25):
        b, o = src(p + 7)
        fills[2*p+1].insert(0, rd(p+7, b, o))
    last = ["s_mov_b32 s41, 65536", "s_mov_b32 s49, 0x1ffff"]
    l1, l2, l3 = k.newlabel("r"), k.newlabel("r"), k.newlabel("r")
    if grp == 0:
        r32 = ["s_mov_b32 s41, 32768", "s_cmp_eq_u32 s40, 15", f"s_cbranch_scc0 {l1}"] + last + ["s_sub_u32 s36, 0, s50"] + maskblk(k, 0, "s36", True) + [l1 + ":"]
        pre[32] = ool(k, ["s_bitcmp1_b32 s31, s40"], "s_cbranch_scc1", r32) + pre[32]
    else:
        r0 = ["s_add_u32 s36, s40, 1", "s_sub_u32 s36, s36, s51", "s_cmp_lt_u32 s36, 2", f"s_cbranch_scc0 {l1}", "s_lshl_b32 s36, s36, 6",
              "s_add_u32 s36, s36, 32", "s_sub_u32 s36, s36, s50"] + maskblk(k, 1, "s36", True) + [l1 + ":"]
        hp = [f"s_setprio {cfg['bp_']}"] if cfg.get("bp_") else []
        lp = ["s_setprio 0"] if cfg.get("bp_") else []
        pre[0] = ool(k, ["s_bitcmp1_b32 s42, s40"], "s_cbranch_scc1", hp + r0 + lp) + pre[0]
        r32 = ["s_add_u32 s36, s40, 2", "s_sub_u32 s36, s36, s51", "s_cmp_eq_u32 s36, 1", "s_cselect_b32 s41, 0x8000, s41",
               "s_cmp_eq_u32 s40, 15", f"s_cbranch_scc0 {l2}"] + last + ["s_mov_b32 s36, 1", l2 + ":",
               "s_cmp_lt_u32 s36, 2", f"s_cbranch_scc0 {l3}", "s_lshl_b32 s36, s36, 6", "s_sub_u32 s36, s36, s50"] + maskblk(k, 0, "s36", True) + [l3 + ":"]
        pre[32] = ool(k, ["s_bitcmp1_b32 s42, s40"], "s_cbranch_scc1", hp + r32 + lp) + pre[32]
    lr = k.newlabel("rlx")
    if cfg.get("np3"):
        lw = int(cfg["np3"])
        if grp == 0: fills[2*23+1] += ["s_add_u32 s40, s40, 1"]
        fills[2*20+1] += [f"v_add_u32 v{T_+2}, 65536, {vKr}"]; fills[2*22+1] += ADV[1:]
        fills[2*24+1] += [f"v_mov_b32 {vVr}, v{T_+2}"]
        wt = [f"s_waitcnt vmcnt(8) lgkmcnt({lw})", "s_cmp_le_u32 s40, s51", f"s_cbranch_scc1 {lr}", "s_waitcnt vmcnt(0)", lr + ":"]
        fills[2*25] += (wt if grp == 0 else [f"s_waitcnt lgkmcnt({lw})"]) + cfg.get("bar_hook", lambda k, g: [])(k, grp) + ["s_barrier"]
        for f in range(7): fills[2*(25+f)+1].insert(0, rd(f, vKr, f*1024))
    else:
        if grp == 0: fills[2*26] += ["s_add_u32 s40, s40, 1"]
        fills[2*25+1] += ADV[:2]; fills[2*26] += ADV[2:]
        bp = 26
        wt = ["s_waitcnt vmcnt(8) lgkmcnt(0)", "s_cmp_le_u32 s40, s51", f"s_cbranch_scc1 {lr}", "s_waitcnt vmcnt(0)", lr + ":"]
        fills[2*bp+1] += (wt if grp == 0 else ["s_waitcnt lgkmcnt(0)"]) + cfg.get("bar_hook", lambda k, g: [])(k, grp) + ["s_barrier"]
        nx = {27: [0, 1], 28: [2, 3], 29: [4], 30: [5], 31: [6]}
        for p, fl in nx.items():
            for f in fl: fills[2*p+1].insert(0, rd(f, vKr, f*1024))
    if grp == 0 and not cfg.get("nodma"):
        cs = int(cfg.get("cs", 4)); d0 = int(cfg.get("d0", 0)); dsp = float(cfg.get("dsp", 4))
        for c, cl in enumerate(dma_clumps(k, cs)):
            fills[2*int(d0 + c*dsp)+1] += cl
    if grp == 1: fills[int(cfg.get("btp", 24))] += cfg.get("b_inline", [])
    body = weave(M, fills, pre, int(cfg.get("g3", 1)))
    ab = cfg.get("ab", "")
    if ab:
        body = flat(body)
        S_ = lambda x, p: isinstance(x, str) and x.startswith(p)
        if "e" in ab: body = [x for x in body if not S_(x, "v_exp")]
        if "c" in ab: body = [x for x in body if not S_(x, "v_cvt")]
        if "b" in ab: body = [x for x in body if not S_(x, "s_barrier")]
        if "r" in ab: body = [x for x in body if not isinstance(x, (Op, Need))]
        if "o" in ab: body = [x for x in body if not (S_(x, "v_mfma") and f"v[{ONE}:{ONE+3}]" in x)]
        if "m" in ab: body = [x.replace("v_exp_f32", "v_mov_b32") if isinstance(x, str) else x for x in body]
    return body

def p3_tail(k, cfg, grp):
    M = pv(0, 0) + pv(1, 8)
    fills = [[] for _ in range(32)]; pre = {}
    for p in range(16):
        pre[2*p] = [Need("ds", [("r", p % 8)])]
        if p + 7 < 16: fills[2*p+1].insert(0, rd(p+7, vVr, (p+7)*1024))
    el = sm_elems(1)
    for e in range(16):
        fills[e].append(el[e][0])
        fills[e+1 if e < 15 else 15] += (["s_nop 0"] if e == 15 else []) + el[e][1]
    pre[16] = ["s_nop 1"] + pre[16]
    wr = [DS(f"ds_write_b128 v5, {v(Oreg(1-grp,db),4)} offset:{db*1024}") for db in range(8)]
    for db in range(4): fills[2*(8+db+4)+1] += [wr[db]]
    extra = cfg.get("tail_extra", lambda k, g: [])(k, grp)
    for i, x in enumerate(extra): fills[16 + i * 8 // len(extra)] += x
    tail = [f"s_sub_u32 s36, {32 + 64*grp}, s50"] + maskblk(k, 1, "s36") + ["s_lshl_b32 s37, s28, 13", f"v_add_u32 v5, s37, {vL16}"] + \
           weave(M, fills, pre) + wr[4:6]
    return tail

def lcheck(k, l):
    k.e(f"v_cmp_nge_f32 vcc, s36, {l}")
    k.e("s_nop 0")
    k.e("s_or_b64 s[52:53], s[52:53], vcc")

def ctx_base(k, sblk, add):
    k.e(f"s_lshl_b32 s38, {sblk}, 3")
    k.e("s_and_b32 s37, s28, 3")
    k.e("s_lshl_b32 s37, s37, 1")
    k.e("s_add_u32 s38, s38, s37")
    if add: k.e(f"s_add_u32 s38, s38, {add}")
    k.e("s_lshl_b32 s38, s38, 17")
    k.e("s_lshl_b32 s37, s29, 12")
    k.e("s_add_u32 s38, s38, s37")

def epi_own(k, cfg, sblk, fast):
    if fast: k.e("s_nop 4")
    else:
        for qb in range(2): k.e(rowred("v_add_f32", f"v{L_+4*qb}", f"v{T_}"))
    k.e("s_mov_b32 s36, 0x5d800000")
    for qb in range(2): lcheck(k, f"v{L_+4*qb}")
    for qb in range(2): k.e(f"v_rcp_f32 v{T_+2*qb}, v{L_+4*qb}")
    ctx_base(k, sblk, 0)
    for qb in range(2): k.e(f"v_mov_b32 v{T_+2*qb+1}, v{T_+2*qb}")
    k.e([f"v_mov_b32 v{T_+4}, {vL16}"] + hole("c", f"v{T_+4}"))
    for qb in range(2):
        for sg in range(4):
            a = Oreg(qb, 2*sg)
            if fast and "m" in cfg.get("e32", ""): k.e([f"v_mul_f32 v{a+e}, v{T_+2*qb}, v{a+e}" for e in range(8)])
            else: k.e(pkmul(a, 8, T_+2*qb))
            for q in range(4): k.e(f"v_cvt_pk_bf16_f32 v{a+q}, v{a+2*q}, v{a+2*q+1}")
            k.e(f"buffer_store_dwordx4 {v(a,4)}, v{T_+4}, s[16:19], s38 offen offset:{sg*1024}{cfg.get('stflag','')}")
        if qb == 0: k.e(f"s_add_u32 s38, s38, {1<<17}")
    if fast and "z" in cfg.get("e32", ""): k.e([f"v_mov_b32 v{r}, 0" for r in list(range(L_, L_+8)) + list(range(O_, O_+64))])
    elif fast: k.e(zero(L_, 8) + zero(O_, 64))

def merge(k, cfg, kh):
    T_ = 104
    t = [f"v{T_+i}" for i in range(18)]
    o = 1 - kh
    k.e(f"v_xor_b32 {t[2]}, 32768, v5")
    k.e("s_lshl_b32 s37, s28, 8")
    k.e(f"s_add_u32 s37, s37, {LDS_MSG}")
    k.e(f"v_lshl_add_u32 {t[3]}, v1, 2, s37")
    k.e(f"v_xor_b32 {t[4]}, 1024, {t[3]}")
    for db in range(6, 8):
        k.e(f"ds_write_b128 v5, {v(Oreg(o,db),4)} offset:{db*1024}")
    k.e(f"ds_write_b32 {t[3]}, v{L_+4*o}")
    k.e("s_mov_b32 s36, 0x5d800000")
    for qb in range(2): lcheck(k, f"v{L_+4*qb}")
    k.e("s_or_b32 s36, s52, s53")
    k.e(f"v_mov_b32 {t[6]}, s36")
    k.e("s_lshl_b32 s37, s28, 2")
    k.e(f"s_add_u32 s37, s37, {LDS_MSG+2048}")
    k.e(f"v_mov_b32 {t[7]}, s37")
    k.e(f"ds_write_b32 {t[7]}, {t[6]}")
    k.e(f"v_mov_b32 {t[8]}, {LDS_MSG+2112}")
    if kh == 0 and cfg.get("share"):
        for i in range(4): k.e(f"v_mov_b32 v{T_+10+i}, s{56+i}")
        k.e(f"ds_write_b128 {t[8]}, {v(T_+10,4)}")
    k.e(f"v_and_b32 {t[7]}, 7, v1")
    k.e(f"v_lshlrev_b32 {t[7]}, 2, {t[7]}")
    k.e(f"v_add_u32 {t[7]}, {LDS_MSG+2048}, {t[7]}")
    k.e([f"v_mov_b32 {t[9]}, {vL16}"] + hole("c", t[9]))
    k.e("s_sub_u32 s36, 15, s30")
    ctx_base(k, "s36", kh)
    cfg.get("before_merge", lambda k: None)(k)
    k.e("s_waitcnt lgkmcnt(0)")
    k.e("s_barrier")
    if kh == 1 and cfg.get("share"): k.e(f"ds_read_b128 {v(T_+10,4)}, {t[8]}")
    k.e(f"ds_read_b32 {t[6]}, {t[7]}")
    k.e(f"ds_read_b32 {t[5]}, {t[4]}")
    for db in range(8):
        k.e(f"ds_read_b128 {v(RG_+4*db,4)}, {t[2]} offset:{db*1024}")
    k.e("s_waitcnt lgkmcnt(8)")
    k.e(f"v_add_f32 {t[5]}, {t[5]}, v{L_+4*kh}")
    k.e(f"v_cmp_ne_u32 s[52:53], 0, {t[6]}")
    if kh == 1 and cfg.get("share"):
        for i in range(4): k.e(f"v_readfirstlane_b32 s{56+i}, v{T_+10+i}")
    k.e(f"v_rcp_f32 {t[5]}, {t[5]}")
    k.e("s_nop 0")
    k.e(f"v_mov_b32 {t[4]}, {t[5]}")
    for sg in range(4):
        k.e(f"s_waitcnt lgkmcnt({6-2*sg})")
        a = Oreg(kh, 2*sg)
        for e in range(0, 8, 2): k.e(f"v_pk_add_f32 {v(a+e,2)}, {v(a+e,2)}, {v(RG_+8*sg+e,2)}")
        k.e(pkmul(a, 8, T_+4))
        for q in range(4): k.e(f"v_cvt_pk_bf16_f32 v{P_+4*sg+q}, v{a+2*q}, v{a+2*q+1}")
        k.e(f"buffer_store_dwordx4 {v(P_+4*sg,4)}, {t[9]}, s[16:19], s38 offen offset:{sg*1024}{cfg.get('stflag','')}")

def safe_path(k, cfg, grp):
    M_ = NM_
    t = [f"v{T_+i}" for i in range(18)]
    if grp == 1 and cfg.get("dup", "1") != "1":
        for r in range(32): k.e(f"v_swap_b32 v{Q_+r}, v{QS_+r}")
    for r in range(64): k.e(f"v_mov_b32 v{O_+r}, 0")
    for qb in range(2):
        k.e(f"v_mov_b32 v{L_+4*qb}, 0")
        k.e(f"v_mov_b32 v{M_+qb}, {NEGBIG}")
    k.e("s_lshl_b32 s43, s28, 12")
    k.e(f"v_add_u32 {vD}, s43, {vL16}")
    k.e(hole("k", vD))
    k.e("s_mov_b32 s46, s45")
    k.e("s_sub_u32 s40, 16, s30")
    k.e("s_sub_u32 s39, 15, s30" if grp == 0 else "s_mov_b32 s39, s30")
    k.e("s_lshl_b32 s37, s39, 7")
    k.e("s_and_b32 s36, s28, 3")
    k.e("s_lshl_b32 s36, s36, 5")
    k.e("s_add_u32 s36, s36, s37")
    k.e("s_sub_u32 s50, 0, s36")
    lt, lu, ln_ = k.newlabel("stile"), k.newlabel("sunit"), k.newlabel("snext")
    k.label(lt)
    k.e("s_waitcnt vmcnt(0) lgkmcnt(0)")
    k.e("s_barrier")
    k.e("s_mov_b32 m0, s43")
    k.e("s_add_u32 s47, s46, 32768")
    for j in range(4): k.e(f"buffer_load_dwordx4 {vD}, s[12:15], s46 offen offset:{j*1024} sc1 lds")
    k.e("s_add_u32 m0, s43, 32768")
    k.e("s_add_u32 s46, s46, 65536")
    for j in range(4): k.e(f"buffer_load_dwordx4 {vD}, s[12:15], s47 offen offset:{j*1024} sc1 lds")
    k.e(f"v_mov_b32 {vKr}, {vL16}")
    k.e("s_mov_b32 s41, 4")
    k.e("s_waitcnt vmcnt(0)")
    k.e("s_barrier")
    k.label(lu)
    k.e("s_cmp_gt_i32 s50, 0")
    k.e(f"s_cbranch_scc1 {ln_}")
    for f in range(8): k.e(f"ds_read_b128 {v(RG_+4*f,4)}, {vKr} offset:{f*1024}")
    k.e("s_waitcnt lgkmcnt(0)")
    k.e(qk(0, 0, True))
    for f in range(8): k.e(f"ds_read_b128 {v(RG_+4*f,4)}, {vKr} offset:{32768+f*1024}")
    k.e("s_nop 1")
    emit(k, maskblk(k, 0, "s50"))
    for qb in range(2):
        a = Sreg(0, qb, 0); x = t[2+qb]
        k.e([f"v_max3_f32 {x}, v{a}, v{a+1}, v{a+2}", f"v_max3_f32 {x}, {x}, v{a+3}, v{a+4}",
             f"v_max3_f32 {x}, {x}, v{a+5}, v{a+6}", f"v_max3_f32 {x}, {x}, v{a+7}, v{M_+qb}"])
        k.e(rowred("v_max_f32", x, t[4]))
        k.e(f"v_sub_f32 {t[5]}, v{M_+qb}, {x}")
        k.e(f"v_exp_f32 {t[5]}, {t[5]}")
        k.e(f"v_mov_b32 v{M_+qb}, {x}")
        k.e(f"v_mul_f32 v{L_+4*qb}, v{L_+4*qb}, {t[5]}")
        for r in range(32): k.e(f"v_mul_f32 v{Oreg(qb,0)+r}, v{Oreg(qb,0)+r}, {t[5]}")
        for e in range(8): k.e(f"v_sub_f32 v{a+e}, v{a+e}, {x}")
    el = sm_elems(0, True)
    for e in range(16): k.e(el[e][0])
    for e in range(16): k.e(el[e][1])
    k.e("s_waitcnt lgkmcnt(0)")
    k.e("s_nop 0")
    k.e(pv(0, 0, False))
    k.label(ln_)
    k.e(f"v_add_u32 {vKr}, 8192, {vKr}")
    k.e("s_add_u32 s50, s50, 32")
    k.e("s_sub_u32 s41, s41, 1")
    k.e("s_cmp_lg_u32 s41, 0")
    k.e(f"s_cbranch_scc1 {lu}")
    k.e("s_sub_u32 s40, s40, 1")
    k.e("s_cmp_lg_u32 s40, 0")
    k.e(f"s_cbranch_scc1 {lt}")
    epi_own(k, cfg, "s39", False)

def gen_p3(k, cfg, grp, st, after_q=None, before_tail=None):
    n0 = st.n
    q_pack(k, grp, cfg.get('qwait', 0))
    st.mark()
    dup = grp == 1 and cfg.get("dup", "1") == "1"
    pro, body, tail = p3_pro(k, cfg, grp), p3_body(k, cfg, grp), p3_tail(k, cfg, grp)
    body2 = p3_body(k, cfg, grp, QS_) if dup else body
    sw = []
    if grp == 1:
        if not dup: sw = [f"v_swap_b32 v{Q_+r}, v{QS_+r}" for r in range(32)]
        sw += [f"v_mov_b32 v{NM_+r}, v{14+r//4}" for r in range(8)] + ["s_nop 1"]
    qs = [f"ds_read_b128 {v(QS_+4*f,4)}, v19 offset:{f*1024}" for f in range(8)] if grp == 1 else []
    resolve([[pro[:8], qs, pro[8:], body, body, body2, body2, body2, tail], [pro[:8], qs, pro[8:], body, body2, tail]])
    emit(k, pro[:8] + qs + [f"v_mov_b32 v{ONE+r}, 0x3f803f80" for r in range(4)])
    if after_q: after_q(k, grp)
    emit(k, pro[8:])
    st.mark()
    for ph in range(2 if dup else 1):
        lb = f"L_body{grp}{ph}"
        k.align(6)
        k.label(lb)
        emit(k, body2 if ph else body)
        if grp == 1:
            l1, l2, l3 = k.newlabel("nm"), k.newlabel("ns"), k.newlabel("ne")
            post = cfg.get("b_hook", lambda k: [])(k)
            if ph == 0: post += ["s_cmp_eq_u32 s40, 0", f"s_cbranch_scc0 {l1}", "ds_read_b64 v[14:15], v19", "s_waitcnt lgkmcnt(0)", l1 + ":"]
            if not dup: post += ["s_add_u32 s36, s40, 1", "s_cmp_eq_u32 s36, s51", f"s_cbranch_scc0 {l2}"] + sw + [l2 + ":"]
            if ph == 1 or not dup:
                ke = K(k.name + "_epi")
                epi_own(ke, cfg, "s30", True)
                post += ["s_cmp_eq_u32 s40, s51", f"s_cbranch_scc0 {l3}"] + [x.strip() for x in ke.lines] + [l3 + ":"]
            emit(k, ool(k, ["s_bitcmp1_b32 s42, s40"], "s_cbranch_scc1", post))
            k.e("s_add_u32 s40, s40, 1")
        if cfg.get("sth3"): k.e(cfg["sth3"].hist(9, first=(grp == 0)))
        k.e("s_cmp_lg_u32 s40, s51" if dup and ph == 0 else "s_cmp_lg_u32 s40, 16")
        k.e(f"s_cbranch_scc1 {lb}")
        if dup and ph == 0: k.e(sw)
    st.mark()
    if before_tail: before_tail(k, grp)
    emit(k, tail)
    st.mark()
    merge(k, cfg, grp)
    st.mark()
    k.e("s_cmp_eq_u64 s[52:53], 0")
    k.e("s_cbranch_scc1 L_p3_done")
    if cfg.get("dbgsafe"):
        k.e("s_load_dwordx2 s[20:21], s[0:1], 96")
        k.e("s_waitcnt lgkmcnt(0)")
        k.e("v_mov_b32 v20, 0"); k.e("v_mov_b32 v21, 1")
        k.e("s_mov_b64 exec, 1")
        k.e("global_atomic_add v20, v21, s[20:21]")
        k.e("s_mov_b64 exec, -1")
    k.e("s_waitcnt vmcnt(0)")
    for r in range(8): k.e(f"v_mov_b32 v{S_+16+r}, v{S_+r}")
    safe_path(k, cfg, grp)
    for r in range(8): k.e(f"v_mov_b32 v{S_+r}, v{S_+16+r}")
    if grp == 0: st.n = n0

def gen_attn(cfg=None):
    cfg = cfg or {}
    k = K("attn_kernel")
    k.e("s_cmp_ge_u32 s2, 256")
    k.e("s_cbranch_scc1 L_attn_end")
    st = Stamps(k, cfg.get("stamp"), kid=1)
    st.mark()
    k.e("s_load_dwordx2 s[50:51], s[0:1], 16")
    k.e("s_load_dwordx2 s[54:55], s[0:1], 104")
    k.e("v_and_b32 v1, 63, v0")
    k.e("v_lshrrev_b32 v16, 6, v0")
    k.e("s_and_b32 s29, s2, 7")
    k.e("v_readfirstlane_b32 s28, v16")
    k.e("s_lshl_b32 s29, s29, 2")
    k.e("s_bfe_u32 s36, s2, 0x20003")
    k.e("s_add_u32 s29, s29, s36")
    k.e("s_lshr_b32 s30, s2, 5")
    p2_setup(k)
    k.e("s_waitcnt lgkmcnt(0)")
    srd(k, 4, 54, 4194304)
    srd(k, 8, 50, 8388608)
    pro, pro2, kvpre, body = p2_pieces(cfg)
    resolve([[pro, pro2, body, body, body, kvpre, body]])
    emit(k, pro)
    srd(k, 12, 54, 33554432, WS_KV)
    srd(k, 16, 54, 16777216, WS_CTX)
    p2_setup2(k)
    st.mark()
    emit(k, pro2)
    st.mark()
    k.align(6)
    k.label("L_p2_loop")
    k.e("s_cmp_lg_u32 s35, 3")
    k.e("s_cbranch_scc1 L_p2_nokv")
    emit(k, kvpre)
    k.label("L_p2_nokv")
    emit(k, body)
    k.e("s_add_u32 s35, s35, 1")
    k.e("s_cmp_lt_u32 s35, 4")
    k.e("s_cbranch_scc1 L_p2_loop")
    st.mark()
    k.e("s_cmp_lt_u32 s28, 4")
    k.e("s_cbranch_scc0 L_grp1")
    gen_p3(k, cfg, 0, st)
    k.e("s_branch L_p3_done")
    flush_ool(k)
    k.label("L_grp1")
    gen_p3(k, cfg, 1, st)
    k.e("s_branch L_p3_done")
    flush_ool(k)
    k.label("L_p3_done")
    st.dump(54, "s28")
    k.label("L_attn_end")
    return wrap(k, 256)
```

```python
from common import *
import attn as A
import ffn as F
import oproj as O
from fused_a import *

X32, G = 96, 112
XI, YA = 40, 24
WR4, XF4 = 64, [128, 160]
PRE, FW, HH, DD = 96, 112, 36, 96
LDS_P4 = 65536

CFG = {}
def PX(): return 1 if CFG.get('skew') else 4
def after_q(k, grp):
    srd(k, 16, 54, 16777216 + DELTA, WS_CTX)
    if grp == 0:
        srd(k, 4, 92, 7340032)
        srd(k, 8, 94, 7340032)
        k.e("s_and_b32 s60, s29, 3")
        k.e(f"s_add_u32 s60, s60, {CFG.get('e0', 4)}")
        k.e("s_sub_u32 s3, s2, 32")
        k.e("s_cmp_eq_u32 s28, 0")
        k.e("s_cselect_b32 s36, 0xad, 0x2d")
        k.e("s_cselect_b32 s42, 14, 12")
        k.e("s_cmp_lt_u32 s3, 224")
        k.e("s_cselect_b32 s36, s36, 0")
        k.e("s_lshl_b32 s36, s36, s60")
        k.e("s_or_b32 s42, s42, s36")
    else:
        emit(k, A.ool(k, ["s_cmp_eq_u32 s28, 4"], "s_cbranch_scc1", ["s_lshl_b32 s36, s29, 7", "s_cmp_eq_u32 s30, 0", "s_cselect_b32 s37, 4, 0", "s_add_u32 s36, s36, s37"] + signal("s[90:91]", "s36", "v20", "v21")))
        nl = int(CFG.get("btl", 32))
        j0 = int(CFG.get("btj", 4)); ev = int(CFG.get("bte", 0))
        nw = (8 - j0) * (32 >> ev) * 2
        ch = -(-8388608 // nw // 128) * 128
        k.e(f"s_sub_u32 s36, s2, {32*j0}")
        if ev:
            k.e("s_and_b32 s37, s2, 1")
            k.e("s_lshl_b32 s37, s37, 20")
            k.e("s_or_b32 s36, s36, s37")
        else: k.e("s_lshl_b32 s36, s36, 1")
        k.e("s_and_b32 s37, s28, 1")
        k.e("s_add_u32 s36, s36, s37")
        k.e("s_min_u32 s36, s36, 1024")
        k.e(f"s_mul_i32 s36, s36, {ch}")
        k.e("s_cmp_lt_u32 s28, 6")
        k.e("s_cselect_b64 s[4:5], s[32:33], s[34:35]")
        k.e("s_cselect_b32 s37, 32, 28")
        k.e("s_lshl_b32 s37, s37, 18")
        k.e("s_min_u32 s36, s36, s37")
        k.e("s_sub_u32 s6, s37, s36")
        k.e(f"s_min_u32 s6, s6, {0 if CFG.get('nobt') else ch}")
        k.e("s_add_u32 s4, s4, s36")
        k.e("s_addc_u32 s5, s5, 0")
        k.e("s_and_b32 s5, s5, 0xffff")
        k.e("s_mov_b32 s7, 0x20000")
        k.e(f"v_cmp_gt_u32 vcc, {nl}, v1")
        k.e("v_lshlrev_b32 v13, 7, v1")
        k.e("v_mov_b32 v12, 0x100000")
        k.e("v_cndmask_b32 v13, v12, v13, vcc")
        k.e("s_mov_b32 s48, 0")
        if "3" in CFG.get("cpf", ""):
            k.e("s_cmp_eq_u32 s28, 5")
            k.e("s_cselect_b32 s36, 0x1000, 0")
            k.e("s_or_b32 s42, s42, s36")

def pro_wait(k, grp):
    if grp == 0: return ["s_waitcnt vmcnt(0)"]
    l = k.newlabel("pw")
    return ["s_waitcnt vmcnt(1)", "s_cmp_eq_u32 s28, 4", f"s_cbranch_scc1 {l}", "s_waitcnt vmcnt(0)", l + ":"]

def pro_hook(k, grp):
    if grp == 0:
        return A.ool(k, ["s_cmp_eq_u32 s28, 0"], "s_cbranch_scc1",
                     ["s_lshl_b32 s36, s29, 7", "v_mov_b32 v13, s36", "global_load_dword v14, v13, s[90:91] sc1"])
    return []

def b_hook(k):
    l = k.newlabel("bh")
    return ["s_cmp_eq_u32 s40, 12", f"s_cbranch_scc0 {l}"] + code_touch(k, 26, "v0") + [l + ":"]

def f1dma(m):
    L = ["s_and_b32 s20, s3, 3", "s_lshl_b32 s20, s20, 8", "s_lshl_b32 s21, s28, 5", "s_add_u32 s20, s20, s21",
         "s_lshr_b32 s21, s3, 2", "s_lshl_b32 s21, s21, 7"] + lines(F.wdma_addr, 24, "s20", 7168, "s21")
    L += ["s_lshl_b32 s36, s28, 13", f"s_add_u32 m0, s36, {LDS_X}", f"s_mov_b32 s37, {32*7168}"]
    L += [f"buffer_load_dwordx4 v{24+j}, s[{4+4*m}:{7+4*m}], 0 offen offset:{j*1024}{NT(CFG, 'f')} lds" for j in range(4)]
    L += [f"s_add_u32 m0, s36, {LDS_X+4096}", "s_nop 0"]
    L += [f"buffer_load_dwordx4 v{24+j}, s[{4+4*m}:{7+4*m}], s37 offen offset:{j*1024}{NT(CFG, 'f')} lds" for j in range(4)]
    return L

def bar_hook(k, grp):
    if grp == 1: return []
    QS = A.QS_
    keys = [f"s_mov_b32 s36, {F.WS_KEY}"] + [f"buffer_load_dwordx4 {v(QS+4*i,4)}, {A.vL16}, s[24:27], s36 offen offset:{i*1024}{SC}" for i in range(2)]
    t2 = K("t"); F.top2(t2, QS, 24, 8, 20)
    top = [x.strip() for x in t2.lines]
    top += ["v_and_b32 v24, 1, v1", "v_mov_b32 v25, s56", "v_mov_b32 v26, s57", "v_cmp_eq_u32 vcc, 1, v24", "s_nop 1",
            "v_cndmask_b32 v25, v25, v26, vcc", "v_lshrrev_b32 v26, 4, v25", "v_lshlrev_b32 v26, 15, v26", "v_and_b32 v25, 15, v25",
            "v_lshl_add_u32 v26, v25, 4, v26", "v_lshrrev_b32 v27, 4, v1", "v_lshl_add_u32 v26, v27, 8, v26",
            ] + (["v_bfe_u32 v25, v26, 7, 3", "v_cmp_eq_u32 vcc, 3, v25", f"v_add_u32 v25, {DELTA}, v26", "s_nop 0", "v_cndmask_b32 v26, v26, v25, vcc"] if "x" in HOLE[0] else []) + [
            "s_and_b32 s36, s3, 3", "s_lshl_b32 s36, s36, 13", "s_add_u32 s37, s36, 4096",
            "s_mov_b32 exec_lo, 0x00030003", "s_mov_b32 exec_hi, 0x00030003"]
    top += [f"buffer_load_dwordx4 {v(QS+4*i,4)}, v26, s[24:27], s{36+i//4} offen offset:{(i%4)*1024}{SC}" for i in range(8)]
    top += ["s_mov_b64 exec, -1"]
    dma = f1dma
    def mm(m):
        FRG = [14, 20, 24]
        L = lines(F.wrd_addr, "v5", "v9", "v8")
        L += ["v_xor_b32 v9, s28, v9", "v_lshl_add_u32 v5, v9, 5, v5", f"v_add_u32 v5, {LDS_X}, v5"]
        rd = lambda ss: [f"ds_read_b64_tr_b16 {v(FRG[s_%3]+2*t,2)}, v5 offset:{(32*s_+4*t)*128}" for s_ in ss for t in range(2)]
        L += rd(range(3))
        L += ["s_and_b32 s36, s3, 3", "s_lshl_b32 s36, s36, 6", "s_lshr_b32 s37, s3, 2", "s_lshl_b32 s37, s37, 12", "s_add_u32 s36, s36, s37",
              "s_lshl_b32 s37, s28, 10", "s_add_u32 s36, s36, s37", f"s_add_u32 s36, s36, {WS_PRE + 32*m}",
              "v_and_b32 v9, 1, v1", "v_lshlrev_b32 v9, 4, v9", "v_lshl_add_u32 v9, v8, 8, v9"]
        for s_ in range(8):
            L += [f"s_waitcnt lgkmcnt({2*min(2, 7-s_)})", f"{MF} v[10:13], {v(FRG[s_%3],4)}, {v(QS+4*s_,4)}, {'v[10:13]' if s_ else '0'}"]
            if s_ + 3 < 8: L += rd([s_+3])
        L += ["s_nop 5", "s_mov_b32 exec_lo, 0x00030003", "s_mov_b32 exec_hi, 0x00030003",
              f"buffer_store_dwordx4 v[10:13], v9, s[24:27], s36 offen{SC}", "s_mov_b64 exec, -1", "s_nop 1"]
        return L
    sig = ["s_mul_i32 s36, s3, 2341", "s_lshr_b32 s36, s36, 16", f"s_add_u32 s36, s36, {CNT_F1}", "s_lshl_b32 s36, s36, 7"] + signal("s[90:91]", "s36", "v20", "v21")
    dbg = CFG.get("f1", "")
    if "d" in dbg: dma = lambda m: []
    if "m" in dbg: mm = lambda m: []
    if "t" in dbg: keys = []; top = ["s_mov_b32 s56, 0", "s_mov_b32 s57, 0"]
    ffn = ["s_sub_u32 s38, s40, s60"] + switch(k, "s38", [(0, dma(0)), (2, mm(0)), (3, dma(1)), (5, mm(1)), (7, sig)])
    return A.ool(k, ["s_bitcmp1_b32 s42, s40"], "s_cbranch_scc1",
                 switch(k, "s40", [(1, check(k, "s[90:91]", "v13", "v14", 7)), (2, keys), (3, top), (4, ffn)]))

def before_tail(k, grp):
    if CFG.get("wt"):
        srd(k, 8, 32, 8388608)
        k.e(wt_addr())
        T = 256*2048
        if CFG.get("skew"):
            k.e(["s_bitcmp0_b32 s2, 0" if CFG["skew"] == "1" else "s_bitcmp1_b32 s2, 0", f"s_cselect_b32 s36, {T}, 0", "s_cselect_b32 s37, 8, 2", "s_lshl_b32 s37, s37, 19"])
        else:
            k.e(["s_lshr_b32 s36, s29, 4", "s_lshl_b32 s36, s36, 22", f"s_add_u32 s37, s36, {T}"])
        k.e(["buffer_load_dword v0, v17, s[8:11], s36 offen", "buffer_load_dword v0, v17, s[8:11], s37 offen", f"v_add_u32 v17, {T}, v17",
             "buffer_load_dword v0, v17, s[8:11], s37 offen"])
        if not CFG.get("skew"): k.e("v_add_u32 v17, s36, v17")
    k.e("s_lshr_b32 s36, s2, 5")
    k.e(f"s_add_u32 s36, s36, {CNT_F1}")
    k.e("s_lshl_b32 s36, s36, 7")
    k.e("v_mov_b32 v12, s36")
    k.e("global_load_dword v11, v12, s[90:91] sc1")

def wt_addr():
    nl = int(CFG.get("wt", 2))
    L = ["s_lshr_b32 s36, s2, 3", "s_lshl_b32 s36, s36, 3", "s_add_u32 s36, s36, s28", "s_lshl_b32 s36, s36, 11"]
    if nl == 2: L += ["s_sub_u32 s37, 384, s8", "s_and_b32 s37, s37, 0x380", "s_add_u32 s36, s36, s37", "v_lshl_add_u32 v17, v1, 10, s36"]
    else: L += ["s_sub_u32 s37, 256, s8", "s_and_b32 s37, s37, 0x300", "s_add_u32 s36, s36, s37", "v_lshrrev_b32 v17, 1, v1", "v_lshl_add_u32 v17, v17, 10, s36",
                "v_and_b32 v16, 1, v1", "v_lshl_add_u32 v17, v16, 7, v17"]
    return L + [f"v_cmp_gt_u32 vcc, {nl}, v1", "v_mov_b32 v16, 0x40000000", "s_nop 0", "v_cndmask_b32 v17, v16, v17, vcc"]

def tail_extra(k, grp):
    L = lines(srd, 4, 34, 7340032) + lines(srd, 8, 32, 8388608)
    L += ["s_lshr_b32 s38, s2, 4", "s_mul_i32 s38, s38, 224", "s_and_b32 s39, s2, 15", "s_lshl_b32 s39, s39, 7"]
    L += lines(F.wdma_addr, 24, "s38", 2048, "s39")
    L += ["s_lshl_b32 s36, s28, 12", f"s_add_u32 s36, s36, {LDS_X}"]
    G = [[x] for x in L] + [["s_cmp_lt_u32 s28, 7", "s_cselect_b32 m0, s36, 0x30000", "s_cselect_b32 s6, 7340032, 0"]]
    return G + [[f"buffer_load_dwordx4 v{24+j}, s[4:7], 0 offen offset:{j*1024} lds"] for j in range(4)]

def before_merge(k):
    k.e("s_waitcnt vmcnt(4)")
    emit(k, check(k, "s[90:91]", "v12", "v11", 28))
    k.e(["s_lshr_b32 s36, s2, 4", "s_mul_i32 s36, s36, 7", "s_min_u32 s37, s28, 6", "s_add_u32 s36, s36, s37",
         "s_lshl_b32 s36, s36, 11", f"s_add_u32 s36, s36, {WS_PRE}", "v_and_b32 v11, 15, v1", "v_lshlrev_b32 v11, 4, v11",
         "v_lshrrev_b32 v12, 4, v1", "v_lshl_add_u32 v11, v12, 9, v11"])
    k.e([f"buffer_load_dwordx4 {v(PRE+4*h,4)}, v11, s[24:27], s36 offen offset:{256*h}{SC}" for h in range(2)])

def gcalc(k, withy, cbs=range(4)):
    for cb in cbs:
        for h in range(2):
            a, b = X32+4*cb+2*h, X32+4*cb+2*h+1
            ga, gb = G+4*cb+2*h, G+4*cb+2*h+1
            k.e(f"v_lshlrev_b32 v{a}, 16, v{XI+2*cb+h}")
            k.e(f"v_and_b32 v{b}, 0xffff0000, v{XI+2*cb+h}")
            k.e(f"v_sub_f32 v{ga}, v{a}, v{XI+8}")
            k.e(f"v_sub_f32 v{gb}, v{b}, v{XI+8}")
            def rnd2():
                k.e(f"v_cvt_pk_bf16_f32 v10, v{ga}, v{gb}")
                k.e(f"v_lshlrev_b32 v{ga}, 16, v10")
                k.e(f"v_and_b32 v{gb}, 0xffff0000, v10")
            rnd2()
            k.e(f"v_mul_f32 v{ga}, v{ga}, v{XI+9}")
            k.e(f"v_mul_f32 v{gb}, v{gb}, v{XI+9}")
            rnd2()
            if withy:
                k.e(f"v_add_f32 v{ga}, v{ga}, v{YA+4*cb+2*h}")
                k.e(f"v_add_f32 v{gb}, v{gb}, v{YA+4*cb+2*h+1}")
                rnd2()
            k.e(f"v_mul_f32 v11, 0xbfb8aa3b, v{ga}")
            k.e(f"v_mul_f32 v12, 0xbfb8aa3b, v{gb}")
            k.e("v_exp_f32 v11, v11")
            k.e("v_exp_f32 v12, v12")
            k.e("s_nop 0")
            k.e("v_add_f32 v11, 1.0, v11")
            k.e("v_add_f32 v12, 1.0, v12")
            k.e("v_rcp_f32 v11, v11")
            k.e("v_rcp_f32 v12, v12")
            k.e("s_nop 0")
            k.e(f"v_mul_f32 v{ga}, v{ga}, v11")
            k.e(f"v_mul_f32 v{gb}, v{gb}, v12")
            rnd2()

def ffn2_math(k):
    F.wrd_addr(k, "v26", "v27", "v28")
    k.e("s_lshl_b32 s36, s28, 12")
    k.e(f"s_add_u32 s36, s36, {LDS_X}")
    k.e("v_add_u32 v26, s36, v26")
    for cb in range(4):
        k.e(f"v_xor_b32 v28, {cb}, v27")
        k.e("v_lshl_add_u32 v28, v28, 5, v26")
        for t in range(2):
            k.e(f"ds_read_b64_tr_b16 {v(FW+4*cb+2*t,2)}, v28 offset:{4*t*128}")
    for m in ("row_ror:4", "row_ror:8"):
        for e in range(8): k.e(f"v_add_f32_dpp v{PRE+e}, v{PRE+e}, v{PRE+e} {m} row_mask:0xf bank_mask:0xf")
    for e in range(0, 8, 2):
        k.e(f"v_cvt_pk_bf16_f32 v29, v{PRE+e}, v{PRE+e+1}")
        k.e(f"v_lshlrev_b32 v{PRE+e}, 16, v29")
        k.e(f"v_and_b32 v{PRE+e+1}, 0xffff0000, v29")
    for e in range(8): k.e(f"v_mul_f32 v{PRE+8+e}, 0xbfb8aa3b, v{PRE+e}")
    for e in range(8): k.e(f"v_exp_f32 v{PRE+8+e}, v{PRE+8+e}")
    for e in range(8): k.e(f"v_add_f32 v{PRE+8+e}, 1.0, v{PRE+8+e}")
    for e in range(8): k.e(f"v_rcp_f32 v{PRE+8+e}, v{PRE+8+e}")
    for e in range(8): k.e(f"v_mul_f32 v{PRE+8+e}, v{PRE+e}, v{PRE+8+e}")
    for e in range(0, 8, 2):
        k.e(f"v_cvt_pk_bf16_f32 v29, v{PRE+8+e}, v{PRE+8+e+1}")
        k.e(f"v_lshlrev_b32 v{PRE+8+e}, 16, v29")
        k.e(f"v_and_b32 v{PRE+8+e+1}, 0xffff0000, v29")
    for e in range(8): k.e(f"v_mul_f32_dpp v{PRE+e}, v{PRE+e}, v{PRE+8+e} quad_perm:[2,3,0,1] row_mask:0xf bank_mask:0xf")
    for q in range(4): k.e(f"v_cvt_pk_bf16_f32 v{HH+q}, v{PRE+2*q}, v{PRE+2*q+1}")
    k.e("s_waitcnt lgkmcnt(0)")
    k.e("v_lshl_add_u32 v28, v1, 4, s36")
    for cb in range(4): k.e(f"{MF} {v(DD+4*cb,4)}, {v(FW+4*cb,4)}, {v(HH,4)}, 0")
    k.e("s_nop 7")
    for cb in range(4): k.e(f"ds_write_b128 v28, {v(DD+4*cb,4)} offset:{cb*1024}")

def ffn2_reduce():
    L = ["s_lshl_b32 s36, s28, 10", f"s_add_u32 s36, s36, {LDS_X}", "v_lshl_add_u32 v28, v1, 4, s36"]
    L += [f"ds_read_b128 {v(PRE+4*w,4)}, v28 offset:{w*4096}" for w in range(7)]
    L += ["s_lshr_b32 s36, s2, 4", "s_lshl_b32 s36, s36, 13", "s_and_b32 s37, s2, 15", "s_lshl_b32 s37, s37, 8", "s_add_u32 s36, s36, s37",
          "s_lshl_b32 s37, s28, 6", "s_add_u32 s36, s36, s37", f"s_add_u32 s36, s36, {WS_YP}",
          "v_and_b32 v28, 1, v1", "v_lshlrev_b32 v28, 12, v28", "v_lshl_add_u32 v28, v19, 4, v28", "s_waitcnt lgkmcnt(0)"]
    for w in range(1, 7):
        L += [f"v_add_f32 v{PRE+e}, v{PRE+e}, v{PRE+4*w+e}" for e in range(4)]
    L += ["s_mov_b32 exec_lo, 0x00030003", "s_mov_b32 exec_hi, 0x00030003",
          VM(f"buffer_store_dwordx4 {v(DD,4)}, v28, s[24:27], s36 offen{SC}", "yp"), "s_mov_b64 exec, -1", "s_nop 3"]
    return L

def p4_setup(k):
    tw = int(CFG.get("tw", 2))
    skew = CFG.get("skew")
    if skew:
        k.e("s_and_b32 s63, s2, 1")
        if skew == "2": k.e("s_xor_b32 s63, s63, 1")
    else: k.e("s_lshr_b32 s63, s29, 4")
    k.e("s_lshl_b32 s36, s30, 2")
    k.e(f"s_lshr_b32 s30, {CFG.get('jp', '0x76534210')}, s36")
    k.e("s_and_b32 s30, s30, 7")
    k.e(f"s_and_b32 s36, s30, {7 & ~((1 << tw) - 1)}")
    k.e("s_add_u32 s43, s30, s36")
    k.e(f"s_lshl_b32 s36, s63, {tw}")
    k.e("s_add_u32 s30, s43, s36")
    if skew:
        k.e("s_and_b32 s29, s29, 3")
        k.e("s_and_b32 s36, s2, 6")
        k.e("s_lshl_b32 s36, s36, 1")
        k.e("s_add_u32 s29, s29, s36")
    else: k.e("s_and_b32 s29, s29, 15")
    k.e("s_and_b32 s36, s28, 3")
    k.e("s_lshl_b32 s37, s29, 2")
    k.e("s_add_u32 s36, s36, s37")
    k.e("s_lshl_b32 s36, s36, 18")
    k.e("s_lshr_b32 s37, s28, 2")
    k.e("s_lshl_b32 s37, s37, 12")
    k.e("s_add_u32 s36, s36, s37")
    if not skew:
        k.e("s_lshl_b32 s37, s63, 16")
        k.e("s_add_u32 s36, s36, s37")
    k.e("s_lshr_b32 s37, s28, 2")
    k.e("s_lshl_b32 s37, s37, 17")
    k.e("s_add_u32 s36, s36, s37")
    k.e("v_lshl_add_u32 v2, v1, 4, s36")
    k.e(hole("c", "v2"))
    k.e(f"v_xor_b32 v3, {1<<17}, v2")
    k.e("v_lshrrev_b32 v19, 4, v1")
    k.e("s_lshr_b32 s36, s28, 2")
    k.e("s_lshl_b32 s36, s36, 7")
    k.e("s_and_b32 s37, s28, 3")
    k.e("s_lshl_b32 s37, s37, 4")
    k.e("s_add_u32 s36, s36, s37")
    k.e("s_lshl_b32 s33, s36, 8")
    if not skew:
        k.e("s_lshl_b32 s37, s63, 11")
        k.e("s_add_u32 s36, s36, s37")
    k.e("v_add_u32 v18, s36, v19")
    k.e("v_lshlrev_b32 v18, 11, v18")
    k.e("s_lshl_b32 s36, s43, 7")
    k.e("v_add_u32 v18, s36, v18")
    k.e("v_lshlrev_b32 v20, 1, v19")
    k.e("v_and_b32 v21, 7, v1")
    k.e("v_xor_b32 v20, v20, v21")
    k.e("v_lshl_add_u32 v18, v20, 4, v18")
    k.e("v_and_b32 v21, 8, v1")
    k.e(f"v_lshl_add_u32 v6, v21, {4 + tw}, v18")
    k.e("v_xor_b32 v21, 8, v21")
    k.e(f"v_lshl_add_u32 v7, v21, {4 + tw}, v18")
    k.e(f"v_add_u32 v7, {8192-1024}, v7")
    k.e(f"v_add_u32 v8, {2*(8192-1024)}, v6")
    k.e(f"v_add_u32 v9, {2*(8192-1024)}, v7")
    k.e("s_add_u32 s36, s2, 1")
    k.e("s_mov_b32 s62, 0" if CFG.get("evn") else "s_and_b32 s62, s36, 3")
    if skew:
        k.e("s_cmp_eq_u32 s63, 0")
        k.e("s_cselect_b32 s62, 4, 1")
        k.e("s_cselect_b32 s31, 8192, 0")
        k.e(f"s_cselect_b32 s32, {256*2048}, 0")
    else:
        k.e("s_mov_b32 s31, 0")
        k.e("s_mov_b32 s32, 0")

def p4_setup2(k):
    k.e("v_bfe_u32 v20, v1, 2, 2")
    k.e("v_lshl_add_u32 v18, v19, 2, v20")
    k.e("v_and_b32 v20, 7, v18")
    k.e("s_lshl_b32 s36, s63, 2")
    k.e("s_xor_b32 s36, s36, 4")
    k.e("v_xor_b32 v20, s36, v20")
    k.e("v_lshlrev_b32 v18, 8, v18")
    k.e("s_lshr_b32 s36, s28, 2")
    k.e("s_lshl_b32 s36, s36, 15")
    if not CFG.get("skew"): k.e("s_add_u32 s36, s36, 65536")
    k.e("v_add_u32 v18, s36, v18")
    k.e("v_and_b32 v21, 3, v1")
    k.e("v_lshl_add_u32 v18, v21, 3, v18")
    for cb in range(8):
        k.e(f"v_xor_b32 v21, {cb}, v20")
        k.e(f"v_lshl_add_u32 v{50+cb}, v21, 5, v18")
    k.e(zero(A.O_, 64))

def ctx_ready(k, pre=None):
    l, le, lc = k.newlabel("cspin"), k.newlabel("cspinx"), k.newlabel("cchk")
    L = ["s_mov_b32 s61, 0x40000"]
    if pre is not None: L += [f"s_waitcnt vmcnt({pre})", f"s_branch {lc}"]
    return L + [l + ":", "s_sub_u32 s61, s61, 1", f"s_cbranch_scc1 {le}",
            "global_load_dword v59, v58, s[90:91] sc1", "s_waitcnt vmcnt(0)", lc + ":", "v_cmp_le_u32 vcc, 4, v59", "s_nop 0",
            "s_and_b32 s60, vcc_lo, 31", "s_and_b32 s36, s60, s44", "s_cmp_eq_u32 s36, s44", f"s_cbranch_scc1 {le}",
            "s_sleep 6", f"s_branch {l}", le + ":", "s_lshl_b32 s44, s44, 1", "s_or_b32 s44, s44, 1", "s_and_b32 s44, s44, 31"]

def p4_pieces(k, cfg, tops):
    def wdma(stage, h):
        L = [[f"s_add_u32 m0, s34, {(stage^1)*65536 + h*16384}"]]
        L += [[VM(f"buffer_load_dwordx4 v{6+j}, s[8:11], s32 offen offset:{j*1024} lds", ("W", stage, h))] for j in range(4)]
        L.append([f"s_add_u32 s32, s32, {64*2048}"] if h == 0 else [f"s_add_u32 s32, s32, {192*2048}"])
        return L
    def xld(xs, s_):
        return [VM(f"buffer_load_dwordx4 {v(XF4[xs]+(s_*2+rb)*4,4)}, v{2+rb}, s[4:7], s31 offen offset:{s_*1024}{SC}", ("x", xs, s_)) for rb in range(2)]
    def wrd(s_, cb):
        return [DS(f"ds_read_b64_tr_b16 {v(WR4+4*cb+2*t,2)}, v{50+cb} offset:{(32*s_+16*t)*256}", ("w", cb)) for t in range(2)]
    xadv = ["s_add_u32 s31, s31, 8192"]
    e = 1 if cfg.get("skew") else 0
    nopw = lambda L: [g + (["s_nop 0"] if i == 0 else []) for i, g in enumerate(L)]
    uni = cfg.get("uni")
    assert uni
    prow0 = ["s_mov_b32 s34, s33", nopw(wdma(e, 0)), nopw(wdma(e, 1))] + (["s_lshl_b32 s32, s62, 20"] if e else []) + [nopw(wdma(e ^ 1, 0))]
    prox = [xld(e, s_) for s_ in range(4)] + (["s_lshl_b32 s31, s62, 14"] if e else xadv)
    D = 6
    XA = int(cfg.get("xa", 3))
    pro2 = [wrd(0, cb) for cb in range(D)] + ["s_mov_b32 s35, s63" if e else "s_mov_b32 s35, 1", Need("vm", [("x", e, int(cfg.get("xw", 3)))])] + [xld(e ^ 1, s_) for s_ in range(XA)]
    body = [[], []]
    for stage in range(2):
        for hh in range(2):
            M, fills, pre = [], [[] for _ in range(32)], {}
            for s_ in range(2*hh, 2*hh+2):
                for cb in range(8):
                    for rb in range(2):
                        o = A.Oreg(rb, cb)
                        M.append(f"{MF} {v(o,4)}, {v(WR4+4*cb,4)}, {v(XF4[stage]+(s_*2+rb)*4,4)}, {v(o,4)}")
            for p in range(16):
                if p % 2 == 0: pre[2*p] = [Need("ds", [("w", p % 8), ("w", (p+1) % 8)])]
                if p % 8 == 0: pre[2*p] += [Need("vm", [("x", stage, 2*hh + p // 8)])]
                f = p + D
                if f < 16:
                    r = wrd(2*hh + f // 8, f % 8)
                    fills[2*p] += [r[0]]; fills[2*p+1] += [r[1]]
                    if hh == 1 and f >= 8: fills[2*p+1] += [f"v_xor_b32 v{50+f%8}, 65536, v{50+f%8}"]
            if hh == 0: pre[0] = [tops[stage]] + pre[0]
            ev = []
            if stage == 1 and hh == 1:
                ev = [Alt(A.ool(k, ["s_cmp_lt_u32 s60, 31"], "s_cbranch_scc1", ctx_ready(k, 7)), lambda c: [])]
            if stage == 1 and hh == 0:
                ev = [Alt(A.ool(k, ["s_cmp_lt_u32 s60, 31"], "s_cbranch_scc1", ["global_load_dword v59, v58, s[90:91] sc1"]), lambda c: [])]
            nxt = (stage, 1) if hh == 0 else (stage ^ 1, 0)
            fills[2*11+1] += ev + ["s_waitcnt lgkmcnt(0)", Need("vm", [("W",) + nxt, "yp" if (stage, hh) == (1, 1) else None]), "s_barrier"]
            nx = {12: [0, 1], 13: [2, 3], 14: [4], 15: [5]}
            for p, fl in nx.items():
                for i, f in enumerate(fl): fills[2*p+i] += wrd(2*nxt[1], f)
            if uni:
                wpos, xp = {"1": ([0, 1, 9, 17, 25, 26], [5, 13, 21, 29]), "2": ([0, 1, 5, 9, 13, 14], [17, 21, 25, 29]),
                            "3": ([3, 4, 12, 19, 28, 29], [0, 8, 16, 22])}[uni]
                for i, g in enumerate(wdma(stage, 0) if hh else wdma(stage ^ 1, 1)): fills[wpos[i]] += g
            else:
                wpos = {"0": [25, 26, 28, 30, 31, 31], "1": [24, 25, 27, 29, 31, 31]}[cfg.get("wp", "0")]
                for i, g in enumerate(wdma(stage, hh)): fills[wpos[i]] += g
                xp = {"0": [3, 9, 17, 21], "1": [5, 11, 17, 22], "2": [1, 3, 17, 19]}[cfg.get("xp", "0")]
            if hh == 1 and cfg.get("wt"): fills[int(cfg.get("wtp", 6))] += [VM("buffer_load_dword v0, v17, s[8:11], s32 offen")]
            for i in range(2):
                s_ = 2*hh + i
                ts = s_ + XA
                xl = xld(stage ^ 1, ts) if ts < 4 else xld(stage, ts - 4)
                fills[xp[2*i]] += [xl[0]]; fills[xp[2*i+1]] += [xl[1]]
                if ts == 3: fills[xp[2*i+1]] += xadv
            ladder(fills, 24, 32, "4" in cfg.get("lad", ""))
            hb = flat(weave(M, fills, pre, int(cfg.get("g4", 1)))) if cfg.get("p4dbg") else weave(M, fills, pre, int(cfg.get("g4", 1)))
            dbg = cfg.get("p4dbg", "")
            if "b" in dbg or ("h" in dbg and hh == 0): hb = [x for x in hb if x != "s_barrier"]
            if "v" in dbg: hb = [x for x in hb if not (isinstance(x, Op) and x.kind == "vm")]
            if "w" in dbg: hb = [x for x in hb if not (isinstance(x, Op) and x.kind == "vm" and "lds" in x.text)]
            if "l" in dbg: hb = [x for x in hb if x != "s_waitcnt lgkmcnt(0)"]
            body[stage] += hb
            if hh == 1: body[stage] += cfg["sth4"].hist(8, first=(stage == 0))
    nf = int(cfg.get("nf", 1))
    seq = [(0, s_, cb) for s_ in range(nf) for cb in range(8)]
    for c0 in (0, 4): seq += [(t, s_, cb) for t in range(2) for s_ in range(4) if 4*t + s_ >= nf for cb in range(c0, c0+4)]
    p2s = 2 * (32 + 4*nf)
    first = lambda t, s_: 2 * ((min(i for i, q in enumerate(seq) if q[:2] == (t, s_)) - D) // 2 * 2)
    M, fills, pre = [], [[] for _ in range(128)], {}
    seen = set()
    for p, (t, s_, cb) in enumerate(seq):
        for rb in range(2):
            o = A.Oreg(rb, cb)
            M.append(f"{MF} {v(o,4)}, {v(WR4+4*(p%8),4)}, {v(XF4[t]+(s_*2+rb)*4,4)}, {v(o,4)}")
        if p % 2 == 0: pre[2*p] = [Need("ds", [("w", p % 8), ("w", (p+1) % 8)])]
        if (t, s_) not in seen:
            seen.add((t, s_)); pre[2*p] += [Need("vm", [("x", t, s_)])]
        f = p + D
        if f < 64:
            t2, s2, c2 = seq[f]
            for h in range(2):
                fills[2*p+h] += [DS(f"ds_read_b64_tr_b16 {v(WR4+4*(f%8)+2*h,2)}, v{50+c2} offset:{(32*s2+16*h)*256}", ("w", f % 8))]
            if (t2, s2) == (0, 3): fills[2*p+1] += [f"v_xor_b32 v{50+c2}, 65536, v{50+c2}"]
    ops = (wdma(1, 1)[:-1] if uni else []) + [[x] for x in flat([xld(1, s_) for s_ in range(XA, 4)])]
    for i, x in enumerate(ops): fills[3*i] += x
    pre[first(0, 2)] = [Need("vm", [("W", 0, 1)]), "s_barrier"] + pre[first(0, 2)]
    pre[first(1, 0)] = [Need("vm", [("W", 1, 0)]), "s_barrier"] + pre[first(1, 0)]
    pre[first(1, 2)] = [Need("vm", [("W", 1, 1)]), "s_barrier"] + pre[first(1, 2)]
    gin = int(cfg.get("gin", 4))
    g = [x for x in lines(gcalc, False, range(gin)) if x != "s_nop 0"]
    g0, g1 = int(cfg.get("g0", 8)), int(cfg.get("g1", 72))
    pre[g0] += [Need("ds", ["xi"])]
    for i in range(0, len(g), 2):
        fills[g0 + i * (g1 - g0) // len(g)] += g[i:i+2]
    e1 = p2s + 10
    for cb in range(4):
        fills[p2s+2+cb] += [DS(f"ds_write_b128 v20, {v(A.Oreg(1,cb),4)} offset:{cb*1024}", "e1w")]
        fills[e1+1+cb//2] += [DS(f"ds_read_b128 {v(A.Oreg(1,cb),4)}, v21 offset:{cb*1024}", ("e1r", cb))]
        o0, o1 = A.Oreg(0, cb), A.Oreg(1, cb)
        fills[e1+6+2*cb] += [Need("ds", [("e1r", cb)])] + [f"v_add_f32 v{o0+e}, v{o0+e}, v{o1+e}" for e in range(2)]
        fills[e1+7+2*cb] += [f"v_add_f32 v{o0+e}, v{o0+e}, v{o1+e}" for e in range(2, 4)]
        fills[e1+7+2*cb] += [VM(f"buffer_store_dwordx4 {v(o0,4)}, v18, s[24:27], s41 offen offset:{cb*1024}{SC}", "ex")]
    fills[e1] += [Need("ds", ["e1w"]), "s_barrier"]
    fills[122] += ["s_lshr_b32 s36, s28, 2", "s_lshl_b32 s36, s36, 15", "s_and_b32 s37, s28, 3"]
    fills[123] += ["s_lshl_b32 s37, s37, 12", "s_add_u32 s36, s36, s37", "s_add_u32 s36, s36, 65536"]
    fills[124] += ["v_add_u32 v20, s36, v22", "v_xor_b32 v21, 32768, v20"]
    sp = int(cfg.get("sgp", 127))
    fills[sp] += ["s_waitcnt vmcnt(0)"] + signal("s[90:91]", "s40", "v4", "v13")
    fin = ["s_waitcnt vmcnt(16)", Need("vm", ["xl"])] + [DS(f"ds_read_b64 {v(XI+2*cb,2)}, v63 offset:{cb*32}", "xi") for cb in range(4)] + weave(M, fills, pre)
    return prow0, prox, pro2, body, fin

def routed(k, part):
    if part == 0:
        k.e([f"s_add_u32 s36, s30, {CNT_F2}", "s_lshl_b32 s36, s36, 7", "v_mov_b32 v60, s36", "global_load_dword v61, v60, s[90:91] sc1"])
        return
    if part == 1:
        k.e("s_waitcnt vmcnt(16)")
        emit(k, check(k, "s[90:91]", "v60", "v61", 16, 1))
        k.e(["s_lshl_b32 s37, s30, 8", f"s_add_u32 s36, s37, {WS_YP}", "s_add_u32 s37, s36, 4096",
             "v_and_b32 v60, 15, v1", "v_lshlrev_b32 v60, 13, v60", "v_lshl_add_u32 v60, v19, 4, v60"])
        for t in range(2):
            for cb in range(4):
                k.e(f"buffer_load_dwordx4 {v(96+16*t+4*cb,4)}, v60, s[24:27], s{36+t} offen offset:{cb*64}{SC}")
        return
    k.e(zero(YA, 16))
    k.e("s_waitcnt vmcnt(16)")
    for t in range(2):
        lsk = k.newlabel("noy")
        R = 96 + 16*t
        k.e(f"s_sub_u32 s36, s{56+t}, s38")
        k.e("s_cmp_lt_u32 s36, 16")
        k.e(f"s_cbranch_scc0 {lsk}")
        k.e(f"s_and_b32 s36, s{58+t}, 0xffff0000")
        k.e("s_cmp_lt_i32 s36, 0")
        k.e("s_cselect_b32 s37, 0x80000000, -1")
        k.e("s_xor_b32 s36, s36, s37")
        k.e("s_and_b32 s36, s36, 0xffff0000")
        k.e("v_mov_b32 v62, s36")
        k.e("v_mul_f32 v62, 0xbfb8aa3b, v62")
        k.e("v_exp_f32 v62, v62")
        k.e("s_nop 0")
        k.e("v_add_f32 v62, 1.0, v62")
        k.e("v_rcp_f32 v62, v62")
        k.e("s_nop 0")
        rbf(k, "v62")
        for m in ["quad_perm:[1,0,3,2]", "quad_perm:[2,3,0,1]", "row_half_mirror", "row_mirror"]:
            for r in range(16):
                k.e(f"v_add_f32_dpp v{R+r}, v{R+r}, v{R+r} {m} row_mask:0xf bank_mask:0xf")
        k.e(f"v_cmp_eq_u32 vcc, s{56+t}, v14")
        for r in range(0, 16, 2):
            for rep in range(2):
                k.e(f"v_cvt_pk_bf16_f32 v61, v{R+r}, v{R+r+1}")
                k.e(f"v_lshlrev_b32 v{R+r}, 16, v61")
                k.e(f"v_and_b32 v{R+r+1}, 0xffff0000, v61")
                if rep == 0: k.e([f"v_mul_f32 v{R+r}, v62, v{R+r}", f"v_mul_f32 v{R+r+1}, v62, v{R+r+1}"])
            k.e(f"v_cndmask_b32 v{YA+r}, v{YA+r}, v{R+r}, vcc")
            k.e(f"v_cndmask_b32 v{YA+r+1}, v{YA+r+1}, v{R+r+1}, vcc")
        k.label(lsk)

RT = ["s_sub_u32 s36, s56, s38", "s_sub_u32 s37, s57, s38", "s_min_u32 s36, s36, s37", "s_cmp_lt_u32 s36, 16"]
import os
if os.environ.get("NORT"): RT[-1] = "s_cmp_lt_u32 s36, 0"
def ex_addr():
    return ["s_lshl_b32 s36, s2, 15", "s_lshl_b32 s37, s28, 12", "s_add_u32 s36, s36, s37", f"s_add_u32 s36, s36, {WS_EX}"]

def p4_final(k, cfg):
    k.e("s_nop 4")
    for cb in range(4): k.e(f"ds_write_b128 v20, {v(A.Oreg(1,4+cb),4)} offset:{cb*1024}")
    gin = int(cfg.get("gin", 4)); gm = max(gin, int(cfg.get("gm", 2)))
    gcalc(k, False, range(gin, gm))
    cfg["st5"].mark()
    emit(k, A.ool(k, [f"s_cmp_eq_u32 s28, {cfg.get('exp', 3)}"], "s_cbranch_scc1", spin(k, "s[90:91]", "v5", "v23", 8, int(cfg.get("exs", 1)))))
    k.e("s_waitcnt lgkmcnt(0)")
    k.e("s_barrier")
    cfg["st5"].mark()
    for cb in range(4): k.e(f"buffer_load_dwordx4 {v(64+4*cb,4)}, v18, s[24:27], s39 offen offset:{cb*1024}{SC}")
    for cb in range(4): k.e(f"ds_read_b128 {v(128+4*cb,4)}, v21 offset:{cb*1024}")
    for cb in range(4):
        k.e(f"s_waitcnt lgkmcnt({3-cb})")
        for e in (0, 2): k.e(f"v_pk_add_f32 {v(128+4*cb+e,2)}, {v(128+4*cb+e,2)}, {v(A.Oreg(0,4+cb)+e,2)}")
    gcalc(k, False, range(gm, 4))
    emit(k, A.ool(k, RT, "s_cbranch_scc1", lines(gcalc, True)))
    for cb in range(4):
        k.e(f"s_waitcnt vmcnt({3-cb})")
        for h in range(2):
            a, b = 128+4*cb+2*h, 128+4*cb+2*h+1
            k.e(f"v_pk_add_f32 {v(a,2)}, {v(a,2)}, {v(64+4*cb+2*h,2)}")
            def rnd2():
                k.e(f"v_cvt_pk_bf16_f32 v23, v{a}, v{b}")
                k.e(f"v_lshlrev_b32 v{a}, 16, v23")
                k.e(f"v_and_b32 v{b}, 0xffff0000, v23")
            rnd2()
            k.e(f"v_pk_mul_f32 {v(a,2)}, {v(a,2)}, {v(G+4*cb+2*h,2)}")
            rnd2()
            k.e(f"v_pk_add_f32 {v(a,2)}, {v(a,2)}, {v(X32+4*cb+2*h,2)}")
            k.e(f"v_cvt_pk_bf16_f32 v{80+2*cb+h}, v{a}, v{b}")
        k.e(f"ds_write_b64 v63, {v(80+2*cb,2)} offset:{cb*32}")
    k.e("v_add_u32 v22, s42, v22")
    k.e(f"s_mov_b32 s36, {8*2048}")
    k.e("s_waitcnt lgkmcnt(0)")
    k.e("ds_read_b128 v[64:67], v22")
    k.e("ds_read_b128 v[68:71], v22 offset:1024")
    k.e("s_waitcnt lgkmcnt(1)")
    k.e(f"buffer_store_dwordx4 v[64:67], v15, s[20:23], 0 offen {cfg.get('ofl', '')}")
    k.e("s_waitcnt lgkmcnt(0)")
    k.e(f"buffer_store_dwordx4 v[68:71], v15, s[20:23], s36 offen {cfg.get('ofl', '')}")

def p4(k, cfg, st):
    kx = K("tmp")
    kx.e(["s_lshl_b32 s36, s29, 7", "s_and_b32 s37, s28, 3", "s_lshl_b32 s37, s37, 5", "s_add_u32 s36, s36, s37",
          "s_lshr_b32 s37, s28, 2", "s_lshl_b32 s37, s37, 4", "s_add_u32 s38, s36, s37",
          "v_and_b32 v63, 15, v1", "v_add_u32 v14, s38, v63", "v_lshlrev_b32 v16, 3, v14",
          "v_lshrrev_b32 v15, 3, v1", "v_add_u32 v15, s38, v15", "v_lshlrev_b32 v15, 11, v15", "v_and_b32 v4, 7, v1",
          "v_lshl_add_u32 v15, v4, 4, v15", "s_lshl_b32 s36, s30, 7", "v_add_u32 v15, s36, v15",
          "s_lshl_b32 s36, s28, 12", f"s_add_u32 s42, s36, {LDS_X}", "v_lshl_add_u32 v63, v63, 7, s42", "v_lshl_add_u32 v63, v19, 3, v63"])
    xl = ["s_mov_b32 m0, s42", f"s_mov_b32 s36, {8*2048-1024}", VM("buffer_load_dwordx4 v15, s[16:19], 0 offen lds"),
          VM("buffer_load_dwordx4 v15, s[16:19], s36 offen offset:1024 lds"),
          f"s_mov_b32 s36, {WS_ST}", VM(f"buffer_load_dwordx2 {v(XI+8,2)}, v16, s[24:27], s36 offen{SC}", "xl")]
    n_ctx = Need("vm", ["ctxst"])
    sig = ["v_mov_b32 v26, s40", "v_mov_b32 v28, 1", "v_writelane_b32 v26, s41, 1",
           "s_mov_b64 exec, 3", "global_atomic_add v26, v28, s[90:91]", "s_mov_b64 exec, -1"]
    sigA = Alt(A.ool(k, ["s_cmp_eq_u32 s28, 0"], "s_cbranch_scc1", sig), lambda c: sig if c["w0"] else [])
    redA = guard(k, ["s_cmp_lt_u32 s28, 4"], "s_cbranch_scc0", ffn2_reduce(), "lo")
    f2 = ["s_and_b32 s36, s2, 15", f"s_add_u32 s36, s36, {CNT_F2}", "s_lshl_b32 s36, s36, 7"] + signal("s[90:91]", "s36", "v26", "v27")
    f2A = guard(k, ["s_cmp_eq_u32 s28, 0"], "s_cbranch_scc0", f2, "w0")
    def rt(part):
        kr = K(k.name + f"_rt{part}"); routed(kr, part)
        lrt = k.newlabel("nrt")
        return Alt(RT + [f"s_cbranch_scc0 {lrt}"] + [x.strip() for x in kr.lines] + [lrt + ":"], lambda c: [])
    ev0 = {2: [f2A], 3: [rt(0)] + xl}
    ev1 = {3: [rt(1)]}
    if "4" in cfg.get("cpf", ""):
        ev1[3] = [guard(k, ["s_cmp_eq_u32 s28, 0"], "s_cbranch_scc0", ["s_mov_b32 s43, s38"] + code_touch(k, 4, "v0") + ["s_mov_b32 s38, s43"], "w0")] + ev1[3]
    tops = [Alt(A.ool(k, ["s_cmp_ge_u32 s35, 2"], "s_cbranch_scc1", switch(k, "s35", sorted(ev0.items()))), lambda c: ev0.get(c["it"])),
            Alt(A.ool(k, ["s_cmp_eq_u32 s35, 3"], "s_cbranch_scc1", switch(k, "s35", sorted(ev1.items()))), lambda c: ev1.get(c["it"]))]
    prow0, prox, pro2, body, fin = p4_pieces(k, cfg, tops)
    skew = cfg.get("skew")
    n_w0 = Need("vm", [("W", 1 if skew else 0, 0)])
    scen = []
    for w0, lo, n7 in ((1, 1, 1), (0, 1, 1), (0, 0, 1), (0, 0, 0)):
        c = dict(w0=w0, lo=lo, n7=n7, it=0)
        for i0 in ((0, 1) if skew else (0,)):
            sq = flat([VM("", "ctxst"), n_ctx, sigA, prow0, n_w0, prox, redA, pro2], c)
            if skew: sq += flat(body[1], dict(c, it=i0))
            for it in range(i0 + 1, 4): sq += flat(body, dict(c, it=it))
            scen.append(sq + flat(fin, c))
    resolve(scen)
    k.e("s_and_b32 s36, s29, 28")
    k.e(f"s_sub_u32 s40, {15+CNT_CTX}, s30")
    k.e("s_lshl_b32 s40, s40, 7")
    k.e("s_add_u32 s40, s40, s36")
    k.e(f"s_add_u32 s41, s30, {CNT_CTX}")
    k.e("s_lshl_b32 s41, s41, 7")
    k.e("s_add_u32 s41, s41, s36")
    p4_setup(k)
    pb = cfg.get("pb", "")
    rest = lines(srd, 4, 54, 16777216 + DELTA, WS_CTX) + lines(srd, 16, 96, 4194304) + lines(srd, 20, 98, 4194304) + [x.strip() for x in kx.lines] + lines(p4_setup2)
    if "s" in pb: k.e(rest)
    if "m" in pb:
        l7 = k.newlabel("w7")
        emit(k, ["s_waitcnt vmcnt(4)", "s_cmp_eq_u32 s28, 7", f"s_cbranch_scc1 {l7}"] + lines(ffn2_math) + [l7 + ":"])
    emit(k, [n_ctx, "s_barrier", sigA])
    st.mark()
    if "m" in pb: emit(k, prow0)
    else:
        lm, lm1, lm2 = k.newlabel("f2m"), k.newlabel("f2a"), k.newlabel("f2b")
        A.OOL.append([lm + ":"] + lines(ffn2_math) + ["s_cmp_lt_u32 s28, 4", f"s_cbranch_scc1 {lm2}", f"s_branch {lm1}"])
        k.e("s_bitcmp1_b32 0x70, s28")
        k.e(f"s_cbranch_scc1 {lm}")
        k.label(lm1)
        emit(k, prow0)
        k.e("s_cmp_lt_u32 s28, 4")
        k.e(f"s_cbranch_scc1 {lm}")
        k.label(lm2)
    if "s" not in pb: k.e(rest)
    k.e("s_mov_b32 s60, 31")
    lj = k.newlabel("w7j")
    k.e(f"s_cmp_eq_u32 s28, {cfg.get('pw', 3)}")
    k.e(f"s_cbranch_scc0 {lj}")
    if skew:
        k.e(["s_sub_u32 s36, s62, 1", "v_add_u32 v58, s36, v1", "s_or_b32 s36, s62, 3", "v_min_u32 v58, s36, v58", "v_writelane_b32 v58, 0, 0"])
    else:
        k.e(["v_min_u32 v58, 3, v1", "s_lshl_b32 s36, s63, 2", "v_add_u32 v58, s36, v58"])
    k.e(f"s_add_u32 s36, s29, {CNT_CTX}")
    k.e("s_lshl_b32 s36, s36, 7")
    k.e("v_lshl_add_u32 v58, v58, 2, s36")
    k.e(f"s_mov_b32 s44, {(1 << int(cfg.get('rdy0', 2))) - 1}")
    emit(k, ctx_ready(k))
    k.label(lj)
    emit(k, [n_w0])
    k.e("s_waitcnt lgkmcnt(0)")
    st.mark()
    k.e("s_barrier")
    st.mark()
    emit(k, prox)
    emit(k, [redA])
    k.e("v_lshlrev_b32 v22, 4, v1")
    k.e(["v_mov_b32 v18, v22"] + hole("e", "v18"))
    k.e("v_add_u32 v20, s42, v22")
    k.e("v_xor_b32 v21, 16384, v20")
    k.e(ex_addr())
    k.e("s_mov_b32 s41, s36")
    k.e(f"s_xor_b32 s39, s36, {PX() << 15}")
    k.e(f"s_add_u32 s40, s2, {CNT_EX}")
    k.e("s_lshl_b32 s40, s40, 7")
    emit(k, pro2)
    if "x" in cfg.get("p4off", ""): k.e("s_mov_b32 s6, 0")
    if "w" in cfg.get("p4off", ""): k.e(["s_mov_b32 s10, 0", "s_mov_b32 s34, 0x28000"])
    st.mark()
    if cfg.get("p4prio"):
        emit(k, ["s_cmp_lt_u32 s28, 4", "s_cbranch_scc1 L_p4_np", "s_setprio 1", "L_p4_np:"])
    if skew: k.e("s_branch L_p4_mid")
    k.align(6)
    k.label("L_p4_loop")
    emit(k, body[0])
    k.label("L_p4_mid")
    emit(k, body[1])
    k.e("s_add_u32 s35, s35, 1")
    k.e("s_cmp_lt_u32 s35, 4")
    k.e("s_cbranch_scc1 L_p4_loop")
    st.mark()
    kr = K(k.name + "_rt2"); routed(kr, 2)
    emit(k, A.ool(k, RT, "s_cbranch_scc1", [x.strip() for x in kr.lines]))
    k.e(f"s_xor_b32 s37, s40, {PX() << 7}")
    k.e("v_mov_b32 v5, s37")
    emit(k, fin)
    st.mark()
    cfg["st5"].mark()
    p4_final(k, cfg)
    cfg["st5"].mark()

def gen_fused(cfg, name):
    cfg = dict(cfg, stflag=SC, pro_hook=pro_hook, pro_wait=pro_wait, bar_hook=bar_hook, b_hook=b_hook, b_inline=["buffer_load_dword v0, v13, s[4:7], s48 offen", f"s_add_u32 s48, s48, {128*int(cfg.get('btl', 32))}"], before_merge=before_merge, tail_extra=tail_extra, share=1)
    CFG.update(cfg)
    HOLE[0] = cfg.get("hole", "")
    Z64[0] = not cfg.get("noz64")
    k = K(name)
    k.e("s_cmp_ge_u32 s2, 256")
    k.e("s_cbranch_scc1 L_end")
    stq = cfg.get("stamp", "")
    st = Stamps(k, bool(stq), kid=0)
    off = Stamps(k, False)
    st.mark()
    cfg["sth3"] = st if "c" in stq else off
    cfg["sth4"] = st if "d" in stq else off
    cfg["st5"] = st if "5" in stq else off
    cfg["sth1"] = st if "a" in stq else off
    cfg["sth2"] = st if "b" in stq else off
    p1(k, cfg, st if "1" in stq else off)
    if "b" in stq: st.mark()
    p2(k, cfg, st if "2" in stq else off)
    k.e("s_load_dwordx2 s[32:33], s[0:1], 40")
    k.e("s_load_dwordx2 s[34:35], s[0:1], 80")
    k.e("s_load_dwordx2 s[96:97], s[0:1], 0")
    k.e("s_load_dwordx2 s[98:99], s[0:1], 88")
    s3 = st if "3" in stq else off
    k.e("s_cmp_lt_u32 s28, 4")
    k.e("s_cbranch_scc0 L_grp1")
    A.gen_p3(k, cfg, 0, s3, after_q, before_tail)
    k.e("s_branch L_p3_done")
    A.flush_ool(k)
    k.label("L_grp1")
    A.gen_p3(k, cfg, 1, s3, after_q, before_tail)
    k.e("s_branch L_p3_done")
    A.flush_ool(k)
    k.label("L_p3_done")
    st.mark()
    p4(k, cfg, st if "4" in stq else off)
    st.dump(54, "s28")
    if cfg.get("stdbg"):
        k.e("s_lshl_b32 s36, s28, 8"); k.e("s_add_u32 s36, s36, s2")
        k.e(f"s_cmp_eq_u32 s36, {cfg['stdbg']}"); k.e("s_cbranch_scc0 L_end")
        k.e("v_mov_b32 v2, 0"); k.e("s_mov_b64 exec, 1")
        for i in range(1, st.n):
            k.e(f"s_sub_u32 s36, s{st.base+2*i+1}, s{st.base+1}")
            k.e("v_mov_b32 v3, s36")
            k.e(f"global_store_dword v2, v3, s[88:89] offset:{4*i}")
    k.e("s_endpgm")
    A.flush_ool(k)
    k.label("L_end")
    return wrap(k, 256)
```

```python
from common import *
import attn as A
import ffn as F

WS_CNT = 59 << 20
CNT_KV, CNT_CTX, CNT_F1, CNT_F2, CNT_KV0, CNT_EX, CNT_LN = 0, 32, 48, 96, 64, 128, 112
WS_EX = 64 << 20
SC = " sc1"
LDS_X = 131072

def NT(cfg, key):
    return " nt" if key in cfg.get("nt", "") else ""

def lines(fn, *a, **kw):
    t = K("tmp"); fn(t, *a, **kw); return [x.strip() for x in t.lines]

def signal(saddr_pair, off, t0, t1):
    return [f"v_mov_b32 {t0}, {off}", f"v_mov_b32 {t1}, 1", "s_mov_b64 exec, 1",
            f"global_atomic_add {t0}, {t1}, {saddr_pair}", "s_mov_b64 exec, -1", "s_nop 3"]

def switch(k, sreg, cases):
    L = []
    lend = k.newlabel("swend")
    for i, (val, items) in enumerate(cases):
        if i + 1 < len(cases):
            ln = k.newlabel("swn")
            L += [f"s_cmp_eq_u32 {sreg}, {val}", f"s_cbranch_scc0 {ln}"] + items + [f"s_branch {lend}", ln + ":"]
        else:
            L += items
    return L + [lend + ":"]

def guard(k, cond, br, items, key):
    l = k.newlabel("g")
    return Alt(cond + [f"{br} {l}"] + items + [l + ":"], lambda c: items if c[key] else [])

def spin(k, saddr, voff, vtmp, target, slp=8):
    l, le = k.newlabel("spin"), k.newlabel("spinx")
    return ["s_mov_b32 s61, 0x40000", l + ":", "s_sub_u32 s61, s61, 1", f"s_cbranch_scc1 {le}", f"s_sleep {slp}",
            f"global_load_dword {vtmp}, {voff}, {saddr} sc1", "s_waitcnt vmcnt(0)",
            f"v_readfirstlane_b32 s36, {vtmp}", "s_nop 0", f"s_cmp_lt_u32 s36, {target}", f"s_cbranch_scc1 {l}", le + ":"]

def check(k, saddr, voff, vtmp, target, slp=8):
    return A.ool(k, [f"v_readfirstlane_b32 s36, {vtmp}", "s_nop 0", f"s_cmp_lt_u32 s36, {target}"], "s_cbranch_scc1",
                 spin(k, saddr, voff, vtmp, target, slp))

def ln_check(k):
    l, le = k.newlabel("lspin"), k.newlabel("lspinx")
    return ["s_mov_b32 s61, 0x40000", l + ":", "v_cmp_gt_u32 vcc, 16, v116", "s_nop 0", "s_cmp_eq_u64 vcc, 0",
            f"s_cbranch_scc1 {le}", "s_sub_u32 s61, s61, 1", f"s_cbranch_scc1 {le}", "s_sleep 8",
            "global_load_dword v116, v117, s[90:91] sc1", "s_waitcnt vmcnt(0)", f"s_branch {l}", le + ":"]

def ln_row(X, XO, WR, Fr, T, SB, srow, sslot):
    k = K("t")
    t = [f"v{T+i}" for i in range(8)]
    for i in range(8):
        k.e(f"v_lshlrev_b32 v{Fr+2*i}, 16, v{X+i}")
        k.e(f"v_and_b32 v{Fr+2*i+1}, 0xffff0000, v{X+i}")
    P = lambda r: v(r, 2)
    k.e(f"v_pk_add_f32 {P(T)}, {P(Fr)}, {P(Fr+2)}")
    for i in range(2, 8): k.e(f"v_pk_add_f32 {P(T)}, {P(T)}, {P(Fr+2*i)}")
    k.e(f"v_add_f32 {t[0]}, {t[0]}, {t[1]}")
    wave_sum(k, t[0], t[4], SB)
    k.e(f"v_mul_f32 {t[4]}, 0xba800000, {t[4]}")
    k.e(f"v_mov_b32 {t[5]}, {t[4]}")
    for i in range(8):
        k.e(f"v_pk_add_f32 {P(T+2)}, {P(Fr+2*i)}, {P(T+4)}")
        k.e(f"v_pk_mul_f32 {P(T)}, {P(T+2)}, {P(T+2)}" if i == 0 else f"v_pk_fma_f32 {P(T)}, {P(T+2)}, {P(T+2)}, {P(T)}")
    k.e(f"v_add_f32 {t[0]}, {t[0]}, {t[1]}")
    wave_sum(k, t[0], t[2], SB)
    k.e(f"v_mul_f32 {t[2]}, 0x3a800000, {t[2]}")
    k.e(f"v_cvt_pk_bf16_f32 {t[3]}, {t[4]}, {t[2]}")
    k.e(f"v_lshlrev_b32 {t[4]}, 16, {t[3]}")
    k.e(f"v_and_b32 {t[2]}, 0xffff0000, {t[3]}")
    k.e(f"v_add_f32 {t[2]}, 0x3727c5ac, {t[2]}")
    rbf(k, t[2])
    k.e(f"v_sqrt_f32 {t[2]}, {t[2]}")
    k.e(f"v_mov_b32 {t[5]}, {t[4]}")
    rbf(k, t[2])
    k.e(f"v_rcp_f32 {t[7]}, {t[2]}")
    k.e("s_nop 0")
    k.e(f"v_fma_f32 {t[3]}, -{t[2]}, {t[7]}, 1.0")
    k.e(f"v_fma_f32 {t[7]}, {t[3]}, {t[7]}, {t[7]}")
    k.e(f"v_mov_b32 {t[6]}, {t[7]}")
    for i in range(8):
        a, b = f"v{Fr+2*i}", f"v{Fr+2*i+1}"
        k.e(f"v_pk_add_f32 {P(Fr+2*i)}, {P(Fr+2*i)}, {P(T+4)}")
        k.e(f"v_cvt_pk_bf16_f32 {t[2]}, {a}, {b}")
        k.e(f"v_lshlrev_b32 {a}, 16, {t[2]}")
        k.e(f"v_and_b32 {b}, 0xffff0000, {t[2]}")
        k.e(f"v_pk_mul_f32 {P(Fr+2*i)}, {P(Fr+2*i)}, {P(T+6)}")
        k.e(f"v_cvt_pk_bf16_f32 v{XO+i}, {a}, {b}")
        k.e(f"v_lshlrev_b32 {a}, 16, v{XO+i}")
        k.e(f"v_and_b32 {b}, 0xffff0000, v{XO+i}")
        k.e(f"v_pk_mul_f32 {P(T)}, {P(Fr)}, {P(WR)}" if i == 0 else f"v_pk_fma_f32 {P(T)}, {P(Fr+2*i)}, {P(WR+2*i)}, {P(T)}")
    k.e(f"v_add_f32 {t[0]}, {t[0]}, {t[1]}")
    k.e(f"v_xor_b32 {t[6]}, 0x80000000, {t[4]}")
    k.e(f"s_mul_i32 s{SB}, {sslot}, 2064")
    k.e(f"s_add_u32 s{SB}, s{SB}, {LDS_X}")
    k.e(f"v_lshl_add_u32 {t[3]}, v1, 4, s{SB}")
    k.e(f"ds_write_b128 {t[3]}, {v(XO,4)}")
    k.e(f"ds_write_b128 {t[3]}, {v(XO+4,4)} offset:1024")
    wave_sum(k, t[0], t[1], SB)
    rbf(k, t[1])
    k.e(f"v_ashrrev_i32 {t[3]}, 31, {t[1]}")
    k.e(f"v_or_b32 {t[3]}, 0x80000000, {t[3]}")
    k.e(f"v_xor_b32 {t[3]}, {t[1]}, {t[3]}")
    k.e(f"v_and_b32 {t[3]}, 0xffff0000, {t[3]}")
    k.e(f"s_sub_u32 s{SB}, 0xffff, {srow}")
    k.e(f"v_or_b32 {t[3]}, s{SB}, {t[3]}")
    k.e(f"s_lshl_b32 s{SB+1}, {sslot}, 3")
    k.e(f"s_add_u32 s{SB+1}, s{SB+1}, {LDS_X + 16640}")
    k.e(f"v_mov_b32 {t[2]}, s{SB+1}")
    k.e(f"ds_write_b64 {t[2]}, {v(T+6,2)}")
    k.e(f"ds_write_b32 {t[2]}, {t[3]} offset:64")
    return [x.strip() for x in k.lines]

def zip2(a, b):
    out = []
    for x, y in zip(a, b):
        if x == "s_nop 0": continue
        if x == "s_nop 1": out.append("s_nop 0"); continue
        out += [x, y]
    return out

def ln_part3(T):
    t = [f"v{T+i}" for i in range(8)]
    L = [f"v_and_b32 {t[0]}, 7, v1", f"v_lshlrev_b32 {t[0]}, 3, {t[0]}", f"v_add_u32 {t[1]}, {LDS_X + 16640}, {t[0]}",
         f"ds_read_b64 {v(T+2,2)}, {t[1]}", f"ds_read_b32 {t[4]}, {t[1]} offset:64",
         "s_lshl_b32 s36, s2, 6", f"s_add_u32 s36, s36, {WS_ST}", "s_lshl_b32 s37, s2, 3", f"s_add_u32 s37, s37, {F.WS_KEY}",
         "s_waitcnt lgkmcnt(0)", f"v_mov_b32 {t[6]}, {t[4]}"]
    red = lambda x: flat([["s_nop 1", f"v_max_u32_dpp {x}, {x}, {x} {m} row_mask:0xf bank_mask:0xf"]
                          for m in ("quad_perm:[1,0,3,2]", "quad_perm:[2,3,0,1]", "row_half_mirror")])
    L += red(t[6]) + [f"v_cmp_eq_u32 vcc, {t[6]}, {t[4]}", "s_nop 1", f"v_cndmask_b32 {t[7]}, {t[4]}, v118, vcc"] + red(t[7])
    L += ["s_mov_b64 exec, 0xff", f"buffer_store_dwordx2 {v(T+2,2)}, {t[0]}, s[24:27], s36 offen{SC}",
          "s_mov_b64 exec, 1", f"buffer_store_dwordx2 {v(T+6,2)}, {t[0]}, s[24:27], s37 offen{SC}", "s_mov_b64 exec, -1", "s_nop 3"]
    return L

def ln_part2(k, X):
    t = ["v16", "v18", "v19"]
    k.e(f"v_and_b32 {t[0]}, 7, v1")
    k.e(f"v_lshrrev_b32 {t[1]}, 3, v1")
    k.e(f"v_mul_u32_u24 {t[2]}, 2064, {t[0]}")
    k.e(f"v_lshl_add_u32 {t[2]}, {t[1]}, 4, {t[2]}")
    k.e("s_lshl_b32 s36, s28, 8")
    k.e(f"s_add_u32 s36, s36, {LDS_X}")
    k.e(f"v_add_u32 {t[2]}, s36, {t[2]}")
    k.e(f"ds_read_b128 {v(X,4)}, {t[2]}")
    k.e(f"ds_read_b128 {v(X+4,4)}, {t[2]} offset:128")
    k.e(f"v_lshlrev_b32 {t[0]}, 4, {t[0]}")
    k.e(f"v_lshl_add_u32 {t[0]}, {t[1]}, 8, {t[0]}")
    k.e("s_lshr_b32 s36, s2, 1")
    k.e("s_lshl_b32 s36, s36, 15")
    k.e("s_and_b32 s37, s2, 1")
    k.e("s_lshl_b32 s37, s37, 7")
    k.e("s_add_u32 s36, s36, s37")
    k.e("s_lshl_b32 s37, s28, 12")
    k.e("s_add_u32 s36, s36, s37")
    if "x" in HOLE[0]:
        k.e("s_bitcmp1_b32 s2, 0")
        k.e(f"s_cselect_b32 s37, {DELTA}, 0")
        k.e("s_mov_b32 exec_lo, 0xff00")
        k.e("s_mov_b32 exec_hi, 0xff00")
        k.e(f"v_add_u32 {t[0]}, s37, {t[0]}")
        k.e("s_mov_b64 exec, -1")
    k.e("s_waitcnt lgkmcnt(0)")
    k.e(f"buffer_store_dwordx4 {v(X,4)}, {t[0]}, s[24:27], s36 offen{SC}")
    k.e(f"buffer_store_dwordx4 {v(X+4,4)}, {t[0]}, s[24:27], s36 offen offset:2048{SC}")

KP = 128
WF = 64
XF = [24, 96]
def xld2(xs, s_):
    return [VM(f"buffer_load_dwordx4 {v(XF[xs]+(s_*2+rb)*4,4)}, v{6+rb}, s[8:11], s32 offen offset:{s_*1024}{SC}", ("x", xs, s_)) for rb in range(2)]
vPOLL = "v56"
vZ = "v57"

def code_touch(k, a, dst):
    l = k.newlabel("pc")
    return ["s_getpc_b64 s[36:37]", l + ":", f"s_sub_u32 s36, s36, {l}-L_pc", "s_subb_u32 s37, s37, 0",
            "s_lshr_b32 s38, s2, 3", "s_lshl_b32 s38, s38, 7", f"v_lshl_add_u32 v{a}, v1, 12, s38", f"v_min_u32 v{a}, L_end-L_pc-4, v{a}",
            f"v_mov_b32 v{a+1}, s37", f"v_add_co_u32 v{a}, vcc, s36, v{a}", "s_mov_b64 exec, 0xffff", "s_nop 0",
            f"v_addc_co_u32 v{a+1}, vcc, 0, v{a+1}, vcc", f"global_load_dword {dst}, v[{a}:{a+1}], off", "s_mov_b64 exec, -1", "s_nop 1"]

def p1_retarget(cfg):
    L = ["v_lshrrev_b32 v3, 4, v1", "s_lshl_b32 s37, s28, 4", "v_add_u32 v19, s37, v3", "v_lshlrev_b32 v19, 13, v19",
         "s_lshl_b32 s37, s29, 8", "v_add_u32 v19, s37, v19", "v_and_b32 v16, 15, v1", "v_lshlrev_b32 v3, 1, v3",
         "v_xor_b32 v16, v16, v3", "v_lshl_add_u32 v2, v16, 4, v19", f"v_add_u32 v3, {32768-1024}, v2",
         "v_xor_b32 v16, 8, v16", "v_lshl_add_u32 v4, v16, 4, v19", f"v_add_u32 v4, {2*(32768-1024)}, v4",
         f"v_add_u32 v5, {32768-1024}, v4"]
    L += lines(srd, 4, 96, 8388608)
    L += ["s_mov_b32 s31, 0", f"s_mov_b32 s40, {128*8192}", "s_mov_b64 s[8:9], s[4:5]", "s_mov_b32 s10, s6", f"s_mov_b32 s32, {3*128*8192}"]
    L += [f"v_mov_b32 v{6+j}, v{2+j}" for j in range(4)]
    return L

def warm(w):
    return ["s_lshl_b32 s36, s2, 13", f"s_lshl_b32 s37, {w}, 11", "s_add_u32 s36, s36, s37", "v_lshl_add_u32 v16, v1, 7, s36",
            f"s_cmp_lt_u32 {w}, 2", "s_cselect_b64 s[38:39], s[48:49], s[50:51]",
            "s_lshr_b32 s36, s2, 3", "s_lshl_b32 s36, s36, 1", f"s_and_b32 s37, {w}, 1", "s_add_u32 s36, s36, s37", "s_lshl_b32 s36, s36, 16",
            "s_and_b32 s37, s29, 28", "s_lshl_b32 s37, s37, 8", "s_add_u32 s36, s36, s37",
            "s_sub_u32 s37, 256, s38", "s_and_b32 s37, s37, 0x300", "s_add_u32 s36, s36, s37", "v_lshrrev_b32 v18, 1, v1", "v_lshl_add_u32 v18, v18, 13, s36",
            "v_and_b32 v19, 1, v1", "v_lshl_add_u32 v18, v19, 7, v18",
            "s_mov_b64 exec, 0xffff", "global_load_dword v0, v16, s[46:47]", "global_load_dword v0, v18, s[38:39]", "s_mov_b64 exec, -1"]

W1 = []
def p1(k, cfg, st):
    cp = cfg.get("cp", "0")
    ACC = 128
    FR = [20, 68]
    XA, XB, WP, WR = 20, 28, 36, 44
    k.e("s_load_dwordx4 s[44:47], s[0:1], 0")
    k.e("s_load_dwordx2 s[52:53], s[0:1], 56")
    k.e("s_load_dwordx4 s[48:51], s[0:1], 24")
    k.e("s_getpc_b64 s[36:37]")
    k.label("L_pc")
    k.e("s_lshr_b32 s38, s2, 3")
    k.e("s_lshl_b32 s38, s38, 7")
    k.e("v_lshl_add_u32 v16, v0, 12, s38")
    k.e("v_cmp_gt_u32 vcc, L_end-L_pc-4, v16")
    k.e("v_mov_b32 v17, s37")
    k.e("s_and_b64 exec, exec, vcc")
    k.e("s_cbranch_execz L_nocpf")
    k.e("v_add_co_u32 v16, vcc, s36, v16")
    k.e("s_nop 1")
    k.e("v_addc_co_u32 v17, vcc, 0, v17, vcc")
    if not cfg.get("nocpf"): k.e("global_load_dword v119, v[16:17], off")
    k.label("L_nocpf")
    k.e("s_mov_b64 exec, -1")
    k.e("v_lshrrev_b32 v16, 6, v0")
    k.e("v_and_b32 v1, 63, v0")
    k.e("v_readfirstlane_b32 s28, v16")
    k.e("v_lshlrev_b32 v116, 4, v1")
    k.e("s_lshl_b32 s42, s2, 3")
    k.e("s_cmp_lt_u32 s28, 4")
    k.e("s_cbranch_scc1 L_nox")
    k.e("s_add_u32 s43, s42, s28")
    k.e("s_sub_u32 s42, s43, 4")
    k.e("v_lshl_add_u32 v18, s42, 11, v116")
    k.e("v_add_u32 v19, 8192, v18")
    k.e("s_waitcnt lgkmcnt(0)")
    for X_, a_ in ((XA, "v18"), (XB, "v19")):
        k.e(f"global_load_dwordx4 {v(X_,4)}, {a_}, s[44:45]{NT(cfg, 'x')}")
        k.e(f"global_load_dwordx4 {v(X_+4,4)}, {a_}, s[44:45] offset:1024{NT(cfg, 'x')}")
    k.e(f"global_load_dwordx4 {v(WP,4)}, v116, s[52:53]")
    k.e(f"global_load_dwordx4 {v(WP+4,4)}, v116, s[52:53] offset:1024")
    if not cfg.get("nob0"): k.e("s_barrier")
    k.label("L_nox")
    k.e("s_load_dwordx4 s[88:91], s[0:1], 96")
    k.e("s_load_dwordx4 s[92:95], s[0:1], 64")
    k.e("s_load_dwordx2 s[96:97], s[0:1], 16")
    if cfg.get("evn"):
        k.e("s_and_b32 s29, s2, 7")
        k.e("s_lshl_b32 s29, s29, 2")
        k.e(f"s_lshr_b32 s29, {cfg['evn']}, s29")
        k.e("s_and_b32 s29, s29, 7")
    else:
        k.e("s_and_b32 s29, s2, 7")
    k.e("s_lshl_b32 s29, s29, 2")
    k.e("s_bfe_u32 s36, s2, 0x20003")
    k.e("s_add_u32 s29, s29, s36")
    k.e("s_lshr_b32 s30, s2, 5")
    k.e("v_lshrrev_b32 v16, 3, v1")
    k.e("s_lshl_b32 s36, s30, 8")
    k.e("s_lshl_b32 s37, s28, 5")
    k.e("s_add_u32 s36, s36, s37")
    k.e("v_add_u32 v16, s36, v16")
    k.e("v_lshlrev_b32 v16, 10, v16")
    k.e("v_lshrrev_b32 v18, 4, v1")
    k.e("v_and_b32 v19, 7, v1")
    k.e("v_xor_b32 v19, v19, v18")
    k.e("v_lshl_add_u32 v2, v19, 4, v16")
    k.e("v_xor_b32 v19, 4, v19")
    k.e("v_lshl_add_u32 v3, v19, 4, v16")
    k.e(f"v_add_u32 v3, {8192-1024}, v3")
    k.e(f"v_add_u32 v4, {2*(8192-1024)}, v2")
    k.e(f"v_add_u32 v5, {2*(8192-1024)}, v3")
    k.e("s_and_b32 s36, s28, 3")
    k.e("s_lshl_b32 s37, s36, 4")
    k.e("v_add_u32 v16, s37, v18")
    k.e("v_lshlrev_b32 v16, 13, v16")
    k.e("s_lshl_b32 s37, s29, 8")
    k.e("v_add_u32 v16, s37, v16")
    k.e("v_and_b32 v19, 15, v1")
    k.e("v_lshlrev_b32 v18, 1, v18")
    k.e("v_xor_b32 v19, v19, v18")
    k.e("v_lshl_add_u32 v6, v19, 4, v16")
    k.e(f"v_add_u32 v7, {32768-1024}, v6")
    k.e("v_xor_b32 v19, 8, v19")
    k.e("v_lshl_add_u32 v8, v19, 4, v16")
    k.e(f"v_add_u32 v8, {2*(32768-1024)}, v8")
    k.e(f"v_add_u32 v9, {32768-1024}, v8")
    k.e("s_lshl_b32 s33, s28, 12")
    k.e("s_add_u32 s34, s33, 65536")
    k.e("s_mov_b32 s31, 0")
    k.e("s_mov_b32 s32, 0")
    k.e("s_mov_b32 s40, 128")
    k.e(f"s_mov_b32 s41, {64*8192}")
    def dma_list(stage):
        c = [f"buffer_load_dwordx4 v{2+j}, s[4:7], s31 offen offset:{j*1024}{NT(cfg, 'c')} lds" for j in range(4)]
        w = [f"buffer_load_dwordx4 v{6+j}, s[8:11], s32 offen offset:{j*1024}{NT(cfg, 'w')} lds" for j in range(4)]
        return f"s_add_u32 m0, s33, {stage*32768}", c, f"s_add_u32 m0, s34, {stage*32768}", w
    def dma_both(stage):
        mc, c, mw, w = dma_list(stage)
        k.e(mc); k.e(f"s_add_u32 s36, s31, {128*1024}"); k.e(c)
        k.e(mw); k.e("s_nop 0"); k.e(w)
        k.e(f"s_add_u32 m0, s33, {stage*32768+16384}"); k.e("s_nop 0"); k.e([x.replace("s31", "s36") for x in c])
        k.e(f"s_add_u32 m0, s34, {stage*32768+16384}"); k.e("s_nop 0"); k.e([x.replace("s[8:11]", "s[20:23]") for x in w])
        k.e("s_add_u32 s31, s31, s40")
        k.e("s_add_u32 s32, s32, s41")
    def setup_rest():
        k.e(f"s_add_u32 s54, s90, {int(cfg.get('wsoff', 0)) << 20}")
        k.e("s_addc_u32 s55, s91, 0")
        srd(k, 12, 54, 33554432 + DELTA, WS_KV)
        srd(k, 24, 54, (80 << 20) + DELTA)
        k.e(f"s_add_u32 s90, s54, {WS_CNT}")
        k.e("s_addc_u32 s91, s55, 0")
        k.e("v_and_b32 v16, 15, v1")
        k.e("v_lshrrev_b32 v17, 4, v1")
        k.e("s_bfe_u32 s36, s28, 0x10001")
        k.e("s_lshl_b32 s36, s36, 14")
        k.e("v_lshl_add_u32 v18, v16, 7, s36")
        k.e("v_lshrrev_b32 v19, 1, v16")
        k.e("v_xor_b32 v19, v19, v17")
        k.e("v_lshl_add_u32 v10, v19, 4, v18")
        k.e("v_xor_b32 v19, 4, v19")
        k.e("v_lshl_add_u32 v11, v19, 4, v18")
        k.e("v_lshrrev_b32 v16, 2, v16")
        k.e("v_lshl_add_u32 v18, v17, 3, v16")
        k.e("v_lshlrev_b32 v18, 8, v18")
        k.e("s_lshr_b32 s36, s28, 2")
        k.e("s_lshl_b32 s36, s36, 14")
        k.e("s_add_u32 s36, s36, 65536")
        k.e("v_add_u32 v18, s36, v18")
        k.e("v_and_b32 v19, 3, v1")
        k.e("v_lshl_add_u32 v18, v19, 3, v18")
        k.e("v_and_b32 v17, 1, v17")
        k.e("v_lshl_add_u32 v16, v17, 2, v16")
        k.e("s_and_b32 s36, s28, 1")
        k.e("s_lshl_b32 s36, s36, 2")
        for cb in range(4):
            k.e(f"s_add_u32 s37, s36, {cb}")
            k.e("v_xor_b32 v19, s37, v16")
            k.e(f"v_lshl_add_u32 v{12+cb}, v19, 5, v18")
        k.e(zero(ACC, 128))
        k.e("v_mov_b32 v118, 0")
        k.e("v_mov_b32 v117, 0")
        k.e(["s_lshr_b32 s36, s2, 3", "s_lshl_b32 s36, s36, 5", "s_lshl_b32 s37, s28, 2", "s_add_u32 s36, s36, s37", "s_lshl_b32 s36, s36, 13",
             "s_and_b32 s37, s29, 28", "s_lshl_b32 s37, s37, 8", "s_add_u32 s36, s36, s37",
             "s_add_u32 s16, s96, s36", "s_addc_u32 s17, s97, 0", "s_and_b32 s17, s17, 0xffff", f"s_mov_b32 s18, {3*8192+1024}", "s_mov_b32 s19, 0x20000",
             "v_cmp_gt_u32 vcc, 8, v1", "v_lshlrev_b32 v17, 7, v1", "v_mov_b32 v19, 0x100000", "v_cndmask_b32 v17, v19, v17, vcc", "s_mov_b32 s45, 0"])
    k.e("s_waitcnt lgkmcnt(0)")
    srd(k, 4, 46, 2097152)
    srd(k, 8, 48, 4194304)
    srd(k, 20, 50, 4194304)
    k.e("s_cmp_lt_u32 s28, 4")
    k.e("s_cbranch_scc0 L_pro_s")
    if not cfg.get("nob0"): k.e("s_barrier")
    emit(k, A.ool(k, ["s_cmp_eq_u32 s2, 0"], "s_cbranch_scc1",
                  ["s_mul_i32 s36, s28, 12288", f"s_add_u32 s36, s36, {WS_CNT + (int(cfg.get('wsoff', 0)) << 20)}", "v_lshl_add_u32 v16, v1, 4, s36",
                   "v_mov_b32 v108, 0", "v_mov_b32 v109, 0", "v_mov_b32 v110, 0", "v_mov_b32 v111, 0"] +
                  flat([[f"global_store_dwordx4 v16, v[108:111], s[90:91]{SC}", "v_add_u32 v16, 1024, v16"] for _ in range(12)])))
    dma_both(0)
    k.label("L_pro_s")
    st.mark()
    setup_rest()
    st.mark()
    k.e("s_cmp_lt_u32 s28, 4")
    k.e("s_cbranch_scc0 L_pro_b")
    if cp == "2": k.e(warm("s28"))
    dma_both(1)
    if cp == "0": k.e(warm("s28"))
    k.e(f"s_waitcnt vmcnt({16 + (2 if cp in '02' else 0)})")
    k.e("s_branch L_pro_j")
    k.label("L_pro_b")
    k.e("s_mov_b64 s[8:9], s[20:21]")
    k.e("s_mov_b32 s31, 256")
    k.e(f"s_mov_b32 s32, {2*64*8192}")
    k.e("s_and_b32 s60, s28, 3")
    if cp == "1": k.e(warm("s60"))
    if cfg.get("nodry"): k.e(f"s_waitcnt vmcnt({2 if cp == '1' else 0})")
    k.e(f"s_mov_b32 s3, {0 if cfg.get('nodry') else 0xD0}")
    k.label("L_ln")
    for i in range(8):
        k.e(f"v_lshlrev_b32 v{WR+2*i}, 16, v{WP+i}")
        k.e(f"v_and_b32 v{WR+2*i+1}, 0xffff0000, v{WP+i}")
    k.e(zip2(ln_row(XA, 108, WR, 60, 92, 36, "s42", "s60"), ln_row(XB, 120, WR, 76, 100, 56, "s43", "s28")))
    if cp == "3": k.e(warm("s60"))
    k.e("s_waitcnt lgkmcnt(0)" if cfg.get("nodry") else "s_waitcnt vmcnt(0) lgkmcnt(0)")
    k.e("s_cmp_eq_u32 s3, 0")
    k.e("s_mov_b32 s3, 0")
    k.e("s_cbranch_scc0 L_ln")
    k.label("L_pro_j")
    st.mark()
    def reads(s_, stage, fs):
        b = FR[fs]
        c = [f"ds_read_b128 {v(b+4*i,4)}, v{10+s_} offset:{stage*32768+i*2048}" for i in range(8)]
        w = [[f"ds_read_b64_tr_b16 {v(b+32+4*cb+2*t,2)}, v{12+cb} offset:{stage*32768+(32*s_+4*t)*256}" for t in range(2)] for cb in range(4)]
        return [c[0]] + w[0] + w[1] + w[2] + w[3] + c[1:]
    def accreg(i, cb, vtype):
        return ACC + ((cb*8+i) if vtype else (i*4+cb))*4
    def mfmas(fs, vtype):
        b = FR[fs]; L = []
        for i in range(8):
            for cb in range(4):
                a = accreg(i, cb, vtype)
                cf, wf = v(b+4*i, 4), v(b+32+4*cb, 4)
                Aop, Bop = (cf, wf) if vtype else (wf, cf)
                L.append(f"{MF} {v(a,4)}, {Aop}, {Bop}, {v(a,4)}")
        return L
    k.e("s_barrier")
    k.e(reads(0, 0, 0))
    emit(k, A.ool(k, ["s_add_u32 s36, s2, s28", "s_cmp_eq_u32 s36, 0"], "s_cbranch_scc1",
                  ["v_mov_b32 v19, 1", "s_mov_b64 exec, 1", "global_store_dword v118, v19, s[88:89] sc1", "s_mov_b64 exec, -1"]))
    st.mark()
    k.e("s_mov_b32 s35, 0")
    k.e("s_cmp_eq_u32 s28, 0")
    k.e("s_cselect_b32 s43, 9, 0")
    k.e("s_cselect_b32 s44, 2, 1")
    k.e("s_cmp_lt_u32 s28, 4")
    k.e("s_cbranch_scc0 L_kv_vloop")
    for vtype in range(2):
        lp = "L_kv_vloop" if vtype else "L_kv_kloop"
        k.align(6)
        k.label(lp)
        for stage in range(2):
            for s_ in range(2):
                fills = [[] for _ in range(32)]
                pre = []
                if s_ == 0:
                    k.e("s_waitcnt lgkmcnt(0)")
                    rd = reads(1, stage, 1)
                    if stage == 1 and vtype == 0:
                        fills[20] += A.ool(k, ["s_bitcmp1_b32 s43, s35"], "s_cbranch_scc1", switch(k, "s35", [
                            (0, ["global_load_dword v116, v118, s[88:89] sc1"]),
                            (3, ["v_and_b32 v117, 15, v1", f"v_add_u32 v117, {CNT_LN}, v117", "v_lshlrev_b32 v117, 7, v117",
                                 "global_load_dword v116, v117, s[90:91] sc1"])]))
                else:
                    nt = 0 if cfg.get("notouch") else 1
                    if vtype == 0 and stage == 0:
                        emit(k, A.ool(k, ["s_cmp_eq_u32 s35, 3"], "s_cbranch_scc1", p1_retarget(cfg)))
                    la, lb = k.newlabel("w0"), k.newlabel("w0b")
                    if stage == 1 and vtype == 0:
                        A.OOL.append([la + ":", "s_waitcnt vmcnt(0)"] + switch(k, "s35", [(0, check(k, "s[88:89]", "v118", "v116", 1)), (3, ln_check(k))]) + [f"s_branch {lb}"])
                        emit(k, ["s_bitcmp1_b32 s43, s35", f"s_cbranch_scc1 {la}", f"s_waitcnt vmcnt({nt})", lb + ":", "s_waitcnt lgkmcnt(0)"])
                    elif stage == 1:
                        k.e(f"s_waitcnt vmcnt({nt}) lgkmcnt(0)")
                    else:
                        A.OOL.append([la + ":"] + switch(k, "s35", [(0, (lines(ln_part2, 120) if vtype == 0 else []) + [f"s_waitcnt vmcnt({4 if cp == '0' else 2})"]), (1, [f"s_waitcnt vmcnt({nt+1})"])]) + [f"s_branch {lb}"])
                        emit(k, ["s_cmp_lt_u32 s35, s44", f"s_cbranch_scc1 {la}", f"s_waitcnt vmcnt({nt})", lb + ":", "s_waitcnt lgkmcnt(0)"])
                    if nt:
                        tp = int(cfg.get("tpos", 31))
                        fills[tp] += ["buffer_load_dword v0, v17, s[16:19], s45 offen", "s_add_u32 s45, s45, 8192"]
                    if stage == 0:
                        fills[26] += A.ool(k, ["s_cmp_eq_u32 s35, 3"], "s_cbranch_scc1", [f"s_add_u32 m0, s33, {LDS_X}", f"s_mov_b32 s36, {2 << 20}"] +
                                          [f"buffer_load_dwordx4 v{2+j}, s[4:7], s36 offen offset:{j*1024} lds" for j in range(4)])
                    if stage == 1: k.e("s_cmp_eq_u32 s35, 3")
                    k.e("s_barrier")
                    if stage == 1: k.e(f"s_cbranch_scc1 L_p1_fin{vtype}")
                    rd = reads(0, stage ^ 1, 0)
                    if stage == 1 and vtype == 0:
                        fills[30] += A.ool(k, ["s_add_u32 s36, s35, s28", "s_cmp_eq_u32 s36, 0"], "s_cbranch_scc1",
                                          ["s_lshr_b32 s36, s2, 4", f"s_add_u32 s36, s36, {CNT_LN}", "s_lshl_b32 s36, s36, 7"] + signal("s[90:91]", "s36", "v16", "v19"))
                for g in range(16): fills[g].append(rd[g])
                if s_ == 1:
                    mc, c, mw, w = dma_list(stage)
                    tail = ["s_add_u32 s31, s31, s40", "s_add_u32 s32, s32, s41"]
                    if vtype == 1:
                        pre = [mc, "s_nop 0"] + c + [mw, "s_nop 0"] + w + tail
                        if cfg.get("p1w"): pre = [mw, "s_nop 0"] + w + [mc, "s_nop 0"] + c + tail
                        if stage == 1:
                            pre += A.ool(k, ["s_cmp_eq_u32 s35, 2"], "s_cbranch_scc1", p1_retarget(cfg))
                        else:
                            l7 = k.newlabel("l7")
                            pre += A.ool(k, ["s_cmp_eq_u32 s35, 0"], "s_cbranch_scc1", lines(ln_part2, 120) +
                                         ["s_cmp_eq_u32 s28, 7", f"s_cbranch_scc0 {l7}"] + ln_part3(120) + [l7 + ":"])
                    else:
                        fills[0].append(mc)
                        ds_ = int(cfg.get("p1s", 3))
                        if cfg.get("p1w"): mc, mw, c, w = mw, mc, w, c; fills[0][-1] = mc
                        for j in range(4): fills[1+ds_*j].append(c[j])
                        fills[4*ds_].append(mw)
                        for j in range(4): fills[1+ds_*(4+j)].append(w[j])
                        fills[31] += tail
                ladder(fills, 0, 32, "1" in cfg.get("lad", ""), (3, 2) if s_ == 1 else (1, 0))
                emit(k, pre)
                emit(k, weave(mfmas(s_, vtype), fills, None, int(cfg.get('g1_', 1))))
                if s_ == 1: k.e(cfg["sth1"].hist(8, first=(vtype == 0 and stage == 0)))
        k.e("s_add_u32 s35, s35, 1")
        k.e(f"s_branch {lp}")
        k.label(f"L_p1_fin{vtype}")
        mc, c, mw, w = dma_list(1)
        head = lines(p2_setup) + lines(srd, 8, 54, 4194304 + DELTA)
        lds = flat([xld2(0, s_) for s_ in range(4)])
        W1[:] = [[mc, "s_add_u32 s32, s32, 4096"]] + [[x] for x in c]
        rest = lines(p2_setup2)
        fills = [[] for _ in range(32)]
        if vtype == 1: emit(k, head)
        else: fills[0] += head
        fs = int(cfg.get("fs", 4))
        for i, x in enumerate(lds): fills[1+fs*i] += [x]
        for i, x in enumerate(rest): fills[min(2+i, 31)] += [x]
        emit(k, weave(mfmas(1, vtype), fills))
        k.e(cfg["sth1"].hist(8, first=False))
        if vtype == 0: k.e("s_branch L_p1_done")
    k.label("L_p1_done")
    if cfg.get("diag") == "mfma":
        k.e("s_mov_b32 s35, 64")
        k.label("L_diag")
        for i in range(16): k.e(f"{MF} v[{56+4*(i&1)}:{59+4*(i&1)}], {v(68+4*(i%8),4)}, {v(100+4*(i//4),4)}, v[{56+4*(i&1)}:{59+4*(i&1)}]")
        k.e(["s_sub_u32 s35, s35, 1", "s_cmp_lg_u32 s35, 0", "s_cbranch_scc1 L_diag", "s_nop 7"])
    if cfg.get("diag") == "idle":
        k.e(f"s_mov_b32 s35, {cfg.get('idn', 256)}")
        k.label("L_diag")
        k.e(["s_nop 15"]*2 + ["s_sub_u32 s35, s35, 1", "s_cmp_lg_u32 s35, 0", "s_cbranch_scc1 L_diag"])

def kv_pack(k):
    for q in range(16):
        a = 128 + 8*q
        for e in range(4):
            k.e(f"v_cvt_pk_bf16_f32 v{KP+4*q+e}, v{a+2*e}, v{a+2*e+1}")
    k.e("s_lshl_b32 s38, s29, 20")
    k.e("s_lshl_b32 s37, s30, 17")
    k.e("s_add_u32 s38, s38, s37")
    k.e("s_bfe_u32 s37, s28, 0x10001")
    k.e("s_lshl_b32 s37, s37, 16")
    k.e("s_add_u32 s38, s38, s37")
    k.e("s_lshr_b32 s36, s28, 2")
    k.e("s_lshl_b32 s37, s36, 15")
    k.e("s_add_u32 s38, s38, s37")
    k.e("s_and_b32 s37, s28, 1")
    k.e("s_add_u32 s36, s36, 11")
    k.e("s_lshl_b32 s37, s37, s36")
    k.e("s_add_u32 s38, s38, s37")
    k.e("s_cmp_lt_u32 s28, 4")
    k.e("s_cselect_b32 s36, 4, 32")
    k.e("s_cselect_b32 s37, 16, 64")
    k.e("s_cselect_b32 s39, 32, 4")
    k.e("s_lshl_b32 s36, s36, 8")
    k.e("s_lshl_b32 s37, s37, 8")
    k.e("s_lshl_b32 s39, s39, 8")
    k.e("s_mov_b64 s[16:17], s[12:13]")
    k.e("s_mov_b64 s[18:19], s[14:15]")
    k.e("s_mov_b32 s46, s38")
    for g in range(1, 4): k.e(f"s_add_u32 s{46+g}, s{45+g}, s39")
    k.e("v_lshlrev_b32 v58, 4, v1")
    k.e(hole("k", "v58"))
    k.e("v_add_u32 v59, s36, v58")
    k.e("v_add_u32 v60, s37, v58")
    k.e("v_add_u32 v61, s36, v60")
    k.e("v_add_u32 v8, s33, v58")

def p2_setup(k):
    k.e("s_and_b32 s36, s28, 3")
    k.e("s_sub_u32 s37, 15, s30")
    k.e("s_cmp_lt_u32 s28, 4")
    k.e("s_cselect_b32 s37, s37, s30")
    k.e("s_lshl_b32 s37, s37, 2")
    k.e("s_add_u32 s37, s37, s36")
    k.e("s_lshl_b32 s37, s37, 16")
    k.e("v_lshl_add_u32 v6, v1, 4, s37")
    k.e(hole("x", "v6"))
    k.e("v_add_u32 v7, 32768, v6")
    k.e("s_mov_b32 s32, 0")

def p2_setup2(k):
    k.e("v_lshrrev_b32 v18, 4, v1")
    k.e("v_bfe_u32 v20, v1, 2, 2")
    k.e("v_lshl_add_u32 v19, v18, 3, v20")
    k.e("v_lshlrev_b32 v19, 8, v19")
    k.e("v_and_b32 v21, 3, v1")
    k.e("v_lshl_add_u32 v19, v21, 3, v19")
    k.e("v_and_b32 v21, 1, v18")
    k.e("v_lshl_add_u32 v20, v21, 2, v20")
    for db in range(8):
        k.e(f"v_xor_b32 v21, {db}, v20")
        k.e(f"v_lshl_add_u32 v{10+db}, v21, 5, v19")
    k.e("s_lshl_b32 s45, s29, 20")

SLOT = [0, 32768, LDS_X, 65536, 98304, 0, LDS_X, 32768]
WIN  = [0, 0, 98304, 65536, 65536, 0, 98304, 0]

def p2(k, cfg, st):
    D = 6
    NG = 512
    beta = {t: 64*t + 2*(32 - D) for t in (0, 1, 2, 3, 4, 5, 6)}
    if cfg.get("nob1"): del beta[1]
    def wrd(f):
        t, s_, db = f // 32, f // 8 % 4, f % 8
        return [DS(f"ds_read_b64_tr_b16 {v(WF+4*db+2*h,2)}, v{10+db} offset:{SLOT[t]-WIN[t]+(32*s_+4*h)*256}", ("w", db)) for h in range(2)]
    def store(q):
        return VM(f"buffer_store_dwordx4 {v(KP+4*q,4)}, v{58+(q&3)}, s[16:19], s{46+q//4} offen{SC}", ("st", q))
    M, fills, pre = [], [[] for _ in range(NG)], {}
    for p in range(256):
        t, s_, db = p // 32, p // 8 % 4, p % 8
        for rb in range(2):
            o = A.Oreg(rb, db)
            M.append(f"{MF} {v(o,4)}, {v(WF+4*db,4)}, {v(XF[t&1]+(s_*2+rb)*4,4)}, {v(o,4) if p >= 8 else '0'}")
        if p % 2 == 0: pre[2*p] = [Need("ds", [("w", db), ("w", db+1)])]
        if db == 0: pre[2*p] += [Need("vm", [("x", t & 1, s_)])]
        f = p + D
        if f < 256:
            r = wrd(f)
            fills[2*p] += [r[0]]; fills[2*p+1] += [r[1]]
            t2 = f // 32
            if f % 32 >= 24 and t2 < 7 and WIN[t2+1] != WIN[t2]:
                fills[2*p+1] += [f"v_add_u32 v{10+f%8}, {(WIN[t2+1]-WIN[t2]) & 0xffffffff}, v{10+f%8}"]
    XP = int(cfg.get("xpre", 1))
    L = int(cfg.get("xl", 56))
    cs = float(cfg.get("cst", 2.2))
    ops = []
    for t in range(1, 8):
        for s_ in range(4):
            if t == 1 and s_ < XP: continue
            for x in xld2(t & 1, s_): ops.append([max(0, 64*(t-2) + 16*(s_+1)), 64*t + 16*s_ - L, 1.0, "x", t, x])
    free = {4: 0, 5: beta.get(1, beta[2]), 6: beta[3], 7: beta[2]}
    for t in range(4, 8):
        for j in range(4):
            ops.append([free[t], beta[t-1] - L - 8*(3-j), 0.85, "w", t, VM(f"buffer_load_dwordx4 v{2+j}, s[4:7], s31 offen offset:{j*1024} lds", ("W", t))])
    for i, t in enumerate((8, 9)):
        for j in range(4):
            ops.append([beta[6], beta[6] + 8*(4*i+j), 1.0, "w", t, VM(f"buffer_load_dwordx4 v8, s[12:15], s31 offen offset:{j*1024}{SC} lds", ("W", t))])
    send = int(cfg.get("send", 470))
    if not cfg.get("nokvst"):
        for q in range(16): ops.append([0, (q + 1) * send // 16, cs, "s", q, store(q)])
    rate = (NG - 12) / sum(o[2] for o in ops)
    g, cur = 1.0, {"x": 1, "w": None}
    pos = {}
    while ops:
        av = [o for o in ops if o[0] <= g]
        if not av:
            g = min(o[0] for o in ops); continue
        o = min(av, key=lambda o: o[1]); ops.remove(o)
        gi = min(int(g), NG - 1)
        if o[3] == "x" and cur["x"] != o[4]:
            fills[gi] += [f"s_mov_b32 s32, {o[4]*4096}"]; cur["x"] = o[4]
        if o[3] == "w" and cur["w"] != o[4]:
            t = o[4]; cur["w"] = t
            fills[gi] += [f"s_add_u32 m0, s33, {(SLOT + [0, 65536])[t]}", f"s_mov_b32 s31, {t << 20}" if t < 8 else f"s_add_u32 s31, s45, {(t-8)*32768}"]
        if o[3] == "s" and o[4] == 8: fills[gi] += ["s_cmp_eq_u32 s30, 0", "s_cselect_b32 s18, 0, s18"]
        fills[gi] += [o[5]]
        pos[(o[3], o[4])] = gi
        if cfg.get("p2v"): print(o[3], o[4], "at", gi, "earliest", o[0], "deadline", o[1])
        g += o[2] * rate
    W0 = (["s_cmp_eq_u32 s28, 0"], "s_cbranch_scc1")
    off0 = [f"s_add_u32 s36, s29, {CNT_KV0}", "s_lshl_b32 s36, s36, 7"]
    nkv = Need("vm", [("st", q) for q in range(8)])
    sg = off0 + signal("s[90:91]", "s36", "v62", "v63")
    pl = off0 + [f"v_mov_b32 {vZ}, s36", VM(f"global_load_dword {vPOLL}, {vZ}, s[90:91] sc1", "poll")]
    ck = [Need("vm", ["poll"])] + check(k, "s[90:91]", vZ, vPOLL, 1)
    for t, gb in beta.items():
        b = [Need("vm", [("W", t+1)])]
        if t == 4:
            assert cfg.get("nokvst") or pos[("s", 7)] < gb - 20
            b += [Alt(A.ool(k, ["s_cmp_eq_u32 s30, 0"], "s_cbranch_scc1", [nkv]), lambda c: [nkv] if c["fast"] else [])]
        if t == 6: b += [Alt(A.ool(k, *W0, ck), lambda c: ck if c["w0"] else []), "s_waitcnt lgkmcnt(0)"]
        pre[gb] = b + ["s_barrier"] + pre[gb]
    fills[beta[4]+1] += [Alt(A.ool(k, ["s_lshl_b32 s36, s30, 3", "s_add_u32 s36, s28, s36", "s_cmp_eq_u32 s36, 4"], "s_cbranch_scc1", sg),
                             lambda c: sg if c["sg"] else [])]
    fills[beta[6]-44] += [Alt(A.ool(k, *W0, pl), lambda c: pl if c["w0"] else [])]
    for t in range(8): fills[64*t+63] += cfg["sth2"].hist(8, first=(t == 0))
    body = weave(M, fills, pre)
    early = [store(q) for q in range(8, 16)]
    earlyA = Alt(A.ool(k, ["s_cmp_eq_u32 s30, 0"], "s_cbranch_scc1", early), lambda c: early if c["fast"] else [])
    prox = [xld2(1, s_) for s_ in range(XP)]
    pro2 = [wrd(f) for f in range(D)]
    n0 = Need("vm", [("x", 0, int(cfg.get("x0w", 1)))])
    nq = Need("vm", [("W", 8)] + [("st", q) for q in range(16)])
    scen = []
    for w0, fast, sg_ in ((0, 0, 0), (1, 0, 0), (0, 1, 0), (1, 1, 0), (0, 1, 1)):
        scen.append(flat([xld2(0, s_) for s_ in range(4)]) + [VM("", ("W", 1))]*4 + flat([pro2, prox, n0, earlyA, body, nq], dict(w0=w0, fast=fast, sg=sg_)))
    resolve(scen)
    cfg["qwait"] = nq.n
    st.mark()
    emit(k, pro2)
    work = lines(kv_pack)
    pre_ops = W1 + [[x] for x in flat(prox)]
    step = 64 // len(pre_ops)
    for i, x in enumerate(work):
        if i % step == 0 and i // step < len(pre_ops): emit(k, pre_ops[i // step])
        k.e(x)
    emit(k, [n0, earlyA])
    st.mark()
    emit(k, body)
    st.mark()
```

```python
from common import *
import attn as A
import ffn as F
import oproj as O
from fused_a import *

X32, G = 96, 112
XI, YA = 40, 24
WR4, XF4 = 64, [128, 160]
PRE, FW, HH, DD = 96, 112, 36, 96
LDS_P4 = 65536

CFG = {}
def PX(): return 1 if CFG.get('skew') else 4
def after_q(k, grp):
    srd(k, 16, 54, 16777216 + DELTA, WS_CTX)
    if grp == 0:
        srd(k, 4, 92, 7340032)
        srd(k, 8, 94, 7340032)
        k.e("s_and_b32 s60, s29, 3")
        k.e(f"s_add_u32 s60, s60, {CFG.get('e0', 4)}")
        k.e("s_sub_u32 s3, s2, 32")
        k.e("s_cmp_eq_u32 s28, 0")
        k.e("s_cselect_b32 s36, 0xad, 0x2d")
        k.e("s_cselect_b32 s42, 14, 12")
        k.e("s_cmp_lt_u32 s3, 224")
        k.e("s_cselect_b32 s36, s36, 0")
        k.e("s_lshl_b32 s36, s36, s60")
        k.e("s_or_b32 s42, s42, s36")
    else:
        emit(k, A.ool(k, ["s_cmp_eq_u32 s28, 4"], "s_cbranch_scc1", ["s_lshl_b32 s36, s29, 7", "s_cmp_eq_u32 s30, 0", "s_cselect_b32 s37, 4, 0", "s_add_u32 s36, s36, s37"] + signal("s[90:91]", "s36", "v20", "v21")))
        nl = int(CFG.get("btl", 32))
        j0 = int(CFG.get("btj", 4)); ev = int(CFG.get("bte", 0))
        nw = (8 - j0) * (32 >> ev) * 2
        ch = -(-8388608 // nw // 128) * 128
        k.e(f"s_sub_u32 s36, s2, {32*j0}")
        if ev:
            k.e("s_and_b32 s37, s2, 1")
            k.e("s_lshl_b32 s37, s37, 20")
            k.e("s_or_b32 s36, s36, s37")
        else: k.e("s_lshl_b32 s36, s36, 1")
        k.e("s_and_b32 s37, s28, 1")
        k.e("s_add_u32 s36, s36, s37")
        k.e("s_min_u32 s36, s36, 1024")
        k.e(f"s_mul_i32 s36, s36, {ch}")
        k.e("s_cmp_lt_u32 s28, 6")
        k.e("s_cselect_b64 s[4:5], s[32:33], s[34:35]")
        k.e("s_cselect_b32 s37, 32, 28")
        k.e("s_lshl_b32 s37, s37, 18")
        k.e("s_min_u32 s36, s36, s37")
        k.e("s_sub_u32 s6, s37, s36")
        k.e(f"s_min_u32 s6, s6, {0 if CFG.get('nobt') else ch}")
        k.e("s_add_u32 s4, s4, s36")
        k.e("s_addc_u32 s5, s5, 0")
        k.e("s_and_b32 s5, s5, 0xffff")
        k.e("s_mov_b32 s7, 0x20000")
        k.e(f"v_cmp_gt_u32 vcc, {nl}, v1")
        k.e("v_lshlrev_b32 v13, 7, v1")
        k.e("v_mov_b32 v12, 0x100000")
        k.e("v_cndmask_b32 v13, v12, v13, vcc")
        k.e("s_mov_b32 s48, 0")
        if "3" in CFG.get("cpf", ""):
            k.e("s_cmp_eq_u32 s28, 5")
            k.e("s_cselect_b32 s36, 0x1000, 0")
            k.e("s_or_b32 s42, s42, s36")

def pro_wait(k, grp):
    if grp == 0: return ["s_waitcnt vmcnt(0)"]
    l = k.newlabel("pw")
    return ["s_waitcnt vmcnt(1)", "s_cmp_eq_u32 s28, 4", f"s_cbranch_scc1 {l}", "s_waitcnt vmcnt(0)", l + ":"]

def pro_hook(k, grp):
    if grp == 0:
        return A.ool(k, ["s_cmp_eq_u32 s28, 0"], "s_cbranch_scc1",
                     ["s_lshl_b32 s36, s29, 7", "v_mov_b32 v13, s36", "global_load_dword v14, v13, s[90:91] sc1"])
    return []

def b_hook(k):
    l = k.newlabel("bh")
    return ["s_cmp_eq_u32 s40, 12", f"s_cbranch_scc0 {l}"] + code_touch(k, 26, "v0") + [l + ":"]

def f1dma(m):
    L = ["s_and_b32 s20, s3, 3", "s_lshl_b32 s20, s20, 8", "s_lshl_b32 s21, s28, 5", "s_add_u32 s20, s20, s21",
         "s_lshr_b32 s21, s3, 2", "s_lshl_b32 s21, s21, 7"] + lines(F.wdma_addr, 24, "s20", 7168, "s21")
    L += ["s_lshl_b32 s36, s28, 13", f"s_add_u32 m0, s36, {LDS_X}", f"s_mov_b32 s37, {32*7168}"]
    L += [f"buffer_load_dwordx4 v{24+j}, s[{4+4*m}:{7+4*m}], 0 offen offset:{j*1024}{NT(CFG, 'f')} lds" for j in range(4)]
    L += [f"s_add_u32 m0, s36, {LDS_X+4096}", "s_nop 0"]
    L += [f"buffer_load_dwordx4 v{24+j}, s[{4+4*m}:{7+4*m}], s37 offen offset:{j*1024}{NT(CFG, 'f')} lds" for j in range(4)]
    return L

def bar_hook(k, grp):
    if grp == 1: return []
    QS = A.QS_
    keys = [f"s_mov_b32 s36, {F.WS_KEY}"] + [f"buffer_load_dwordx4 {v(QS+4*i,4)}, {A.vL16}, s[24:27], s36 offen offset:{i*1024}{SC}" for i in range(2)]
    t2 = K("t"); F.top2(t2, QS, 24, 8, 20)
    top = [x.strip() for x in t2.lines]
    top += ["v_and_b32 v24, 1, v1", "v_mov_b32 v25, s56", "v_mov_b32 v26, s57", "v_cmp_eq_u32 vcc, 1, v24", "s_nop 1",
            "v_cndmask_b32 v25, v25, v26, vcc", "v_lshrrev_b32 v26, 4, v25", "v_lshlrev_b32 v26, 15, v26", "v_and_b32 v25, 15, v25",
            "v_lshl_add_u32 v26, v25, 4, v26", "v_lshrrev_b32 v27, 4, v1", "v_lshl_add_u32 v26, v27, 8, v26",
            ] + (["v_bfe_u32 v25, v26, 7, 3", "v_cmp_eq_u32 vcc, 3, v25", f"v_add_u32 v25, {DELTA}, v26", "s_nop 0", "v_cndmask_b32 v26, v26, v25, vcc"] if "x" in HOLE[0] else []) + [
            "s_and_b32 s36, s3, 3", "s_lshl_b32 s36, s36, 13", "s_add_u32 s37, s36, 4096",
            "s_mov_b32 exec_lo, 0x00030003", "s_mov_b32 exec_hi, 0x00030003"]
    top += [f"buffer_load_dwordx4 {v(QS+4*i,4)}, v26, s[24:27], s{36+i//4} offen offset:{(i%4)*1024}{SC}" for i in range(8)]
    top += ["s_mov_b64 exec, -1"]
    dma = f1dma
    def mm(m):
        FRG = [14, 20, 24]
        L = lines(F.wrd_addr, "v5", "v9", "v8")
        L += ["v_xor_b32 v9, s28, v9", "v_lshl_add_u32 v5, v9, 5, v5", f"v_add_u32 v5, {LDS_X}, v5"]
        rd = lambda ss: [f"ds_read_b64_tr_b16 {v(FRG[s_%3]+2*t,2)}, v5 offset:{(32*s_+4*t)*128}" for s_ in ss for t in range(2)]
        L += rd(range(3))
        L += ["s_and_b32 s36, s3, 3", "s_lshl_b32 s36, s36, 6", "s_lshr_b32 s37, s3, 2", "s_lshl_b32 s37, s37, 12", "s_add_u32 s36, s36, s37",
              "s_lshl_b32 s37, s28, 10", "s_add_u32 s36, s36, s37", f"s_add_u32 s36, s36, {WS_PRE + 32*m}",
              "v_and_b32 v9, 1, v1", "v_lshlrev_b32 v9, 4, v9", "v_lshl_add_u32 v9, v8, 8, v9"]
        for s_ in range(8):
            L += [f"s_waitcnt lgkmcnt({2*min(2, 7-s_)})", f"{MF} v[10:13], {v(FRG[s_%3],4)}, {v(QS+4*s_,4)}, {'v[10:13]' if s_ else '0'}"]
            if s_ + 3 < 8: L += rd([s_+3])
        L += ["s_nop 5", "s_mov_b32 exec_lo, 0x00030003", "s_mov_b32 exec_hi, 0x00030003",
              f"buffer_store_dwordx4 v[10:13], v9, s[24:27], s36 offen{SC}", "s_mov_b64 exec, -1", "s_nop 1"]
        return L
    sig = ["s_mul_i32 s36, s3, 2341", "s_lshr_b32 s36, s36, 16", f"s_add_u32 s36, s36, {CNT_F1}", "s_lshl_b32 s36, s36, 7"] + signal("s[90:91]", "s36", "v20", "v21")
    dbg = CFG.get("f1", "")
    if "d" in dbg: dma = lambda m: []
    if "m" in dbg: mm = lambda m: []
    if "t" in dbg: keys = []; top = ["s_mov_b32 s56, 0", "s_mov_b32 s57, 0"]
    ffn = ["s_sub_u32 s38, s40, s60"] + switch(k, "s38", [(0, dma(0)), (2, mm(0)), (3, dma(1)), (5, mm(1)), (7, sig)])
    return A.ool(k, ["s_bitcmp1_b32 s42, s40"], "s_cbranch_scc1",
                 switch(k, "s40", [(1, check(k, "s[90:91]", "v13", "v14", 7)), (2, keys), (3, top), (4, ffn)]))

def before_tail(k, grp):
    if CFG.get("wt"):
        srd(k, 8, 32, 8388608)
        k.e(wt_addr())
        T = 256*2048
        if CFG.get("skew"):
            k.e(["s_bitcmp0_b32 s2, 0" if CFG["skew"] == "1" else "s_bitcmp1_b32 s2, 0", f"s_cselect_b32 s36, {T}, 0", "s_cselect_b32 s37, 8, 2", "s_lshl_b32 s37, s37, 19"])
        else:
            k.e(["s_lshr_b32 s36, s29, 4", "s_lshl_b32 s36, s36, 22", f"s_add_u32 s37, s36, {T}"])
        k.e(["buffer_load_dword v0, v17, s[8:11], s36 offen", "buffer_load_dword v0, v17, s[8:11], s37 offen", f"v_add_u32 v17, {T}, v17",
             "buffer_load_dword v0, v17, s[8:11], s37 offen"])
        if not CFG.get("skew"): k.e("v_add_u32 v17, s36, v17")
    k.e("s_lshr_b32 s36, s2, 5")
    k.e(f"s_add_u32 s36, s36, {CNT_F1}")
    k.e("s_lshl_b32 s36, s36, 7")
    k.e("v_mov_b32 v12, s36")
    k.e("global_load_dword v11, v12, s[90:91] sc1")

def wt_addr():
    nl = int(CFG.get("wt", 2))
    L = ["s_lshr_b32 s36, s2, 3", "s_lshl_b32 s36, s36, 3", "s_add_u32 s36, s36, s28", "s_lshl_b32 s36, s36, 11"]
    if nl == 2: L += ["s_sub_u32 s37, 384, s8", "s_and_b32 s37, s37, 0x380", "s_add_u32 s36, s36, s37", "v_lshl_add_u32 v17, v1, 10, s36"]
    else: L += ["s_sub_u32 s37, 256, s8", "s_and_b32 s37, s37, 0x300", "s_add_u32 s36, s36, s37", "v_lshrrev_b32 v17, 1, v1", "v_lshl_add_u32 v17, v17, 10, s36",
                "v_and_b32 v16, 1, v1", "v_lshl_add_u32 v17, v16, 7, v17"]
    return L + [f"v_cmp_gt_u32 vcc, {nl}, v1", "v_mov_b32 v16, 0x40000000", "s_nop 0", "v_cndmask_b32 v17, v16, v17, vcc"]

def tail_extra(k, grp):
    L = lines(srd, 4, 34, 7340032) + lines(srd, 8, 32, 8388608)
    L += ["s_lshr_b32 s38, s2, 4", "s_mul_i32 s38, s38, 224", "s_and_b32 s39, s2, 15", "s_lshl_b32 s39, s39, 7"]
    L += lines(F.wdma_addr, 24, "s38", 2048, "s39")
    L += ["s_lshl_b32 s36, s28, 12", f"s_add_u32 s36, s36, {LDS_X}"]
    G = [[x] for x in L] + [["s_cmp_lt_u32 s28, 7", "s_cselect_b32 m0, s36, 0x30000", "s_cselect_b32 s6, 7340032, 0"]]
    return G + [[f"buffer_load_dwordx4 v{24+j}, s[4:7], 0 offen offset:{j*1024} lds"] for j in range(4)]

def before_merge(k):
    k.e("s_waitcnt vmcnt(4)")
    emit(k, check(k, "s[90:91]", "v12", "v11", 28))
    k.e(["s_lshr_b32 s36, s2, 4", "s_mul_i32 s36, s36, 7", "s_min_u32 s37, s28, 6", "s_add_u32 s36, s36, s37",
         "s_lshl_b32 s36, s36, 11", f"s_add_u32 s36, s36, {WS_PRE}", "v_and_b32 v11, 15, v1", "v_lshlrev_b32 v11, 4, v11",
         "v_lshrrev_b32 v12, 4, v1", "v_lshl_add_u32 v11, v12, 9, v11"])
    k.e([f"buffer_load_dwordx4 {v(PRE+4*h,4)}, v11, s[24:27], s36 offen offset:{256*h}{SC}" for h in range(2)])

def gcalc(k, withy, cbs=range(4)):
    for cb in cbs:
        for h in range(2):
            a, b = X32+4*cb+2*h, X32+4*cb+2*h+1
            ga, gb = G+4*cb+2*h, G+4*cb+2*h+1
            k.e(f"v_lshlrev_b32 v{a}, 16, v{XI+2*cb+h}")
            k.e(f"v_and_b32 v{b}, 0xffff0000, v{XI+2*cb+h}")
            k.e(f"v_sub_f32 v{ga}, v{a}, v{XI+8}")
            k.e(f"v_sub_f32 v{gb}, v{b}, v{XI+8}")
            def rnd2():
                k.e(f"v_cvt_pk_bf16_f32 v10, v{ga}, v{gb}")
                k.e(f"v_lshlrev_b32 v{ga}, 16, v10")
                k.e(f"v_and_b32 v{gb}, 0xffff0000, v10")
            rnd2()
            k.e(f"v_mul_f32 v{ga}, v{ga}, v{XI+9}")
            k.e(f"v_mul_f32 v{gb}, v{gb}, v{XI+9}")
            rnd2()
            if withy:
                k.e(f"v_add_f32 v{ga}, v{ga}, v{YA+4*cb+2*h}")
                k.e(f"v_add_f32 v{gb}, v{gb}, v{YA+4*cb+2*h+1}")
                rnd2()
            k.e(f"v_mul_f32 v11, 0xbfb8aa3b, v{ga}")
            k.e(f"v_mul_f32 v12, 0xbfb8aa3b, v{gb}")
            k.e("v_exp_f32 v11, v11")
            k.e("v_exp_f32 v12, v12")
            k.e("s_nop 0")
            k.e("v_add_f32 v11, 1.0, v11")
            k.e("v_add_f32 v12, 1.0, v12")
            k.e("v_rcp_f32 v11, v11")
            k.e("v_rcp_f32 v12, v12")
            k.e("s_nop 0")
            k.e(f"v_mul_f32 v{ga}, v{ga}, v11")
            k.e(f"v_mul_f32 v{gb}, v{gb}, v12")
            rnd2()

def ffn2_math(k):
    F.wrd_addr(k, "v26", "v27", "v28")
    k.e("s_lshl_b32 s36, s28, 12")
    k.e(f"s_add_u32 s36, s36, {LDS_X}")
    k.e("v_add_u32 v26, s36, v26")
    for cb in range(4):
        k.e(f"v_xor_b32 v28, {cb}, v27")
        k.e("v_lshl_add_u32 v28, v28, 5, v26")
        for t in range(2):
            k.e(f"ds_read_b64_tr_b16 {v(FW+4*cb+2*t,2)}, v28 offset:{4*t*128}")
    for m in ("row_ror:4", "row_ror:8"):
        for e in range(8): k.e(f"v_add_f32_dpp v{PRE+e}, v{PRE+e}, v{PRE+e} {m} row_mask:0xf bank_mask:0xf")
    for e in range(0, 8, 2):
        k.e(f"v_cvt_pk_bf16_f32 v29, v{PRE+e}, v{PRE+e+1}")
        k.e(f"v_lshlrev_b32 v{PRE+e}, 16, v29")
        k.e(f"v_and_b32 v{PRE+e+1}, 0xffff0000, v29")
    for e in range(8): k.e(f"v_mul_f32 v{PRE+8+e}, 0xbfb8aa3b, v{PRE+e}")
    for e in range(8): k.e(f"v_exp_f32 v{PRE+8+e}, v{PRE+8+e}")
    for e in range(8): k.e(f"v_add_f32 v{PRE+8+e}, 1.0, v{PRE+8+e}")
    for e in range(8): k.e(f"v_rcp_f32 v{PRE+8+e}, v{PRE+8+e}")
    for e in range(8): k.e(f"v_mul_f32 v{PRE+8+e}, v{PRE+e}, v{PRE+8+e}")
    for e in range(0, 8, 2):
        k.e(f"v_cvt_pk_bf16_f32 v29, v{PRE+8+e}, v{PRE+8+e+1}")
        k.e(f"v_lshlrev_b32 v{PRE+8+e}, 16, v29")
        k.e(f"v_and_b32 v{PRE+8+e+1}, 0xffff0000, v29")
    for e in range(8): k.e(f"v_mul_f32_dpp v{PRE+e}, v{PRE+e}, v{PRE+8+e} quad_perm:[2,3,0,1] row_mask:0xf bank_mask:0xf")
    for q in range(4): k.e(f"v_cvt_pk_bf16_f32 v{HH+q}, v{PRE+2*q}, v{PRE+2*q+1}")
    k.e("s_waitcnt lgkmcnt(0)")
    k.e("v_lshl_add_u32 v28, v1, 4, s36")
    for cb in range(4): k.e(f"{MF} {v(DD+4*cb,4)}, {v(FW+4*cb,4)}, {v(HH,4)}, 0")
    k.e("s_nop 7")
    for cb in range(4): k.e(f"ds_write_b128 v28, {v(DD+4*cb,4)} offset:{cb*1024}")

def ffn2_reduce():
    L = ["s_lshl_b32 s36, s28, 10", f"s_add_u32 s36, s36, {LDS_X}", "v_lshl_add_u32 v28, v1, 4, s36"]
    L += [f"ds_read_b128 {v(PRE+4*w,4)}, v28 offset:{w*4096}" for w in range(7)]
    L += ["s_lshr_b32 s36, s2, 4", "s_lshl_b32 s36, s36, 13", "s_and_b32 s37, s2, 15", "s_lshl_b32 s37, s37, 8", "s_add_u32 s36, s36, s37",
          "s_lshl_b32 s37, s28, 6", "s_add_u32 s36, s36, s37", f"s_add_u32 s36, s36, {WS_YP}",
          "v_and_b32 v28, 1, v1", "v_lshlrev_b32 v28, 12, v28", "v_lshl_add_u32 v28, v19, 4, v28", "s_waitcnt lgkmcnt(0)"]
    for w in range(1, 7):
        L += [f"v_add_f32 v{PRE+e}, v{PRE+e}, v{PRE+4*w+e}" for e in range(4)]
    L += ["s_mov_b32 exec_lo, 0x00030003", "s_mov_b32 exec_hi, 0x00030003",
          VM(f"buffer_store_dwordx4 {v(DD,4)}, v28, s[24:27], s36 offen{SC}", "yp"), "s_mov_b64 exec, -1", "s_nop 3"]
    return L

def p4_setup(k):
    tw = int(CFG.get("tw", 2))
    skew = CFG.get("skew")
    if skew:
        k.e("s_and_b32 s63, s2, 1")
        if skew == "2": k.e("s_xor_b32 s63, s63, 1")
    else: k.e("s_lshr_b32 s63, s29, 4")
    k.e("s_lshl_b32 s36, s30, 2")
    k.e(f"s_lshr_b32 s30, {CFG.get('jp', '0x76534210')}, s36")
    k.e("s_and_b32 s30, s30, 7")
    k.e(f"s_and_b32 s36, s30, {7 & ~((1 << tw) - 1)}")
    k.e("s_add_u32 s43, s30, s36")
    k.e(f"s_lshl_b32 s36, s63, {tw}")
    k.e("s_add_u32 s30, s43, s36")
    if skew:
        k.e("s_and_b32 s29, s29, 3")
        k.e("s_and_b32 s36, s2, 6")
        k.e("s_lshl_b32 s36, s36, 1")
        k.e("s_add_u32 s29, s29, s36")
    else: k.e("s_and_b32 s29, s29, 15")
    k.e("s_and_b32 s36, s28, 3")
    k.e("s_lshl_b32 s37, s29, 2")
    k.e("s_add_u32 s36, s36, s37")
    k.e("s_lshl_b32 s36, s36, 18")
    k.e("s_lshr_b32 s37, s28, 2")
    k.e("s_lshl_b32 s37, s37, 12")
    k.e("s_add_u32 s36, s36, s37")
    if not skew:
        k.e("s_lshl_b32 s37, s63, 16")
        k.e("s_add_u32 s36, s36, s37")
    k.e("s_lshr_b32 s37, s28, 2")
    k.e("s_lshl_b32 s37, s37, 17")
    k.e("s_add_u32 s36, s36, s37")
    k.e("v_lshl_add_u32 v2, v1, 4, s36")
    k.e(hole("c", "v2"))
    k.e(f"v_xor_b32 v3, {1<<17}, v2")
    k.e("v_lshrrev_b32 v19, 4, v1")
    k.e("s_lshr_b32 s36, s28, 2")
    k.e("s_lshl_b32 s36, s36, 7")
    k.e("s_and_b32 s37, s28, 3")
    k.e("s_lshl_b32 s37, s37, 4")
    k.e("s_add_u32 s36, s36, s37")
    k.e("s_lshl_b32 s33, s36, 8")
    if not skew:
        k.e("s_lshl_b32 s37, s63, 11")
        k.e("s_add_u32 s36, s36, s37")
    k.e("v_add_u32 v18, s36, v19")
    k.e("v_lshlrev_b32 v18, 11, v18")
    k.e("s_lshl_b32 s36, s43, 7")
    k.e("v_add_u32 v18, s36, v18")
    k.e("v_lshlrev_b32 v20, 1, v19")
    k.e("v_and_b32 v21, 7, v1")
    k.e("v_xor_b32 v20, v20, v21")
    k.e("v_lshl_add_u32 v18, v20, 4, v18")
    k.e("v_and_b32 v21, 8, v1")
    k.e(f"v_lshl_add_u32 v6, v21, {4 + tw}, v18")
    k.e("v_xor_b32 v21, 8, v21")
    k.e(f"v_lshl_add_u32 v7, v21, {4 + tw}, v18")
    k.e(f"v_add_u32 v7, {8192-1024}, v7")
    k.e(f"v_add_u32 v8, {2*(8192-1024)}, v6")
    k.e(f"v_add_u32 v9, {2*(8192-1024)}, v7")
    k.e("s_add_u32 s36, s2, 1")
    k.e("s_mov_b32 s62, 0" if CFG.get("evn") else "s_and_b32 s62, s36, 3")
    if skew:
        k.e("s_cmp_eq_u32 s63, 0")
        k.e("s_cselect_b32 s62, 4, 1")
        k.e("s_cselect_b32 s31, 8192, 0")
        k.e(f"s_cselect_b32 s32, {256*2048}, 0")
    else:
        k.e("s_mov_b32 s31, 0")
        k.e("s_mov_b32 s32, 0")

def p4_setup2(k):
    k.e("v_bfe_u32 v20, v1, 2, 2")
    k.e("v_lshl_add_u32 v18, v19, 2, v20")
    k.e("v_and_b32 v20, 7, v18")
    k.e("s_lshl_b32 s36, s63, 2")
    k.e("s_xor_b32 s36, s36, 4")
    k.e("v_xor_b32 v20, s36, v20")
    k.e("v_lshlrev_b32 v18, 8, v18")
    k.e("s_lshr_b32 s36, s28, 2")
    k.e("s_lshl_b32 s36, s36, 15")
    if not CFG.get("skew"): k.e("s_add_u32 s36, s36, 65536")
    k.e("v_add_u32 v18, s36, v18")
    k.e("v_and_b32 v21, 3, v1")
    k.e("v_lshl_add_u32 v18, v21, 3, v18")
    for cb in range(8):
        k.e(f"v_xor_b32 v21, {cb}, v20")
        k.e(f"v_lshl_add_u32 v{50+cb}, v21, 5, v18")

def ctx_ready(k, pre=None):
    l, le, lc = k.newlabel("cspin"), k.newlabel("cspinx"), k.newlabel("cchk")
    L = ["s_mov_b32 s61, 0x40000"]
    if pre is not None: L += [f"s_waitcnt vmcnt({pre})", f"s_branch {lc}"]
    return L + [l + ":", "s_sub_u32 s61, s61, 1", f"s_cbranch_scc1 {le}",
            "global_load_dword v59, v58, s[90:91] sc1", "s_waitcnt vmcnt(0)", lc + ":", "v_cmp_le_u32 vcc, 4, v59", "s_nop 0",
            "s_and_b32 s60, vcc_lo, 31", "s_and_b32 s36, s60, s44", "s_cmp_eq_u32 s36, s44", f"s_cbranch_scc1 {le}",
            "s_sleep 6", f"s_branch {l}", le + ":", "s_lshl_b32 s44, s44, 1", "s_or_b32 s44, s44, 1", "s_and_b32 s44, s44, 31"]

def p4_pieces(k, cfg, f2A, xl):
    D, NG = 6, 512
    def wset(n): return [f"s_add_u32 m0, s33, {((n//2 & 1)^1)*65536 + (n&1)*16384}", f"s_mov_b32 s32, {(n//2*256 + (n&1)*64)*2048}"]
    def wop(n, j): return VM(f"buffer_load_dwordx4 v{6+j}, s[8:11], s32 offen offset:{j*1024} lds", ("W", n))
    def xld(t, s_): return [VM(f"buffer_load_dwordx4 {v(XF4[t&1]+(s_*2+rb)*4,4)}, v{2+rb}, s[4:7], s31 offen offset:{s_*1024}{SC}", ("x", t, s_)) for rb in range(2)]
    nf = int(cfg.get("nf", 1))
    seq = [(t, s_, cb) for t in range(8) for s_ in range(4) if 4*t + s_ < 24 + nf for cb in range(8)]
    for c0 in (0, 4): seq += [(t, s_, cb) for t in (6, 7) for s_ in range(4) if 4*t + s_ >= 24 + nf for cb in range(c0, c0+4)]
    p2s = 384 + 2 * (32 + 4*nf)
    use = {}; last = {}
    for p, q in enumerate(seq): use.setdefault(q[:2], p); last[q[:2]] = p
    def rd(f):
        t, s_, cb = seq[f]
        return [DS(f"ds_read_b64_tr_b16 {v(WR4+4*(f%8)+2*h,2)}, v{50+cb} offset:{(32*s_+16*h)*256}", ("w", f % 8)) for h in range(2)] + \
               ([f"v_xor_b32 v{50+cb}, 65536, v{50+cb}"] if s_ == 3 and t < 7 else [])
    M, fills, pre = [], [[] for _ in range(NG)], {}
    beta = {}
    for p, (t, s_, cb) in enumerate(seq):
        for rb in range(2):
            o = A.Oreg(rb, cb)
            M.append(f"{MF} {v(o,4)}, {v(WR4+4*(p%8),4)}, {v(XF4[t&1]+(s_*2+rb)*4,4)}, {v(o,4) if p >= 8 else '0'}")
        if p % 2 == 0: pre[2*p] = [Need("ds", [("w", p % 8), ("w", (p+1) % 8)])]
        if use[(t, s_)] == p: pre[2*p] += [Need("vm", [("x", t, s_)])]
    for f in range(D, 256):
        r = rd(f)
        if f < 192 + D and f % 16 < D:
            g = f // 16 * 32 - 8 + [0, 1, 2, 3, 4, 6][f % 16]
            fills[g] += r
        else:
            fills[2*(f-D)] += r[:1]; fills[2*(f-D)+1] += r[1:]
    for n in range(1, 13): beta[n] = 32*n - 9
    for n in range(13, 16): beta[n] = 2 * ((use[(n//2, 2*(n&1))] - D) // 2 * 2) - 1
    WP, XP = int(cfg.get("wpre", 4)), int(cfg.get("xa", 2))
    LW, LX = int(cfg.get("lw", 36)), int(cfg.get("lx", 40))
    ops = []
    for n in range(WP, 16):
        for j in range(4): ops.append([beta[n-3] + 1 if n >= 4 else 0, beta[n] - LW - 4*(3-j), "w", n, wop(n, j)])
    for t in range(1, 8):
        for s_ in range(4):
            if t == 1 and s_ < XP: continue
            for x in xld(t, s_): ops.append([2*last[(t-2, s_)] + 2 if t >= 2 else 0, 2*use[(t, s_)] - LX, "x", t, x])
    rate = max(o[1] for o in ops) / len(ops)
    g, cur, xfirst, at = 0.0, {"x": 1, "w": None}, {}, []
    while ops:
        av = [o for o in ops if o[0] <= g]
        if not av:
            g = min(o[0] for o in ops); continue
        o = min(av, key=lambda o: o[1]); ops.remove(o)
        gi = int(g)
        if o[2] == "x":
            xfirst.setdefault(o[3], gi)
            if cur["x"] != o[3]: fills[gi] += [f"s_mov_b32 s31, {o[3]*8192}"]; cur["x"] = o[3]
        if o[2] == "w" and cur["w"] != o[3]: fills[gi] += wset(o[3]); cur["w"] = o[3]
        fills[gi] += [o[4]]; at.append(gi)
        if cfg.get("p4v"): print(o[2], o[3], "at", gi, "earliest", o[0], "deadline", o[1])
        g += rate
    between = lambda g0, g1: min(sum(1 for x in at if g0 < x < g1), 40)
    extra = {n: [] for n in beta}
    r0 = int(cfg.get("rdy0", 2))
    for grp in range(r0, 4):
        n = max(m for m in beta if beta[m] < xfirst[2*grp])
        gp = beta[n] - 30 if n > 1 else 0
        fills[gp] += [Alt(A.ool(k, ["s_cmp_lt_u32 s60, 31"], "s_cbranch_scc1", ["global_load_dword v59, v58, s[90:91] sc1"]), lambda c: [])]
        extra[n] += [Alt(A.ool(k, ["s_cmp_lt_u32 s60, 31"], "s_cbranch_scc1", ctx_ready(k, between(gp, beta[n]))), lambda c: [])]
    for n, gb in beta.items():
        fills[gb] += extra[n] + (["s_waitcnt lgkmcnt(0)"] if n <= 12 else []) + [Need("vm", [("W", n), "yp" if n == 3 else None]), "s_barrier"]
    fills[beta[3]+3] += [f2A]
    def rt(part, w):
        kr = K(k.name + f"_rt{part}"); routed(kr, part, w)
        return Alt(A.ool(k, RT, "s_cbranch_scc1", [x.strip() for x in kr.lines]), lambda c: [])
    gr = [250, 310, 372]
    fills[gr[0]] += [rt(0, 0)]
    fills[gr[1]] += [rt(1, between(gr[0], gr[1]))]
    fills[gr[2]] += [rt(2, between(gr[1], gr[2]))]
    gx = next(x for x in range(256, NG) if any(isinstance(y, str) and y.startswith("s_add_u32 m0") for y in fills[x]))
    fills[gx] = xl + fills[gx]
    if "4" in cfg.get("cpf", ""):
        fills[300] += [guard(k, ["s_cmp_eq_u32 s28, 0"], "s_cbranch_scc0", ["s_mov_b32 s43, s38"] + code_touch(k, 4, "v0") + ["s_mov_b32 s38, s43"], "w0")]
    fills[p2s-20] += [f"s_xor_b32 s37, s40, {PX() << 7}", "v_mov_b32 v5, s37", Need("vm", ["xl"])] + \
                     [DS(f"ds_read_b64 {v(XI+2*cb,2)}, v63 offset:{cb*32}", "xi") for cb in range(4)]
    e1 = p2s + 10
    for cb in range(4):
        fills[p2s+2+cb] += [DS(f"ds_write_b128 v20, {v(A.Oreg(1,cb),4)} offset:{cb*1024}", "e1w")]
        fills[e1+1+cb//2] += [DS(f"ds_read_b128 {v(A.Oreg(1,cb),4)}, v21 offset:{cb*1024}", ("e1r", cb))]
        o0, o1 = A.Oreg(0, cb), A.Oreg(1, cb)
        fills[e1+6+2*cb] += [Need("ds", [("e1r", cb)])] + [f"v_add_f32 v{o0+e}, v{o0+e}, v{o1+e}" for e in range(2)]
        fills[e1+7+2*cb] += [f"v_add_f32 v{o0+e}, v{o0+e}, v{o1+e}" for e in range(2, 4)]
        fills[e1+7+2*cb] += [VM(f"buffer_store_dwordx4 {v(o0,4)}, v18, s[24:27], s41 offen offset:{cb*1024}{SC}", "ex")]
    fills[e1] += [Need("ds", ["e1w"]), "s_barrier"]
    fills[506] += ["s_lshr_b32 s36, s28, 2", "s_lshl_b32 s36, s36, 15", "s_and_b32 s37, s28, 3"]
    fills[507] += ["s_lshl_b32 s37, s37, 12", "s_add_u32 s36, s36, s37", "s_add_u32 s36, s36, 65536"]
    fills[508] += ["v_add_u32 v20, s36, v22", "v_xor_b32 v21, 32768, v20"]
    fills[511] += ["s_waitcnt vmcnt(0)"] + signal("s[90:91]", "s40", "v4", "v13")
    for t in range(8): fills[64*t+62] += cfg["sth4"].hist(8, first=(t == 0))
    prow0 = [wset(n) + [wop(n, j) for j in range(4)] for n in range(WP)]
    prox = ["s_mov_b32 s31, 0"] + [xld(0, s_) for s_ in range(4)] + ["s_mov_b32 s31, 8192"]
    pro2 = [rd(f) for f in range(D)] + [Need("vm", [("x", 0, int(cfg.get("xw", 1)))])] + [xld(1, s_) for s_ in range(XP)]
    return prow0, prox, pro2, weave(M, fills, pre)

def routed(k, part, w):
    if part == 0:
        k.e([f"s_add_u32 s36, s30, {CNT_F2}", "s_lshl_b32 s36, s36, 7", "v_mov_b32 v60, s36", "global_load_dword v61, v60, s[90:91] sc1"])
        return
    if part == 1:
        k.e(f"s_waitcnt vmcnt({w})")
        emit(k, check(k, "s[90:91]", "v60", "v61", 16, 1))
        k.e(["s_lshl_b32 s37, s30, 8", f"s_add_u32 s36, s37, {WS_YP}", "s_add_u32 s37, s36, 4096",
             "v_and_b32 v60, 15, v1", "v_lshlrev_b32 v60, 13, v60", "v_lshl_add_u32 v60, v19, 4, v60"])
        for t in range(2):
            for cb in range(4):
                k.e(f"buffer_load_dwordx4 {v(96+16*t+4*cb,4)}, v60, s[24:27], s{36+t} offen offset:{cb*64}{SC}")
        return
    k.e(zero(YA, 16))
    k.e(f"s_waitcnt vmcnt({w})")
    for t in range(2):
        lsk = k.newlabel("noy")
        R = 96 + 16*t
        k.e(f"s_sub_u32 s36, s{56+t}, s38")
        k.e("s_cmp_lt_u32 s36, 16")
        k.e(f"s_cbranch_scc0 {lsk}")
        k.e(f"s_and_b32 s36, s{58+t}, 0xffff0000")
        k.e("s_cmp_lt_i32 s36, 0")
        k.e("s_cselect_b32 s37, 0x80000000, -1")
        k.e("s_xor_b32 s36, s36, s37")
        k.e("s_and_b32 s36, s36, 0xffff0000")
        k.e("v_mov_b32 v62, s36")
        k.e("v_mul_f32 v62, 0xbfb8aa3b, v62")
        k.e("v_exp_f32 v62, v62")
        k.e("s_nop 0")
        k.e("v_add_f32 v62, 1.0, v62")
        k.e("v_rcp_f32 v62, v62")
        k.e("s_nop 0")
        rbf(k, "v62")
        for m in ["quad_perm:[1,0,3,2]", "quad_perm:[2,3,0,1]", "row_half_mirror", "row_mirror"]:
            for r in range(16):
                k.e(f"v_add_f32_dpp v{R+r}, v{R+r}, v{R+r} {m} row_mask:0xf bank_mask:0xf")
        k.e(f"v_cmp_eq_u32 vcc, s{56+t}, v14")
        for r in range(0, 16, 2):
            for rep in range(2):
                k.e(f"v_cvt_pk_bf16_f32 v61, v{R+r}, v{R+r+1}")
                k.e(f"v_lshlrev_b32 v{R+r}, 16, v61")
                k.e(f"v_and_b32 v{R+r+1}, 0xffff0000, v61")
                if rep == 0: k.e([f"v_mul_f32 v{R+r}, v62, v{R+r}", f"v_mul_f32 v{R+r+1}, v62, v{R+r+1}"])
            k.e(f"v_cndmask_b32 v{YA+r}, v{YA+r}, v{R+r}, vcc")
            k.e(f"v_cndmask_b32 v{YA+r+1}, v{YA+r+1}, v{R+r+1}, vcc")
        k.label(lsk)

RT = ["s_sub_u32 s36, s56, s38", "s_sub_u32 s37, s57, s38", "s_min_u32 s36, s36, s37", "s_cmp_lt_u32 s36, 16"]
import os
if os.environ.get("NORT"): RT[-1] = "s_cmp_lt_u32 s36, 0"
def ex_addr():
    return ["s_lshl_b32 s36, s2, 15", "s_lshl_b32 s37, s28, 12", "s_add_u32 s36, s36, s37", f"s_add_u32 s36, s36, {WS_EX}"]

def p4_final(k, cfg):
    k.e("s_nop 4")
    for cb in range(4): k.e(f"ds_write_b128 v20, {v(A.Oreg(1,4+cb),4)} offset:{cb*1024}")
    gin = int(cfg.get("gin", 4)); gm = max(gin, int(cfg.get("gm", 2)))
    gcalc(k, False, range(gin, gm))
    cfg["st5"].mark()
    emit(k, A.ool(k, [f"s_cmp_eq_u32 s28, {cfg.get('exp', 3)}"], "s_cbranch_scc1", spin(k, "s[90:91]", "v5", "v23", 8, int(cfg.get("exs", 1)))))
    k.e("s_waitcnt lgkmcnt(0)")
    k.e("s_barrier")
    cfg["st5"].mark()
    for cb in range(4): k.e(f"buffer_load_dwordx4 {v(64+4*cb,4)}, v18, s[24:27], s39 offen offset:{cb*1024}{SC}")
    for cb in range(4): k.e(f"ds_read_b128 {v(128+4*cb,4)}, v21 offset:{cb*1024}")
    for cb in range(4):
        k.e(f"s_waitcnt lgkmcnt({3-cb})")
        for e in (0, 2): k.e(f"v_pk_add_f32 {v(128+4*cb+e,2)}, {v(128+4*cb+e,2)}, {v(A.Oreg(0,4+cb)+e,2)}")
    gcalc(k, False, range(gm, 4))
    emit(k, A.ool(k, RT, "s_cbranch_scc1", lines(gcalc, True)))
    for cb in range(4):
        k.e(f"s_waitcnt vmcnt({3-cb})")
        for h in range(2):
            a, b = 128+4*cb+2*h, 128+4*cb+2*h+1
            k.e(f"v_pk_add_f32 {v(a,2)}, {v(a,2)}, {v(64+4*cb+2*h,2)}")
            def rnd2():
                k.e(f"v_cvt_pk_bf16_f32 v23, v{a}, v{b}")
                k.e(f"v_lshlrev_b32 v{a}, 16, v23")
                k.e(f"v_and_b32 v{b}, 0xffff0000, v23")
            rnd2()
            k.e(f"v_pk_mul_f32 {v(a,2)}, {v(a,2)}, {v(G+4*cb+2*h,2)}")
            rnd2()
            k.e(f"v_pk_add_f32 {v(a,2)}, {v(a,2)}, {v(X32+4*cb+2*h,2)}")
            k.e(f"v_cvt_pk_bf16_f32 v{80+2*cb+h}, v{a}, v{b}")
        k.e(f"ds_write_b64 v63, {v(80+2*cb,2)} offset:{cb*32}")
    k.e("v_add_u32 v22, s42, v22")
    k.e(f"s_mov_b32 s36, {8*2048}")
    k.e("s_waitcnt lgkmcnt(0)")
    k.e("ds_read_b128 v[64:67], v22")
    k.e("ds_read_b128 v[68:71], v22 offset:1024")
    k.e("s_waitcnt lgkmcnt(1)")
    k.e(f"buffer_store_dwordx4 v[64:67], v15, s[20:23], 0 offen {cfg.get('ofl', '')}")
    k.e("s_waitcnt lgkmcnt(0)")
    k.e(f"buffer_store_dwordx4 v[68:71], v15, s[20:23], s36 offen {cfg.get('ofl', '')}")

def p4(k, cfg, st):
    kx = K("tmp")
    kx.e(["s_lshl_b32 s36, s29, 7", "s_and_b32 s37, s28, 3", "s_lshl_b32 s37, s37, 5", "s_add_u32 s36, s36, s37",
          "s_lshr_b32 s37, s28, 2", "s_lshl_b32 s37, s37, 4", "s_add_u32 s38, s36, s37",
          "v_and_b32 v63, 15, v1", "v_add_u32 v14, s38, v63", "v_lshlrev_b32 v16, 3, v14",
          "v_lshrrev_b32 v15, 3, v1", "v_add_u32 v15, s38, v15", "v_lshlrev_b32 v15, 11, v15", "v_and_b32 v4, 7, v1",
          "v_lshl_add_u32 v15, v4, 4, v15", "s_lshl_b32 s36, s30, 7", "v_add_u32 v15, s36, v15",
          "s_lshl_b32 s36, s28, 12", f"s_add_u32 s42, s36, {LDS_X}", "v_lshl_add_u32 v63, v63, 7, s42", "v_lshl_add_u32 v63, v19, 3, v63"])
    xl = ["s_mov_b32 m0, s42", f"s_mov_b32 s36, {8*2048-1024}", VM("buffer_load_dwordx4 v15, s[16:19], 0 offen lds"),
          VM("buffer_load_dwordx4 v15, s[16:19], s36 offen offset:1024 lds"),
          f"s_mov_b32 s36, {WS_ST}", VM(f"buffer_load_dwordx2 {v(XI+8,2)}, v16, s[24:27], s36 offen{SC}", "xl")]
    n_ctx = Need("vm", ["ctxst"])
    sig = ["v_mov_b32 v26, s40", "v_mov_b32 v28, 1", "v_writelane_b32 v26, s41, 1",
           "s_mov_b64 exec, 3", "global_atomic_add v26, v28, s[90:91]", "s_mov_b64 exec, -1"]
    sigA = Alt(A.ool(k, ["s_cmp_eq_u32 s28, 0"], "s_cbranch_scc1", sig), lambda c: sig if c["w0"] else [])
    redA = guard(k, ["s_cmp_lt_u32 s28, 4"], "s_cbranch_scc0", ffn2_reduce(), "lo")
    f2 = ["s_and_b32 s36, s2, 15", f"s_add_u32 s36, s36, {CNT_F2}", "s_lshl_b32 s36, s36, 7"] + signal("s[90:91]", "s36", "v26", "v27")
    f2A = guard(k, ["s_cmp_eq_u32 s28, 0"], "s_cbranch_scc0", f2, "w0")
    f2o = Alt(A.ool(k, ["s_cmp_eq_u32 s28, 0"], "s_cbranch_scc1", f2), lambda c: f2 if c["w0"] else [])
    prow0, prox, pro2, body = p4_pieces(k, cfg, f2o, xl)
    skew = None
    n_w0 = Need("vm", [("W", 0)])
    scen = []
    for w0, lo in ((1, 1), (0, 1), (0, 0)):
        scen.append(flat([VM("", "ctxst"), n_ctx, sigA, prow0, n_w0, prox, redA, pro2, body], dict(w0=w0, lo=lo)))
    resolve(scen)
    k.e("s_and_b32 s36, s29, 28")
    k.e(f"s_sub_u32 s40, {15+CNT_CTX}, s30")
    k.e("s_lshl_b32 s40, s40, 7")
    k.e("s_add_u32 s40, s40, s36")
    k.e(f"s_add_u32 s41, s30, {CNT_CTX}")
    k.e("s_lshl_b32 s41, s41, 7")
    k.e("s_add_u32 s41, s41, s36")
    p4_setup(k)
    pb = cfg.get("pb", "")
    rest = lines(srd, 4, 54, 16777216 + DELTA, WS_CTX) + lines(srd, 16, 96, 4194304) + lines(srd, 20, 98, 4194304) + [x.strip() for x in kx.lines] + lines(p4_setup2)
    if "s" in pb: k.e(rest)
    if "m" in pb:
        l7 = k.newlabel("w7")
        emit(k, ["s_waitcnt vmcnt(4)", "s_cmp_eq_u32 s28, 7", f"s_cbranch_scc1 {l7}"] + lines(ffn2_math) + [l7 + ":"])
    emit(k, [n_ctx, "s_barrier", sigA])
    st.mark()
    if "m" in pb: emit(k, prow0)
    else:
        lm, lm1, lm2 = k.newlabel("f2m"), k.newlabel("f2a"), k.newlabel("f2b")
        A.OOL.append([lm + ":"] + lines(ffn2_math) + ["s_cmp_lt_u32 s28, 4", f"s_cbranch_scc1 {lm2}", f"s_branch {lm1}"])
        k.e("s_bitcmp1_b32 0x70, s28")
        k.e(f"s_cbranch_scc1 {lm}")
        k.label(lm1)
        emit(k, prow0)
        k.e("s_cmp_lt_u32 s28, 4")
        k.e(f"s_cbranch_scc1 {lm}")
        k.label(lm2)
    if "s" not in pb: k.e(rest)
    k.e("s_mov_b32 s60, 31")
    lj = k.newlabel("w7j")
    k.e(f"s_cmp_eq_u32 s28, {cfg.get('pw', 3)}")
    k.e(f"s_cbranch_scc0 {lj}")
    if skew:
        k.e(["s_sub_u32 s36, s62, 1", "v_add_u32 v58, s36, v1", "s_or_b32 s36, s62, 3", "v_min_u32 v58, s36, v58", "v_writelane_b32 v58, 0, 0"])
    else:
        k.e(["v_min_u32 v58, 3, v1", "s_lshl_b32 s36, s63, 2", "v_add_u32 v58, s36, v58"])
    k.e(f"s_add_u32 s36, s29, {CNT_CTX}")
    k.e("s_lshl_b32 s36, s36, 7")
    k.e("v_lshl_add_u32 v58, v58, 2, s36")
    k.e(f"s_mov_b32 s44, {(1 << int(cfg.get('rdy0', 2))) - 1}")
    emit(k, ctx_ready(k))
    k.label(lj)
    emit(k, [n_w0])
    k.e("s_waitcnt lgkmcnt(0)")
    st.mark()
    k.e("s_barrier")
    st.mark()
    emit(k, prox)
    emit(k, [redA])
    k.e("v_lshlrev_b32 v22, 4, v1")
    k.e(["v_mov_b32 v18, v22"] + hole("e", "v18"))
    k.e("v_add_u32 v20, s42, v22")
    k.e("v_xor_b32 v21, 16384, v20")
    k.e(ex_addr())
    k.e("s_mov_b32 s41, s36")
    k.e(f"s_xor_b32 s39, s36, {PX() << 15}")
    k.e(f"s_add_u32 s40, s2, {CNT_EX}")
    k.e("s_lshl_b32 s40, s40, 7")
    emit(k, pro2)
    st.mark()
    emit(k, body)
    st.mark()
    cfg["st5"].mark()
    p4_final(k, cfg)
    cfg["st5"].mark()

def gen_fused(cfg, name):
    cfg = dict(cfg, stflag=SC, pro_hook=pro_hook, pro_wait=pro_wait, bar_hook=bar_hook, b_hook=b_hook, b_inline=["buffer_load_dword v0, v13, s[4:7], s48 offen", f"s_add_u32 s48, s48, {128*int(cfg.get('btl', 32))}"], before_merge=before_merge, tail_extra=tail_extra, share=1)
    CFG.update(cfg)
    HOLE[0] = cfg.get("hole", "")
    Z64[0] = not cfg.get("noz64")
    k = K(name)
    k.e("s_cmp_ge_u32 s2, 256")
    k.e("s_cbranch_scc1 L_end")
    stq = cfg.get("stamp", "")
    st = Stamps(k, bool(stq), kid=0)
    off = Stamps(k, False)
    st.mark()
    cfg["stp"] = st if "p" in stq else off
    cfg["sth3"] = st if "c" in stq else off
    cfg["sth4"] = st if "d" in stq else off
    cfg["st5"] = st if "5" in stq else off
    cfg["sth1"] = st if "a" in stq else off
    cfg["sth2"] = st if "b" in stq else off
    p1(k, cfg, st if "1" in stq else off)
    if "b" in stq: st.mark()
    p2(k, cfg, st if "2" in stq else off)
    k.e("s_load_dwordx2 s[32:33], s[0:1], 40")
    k.e("s_load_dwordx2 s[34:35], s[0:1], 80")
    k.e("s_load_dwordx2 s[96:97], s[0:1], 0")
    k.e("s_load_dwordx2 s[98:99], s[0:1], 88")
    s3 = st if "3" in stq else off
    k.e("s_cmp_lt_u32 s28, 4")
    k.e("s_cbranch_scc0 L_grp1")
    A.gen_p3(k, cfg, 0, s3, after_q, before_tail)
    k.e("s_branch L_p3_done")
    A.flush_ool(k)
    k.label("L_grp1")
    A.gen_p3(k, cfg, 1, s3, after_q, before_tail)
    k.e("s_branch L_p3_done")
    A.flush_ool(k)
    k.label("L_p3_done")
    st.mark()
    p4(k, cfg, st if "4" in stq else off)
    st.dump(54, "s28")
    if cfg.get("stdbg"):
        k.e("s_lshl_b32 s36, s28, 8"); k.e("s_add_u32 s36, s36, s2")
        k.e(f"s_cmp_eq_u32 s36, {cfg['stdbg']}"); k.e("s_cbranch_scc0 L_end")
        k.e("v_mov_b32 v2, 0"); k.e("s_mov_b64 exec, 1")
        for i in range(1, st.n):
            k.e(f"s_sub_u32 s36, s{st.base+2*i+1}, s{st.base+1}")
            k.e("v_mov_b32 v3, s36")
            k.e(f"global_store_dword v2, v3, s[88:89] offset:{4*i}")
    k.e("s_endpgm")
    A.flush_ool(k)
    k.label("L_end")
    return wrap(k, 256)
```

```python
from common import *

O_  = 192
Q_  = 128
QS_ = 160
S_  = 96
RG_ = 64
P_  = 48
NM_ = 40
L_  = 28
ONE = 36
vKr, vVr, vD, vNx, vMk, vD2, vL16 = "v2", "v3", "v4", "v5", "v18", "v6", "v7"
LS_ = 8
T_  = 20
LDS_W = 98304
LDS_X = 131072
CSCALE = 0x3e0293ee
NEGBIG = 0xf149f2ca

def Oreg(qb, db): return O_ + (qb*8+db)*4
def Sreg(buf, qb, kb): return S_ + buf*16 + (qb*2+kb)*4
def Preg(buf, qb): return P_ + buf*8 + qb*4

def p2_setup(k):
    k.e("s_and_b32 s36, s28, 3")
    k.e("s_sub_u32 s37, 15, s30")
    k.e("s_cmp_lt_u32 s28, 4")
    k.e("s_cselect_b32 s37, s37, s30")
    k.e("s_lshl_b32 s37, s37, 2")
    k.e("s_add_u32 s37, s37, s36")
    k.e("s_lshl_b32 s37, s37, 16")
    k.e("v_lshl_add_u32 v2, v1, 4, s37")
    k.e("v_add_u32 v3, 32768, v2")
    k.e("v_lshrrev_b32 v18, 4, v1")
    k.e("s_lshl_b32 s37, s28, 4")
    k.e("v_add_u32 v19, s37, v18")
    k.e("v_lshlrev_b32 v19, 13, v19")
    k.e("s_lshl_b32 s37, s29, 8")
    k.e("v_add_u32 v19, s37, v19")
    k.e("v_and_b32 v20, 15, v1")
    k.e("v_lshlrev_b32 v21, 1, v18")
    k.e("v_xor_b32 v21, v20, v21")
    k.e("v_lshl_add_u32 v6, v21, 4, v19")
    k.e(f"v_add_u32 v7, {32768-1024}, v6")
    k.e("v_xor_b32 v21, 8, v21")
    k.e("v_lshl_add_u32 v8, v21, 4, v19")
    k.e(f"v_add_u32 v8, {2*(32768-1024)}, v8")
    k.e(f"v_add_u32 v9, {32768-1024}, v8")
    k.e("s_lshl_b32 s33, s28, 12")
    k.e(f"s_add_u32 s33, s33, {LDS_W}")
    k.e("s_mov_b32 s31, 0")
    k.e("s_mov_b32 s32, 0")

def p2_setup2(k):
    k.e("v_lshrrev_b32 v20, 2, v20")
    k.e("v_lshl_add_u32 v19, v18, 3, v20")
    k.e("v_lshlrev_b32 v19, 8, v19")
    k.e(f"v_add_u32 v19, {LDS_W}, v19")
    k.e("v_and_b32 v21, 3, v1")
    k.e("v_lshl_add_u32 v19, v21, 3, v19")
    k.e("v_and_b32 v21, 1, v18")
    k.e("v_lshl_add_u32 v20, v21, 2, v20")
    for db in range(8):
        k.e(f"v_xor_b32 v21, {db}, v20")
        k.e(f"v_lshl_add_u32 v{10+db}, v21, 5, v19")
    k.e("s_lshl_b32 s43, s28, 12")
    k.e("v_lshl_add_u32 v4, v1, 4, s43")
    k.e("s_add_u32 s44, s43, 65536")
    k.e("s_lshl_b32 s45, s29, 20")
    for r in range(64):
        k.e(f"v_mov_b32 v{O_+r}, 0")

def p2_pieces(cfg):
    WF = [64, 96]; XF = [128, 160]
    def wdma(stage):
        return [f"s_add_u32 m0, s34, {stage*32768}"] , [VM(f"buffer_load_dwordx4 v{6+j}, s[8:11], s32 offen offset:{j*1024} lds", ("W", stage)) for j in range(4)]
    def xld(xs, s_):
        return [VM(f"buffer_load_dwordx4 {v(XF[xs]+(s_*2+rb)*4,4)}, v{2+rb}, s[4:7], s31 offen offset:{s_*1024}", ("x", xs, s_)) for rb in range(2)]
    def wrd(stage, s_, fs):
        return [DS(f"ds_read_b64_tr_b16 {v(WF[fs]+4*db+2*t,2)}, v{10+db} offset:{stage*32768+(32*s_+4*t)*256}", ("w", fs)) for db in range(8) for t in range(2)]
    def mf(fs, xs, s_):
        return [f"{MF} {v(Oreg(rb,db),4)}, {v(WF[fs]+4*db,4)}, {v(XF[xs]+(s_*2+rb)*4,4)}, {v(Oreg(rb,db),4)}" for db in range(8) for rb in range(2)]
    pro = ["s_mov_b32 s34, s33"]
    for t in range(2):
        m, d = wdma(t)
        pro += m + ["s_nop 0"] + d + [f"s_add_u32 s32, s32, {128*8192}"]
        for s_ in range(4 if t == 0 else 3): pro += xld(t, s_)
        if t == 0: pro += ["s_add_u32 s31, s31, 4096"]
    pro2 = [Need("vm", [("W", 0)]), "s_barrier"] + wrd(0, 0, 0) + ["s_mov_b32 s35, 0"]
    kvpre = ["s_mov_b32 m0, s43", "s_add_u32 s46, s45, 65536"]
    kvpre += [VM(f"buffer_load_dwordx4 {vD}, s[12:15], s45 offen offset:{j*1024} lds", "kv") for j in range(4)]
    kvpre += ["s_add_u32 m0, s43, 32768", "s_add_u32 s47, s45, 32768"]
    kvpre += [VM(f"buffer_load_dwordx4 {vD}, s[12:15], s46 offen offset:{j*1024} lds", "kv") for j in range(4)]
    kvpre += ["s_mov_b32 m0, s44", "s_nop 0"]
    kvpre += [VM(f"buffer_load_dwordx4 {vD}, s[12:15], s47 offen offset:{j*1024} lds", "kv") for j in range(4)]
    body = []
    for stage in range(2):
        for s_ in range(4):
            fills = [[] for _ in range(16)]
            if s_ < 3:
                body += [Need("ds", [("w", s_ & 1)])]
                rd = wrd(stage, s_+1, (s_+1) & 1)
            else:
                body += [Need("ds", [("w", 1)]), Need("vm", [("W", stage ^ 1)]), "s_barrier"]
                rd = wrd(stage ^ 1, 0, 0)
            body += [Need("vm", [("x", stage, s_)])]
            for g in range(8): fills[g] += rd[2*g:2*g+2]
            if s_ == 0:
                xl = xld(stage ^ 1, 3)
                fills[8] += [xl[0]]; fills[9] += [xl[1], "s_add_u32 s31, s31, 4096"]
                if stage == 0:
                    fills[10] += ["s_cmp_lt_u32 s35, 3", "s_cselect_b32 s6, 4194304, 0", "s_cselect_b32 s10, 8388608, 0", "s_cselect_b32 s34, s33, 0x30000"]
            else:
                xl = xld(stage, s_-1)
                fills[8] += [xl[0]]; fills[9] += [xl[1]]
            if s_ == 3:
                m, d = wdma(stage)
                fills[9] += m
                for j in range(4): fills[10+j] += [d[j]]
                fills[14] += [f"s_add_u32 s32, s32, {128*8192}"]
            body += weave(mf(s_ & 1, stage, s_), fills)
    return pro, pro2, kvpre, body

def q_pack(k, grp, qwait=0, done=(), dup=True):
    k.e(f"v_mov_b32 v20, {CSCALE}")
    k.e("v_mov_b32 v21, v20")
    k.e("s_and_b32 s37, s28, 3")
    k.e("s_lshl_b32 s37, s37, 13")
    k.e(f"v_lshlrev_b32 {vL16}, 4, v1")
    k.e(f"v_add_u32 {vD}, s37, {vL16}")
    k.e(f"v_add_u32 v19, {LDS_X}, {vD}")
    k.e(hole("k", vD))
    k.e(f"v_add_u32 {vD2}, 4096, {vD}")
    k.e("s_add_u32 s43, s37, 32768")
    k.e("s_add_u32 s44, s37, 98304")
    for f in list(done) + [x for x in (0, 4, 1, 5, 2, 6, 3, 7) if x not in done]:
        a = O_ + 8*f
        if f not in done:
            k.e(pkmul(a, 8, 20))
            for q in range(4): k.e(f"v_cvt_pk_bf16_f32 v{Q_+4*f+q}, v{a+2*q}, v{a+2*q+1}")
        if grp == 0: k.e(f"ds_write_b128 v19, {v(Q_+4*f,4)} offset:{f*1024}")
    k.e(f"v_mov_b32 {vKr}, {vL16}")
    k.e("v_and_b32 v21, 15, v1")
    k.e("v_lshrrev_b32 v22, 4, v1")
    k.e("v_lshlrev_b32 v22, 2, v22")
    k.e(f"v_sub_u32 {vMk}, v21, v22")
    k.e("s_mov_b32 s40, 0")
    k.e("s_mov_b32 s41, 16384")
    k.e("s_mov_b32 s49, 0xffff")
    k.e("s_lshl_b32 s51, s30, 1")
    k.e("s_add_u32 s51, s51, 1")
    k.e("s_and_b32 s50, s28, 3")
    k.e("s_lshl_b32 s50, s50, 5")
    if grp == 1:
        k.e("s_lshl_b32 s46, 3, s51")
        k.e("s_lshr_b32 s46, s46, 1")
        k.e("s_lshr_b32 s47, s46, 1")
        k.e("s_or_b32 s47, s47, 0x8000")
        if dup: k.e("s_lshl_b32 s42, 1, s51")
        else: k.e("s_mov_b32 s42, s46")
        k.e("s_or_b32 s42, s42, 1")
    else:
        k.e("s_lshl_b32 s31, 1, s51")
        k.e("s_or_b32 s31, s31, 0x8000")
        k.e("s_add_u32 s36, s51, 1")
        k.e("s_lshl_b32 s36, -1, s36")
        k.e("s_or_b32 s48, s36, 0xaaaaaaab")
        k.e("s_and_b32 s48, s48, 0x7fff")
        k.e("s_or_b32 s39, s36, 0x55555555")
        k.e("s_and_b32 s39, s39, 0xffff")
        k.e(f"s_add_u32 s46, s45, 65536")
        k.e(f"s_add_u32 s47, s45, {65536+32768}")
    k.e("s_mov_b64 s[52:53], 0")
    k.e(f"s_waitcnt vmcnt({qwait}) lgkmcnt(0)")
    k.e("s_barrier")

OOL = []
MSK = ["s[20:21]", "s[22:23]", "s[62:63]", "vcc"]
LDS_MSG = LDS_X + 28672
def ool(k, cond, br, block):
    lr, lb = k.newlabel("rare"), k.newlabel("back")
    OOL.append([lr + ":"] + block + [f"s_branch {lb}"])
    return cond + [f"{br} {lr}", lb + ":"]
def flush_ool(k):
    while OOL: emit(k, OOL.pop(0))

def maskblk(k, buf, sU, inline=False):
    lf, le = k.newlabel("mf"), k.newlabel("me")
    L = [f"v_mov_b32 v{T_}, {NEGBIG}", f"s_cmp_gt_i32 {sU}, 0", f"s_cbranch_scc1 {lf}"]
    L += [f"v_cmp_gt_i32 {MSK[e]}, {e}, {vMk}" for e in range(4)]
    L += [f"v_mov_b32 v{Sreg(buf, 0, 1)+e}, v{T_}" for e in range(4)]
    for q in range(2):
        L += [f"v_cndmask_b32 v{Sreg(buf, q, q)+e}, v{Sreg(buf, q, q)+e}, v{T_}, {MSK[e]}" for e in range(4)]
    L += [f"s_branch {le}", lf + ":"] + [f"v_mov_b32 v{Sreg(buf, 0, 0)+r}, v{T_}" for r in range(16)] + [le + ":"]
    if inline:
        l = k.newlabel("nm")
        return [f"s_cmp_lt_i32 {sU}, 0", f"s_cbranch_scc1 {l}"] + L + [l + ":"]
    return ool(k, [f"s_cmp_lt_i32 {sU}, 0"], "s_cbranch_scc0", L)

def qk(buf, fr0, czero, qb0=Q_):
    L = []
    for kb in range(2):
        for sg in range(4):
            f = RG_ + 4*((fr0 + kb*4 + sg) % 8)
            for qb in range(2):
                d = Sreg(buf, qb, kb)
                c = v(d, 4) if sg else ("0" if czero else v(NM_+4*qb, 4))
                L.append(f"{MF} {v(d,4)}, {v(f,4)}, {v(qb0+(qb*4+sg)*4,4)}, {c}")
    return L

def pv(buf, fr0, ones=True):
    L = []
    for db in range(8):
        f = RG_ + 4*((fr0 + db) % 8)
        for qb in range(2):
            x = f"{MF} {v(Oreg(qb,db),4)}, {v(f,4)}, {v(Preg(buf,qb),4)}, {v(Oreg(qb,db),4)}"
            if ones and qb == 1 and db % 4 == 2:
                x = [x, f"{MF} {v(L_+4*(db//4),4)}, {v(ONE,4)}, {v(Preg(buf,db//4),4)}, {v(L_+4*(db//4),4)}"]
            L.append(x)
    return L

def sm_elems(buf, add=False):
    out = []
    for kb in range(2):
        for qb in range(2):
            for e in range(4):
                r = Sreg(buf, qb, kb) + e
                post = [f"v_add_f32 v{L_+4*qb}, v{L_+4*qb}, v{r}"] if add else []
                if e & 1: post.append(f"v_cvt_pk_bf16_f32 v{Preg(buf,qb)+2*kb+e//2}, v{r-1}, v{r}")
                out.append((f"v_exp_f32 v{r}, v{r}", post))
    return out

def rd(frag, base, off):
    s_ = frag % 8
    return DS(f"ds_read_b128 {v(RG_+4*s_,4)}, {base} offset:{off}", ("r", s_))

def rowred(op, x, t):
    return [f"v_mov_b32 {t}, {x}", "s_nop 1", f"v_permlane16_swap_b32 {x}, {t}", "s_nop 1", f"{op} {x}, {x}, {t}",
            f"v_mov_b32 {t}, {x}", "s_nop 1", f"v_permlane32_swap_b32 {x}, {t}", "s_nop 1", f"{op} {x}, {x}, {t}"]


ADV = [f"v_add_u32 {vVr}, 65536, {vKr}", f"v_add_u32 {vKr}, s41, {vKr}", f"v_and_b32 {vKr}, s49, {vKr}"]

def dma_clumps(k, cs):
    out = []
    for which in range(2):
        msk, base, soff = ("s48", "s43", "s46") if which == 0 else ("s39", "s44", "s47")
        for c in range(8 // cs):
            lskip = k.newlabel("nodma")
            j0 = c * cs
            L = [f"s_bitcmp1_b32 {msk}, s40", f"s_cbranch_scc0 {lskip}", f"s_add_u32 m0, {base}, {(j0 // 4)*4096}", "s_nop 0"]
            for j in range(j0, j0 + cs):
                L.append(f"buffer_load_dwordx4 {vD if j < 4 else vD2}, s[12:15], {soff} offen offset:{(j%4)*1024} sc1 lds")
            if c == 8 // cs - 1:
                L += [f"s_add_u32 {soff}, {soff}, 65536", f"s_xor_b32 {base}, {base}, 32768"]
            out.append(L + [lskip + ":"])
    return out

def p3_pro(k, cfg, grp):
    if not cfg.get("pro2"): return p3_pro_old(k, cfg, grp)
    pro = [rd(f, vKr, f*1024) for f in range(8)]
    zl = zero(O_, 64) + zero(L_, 8)
    fills = [[] for _ in range(32)]; pre = {}
    for p in range(16):
        pre[2*p] = [Need("ds", [("r", p % 8)])]
        if p < 8: fills[2*p+1].append(rd(p+8, vKr, (p+8)*1024))
    for i, z in enumerate(zl[:28]): fills[i * 15 // 28].append(z)
    fills[15] += zl[28:]
    if grp == 1:
        fills[15] += ool(k, ["s_add_u32 s36, s30, s50", "s_cmp_eq_u32 s36, 0"], "s_cbranch_scc1", maskblk(k, 0, "s36", True))
    x = [f"v{T_+2}", f"v{T_+3}"]; t = [f"v{T_+4}", f"v{T_+5}"]
    ch = []
    for qb in range(2):
        a = Sreg(0, qb, 0)
        ch.append([f"v_max3_f32 {x[qb]}, v{a}, v{a+1}, v{a+2}", f"v_max3_f32 {x[qb]}, {x[qb]}, v{a+3}, v{a+4}",
              f"v_max3_f32 {x[qb]}, {x[qb]}, v{a+5}, v{a+6}", f"v_max_f32 {x[qb]}, {x[qb]}, v{a+7}",
              f"v_mov_b32 {t[qb]}, {x[qb]}", None, f"v_permlane16_swap_b32 {x[qb]}, {t[qb]}", None, f"v_max_f32 {x[qb]}, {x[qb]}, {t[qb]}",
              f"v_mov_b32 {t[qb]}, {x[qb]}", None, f"v_permlane32_swap_b32 {x[qb]}, {t[qb]}", None, f"v_max_f32 {x[qb]}, {x[qb]}, {t[qb]}"])
    for c0, c1 in zip(*ch): fills[15] += [c0, c1] if c0 else ["s_nop 0"]
    for qb in range(2): fills[15] += [f"v_sub_f32 v{NM_+4*qb+e}, 0, {x[qb]}" for e in range(4)]
    el = sm_elems(0)
    reg = [e[0].split()[2] for e in el]
    sub = [f"v_add_f32 {r}, {r}, v{NM_+4*((i//4) % 2)}" for i, r in enumerate(reg)]
    fills[15] += sub[:2]
    for e in range(16):
        fills[16+e] += [el[e][0]] + ([sub[e+2]] if e + 2 < 16 else []) + (el[e-1][1] if e else [])
    for f in range(7): fills[2*(8+f)+3].insert(0, rd(f, vKr, 16384 + f*1024))
    pro += weave(qk(0, 0, True) + qk(1, 8, False), fills, pre)
    pro += ADV + el[15][1] + cfg["stp"].hist(1) + cfg.get("pro_wait", lambda k, g: [])(k, grp) + cfg["stp"].hist(1) + ["s_barrier"] + cfg.get("pro_hook", lambda k, g: [])(k, grp)
    if grp == 0:
        pro += [DS(f"ds_write_b32 v19, v{NM_}"), DS(f"ds_write_b32 v19, v{NM_+4} offset:4")]
    return pro

def p3_pro_old(k, cfg, grp):
    pro = [rd(f, vKr, f*1024) for f in range(8)]
    m0 = qk(0, 0, True); m1 = qk(1, 8, True)
    zl = zero(O_, 64) + zero(L_, 8)
    fills = [[] for _ in range(32)]; pre = {}
    for p in range(16):
        pre[2*p] = [Need("ds", [("r", p % 8)])]
        if p < 8: fills[2*p+1].append(rd(p+8, vKr, (p+8)*1024))
    if cfg.get("pz") == "1": pro += zl
    else:
        for i, z in enumerate(zl): fills[i * 20 // len(zl)].append(z)
    if grp == 1:
        fills[20] += ool(k, ["s_add_u32 s36, s30, s50", "s_cmp_eq_u32 s36, 0"], "s_cbranch_scc1", maskblk(k, 0, "s36", True))
    x = [f"v{T_+2}", f"v{T_+3}"]; t = [f"v{T_+4}", f"v{T_+5}"]
    for qb in range(2):
        a = Sreg(0, qb, 0)
        ch = [f"v_max3_f32 {x[qb]}, v{a}, v{a+1}, v{a+2}", f"v_max3_f32 {x[qb]}, {x[qb]}, v{a+3}, v{a+4}",
              f"v_max3_f32 {x[qb]}, {x[qb]}, v{a+5}, v{a+6}", f"v_max_f32 {x[qb]}, {x[qb]}, v{a+7}",
              f"v_mov_b32 {t[qb]}, {x[qb]}", f"v_permlane16_swap_b32 {x[qb]}, {t[qb]}", f"v_max_f32 {x[qb]}, {x[qb]}, {t[qb]}",
              f"v_mov_b32 {t[qb]}, {x[qb]}", f"v_permlane32_swap_b32 {x[qb]}, {t[qb]}", f"v_max_f32 {x[qb]}, {x[qb]}, {t[qb]}"]
        for i, c in enumerate(ch): fills[21+i].append(c)
        fills[31] += [f"v_sub_f32 v{NM_+4*qb+e}, 0, {x[qb]}" for e in range(4)]
    pro += weave(m0 + m1, fills, pre)
    pro += ADV + cfg.get("pro_wait", lambda k, g: [])(k, grp) + ["s_barrier"] + cfg.get("pro_hook", lambda k, g: [])(k, grp) + [rd(f, vKr, f*1024) for f in range(7)]
    if grp == 0:
        pro += [DS(f"ds_write_b32 v19, v{NM_}"), DS(f"ds_write_b32 v19, v{NM_+4} offset:4")]
    for buf in range(2):
        for qb in range(2):
            a = Sreg(buf, qb, 0)
            pro += [f"v_pk_add_f32 {v(a+e,2)}, {v(a+e,2)}, {v(NM_+4*qb,2)}" for e in range(0, 8, 2)]
    el = sm_elems(0)
    pro += [e[0] for e in el] + [e[1] for e in el]
    return pro

def p3_body(k, cfg, grp, qb0=Q_):
    M = qk(0, 0, False, qb0) + pv(0, 8) + qk(1, 16, False, qb0) + pv(1, 24)
    fills = [[] for _ in range(64)]; pre = {}
    def src(f):
        return (vKr, (f % 8)*1024 + (f // 16)*8192) if (f // 8) % 2 == 0 else (vVr, (f % 8)*1024 + (f // 16)*8192)
    wstep = int(cfg.get("wstep", 2))
    for p in range(32):
        if p % wstep == 0:
            pre[2*p] = [Need("ds", [("r", (p+i) % 8) for i in range(wstep)])]
    lag = int(cfg.get("lag", 0))
    for rnd in range(2):
        el = sm_elems(1 - rnd)
        for e in range(16):
            p = rnd*16 + e
            fills[2*p].append(el[e][0])
            fills[2*min(p+lag, rnd*16+15)+1] += (["s_nop 0"] if e == 15 and int(cfg.get("g3", 1)) > 1 else []) + el[e][1]
    for p in range(25):
        b, o = src(p + 7)
        fills[2*p+1].insert(0, rd(p+7, b, o))
    last = ["s_mov_b32 s41, 65536", "s_mov_b32 s49, 0x1ffff"]
    l1, l2, l3 = k.newlabel("r"), k.newlabel("r"), k.newlabel("r")
    if grp == 0:
        r32 = ["s_mov_b32 s41, 32768", "s_cmp_eq_u32 s40, 15", f"s_cbranch_scc0 {l1}"] + last + ["s_sub_u32 s36, 0, s50"] + maskblk(k, 0, "s36", True) + [l1 + ":"]
        pre[32] = ool(k, ["s_bitcmp1_b32 s31, s40"], "s_cbranch_scc1", r32) + pre[32]
    else:
        r0 = ["s_add_u32 s36, s40, 1", "s_sub_u32 s36, s36, s51", "s_cmp_lt_u32 s36, 2", f"s_cbranch_scc0 {l1}", "s_lshl_b32 s36, s36, 6",
              "s_add_u32 s36, s36, 32", "s_sub_u32 s36, s36, s50"] + maskblk(k, 1, "s36", True) + [l1 + ":"]
        hp = [f"s_setprio {cfg['bp_']}"] if cfg.get("bp_") else []
        lp = ["s_setprio 0"] if cfg.get("bp_") else []
        pre[0] = ool(k, ["s_bitcmp1_b32 s46, s40"], "s_cbranch_scc1", hp + r0 + lp) + pre[0]
        r32 = ["s_add_u32 s36, s40, 2", "s_sub_u32 s36, s36, s51", "s_cmp_eq_u32 s36, 1", "s_cselect_b32 s41, 0x8000, s41",
               "s_cmp_eq_u32 s40, 15", f"s_cbranch_scc0 {l2}"] + last + ["s_mov_b32 s36, 1", l2 + ":",
               "s_cmp_lt_u32 s36, 2", f"s_cbranch_scc0 {l3}", "s_lshl_b32 s36, s36, 6", "s_sub_u32 s36, s36, s50"] + maskblk(k, 0, "s36", True) + [l3 + ":"]
        mp = int(cfg.get("mp", 32))
        pre[mp] = ool(k, ["s_bitcmp1_b32 s47, s40"], "s_cbranch_scc1", hp + r32 + lp) + pre[mp]
    lr = k.newlabel("rlx")
    if cfg.get("np3"):
        lw = int(cfg["np3"])
        if grp == 0: fills[2*23+1] += ["s_add_u32 s40, s40, 1"]
        fills[2*20+1] += [f"v_add_u32 v{T_+2}, 65536, {vKr}"]; fills[2*22+1] += ADV[1:]
        fills[2*24+1] += [f"v_mov_b32 {vVr}, v{T_+2}"]
        wt = [f"s_waitcnt vmcnt(8) lgkmcnt({lw})", "s_cmp_le_u32 s40, s51", f"s_cbranch_scc1 {lr}", "s_waitcnt vmcnt(0)", lr + ":"]
        fills[2*25] += (wt if grp == 0 else [f"s_waitcnt lgkmcnt({lw})"]) + cfg.get("bar_hook", lambda k, g: [])(k, grp) + ["s_barrier"]
        for f in range(7): fills[2*(25+f)+1].insert(0, rd(f, vKr, f*1024))
    else:
        if grp == 0: fills[2*26] += ["s_add_u32 s40, s40, 1"]
        fills[2*25+1] += ADV[:2]; fills[2*26] += ADV[2:]
        bp = 26
        wt = ["s_waitcnt vmcnt(8) lgkmcnt(0)", "s_cmp_le_u32 s40, s51", f"s_cbranch_scc1 {lr}", "s_waitcnt vmcnt(0)", lr + ":"]
        fills[2*bp+1] += (wt if grp == 0 else ["s_waitcnt lgkmcnt(0)"]) + cfg.get("bar_hook", lambda k, g: [])(k, grp) + ["s_barrier"]
        nx = {27: [0, 1], 28: [2, 3], 29: [4], 30: [5], 31: [6]}
        for p, fl in nx.items():
            for f in fl: fills[2*p+1].insert(0, rd(f, vKr, f*1024))
    if grp == 0 and not cfg.get("nodma"):
        cs = int(cfg.get("cs", 4)); d0 = int(cfg.get("d0", 0)); dsp = float(cfg.get("dsp", 4))
        for c, cl in enumerate(dma_clumps(k, cs)):
            fills[2*int(d0 + c*dsp)+1] += cl
    if grp == 1: fills[int(cfg.get("btp", 24))] += cfg.get("b_inline", [])
    body = weave(M, fills, pre, int(cfg.get("g3", 1)))
    ab = cfg.get("ab", "")
    if ab:
        body = flat(body)
        S_ = lambda x, p: isinstance(x, str) and x.startswith(p)
        if "e" in ab: body = [x for x in body if not S_(x, "v_exp")]
        if "c" in ab: body = [x for x in body if not S_(x, "v_cvt")]
        if "b" in ab: body = [x for x in body if not S_(x, "s_barrier")]
        if "r" in ab: body = [x for x in body if not isinstance(x, (Op, Need))]
        if "o" in ab: body = [x for x in body if not (S_(x, "v_mfma") and f"v[{ONE}:{ONE+3}]" in x)]
        if "m" in ab: body = [x.replace("v_exp_f32", "v_mov_b32") if isinstance(x, str) else x for x in body]
    return body

def p3_tail(k, cfg, grp):
    M = pv(0, 0) + pv(1, 8)
    fills = [[] for _ in range(32)]; pre = {}
    for p in range(16):
        pre[2*p] = [Need("ds", [("r", p % 8)])]
        if p + 7 < 16: fills[2*p+1].insert(0, rd(p+7, vVr, (p+7)*1024))
    el = sm_elems(1)
    for e in range(16):
        fills[e].append(el[e][0])
        fills[e+1 if e < 15 else 15] += (["s_nop 0"] if e == 15 else []) + el[e][1]
    pre[16] = ["s_nop 1"] + pre[16]
    wr = [DS(f"ds_write_b128 v5, {v(Oreg(1-grp,db),4)} offset:{db*1024}") for db in range(8)]
    for db in range(4): fills[2*(8+db+4)+1] += [wr[db]]
    extra = cfg.get("tail_extra", lambda k, g: [])(k, grp)
    for i, x in enumerate(extra): fills[16 + i * 8 // len(extra)] += x
    tail = [f"s_sub_u32 s36, {32 + 64*grp}, s50"] + maskblk(k, 1, "s36") + ["s_lshl_b32 s37, s28, 13", f"v_add_u32 v5, s37, {vL16}"] + \
           weave(M, fills, pre) + wr[4:6]
    return tail

def lcheck(k, l):
    k.e(f"v_cmp_nge_f32 vcc, s36, {l}")
    k.e("s_nop 0")
    k.e("s_or_b64 s[52:53], s[52:53], vcc")

def ctx_base(k, sblk, add):
    k.e(f"s_lshl_b32 s38, {sblk}, 3")
    k.e("s_and_b32 s37, s28, 3")
    k.e("s_lshl_b32 s37, s37, 1")
    k.e("s_add_u32 s38, s38, s37")
    if add: k.e(f"s_add_u32 s38, s38, {add}")
    k.e("s_lshl_b32 s38, s38, 17")
    k.e("s_lshl_b32 s37, s29, 12")
    k.e("s_add_u32 s38, s38, s37")

def epi_own(k, cfg, sblk, fast):
    if fast: k.e("s_nop 4")
    else:
        for qb in range(2): k.e(rowred("v_add_f32", f"v{L_+4*qb}", f"v{T_}"))
    k.e("s_mov_b32 s36, 0x5d800000")
    for qb in range(2): lcheck(k, f"v{L_+4*qb}")
    for qb in range(2): k.e(f"v_rcp_f32 v{T_+2*qb}, v{L_+4*qb}")
    ctx_base(k, sblk, 0)
    for qb in range(2): k.e(f"v_mov_b32 v{T_+2*qb+1}, v{T_+2*qb}")
    k.e([f"v_mov_b32 v{T_+4}, {vL16}"] + hole("c", f"v{T_+4}"))
    il = fast and cfg.get("eil")
    for qb in range(2):
        for sg in range(4):
            a = Oreg(qb, 2*sg)
            k.e(pkmul(a, 8, T_+2*qb))
            for q in range(4): k.e(f"v_cvt_pk_bf16_f32 v{a+q}, v{a+2*q}, v{a+2*q+1}")
            k.e(f"buffer_store_dwordx4 {v(a,4)}, v{T_+4}, s[16:19], s38 offen offset:{sg*1024}{cfg.get('stflag','')}")
            if il: k.e([f"v_mov_b32 v{a+e}, 0" for e in (4, 5, 6, 7, 0, 1, 2, 3)] + [f"v_mov_b32 v{L_+4*qb+sg}, 0"])
        if qb == 0: k.e(f"s_add_u32 s38, s38, {1<<17}")
    if fast and not il: k.e(zero(L_, 8) + zero(O_, 64))

def merge(k, cfg, kh):
    T_ = 104
    t = [f"v{T_+i}" for i in range(18)]
    o = 1 - kh
    k.e(f"v_xor_b32 {t[2]}, 32768, v5")
    k.e("s_lshl_b32 s37, s28, 8")
    k.e(f"s_add_u32 s37, s37, {LDS_MSG}")
    k.e(f"v_lshl_add_u32 {t[3]}, v1, 2, s37")
    k.e(f"v_xor_b32 {t[4]}, 1024, {t[3]}")
    for db in range(6, 8):
        k.e(f"ds_write_b128 v5, {v(Oreg(o,db),4)} offset:{db*1024}")
    k.e(f"ds_write_b32 {t[3]}, v{L_+4*o}")
    k.e("s_mov_b32 s36, 0x5d800000")
    for qb in range(2): lcheck(k, f"v{L_+4*qb}")
    k.e("s_or_b32 s36, s52, s53")
    k.e(f"v_mov_b32 {t[6]}, s36")
    k.e("s_lshl_b32 s37, s28, 2")
    k.e(f"s_add_u32 s37, s37, {LDS_MSG+2048}")
    k.e(f"v_mov_b32 {t[7]}, s37")
    k.e(f"ds_write_b32 {t[7]}, {t[6]}")
    k.e(f"v_mov_b32 {t[8]}, {LDS_MSG+2112}")
    if kh == 0 and cfg.get("share"):
        for i in range(4): k.e(f"v_mov_b32 v{T_+10+i}, s{56+i}")
        k.e(f"ds_write_b128 {t[8]}, {v(T_+10,4)}")
    k.e(f"v_and_b32 {t[7]}, 7, v1")
    k.e(f"v_lshlrev_b32 {t[7]}, 2, {t[7]}")
    k.e(f"v_add_u32 {t[7]}, {LDS_MSG+2048}, {t[7]}")
    k.e([f"v_mov_b32 {t[9]}, {vL16}"] + hole("c", t[9]))
    k.e("s_sub_u32 s36, 15, s30")
    ctx_base(k, "s36", kh)
    cfg.get("before_merge", lambda k: None)(k)
    k.e("s_waitcnt lgkmcnt(0)")
    k.e("s_barrier")
    if kh == 1 and cfg.get("share"): k.e(f"ds_read_b128 {v(T_+10,4)}, {t[8]}")
    k.e(f"ds_read_b32 {t[6]}, {t[7]}")
    k.e(f"ds_read_b32 {t[5]}, {t[4]}")
    for db in range(8):
        k.e(f"ds_read_b128 {v(RG_+4*db,4)}, {t[2]} offset:{db*1024}")
    k.e("s_waitcnt lgkmcnt(8)")
    k.e(f"v_add_f32 {t[5]}, {t[5]}, v{L_+4*kh}")
    k.e(f"v_cmp_ne_u32 s[52:53], 0, {t[6]}")
    if kh == 1 and cfg.get("share"):
        for i in range(4): k.e(f"v_readfirstlane_b32 s{56+i}, v{T_+10+i}")
    k.e(f"v_rcp_f32 {t[5]}, {t[5]}")
    k.e("s_nop 0")
    k.e(f"v_mov_b32 {t[4]}, {t[5]}")
    for sg in range(4):
        k.e(f"s_waitcnt lgkmcnt({6-2*sg})")
        a = Oreg(kh, 2*sg)
        for e in range(0, 8, 2): k.e(f"v_pk_add_f32 {v(a+e,2)}, {v(a+e,2)}, {v(RG_+8*sg+e,2)}")
        k.e(pkmul(a, 8, T_+4))
        for q in range(4): k.e(f"v_cvt_pk_bf16_f32 v{P_+4*sg+q}, v{a+2*q}, v{a+2*q+1}")
        k.e(f"buffer_store_dwordx4 {v(P_+4*sg,4)}, {t[9]}, s[16:19], s38 offen offset:{sg*1024}{cfg.get('stflag','')}")

def safe_path(k, cfg, grp):
    M_ = NM_
    t = [f"v{T_+i}" for i in range(18)]
    if grp == 1 and cfg.get("dup", "1") != "1":
        for r in range(32): k.e(f"v_swap_b32 v{Q_+r}, v{QS_+r}")
    for r in range(64): k.e(f"v_mov_b32 v{O_+r}, 0")
    for qb in range(2):
        k.e(f"v_mov_b32 v{L_+4*qb}, 0")
        k.e(f"v_mov_b32 v{M_+qb}, {NEGBIG}")
    k.e("s_lshl_b32 s43, s28, 12")
    k.e(f"v_add_u32 {vD}, s43, {vL16}")
    k.e(hole("k", vD))
    k.e("s_mov_b32 s46, s45")
    k.e("s_sub_u32 s40, 16, s30")
    k.e("s_sub_u32 s39, 15, s30" if grp == 0 else "s_mov_b32 s39, s30")
    k.e("s_lshl_b32 s37, s39, 7")
    k.e("s_and_b32 s36, s28, 3")
    k.e("s_lshl_b32 s36, s36, 5")
    k.e("s_add_u32 s36, s36, s37")
    k.e("s_sub_u32 s50, 0, s36")
    lt, lu, ln_ = k.newlabel("stile"), k.newlabel("sunit"), k.newlabel("snext")
    k.label(lt)
    k.e("s_waitcnt vmcnt(0) lgkmcnt(0)")
    k.e("s_barrier")
    k.e("s_mov_b32 m0, s43")
    k.e("s_add_u32 s47, s46, 32768")
    for j in range(4): k.e(f"buffer_load_dwordx4 {vD}, s[12:15], s46 offen offset:{j*1024} sc1 lds")
    k.e("s_add_u32 m0, s43, 32768")
    k.e("s_add_u32 s46, s46, 65536")
    for j in range(4): k.e(f"buffer_load_dwordx4 {vD}, s[12:15], s47 offen offset:{j*1024} sc1 lds")
    k.e(f"v_mov_b32 {vKr}, {vL16}")
    k.e("s_mov_b32 s41, 4")
    k.e("s_waitcnt vmcnt(0)")
    k.e("s_barrier")
    k.label(lu)
    k.e("s_cmp_gt_i32 s50, 0")
    k.e(f"s_cbranch_scc1 {ln_}")
    for f in range(8): k.e(f"ds_read_b128 {v(RG_+4*f,4)}, {vKr} offset:{f*1024}")
    k.e("s_waitcnt lgkmcnt(0)")
    k.e(qk(0, 0, True))
    for f in range(8): k.e(f"ds_read_b128 {v(RG_+4*f,4)}, {vKr} offset:{32768+f*1024}")
    k.e("s_nop 1")
    emit(k, maskblk(k, 0, "s50"))
    for qb in range(2):
        a = Sreg(0, qb, 0); x = t[2+qb]
        k.e([f"v_max3_f32 {x}, v{a}, v{a+1}, v{a+2}", f"v_max3_f32 {x}, {x}, v{a+3}, v{a+4}",
             f"v_max3_f32 {x}, {x}, v{a+5}, v{a+6}", f"v_max3_f32 {x}, {x}, v{a+7}, v{M_+qb}"])
        k.e(rowred("v_max_f32", x, t[4]))
        k.e(f"v_sub_f32 {t[5]}, v{M_+qb}, {x}")
        k.e(f"v_exp_f32 {t[5]}, {t[5]}")
        k.e(f"v_mov_b32 v{M_+qb}, {x}")
        k.e(f"v_mul_f32 v{L_+4*qb}, v{L_+4*qb}, {t[5]}")
        for r in range(32): k.e(f"v_mul_f32 v{Oreg(qb,0)+r}, v{Oreg(qb,0)+r}, {t[5]}")
        for e in range(8): k.e(f"v_sub_f32 v{a+e}, v{a+e}, {x}")
    el = sm_elems(0, True)
    for e in range(16): k.e(el[e][0])
    for e in range(16): k.e(el[e][1])
    k.e("s_waitcnt lgkmcnt(0)")
    k.e("s_nop 0")
    k.e(pv(0, 0, False))
    k.label(ln_)
    k.e(f"v_add_u32 {vKr}, 8192, {vKr}")
    k.e("s_add_u32 s50, s50, 32")
    k.e("s_sub_u32 s41, s41, 1")
    k.e("s_cmp_lg_u32 s41, 0")
    k.e(f"s_cbranch_scc1 {lu}")
    k.e("s_sub_u32 s40, s40, 1")
    k.e("s_cmp_lg_u32 s40, 0")
    k.e(f"s_cbranch_scc1 {lt}")
    epi_own(k, cfg, "s39", False)

def gen_p3(k, cfg, grp, st, after_q=None, before_tail=None):
    n0 = st.n
    q_pack(k, grp, cfg.get('qwait', 0), cfg.get('qdone', ()), cfg.get('dup', '1') == '1')
    st.mark()
    dup = grp == 1 and cfg.get("dup", "1") == "1"
    pro, body, tail = p3_pro(k, cfg, grp), p3_body(k, cfg, grp), p3_tail(k, cfg, grp)
    body2 = p3_body(k, cfg, grp, QS_) if dup else body
    sw = []
    if grp == 1:
        if not dup: sw = [f"v_swap_b32 v{Q_+r}, v{QS_+r}" for r in range(32)]
        sw += [f"v_mov_b32 v{NM_+r}, v{14+r//4}" for r in range(8)] + ["s_nop 1"]
    qs = [f"ds_read_b128 {v(QS_+4*f,4)}, v19 offset:{f*1024}" for f in range(8)] if grp == 1 else []
    resolve([[pro[:8], qs, pro[8:], body, body, body2, body2, body2, tail], [pro[:8], qs, pro[8:], body, body2, tail]])
    emit(k, pro[:8] + qs + [f"v_mov_b32 v{ONE+r}, 0x3f803f80" for r in range(4)])
    if after_q: after_q(k, grp)
    emit(k, pro[8:])
    st.mark()
    for ph in range(2 if dup else 1):
        lb = f"L_body{grp}{ph}"
        k.align(6)
        k.label(lb)
        emit(k, body2 if ph else body)
        if grp == 1:
            l1, l2, l3 = k.newlabel("nm"), k.newlabel("ns"), k.newlabel("ne")
            post = cfg.get("b_hook", lambda k: [])(k)
            if ph == 0: post += ["s_cmp_eq_u32 s40, 0", f"s_cbranch_scc0 {l1}", "ds_read_b64 v[14:15], v19", "s_waitcnt lgkmcnt(0)", l1 + ":"]
            if not dup: post += ["s_add_u32 s36, s40, 1", "s_cmp_eq_u32 s36, s51", f"s_cbranch_scc0 {l2}"] + sw + [l2 + ":"]
            if ph == 1 or not dup:
                ke = K(k.name + "_epi")
                epi_own(ke, cfg, "s30", True)
                post += ["s_cmp_eq_u32 s40, s51", f"s_cbranch_scc0 {l3}"] + [x.strip() for x in ke.lines] + [l3 + ":"]
            emit(k, ool(k, ["s_bitcmp1_b32 s42, s40"], "s_cbranch_scc1", post))
            k.e("s_add_u32 s40, s40, 1")
        if cfg.get("sth3"): k.e(cfg["sth3"].hist(9, first=(grp == 0)))
        k.e("s_cmp_lg_u32 s40, s51" if dup and ph == 0 else "s_cmp_lg_u32 s40, 16")
        k.e(f"s_cbranch_scc1 {lb}")
        if dup and ph == 0: k.e(sw)
    st.mark()
    if before_tail: before_tail(k, grp)
    emit(k, tail)
    st.mark()
    merge(k, cfg, grp)
    st.mark()
    k.e("s_cmp_eq_u64 s[52:53], 0")
    k.e("s_cbranch_scc1 L_p3_done")
    if cfg.get("dbgsafe"):
        k.e("s_load_dwordx2 s[20:21], s[0:1], 96")
        k.e("s_waitcnt lgkmcnt(0)")
        k.e("v_mov_b32 v20, 0"); k.e("v_mov_b32 v21, 1")
        k.e("s_mov_b64 exec, 1")
        k.e("global_atomic_add v20, v21, s[20:21]")
        k.e("s_mov_b64 exec, -1")
    k.e("s_waitcnt vmcnt(0)")
    for r in range(8): k.e(f"v_mov_b32 v{S_+16+r}, v{S_+r}")
    safe_path(k, cfg, grp)
    for r in range(8): k.e(f"v_mov_b32 v{S_+r}, v{S_+16+r}")
    if grp == 0: st.n = n0

def gen_attn(cfg=None):
    cfg = cfg or {}
    k = K("attn_kernel")
    k.e("s_cmp_ge_u32 s2, 256")
    k.e("s_cbranch_scc1 L_attn_end")
    st = Stamps(k, cfg.get("stamp"), kid=1)
    st.mark()
    k.e("s_load_dwordx2 s[50:51], s[0:1], 16")
    k.e("s_load_dwordx2 s[54:55], s[0:1], 104")
    k.e("v_and_b32 v1, 63, v0")
    k.e("v_lshrrev_b32 v16, 6, v0")
    k.e("s_and_b32 s29, s2, 7")
    k.e("v_readfirstlane_b32 s28, v16")
    k.e("s_lshl_b32 s29, s29, 2")
    k.e("s_bfe_u32 s36, s2, 0x20003")
    k.e("s_add_u32 s29, s29, s36")
    k.e("s_lshr_b32 s30, s2, 5")
    p2_setup(k)
    k.e("s_waitcnt lgkmcnt(0)")
    srd(k, 4, 54, 4194304)
    srd(k, 8, 50, 8388608)
    pro, pro2, kvpre, body = p2_pieces(cfg)
    resolve([[pro, pro2, body, body, body, kvpre, body]])
    emit(k, pro)
    srd(k, 12, 54, 33554432, WS_KV)
    srd(k, 16, 54, 16777216, WS_CTX)
    p2_setup2(k)
    st.mark()
    emit(k, pro2)
    st.mark()
    k.align(6)
    k.label("L_p2_loop")
    k.e("s_cmp_lg_u32 s35, 3")
    k.e("s_cbranch_scc1 L_p2_nokv")
    emit(k, kvpre)
    k.label("L_p2_nokv")
    emit(k, body)
    k.e("s_add_u32 s35, s35, 1")
    k.e("s_cmp_lt_u32 s35, 4")
    k.e("s_cbranch_scc1 L_p2_loop")
    st.mark()
    k.e("s_cmp_lt_u32 s28, 4")
    k.e("s_cbranch_scc0 L_grp1")
    gen_p3(k, cfg, 0, st)
    k.e("s_branch L_p3_done")
    flush_ool(k)
    k.label("L_grp1")
    gen_p3(k, cfg, 1, st)
    k.e("s_branch L_p3_done")
    flush_ool(k)
    k.label("L_p3_done")
    st.dump(54, "s28")
    k.label("L_attn_end")
    return wrap(k, 256)
```

```python
from common import *
import attn as A
import ffn as F

WS_CNT = 59 << 20
CNT_KV, CNT_CTX, CNT_F1, CNT_F2, CNT_KV0, CNT_EX, CNT_LN = 0, 32, 48, 96, 64, 128, 112
WS_EX = 64 << 20
SC = " sc1"
LDS_X = 131072

def NT(cfg, key):
    return " nt" if key in cfg.get("nt", "") else ""

def lines(fn, *a, **kw):
    t = K("tmp"); fn(t, *a, **kw); return [x.strip() for x in t.lines]

def signal(saddr_pair, off, t0, t1):
    return [f"v_mov_b32 {t0}, {off}", f"v_mov_b32 {t1}, 1", "s_mov_b64 exec, 1",
            f"global_atomic_add {t0}, {t1}, {saddr_pair}", "s_mov_b64 exec, -1", "s_nop 3"]

def switch(k, sreg, cases):
    L = []
    lend = k.newlabel("swend")
    for i, (val, items) in enumerate(cases):
        if i + 1 < len(cases):
            ln = k.newlabel("swn")
            L += [f"s_cmp_eq_u32 {sreg}, {val}", f"s_cbranch_scc0 {ln}"] + items + [f"s_branch {lend}", ln + ":"]
        else:
            L += items
    return L + [lend + ":"]

def guard(k, cond, br, items, key):
    l = k.newlabel("g")
    return Alt(cond + [f"{br} {l}"] + items + [l + ":"], lambda c: items if c[key] else [])

def spin(k, saddr, voff, vtmp, target, slp=8):
    l, le = k.newlabel("spin"), k.newlabel("spinx")
    return ["s_mov_b32 s61, 0x40000", l + ":", "s_sub_u32 s61, s61, 1", f"s_cbranch_scc1 {le}", f"s_sleep {slp}",
            f"global_load_dword {vtmp}, {voff}, {saddr} sc1", "s_waitcnt vmcnt(0)",
            f"v_readfirstlane_b32 s36, {vtmp}", "s_nop 0", f"s_cmp_lt_u32 s36, {target}", f"s_cbranch_scc1 {l}", le + ":"]

def check(k, saddr, voff, vtmp, target, slp=8):
    return A.ool(k, [f"v_readfirstlane_b32 s36, {vtmp}", "s_nop 0", f"s_cmp_lt_u32 s36, {target}"], "s_cbranch_scc1",
                 spin(k, saddr, voff, vtmp, target, slp))

def ln_check(k):
    l, le = k.newlabel("lspin"), k.newlabel("lspinx")
    return ["s_mov_b32 s61, 0x40000", l + ":", "v_cmp_gt_u32 vcc, 16, v116", "s_nop 0", "s_cmp_eq_u64 vcc, 0",
            f"s_cbranch_scc1 {le}", "s_sub_u32 s61, s61, 1", f"s_cbranch_scc1 {le}", "s_sleep 8",
            "global_load_dword v116, v117, s[90:91] sc1", "s_waitcnt vmcnt(0)", f"s_branch {l}", le + ":"]

def ln_row(X, XO, WR, Fr, T, SB, srow, sslot):
    k = K("t")
    t = [f"v{T+i}" for i in range(8)]
    for i in range(8):
        k.e(f"v_lshlrev_b32 v{Fr+2*i}, 16, v{X+i}")
        k.e(f"v_and_b32 v{Fr+2*i+1}, 0xffff0000, v{X+i}")
    P = lambda r: v(r, 2)
    k.e(f"v_pk_add_f32 {P(T)}, {P(Fr)}, {P(Fr+2)}")
    for i in range(2, 8): k.e(f"v_pk_add_f32 {P(T)}, {P(T)}, {P(Fr+2*i)}")
    k.e(f"v_add_f32 {t[0]}, {t[0]}, {t[1]}")
    wave_sum(k, t[0], t[4], SB)
    k.e(f"v_mul_f32 {t[4]}, 0xba800000, {t[4]}")
    k.e(f"v_mov_b32 {t[5]}, {t[4]}")
    for i in range(8):
        k.e(f"v_pk_add_f32 {P(T+2)}, {P(Fr+2*i)}, {P(T+4)}")
        k.e(f"v_pk_mul_f32 {P(T)}, {P(T+2)}, {P(T+2)}" if i == 0 else f"v_pk_fma_f32 {P(T)}, {P(T+2)}, {P(T+2)}, {P(T)}")
    k.e(f"v_add_f32 {t[0]}, {t[0]}, {t[1]}")
    wave_sum(k, t[0], t[2], SB)
    k.e(f"v_mul_f32 {t[2]}, 0x3a800000, {t[2]}")
    k.e(f"v_cvt_pk_bf16_f32 {t[3]}, {t[4]}, {t[2]}")
    k.e(f"v_lshlrev_b32 {t[4]}, 16, {t[3]}")
    k.e(f"v_and_b32 {t[2]}, 0xffff0000, {t[3]}")
    k.e(f"v_add_f32 {t[2]}, 0x3727c5ac, {t[2]}")
    rbf(k, t[2])
    k.e(f"v_sqrt_f32 {t[2]}, {t[2]}")
    k.e(f"v_mov_b32 {t[5]}, {t[4]}")
    rbf(k, t[2])
    k.e(f"v_rcp_f32 {t[7]}, {t[2]}")
    k.e("s_nop 0")
    k.e(f"v_fma_f32 {t[3]}, -{t[2]}, {t[7]}, 1.0")
    k.e(f"v_fma_f32 {t[7]}, {t[3]}, {t[7]}, {t[7]}")
    k.e(f"v_mov_b32 {t[6]}, {t[7]}")
    for i in range(8):
        a, b = f"v{Fr+2*i}", f"v{Fr+2*i+1}"
        k.e(f"v_pk_add_f32 {P(Fr+2*i)}, {P(Fr+2*i)}, {P(T+4)}")
        k.e(f"v_cvt_pk_bf16_f32 {t[2]}, {a}, {b}")
        k.e(f"v_lshlrev_b32 {a}, 16, {t[2]}")
        k.e(f"v_and_b32 {b}, 0xffff0000, {t[2]}")
        k.e(f"v_pk_mul_f32 {P(Fr+2*i)}, {P(Fr+2*i)}, {P(T+6)}")
        k.e(f"v_cvt_pk_bf16_f32 v{XO+i}, {a}, {b}")
        k.e(f"v_lshlrev_b32 {a}, 16, v{XO+i}")
        k.e(f"v_and_b32 {b}, 0xffff0000, v{XO+i}")
        k.e(f"v_pk_mul_f32 {P(T)}, {P(Fr)}, {P(WR)}" if i == 0 else f"v_pk_fma_f32 {P(T)}, {P(Fr+2*i)}, {P(WR+2*i)}, {P(T)}")
    k.e(f"v_add_f32 {t[0]}, {t[0]}, {t[1]}")
    k.e(f"v_xor_b32 {t[6]}, 0x80000000, {t[4]}")
    k.e(f"s_mul_i32 s{SB}, {sslot}, 2064")
    k.e(f"s_add_u32 s{SB}, s{SB}, {LDS_X}")
    k.e(f"v_lshl_add_u32 {t[3]}, v1, 4, s{SB}")
    k.e(f"ds_write_b128 {t[3]}, {v(XO,4)}")
    k.e(f"ds_write_b128 {t[3]}, {v(XO+4,4)} offset:1024")
    wave_sum(k, t[0], t[1], SB)
    rbf(k, t[1])
    k.e(f"v_ashrrev_i32 {t[3]}, 31, {t[1]}")
    k.e(f"v_or_b32 {t[3]}, 0x80000000, {t[3]}")
    k.e(f"v_xor_b32 {t[3]}, {t[1]}, {t[3]}")
    k.e(f"v_and_b32 {t[3]}, 0xffff0000, {t[3]}")
    k.e(f"s_sub_u32 s{SB}, 0xffff, {srow}")
    k.e(f"v_or_b32 {t[3]}, s{SB}, {t[3]}")
    k.e(f"s_lshl_b32 s{SB+1}, {sslot}, 3")
    k.e(f"s_add_u32 s{SB+1}, s{SB+1}, {LDS_X + 16640}")
    k.e(f"v_mov_b32 {t[2]}, s{SB+1}")
    k.e(f"ds_write_b64 {t[2]}, {v(T+6,2)}")
    k.e(f"ds_write_b32 {t[2]}, {t[3]} offset:64")
    return [x.strip() for x in k.lines]

def zip2(a, b):
    out = []
    for x, y in zip(a, b):
        if x == "s_nop 0": continue
        if x == "s_nop 1": out.append("s_nop 0"); continue
        out += [x, y]
    return out

def ln_part3(T):
    t = [f"v{T+i}" for i in range(8)]
    L = [f"v_and_b32 {t[0]}, 7, v1", f"v_lshlrev_b32 {t[0]}, 3, {t[0]}", f"v_add_u32 {t[1]}, {LDS_X + 16640}, {t[0]}",
         f"ds_read_b64 {v(T+2,2)}, {t[1]}", f"ds_read_b32 {t[4]}, {t[1]} offset:64",
         "s_lshl_b32 s36, s2, 6", f"s_add_u32 s36, s36, {WS_ST}", "s_lshl_b32 s37, s2, 3", f"s_add_u32 s37, s37, {F.WS_KEY}",
         "s_waitcnt lgkmcnt(0)", f"v_mov_b32 {t[6]}, {t[4]}"]
    red = lambda x: flat([["s_nop 1", f"v_max_u32_dpp {x}, {x}, {x} {m} row_mask:0xf bank_mask:0xf"]
                          for m in ("quad_perm:[1,0,3,2]", "quad_perm:[2,3,0,1]", "row_half_mirror")])
    L += red(t[6]) + [f"v_cmp_eq_u32 vcc, {t[6]}, {t[4]}", "s_nop 1", f"v_cndmask_b32 {t[7]}, {t[4]}, v118, vcc"] + red(t[7])
    L += ["s_mov_b64 exec, 0xff", f"buffer_store_dwordx2 {v(T+2,2)}, {t[0]}, s[24:27], s36 offen{SC}",
          "s_mov_b64 exec, 1", f"buffer_store_dwordx2 {v(T+6,2)}, {t[0]}, s[24:27], s37 offen{SC}", "s_mov_b64 exec, -1", "s_nop 3"]
    return L

def ln_part2(k, X):
    t = ["v16", "v18", "v19"]
    k.e(f"v_and_b32 {t[0]}, 7, v1")
    k.e(f"v_lshrrev_b32 {t[1]}, 3, v1")
    k.e(f"v_mul_u32_u24 {t[2]}, 2064, {t[0]}")
    k.e(f"v_lshl_add_u32 {t[2]}, {t[1]}, 4, {t[2]}")
    k.e("s_lshl_b32 s36, s28, 8")
    k.e(f"s_add_u32 s36, s36, {LDS_X}")
    k.e(f"v_add_u32 {t[2]}, s36, {t[2]}")
    k.e(f"ds_read_b128 {v(X,4)}, {t[2]}")
    k.e(f"ds_read_b128 {v(X+4,4)}, {t[2]} offset:128")
    k.e(f"v_lshlrev_b32 {t[0]}, 4, {t[0]}")
    k.e(f"v_lshl_add_u32 {t[0]}, {t[1]}, 8, {t[0]}")
    k.e("s_lshr_b32 s36, s2, 1")
    k.e("s_lshl_b32 s36, s36, 15")
    k.e("s_and_b32 s37, s2, 1")
    k.e("s_lshl_b32 s37, s37, 7")
    k.e("s_add_u32 s36, s36, s37")
    k.e("s_lshl_b32 s37, s28, 12")
    k.e("s_add_u32 s36, s36, s37")
    if "x" in HOLE[0]:
        k.e("s_bitcmp1_b32 s2, 0")
        k.e(f"s_cselect_b32 s37, {DELTA}, 0")
        k.e("s_mov_b32 exec_lo, 0xff00")
        k.e("s_mov_b32 exec_hi, 0xff00")
        k.e(f"v_add_u32 {t[0]}, s37, {t[0]}")
        k.e("s_mov_b64 exec, -1")
    k.e("s_waitcnt lgkmcnt(0)")
    k.e(f"buffer_store_dwordx4 {v(X,4)}, {t[0]}, s[24:27], s36 offen{SC}")
    k.e(f"buffer_store_dwordx4 {v(X+4,4)}, {t[0]}, s[24:27], s36 offen offset:2048{SC}")

KP = 128
WF = 64
XF = [24, 96]
def xld2(xs, s_):
    return [VM(f"buffer_load_dwordx4 {v(XF[xs]+(s_*2+rb)*4,4)}, v{6+rb}, s[8:11], s32 offen offset:{s_*1024}{SC}", ("x", xs, s_)) for rb in range(2)]
vPOLL = "v56"
vZ = "v57"

def code_touch(k, a, dst):
    l = k.newlabel("pc")
    return ["s_getpc_b64 s[36:37]", l + ":", f"s_sub_u32 s36, s36, {l}-L_pc", "s_subb_u32 s37, s37, 0",
            "s_lshr_b32 s38, s2, 3", "s_lshl_b32 s38, s38, 7", f"v_lshl_add_u32 v{a}, v1, 12, s38", f"v_min_u32 v{a}, L_end-L_pc-4, v{a}",
            f"v_mov_b32 v{a+1}, s37", f"v_add_co_u32 v{a}, vcc, s36, v{a}", "s_mov_b64 exec, 0xffff", "s_nop 0",
            f"v_addc_co_u32 v{a+1}, vcc, 0, v{a+1}, vcc", f"global_load_dword {dst}, v[{a}:{a+1}], off", "s_mov_b64 exec, -1", "s_nop 1"]

def p1_retarget(cfg):
    L = ["v_lshrrev_b32 v3, 4, v1", "s_lshl_b32 s37, s28, 4", "v_add_u32 v19, s37, v3", "v_lshlrev_b32 v19, 13, v19",
         "s_lshl_b32 s37, s29, 8", "v_add_u32 v19, s37, v19", "v_and_b32 v16, 15, v1", "v_lshlrev_b32 v3, 1, v3",
         "v_xor_b32 v16, v16, v3", "v_lshl_add_u32 v2, v16, 4, v19", f"v_add_u32 v3, {32768-1024}, v2",
         "v_xor_b32 v16, 8, v16", "v_lshl_add_u32 v4, v16, 4, v19", f"v_add_u32 v4, {2*(32768-1024)}, v4",
         f"v_add_u32 v5, {32768-1024}, v4"]
    L += lines(srd, 4, 96, 8388608)
    L += ["s_mov_b32 s31, 0", f"s_mov_b32 s40, {128*8192}", "s_mov_b64 s[8:9], s[4:5]", "s_mov_b32 s10, s6", f"s_mov_b32 s32, {3*128*8192}"]
    L += [f"v_mov_b32 v{6+j}, v{2+j}" for j in range(4)]
    return L

def warm(w):
    return ["s_lshl_b32 s36, s2, 13", f"s_lshl_b32 s37, {w}, 11", "s_add_u32 s36, s36, s37", "v_lshl_add_u32 v16, v1, 7, s36",
            f"s_cmp_lt_u32 {w}, 2", "s_cselect_b64 s[38:39], s[48:49], s[50:51]",
            "s_lshr_b32 s36, s2, 3", "s_lshl_b32 s36, s36, 1", f"s_and_b32 s37, {w}, 1", "s_add_u32 s36, s36, s37", "s_lshl_b32 s36, s36, 16",
            "s_and_b32 s37, s29, 28", "s_lshl_b32 s37, s37, 8", "s_add_u32 s36, s36, s37",
            "s_sub_u32 s37, 256, s38", "s_and_b32 s37, s37, 0x300", "s_add_u32 s36, s36, s37", "v_lshrrev_b32 v18, 1, v1", "v_lshl_add_u32 v18, v18, 13, s36",
            "v_and_b32 v19, 1, v1", "v_lshl_add_u32 v18, v19, 7, v18",
            "s_mov_b64 exec, 0xffff", "global_load_dword v0, v16, s[46:47]", "global_load_dword v0, v18, s[38:39]", "s_mov_b64 exec, -1"]

W1 = []
def p1(k, cfg, st):
    cp = cfg.get("cp", "0")
    ACC = 128
    FR = [20, 68]
    XA, XB, WP, WR = 20, 28, 36, 44
    k.e("s_load_dwordx4 s[44:47], s[0:1], 0")
    k.e("s_load_dwordx2 s[52:53], s[0:1], 56")
    k.e("s_load_dwordx4 s[48:51], s[0:1], 24")
    k.e("s_getpc_b64 s[36:37]")
    k.label("L_pc")
    k.e("s_lshr_b32 s38, s2, 3")
    k.e("s_lshl_b32 s38, s38, 7")
    k.e("v_lshl_add_u32 v16, v0, 12, s38")
    k.e("v_cmp_gt_u32 vcc, L_end-L_pc-4, v16")
    k.e("v_mov_b32 v17, s37")
    k.e("s_and_b64 exec, exec, vcc")
    k.e("s_cbranch_execz L_nocpf")
    k.e("v_add_co_u32 v16, vcc, s36, v16")
    k.e("s_nop 1")
    k.e("v_addc_co_u32 v17, vcc, 0, v17, vcc")
    if not cfg.get("nocpf"): k.e("global_load_dword v119, v[16:17], off")
    k.label("L_nocpf")
    k.e("s_mov_b64 exec, -1")
    k.e("v_lshrrev_b32 v16, 6, v0")
    k.e("v_and_b32 v1, 63, v0")
    k.e("v_readfirstlane_b32 s28, v16")
    k.e("v_lshlrev_b32 v116, 4, v1")
    k.e("s_lshl_b32 s42, s2, 3")
    k.e("s_cmp_lt_u32 s28, 4")
    k.e("s_cbranch_scc1 L_nox")
    k.e("s_add_u32 s43, s42, s28")
    k.e("s_sub_u32 s42, s43, 4")
    k.e("v_lshl_add_u32 v18, s42, 11, v116")
    k.e("v_add_u32 v19, 8192, v18")
    k.e("s_waitcnt lgkmcnt(0)")
    for X_, a_ in ((XA, "v18"), (XB, "v19")):
        k.e(f"global_load_dwordx4 {v(X_,4)}, {a_}, s[44:45]{NT(cfg, 'x')}")
        k.e(f"global_load_dwordx4 {v(X_+4,4)}, {a_}, s[44:45] offset:1024{NT(cfg, 'x')}")
    k.e(f"global_load_dwordx4 {v(WP,4)}, v116, s[52:53]")
    k.e(f"global_load_dwordx4 {v(WP+4,4)}, v116, s[52:53] offset:1024")
    if not cfg.get("nob0"): k.e("s_barrier")
    k.label("L_nox")
    k.e("s_load_dwordx4 s[88:91], s[0:1], 96")
    k.e("s_load_dwordx4 s[92:95], s[0:1], 64")
    k.e("s_load_dwordx2 s[96:97], s[0:1], 16")
    if cfg.get("evn"):
        k.e("s_and_b32 s29, s2, 7")
        k.e("s_lshl_b32 s29, s29, 2")
        k.e(f"s_lshr_b32 s29, {cfg['evn']}, s29")
        k.e("s_and_b32 s29, s29, 7")
    else:
        k.e("s_and_b32 s29, s2, 7")
    k.e("s_lshl_b32 s29, s29, 2")
    k.e("s_bfe_u32 s36, s2, 0x20003")
    k.e("s_add_u32 s29, s29, s36")
    k.e("s_lshr_b32 s30, s2, 5")
    k.e("v_lshrrev_b32 v16, 3, v1")
    k.e("s_lshl_b32 s36, s30, 8")
    k.e("s_lshl_b32 s37, s28, 5")
    k.e("s_add_u32 s36, s36, s37")
    k.e("v_add_u32 v16, s36, v16")
    k.e("v_lshlrev_b32 v16, 10, v16")
    k.e("v_lshrrev_b32 v18, 4, v1")
    k.e("v_and_b32 v19, 7, v1")
    k.e("v_xor_b32 v19, v19, v18")
    k.e("v_lshl_add_u32 v2, v19, 4, v16")
    k.e("v_xor_b32 v19, 4, v19")
    k.e("v_lshl_add_u32 v3, v19, 4, v16")
    k.e(f"v_add_u32 v3, {8192-1024}, v3")
    k.e(f"v_add_u32 v4, {2*(8192-1024)}, v2")
    k.e(f"v_add_u32 v5, {2*(8192-1024)}, v3")
    k.e("s_and_b32 s36, s28, 3")
    k.e("s_lshl_b32 s37, s36, 4")
    k.e("v_add_u32 v16, s37, v18")
    k.e("v_lshlrev_b32 v16, 13, v16")
    k.e("s_lshl_b32 s37, s29, 8")
    k.e("v_add_u32 v16, s37, v16")
    k.e("v_and_b32 v19, 15, v1")
    k.e("v_lshlrev_b32 v18, 1, v18")
    k.e("v_xor_b32 v19, v19, v18")
    k.e("v_lshl_add_u32 v6, v19, 4, v16")
    k.e(f"v_add_u32 v7, {32768-1024}, v6")
    k.e("v_xor_b32 v19, 8, v19")
    k.e("v_lshl_add_u32 v8, v19, 4, v16")
    k.e(f"v_add_u32 v8, {2*(32768-1024)}, v8")
    k.e(f"v_add_u32 v9, {32768-1024}, v8")
    k.e("s_lshl_b32 s33, s28, 12")
    k.e("s_add_u32 s34, s33, 65536")
    k.e("s_mov_b32 s31, 0")
    k.e("s_mov_b32 s32, 0")
    k.e("s_mov_b32 s40, 128")
    k.e(f"s_mov_b32 s41, {64*8192}")
    def dma_list(stage):
        c = [f"buffer_load_dwordx4 v{2+j}, s[4:7], s31 offen offset:{j*1024}{NT(cfg, 'c')} lds" for j in range(4)]
        w = [f"buffer_load_dwordx4 v{6+j}, s[8:11], s32 offen offset:{j*1024}{NT(cfg, 'w')} lds" for j in range(4)]
        return f"s_add_u32 m0, s33, {stage*32768}", c, f"s_add_u32 m0, s34, {stage*32768}", w
    def dma_both(stage):
        mc, c, mw, w = dma_list(stage)
        k.e(mc); k.e(f"s_add_u32 s36, s31, {128*1024}"); k.e(c)
        k.e(mw); k.e("s_nop 0"); k.e(w)
        k.e(f"s_add_u32 m0, s33, {stage*32768+16384}"); k.e("s_nop 0"); k.e([x.replace("s31", "s36") for x in c])
        k.e(f"s_add_u32 m0, s34, {stage*32768+16384}"); k.e("s_nop 0"); k.e([x.replace("s[8:11]", "s[20:23]") for x in w])
        k.e("s_add_u32 s31, s31, s40")
        k.e("s_add_u32 s32, s32, s41")
    def setup_rest():
        k.e(f"s_add_u32 s54, s90, {int(cfg.get('wsoff', 0)) << 20}")
        k.e("s_addc_u32 s55, s91, 0")
        srd(k, 12, 54, 33554432 + DELTA, WS_KV)
        srd(k, 24, 54, (80 << 20) + DELTA)
        k.e(f"s_add_u32 s90, s54, {WS_CNT}")
        k.e("s_addc_u32 s91, s55, 0")
        k.e("v_and_b32 v16, 15, v1")
        k.e("v_lshrrev_b32 v17, 4, v1")
        k.e("s_bfe_u32 s36, s28, 0x10001")
        k.e("s_lshl_b32 s36, s36, 14")
        k.e("v_lshl_add_u32 v18, v16, 7, s36")
        k.e("v_lshrrev_b32 v19, 1, v16")
        k.e("v_xor_b32 v19, v19, v17")
        k.e("v_lshl_add_u32 v10, v19, 4, v18")
        k.e("v_xor_b32 v19, 4, v19")
        k.e("v_lshl_add_u32 v11, v19, 4, v18")
        k.e("v_lshrrev_b32 v16, 2, v16")
        k.e("v_lshl_add_u32 v18, v17, 3, v16")
        k.e("v_lshlrev_b32 v18, 8, v18")
        k.e("s_lshr_b32 s36, s28, 2")
        k.e("s_lshl_b32 s36, s36, 14")
        k.e("s_add_u32 s36, s36, 65536")
        k.e("v_add_u32 v18, s36, v18")
        k.e("v_and_b32 v19, 3, v1")
        k.e("v_lshl_add_u32 v18, v19, 3, v18")
        k.e("v_and_b32 v17, 1, v17")
        k.e("v_lshl_add_u32 v16, v17, 2, v16")
        k.e("s_and_b32 s36, s28, 1")
        k.e("s_lshl_b32 s36, s36, 2")
        for cb in range(4):
            k.e(f"s_add_u32 s37, s36, {cb}")
            k.e("v_xor_b32 v19, s37, v16")
            k.e(f"v_lshl_add_u32 v{12+cb}, v19, 5, v18")
        k.e(zero(ACC, 128))
        k.e("v_mov_b32 v118, 0")
        k.e("v_mov_b32 v117, 0")
        k.e(["s_lshr_b32 s36, s2, 3", "s_lshl_b32 s36, s36, 5", "s_lshl_b32 s37, s28, 2", "s_add_u32 s36, s36, s37", "s_lshl_b32 s36, s36, 13",
             "s_and_b32 s37, s29, 28", "s_lshl_b32 s37, s37, 8", "s_add_u32 s36, s36, s37",
             "s_add_u32 s16, s96, s36", "s_addc_u32 s17, s97, 0", "s_and_b32 s17, s17, 0xffff", f"s_mov_b32 s18, {3*8192+1024}", "s_mov_b32 s19, 0x20000",
             "v_cmp_gt_u32 vcc, 8, v1", "v_lshlrev_b32 v17, 7, v1", "v_mov_b32 v19, 0x100000", "v_cndmask_b32 v17, v19, v17, vcc", "s_mov_b32 s45, 0"])
    k.e("s_waitcnt lgkmcnt(0)")
    srd(k, 4, 46, 2097152)
    srd(k, 8, 48, 4194304)
    srd(k, 20, 50, 4194304)
    k.e("s_cmp_lt_u32 s28, 4")
    k.e("s_cbranch_scc0 L_pro_s")
    if not cfg.get("nob0"): k.e("s_barrier")
    emit(k, A.ool(k, ["s_cmp_eq_u32 s2, 0"], "s_cbranch_scc1",
                  ["s_mul_i32 s36, s28, 12288", f"s_add_u32 s36, s36, {WS_CNT + (int(cfg.get('wsoff', 0)) << 20)}", "v_lshl_add_u32 v16, v1, 4, s36",
                   "v_mov_b32 v108, 0", "v_mov_b32 v109, 0", "v_mov_b32 v110, 0", "v_mov_b32 v111, 0"] +
                  flat([[f"global_store_dwordx4 v16, v[108:111], s[90:91]{SC}", "v_add_u32 v16, 1024, v16"] for _ in range(12)])))
    dma_both(0)
    k.label("L_pro_s")
    st.mark()
    setup_rest()
    st.mark()
    k.e("s_cmp_lt_u32 s28, 4")
    k.e("s_cbranch_scc0 L_pro_b")
    if cp == "2": k.e(warm("s28"))
    dma_both(1)
    if cp == "0": k.e(warm("s28"))
    k.e(f"s_waitcnt vmcnt({16 + (2 if cp in '02' else 0)})")
    k.e("s_branch L_pro_j")
    k.label("L_pro_b")
    k.e("s_mov_b64 s[8:9], s[20:21]")
    k.e("s_mov_b32 s31, 256")
    k.e(f"s_mov_b32 s32, {2*64*8192}")
    k.e("s_and_b32 s60, s28, 3")
    if cp == "1": k.e(warm("s60"))
    if cfg.get("nodry"): k.e(f"s_waitcnt vmcnt({2 if cp == '1' else 0})")
    k.e(f"s_mov_b32 s3, {0 if cfg.get('nodry') else 0xD0}")
    k.label("L_ln")
    for i in range(8):
        k.e(f"v_lshlrev_b32 v{WR+2*i}, 16, v{WP+i}")
        k.e(f"v_and_b32 v{WR+2*i+1}, 0xffff0000, v{WP+i}")
    k.e(zip2(ln_row(XA, 108, WR, 60, 92, 36, "s42", "s60"), ln_row(XB, 120, WR, 76, 100, 56, "s43", "s28")))
    if cp == "3": k.e(warm("s60"))
    k.e("s_waitcnt lgkmcnt(0)" if cfg.get("nodry") else "s_waitcnt vmcnt(0) lgkmcnt(0)")
    k.e("s_cmp_eq_u32 s3, 0")
    k.e("s_mov_b32 s3, 0")
    k.e("s_cbranch_scc0 L_ln")
    k.label("L_pro_j")
    st.mark()
    def reads(s_, stage, fs):
        b = FR[fs]
        c = [f"ds_read_b128 {v(b+4*i,4)}, v{10+s_} offset:{stage*32768+i*2048}" for i in range(8)]
        w = [[f"ds_read_b64_tr_b16 {v(b+32+4*cb+2*t,2)}, v{12+cb} offset:{stage*32768+(32*s_+4*t)*256}" for t in range(2)] for cb in range(4)]
        return [c[0]] + w[0] + w[1] + w[2] + w[3] + c[1:]
    def accreg(i, cb, vtype):
        return ACC + ((cb*8+i) if vtype else (i*4+cb))*4
    def mfmas(fs, vtype):
        b = FR[fs]; L = []
        for i in range(8):
            for cb in range(4):
                a = accreg(i, cb, vtype)
                cf, wf = v(b+4*i, 4), v(b+32+4*cb, 4)
                Aop, Bop = (cf, wf) if vtype else (wf, cf)
                L.append(f"{MF} {v(a,4)}, {Aop}, {Bop}, {v(a,4)}")
        return L
    k.e("s_barrier")
    k.e(reads(0, 0, 0))
    emit(k, A.ool(k, ["s_add_u32 s36, s2, s28", "s_cmp_eq_u32 s36, 0"], "s_cbranch_scc1",
                  ["v_mov_b32 v19, 1", "s_mov_b64 exec, 1", "global_store_dword v118, v19, s[88:89] sc1", "s_mov_b64 exec, -1"]))
    st.mark()
    k.e("s_mov_b32 s35, 0")
    k.e("s_cmp_eq_u32 s28, 0")
    k.e("s_cselect_b32 s43, 9, 0")
    k.e("s_cselect_b32 s44, 2, 1")
    k.e("s_cmp_lt_u32 s28, 4")
    k.e("s_cbranch_scc0 L_kv_vloop")
    for vtype in range(2):
        lp = "L_kv_vloop" if vtype else "L_kv_kloop"
        k.align(6)
        k.label(lp)
        for stage in range(2):
            for s_ in range(2):
                fills = [[] for _ in range(32)]
                pre = []
                if s_ == 0:
                    k.e("s_waitcnt lgkmcnt(0)")
                    rd = reads(1, stage, 1)
                    if stage == 1 and vtype == 0:
                        fills[20] += A.ool(k, ["s_bitcmp1_b32 s43, s35"], "s_cbranch_scc1", switch(k, "s35", [
                            (0, ["global_load_dword v116, v118, s[88:89] sc1"]),
                            (3, ["v_and_b32 v117, 15, v1", f"v_add_u32 v117, {CNT_LN}, v117", "v_lshlrev_b32 v117, 7, v117",
                                 "global_load_dword v116, v117, s[90:91] sc1"])]))
                else:
                    nt = 0 if cfg.get("notouch") else 1
                    if vtype == 0 and stage == 0:
                        emit(k, A.ool(k, ["s_cmp_eq_u32 s35, 3"], "s_cbranch_scc1", p1_retarget(cfg)))
                    la, lb = k.newlabel("w0"), k.newlabel("w0b")
                    if stage == 1 and vtype == 0:
                        A.OOL.append([la + ":", "s_waitcnt vmcnt(0)"] + switch(k, "s35", [(0, check(k, "s[88:89]", "v118", "v116", 1)), (3, ln_check(k))]) + [f"s_branch {lb}"])
                        emit(k, ["s_bitcmp1_b32 s43, s35", f"s_cbranch_scc1 {la}", f"s_waitcnt vmcnt({nt})", lb + ":", "s_waitcnt lgkmcnt(0)"])
                    elif stage == 1:
                        k.e(f"s_waitcnt vmcnt({nt}) lgkmcnt(0)")
                    else:
                        A.OOL.append([la + ":"] + switch(k, "s35", [(0, (lines(ln_part2, 120) if vtype == 0 else []) + [f"s_waitcnt vmcnt({4 if cp == '0' else 2})"]), (1, [f"s_waitcnt vmcnt({nt+1})"])]) + [f"s_branch {lb}"])
                        emit(k, ["s_cmp_lt_u32 s35, s44", f"s_cbranch_scc1 {la}", f"s_waitcnt vmcnt({nt})", lb + ":", "s_waitcnt lgkmcnt(0)"])
                    if nt:
                        tp = int(cfg.get("tpos", 31))
                        fills[tp] += ["buffer_load_dword v0, v17, s[16:19], s45 offen", "s_add_u32 s45, s45, 8192"]
                    if stage == 0:
                        fills[26] += A.ool(k, ["s_cmp_eq_u32 s35, 3"], "s_cbranch_scc1", [f"s_add_u32 m0, s33, {LDS_X}", f"s_mov_b32 s36, {2 << 20}"] +
                                          [f"buffer_load_dwordx4 v{2+j}, s[4:7], s36 offen offset:{j*1024} lds" for j in range(4)])
                    if stage == 1: k.e("s_cmp_eq_u32 s35, 3")
                    k.e("s_barrier")
                    if stage == 1: k.e(f"s_cbranch_scc1 L_p1_fin{vtype}")
                    rd = reads(0, stage ^ 1, 0)
                    if stage == 1 and vtype == 0:
                        fills[30] += A.ool(k, ["s_add_u32 s36, s35, s28", "s_cmp_eq_u32 s36, 0"], "s_cbranch_scc1",
                                          ["s_lshr_b32 s36, s2, 4", f"s_add_u32 s36, s36, {CNT_LN}", "s_lshl_b32 s36, s36, 7"] + signal("s[90:91]", "s36", "v16", "v19"))
                for g in range(16): fills[g].append(rd[g])
                if s_ == 1:
                    mc, c, mw, w = dma_list(stage)
                    tail = ["s_add_u32 s31, s31, s40", "s_add_u32 s32, s32, s41"]
                    if vtype == 1:
                        pre = [mc, "s_nop 0"] + c + [mw, "s_nop 0"] + w + tail
                        if cfg.get("p1w"): pre = [mw, "s_nop 0"] + w + [mc, "s_nop 0"] + c + tail
                        if stage == 1:
                            pre += A.ool(k, ["s_cmp_eq_u32 s35, 2"], "s_cbranch_scc1", p1_retarget(cfg))
                        else:
                            l7 = k.newlabel("l7")
                            pre += A.ool(k, ["s_cmp_eq_u32 s35, 0"], "s_cbranch_scc1", lines(ln_part2, 120) +
                                         ["s_cmp_eq_u32 s28, 7", f"s_cbranch_scc0 {l7}"] + ln_part3(120) + [l7 + ":"])
                    else:
                        fills[0].append(mc)
                        ds_ = int(cfg.get("p1s", 3))
                        if cfg.get("p1w"): mc, mw, c, w = mw, mc, w, c; fills[0][-1] = mc
                        for j in range(4): fills[1+ds_*j].append(c[j])
                        fills[4*ds_].append(mw)
                        for j in range(4): fills[1+ds_*(4+j)].append(w[j])
                        fills[31] += tail
                ladder(fills, 0, 32, "1" in cfg.get("lad", ""), (3, 2) if s_ == 1 else (1, 0))
                emit(k, pre)
                emit(k, weave(mfmas(s_, vtype), fills, None, int(cfg.get('g1_', 1))))
                if s_ == 1: k.e(cfg["sth1"].hist(8, first=(vtype == 0 and stage == 0)))
        k.e("s_add_u32 s35, s35, 1")
        k.e(f"s_branch {lp}")
        k.label(f"L_p1_fin{vtype}")
        mc, c, mw, w = dma_list(1)
        head = lines(p2_setup) + lines(srd, 8, 54, 4194304 + DELTA)
        lds = flat([xld2(0, s_) for s_ in range(4)])
        W1[:] = [[mc, "s_add_u32 s32, s32, 4096"]] + [[x] for x in c]
        rest = lines(p2_setup2)
        fills = [[] for _ in range(32)]
        if vtype == 1: emit(k, head)
        else: fills[0] += head
        fs = int(cfg.get("fs", 4))
        for i, x in enumerate(lds): fills[1+fs*i] += [x]
        for i, x in enumerate(rest): fills[min(2+i, 31)] += [x]
        emit(k, weave(mfmas(1, vtype), fills))
        k.e(cfg["sth1"].hist(8, first=False))
        if vtype == 0: k.e("s_branch L_p1_done")
    k.label("L_p1_done")
    if cfg.get("diag") == "mfma":
        k.e("s_mov_b32 s35, 64")
        k.label("L_diag")
        for i in range(16): k.e(f"{MF} v[{56+4*(i&1)}:{59+4*(i&1)}], {v(68+4*(i%8),4)}, {v(100+4*(i//4),4)}, v[{56+4*(i&1)}:{59+4*(i&1)}]")
        k.e(["s_sub_u32 s35, s35, 1", "s_cmp_lg_u32 s35, 0", "s_cbranch_scc1 L_diag", "s_nop 7"])
    if cfg.get("diag") == "idle":
        k.e(f"s_mov_b32 s35, {cfg.get('idn', 256)}")
        k.label("L_diag")
        k.e(["s_nop 15"]*2 + ["s_sub_u32 s35, s35, 1", "s_cmp_lg_u32 s35, 0", "s_cbranch_scc1 L_diag"])

def kv_pack(k):
    for q in range(16):
        a = 128 + 8*q
        for e in range(4):
            k.e(f"v_cvt_pk_bf16_f32 v{KP+4*q+e}, v{a+2*e}, v{a+2*e+1}")
    k.e("s_lshl_b32 s38, s29, 20")
    k.e("s_lshl_b32 s37, s30, 17")
    k.e("s_add_u32 s38, s38, s37")
    k.e("s_bfe_u32 s37, s28, 0x10001")
    k.e("s_lshl_b32 s37, s37, 16")
    k.e("s_add_u32 s38, s38, s37")
    k.e("s_lshr_b32 s36, s28, 2")
    k.e("s_lshl_b32 s37, s36, 15")
    k.e("s_add_u32 s38, s38, s37")
    k.e("s_and_b32 s37, s28, 1")
    k.e("s_add_u32 s36, s36, 11")
    k.e("s_lshl_b32 s37, s37, s36")
    k.e("s_add_u32 s38, s38, s37")
    k.e("s_cmp_lt_u32 s28, 4")
    k.e("s_cselect_b32 s36, 4, 32")
    k.e("s_cselect_b32 s37, 16, 64")
    k.e("s_cselect_b32 s39, 32, 4")
    k.e("s_lshl_b32 s36, s36, 8")
    k.e("s_lshl_b32 s37, s37, 8")
    k.e("s_lshl_b32 s39, s39, 8")
    k.e("s_mov_b64 s[16:17], s[12:13]")
    k.e("s_mov_b64 s[18:19], s[14:15]")
    k.e("s_mov_b32 s46, s38")
    for g in range(1, 4): k.e(f"s_add_u32 s{46+g}, s{45+g}, s39")
    k.e("v_lshlrev_b32 v58, 4, v1")
    k.e(hole("k", "v58"))
    k.e("v_add_u32 v59, s36, v58")
    k.e("v_add_u32 v60, s37, v58")
    k.e("v_add_u32 v61, s36, v60")
    k.e("v_add_u32 v8, s33, v58")

def p2_setup(k):
    k.e("s_and_b32 s36, s28, 3")
    k.e("s_sub_u32 s37, 15, s30")
    k.e("s_cmp_lt_u32 s28, 4")
    k.e("s_cselect_b32 s37, s37, s30")
    k.e("s_lshl_b32 s37, s37, 2")
    k.e("s_add_u32 s37, s37, s36")
    k.e("s_lshl_b32 s37, s37, 16")
    k.e("v_lshl_add_u32 v6, v1, 4, s37")
    k.e(hole("x", "v6"))
    k.e("v_add_u32 v7, 32768, v6")
    k.e("s_mov_b32 s32, 0")

def p2_setup2(k):
    k.e("v_lshrrev_b32 v18, 4, v1")
    k.e("v_bfe_u32 v20, v1, 2, 2")
    k.e("v_lshl_add_u32 v19, v18, 3, v20")
    k.e("v_lshlrev_b32 v19, 8, v19")
    k.e("v_and_b32 v21, 3, v1")
    k.e("v_lshl_add_u32 v19, v21, 3, v19")
    k.e("v_and_b32 v21, 1, v18")
    k.e("v_lshl_add_u32 v20, v21, 2, v20")
    for db in range(8):
        k.e(f"v_xor_b32 v21, {db}, v20")
        k.e(f"v_lshl_add_u32 v{10+db}, v21, 5, v19")
    k.e("s_lshl_b32 s45, s29, 20")

SLOT = [0, 32768, LDS_X, 65536, 98304, 0, LDS_X, 32768]
WIN  = [0, 0, 98304, 65536, 65536, 0, 98304, 0]

def p2(k, cfg, st):
    D = 6
    NG = 512
    beta = {t: 64*t + 2*(32 - D) for t in (0, 1, 2, 3, 4, 5, 6)}
    if cfg.get("nob1"): del beta[1]
    qw = int(cfg.get("qw", 0))
    seq = [(g // 4, g % 4, db) for g in range(32 - qw) for db in range(8)]
    for c0 in (0, 4): seq += [(7, s_, db) for s_ in range(4 - qw, 4) for db in range(c0, c0 + 4)]
    use = {}
    for p, q in enumerate(seq): use.setdefault(q[:2], p)
    def wrd(f):
        t, s_, db = seq[f]
        return [DS(f"ds_read_b64_tr_b16 {v(WF+4*(f%8)+2*h,2)}, v{10+db} offset:{SLOT[t]-WIN[t]+(32*s_+4*h)*256}", ("w", f % 8)) for h in range(2)]
    def store(q):
        return VM(f"buffer_store_dwordx4 {v(KP+4*q,4)}, v{58+(q&3)}, s[16:19], s{46+q//4} offen{SC}", ("st", q))
    M, fills, pre = [], [[] for _ in range(NG)], {}
    for p in range(256):
        t, s_, db = seq[p]
        for rb in range(2):
            o = A.Oreg(rb, db)
            M.append(f"{MF} {v(o,4)}, {v(WF+4*(p%8),4)}, {v(XF[t&1]+(s_*2+rb)*4,4)}, {v(o,4) if p >= 8 else '0'}")
        if p % 2 == 0: pre[2*p] = [Need("ds", [("w", p % 8), ("w", p % 8 + 1)])]
        if use[(t, s_)] == p: pre[2*p] += [Need("vm", [("x", t & 1, s_)])]
        f = p + D
        if f < 256:
            r = wrd(f)
            fills[2*p] += [r[0]]; fills[2*p+1] += [r[1]]
            t2 = f // 32
            if f % 32 >= 24 and t2 < 7 and WIN[t2+1] != WIN[t2]:
                fills[2*p+1] += [f"v_add_u32 v{10+f%8}, {(WIN[t2+1]-WIN[t2]) & 0xffffffff}, v{10+f%8}"]
    XP = int(cfg.get("xpre", 1))
    L = int(cfg.get("xl", 56))
    cs = float(cfg.get("cst", 2.2))
    ops = []
    for t in range(1, 8):
        for s_ in range(4):
            if t == 1 and s_ < XP: continue
            for x in xld2(t & 1, s_): ops.append([max(0, 64*(t-2) + 16*(s_+1)), 2*use[(t, s_)] - L, 1.0, "x", t, x])
    free = {4: 0, 5: beta.get(1, beta[2]), 6: beta[3], 7: beta[2]}
    for t in range(4, 8):
        for j in range(4):
            ops.append([free[t], beta[t-1] - L - 8*(3-j), 0.85, "w", t, VM(f"buffer_load_dwordx4 v{2+j}, s[4:7], s31 offen offset:{j*1024} lds", ("W", t))])
    for i, t in enumerate((8, 9)):
        for j in range(4):
            ops.append([beta[6], beta[6] + 8*(4*i+j), 1.0, "w", t, VM(f"buffer_load_dwordx4 v8, s[12:15], s31 offen offset:{j*1024}{SC} lds", ("W", t))])
    send = int(cfg.get("send", 470))
    if not cfg.get("nokvst"):
        for q in range(16): ops.append([0, (q + 1) * send // 16, cs, "s", q, store(q)])
    rate = (NG - 12) / sum(o[2] for o in ops)
    g, cur = 1.0, {"x": 1, "w": None}
    pos = {}
    while ops:
        av = [o for o in ops if o[0] <= g]
        if not av:
            g = min(o[0] for o in ops); continue
        o = min(av, key=lambda o: o[1]); ops.remove(o)
        gi = min(int(g), NG - 1)
        if o[3] == "x" and cur["x"] != o[4]:
            fills[gi] += [f"s_mov_b32 s32, {o[4]*4096}"]; cur["x"] = o[4]
        if o[3] == "w" and cur["w"] != o[4]:
            t = o[4]; cur["w"] = t
            fills[gi] += [f"s_add_u32 m0, s33, {(SLOT + [0, 65536])[t]}", f"s_mov_b32 s31, {t << 20}" if t < 8 else f"s_add_u32 s31, s45, {(t-8)*32768}"]
        if o[3] == "s" and o[4] == 8: fills[gi] += ["s_cmp_eq_u32 s30, 0", "s_cselect_b32 s18, 0, s18"]
        fills[gi] += [o[5]]
        pos[(o[3], o[4])] = gi
        if cfg.get("p2v"): print(o[3], o[4], "at", gi, "earliest", o[0], "deadline", o[1])
        g += o[2] * rate
    W0 = (["s_cmp_eq_u32 s28, 0"], "s_cbranch_scc1")
    off0 = [f"s_add_u32 s36, s29, {CNT_KV0}", "s_lshl_b32 s36, s36, 7"]
    nkv = Need("vm", [("st", q) for q in range(8)])
    sg = off0 + signal("s[90:91]", "s36", "v62", "v63")
    pl = off0 + [f"v_mov_b32 {vZ}, s36", VM(f"global_load_dword {vPOLL}, {vZ}, s[90:91] sc1", "poll")]
    ck = [Need("vm", ["poll"])] + check(k, "s[90:91]", vZ, vPOLL, 1)
    for t, gb in beta.items():
        b = [Need("vm", [("W", t+1)])]
        if t == 4:
            assert cfg.get("nokvst") or pos[("s", 7)] < gb - 20
            b += [Alt(A.ool(k, ["s_cmp_eq_u32 s30, 0"], "s_cbranch_scc1", [nkv]), lambda c: [nkv] if c["fast"] else [])]
        if t == 6: b += [Alt(A.ool(k, *W0, ck), lambda c: ck if c["w0"] else []), "s_waitcnt lgkmcnt(0)"]
        pre[gb] = b + ["s_barrier"] + pre[gb]
    fills[beta[4]+1] += [Alt(A.ool(k, ["s_lshl_b32 s36, s30, 3", "s_add_u32 s36, s28, s36", "s_cmp_eq_u32 s36, 4"], "s_cbranch_scc1", sg),
                             lambda c: sg if c["sg"] else [])]
    fills[beta[6]-44] += [Alt(A.ool(k, *W0, pl), lambda c: pl if c["w0"] else [])]
    if qw:
        pk = [f"s_mov_b32 s36, {A.CSCALE}"]
        for f in (0, 4, 1, 5):
            a = A.O_ + 8*f
            pk += [f"v_mul_f32 v{a+e}, s36, v{a+e}" for e in range(8)] + [f"v_cvt_pk_bf16_f32 v{A.Q_+4*f+q}, v{a+2*q}, v{a+2*q+1}" for q in range(4)]
        g0 = NG - 8*qw + 1
        for i, x in enumerate(pk): fills[g0 + i * (NG - g0) // len(pk)] += [x]
        cfg["qdone"] = (0, 4, 1, 5)
    for t in range(8): fills[64*t+63] += cfg["sth2"].hist(8, first=(t == 0))
    body = weave(M, fills, pre)
    early = [store(q) for q in range(8, 16)]
    earlyA = Alt(A.ool(k, ["s_cmp_eq_u32 s30, 0"], "s_cbranch_scc1", early), lambda c: early if c["fast"] else [])
    prox = [xld2(1, s_) for s_ in range(XP)]
    pro2 = [wrd(f) for f in range(D)]
    n0 = Need("vm", [("x", 0, int(cfg.get("x0w", 1)))])
    nq = Need("vm", [("W", 8)] + [("st", q) for q in range(16)])
    scen = []
    for w0, fast, sg_ in ((0, 0, 0), (1, 0, 0), (0, 1, 0), (1, 1, 0), (0, 1, 1)):
        scen.append(flat([xld2(0, s_) for s_ in range(4)]) + [VM("", ("W", 1))]*4 + flat([pro2, prox, n0, earlyA, body, nq], dict(w0=w0, fast=fast, sg=sg_)))
    resolve(scen)
    cfg["qwait"] = nq.n
    st.mark()
    emit(k, pro2)
    work = lines(kv_pack)
    pre_ops = W1 + [[x] for x in flat(prox)]
    step = 64 // len(pre_ops)
    for i, x in enumerate(work):
        if i % step == 0 and i // step < len(pre_ops): emit(k, pre_ops[i // step])
        k.e(x)
    emit(k, [n0, earlyA])
    st.mark()
    emit(k, body)
    st.mark()
```

```python
from common import *
import attn as A
import ffn as F

WS_CNT = 59 << 20
CNT_KV, CNT_CTX, CNT_F1, CNT_F2, CNT_KV0, CNT_EX, CNT_LN = 0, 32, 48, 96, 64, 128, 112
WS_EX = 64 << 20
SC = " sc1"
LDS_X = 131072

def NT(cfg, key):
    return " nt" if key in cfg.get("nt", "") else ""

def lines(fn, *a, **kw):
    t = K("tmp"); fn(t, *a, **kw); return [x.strip() for x in t.lines]

def signal(saddr_pair, off, t0, t1):
    return [f"v_mov_b32 {t0}, {off}", f"v_mov_b32 {t1}, 1", "s_mov_b64 exec, 1",
            f"global_atomic_add {t0}, {t1}, {saddr_pair}", "s_mov_b64 exec, -1", "s_nop 3"]

def switch(k, sreg, cases):
    L = []
    lend = k.newlabel("swend")
    for i, (val, items) in enumerate(cases):
        if i + 1 < len(cases):
            ln = k.newlabel("swn")
            L += [f"s_cmp_eq_u32 {sreg}, {val}", f"s_cbranch_scc0 {ln}"] + items + [f"s_branch {lend}", ln + ":"]
        else:
            L += items
    return L + [lend + ":"]

def guard(k, cond, br, items, key):
    l = k.newlabel("g")
    return Alt(cond + [f"{br} {l}"] + items + [l + ":"], lambda c: items if c[key] else [])

def spin(k, saddr, voff, vtmp, target, slp=8):
    l, le = k.newlabel("spin"), k.newlabel("spinx")
    return ["s_mov_b32 s61, 0x40000", l + ":", "s_sub_u32 s61, s61, 1", f"s_cbranch_scc1 {le}", f"s_sleep {slp}",
            f"global_load_dword {vtmp}, {voff}, {saddr} sc1", "s_waitcnt vmcnt(0)",
            f"v_readfirstlane_b32 s36, {vtmp}", "s_nop 0", f"s_cmp_lt_u32 s36, {target}", f"s_cbranch_scc1 {l}", le + ":"]

def check(k, saddr, voff, vtmp, target, slp=8):
    return A.ool(k, [f"v_readfirstlane_b32 s36, {vtmp}", "s_nop 0", f"s_cmp_lt_u32 s36, {target}"], "s_cbranch_scc1",
                 spin(k, saddr, voff, vtmp, target, slp))

def ln_check(k):
    l, le = k.newlabel("lspin"), k.newlabel("lspinx")
    return ["s_mov_b32 s61, 0x40000", l + ":", "v_cmp_gt_u32 vcc, 16, v116", "s_nop 0", "s_cmp_eq_u64 vcc, 0",
            f"s_cbranch_scc1 {le}", "s_sub_u32 s61, s61, 1", f"s_cbranch_scc1 {le}", "s_sleep 8",
            "global_load_dword v116, v117, s[90:91] sc1", "s_waitcnt vmcnt(0)", f"s_branch {l}", le + ":"]

def ln_row(X, XO, WR, Fr, T, SB, srow, sslot):
    k = K("t")
    t = [f"v{T+i}" for i in range(8)]
    for i in range(8):
        k.e(f"v_lshlrev_b32 v{Fr+2*i}, 16, v{X+i}")
        k.e(f"v_and_b32 v{Fr+2*i+1}, 0xffff0000, v{X+i}")
    P = lambda r: v(r, 2)
    k.e(f"v_pk_add_f32 {P(T)}, {P(Fr)}, {P(Fr+2)}")
    for i in range(2, 8): k.e(f"v_pk_add_f32 {P(T)}, {P(T)}, {P(Fr+2*i)}")
    k.e(f"v_add_f32 {t[0]}, {t[0]}, {t[1]}")
    wave_sum(k, t[0], t[4], SB)
    k.e(f"v_mul_f32 {t[4]}, 0xba800000, {t[4]}")
    k.e(f"v_mov_b32 {t[5]}, {t[4]}")
    for i in range(8):
        k.e(f"v_pk_add_f32 {P(T+2)}, {P(Fr+2*i)}, {P(T+4)}")
        k.e(f"v_pk_mul_f32 {P(T)}, {P(T+2)}, {P(T+2)}" if i == 0 else f"v_pk_fma_f32 {P(T)}, {P(T+2)}, {P(T+2)}, {P(T)}")
    k.e(f"v_add_f32 {t[0]}, {t[0]}, {t[1]}")
    wave_sum(k, t[0], t[2], SB)
    k.e(f"v_mul_f32 {t[2]}, 0x3a800000, {t[2]}")
    k.e(f"v_cvt_pk_bf16_f32 {t[3]}, {t[4]}, {t[2]}")
    k.e(f"v_lshlrev_b32 {t[4]}, 16, {t[3]}")
    k.e(f"v_and_b32 {t[2]}, 0xffff0000, {t[3]}")
    k.e(f"v_add_f32 {t[2]}, 0x3727c5ac, {t[2]}")
    rbf(k, t[2])
    k.e(f"v_sqrt_f32 {t[2]}, {t[2]}")
    k.e(f"v_mov_b32 {t[5]}, {t[4]}")
    rbf(k, t[2])
    k.e(f"v_rcp_f32 {t[7]}, {t[2]}")
    k.e("s_nop 0")
    k.e(f"v_fma_f32 {t[3]}, -{t[2]}, {t[7]}, 1.0")
    k.e(f"v_fma_f32 {t[7]}, {t[3]}, {t[7]}, {t[7]}")
    k.e(f"v_mov_b32 {t[6]}, {t[7]}")
    for i in range(8):
        a, b = f"v{Fr+2*i}", f"v{Fr+2*i+1}"
        k.e(f"v_pk_add_f32 {P(Fr+2*i)}, {P(Fr+2*i)}, {P(T+4)}")
        k.e(f"v_cvt_pk_bf16_f32 {t[2]}, {a}, {b}")
        k.e(f"v_lshlrev_b32 {a}, 16, {t[2]}")
        k.e(f"v_and_b32 {b}, 0xffff0000, {t[2]}")
        k.e(f"v_pk_mul_f32 {P(Fr+2*i)}, {P(Fr+2*i)}, {P(T+6)}")
        k.e(f"v_cvt_pk_bf16_f32 v{XO+i}, {a}, {b}")
        k.e(f"v_lshlrev_b32 {a}, 16, v{XO+i}")
        k.e(f"v_and_b32 {b}, 0xffff0000, v{XO+i}")
        k.e(f"v_pk_mul_f32 {P(T)}, {P(Fr)}, {P(WR)}" if i == 0 else f"v_pk_fma_f32 {P(T)}, {P(Fr+2*i)}, {P(WR+2*i)}, {P(T)}")
    k.e(f"v_add_f32 {t[0]}, {t[0]}, {t[1]}")
    k.e(f"v_xor_b32 {t[6]}, 0x80000000, {t[4]}")
    k.e(f"s_mul_i32 s{SB}, {sslot}, 2064")
    k.e(f"s_add_u32 s{SB}, s{SB}, {LDS_X}")
    k.e(f"v_lshl_add_u32 {t[3]}, v1, 4, s{SB}")
    k.e(f"ds_write_b128 {t[3]}, {v(XO,4)}")
    k.e(f"ds_write_b128 {t[3]}, {v(XO+4,4)} offset:1024")
    wave_sum(k, t[0], t[1], SB)
    rbf(k, t[1])
    k.e(f"v_ashrrev_i32 {t[3]}, 31, {t[1]}")
    k.e(f"v_or_b32 {t[3]}, 0x80000000, {t[3]}")
    k.e(f"v_xor_b32 {t[3]}, {t[1]}, {t[3]}")
    k.e(f"v_and_b32 {t[3]}, 0xffff0000, {t[3]}")
    k.e(f"s_sub_u32 s{SB}, 0xffff, {srow}")
    k.e(f"v_or_b32 {t[3]}, s{SB}, {t[3]}")
    k.e(f"s_lshl_b32 s{SB+1}, {sslot}, 3")
    k.e(f"s_add_u32 s{SB+1}, s{SB+1}, {LDS_X + 16640}")
    k.e(f"v_mov_b32 {t[2]}, s{SB+1}")
    k.e(f"ds_write_b64 {t[2]}, {v(T+6,2)}")
    k.e(f"ds_write_b32 {t[2]}, {t[3]} offset:64")
    return [x.strip() for x in k.lines]

def zip2(a, b):
    out = []
    for x, y in zip(a, b):
        if x == "s_nop 0": continue
        if x == "s_nop 1": out.append("s_nop 0"); continue
        out += [x, y]
    return out

def ln_part3(T):
    t = [f"v{T+i}" for i in range(8)]
    L = [f"v_and_b32 {t[0]}, 7, v1", f"v_lshlrev_b32 {t[0]}, 3, {t[0]}", f"v_add_u32 {t[1]}, {LDS_X + 16640}, {t[0]}",
         f"ds_read_b64 {v(T+2,2)}, {t[1]}", f"ds_read_b32 {t[4]}, {t[1]} offset:64",
         "s_lshl_b32 s36, s2, 6", f"s_add_u32 s36, s36, {WS_ST}", "s_lshl_b32 s37, s2, 3", f"s_add_u32 s37, s37, {F.WS_KEY}",
         "s_waitcnt lgkmcnt(0)", f"v_mov_b32 {t[6]}, {t[4]}"]
    red = lambda x: flat([["s_nop 1", f"v_max_u32_dpp {x}, {x}, {x} {m} row_mask:0xf bank_mask:0xf"]
                          for m in ("quad_perm:[1,0,3,2]", "quad_perm:[2,3,0,1]", "row_half_mirror")])
    L += red(t[6]) + [f"v_cmp_eq_u32 vcc, {t[6]}, {t[4]}", "s_nop 1", f"v_cndmask_b32 {t[7]}, {t[4]}, v118, vcc"] + red(t[7])
    L += ["s_mov_b64 exec, 0xff", f"buffer_store_dwordx2 {v(T+2,2)}, {t[0]}, s[24:27], s36 offen{SC}",
          "s_mov_b64 exec, 1", f"buffer_store_dwordx2 {v(T+6,2)}, {t[0]}, s[24:27], s37 offen{SC}", "s_mov_b64 exec, -1", "s_nop 3"]
    return L

def ln_part2(k, X):
    t = ["v16", "v18", "v19"]
    k.e(f"v_and_b32 {t[0]}, 7, v1")
    k.e(f"v_lshrrev_b32 {t[1]}, 3, v1")
    k.e(f"v_mul_u32_u24 {t[2]}, 2064, {t[0]}")
    k.e(f"v_lshl_add_u32 {t[2]}, {t[1]}, 4, {t[2]}")
    k.e("s_lshl_b32 s36, s28, 8")
    k.e(f"s_add_u32 s36, s36, {LDS_X}")
    k.e(f"v_add_u32 {t[2]}, s36, {t[2]}")
    k.e(f"ds_read_b128 {v(X,4)}, {t[2]}")
    k.e(f"ds_read_b128 {v(X+4,4)}, {t[2]} offset:128")
    k.e(f"v_lshlrev_b32 {t[0]}, 4, {t[0]}")
    k.e(f"v_lshl_add_u32 {t[0]}, {t[1]}, 8, {t[0]}")
    k.e("s_lshr_b32 s36, s2, 1")
    k.e("s_lshl_b32 s36, s36, 15")
    k.e("s_and_b32 s37, s2, 1")
    k.e("s_lshl_b32 s37, s37, 7")
    k.e("s_add_u32 s36, s36, s37")
    k.e("s_lshl_b32 s37, s28, 12")
    k.e("s_add_u32 s36, s36, s37")
    if "x" in HOLE[0]:
        k.e("s_bitcmp1_b32 s2, 0")
        k.e(f"s_cselect_b32 s37, {DELTA}, 0")
        k.e("s_mov_b32 exec_lo, 0xff00")
        k.e("s_mov_b32 exec_hi, 0xff00")
        k.e(f"v_add_u32 {t[0]}, s37, {t[0]}")
        k.e("s_mov_b64 exec, -1")
    k.e("s_waitcnt lgkmcnt(0)")
    k.e(f"buffer_store_dwordx4 {v(X,4)}, {t[0]}, s[24:27], s36 offen{SC}")
    k.e(f"buffer_store_dwordx4 {v(X+4,4)}, {t[0]}, s[24:27], s36 offen offset:2048{SC}")

KP = 128
WF = 64
XF = [24, 96]
def xld2(xs, s_):
    return [VM(f"buffer_load_dwordx4 {v(XF[xs]+(s_*2+rb)*4,4)}, v{6+rb}, s[8:11], s32 offen offset:{s_*1024}{SC}", ("x", xs, s_)) for rb in range(2)]
vPOLL = "v56"
vZ = "v57"

def code_touch(k, a, dst):
    l = k.newlabel("pc")
    return ["s_getpc_b64 s[36:37]", l + ":", f"s_sub_u32 s36, s36, {l}-L_pc", "s_subb_u32 s37, s37, 0",
            "s_lshr_b32 s38, s2, 3", "s_lshl_b32 s38, s38, 7", f"v_lshl_add_u32 v{a}, v1, 12, s38", f"v_min_u32 v{a}, L_end-L_pc-4, v{a}",
            f"v_mov_b32 v{a+1}, s37", f"v_add_co_u32 v{a}, vcc, s36, v{a}", "s_mov_b64 exec, 0xffff", "s_nop 0",
            f"v_addc_co_u32 v{a+1}, vcc, 0, v{a+1}, vcc", f"global_load_dword {dst}, v[{a}:{a+1}], off", "s_mov_b64 exec, -1", "s_nop 1"]

def p1_retarget(cfg):
    L = ["v_lshrrev_b32 v3, 4, v1", "s_lshl_b32 s37, s28, 4", "v_add_u32 v19, s37, v3", "v_lshlrev_b32 v19, 13, v19",
         "s_lshl_b32 s37, s29, 8", "v_add_u32 v19, s37, v19", "v_and_b32 v16, 15, v1", "v_lshlrev_b32 v3, 1, v3",
         "v_xor_b32 v16, v16, v3", "v_lshl_add_u32 v2, v16, 4, v19", f"v_add_u32 v3, {32768-1024}, v2",
         "v_xor_b32 v16, 8, v16", "v_lshl_add_u32 v4, v16, 4, v19", f"v_add_u32 v4, {2*(32768-1024)}, v4",
         f"v_add_u32 v5, {32768-1024}, v4"]
    L += lines(srd, 4, 96, 8388608)
    L += ["s_mov_b32 s31, 0", f"s_mov_b32 s40, {128*8192}", "s_mov_b64 s[8:9], s[4:5]", "s_mov_b32 s10, s6", f"s_mov_b32 s32, {3*128*8192}"]
    L += [f"v_mov_b32 v{6+j}, v{2+j}" for j in range(4)]
    return L

def warm(w):
    return ["s_lshl_b32 s36, s2, 13", f"s_lshl_b32 s37, {w}, 11", "s_add_u32 s36, s36, s37", "v_lshl_add_u32 v16, v1, 7, s36",
            f"s_cmp_lt_u32 {w}, 2", "s_cselect_b64 s[38:39], s[48:49], s[50:51]",
            "s_lshr_b32 s36, s2, 3", "s_lshl_b32 s36, s36, 1", f"s_and_b32 s37, {w}, 1", "s_add_u32 s36, s36, s37", "s_lshl_b32 s36, s36, 16",
            "s_and_b32 s37, s29, 28", "s_lshl_b32 s37, s37, 8", "s_add_u32 s36, s36, s37",
            "s_sub_u32 s37, 256, s38", "s_and_b32 s37, s37, 0x300", "s_add_u32 s36, s36, s37", "v_lshrrev_b32 v18, 1, v1", "v_lshl_add_u32 v18, v18, 13, s36",
            "v_and_b32 v19, 1, v1", "v_lshl_add_u32 v18, v19, 7, v18",
            "s_mov_b64 exec, 0xffff", "global_load_dword v0, v16, s[46:47]", "global_load_dword v0, v18, s[38:39]", "s_mov_b64 exec, -1"]

W1 = []
def p1(k, cfg, st):
    cp = cfg.get("cp", "0")
    ACC = 128
    FR = [20, 68]
    XA, XB, WP, WR = 20, 28, 36, 44
    k.e("s_load_dwordx4 s[44:47], s[0:1], 0")
    k.e("s_load_dwordx2 s[52:53], s[0:1], 56")
    k.e("s_load_dwordx4 s[48:51], s[0:1], 24")
    k.e("s_getpc_b64 s[36:37]")
    k.label("L_pc")
    k.e("s_lshr_b32 s38, s2, 3")
    k.e("s_lshl_b32 s38, s38, 7")
    k.e("v_lshl_add_u32 v16, v0, 12, s38")
    k.e("v_cmp_gt_u32 vcc, L_end-L_pc-4, v16")
    k.e("v_mov_b32 v17, s37")
    k.e("s_and_b64 exec, exec, vcc")
    k.e("s_cbranch_execz L_nocpf")
    k.e("v_add_co_u32 v16, vcc, s36, v16")
    k.e("s_nop 1")
    k.e("v_addc_co_u32 v17, vcc, 0, v17, vcc")
    if not cfg.get("nocpf"): k.e("global_load_dword v119, v[16:17], off")
    k.label("L_nocpf")
    k.e("s_mov_b64 exec, -1")
    k.e("v_lshrrev_b32 v16, 6, v0")
    k.e("v_and_b32 v1, 63, v0")
    k.e("v_readfirstlane_b32 s28, v16")
    k.e("v_lshlrev_b32 v116, 4, v1")
    k.e("s_lshl_b32 s42, s2, 3")
    k.e("s_cmp_lt_u32 s28, 4")
    k.e("s_cbranch_scc1 L_nox")
    k.e("s_add_u32 s43, s42, s28")
    k.e("s_sub_u32 s42, s43, 4")
    k.e("v_lshl_add_u32 v18, s42, 11, v116")
    k.e("v_add_u32 v19, 8192, v18")
    k.e("s_waitcnt lgkmcnt(0)")
    for X_, a_ in ((XA, "v18"), (XB, "v19")):
        k.e(f"global_load_dwordx4 {v(X_,4)}, {a_}, s[44:45]{NT(cfg, 'x')}")
        k.e(f"global_load_dwordx4 {v(X_+4,4)}, {a_}, s[44:45] offset:1024{NT(cfg, 'x')}")
    k.e(f"global_load_dwordx4 {v(WP,4)}, v116, s[52:53]")
    k.e(f"global_load_dwordx4 {v(WP+4,4)}, v116, s[52:53] offset:1024")
    if not cfg.get("nob0"): k.e("s_barrier")
    k.label("L_nox")
    k.e("s_load_dwordx4 s[88:91], s[0:1], 96")
    k.e("s_load_dwordx4 s[92:95], s[0:1], 64")
    k.e("s_load_dwordx2 s[96:97], s[0:1], 16")
    if cfg.get("evn"):
        k.e("s_and_b32 s29, s2, 7")
        k.e("s_lshl_b32 s29, s29, 2")
        k.e(f"s_lshr_b32 s29, {cfg['evn']}, s29")
        k.e("s_and_b32 s29, s29, 7")
    else:
        k.e("s_and_b32 s29, s2, 7")
    k.e("s_lshl_b32 s29, s29, 2")
    k.e("s_bfe_u32 s36, s2, 0x20003")
    k.e("s_add_u32 s29, s29, s36")
    k.e("s_lshr_b32 s30, s2, 5")
    k.e("v_lshrrev_b32 v16, 3, v1")
    k.e("s_lshl_b32 s36, s30, 8")
    k.e("s_lshl_b32 s37, s28, 5")
    k.e("s_add_u32 s36, s36, s37")
    k.e("v_add_u32 v16, s36, v16")
    k.e("v_lshlrev_b32 v16, 10, v16")
    k.e("v_lshrrev_b32 v18, 4, v1")
    k.e("v_and_b32 v19, 7, v1")
    k.e("v_xor_b32 v19, v19, v18")
    k.e("v_lshl_add_u32 v2, v19, 4, v16")
    k.e("v_xor_b32 v19, 4, v19")
    k.e("v_lshl_add_u32 v3, v19, 4, v16")
    k.e(f"v_add_u32 v3, {8192-1024}, v3")
    k.e(f"v_add_u32 v4, {2*(8192-1024)}, v2")
    k.e(f"v_add_u32 v5, {2*(8192-1024)}, v3")
    k.e("s_and_b32 s36, s28, 3")
    k.e("s_lshl_b32 s37, s36, 4")
    k.e("v_add_u32 v16, s37, v18")
    k.e("v_lshlrev_b32 v16, 13, v16")
    k.e("s_lshl_b32 s37, s29, 8")
    k.e("v_add_u32 v16, s37, v16")
    k.e("v_and_b32 v19, 15, v1")
    k.e("v_lshlrev_b32 v18, 1, v18")
    k.e("v_xor_b32 v19, v19, v18")
    k.e("v_lshl_add_u32 v6, v19, 4, v16")
    k.e(f"v_add_u32 v7, {32768-1024}, v6")
    k.e("v_xor_b32 v19, 8, v19")
    k.e("v_lshl_add_u32 v8, v19, 4, v16")
    k.e(f"v_add_u32 v8, {2*(32768-1024)}, v8")
    k.e(f"v_add_u32 v9, {32768-1024}, v8")
    k.e("s_lshl_b32 s33, s28, 12")
    k.e("s_add_u32 s34, s33, 65536")
    k.e("s_mov_b32 s31, 0")
    k.e("s_mov_b32 s32, 0")
    k.e("s_mov_b32 s40, 128")
    k.e(f"s_mov_b32 s41, {64*8192}")
    def dma_list(stage):
        c = [f"buffer_load_dwordx4 v{2+j}, s[4:7], s31 offen offset:{j*1024}{NT(cfg, 'c')} lds" for j in range(4)]
        w = [f"buffer_load_dwordx4 v{6+j}, s[8:11], s32 offen offset:{j*1024}{NT(cfg, 'w')} lds" for j in range(4)]
        return f"s_add_u32 m0, s33, {stage*32768}", c, f"s_add_u32 m0, s34, {stage*32768}", w
    def dma_both(stage):
        mc, c, mw, w = dma_list(stage)
        k.e(mc); k.e(f"s_add_u32 s36, s31, {128*1024}"); k.e(c)
        k.e(mw); k.e("s_nop 0"); k.e(w)
        k.e(f"s_add_u32 m0, s33, {stage*32768+16384}"); k.e("s_nop 0"); k.e([x.replace("s31", "s36") for x in c])
        k.e(f"s_add_u32 m0, s34, {stage*32768+16384}"); k.e("s_nop 0"); k.e([x.replace("s[8:11]", "s[20:23]") for x in w])
        k.e("s_add_u32 s31, s31, s40")
        k.e("s_add_u32 s32, s32, s41")
    def setup_rest():
        k.e(f"s_add_u32 s54, s90, {int(cfg.get('wsoff', 0)) << 20}")
        k.e("s_addc_u32 s55, s91, 0")
        srd(k, 12, 54, 33554432 + DELTA, WS_KV)
        srd(k, 24, 54, (80 << 20) + DELTA)
        k.e(f"s_add_u32 s90, s54, {WS_CNT}")
        k.e("s_addc_u32 s91, s55, 0")
        k.e("v_and_b32 v16, 15, v1")
        k.e("v_lshrrev_b32 v17, 4, v1")
        k.e("s_bfe_u32 s36, s28, 0x10001")
        k.e("s_lshl_b32 s36, s36, 14")
        k.e("v_lshl_add_u32 v18, v16, 7, s36")
        k.e("v_lshrrev_b32 v19, 1, v16")
        k.e("v_xor_b32 v19, v19, v17")
        k.e("v_lshl_add_u32 v10, v19, 4, v18")
        k.e("v_xor_b32 v19, 4, v19")
        k.e("v_lshl_add_u32 v11, v19, 4, v18")
        k.e("v_lshrrev_b32 v16, 2, v16")
        k.e("v_lshl_add_u32 v18, v17, 3, v16")
        k.e("v_lshlrev_b32 v18, 8, v18")
        k.e("s_lshr_b32 s36, s28, 2")
        k.e("s_lshl_b32 s36, s36, 14")
        k.e("s_add_u32 s36, s36, 65536")
        k.e("v_add_u32 v18, s36, v18")
        k.e("v_and_b32 v19, 3, v1")
        k.e("v_lshl_add_u32 v18, v19, 3, v18")
        k.e("v_and_b32 v17, 1, v17")
        k.e("v_lshl_add_u32 v16, v17, 2, v16")
        k.e("s_and_b32 s36, s28, 1")
        k.e("s_lshl_b32 s36, s36, 2")
        for cb in range(4):
            k.e(f"s_add_u32 s37, s36, {cb}")
            k.e("v_xor_b32 v19, s37, v16")
            k.e(f"v_lshl_add_u32 v{12+cb}, v19, 5, v18")
        k.e(zero(ACC, 128))
        k.e("v_mov_b32 v118, 0")
        k.e("v_mov_b32 v117, 0")
        k.e(["s_lshr_b32 s36, s2, 3", "s_lshl_b32 s36, s36, 5", "s_lshl_b32 s37, s28, 2", "s_add_u32 s36, s36, s37", "s_lshl_b32 s36, s36, 13",
             "s_and_b32 s37, s29, 28", "s_lshl_b32 s37, s37, 8", "s_add_u32 s36, s36, s37",
             "s_add_u32 s16, s96, s36", "s_addc_u32 s17, s97, 0", "s_and_b32 s17, s17, 0xffff", f"s_mov_b32 s18, {3*8192+1024}", "s_mov_b32 s19, 0x20000",
             "v_cmp_gt_u32 vcc, 8, v1", "v_lshlrev_b32 v17, 7, v1", "v_mov_b32 v19, 0x100000", "v_cndmask_b32 v17, v19, v17, vcc", "s_mov_b32 s45, 0"])
    k.e("s_waitcnt lgkmcnt(0)")
    srd(k, 4, 46, 2097152)
    srd(k, 8, 48, 4194304)
    srd(k, 20, 50, 4194304)
    k.e("s_cmp_lt_u32 s28, 4")
    k.e("s_cbranch_scc0 L_pro_s")
    if not cfg.get("nob0"): k.e("s_barrier")
    emit(k, A.ool(k, ["s_cmp_eq_u32 s2, 0"], "s_cbranch_scc1",
                  ["s_mul_i32 s36, s28, 12288", f"s_add_u32 s36, s36, {WS_CNT + (int(cfg.get('wsoff', 0)) << 20)}", "v_lshl_add_u32 v16, v1, 4, s36",
                   "v_mov_b32 v108, 0", "v_mov_b32 v109, 0", "v_mov_b32 v110, 0", "v_mov_b32 v111, 0"] +
                  flat([[f"global_store_dwordx4 v16, v[108:111], s[90:91]{SC}", "v_add_u32 v16, 1024, v16"] for _ in range(12)])))
    dma_both(0)
    k.label("L_pro_s")
    st.mark()
    setup_rest()
    st.mark()
    k.e("s_cmp_lt_u32 s28, 4")
    k.e("s_cbranch_scc0 L_pro_b")
    if cp == "2": k.e(warm("s28"))
    dma_both(1)
    if cp == "0": k.e(warm("s28"))
    k.e(f"s_waitcnt vmcnt({16 + (2 if cp in '02' else 0)})")
    k.e("s_branch L_pro_j")
    k.label("L_pro_b")
    k.e("s_mov_b64 s[8:9], s[20:21]")
    k.e("s_mov_b32 s31, 256")
    k.e(f"s_mov_b32 s32, {2*64*8192}")
    k.e("s_and_b32 s60, s28, 3")
    if cp == "1": k.e(warm("s60"))
    if cfg.get("nodry"): k.e(f"s_waitcnt vmcnt({2 if cp == '1' else 0})")
    k.e(f"s_mov_b32 s3, {0 if cfg.get('nodry') else 0xD0}")
    k.label("L_ln")
    for i in range(8):
        k.e(f"v_lshlrev_b32 v{WR+2*i}, 16, v{WP+i}")
        k.e(f"v_and_b32 v{WR+2*i+1}, 0xffff0000, v{WP+i}")
    k.e(zip2(ln_row(XA, 108, WR, 60, 92, 36, "s42", "s60"), ln_row(XB, 120, WR, 76, 100, 56, "s43", "s28")))
    if cp == "3": k.e(warm("s60"))
    k.e("s_waitcnt lgkmcnt(0)" if cfg.get("nodry") else "s_waitcnt vmcnt(0) lgkmcnt(0)")
    k.e("s_cmp_eq_u32 s3, 0")
    k.e("s_mov_b32 s3, 0")
    k.e("s_cbranch_scc0 L_ln")
    k.label("L_pro_j")
    st.mark()
    def reads(s_, stage, fs):
        b = FR[fs]
        c = [f"ds_read_b128 {v(b+4*i,4)}, v{10+s_} offset:{stage*32768+i*2048}" for i in range(8)]
        w = [[f"ds_read_b64_tr_b16 {v(b+32+4*cb+2*t,2)}, v{12+cb} offset:{stage*32768+(32*s_+4*t)*256}" for t in range(2)] for cb in range(4)]
        return [c[0]] + w[0] + w[1] + w[2] + w[3] + c[1:]
    def accreg(i, cb, vtype):
        return ACC + ((cb*8+i) if vtype else (i*4+cb))*4
    def mfmas(fs, vtype):
        b = FR[fs]; L = []
        for i in range(8):
            for cb in range(4):
                a = accreg(i, cb, vtype)
                cf, wf = v(b+4*i, 4), v(b+32+4*cb, 4)
                Aop, Bop = (cf, wf) if vtype else (wf, cf)
                L.append(f"{MF} {v(a,4)}, {Aop}, {Bop}, {v(a,4)}")
        return L
    k.e("s_barrier")
    k.e(reads(0, 0, 0))
    emit(k, A.ool(k, ["s_add_u32 s36, s2, s28", "s_cmp_eq_u32 s36, 0"], "s_cbranch_scc1",
                  ["v_mov_b32 v19, 1", "s_mov_b64 exec, 1", "global_store_dword v118, v19, s[88:89] sc1", "s_mov_b64 exec, -1"]))
    st.mark()
    k.e("s_mov_b32 s35, 0")
    k.e("s_cmp_eq_u32 s28, 0")
    k.e("s_cselect_b32 s43, 9, 0")
    k.e("s_cselect_b32 s44, 2, 1")
    k.e("s_cmp_lt_u32 s28, 4")
    k.e("s_cbranch_scc0 L_kv_vloop")
    for vtype in range(2):
        lp = "L_kv_vloop" if vtype else "L_kv_kloop"
        k.align(6)
        k.label(lp)
        for stage in range(2):
            for s_ in range(2):
                fills = [[] for _ in range(32)]
                pre = []
                if s_ == 0:
                    k.e("s_waitcnt lgkmcnt(0)")
                    rd = reads(1, stage, 1)
                    if stage == 1 and vtype == 0:
                        fills[20] += A.ool(k, ["s_bitcmp1_b32 s43, s35"], "s_cbranch_scc1", switch(k, "s35", [
                            (0, ["global_load_dword v116, v118, s[88:89] sc1"]),
                            (3, ["v_and_b32 v117, 15, v1", f"v_add_u32 v117, {CNT_LN}, v117", "v_lshlrev_b32 v117, 7, v117",
                                 "global_load_dword v116, v117, s[90:91] sc1"])]))
                else:
                    nt = 0 if cfg.get("notouch") else 1
                    if vtype == 0 and stage == 0:
                        emit(k, A.ool(k, ["s_cmp_eq_u32 s35, 3"], "s_cbranch_scc1", p1_retarget(cfg)))
                    la, lb = k.newlabel("w0"), k.newlabel("w0b")
                    if stage == 1 and vtype == 0:
                        A.OOL.append([la + ":", "s_waitcnt vmcnt(0)"] + switch(k, "s35", [(0, check(k, "s[88:89]", "v118", "v116", 1)), (3, ln_check(k))]) + [f"s_branch {lb}"])
                        emit(k, ["s_bitcmp1_b32 s43, s35", f"s_cbranch_scc1 {la}", f"s_waitcnt vmcnt({nt})", lb + ":", "s_waitcnt lgkmcnt(0)"])
                    elif stage == 1:
                        k.e(f"s_waitcnt vmcnt({nt}) lgkmcnt(0)")
                    else:
                        A.OOL.append([la + ":"] + switch(k, "s35", [(0, (lines(ln_part2, 120) if vtype == 0 else []) + [f"s_waitcnt vmcnt({4 if cp == '0' else 2})"]), (1, [f"s_waitcnt vmcnt({nt+1})"])]) + [f"s_branch {lb}"])
                        emit(k, ["s_cmp_lt_u32 s35, s44", f"s_cbranch_scc1 {la}", f"s_waitcnt vmcnt({nt})", lb + ":", "s_waitcnt lgkmcnt(0)"])
                    if nt:
                        tp = int(cfg.get("tpos", 31))
                        fills[tp] += ["buffer_load_dword v0, v17, s[16:19], s45 offen", "s_add_u32 s45, s45, 8192"]
                    if stage == 0:
                        fills[26] += A.ool(k, ["s_cmp_eq_u32 s35, 3"], "s_cbranch_scc1", [f"s_add_u32 m0, s33, {LDS_X}", f"s_mov_b32 s36, {2 << 20}"] +
                                          [f"buffer_load_dwordx4 v{2+j}, s[4:7], s36 offen offset:{j*1024} lds" for j in range(4)])
                    if stage == 1: k.e("s_cmp_eq_u32 s35, 3")
                    k.e("s_barrier")
                    if stage == 1: k.e(f"s_cbranch_scc1 L_p1_fin{vtype}")
                    rd = reads(0, stage ^ 1, 0)
                    if stage == 1 and vtype == 0:
                        fills[30] += A.ool(k, ["s_add_u32 s36, s35, s28", "s_cmp_eq_u32 s36, 0"], "s_cbranch_scc1",
                                          ["s_lshr_b32 s36, s2, 4", f"s_add_u32 s36, s36, {CNT_LN}", "s_lshl_b32 s36, s36, 7"] + signal("s[90:91]", "s36", "v16", "v19"))
                for g in range(16): fills[g].append(rd[g])
                if s_ == 1:
                    mc, c, mw, w = dma_list(stage)
                    tail = ["s_add_u32 s31, s31, s40", "s_add_u32 s32, s32, s41"]
                    if vtype == 1:
                        pre = [mc, "s_nop 0"] + c + [mw, "s_nop 0"] + w + tail
                        if cfg.get("p1w"): pre = [mw, "s_nop 0"] + w + [mc, "s_nop 0"] + c + tail
                        if stage == 1:
                            lc = k.newlabel("ct")
                            ct = ["s_cmp_eq_u32 s28, 5", f"s_cbranch_scc0 {lc}"] + code_touch(k, 18, "v0") + [lc + ":"] if "1" in cfg.get("cpf", "") else []
                            pre += A.ool(k, ["s_cmp_eq_u32 s35, 2"], "s_cbranch_scc1", p1_retarget(cfg) + ct)
                        else:
                            l7 = k.newlabel("l7")
                            pre += A.ool(k, ["s_cmp_eq_u32 s35, 0"], "s_cbranch_scc1", lines(ln_part2, 120) +
                                         ["s_cmp_eq_u32 s28, 7", f"s_cbranch_scc0 {l7}"] + ln_part3(120) + [l7 + ":"])
                    else:
                        fills[0].append(mc)
                        ds_ = int(cfg.get("p1s", 3))
                        if cfg.get("p1w"): mc, mw, c, w = mw, mc, w, c; fills[0][-1] = mc
                        for j in range(4): fills[1+ds_*j].append(c[j])
                        fills[4*ds_].append(mw)
                        for j in range(4): fills[1+ds_*(4+j)].append(w[j])
                        fills[31] += tail
                ladder(fills, 0, 32, "1" in cfg.get("lad", ""), (3, 2) if s_ == 1 else (1, 0))
                emit(k, pre)
                emit(k, weave(mfmas(s_, vtype), fills, None, int(cfg.get('g1_', 1))))
                if s_ == 1: k.e(cfg["sth1"].hist(8, first=(vtype == 0 and stage == 0)))
        k.e("s_add_u32 s35, s35, 1")
        k.e(f"s_branch {lp}")
        k.label(f"L_p1_fin{vtype}")
        mc, c, mw, w = dma_list(1)
        head = lines(p2_setup) + lines(srd, 8, 54, 4194304 + DELTA)
        lds = flat([xld2(0, s_) for s_ in range(4)])
        W1[:] = [[mc, "s_add_u32 s32, s32, 4096"]] + [[x] for x in c]
        rest = lines(p2_setup2)
        fills = [[] for _ in range(32)]
        if vtype == 1: emit(k, head)
        else: fills[0] += head
        fs = int(cfg.get("fs", 4))
        for i, x in enumerate(lds): fills[1+fs*i] += [x]
        for i, x in enumerate(rest): fills[min(2+i, 31)] += [x]
        emit(k, weave(mfmas(1, vtype), fills))
        k.e(cfg["sth1"].hist(8, first=False))
        if vtype == 0: k.e("s_branch L_p1_done")
    k.label("L_p1_done")
    if cfg.get("diag") == "mfma":
        k.e("s_mov_b32 s35, 64")
        k.label("L_diag")
        for i in range(16): k.e(f"{MF} v[{56+4*(i&1)}:{59+4*(i&1)}], {v(68+4*(i%8),4)}, {v(100+4*(i//4),4)}, v[{56+4*(i&1)}:{59+4*(i&1)}]")
        k.e(["s_sub_u32 s35, s35, 1", "s_cmp_lg_u32 s35, 0", "s_cbranch_scc1 L_diag", "s_nop 7"])
    if cfg.get("diag") == "idle":
        k.e(f"s_mov_b32 s35, {cfg.get('idn', 256)}")
        k.label("L_diag")
        k.e(["s_nop 15"]*2 + ["s_sub_u32 s35, s35, 1", "s_cmp_lg_u32 s35, 0", "s_cbranch_scc1 L_diag"])

def kv_pack(k):
    for q in range(16):
        a = 128 + 8*q
        for e in range(4):
            k.e(f"v_cvt_pk_bf16_f32 v{KP+4*q+e}, v{a+2*e}, v{a+2*e+1}")
    k.e("s_lshl_b32 s38, s29, 20")
    k.e("s_lshl_b32 s37, s30, 17")
    k.e("s_add_u32 s38, s38, s37")
    k.e("s_bfe_u32 s37, s28, 0x10001")
    k.e("s_lshl_b32 s37, s37, 16")
    k.e("s_add_u32 s38, s38, s37")
    k.e("s_lshr_b32 s36, s28, 2")
    k.e("s_lshl_b32 s37, s36, 15")
    k.e("s_add_u32 s38, s38, s37")
    k.e("s_and_b32 s37, s28, 1")
    k.e("s_add_u32 s36, s36, 11")
    k.e("s_lshl_b32 s37, s37, s36")
    k.e("s_add_u32 s38, s38, s37")
    k.e("s_cmp_lt_u32 s28, 4")
    k.e("s_cselect_b32 s36, 4, 32")
    k.e("s_cselect_b32 s37, 16, 64")
    k.e("s_cselect_b32 s39, 32, 4")
    k.e("s_lshl_b32 s36, s36, 8")
    k.e("s_lshl_b32 s37, s37, 8")
    k.e("s_lshl_b32 s39, s39, 8")
    k.e("s_mov_b64 s[16:17], s[12:13]")
    k.e("s_mov_b64 s[18:19], s[14:15]")
    k.e("s_mov_b32 s46, s38")
    for g in range(1, 4): k.e(f"s_add_u32 s{46+g}, s{45+g}, s39")
    k.e("v_lshlrev_b32 v58, 4, v1")
    k.e(hole("k", "v58"))
    k.e("v_add_u32 v59, s36, v58")
    k.e("v_add_u32 v60, s37, v58")
    k.e("v_add_u32 v61, s36, v60")
    k.e("v_add_u32 v8, s33, v58")

def p2_setup(k):
    k.e("s_and_b32 s36, s28, 3")
    k.e("s_sub_u32 s37, 15, s30")
    k.e("s_cmp_lt_u32 s28, 4")
    k.e("s_cselect_b32 s37, s37, s30")
    k.e("s_lshl_b32 s37, s37, 2")
    k.e("s_add_u32 s37, s37, s36")
    k.e("s_lshl_b32 s37, s37, 16")
    k.e("v_lshl_add_u32 v6, v1, 4, s37")
    k.e(hole("x", "v6"))
    k.e("v_add_u32 v7, 32768, v6")
    k.e("s_mov_b32 s32, 0")

def p2_setup2(k):
    k.e("v_lshrrev_b32 v18, 4, v1")
    k.e("v_bfe_u32 v20, v1, 2, 2")
    k.e("v_lshl_add_u32 v19, v18, 3, v20")
    k.e("v_lshlrev_b32 v19, 8, v19")
    k.e("v_and_b32 v21, 3, v1")
    k.e("v_lshl_add_u32 v19, v21, 3, v19")
    k.e("v_and_b32 v21, 1, v18")
    k.e("v_lshl_add_u32 v20, v21, 2, v20")
    for db in range(8):
        k.e(f"v_xor_b32 v21, {db}, v20")
        k.e(f"v_lshl_add_u32 v{10+db}, v21, 5, v19")
    k.e("s_lshl_b32 s45, s29, 20")

SLOT = [0, 32768, LDS_X, 65536, 98304, 0, LDS_X, 32768]
WIN  = [0, 0, 98304, 65536, 65536, 0, 98304, 0]

def p2(k, cfg, st):
    D = 6
    NG = 512
    beta = {t: 64*t + 2*(32 - D) for t in (0, 1, 2, 3, 4, 5, 6)}
    if cfg.get("nob1"): del beta[1]
    qw = int(cfg.get("qw", 0))
    seq = [(g // 4, g % 4, db) for g in range(32 - qw) for db in range(8)]
    for c0 in (0, 4): seq += [(7, s_, db) for s_ in range(4 - qw, 4) for db in range(c0, c0 + 4)]
    use = {}
    for p, q in enumerate(seq): use.setdefault(q[:2], p)
    def wrd(f):
        t, s_, db = seq[f]
        return [DS(f"ds_read_b64_tr_b16 {v(WF+4*(f%8)+2*h,2)}, v{10+db} offset:{SLOT[t]-WIN[t]+(32*s_+4*h)*256}", ("w", f % 8)) for h in range(2)]
    def store(q):
        return VM(f"buffer_store_dwordx4 {v(KP+4*q,4)}, v{58+(q&3)}, s[16:19], s{46+q//4} offen{SC}", ("st", q))
    M, fills, pre = [], [[] for _ in range(NG)], {}
    for p in range(256):
        t, s_, db = seq[p]
        for rb in range(2):
            o = A.Oreg(rb, db)
            M.append(f"{MF} {v(o,4)}, {v(WF+4*(p%8),4)}, {v(XF[t&1]+(s_*2+rb)*4,4)}, {v(o,4) if p >= 8 else '0'}")
        if p % 2 == 0: pre[2*p] = [Need("ds", [("w", p % 8), ("w", p % 8 + 1)])]
        if use[(t, s_)] == p: pre[2*p] += [Need("vm", [("x", t & 1, s_)])]
        f = p + D
        if f < 256:
            r = wrd(f)
            fills[2*p] += [r[0]]; fills[2*p+1] += [r[1]]
            t2 = f // 32
            if f % 32 >= 24 and t2 < 7 and WIN[t2+1] != WIN[t2]:
                fills[2*p+1] += [f"v_add_u32 v{10+f%8}, {(WIN[t2+1]-WIN[t2]) & 0xffffffff}, v{10+f%8}"]
    XP = int(cfg.get("xpre", 1))
    L = int(cfg.get("xl", 56))
    cs = float(cfg.get("cst", 2.2))
    ops = []
    for t in range(1, 8):
        for s_ in range(4):
            if t == 1 and s_ < XP: continue
            for x in xld2(t & 1, s_): ops.append([max(0, 64*(t-2) + 16*(s_+1)), 2*use[(t, s_)] - L, 1.0, "x", t, x])
    free = {4: 0, 5: beta.get(1, beta[2]), 6: beta[3], 7: beta[2]}
    for t in range(4, 8):
        for j in range(4):
            ops.append([free[t], beta[t-1] - L - 8*(3-j), 0.85, "w", t, VM(f"buffer_load_dwordx4 v{2+j}, s[4:7], s31 offen offset:{j*1024} lds", ("W", t))])
    for i, t in enumerate((8, 9)):
        for j in range(4):
            ops.append([beta[6], beta[6] + 8*(4*i+j), 1.0, "w", t, VM(f"buffer_load_dwordx4 v8, s[12:15], s31 offen offset:{j*1024}{SC} lds", ("W", t))])
    send = int(cfg.get("send", 470))
    if not cfg.get("nokvst"):
        for q in range(16): ops.append([0, (q + 1) * send // 16, cs, "s", q, store(q)])
    rate = (NG - 12) / sum(o[2] for o in ops)
    g, cur = 1.0, {"x": 1, "w": None}
    pos = {}
    while ops:
        av = [o for o in ops if o[0] <= g]
        if not av:
            g = min(o[0] for o in ops); continue
        o = min(av, key=lambda o: o[1]); ops.remove(o)
        gi = min(int(g), NG - 1)
        if o[3] == "x" and cur["x"] != o[4]:
            fills[gi] += [f"s_mov_b32 s32, {o[4]*4096}"]; cur["x"] = o[4]
        if o[3] == "w" and cur["w"] != o[4]:
            t = o[4]; cur["w"] = t
            fills[gi] += [f"s_add_u32 m0, s33, {(SLOT + [0, 65536])[t]}", f"s_mov_b32 s31, {t << 20}" if t < 8 else f"s_add_u32 s31, s45, {(t-8)*32768}"]
        if o[3] == "s" and o[4] == 8: fills[gi] += ["s_cmp_eq_u32 s30, 0", "s_cselect_b32 s18, 0, s18"]
        fills[gi] += [o[5]]
        pos[(o[3], o[4])] = gi
        if cfg.get("p2v"): print(o[3], o[4], "at", gi, "earliest", o[0], "deadline", o[1])
        g += o[2] * rate
    W0 = (["s_cmp_eq_u32 s28, 0"], "s_cbranch_scc1")
    off0 = [f"s_add_u32 s36, s29, {CNT_KV0}", "s_lshl_b32 s36, s36, 7"]
    nkv = Need("vm", [("st", q) for q in range(8)])
    sg = off0 + signal("s[90:91]", "s36", "v62", "v63")
    pl = off0 + [f"v_mov_b32 {vZ}, s36", VM(f"global_load_dword {vPOLL}, {vZ}, s[90:91] sc1", "poll")]
    ck = [Need("vm", ["poll"])] + check(k, "s[90:91]", vZ, vPOLL, 1)
    for t, gb in beta.items():
        b = [Need("vm", [("W", t+1)])]
        if t == 4:
            assert cfg.get("nokvst") or pos[("s", 7)] < gb - 20
            b += [Alt(A.ool(k, ["s_cmp_eq_u32 s30, 0"], "s_cbranch_scc1", [nkv]), lambda c: [nkv] if c["fast"] else [])]
        if t == 6: b += [Alt(A.ool(k, *W0, ck), lambda c: ck if c["w0"] else []), "s_waitcnt lgkmcnt(0)"]
        pre[gb] = b + ["s_barrier"] + pre[gb]
    fills[beta[4]+1] += [Alt(A.ool(k, ["s_lshl_b32 s36, s30, 3", "s_add_u32 s36, s28, s36", "s_cmp_eq_u32 s36, 4"], "s_cbranch_scc1", sg),
                             lambda c: sg if c["sg"] else [])]
    fills[beta[6]-44] += [Alt(A.ool(k, *W0, pl), lambda c: pl if c["w0"] else [])]
    if "2" in cfg.get("cpf", ""):
        fills[int(cfg.get("cp2", 330))] += [Alt(A.ool(k, ["s_cmp_eq_u32 s28, 5"], "s_cbranch_scc1", code_touch(k, 18, "v0")), lambda c: [])]
    if qw:
        pk = [f"s_mov_b32 s36, {A.CSCALE}"]
        for f in (0, 4, 1, 5):
            a = A.O_ + 8*f
            pk += [f"v_mul_f32 v{a+e}, s36, v{a+e}" for e in range(8)] + [f"v_cvt_pk_bf16_f32 v{A.Q_+4*f+q}, v{a+2*q}, v{a+2*q+1}" for q in range(4)]
        g0 = NG - 8*qw + 1
        for i, x in enumerate(pk): fills[g0 + i * (NG - g0) // len(pk)] += [x]
        cfg["qdone"] = (0, 4, 1, 5)
    for t in range(8): fills[64*t+63] += cfg["sth2"].hist(8, first=(t == 0))
    body = weave(M, fills, pre)
    early = [store(q) for q in range(8, 16)]
    earlyA = Alt(A.ool(k, ["s_cmp_eq_u32 s30, 0"], "s_cbranch_scc1", early), lambda c: early if c["fast"] else [])
    prox = [xld2(1, s_) for s_ in range(XP)]
    pro2 = [wrd(f) for f in range(D)]
    n0 = Need("vm", [("x", 0, int(cfg.get("x0w", 1)))])
    nq = Need("vm", [("W", 8)] + [("st", q) for q in range(16)])
    scen = []
    for w0, fast, sg_ in ((0, 0, 0), (1, 0, 0), (0, 1, 0), (1, 1, 0), (0, 1, 1)):
        scen.append(flat([xld2(0, s_) for s_ in range(4)]) + [VM("", ("W", 1))]*4 + flat([pro2, prox, n0, earlyA, body, nq], dict(w0=w0, fast=fast, sg=sg_)))
    resolve(scen)
    cfg["qwait"] = nq.n
    st.mark()
    emit(k, pro2)
    work = lines(kv_pack)
    pre_ops = W1 + [[x] for x in flat(prox)]
    step = 64 // len(pre_ops)
    for i, x in enumerate(work):
        if i % step == 0 and i // step < len(pre_ops): emit(k, pre_ops[i // step])
        k.e(x)
    emit(k, [n0, earlyA])
    st.mark()
    emit(k, body)
    st.mark()
```

```python
from common import *
import attn as A
import ffn as F
import oproj as O
from fused_a import *

X32, G = 96, 112
XI, YA = 40, 24
WR4, XF4 = 64, [128, 160]
PRE, FW, HH, DD = 96, 112, 36, 96
LDS_P4 = 65536

CFG = {}
def PX(): return 1 if CFG.get('skew') else 4
def after_q(k, grp):
    srd(k, 16, 54, 16777216 + DELTA, WS_CTX)
    if grp == 0:
        srd(k, 4, 92, 7340032)
        srd(k, 8, 94, 7340032)
        k.e("s_and_b32 s60, s29, 3")
        k.e(f"s_add_u32 s60, s60, {CFG.get('e0', 4)}")
        k.e("s_sub_u32 s3, s2, 32")
        k.e("s_cmp_eq_u32 s28, 0")
        k.e("s_cselect_b32 s36, 0xad, 0x2d")
        k.e("s_cselect_b32 s42, 14, 12")
        k.e("s_cmp_lt_u32 s3, 224")
        k.e("s_cselect_b32 s36, s36, 0")
        k.e("s_lshl_b32 s36, s36, s60")
        k.e("s_or_b32 s42, s42, s36")
    else:
        emit(k, A.ool(k, ["s_cmp_eq_u32 s28, 4"], "s_cbranch_scc1", ["s_lshl_b32 s36, s29, 7", "s_cmp_eq_u32 s30, 0", "s_cselect_b32 s37, 4, 0", "s_add_u32 s36, s36, s37"] + signal("s[90:91]", "s36", "v20", "v21")))
        nl = int(CFG.get("btl", 32))
        j0 = int(CFG.get("btj", 4)); ev = int(CFG.get("bte", 0))
        nw = (8 - j0) * (32 >> ev) * 2
        ch = -(-8388608 // nw // 128) * 128
        k.e(f"s_sub_u32 s36, s2, {32*j0}")
        if ev:
            k.e("s_and_b32 s37, s2, 1")
            k.e("s_lshl_b32 s37, s37, 20")
            k.e("s_or_b32 s36, s36, s37")
        else: k.e("s_lshl_b32 s36, s36, 1")
        k.e("s_and_b32 s37, s28, 1")
        k.e("s_add_u32 s36, s36, s37")
        k.e("s_min_u32 s36, s36, 1024")
        k.e(f"s_mul_i32 s36, s36, {ch}")
        k.e("s_cmp_lt_u32 s28, 6")
        k.e("s_cselect_b64 s[4:5], s[32:33], s[34:35]")
        k.e("s_cselect_b32 s37, 32, 28")
        k.e("s_lshl_b32 s37, s37, 18")
        k.e("s_min_u32 s36, s36, s37")
        k.e("s_sub_u32 s6, s37, s36")
        k.e(f"s_min_u32 s6, s6, {0 if CFG.get('nobt') else ch}")
        k.e("s_add_u32 s4, s4, s36")
        k.e("s_addc_u32 s5, s5, 0")
        k.e("s_and_b32 s5, s5, 0xffff")
        k.e("s_mov_b32 s7, 0x20000")
        k.e(f"v_cmp_gt_u32 vcc, {nl}, v1")
        k.e("v_lshlrev_b32 v13, 7, v1")
        k.e("v_mov_b32 v12, 0x100000")
        k.e("v_cndmask_b32 v13, v12, v13, vcc")
        k.e("s_mov_b32 s48, 0")
        if "3" in CFG.get("cpf", ""):
            k.e("s_cmp_eq_u32 s28, 5")
            k.e("s_cselect_b32 s36, 0x1000, 0")
            k.e("s_or_b32 s42, s42, s36")

def pro_wait(k, grp):
    if grp == 0: return ["s_waitcnt vmcnt(0)"]
    l = k.newlabel("pw")
    return ["s_waitcnt vmcnt(1)", "s_cmp_eq_u32 s28, 4", f"s_cbranch_scc1 {l}", "s_waitcnt vmcnt(0)", l + ":"]

def pro_hook(k, grp):
    if grp == 0:
        return A.ool(k, ["s_cmp_eq_u32 s28, 0"], "s_cbranch_scc1",
                     ["s_lshl_b32 s36, s29, 7", "v_mov_b32 v13, s36", "global_load_dword v14, v13, s[90:91] sc1"])
    return []

def b_hook(k):
    l = k.newlabel("bh")
    return ["s_cmp_eq_u32 s40, 12", f"s_cbranch_scc0 {l}"] + code_touch(k, 26, "v0") + [l + ":"]

def f1dma(m):
    L = ["s_and_b32 s20, s3, 3", "s_lshl_b32 s20, s20, 8", "s_lshl_b32 s21, s28, 5", "s_add_u32 s20, s20, s21",
         "s_lshr_b32 s21, s3, 2", "s_lshl_b32 s21, s21, 7"] + lines(F.wdma_addr, 24, "s20", 7168, "s21")
    L += ["s_lshl_b32 s36, s28, 13", f"s_add_u32 m0, s36, {LDS_X}", f"s_mov_b32 s37, {32*7168}"]
    L += [f"buffer_load_dwordx4 v{24+j}, s[{4+4*m}:{7+4*m}], 0 offen offset:{j*1024}{NT(CFG, 'f')} lds" for j in range(4)]
    L += [f"s_add_u32 m0, s36, {LDS_X+4096}", "s_nop 0"]
    L += [f"buffer_load_dwordx4 v{24+j}, s[{4+4*m}:{7+4*m}], s37 offen offset:{j*1024}{NT(CFG, 'f')} lds" for j in range(4)]
    return L

def bar_hook(k, grp):
    if grp == 1: return []
    QS = A.QS_
    keys = [f"s_mov_b32 s36, {F.WS_KEY}"] + [f"buffer_load_dwordx4 {v(QS+4*i,4)}, {A.vL16}, s[24:27], s36 offen offset:{i*1024}{SC}" for i in range(2)]
    t2 = K("t"); F.top2(t2, QS, 24, 8, 20)
    top = [x.strip() for x in t2.lines]
    top += ["v_and_b32 v24, 1, v1", "v_mov_b32 v25, s56", "v_mov_b32 v26, s57", "v_cmp_eq_u32 vcc, 1, v24", "s_nop 1",
            "v_cndmask_b32 v25, v25, v26, vcc", "v_lshrrev_b32 v26, 4, v25", "v_lshlrev_b32 v26, 15, v26", "v_and_b32 v25, 15, v25",
            "v_lshl_add_u32 v26, v25, 4, v26", "v_lshrrev_b32 v27, 4, v1", "v_lshl_add_u32 v26, v27, 8, v26",
            ] + (["v_bfe_u32 v25, v26, 7, 3", "v_cmp_eq_u32 vcc, 3, v25", f"v_add_u32 v25, {DELTA}, v26", "s_nop 0", "v_cndmask_b32 v26, v26, v25, vcc"] if "x" in HOLE[0] else []) + [
            "s_and_b32 s36, s3, 3", "s_lshl_b32 s36, s36, 13", "s_add_u32 s37, s36, 4096",
            "s_mov_b32 exec_lo, 0x00030003", "s_mov_b32 exec_hi, 0x00030003"]
    top += [f"buffer_load_dwordx4 {v(QS+4*i,4)}, v26, s[24:27], s{36+i//4} offen offset:{(i%4)*1024}{SC}" for i in range(8)]
    top += ["s_mov_b64 exec, -1"]
    dma = f1dma
    def mm(m):
        FRG = [14, 20, 24]
        L = lines(F.wrd_addr, "v5", "v9", "v8")
        L += ["v_xor_b32 v9, s28, v9", "v_lshl_add_u32 v5, v9, 5, v5", f"v_add_u32 v5, {LDS_X}, v5"]
        rd = lambda ss: [f"ds_read_b64_tr_b16 {v(FRG[s_%3]+2*t,2)}, v5 offset:{(32*s_+4*t)*128}" for s_ in ss for t in range(2)]
        L += rd(range(3))
        L += ["s_and_b32 s36, s3, 3", "s_lshl_b32 s36, s36, 6", "s_lshr_b32 s37, s3, 2", "s_lshl_b32 s37, s37, 12", "s_add_u32 s36, s36, s37",
              "s_lshl_b32 s37, s28, 10", "s_add_u32 s36, s36, s37", f"s_add_u32 s36, s36, {WS_PRE + 32*m}",
              "v_and_b32 v9, 1, v1", "v_lshlrev_b32 v9, 4, v9", "v_lshl_add_u32 v9, v8, 8, v9"]
        for s_ in range(8):
            L += [f"s_waitcnt lgkmcnt({2*min(2, 7-s_)})", f"{MF} v[10:13], {v(FRG[s_%3],4)}, {v(QS+4*s_,4)}, {'v[10:13]' if s_ else '0'}"]
            if s_ + 3 < 8: L += rd([s_+3])
        L += ["s_nop 5", "s_mov_b32 exec_lo, 0x00030003", "s_mov_b32 exec_hi, 0x00030003",
              f"buffer_store_dwordx4 v[10:13], v9, s[24:27], s36 offen{SC}", "s_mov_b64 exec, -1", "s_nop 1"]
        return L
    sig = ["s_mul_i32 s36, s3, 2341", "s_lshr_b32 s36, s36, 16", f"s_add_u32 s36, s36, {CNT_F1}", "s_lshl_b32 s36, s36, 7"] + signal("s[90:91]", "s36", "v20", "v21")
    dbg = CFG.get("f1", "")
    if "d" in dbg: dma = lambda m: []
    if "m" in dbg: mm = lambda m: []
    if "t" in dbg: keys = []; top = ["s_mov_b32 s56, 0", "s_mov_b32 s57, 0"]
    ffn = ["s_sub_u32 s38, s40, s60"] + switch(k, "s38", [(0, dma(0)), (2, mm(0)), (3, dma(1)), (5, mm(1)), (7, sig)])
    return A.ool(k, ["s_bitcmp1_b32 s42, s40"], "s_cbranch_scc1",
                 switch(k, "s40", [(1, check(k, "s[90:91]", "v13", "v14", 7)), (2, keys), (3, top), (4, ffn)]))

def before_tail(k, grp):
    if CFG.get("wt"):
        srd(k, 8, 32, 8388608)
        k.e(wt_addr())
        T = 256*2048
        if CFG.get("skew"):
            k.e(["s_bitcmp0_b32 s2, 0" if CFG["skew"] == "1" else "s_bitcmp1_b32 s2, 0", f"s_cselect_b32 s36, {T}, 0", "s_cselect_b32 s37, 8, 2", "s_lshl_b32 s37, s37, 19"])
        else:
            k.e(["s_lshr_b32 s36, s29, 4", "s_lshl_b32 s36, s36, 22", f"s_add_u32 s37, s36, {T}"])
        k.e(["buffer_load_dword v0, v17, s[8:11], s36 offen", "buffer_load_dword v0, v17, s[8:11], s37 offen", f"v_add_u32 v17, {T}, v17",
             "buffer_load_dword v0, v17, s[8:11], s37 offen"])
        if not CFG.get("skew"): k.e("v_add_u32 v17, s36, v17")
    k.e("s_lshr_b32 s36, s2, 5")
    k.e(f"s_add_u32 s36, s36, {CNT_F1}")
    k.e("s_lshl_b32 s36, s36, 7")
    k.e("v_mov_b32 v12, s36")
    k.e("global_load_dword v11, v12, s[90:91] sc1")

def wt_addr():
    nl = int(CFG.get("wt", 2))
    L = ["s_lshr_b32 s36, s2, 3", "s_lshl_b32 s36, s36, 3", "s_add_u32 s36, s36, s28", "s_lshl_b32 s36, s36, 11"]
    if nl == 2: L += ["s_sub_u32 s37, 384, s8", "s_and_b32 s37, s37, 0x380", "s_add_u32 s36, s36, s37", "v_lshl_add_u32 v17, v1, 10, s36"]
    else: L += ["s_sub_u32 s37, 256, s8", "s_and_b32 s37, s37, 0x300", "s_add_u32 s36, s36, s37", "v_lshrrev_b32 v17, 1, v1", "v_lshl_add_u32 v17, v17, 10, s36",
                "v_and_b32 v16, 1, v1", "v_lshl_add_u32 v17, v16, 7, v17"]
    return L + [f"v_cmp_gt_u32 vcc, {nl}, v1", "v_mov_b32 v16, 0x40000000", "s_nop 0", "v_cndmask_b32 v17, v16, v17, vcc"]

def tail_extra(k, grp):
    L = lines(srd, 4, 34, 7340032) + lines(srd, 8, 32, 8388608)
    L += ["s_lshr_b32 s38, s2, 4", "s_mul_i32 s38, s38, 224", "s_and_b32 s39, s2, 15", "s_lshl_b32 s39, s39, 7"]
    L += lines(F.wdma_addr, 24, "s38", 2048, "s39")
    L += ["s_lshl_b32 s36, s28, 12", f"s_add_u32 s36, s36, {LDS_X}"]
    G = [[x] for x in L] + [["s_cmp_lt_u32 s28, 7", "s_cselect_b32 m0, s36, 0x30000", "s_cselect_b32 s6, 7340032, 0"]]
    return G + [[f"buffer_load_dwordx4 v{24+j}, s[4:7], 0 offen offset:{j*1024} lds"] for j in range(4)]

def before_merge(k):
    k.e("s_waitcnt vmcnt(4)")
    emit(k, check(k, "s[90:91]", "v12", "v11", 28))
    k.e(["s_lshr_b32 s36, s2, 4", "s_mul_i32 s36, s36, 7", "s_min_u32 s37, s28, 6", "s_add_u32 s36, s36, s37",
         "s_lshl_b32 s36, s36, 11", f"s_add_u32 s36, s36, {WS_PRE}", "v_and_b32 v11, 15, v1", "v_lshlrev_b32 v11, 4, v11",
         "v_lshrrev_b32 v12, 4, v1", "v_lshl_add_u32 v11, v12, 9, v11"])
    k.e([f"buffer_load_dwordx4 {v(PRE+4*h,4)}, v11, s[24:27], s36 offen offset:{256*h}{SC}" for h in range(2)])

def gcalc(k, withy, cbs=range(4)):
    for cb in cbs:
        for h in range(2):
            a, b = X32+4*cb+2*h, X32+4*cb+2*h+1
            ga, gb = G+4*cb+2*h, G+4*cb+2*h+1
            k.e(f"v_lshlrev_b32 v{a}, 16, v{XI+2*cb+h}")
            k.e(f"v_and_b32 v{b}, 0xffff0000, v{XI+2*cb+h}")
            k.e(f"v_sub_f32 v{ga}, v{a}, v{XI+8}")
            k.e(f"v_sub_f32 v{gb}, v{b}, v{XI+8}")
            def rnd2():
                k.e(f"v_cvt_pk_bf16_f32 v10, v{ga}, v{gb}")
                k.e(f"v_lshlrev_b32 v{ga}, 16, v10")
                k.e(f"v_and_b32 v{gb}, 0xffff0000, v10")
            rnd2()
            k.e(f"v_mul_f32 v{ga}, v{ga}, v{XI+9}")
            k.e(f"v_mul_f32 v{gb}, v{gb}, v{XI+9}")
            rnd2()
            if withy:
                k.e(f"v_add_f32 v{ga}, v{ga}, v{YA+4*cb+2*h}")
                k.e(f"v_add_f32 v{gb}, v{gb}, v{YA+4*cb+2*h+1}")
                rnd2()
            k.e(f"v_mul_f32 v11, 0xbfb8aa3b, v{ga}")
            k.e(f"v_mul_f32 v12, 0xbfb8aa3b, v{gb}")
            k.e("v_exp_f32 v11, v11")
            k.e("v_exp_f32 v12, v12")
            k.e("s_nop 0")
            k.e("v_add_f32 v11, 1.0, v11")
            k.e("v_add_f32 v12, 1.0, v12")
            k.e("v_rcp_f32 v11, v11")
            k.e("v_rcp_f32 v12, v12")
            k.e("s_nop 0")
            k.e(f"v_mul_f32 v{ga}, v{ga}, v11")
            k.e(f"v_mul_f32 v{gb}, v{gb}, v12")
            rnd2()

def ffn2_math(k):
    F.wrd_addr(k, "v26", "v27", "v28")
    k.e("s_lshl_b32 s36, s28, 12")
    k.e(f"s_add_u32 s36, s36, {LDS_X}")
    k.e("v_add_u32 v26, s36, v26")
    for cb in range(4):
        k.e(f"v_xor_b32 v28, {cb}, v27")
        k.e("v_lshl_add_u32 v28, v28, 5, v26")
        for t in range(2):
            k.e(f"ds_read_b64_tr_b16 {v(FW+4*cb+2*t,2)}, v28 offset:{4*t*128}")
    for m in ("row_ror:4", "row_ror:8"):
        for e in range(8): k.e(f"v_add_f32_dpp v{PRE+e}, v{PRE+e}, v{PRE+e} {m} row_mask:0xf bank_mask:0xf")
    for e in range(0, 8, 2):
        k.e(f"v_cvt_pk_bf16_f32 v29, v{PRE+e}, v{PRE+e+1}")
        k.e(f"v_lshlrev_b32 v{PRE+e}, 16, v29")
        k.e(f"v_and_b32 v{PRE+e+1}, 0xffff0000, v29")
    for e in range(8): k.e(f"v_mul_f32 v{PRE+8+e}, 0xbfb8aa3b, v{PRE+e}")
    for e in range(8): k.e(f"v_exp_f32 v{PRE+8+e}, v{PRE+8+e}")
    for e in range(8): k.e(f"v_add_f32 v{PRE+8+e}, 1.0, v{PRE+8+e}")
    for e in range(8): k.e(f"v_rcp_f32 v{PRE+8+e}, v{PRE+8+e}")
    for e in range(8): k.e(f"v_mul_f32 v{PRE+8+e}, v{PRE+e}, v{PRE+8+e}")
    for e in range(0, 8, 2):
        k.e(f"v_cvt_pk_bf16_f32 v29, v{PRE+8+e}, v{PRE+8+e+1}")
        k.e(f"v_lshlrev_b32 v{PRE+8+e}, 16, v29")
        k.e(f"v_and_b32 v{PRE+8+e+1}, 0xffff0000, v29")
    for e in range(8): k.e(f"v_mul_f32_dpp v{PRE+e}, v{PRE+e}, v{PRE+8+e} quad_perm:[2,3,0,1] row_mask:0xf bank_mask:0xf")
    for q in range(4): k.e(f"v_cvt_pk_bf16_f32 v{HH+q}, v{PRE+2*q}, v{PRE+2*q+1}")
    k.e("s_waitcnt lgkmcnt(0)")
    k.e("v_lshl_add_u32 v28, v1, 4, s36")
    for cb in range(4): k.e(f"{MF} {v(DD+4*cb,4)}, {v(FW+4*cb,4)}, {v(HH,4)}, 0")
    k.e("s_nop 7")
    for cb in range(4): k.e(f"ds_write_b128 v28, {v(DD+4*cb,4)} offset:{cb*1024}")

def ffn2_reduce():
    L = ["s_lshl_b32 s36, s28, 10", f"s_add_u32 s36, s36, {LDS_X}", "v_lshl_add_u32 v28, v1, 4, s36"]
    L += [f"ds_read_b128 {v(PRE+4*w,4)}, v28 offset:{w*4096}" for w in range(7)]
    L += ["s_lshr_b32 s36, s2, 4", "s_lshl_b32 s36, s36, 13", "s_and_b32 s37, s2, 15", "s_lshl_b32 s37, s37, 8", "s_add_u32 s36, s36, s37",
          "s_lshl_b32 s37, s28, 6", "s_add_u32 s36, s36, s37", f"s_add_u32 s36, s36, {WS_YP}",
          "v_and_b32 v28, 1, v1", "v_lshlrev_b32 v28, 12, v28", "v_lshl_add_u32 v28, v19, 4, v28", "s_waitcnt lgkmcnt(0)"]
    for w in range(1, 7):
        L += [f"v_add_f32 v{PRE+e}, v{PRE+e}, v{PRE+4*w+e}" for e in range(4)]
    L += ["s_mov_b32 exec_lo, 0x00030003", "s_mov_b32 exec_hi, 0x00030003",
          VM(f"buffer_store_dwordx4 {v(DD,4)}, v28, s[24:27], s36 offen{SC}", "yp"), "s_mov_b64 exec, -1", "s_nop 3"]
    return L

def p4_setup(k):
    tw = int(CFG.get("tw", 2))
    skew = CFG.get("skew")
    if skew:
        k.e("s_and_b32 s63, s2, 1")
        if skew == "2": k.e("s_xor_b32 s63, s63, 1")
    else: k.e("s_lshr_b32 s63, s29, 4")
    k.e("s_lshl_b32 s36, s30, 2")
    k.e(f"s_lshr_b32 s30, {CFG.get('jp', '0x76534210')}, s36")
    k.e("s_and_b32 s30, s30, 7")
    k.e(f"s_and_b32 s36, s30, {7 & ~((1 << tw) - 1)}")
    k.e("s_add_u32 s43, s30, s36")
    k.e(f"s_lshl_b32 s36, s63, {tw}")
    k.e("s_add_u32 s30, s43, s36")
    if skew:
        k.e("s_and_b32 s29, s29, 3")
        k.e("s_and_b32 s36, s2, 6")
        k.e("s_lshl_b32 s36, s36, 1")
        k.e("s_add_u32 s29, s29, s36")
    else: k.e("s_and_b32 s29, s29, 15")
    k.e("s_and_b32 s36, s28, 3")
    k.e("s_lshl_b32 s37, s29, 2")
    k.e("s_add_u32 s36, s36, s37")
    k.e("s_lshl_b32 s36, s36, 18")
    k.e("s_lshr_b32 s37, s28, 2")
    k.e("s_lshl_b32 s37, s37, 12")
    k.e("s_add_u32 s36, s36, s37")
    if not skew:
        k.e("s_lshl_b32 s37, s63, 16")
        k.e("s_add_u32 s36, s36, s37")
    k.e("s_lshr_b32 s37, s28, 2")
    k.e("s_lshl_b32 s37, s37, 17")
    k.e("s_add_u32 s36, s36, s37")
    k.e("v_lshl_add_u32 v2, v1, 4, s36")
    k.e(hole("c", "v2"))
    k.e(f"v_xor_b32 v3, {1<<17}, v2")
    k.e("v_lshrrev_b32 v19, 4, v1")
    k.e("s_lshr_b32 s36, s28, 2")
    k.e("s_lshl_b32 s36, s36, 7")
    k.e("s_and_b32 s37, s28, 3")
    k.e("s_lshl_b32 s37, s37, 4")
    k.e("s_add_u32 s36, s36, s37")
    k.e("s_lshl_b32 s33, s36, 8")
    if not skew:
        k.e("s_lshl_b32 s37, s63, 11")
        k.e("s_add_u32 s36, s36, s37")
    k.e("v_add_u32 v18, s36, v19")
    k.e("v_lshlrev_b32 v18, 11, v18")
    k.e("s_lshl_b32 s36, s43, 7")
    k.e("v_add_u32 v18, s36, v18")
    k.e("v_lshlrev_b32 v20, 1, v19")
    k.e("v_and_b32 v21, 7, v1")
    k.e("v_xor_b32 v20, v20, v21")
    k.e("v_lshl_add_u32 v18, v20, 4, v18")
    k.e("v_and_b32 v21, 8, v1")
    k.e(f"v_lshl_add_u32 v6, v21, {4 + tw}, v18")
    k.e("v_xor_b32 v21, 8, v21")
    k.e(f"v_lshl_add_u32 v7, v21, {4 + tw}, v18")
    k.e(f"v_add_u32 v7, {8192-1024}, v7")
    k.e(f"v_add_u32 v8, {2*(8192-1024)}, v6")
    k.e(f"v_add_u32 v9, {2*(8192-1024)}, v7")
    k.e("s_add_u32 s36, s2, 1")
    k.e("s_mov_b32 s62, 0" if CFG.get("evn") else "s_and_b32 s62, s36, 3")
    if skew:
        k.e("s_cmp_eq_u32 s63, 0")
        k.e("s_cselect_b32 s62, 4, 1")
        k.e("s_cselect_b32 s31, 8192, 0")
        k.e(f"s_cselect_b32 s32, {256*2048}, 0")
    else:
        k.e("s_mov_b32 s31, 0")
        k.e("s_mov_b32 s32, 0")

def p4_setup2(k):
    k.e("v_bfe_u32 v20, v1, 2, 2")
    k.e("v_lshl_add_u32 v18, v19, 2, v20")
    k.e("v_and_b32 v20, 7, v18")
    k.e("s_lshl_b32 s36, s63, 2")
    k.e("s_xor_b32 s36, s36, 4")
    k.e("v_xor_b32 v20, s36, v20")
    k.e("v_lshlrev_b32 v18, 8, v18")
    k.e("s_lshr_b32 s36, s28, 2")
    k.e("s_lshl_b32 s36, s36, 15")
    if not CFG.get("skew"): k.e("s_add_u32 s36, s36, 65536")
    k.e("v_add_u32 v18, s36, v18")
    k.e("v_and_b32 v21, 3, v1")
    k.e("v_lshl_add_u32 v18, v21, 3, v18")
    for cb in range(8):
        k.e(f"v_xor_b32 v21, {cb}, v20")
        k.e(f"v_lshl_add_u32 v{50+cb}, v21, 5, v18")

def ctx_ready(k, pre=None):
    l, le, lc = k.newlabel("cspin"), k.newlabel("cspinx"), k.newlabel("cchk")
    L = ["s_mov_b32 s61, 0x40000"]
    if pre is not None: L += [f"s_waitcnt vmcnt({pre})", f"s_branch {lc}"]
    return L + [l + ":", "s_sub_u32 s61, s61, 1", f"s_cbranch_scc1 {le}",
            "global_load_dword v59, v58, s[90:91] sc1", "s_waitcnt vmcnt(0)", lc + ":", "v_cmp_le_u32 vcc, 4, v59", "s_nop 0",
            "s_and_b32 s60, vcc_lo, 31", "s_and_b32 s36, s60, s44", "s_cmp_eq_u32 s36, s44", f"s_cbranch_scc1 {le}",
            "s_sleep 6", f"s_branch {l}", le + ":", "s_lshl_b32 s44, s44, 1", "s_or_b32 s44, s44, 1", "s_and_b32 s44, s44, 31"]

def p4_pieces(k, cfg, f2A, xl):
    D, NG = 6, 512
    def wset(n): return [f"s_add_u32 m0, s33, {((n//2 & 1)^1)*65536 + (n&1)*16384}", f"s_mov_b32 s32, {(n//2*256 + (n&1)*64)*2048}"]
    def wop(n, j): return VM(f"buffer_load_dwordx4 v{6+j}, s[8:11], s32 offen offset:{j*1024} lds", ("W", n))
    def xld(t, s_): return [VM(f"buffer_load_dwordx4 {v(XF4[t&1]+(s_*2+rb)*4,4)}, v{2+rb}, s[4:7], s31 offen offset:{s_*1024}{SC}", ("x", t, s_)) for rb in range(2)]
    nf = int(cfg.get("nf", 1))
    seq = [(t, s_, cb) for t in range(8) for s_ in range(4) if 4*t + s_ < 24 + nf for cb in range(8)]
    for c0 in (0, 4): seq += [(t, s_, cb) for t in (6, 7) for s_ in range(4) if 4*t + s_ >= 24 + nf for cb in range(c0, c0+4)]
    p2s = 384 + 2 * (32 + 4*nf)
    use = {}; last = {}
    for p, q in enumerate(seq): use.setdefault(q[:2], p); last[q[:2]] = p
    def rd(f):
        t, s_, cb = seq[f]
        return [DS(f"ds_read_b64_tr_b16 {v(WR4+4*(f%8)+2*h,2)}, v{50+cb} offset:{(32*s_+16*h)*256}", ("w", f % 8)) for h in range(2)] + \
               ([f"v_xor_b32 v{50+cb}, 65536, v{50+cb}"] if s_ == 3 and t < 7 else [])
    M, fills, pre = [], [[] for _ in range(NG)], {}
    beta = {}
    for p, (t, s_, cb) in enumerate(seq):
        for rb in range(2):
            o = A.Oreg(rb, cb)
            M.append(f"{MF} {v(o,4)}, {v(WR4+4*(p%8),4)}, {v(XF4[t&1]+(s_*2+rb)*4,4)}, {v(o,4) if p >= 8 else '0'}")
        if p % 2 == 0: pre[2*p] = [Need("ds", [("w", p % 8), ("w", (p+1) % 8)])]
        if use[(t, s_)] == p: pre[2*p] += [Need("vm", [("x", t, s_)])]
    for f in range(D, 256):
        r = rd(f)
        if f < 192 + D and f % 16 < D:
            g = f // 16 * 32 - 8 + [0, 1, 2, 3, 4, 6][f % 16]
            fills[g] += r
        else:
            fills[2*(f-D)] += r[:1]; fills[2*(f-D)+1] += r[1:]
    for n in range(1, 13): beta[n] = 32*n - 9
    for n in range(13, 16): beta[n] = 2 * ((use[(n//2, 2*(n&1))] - D) // 2 * 2) - 1
    WP, XP = int(cfg.get("wpre", 4)), int(cfg.get("xa", 2))
    LW, LX = int(cfg.get("lw", 36)), int(cfg.get("lx", 40))
    ops = []
    for n in range(WP, 16):
        for j in range(4): ops.append([beta[n-3] + 1 if n >= 4 else 0, beta[n] - LW - 4*(3-j), "w", n, wop(n, j)])
    for t in range(1, 8):
        for s_ in range(4):
            if t == 1 and s_ < XP: continue
            for x in xld(t, s_): ops.append([2*last[(t-2, s_)] + 2 if t >= 2 else 0, 2*use[(t, s_)] - LX, "x", t, x])
    rate = max(o[1] for o in ops) / len(ops)
    g, cur, xfirst, at = 0.0, {"x": 1, "w": None}, {}, []
    while ops:
        av = [o for o in ops if o[0] <= g]
        if not av:
            g = min(o[0] for o in ops); continue
        o = min(av, key=lambda o: o[1]); ops.remove(o)
        gi = int(g)
        if o[2] == "x":
            xfirst.setdefault(o[3], gi)
            if cur["x"] != o[3]: fills[gi] += [f"s_mov_b32 s31, {o[3]*8192}"]; cur["x"] = o[3]
        if o[2] == "w" and cur["w"] != o[3]: fills[gi] += wset(o[3]); cur["w"] = o[3]
        fills[gi] += [o[4]]; at.append(gi)
        if cfg.get("p4v"): print(o[2], o[3], "at", gi, "earliest", o[0], "deadline", o[1])
        g += rate
    between = lambda g0, g1: min(sum(1 for x in at if g0 < x < g1), 40)
    extra = {n: [] for n in beta}
    r0 = int(cfg.get("rdy0", 2))
    for grp in range(r0, 4):
        n = max(m for m in beta if beta[m] < xfirst[2*grp])
        gp = beta[n] - 30 if n > 1 else 0
        fills[gp] += [Alt(A.ool(k, ["s_cmp_lt_u32 s60, 31"], "s_cbranch_scc1", ["global_load_dword v59, v58, s[90:91] sc1"]), lambda c: [])]
        extra[n] += [Alt(A.ool(k, ["s_cmp_lt_u32 s60, 31"], "s_cbranch_scc1", ctx_ready(k, between(gp, beta[n]))), lambda c: [])]
    for n, gb in beta.items():
        fills[gb] += extra[n] + (["s_waitcnt lgkmcnt(0)"] if n <= 12 else []) + [Need("vm", [("W", n), "yp" if n == 3 else None]), "s_barrier"]
    fills[beta[3]+3] += [f2A]
    def rt(part, w):
        kr = K(k.name + f"_rt{part}"); routed(kr, part, w)
        return Alt(A.ool(k, RT, "s_cbranch_scc1", [x.strip() for x in kr.lines]), lambda c: [])
    gr = [250, 310, 372]
    fills[gr[0]] += [rt(0, 0)]
    fills[gr[1]] += [rt(1, between(gr[0], gr[1]))]
    fills[gr[2]] += [rt(2, between(gr[1], gr[2]))]
    gx = next(x for x in range(256, NG) if any(isinstance(y, str) and y.startswith("s_add_u32 m0") for y in fills[x]))
    fills[gx] = xl + fills[gx]
    if "4" in cfg.get("cpf", ""):
        fills[300] += [guard(k, ["s_cmp_eq_u32 s28, 0"], "s_cbranch_scc0", ["s_mov_b32 s43, s38"] + code_touch(k, 4, "v0") + ["s_mov_b32 s38, s43"], "w0")]
    fills[p2s-20] += [f"s_xor_b32 s37, s40, {PX() << 7}", "v_mov_b32 v5, s37", Need("vm", ["xl"])] + \
                     [DS(f"ds_read_b64 {v(XI+2*cb,2)}, v63 offset:{cb*32}", "xi") for cb in range(4)]
    e1 = p2s + 10
    for cb in range(4):
        fills[p2s+2+cb] += [DS(f"ds_write_b128 v20, {v(A.Oreg(1,cb),4)} offset:{cb*1024}", "e1w")]
        fills[e1+1+cb//2] += [DS(f"ds_read_b128 {v(A.Oreg(1,cb),4)}, v21 offset:{cb*1024}", ("e1r", cb))]
        o0, o1 = A.Oreg(0, cb), A.Oreg(1, cb)
        fills[e1+6+2*cb] += [Need("ds", [("e1r", cb)])] + [f"v_add_f32 v{o0+e}, v{o0+e}, v{o1+e}" for e in range(2)]
        fills[e1+7+2*cb] += [f"v_add_f32 v{o0+e}, v{o0+e}, v{o1+e}" for e in range(2, 4)]
        fills[e1+7+2*cb] += [VM(f"buffer_store_dwordx4 {v(o0,4)}, v18, s[24:27], s41 offen offset:{cb*1024}{SC}", "ex")]
    fills[e1] += [Need("ds", ["e1w"]), "s_barrier"]
    fills[506] += ["s_lshr_b32 s36, s28, 2", "s_lshl_b32 s36, s36, 15", "s_and_b32 s37, s28, 3"]
    fills[507] += ["s_lshl_b32 s37, s37, 12", "s_add_u32 s36, s36, s37", "s_add_u32 s36, s36, 65536"]
    fills[508] += ["v_add_u32 v20, s36, v22", "v_xor_b32 v21, 32768, v20"]
    fills[511] += ["s_waitcnt vmcnt(0)"] + signal("s[90:91]", "s40", "v4", "v13")
    for t in range(8): fills[64*t+62] += cfg["sth4"].hist(8, first=(t == 0))
    prow0 = [wset(n) + [wop(n, j) for j in range(4)] for n in range(WP)]
    prox = ["s_mov_b32 s31, 0"] + [xld(0, s_) for s_ in range(4)] + ["s_mov_b32 s31, 8192"]
    pro2 = [rd(f) for f in range(D)] + [Need("vm", [("x", 0, int(cfg.get("xw", 1)))])] + [xld(1, s_) for s_ in range(XP)]
    return prow0, prox, pro2, weave(M, fills, pre)

def routed(k, part, w):
    if part == 0:
        k.e([f"s_add_u32 s36, s30, {CNT_F2}", "s_lshl_b32 s36, s36, 7", "v_mov_b32 v60, s36", "global_load_dword v61, v60, s[90:91] sc1"])
        return
    if part == 1:
        k.e(f"s_waitcnt vmcnt({w})")
        emit(k, check(k, "s[90:91]", "v60", "v61", 16, 1))
        k.e(["s_lshl_b32 s37, s30, 8", f"s_add_u32 s36, s37, {WS_YP}", "s_add_u32 s37, s36, 4096",
             "v_and_b32 v60, 15, v1", "v_lshlrev_b32 v60, 13, v60", "v_lshl_add_u32 v60, v19, 4, v60"])
        for t in range(2):
            for cb in range(4):
                k.e(f"buffer_load_dwordx4 {v(96+16*t+4*cb,4)}, v60, s[24:27], s{36+t} offen offset:{cb*64}{SC}")
        return
    k.e(zero(YA, 16))
    k.e(f"s_waitcnt vmcnt({w})")
    for t in range(2):
        lsk = k.newlabel("noy")
        R = 96 + 16*t
        k.e(f"s_sub_u32 s36, s{56+t}, s38")
        k.e("s_cmp_lt_u32 s36, 16")
        k.e(f"s_cbranch_scc0 {lsk}")
        k.e(f"s_and_b32 s36, s{58+t}, 0xffff0000")
        k.e("s_cmp_lt_i32 s36, 0")
        k.e("s_cselect_b32 s37, 0x80000000, -1")
        k.e("s_xor_b32 s36, s36, s37")
        k.e("s_and_b32 s36, s36, 0xffff0000")
        k.e("v_mov_b32 v62, s36")
        k.e("v_mul_f32 v62, 0xbfb8aa3b, v62")
        k.e("v_exp_f32 v62, v62")
        k.e("s_nop 0")
        k.e("v_add_f32 v62, 1.0, v62")
        k.e("v_rcp_f32 v62, v62")
        k.e("s_nop 0")
        rbf(k, "v62")
        for m in ["quad_perm:[1,0,3,2]", "quad_perm:[2,3,0,1]", "row_half_mirror", "row_mirror"]:
            for r in range(16):
                k.e(f"v_add_f32_dpp v{R+r}, v{R+r}, v{R+r} {m} row_mask:0xf bank_mask:0xf")
        k.e(f"v_cmp_eq_u32 vcc, s{56+t}, v14")
        for r in range(0, 16, 2):
            for rep in range(2):
                k.e(f"v_cvt_pk_bf16_f32 v61, v{R+r}, v{R+r+1}")
                k.e(f"v_lshlrev_b32 v{R+r}, 16, v61")
                k.e(f"v_and_b32 v{R+r+1}, 0xffff0000, v61")
                if rep == 0: k.e([f"v_mul_f32 v{R+r}, v62, v{R+r}", f"v_mul_f32 v{R+r+1}, v62, v{R+r+1}"])
            k.e(f"v_cndmask_b32 v{YA+r}, v{YA+r}, v{R+r}, vcc")
            k.e(f"v_cndmask_b32 v{YA+r+1}, v{YA+r+1}, v{R+r+1}, vcc")
        k.label(lsk)

RT = ["s_sub_u32 s36, s56, s38", "s_sub_u32 s37, s57, s38", "s_min_u32 s36, s36, s37", "s_cmp_lt_u32 s36, 16"]
import os
if os.environ.get("NORT"): RT[-1] = "s_cmp_lt_u32 s36, 0"
def ex_addr():
    return ["s_lshl_b32 s36, s2, 15", "s_lshl_b32 s37, s28, 12", "s_add_u32 s36, s36, s37", f"s_add_u32 s36, s36, {WS_EX}"]

def p4_final(k, cfg):
    k.e("s_nop 4")
    for cb in range(4): k.e(f"ds_write_b128 v20, {v(A.Oreg(1,4+cb),4)} offset:{cb*1024}")
    gin = int(cfg.get("gin", 4)); gm = max(gin, int(cfg.get("gm", 2)))
    gcalc(k, False, range(gin, gm))
    cfg["st5"].mark()
    emit(k, A.ool(k, [f"s_cmp_eq_u32 s28, {cfg.get('exp', 3)}"], "s_cbranch_scc1", spin(k, "s[90:91]", "v5", "v23", 8, int(cfg.get("exs", 1)))))
    k.e("s_waitcnt lgkmcnt(0)")
    k.e("s_barrier")
    cfg["st5"].mark()
    for cb in range(4): k.e(f"buffer_load_dwordx4 {v(64+4*cb,4)}, v18, s[24:27], s39 offen offset:{cb*1024}{SC}")
    for cb in range(4): k.e(f"ds_read_b128 {v(128+4*cb,4)}, v21 offset:{cb*1024}")
    for cb in range(4):
        k.e(f"s_waitcnt lgkmcnt({3-cb})")
        for e in (0, 2): k.e(f"v_pk_add_f32 {v(128+4*cb+e,2)}, {v(128+4*cb+e,2)}, {v(A.Oreg(0,4+cb)+e,2)}")
    gcalc(k, False, range(gm, 4))
    emit(k, A.ool(k, RT, "s_cbranch_scc1", lines(gcalc, True)))
    for cb in range(4):
        k.e(f"s_waitcnt vmcnt({3-cb})")
        for h in range(2):
            a, b = 128+4*cb+2*h, 128+4*cb+2*h+1
            k.e(f"v_pk_add_f32 {v(a,2)}, {v(a,2)}, {v(64+4*cb+2*h,2)}")
            def rnd2():
                k.e(f"v_cvt_pk_bf16_f32 v23, v{a}, v{b}")
                k.e(f"v_lshlrev_b32 v{a}, 16, v23")
                k.e(f"v_and_b32 v{b}, 0xffff0000, v23")
            rnd2()
            k.e(f"v_pk_mul_f32 {v(a,2)}, {v(a,2)}, {v(G+4*cb+2*h,2)}")
            rnd2()
            k.e(f"v_pk_add_f32 {v(a,2)}, {v(a,2)}, {v(X32+4*cb+2*h,2)}")
            k.e(f"v_cvt_pk_bf16_f32 v{80+2*cb+h}, v{a}, v{b}")
        k.e(f"ds_write_b64 v63, {v(80+2*cb,2)} offset:{cb*32}")
    k.e("v_add_u32 v22, s42, v22")
    k.e(f"s_mov_b32 s36, {8*2048}")
    k.e("s_waitcnt lgkmcnt(0)")
    k.e("ds_read_b128 v[64:67], v22")
    k.e("ds_read_b128 v[68:71], v22 offset:1024")
    k.e("s_waitcnt lgkmcnt(1)")
    k.e(f"buffer_store_dwordx4 v[64:67], v15, s[20:23], 0 offen {cfg.get('ofl', '')}")
    k.e("s_waitcnt lgkmcnt(0)")
    k.e(f"buffer_store_dwordx4 v[68:71], v15, s[20:23], s36 offen {cfg.get('ofl', '')}")

def p4(k, cfg, st):
    kx = K("tmp")
    kx.e(["s_lshl_b32 s36, s29, 7", "s_and_b32 s37, s28, 3", "s_lshl_b32 s37, s37, 5", "s_add_u32 s36, s36, s37",
          "s_lshr_b32 s37, s28, 2", "s_lshl_b32 s37, s37, 4", "s_add_u32 s38, s36, s37",
          "v_and_b32 v63, 15, v1", "v_add_u32 v14, s38, v63", "v_lshlrev_b32 v16, 3, v14",
          "v_lshrrev_b32 v15, 3, v1", "v_add_u32 v15, s38, v15", "v_lshlrev_b32 v15, 11, v15", "v_and_b32 v4, 7, v1",
          "v_lshl_add_u32 v15, v4, 4, v15", "s_lshl_b32 s36, s30, 7", "v_add_u32 v15, s36, v15",
          "s_lshl_b32 s36, s28, 12", f"s_add_u32 s42, s36, {LDS_X}", "v_lshl_add_u32 v63, v63, 7, s42", "v_lshl_add_u32 v63, v19, 3, v63"])
    xl = ["s_mov_b32 m0, s42", f"s_mov_b32 s36, {8*2048-1024}", VM("buffer_load_dwordx4 v15, s[16:19], 0 offen lds"),
          VM("buffer_load_dwordx4 v15, s[16:19], s36 offen offset:1024 lds"),
          f"s_mov_b32 s36, {WS_ST}", VM(f"buffer_load_dwordx2 {v(XI+8,2)}, v16, s[24:27], s36 offen{SC}", "xl")]
    n_ctx = Need("vm", ["ctxst"])
    sig = ["v_mov_b32 v26, s40", "v_mov_b32 v28, 1", "v_writelane_b32 v26, s41, 1",
           "s_mov_b64 exec, 3", "global_atomic_add v26, v28, s[90:91]", "s_mov_b64 exec, -1"]
    sigA = Alt(A.ool(k, ["s_cmp_eq_u32 s28, 0"], "s_cbranch_scc1", sig), lambda c: sig if c["w0"] else [])
    redA = guard(k, ["s_cmp_lt_u32 s28, 4"], "s_cbranch_scc0", ffn2_reduce(), "lo")
    f2 = ["s_and_b32 s36, s2, 15", f"s_add_u32 s36, s36, {CNT_F2}", "s_lshl_b32 s36, s36, 7"] + signal("s[90:91]", "s36", "v26", "v27")
    f2A = guard(k, ["s_cmp_eq_u32 s28, 0"], "s_cbranch_scc0", f2, "w0")
    f2o = Alt(A.ool(k, ["s_cmp_eq_u32 s28, 0"], "s_cbranch_scc1", f2), lambda c: f2 if c["w0"] else [])
    prow0, prox, pro2, body = p4_pieces(k, cfg, f2o, xl)
    skew = None
    n_w0 = Need("vm", [("W", 0)])
    scen = []
    for w0, lo in ((1, 1), (0, 1), (0, 0)):
        if cfg.get("rp"): scen.append(flat([VM("", "ctxst"), prow0[:2], n_w0, sigA, prow0[2:], prox, redA, pro2, body], dict(w0=w0, lo=lo)))
        else: scen.append(flat([VM("", "ctxst"), n_ctx, sigA, prow0, n_w0, prox, redA, pro2, body], dict(w0=w0, lo=lo)))
    resolve(scen)
    k.e("s_and_b32 s36, s29, 28")
    k.e(f"s_sub_u32 s40, {15+CNT_CTX}, s30")
    k.e("s_lshl_b32 s40, s40, 7")
    k.e("s_add_u32 s40, s40, s36")
    k.e(f"s_add_u32 s41, s30, {CNT_CTX}")
    k.e("s_lshl_b32 s41, s41, 7")
    k.e("s_add_u32 s41, s41, s36")
    p4_setup(k)
    pb = cfg.get("pb", "")
    rest = lines(srd, 4, 54, 16777216 + DELTA, WS_CTX) + lines(srd, 16, 96, 4194304) + lines(srd, 20, 98, 4194304) + [x.strip() for x in kx.lines] + lines(p4_setup2)
    if cfg.get("rp"):
        M0 = (1 << int(cfg.get("rdy0", 2))) - 1
        l7, lj, l1, l2 = [k.newlabel("rp") for _ in range(4)]
        if cfg["rp"] == "1": emit(k, [prow0[:2], rest])
        else: emit(k, [prow0[0], rest, prow0[1]])
        k.e(["s_mov_b32 s60, 31", f"v_mov_b32 v60, {A.LDS_MSG+2176}", "s_cmp_eq_u32 s28, 7", f"s_cbranch_scc1 {l7}", "s_waitcnt vmcnt(12)"])
        ffn2_math(k)
        k.label(lj)
        A.OOL.append([l7 + ":", "v_min_u32 v58, 3, v1", "s_lshl_b32 s36, s63, 2", "v_add_u32 v58, s36, v58", f"s_add_u32 s36, s29, {CNT_CTX}",
                      "s_lshl_b32 s36, s36, 7", "v_lshl_add_u32 v58, v58, 2, s36", "global_load_dword v59, v58, s[90:91] sc1", "s_waitcnt vmcnt(0)",
                      "v_cmp_le_u32 vcc, 4, v59", f"s_mov_b32 s44, {2*M0+1}", "s_and_b32 s60, vcc_lo, 31", "v_mov_b32 v61, s60", "ds_write_b32 v60, v61",
                      f"s_branch {lj}"])
        emit(k, [n_w0, "s_waitcnt lgkmcnt(0)", "s_barrier", "ds_read_b32 v61, v60", sigA])
        st.mark()
        emit(k, prow0[2:])
        k.e(["s_waitcnt lgkmcnt(0)", "v_readfirstlane_b32 s43, v61", "s_nop 0", f"s_and_b32 s43, s43, {M0}", f"s_cmp_eq_u32 s43, {M0}", f"s_cbranch_scc0 {l1}"])
        k.label(l2)
        ln_ = k.newlabel("rp")
        A.OOL.append([l1 + ":", "s_cmp_eq_u32 s28, 7", f"s_cbranch_scc0 {ln_}", f"s_mov_b32 s44, {M0}"] + ctx_ready(k) + [ln_ + ":", "s_barrier", f"s_branch {l2}"])
        st.mark(); st.mark()
    else:
        if "s" in pb: k.e(rest)
        if "m" in pb:
            l7 = k.newlabel("w7")
            emit(k, ["s_waitcnt vmcnt(4)", "s_cmp_eq_u32 s28, 7", f"s_cbranch_scc1 {l7}"] + lines(ffn2_math) + [l7 + ":"])
        emit(k, [n_ctx, "s_barrier", sigA])
        st.mark()
        if "m" in pb: emit(k, prow0)
        else:
            lm, lm1, lm2 = k.newlabel("f2m"), k.newlabel("f2a"), k.newlabel("f2b")
            A.OOL.append([lm + ":"] + lines(ffn2_math) + ["s_cmp_lt_u32 s28, 4", f"s_cbranch_scc1 {lm2}", f"s_branch {lm1}"])
            k.e("s_bitcmp1_b32 0x70, s28")
            k.e(f"s_cbranch_scc1 {lm}")
            k.label(lm1)
            emit(k, prow0)
            k.e("s_cmp_lt_u32 s28, 4")
            k.e(f"s_cbranch_scc1 {lm}")
            k.label(lm2)
        if "s" not in pb: k.e(rest)
        k.e("s_mov_b32 s60, 31")
        lj = k.newlabel("w7j")
        k.e(f"s_cmp_eq_u32 s28, {cfg.get('pw', 3)}")
        k.e(f"s_cbranch_scc0 {lj}")
        if skew:
            k.e(["s_sub_u32 s36, s62, 1", "v_add_u32 v58, s36, v1", "s_or_b32 s36, s62, 3", "v_min_u32 v58, s36, v58", "v_writelane_b32 v58, 0, 0"])
        else:
            k.e(["v_min_u32 v58, 3, v1", "s_lshl_b32 s36, s63, 2", "v_add_u32 v58, s36, v58"])
        k.e(f"s_add_u32 s36, s29, {CNT_CTX}")
        k.e("s_lshl_b32 s36, s36, 7")
        k.e("v_lshl_add_u32 v58, v58, 2, s36")
        k.e(f"s_mov_b32 s44, {(1 << int(cfg.get('rdy0', 2))) - 1}")
        emit(k, ctx_ready(k))
        k.label(lj)
        emit(k, [n_w0])
        k.e("s_waitcnt lgkmcnt(0)")
        st.mark()
        k.e("s_barrier")
        st.mark()
    emit(k, prox)
    emit(k, [redA])
    k.e("v_lshlrev_b32 v22, 4, v1")
    k.e(["v_mov_b32 v18, v22"] + hole("e", "v18"))
    k.e("v_add_u32 v20, s42, v22")
    k.e("v_xor_b32 v21, 16384, v20")
    k.e(ex_addr())
    k.e("s_mov_b32 s41, s36")
    k.e(f"s_xor_b32 s39, s36, {PX() << 15}")
    k.e(f"s_add_u32 s40, s2, {CNT_EX}")
    k.e("s_lshl_b32 s40, s40, 7")
    emit(k, pro2)
    st.mark()
    emit(k, body)
    st.mark()
    cfg["st5"].mark()
    p4_final(k, cfg)
    cfg["st5"].mark()

def gen_fused(cfg, name):
    cfg = dict(cfg, stflag=SC, pro_hook=pro_hook, pro_wait=pro_wait, bar_hook=bar_hook, b_hook=b_hook, b_inline=["buffer_load_dword v0, v13, s[4:7], s48 offen", f"s_add_u32 s48, s48, {128*int(cfg.get('btl', 32))}"], before_merge=before_merge, tail_extra=tail_extra, share=1)
    CFG.update(cfg)
    HOLE[0] = cfg.get("hole", "")
    Z64[0] = not cfg.get("noz64")
    k = K(name)
    k.e("s_cmp_ge_u32 s2, 256")
    k.e("s_cbranch_scc1 L_end")
    stq = cfg.get("stamp", "")
    st = Stamps(k, bool(stq), kid=0)
    off = Stamps(k, False)
    st.mark()
    cfg["stp"] = st if "p" in stq else off
    cfg["sth3"] = st if "c" in stq else off
    cfg["sth4"] = st if "d" in stq else off
    cfg["st5"] = st if "5" in stq else off
    cfg["sth1"] = st if "a" in stq else off
    cfg["sth2"] = st if "b" in stq else off
    p1(k, cfg, st if "1" in stq else off)
    if "b" in stq: st.mark()
    p2(k, cfg, st if "2" in stq else off)
    k.e("s_load_dwordx2 s[32:33], s[0:1], 40")
    k.e("s_load_dwordx2 s[34:35], s[0:1], 80")
    k.e("s_load_dwordx2 s[96:97], s[0:1], 0")
    k.e("s_load_dwordx2 s[98:99], s[0:1], 88")
    s3 = st if "3" in stq else off
    k.e("s_cmp_lt_u32 s28, 4")
    k.e("s_cbranch_scc0 L_grp1")
    A.gen_p3(k, cfg, 0, s3, after_q, before_tail)
    k.e("s_branch L_p3_done")
    A.flush_ool(k)
    k.label("L_grp1")
    A.gen_p3(k, cfg, 1, s3, after_q, before_tail)
    k.e("s_branch L_p3_done")
    A.flush_ool(k)
    k.label("L_p3_done")
    st.mark()
    p4(k, cfg, st if "4" in stq else off)
    st.dump(54, "s28")
    if cfg.get("stdbg"):
        k.e("s_lshl_b32 s36, s28, 8"); k.e("s_add_u32 s36, s36, s2")
        k.e(f"s_cmp_eq_u32 s36, {cfg['stdbg']}"); k.e("s_cbranch_scc0 L_end")
        k.e("v_mov_b32 v2, 0"); k.e("s_mov_b64 exec, 1")
        for i in range(1, st.n):
            k.e(f"s_sub_u32 s36, s{st.base+2*i+1}, s{st.base+1}")
            k.e("v_mov_b32 v3, s36")
            k.e(f"global_store_dword v2, v3, s[88:89] offset:{4*i}")
    k.e("s_endpgm")
    A.flush_ool(k)
    k.label("L_end")
    return wrap(k, 256)
```

```python
import sys
from common import *
from fused_b import gen_fused
NAME = "recurrent_scan__compressed_kv_cla__moe_arch_mod__prompt_kernel"
if __name__ == "__main__":
    out = sys.argv[1]
    cfg = dict(cs="2", dsp="2.5", wstep="2", lag="1", nt="wf", nodry="1", ofl="sc1", cpf="34", btl="32", xa="2", pb="s", evn="0x75643120", btj="5", uni="3", u2="1", g1="124", tq="1", t0="1", cp="3", gin="0", xpre="0", cst="2.6", fs="3", nf="2", lx="30", lw="28", xw="0", pro2="1", eil="1", mp="20")
    cfg.update(dict(a.split("=") for a in sys.argv[2:]))
    part = gen_fused(cfg, NAME)
    if cfg.get("allsc"):
        import re
        fl = cfg["allsc"].replace("_", " ")
        code = "\n".join(re.sub(r"(offset:\d+)( nt)? lds$", lambda m: f"{m.group(1)} {fl}{m.group(2) or ''} lds", l) if " sc1" not in l else l for l in part[0].split("\n"))
        part = (code, part[1])
    build([part], [f"; @launch kernel={NAME} grid=(256,1,1) block=(512,1,1) lds=163840"], out)
```
